```python
import torch

def _softmax(x, axis=-1):
    return torch.softmax(x, dim=axis)
def _gelu(x):
    return torch.nn.functional.gelu(x, approximate="tanh")
def _silu(x):
    return torch.nn.functional.silu(x)
def _sigmoid(x):
    return torch.sigmoid(x)
def _layernorm(x, axis=-1, eps=1e-5):
    m = x.mean(dim=axis, keepdim=True)
    v = x.var(dim=axis, keepdim=True, unbiased=False)
    return (x - m) / torch.sqrt(v + eps)
def _scatter_add(tgt, idx, src, axis=0):
    return tgt.clone().index_add_(axis, idx, src)
def _segment_sum(src, seg, n):
    out = torch.zeros((n,) + src.shape[1:], dtype=src.dtype)
    return out.index_add_(0, seg, src)
def _pad(x, pw):
    flat = tuple(v for pair in reversed(pw) for v in pair)
    return torch.nn.functional.pad(x, flat)

kernel_name = 'gated_mix__sliding_block__swiglu_ffn__prompt'

def setup_inputs():

    _w = (lambda a: (lambda t: t.to(torch.bfloat16) if t.is_floating_point() else t)(torch.as_tensor(a)))
    def _A_setup():
        B, S, D = 1, 2048, 1024
        return {
            "x": _w((lambda *s: torch.randn(*s, dtype=torch.bfloat16) * 0.05)(B, S, D)),
            "wqkv": _w((lambda *s: torch.randn(*s, dtype=torch.bfloat16) * 1.6)(D, 3 * D)),
            "wo": _w((lambda *s: torch.randn(*s, dtype=torch.bfloat16) * 0.1)(D, D)),
        }
    _A_in = _A_setup()

    def _B_setup():
        B, S, D, F = 1, 2048, 1024, 3584
        return {
            "x": _w((lambda *s: torch.randn(*s, dtype=torch.bfloat16) * 0.05)(B, S, D)),
            "w_gate": _w((lambda *s: torch.randn(*s, dtype=torch.bfloat16) * 0.4)(D, F)),
            "w_up": _w((lambda *s: torch.randn(*s, dtype=torch.bfloat16) * 0.4)(D, F)),
            "w_down": _w((lambda *s: torch.randn(*s, dtype=torch.bfloat16) * 0.4)(F, D)),
        }
    _B_in = _B_setup()

    return {
        "A_x": _A_in["x"],
        "A_wqkv": _A_in["wqkv"],
        "A_wo": _A_in["wo"],
        "B_x": _B_in["x"],
        "B_w_gate": _B_in["w_gate"],
        "B_w_up": _B_in["w_up"],
        "B_w_down": _B_in["w_down"],
        "gate_w": _w((lambda *s: torch.randn(*s, dtype=torch.bfloat16) * 0.05)(1024) * 16.0),
    }

def reference(A_x, A_wqkv, A_wo, B_x, B_w_gate, B_w_up, B_w_down, gate_w):
    def _A_ref(x, wqkv, wo):
        B, S, D = x.shape
        H = 32; Dh = D // H; W = 256
        qkv = (lambda x, *d: x.permute(*d))((x @ wqkv).reshape(B, S, 3, H, Dh), 2, 0, 3, 1, 4)
        q, k, v = qkv[0], qkv[1], qkv[2]
        scores = torch.einsum("bhqd,bhkd->bhqk", q, k) * (Dh ** -0.5)
        idx = torch.arange(S)
        mask = (idx[:, None] - idx[None, :] >= 0) & (idx[:, None] - idx[None, :] < W)
        scores = torch.where(mask[None, None], scores, -1e9)
        p = _softmax(scores, axis=-1)
        o = torch.einsum("bhqk,bhkd->bhqd", p, v)
        return (lambda x, *d: x.permute(*d))(o, 0, 2, 1, 3).reshape(B, S, D) @ wo

    def _B_ref(x, w_gate, w_up, w_down):
        g = _silu(x @ w_gate)
        u = x @ w_up
        return (g * u) @ w_down

    x = A_x
    g = _sigmoid((x * gate_w).sum(-1, keepdims=True))
    a = _A_ref(x, A_wqkv, A_wo)
    b = _B_ref(x, B_w_gate, B_w_up, B_w_down)
    return g * a + (1 - g) * b
```

```python
import re, sys

def regs_of(tok):
    tok = tok.strip()
    neg = tok.lstrip('-')
    m = re.fullmatch(r'(?:abs\()?\|?([vsa])(\d+)\|?\)?', neg)
    if m: return [(m.group(1), int(m.group(2)))]
    m = re.fullmatch(r'([vsa])\[(\d+):(\d+)\]', neg)
    if m: return [(m.group(1), i) for i in range(int(m.group(2)), int(m.group(3))+1)]
    if neg in ('vcc',): return [('s','vcc')]
    if neg in ('exec',): return [('s','exec')]
    if neg in ('m0',): return [('s','m0')]
    return []

TRANS = ('v_exp_f32','v_log_f32','v_rcp_f32','v_rsq_f32','v_sqrt_f32','v_sin_f32','v_cos_f32')

class I:
    pass

def parse(line):
    line = line.split(';')[0].strip()
    if not line or line.startswith('.') : return None
    if line.endswith(':'):
        i = I(); i.kind='label'; i.name=line[:-1]; i.text=line; return i
    parts = line.split(None,1)
    op = parts[0]; rest = parts[1] if len(parts)>1 else ''
    ops=[]; depth=0; cur=''
    for ch in rest:
        if ch=='[': depth+=1
        if ch==']': depth-=1
        if ch==',' and depth==0: ops.append(cur); cur=''
        else: cur+=ch
    ops.append(cur)
    ops=[o.strip() for o in ops]
    mods=''
    if ops and ' ' in ops[-1]:
        a,b = ops[-1].split(None,1); ops[-1]=a; mods=b
    i=I(); i.op=op; i.text=line; i.mods=mods; i.ops=ops
    i.w=[]; i.r=[]; i.srcc=[]; i.ab=[]; i.states=1
    R=[regs_of(o) for o in ops]
    if op.startswith('v_mfma'):
        i.kind='mfma'; i.w=R[0]; i.ab=R[1]+R[2]; i.srcc=R[3]; i.r=i.ab+i.srcc
        i.passes = 8 if '32x32x16' in op else 4
    elif op.startswith('v_cmp'):
        i.kind='valu'; i.w=R[0]; i.r=sum(R[1:],[])
    elif op.startswith('v_permlane') or op.startswith('v_swap'):
        i.kind='valu'; i.w=R[0]+R[1]; i.r=R[0]+R[1]
    elif op.startswith('v_readfirstlane') or op.startswith('v_readlane'):
        i.kind='valu'; i.w=R[0]; i.r=sum(R[1:],[])
    elif op.startswith('v_'):
        i.kind='valu'; i.w=R[0]; i.r=sum(R[1:],[])
        if op.startswith('v_fmac') or op.startswith('v_dot2c') or 'dpp' in op: i.r+=R[0]
        if '_co_' in op: i.w+=R[1]
    elif op.startswith('ds_read'):
        i.kind='ds'; i.w=R[0]; i.r=R[1]
    elif op.startswith('ds_write'):
        i.kind='ds'; i.r=sum(R,[])
    elif op.startswith('ds_'):
        i.kind='ds'; i.w=R[0]; i.r=sum(R[1:],[])
    elif op.startswith('buffer_load'):
        i.kind='vmem'
        if 'lds' in mods.split(): i.r=sum(R,[])+[('s','m0')]; i.dma=True
        else: i.w=R[0]; i.r=sum(R[1:],[])
    elif op.startswith('global_load'):
        i.kind='vmem'; i.w=R[0]; i.r=sum(R[1:],[])
    elif op.startswith('buffer_store') or op.startswith('buffer_atomic'):
        i.kind='vmem'; i.r=sum(R,[]); i.data=R[0]
        if op.startswith('buffer_atomic') and 'sc0' in mods.split(): i.w=R[0]
    elif op.startswith('buffer_'):
        i.kind='vmem'
    elif op=='s_nop':
        i.kind='salu'; i.states=int(ops[0],0)+1
    elif op.startswith('s_cbranch') or op=='s_branch':
        i.kind='branch'; i.target=ops[0]
    elif op.startswith('s_cmp') or op.startswith('s_bitcmp'):
        i.kind='salu'; i.r=sum(R,[])
    elif op.startswith('s_'):
        i.kind='salu'
        if R and op not in ('s_waitcnt','s_barrier','s_setprio','s_sleep','s_endpgm'):
            i.w=R[0]; i.r=sum(R[1:],[])
            if 'saveexec' in op: i.w+= [('s','exec')]
    else:
        raise Exception('unparsed '+line)
    return i

def check_seq(seq, errs, junction=None):
    for n,c in enumerate(seq):
        if c.kind in ('label',): continue
        d=0
        k=n-1
        while k>=0 and d<20:
            p=seq[k]; k-=1
            if p.kind=='label': continue
            if getattr(p,'op','') in ('s_branch','s_endpgm') and p is not junction: break
            need=0; why=''
            pw=set(p.w); cr=set(c.r); cw=set(c.w)
            if p.kind=='mfma':
                big = 12 if p.passes==8 else 8
                if c.kind=='mfma':
                    if pw & set(c.ab): need=big; why='mfma D->A/B'
                    elif pw & set(c.srcc) and (p.w!=c.srcc or p.passes!=c.passes): need=big-2; why='mfma D->C partial'
                    elif pw & cw and p.w!=c.srcc: need=big-2; why='mfma D->D waw(conservative)'
                elif c.kind in('valu','ds','vmem'):
                    if pw & (cr|cw): need=big; why='mfma D->valu/mem'
                    elif c.kind=='valu' and set(p.srcc)&cw: need=7 if p.passes==8 else 3; why='mfma C WAR'
            elif p.kind=='valu':
                pv={x for x in pw if x[0] in 'va'}; ps={x for x in pw if x[0]=='s'}
                if c.kind=='mfma' and pv&cr: need=2; why='valu->mfma'
                if c.kind=='valu':
                    if c.op.startswith('v_permlane') and pv&cr: need=2; why='valu->permlane'
                    if 'dpp' in c.op and pv&cr: need=max(need,2); why='valu->dpp'
                    if (c.op.startswith('v_readfirstlane') or c.op.startswith('v_readlane')) and pv&cr: need=max(need,1); why='valu->readlane'
                    if p.op.replace('_e32','').replace('_e64','') in TRANS and pv&cr and c.op.replace('_e32','').replace('_e64','') not in TRANS: need=max(need,1); why='trans->valu'
                    if ps&cr: need=max(need,2); why='valu sgpr->valu'
                    if p.op.startswith('v_dot') and (pv&(cr|cw)) and not (c.op==p.op): need=max(need,3); why='dot->other'
                if c.kind in('ds','vmem') and p.op.startswith('v_dot') and pv&cr: need=max(need,3); why='dot->mem'
                if c.kind=='vmem' and ps&cr: need=5; why='valu sgpr->vmem'
            elif p.kind=='salu':
                if ('s','m0') in pw and c.kind=='vmem' and getattr(c,'dma',False): need=1; why='m0->dma'
            elif p.kind=='vmem' and hasattr(p,'data') and len(p.data)>=3:
                if set(p.data)&cw: need=2 if c.kind=='valu' else 1; why='store data WAR'
            if need>d:
                errs.append(f'HAZARD {why}: need {need} have {d}: [{p.text}] -> [{c.text}]')
            d+=p.states

def check(text):
    ins=[parse(l) for l in text.splitlines()]
    ins=[i for i in ins if i]
    errs=[]
    check_seq(ins,errs)
    labels={i.name:n for n,i in enumerate(ins) if i.kind=='label'}
    for n,i in enumerate(ins):
        if i.kind=='branch' and i.target in labels:
            t=labels[i.target]
            seq=ins[max(0,n-24):n+1]+ins[t:t+24]
            check_seq(seq,errs,i)
    return sorted(set(errs))

if __name__=='__main__':
    e=check(open(sys.argv[1]).read())
    print('\n'.join(e) if e else 'hazard check clean')
```

```python
import sys, struct
NAME = "gated_mix__sliding_block__swiglu_ffn__prompt"
K1 = NAME + "_kernel"
K2 = "gm_down_kernel"

OPT = dict(stamp=0, mimic=0, np_stages=17, jbw=0, jbx=0,
           xoff=[1,2,3,4], woff=[1,2,3,4,5], prio=0)
for a in sys.argv[2:]:
    k, v = a.split('=')
    OPT[k] = eval(v)

def f32(x): return "0x%08x" % struct.unpack('<I', struct.pack('<f', x))[0]
def vr(a, n=1): return f"v[{a}:{a+n-1}]" if n > 1 else f"v{a}"
def sr(a, n=1): return f"s[{a}:{a+n-1}]" if n > 1 else f"s{a}"

class Gen:
    def __init__(s): s.L = []; s.q = []
    def e(s, t): s.L.append("    " + t)
    def lab(s, t): s.L.append(t + ":")
    def c(s, t): s.L.append("    ; " + t)
    def lds(s, t, tag): s.e(t); s.q.append(tag)
    def need_n(s, tags):
        idx = [i for i, t in enumerate(s.q) if t in tags]
        if not idx: return None
        n = len(s.q) - 1 - max(idx)
        s.q = s.q[max(idx)+1:]
        return min(n, 15)
    def need(s, tags, vm=None):
        n = s.need_n(tags)
        w = []
        if vm is not None: w.append(f"vmcnt({vm})")
        if n is not None: w.append(f"lgkmcnt({n})")
        if w: s.e("s_waitcnt " + " ".join(w))

WS_A = 0; A_BYTES = 64*288*1024
WS_KV = 0x1400000
WS_G = 0x1C00000
WS_PART = 0x2000000
WS_STAMP = 0x3000000
WS_SIZE = 0x4000000
LOG2E = 1.4426950408889634

def srd(g, d, lo, hi, size):
    g.e(f"s_mov_b32 s{d}, s{lo}")
    g.e(f"s_and_b32 s{d+1}, s{hi}, 0xffff")
    g.e(f"s_mov_b32 s{d+2}, {size:#x}")
    g.e(f"s_mov_b32 s{d+3}, 0x20000")

def stamp(g, idx, base):
    if OPT['stamp']:
        g.e(f"s_memtime s[{base+2*idx}:{base+2*idx+1}]")

def stamp_out(g, n, base, swave, sws, kidx, nw_log):
    if not OPT['stamp']: return
    g.e("s_waitcnt lgkmcnt(0)")
    g.e(f"s_lshl_b32 s{base-1}, s2, 3")
    g.e(f"s_add_u32 s{base-1}, s{base-1}, s{swave}")
    g.e(f"s_lshl_b32 s{base-1}, s{base-1}, 6")
    g.e(f"s_add_u32 s{base-1}, s{base-1}, {WS_STAMP + kidx*0x100000:#x}")
    g.e("s_mov_b64 exec, 1")
    for i in range(n):
        g.e(f"v_mov_b32 v1, s{base+2*i}")
        g.e(f"buffer_store_dword v1, off, {sr(sws,4)}, s{base-1} offset:{4*i}")
    g.e("s_getreg_b32 s%d, hwreg(HW_REG_XCC_ID)" % (base))
    g.e(f"v_mov_b32 v1, s{base}")
    g.e(f"buffer_store_dword v1, off, {sr(sws,4)}, s{base-1} offset:60")
    g.e("s_mov_b64 exec, -1")

XSLOT = 32768; WBASE = 65536; HALF = 20736; WSLOT = 2*HALF; GOFF = 6144; UOFF = 6144+7168+128
K1_LDS = WBASE + 2*WSLOT
QLDS = 65536
sW, sRB, sH, sMW, sNW = 3, 4, 5, 6, 7
sX, sA, sB, sQ, sWS, sDBG, sGW = 8, 12, 16, 20, 24, 28, 32
sKX, sOW, sMWd, sINCA, sMX, sCNT, sKXE = 36, 37, 42, 47, 48, 49, 50
sT = 52
sP = 64
sST = 82
vLANE, vL16 = 1, 2
vDX, vDA, vDB = 4, 8, 9
vXR, vWQ, vWG = 10, 14, 16
vT = 20
vWF, vXF, vACC = 60, 80, 96
def ACC(j, i): return vACC + (2*j+i)*16
UNITS = [['q','k',0,1,2], ['v',3,4,5,6]]

def k1_wread(g, nw, j, u):
    t = u >> 1; sig = (t+1) >> 1; half = (t+1) & 1; r16 = u & 1; slot = sig & 1
    un = UNITS[nw][j]
    for tr in range(2):
        if isinstance(un, str):
            off = half*HALF + 'qkv'.index(un)*2048 + r16*1024 + tr*256; a = vWQ + slot
        else:
            off = half*HALF + r16*3584 + tr*896 + un*32; a = vWG + slot
        g.lds(f"ds_read_b64_tr_b16 {vr(vWF+4*j+2*tr,2)}, v{a} offset:{off}", ('W', j))

def k1_xread(g, i, u):
    s = u >> 2; c = u & 3; slot = s & 1
    g.lds(f"ds_read_b128 {vr(vXF+8*(u&1)+4*i,4)}, v{vXR+c} offset:{slot*XSLOT+i*4096}", ('X', u & 1, i))

def k1_dma_x(g, n, slot):
    if n == 0 or True:
        g.e(f"s_add_u32 m0, s{sMX}, {slot*XSLOT}")
    g.e("s_nop 0")
    g.e(f"buffer_load_dwordx4 v{vDX+n}, {sr(sX,4)}, s{sKX} offen offset:{1024*n} lds")
def k1_adv_x(g):
    g.e(f"s_add_u32 s{sKX}, s{sKX}, 128")
    g.e(f"s_cmp_ge_u32 s{sKX}, s{sKXE}")
    g.e(f"s_cselect_b32 s{sX+2}, 0, s{sX+2}")
def k1_dma_w(g, n, slot, first=False):
    g.e(f"s_add_u32 m0, s{sMWd+n}, {slot*WSLOT}")
    d = [sA, sA, sB, sB, sQ][n]; v = vDA if n < 4 else vDB
    if first:
        g.e(f"s_cmp_lt_i32 s{sOW+n}, 0")
        g.e(f"s_cbranch_scc1 L1_skipw{n}")
    else:
        g.e("s_nop 0")
    g.e(f"buffer_load_dwordx4 v{v}, {sr(d,4)}, s{sOW+n} offen lds")
    if first: g.lab(f"L1_skipw{n}")
    if n < 4: g.e(f"s_add_u32 s{sOW+n}, s{sOW+n}, s{sINCA}")
    else: g.e(f"s_add_u32 s{sOW+n}, s{sOW+n}, {64*6144}")

def k1_body(g, nw):
    dma = {}
    for cb in (3, 7):
        for n, o in enumerate(OPT['xoff']):
            dma.setdefault((cb*5 + o) % 40, []).append(('x', n, (cb >> 2) & 1))
    for cb in (1, 5):
        for n, o in enumerate(OPT['woff']):
            dma.setdefault((cb*5 + o) % 40, []).append(('w', n, (cb >> 2) & 1))
    for c in range(8):
        isbw = (c & 3) == 1; isbx = (c & 3) == 3
        jb = OPT['jbw'] if isbw else (OPT['jbx'] if isbx else -1)
        xj = [max(jb, 0) + 1, max(jb, 0) + 2] if isbx else [1, 2]
        for j in range(5):
            un = UNITS[nw][j]
            for i in range(2):
                g.need([('W', j), ('X', c & 1, i)])
                a, b = vr(vWF+4*j, 4), vr(vXF+8*(c & 1)+4*i, 4)
                if un == 'v': a, b = b, a
                g.e(f"v_mfma_f32_32x32x16_bf16 {vr(ACC(j,i),16)}, {a}, {b}, {vr(ACC(j,i),16)}")
                if i == 0:
                    for ii in range(2):
                        if xj[ii] == j: k1_xread(g, ii, (c+1) % 8)
                    for (kind, n, slot) in dma.get(c*5+j, []):
                        if kind == 'x':
                            k1_dma_x(g, n, slot)
                            if n == 3: k1_adv_x(g)
                        else: k1_dma_w(g, n, slot)
            if j == jb:
                if isbw:
                    g.need([('W', k) for k in range(5)], vm=4)
                else:
                    g.need([('X', c & 1, 0), ('X', c & 1, 1)], vm=5)
                g.e("s_barrier")
            if isbw and j < jb: pass
            elif isbw and j == jb:
                for k in range(j+1): k1_wread(g, nw, k, (c+1) % 8)
            else:
                k1_wread(g, nw, j, (c+1) % 8)

def silu_unit(g, base, t):
    for e in range(8): g.e(f"v_mul_f32 v{t+e}, {f32(-LOG2E)}, v{base+e}")
    for e in range(8): g.e(f"v_exp_f32 v{t+e}, v{t+e}")
    for e in range(8): g.e(f"v_mul_f32 v{base+e}, v{base+e}, v{base+8+e}")
    for e in range(8): g.e(f"v_add_f32 v{t+e}, 1.0, v{t+e}")
    for e in range(8): g.e(f"v_rcp_f32 v{t+e}, v{t+e}")
    g.e("s_nop 0")
    for e in range(8): g.e(f"v_mul_f32 v{base+e}, v{base+e}, v{t+e}")
    for e in range(4): g.e(f"v_cvt_pk_bf16_f32 v{base+e}, v{base+2*e}, v{base+2*e+1}")

def pack16(g, base):
    for e in range(8): g.e(f"v_cvt_pk_bf16_f32 v{base+e}, v{base+2*e}, v{base+2*e+1}")

def gen_k1(g):
    g.L += [".globl " + K1, ".p2align 8", f".type {K1},@function"]
    g.lab(K1)
    g.e("s_cmp_ge_u32 s2, 256")
    g.e("s_cbranch_scc1 L1_end")
    stamp(g, 0, sST)
    g.e(f"s_load_dwordx4 {sr(sP,4)}, s[0:1], 0")
    g.e(f"s_load_dwordx4 {sr(sP+4,4)}, s[0:1], 32")
    g.e(f"s_load_dwordx2 {sr(sP+8,2)}, s[0:1], 56")
    g.e(f"s_load_dwordx4 {sr(sP+12,4)}, s[0:1], 72")
    g.e(f"v_lshrrev_b32 v{vT}, 6, v0")
    g.e(f"v_and_b32 v{vLANE}, 63, v0")
    g.e(f"v_readfirstlane_b32 s{sW}, v{vT}")
    g.e(f"s_lshr_b32 s{sRB}, s2, 5")
    g.e(f"s_and_b32 s{sH}, s2, 7")
    g.e(f"s_lshl_b32 s{sH}, s{sH}, 2")
    g.e(f"s_bfe_u32 s{sT}, s2, {(2<<16)|3:#x}")
    g.e(f"s_add_u32 s{sH}, s{sH}, s{sT}")
    g.e(f"s_and_b32 s{sMW}, s{sW}, 3")
    g.e(f"s_lshr_b32 s{sNW}, s{sW}, 2")
    L = vLANE
    g.e(f"v_lshlrev_b32 v{vL16}, 4, v{L}")
    g.e(f"v_lshrrev_b32 v{vT}, 3, v{L}")
    g.e(f"v_lshlrev_b32 v{vT}, 11, v{vT}")
    g.e(f"v_lshrrev_b32 v{vT+1}, 4, v{L}")
    g.e(f"v_and_b32 v{vT+2}, 7, v{L}")
    g.e(f"v_xor_b32 v{vT+1}, v{vT+1}, v{vT+2}")
    g.e(f"v_lshl_add_u32 v{vDX}, v{vT+1}, 4, v{vT}")
    g.e(f"v_xor_b32 v{vDX+1}, 64, v{vDX}")
    g.e(f"v_add_u32 v{vDX+2}, {2*15360}, v{vDX}")
    g.e(f"v_add_u32 v{vDX+3}, {3*15360}, v{vDX+1}")
    g.e(f"v_add_u32 v{vDX+1}, {15360}, v{vDX+1}")
    g.e(f"v_lshrrev_b32 v{vT}, 2, v{L}")
    g.e(f"v_mul_u32_u24 v{vT}, 6144, v{vT}")
    g.e(f"v_and_b32 v{vT+1}, 3, v{L}")
    g.e(f"v_lshl_add_u32 v{vDB}, v{vT+1}, 4, v{vT}")
    g.e(f"v_mul_u32_u24 v{vT}, 4682, v0")
    g.e(f"v_lshrrev_b32 v{vT}, 16, v{vT}")
    g.e(f"v_mul_u32_u24 v{vT+1}, 14, v{vT}")
    g.e(f"v_sub_u32 v{vT+1}, v0, v{vT+1}")
    g.e(f"v_mul_u32_u24 v{vT}, 7168, v{vT}")
    g.e(f"v_lshl_add_u32 v{vDA}, v{vT+1}, 4, v{vT}")
    g.e(f"v_cmp_le_u32 vcc, 448, v0")
    g.e("s_nop 1")
    g.e(f"v_cndmask_b32 v{vDA}, v{vDA}, v{vDB}, vcc")
    g.e(f"s_lshl_b32 s{sKX}, s{sRB}, 19")
    g.e(f"s_lshl_b32 s{sT}, s{sW}, 16")
    g.e(f"s_add_u32 s{sKX}, s{sKX}, s{sT}")
    g.e(f"s_add_u32 s{sKXE}, s{sKX}, 2048")
    g.e(f"s_lshl_b32 s{sMX}, s{sW}, 12")
    g.e(f"s_mul_i32 s{sT}, s{sH}, 224")
    g.e(f"s_add_u32 s{sOW+1}, s{sT}, 0")
    g.e(f"s_sub_u32 s{sOW+0}, s{sT}, {32*7168}")
    g.e(f"s_mov_b32 s{sOW+2}, s{sOW+0}")
    g.e(f"s_mov_b32 s{sOW+3}, s{sOW+1}")
    g.e(f"s_lshl_b32 s{sT}, s{sW}, 10")
    g.e(f"s_add_u32 s{sMWd+0}, s{sT}, {WBASE+GOFF}")
    g.e(f"s_add_u32 s{sMWd+1}, s{sT}, {WBASE+GOFF+HALF}")
    g.e(f"s_add_u32 s{sMWd+2}, s{sT}, {WBASE+UOFF}")
    g.e(f"s_add_u32 s{sMWd+3}, s{sT}, {WBASE+UOFF+HALF}")
    g.e(f"s_mov_b32 s{sINCA}, {64*7168}")
    def qpiece(p):
        half, unit, rg = p // 6, (p % 6) // 2, p % 2
        return (WBASE + half*HALF + unit*2048 + rg*1024, ((-32 + half*32 + rg*16)*6144 + unit*2048) & 0xffffffff)
    g.e(f"s_lshl_b32 s{sT+1}, s{sH}, 6")
    g.e(f"s_add_u32 s{sMWd+4}, s{sT}, {WBASE}")
    g.e(f"s_and_b32 s{sT+2}, s{sW}, 1")
    g.e(f"s_mul_i32 s{sT+2}, s{sT+2}, {16*6144}")
    g.e(f"s_lshr_b32 s{sT+3}, s{sW}, 1")
    g.e(f"s_lshl_b32 s{sT+3}, s{sT+3}, 11")
    g.e(f"s_add_u32 s{sT+2}, s{sT+2}, s{sT+3}")
    g.e(f"s_sub_u32 s{sOW+4}, s{sT+2}, {32*6144}")
    for w, p in ((6, 6), (7, 11)):
        l, o = qpiece(p)
        g.e(f"s_cmp_eq_u32 s{sW}, {w}")
        g.e(f"s_cselect_b32 s{sMWd+4}, {l:#x}, s{sMWd+4}")
        g.e(f"s_cselect_b32 s{sOW+4}, {o:#x}, s{sOW+4}")
    g.e(f"s_add_u32 s{sOW+4}, s{sOW+4}, s{sT+1}")
    g.e("s_waitcnt lgkmcnt(0)")
    srd(g, sX, sP, sP+1, 2048*2048)
    srd(g, sQ, sP+2, sP+3, 1024*6144)
    srd(g, sA, sP+4, sP+5, 1024*7168)
    srd(g, sB, sP+6, sP+7, 1024*7168)
    g.e(f"s_cmp_eq_u32 s{sW}, 7")
    g.e("s_cbranch_scc0 L1_not7")
    for d in (sA, sB):
        for k in range(3): g.e(f"s_mov_b32 s{d+k}, s{sQ+k}")
    for n in range(4):
        l, o = qpiece(7+n)
        g.e(f"s_mov_b32 s{sMWd+n}, {l:#x}")
        g.e(f"s_add_u32 s{sOW+n}, s{sT+1}, {o:#x}")
    g.e(f"s_mov_b32 s{sINCA}, {64*6144}")
    g.lab("L1_not7")
    for n in range(5): k1_dma_w(g, n, 0, True)
    for n in range(4): k1_dma_x(g, n, 0)
    k1_adv_x(g)
    for n in range(5): k1_dma_w(g, n, 1)
    npre = 0
    for n, o in enumerate(OPT['xoff']):
        if 35 + o < 40:
            k1_dma_x(g, n, 1); npre += 1
            if n == 3: k1_adv_x(g)
    srd(g, sGW, sP+8, sP+9, 2048)
    srd(g, sDBG, sP+12, sP+13, 256)
    srd(g, sWS, sP+14, sP+15, WS_SIZE)
    g.e(f"v_and_b32 v{vT}, 31, v{L}")
    g.e(f"s_lshl_b32 s{sT}, s{sMW}, 6")
    g.e(f"v_add_u32 v{vT}, s{sT}, v{vT}")
    g.e(f"v_lshlrev_b32 v{vT}, 7, v{vT}")
    g.e(f"v_lshrrev_b32 v{vT+1}, 5, v{L}")
    g.e(f"v_bfe_u32 v{vT+2}, v{L}, 1, 3")
    g.e(f"v_xor_b32 v{vT+2}, v{vT+1}, v{vT+2}")
    g.e(f"v_lshl_add_u32 v{vXR}, v{vT+2}, 4, v{vT}")
    for c in range(1, 4): g.e(f"v_xor_b32 v{vXR+c}, {32*c}, v{vXR}")
    g.e(f"v_bfe_u32 v{vT+2}, v{L}, 2, 2")
    g.e(f"v_lshl_add_u32 v{vT+2}, v{vT+1}, 3, v{vT+2}")
    g.e(f"v_and_b32 v{vT+3}, 3, v{L}")
    g.e(f"v_lshlrev_b32 v{vT+3}, 3, v{vT+3}")
    g.e(f"v_bfe_u32 v{vT+4}, v{L}, 4, 1")
    g.e(f"v_lshl_add_u32 v{vWQ}, v{vT+2}, 6, v{vT+3}")
    g.e(f"v_lshl_add_u32 v{vWQ}, v{vT+4}, 5, v{vWQ}")
    g.e(f"v_add_u32 v{vWQ}, {WBASE}, v{vWQ}")
    g.e(f"v_add_u32 v{vWQ+1}, {WSLOT}, v{vWQ}")
    g.e(f"v_mul_u32_u24 v{vWG}, 224, v{vT+2}")
    g.e(f"v_mul_u32_u24 v{vT+4}, {UOFF-GOFF}, v{vT+4}")
    g.e(f"v_add3_u32 v{vWG}, v{vWG}, v{vT+3}, v{vT+4}")
    g.e(f"v_add_u32 v{vWG}, {WBASE+GOFF}, v{vWG}")
    g.e(f"v_add_u32 v{vWG+1}, {WSLOT}, v{vWG}")
    for r in range(vACC, 256): g.e(f"v_mov_b32 v{r}, 0")
    g.e(f"s_mov_b32 s{sCNT}, 8")
    g.e(f"s_waitcnt vmcnt({5+npre})")
    g.e("s_barrier")
    stamp(g, 1, sST)
    if OPT['stamp']: g.e("s_waitcnt lgkmcnt(0)")
    g.e(f"s_cmp_eq_u32 s{sNW}, 1")
    g.e("s_cbranch_scc1 L1_path1")
    for nw in range(2):
        if nw == 1: g.lab("L1_path1")
        if OPT['prio'] and nw == 1: g.e("s_setprio 1")
        tmp = Gen(); k1_body(tmp, nw); steady = list(tmp.q)
        g.q = []
        for i in range(2): k1_xread(g, i, 0)
        for j in range(5): k1_wread(g, nw, j, 0)
        g.e("s_waitcnt lgkmcnt(0)")
        g.q = list(steady)
        g.L.append(".p2align 6")
        g.lab(f"L1_loop{nw}")
        k1_body(g, nw)
        assert g.q == steady
        g.e(f"s_sub_u32 s{sCNT}, s{sCNT}, 1")
        g.e(f"s_cmp_lg_u32 s{sCNT}, 0")
        g.e(f"s_cbranch_scc1 L1_loop{nw}")
        if OPT['prio'] and nw == 1: g.e("s_setprio 0")
        stamp(g, 2, sST)
        U = UNITS[nw]
        jkv = U.index('k') if nw == 0 else U.index('v')
        g.e("s_nop 7")
        for i in range(2): pack16(g, ACC(jkv, i))
        g.e(f"s_lshl_b32 s{sT}, s{sRB}, 5")
        g.e(f"s_add_u32 s{sT}, s{sT}, s{sH}")
        g.e(f"s_lshl_b32 s{sT+1}, s{sT}, 15")
        g.e(f"s_add_u32 s{sT+1}, s{sT+1}, {WS_KV:#x}")
        g.e(f"s_lshl_b32 s{sT+2}, s{sMW}, 13")
        g.e(f"s_add_u32 s{sT+2}, s{sT+2}, s{sT+1}")
        g.e(f"s_add_u32 s{sT+3}, s{sT+2}, 4096")
        for i in range(2):
            for f in range(2):
                g.e(f"buffer_store_dwordx4 {vr(ACC(jkv,i)+4*f,4)}, v{vL16}, {sr(sWS,4)}, s{sT+2+i} offen offset:{nw*2048+f*1024} sc1")
        g.e(f"s_mov_b32 s{sX+2}, {2048*2048:#x}")
        g.e(f"s_lshl_b32 s{sT+4}, s{sT}, 3")
        g.e(f"s_add_u32 s{sT+4}, s{sT+4}, s{sW}")
        g.e(f"s_lshl_b32 s{sT+5}, s{sT+4}, 11")
        g.e(f"v_lshlrev_b32 v{vT}, 5, v{L}")
        g.e("s_waitcnt lgkmcnt(0)")
        g.e(f"buffer_load_dwordx4 {vr(60,4)}, v{vT}, {sr(sX,4)}, s{sT+5} offen")
        g.e(f"buffer_load_dwordx4 {vr(64,4)}, v{vT}, {sr(sX,4)}, s{sT+5} offen offset:16")
        g.e(f"buffer_load_dwordx4 {vr(68,4)}, v{vT}, {sr(sGW,4)}, 0 offen")
        g.e(f"buffer_load_dwordx4 {vr(72,4)}, v{vT}, {sr(sGW,4)}, 0 offen offset:16")
        if nw == 0:
            for i in range(2): pack16(g, ACC(0, i))
        gus = [j for j in range(5) if not isinstance(U[j], str)]
        for i in range(2): silu_unit(g, ACC(gus[0], i), vT+8)
        g.e("s_waitcnt vmcnt(0)")
        g.e("s_barrier")
        stamp(g, 3, sST)
        if nw == 0:
            g.e(f"s_cmp_lg_u32 s{sW}, 0")
            g.e("s_cbranch_scc1 L1_noflag")
            g.e(f"s_lshr_b32 s{sT+6}, s{sT}, 2")
            g.e(f"s_lshl_b32 s{sT+6}, s{sT+6}, 2")
            g.e(f"s_and_b32 s{sT+7}, s{sT}, 3")
            g.e(f"s_lshl_b32 s{sT+7}, 1, s{sT+7}")
            g.e(f"v_mov_b32 v{vT}, s{sT+7}")
            g.e("s_mov_b64 exec, 1")
            g.e(f"buffer_atomic_or v{vT}, off, {sr(sDBG,4)}, s{sT+6} sc1")
            g.e("s_mov_b64 exec, -1")
            g.lab("L1_noflag")
        g.e(f"s_lshl_b32 s{sT+6}, s{sMW}, 13")
        g.e(f"v_add_u32 v{vT+1}, s{sT+6}, v{vL16}")
        for i in range(2):
            for f in range(2):
                g.e(f"ds_write_b128 v{vT+1}, {vr(ACC(jkv,i)+4*f,4)} offset:{32768+i*4096+nw*2048+f*1024}")
        if nw == 0:
            g.e(f"s_lshl_b32 s{sT+6}, s{sMW}, 12")
            g.e(f"s_add_u32 s{sT+6}, s{sT+6}, {QLDS}")
            g.e(f"v_add_u32 v{vT+2}, s{sT+6}, v{vL16}")
            for i in range(2):
                for f in range(2):
                    g.e(f"ds_write_b128 v{vT+2}, {vr(ACC(0,i)+4*f,4)} offset:{i*2048+f*1024}")
        g.e(f"s_lshl_b32 s{sT+6}, s{sRB}, 3")
        g.e(f"s_lshl_b32 s{sT+7}, s{sMW}, 1")
        g.e(f"s_add_u32 s{sT+6}, s{sT+6}, s{sT+7}")
        g.e(f"s_mul_i32 s{sT+6}, s{sT+6}, {288*1024}")
        g.e(f"s_mul_i32 s{sT+7}, s{sH}, {7*1024}")
        g.e(f"s_add_u32 s{sT+6}, s{sT+6}, s{sT+7}")
        g.e(f"s_add_u32 s{sT+6}, s{sT+6}, {WS_A + (64+U[gus[0]])*1024}")
        g.e(f"s_add_u32 s{sT+7}, s{sT+6}, {288*1024}")
        for n, j in enumerate(gus):
            for i in range(2):
                if n > 0: silu_unit(g, ACC(j, i), vT+8)
                g.e(f"buffer_store_dwordx4 {vr(ACC(j,i),4)}, v{vL16}, {sr(sWS,4)}, s{sT+6+i} offen offset:{n*1024}")
        if nw == 0: g.e("s_branch L1_common")
    g.lab("L1_common")
    t = vT+8
    g.e(f"v_mov_b32 v{t+6}, 0")
    g.e(f"v_mov_b32 v{t+7}, 0x3f803f80")
    for d in range(8):
        g.e(f"v_lshlrev_b32 v{t}, 16, v{60+d}")
        g.e(f"v_and_b32 v{t+1}, 0xffff0000, v{60+d}")
        g.e(f"v_lshlrev_b32 v{t+2}, 16, v{68+d}")
        g.e(f"v_and_b32 v{t+3}, 0xffff0000, v{68+d}")
        g.e(f"v_mul_f32 v{t}, v{t}, v{t+2}")
        g.e(f"v_mul_f32 v{t+1}, v{t+1}, v{t+3}")
        g.e(f"v_cvt_pk_bf16_f32 v{t+4}, v{t}, v{t+1}")
        g.e(f"v_lshlrev_b32 v{t}, 16, v{t+4}")
        g.e(f"v_and_b32 v{t+1}, 0xffff0000, v{t+4}")
        g.e(f"v_add_f32 v{t+6}, v{t+6}, v{t}")
        g.e(f"v_add_f32 v{t+6}, v{t+6}, v{t+1}")
    for m in ("quad_perm:[1,0,3,2] row_mask:0xf", "quad_perm:[2,3,0,1] row_mask:0xf", "row_half_mirror row_mask:0xf",
              "row_mirror row_mask:0xf", "row_bcast:15 row_mask:0xa", "row_bcast:31 row_mask:0xc"):
        g.e("s_nop 1")
        g.e(f"v_add_f32_dpp v{t+6}, v{t+6}, v{t+6} {m} bank_mask:0xf")
    g.e(f"v_cvt_pk_bf16_f32 v{t}, v{t+6}, v{t+6}")
    g.e(f"v_and_b32 v{t}, 0xffff0000, v{t}")
    g.e(f"v_mul_f32 v{t}, {f32(-LOG2E)}, v{t}")
    g.e(f"v_exp_f32 v{t}, v{t}")
    g.e("s_nop 0")
    g.e(f"v_add_f32 v{t}, 1.0, v{t}")
    g.e(f"v_rcp_f32 v{t}, v{t}")
    g.e("s_nop 0")
    g.e(f"v_cvt_pk_bf16_f32 v{t}, v{t}, v{t}")
    g.e(f"v_and_b32 v{t}, 0xffff0000, v{t}")
    g.e(f"s_lshl_b32 s{sT+4}, s{sT+4}, 2")
    g.e(f"s_add_u32 s{sT+4}, s{sT+4}, {WS_G:#x}")
    g.e("s_mov_b32 exec_lo, 0")
    g.e("s_brev_b32 exec_hi, 1")
    g.e(f"buffer_store_dword v{t}, off, {sr(sWS,4)}, s{sT+4}")
    g.e("s_mov_b64 exec, -1")
    stamp(g, 4, sST)
    g.e(f"s_lshl_b32 s{sT+6}, s{sW}, 12")
    g.e(f"v_add_u32 v{vT+1}, s{sT+6}, v{vL16}")
    g.e(f"s_cmp_eq_u32 s{sRB}, 0")
    g.e("s_cbranch_scc1 L1_rb0")
    g.e(f"s_sub_u32 s{sT+7}, s{sT}, 32")
    g.e(f"s_and_b32 s{sT+8}, s{sT+7}, 3")
    g.e(f"s_lshr_b32 s{sT+7}, s{sT+7}, 2")
    g.e(f"s_lshl_b32 s{sT+7}, s{sT+7}, 2")
    g.e(f"s_mov_b32 s{sT+9}, 0x8000")
    g.lab("L1_poll")
    g.e(f"buffer_load_dword v{vT+2}, off, {sr(sDBG,4)}, s{sT+7} sc1")
    g.e("s_waitcnt vmcnt(0)")
    g.e(f"v_readfirstlane_b32 s{sT+10}, v{vT+2}")
    g.e(f"s_sub_u32 s{sT+9}, s{sT+9}, 1")
    g.e("s_cbranch_scc1 L1_got")
    g.e(f"s_bitcmp1_b32 s{sT+10}, s{sT+8}")
    g.e("s_cbranch_scc1 L1_got")
    g.e("s_sleep 2")
    g.e("s_branch L1_poll")
    g.lab("L1_got")
    g.e(f"s_sub_u32 s{sT+7}, s{sT+1}, {32*32768}")
    for f in range(4):
        g.e(f"buffer_load_dwordx4 {vr(32+4*f,4)}, v{vT+1}, {sr(sWS,4)}, s{sT+7} offen offset:{f*1024} sc1")
    g.e("s_waitcnt vmcnt(0)")
    g.e("s_branch L1_kvw")
    g.lab("L1_rb0")
    for r in range(32, 48): g.e(f"v_mov_b32 v{r}, 0")
    g.lab("L1_kvw")
    for f in range(4):
        g.e(f"ds_write_b128 v{vT+1}, {vr(32+4*f,4)} offset:{f*1024}")
    g.e("s_waitcnt lgkmcnt(0)")
    g.e("s_barrier")
    stamp(g, 5, sST)
    if OPT['stamp']: g.e("s_waitcnt lgkmcnt(0)")
    vKV = vT+1; vQA = 3; vO = 4; vF = 32; vQ = 104; vS = 112; vM = 22; vSUM = 24
    g.q = []
    g.e(f"s_lshl_b32 s{sT+6}, s{sW}, 11")
    g.e(f"s_add_u32 s{sT+6}, s{sT+6}, {QLDS}")
    g.e(f"v_add_u32 v{vQA}, s{sT+6}, v{vL16}")
    for f in range(2): g.lds(f"ds_read_b128 {vr(vQ+4*f,4)}, v{vQA} offset:{f*1024}", ('Q', f))
    def kread(t):
        for f in range(2): g.lds(f"ds_read_b128 {vr(vF+8*t+4*f,4)}, v{vKV} offset:{t*4096+f*1024}", ('K', t, f))
    def vread(t):
        for f in range(2): g.lds(f"ds_read_b128 {vr(vF+8*t+4*f,4)}, v{vKV} offset:{t*4096+2048+f*1024}", ('V', t, f))
    for t in range(5): kread(t)
    for t in range(9):
        for f in range(2):
            g.need([('K', t, f), ('Q', f)])
            g.e(f"v_mfma_f32_32x32x16_bf16 {vr(vS+16*t,16)}, {vr(vF+8*t+4*f,4)}, {vr(vQ+4*f,4)}, " + ("0" if f == 0 else vr(vS+16*t,16)))
        if t + 5 < 9: kread(t+5)
    for t in range(6): vread(t)
    g.e(f"v_and_b32 v{vM}, 31, v{L}")
    g.e(f"v_lshrrev_b32 v{vM+1}, 5, v{L}")
    g.e(f"v_lshlrev_b32 v{vM+1}, 2, v{vM+1}")
    g.e(f"v_sub_u32 v{vM}, v{vM}, v{vM+1}")
    g.e(f"v_mov_b32 v{vM+1}, {f32(-1e30)}")
    g.e("s_nop 4")
    for rho in range(16):
        cst = 8*(rho >> 2) + (rho & 3)
        sm = sT + 12 + 2*(rho & 1) if False else None
        g.e(f"v_cmp_le_i32 vcc, {cst}, v{vM}")
        g.e("s_nop 1")
        g.e(f"v_cndmask_b32 v{vS+rho}, v{vS+rho}, v{vM+1}, vcc")
        g.e(f"v_cndmask_b32 v{vS+128+rho}, v{vM+1}, v{vS+128+rho}, vcc")
    g.e(f"s_cmp_eq_u32 s{sRB}, 0")
    g.e("s_cbranch_scc1 L1_mask0")
    g.lab("L1_maskback")
    g.e(f"v_max3_f32 v{vM}, v{vS}, v{vS+1}, v{vS+2}")
    g.e(f"v_max3_f32 v{vM+1}, v{vS+3}, v{vS+4}, v{vS+5}")
    r = 6; k = 0
    while r < 144:
        g.e(f"v_max3_f32 v{vM+k}, v{vM+k}, v{vS+r}, v{vS+r+1}"); r += 2; k ^= 1
    g.e(f"v_max_f32 v{vM}, v{vM}, v{vM+1}")
    g.e(f"v_mov_b32 v{vM+1}, v{vM}")
    g.e("s_nop 1")
    g.e(f"v_permlane32_swap_b32 v{vM}, v{vM+1}")
    g.e(f"v_max_f32 v{vM}, v{vM}, v{vM+1}")
    CS = 32 ** -0.5
    g.e(f"s_mov_b32 s{sT+6}, {f32(CS*LOG2E)}")
    g.e(f"v_mul_f32 v{vM}, s{sT+6}, v{vM}")
    g.e(f"v_mov_b32 v{vSUM}, 0")
    g.e(f"v_mov_b32 v{vSUM+1}, 0")
    for t in range(9):
        b = vS + 16*t
        for rho in range(16): g.e(f"v_fma_f32 v{b+rho}, v{b+rho}, s{sT+6}, -v{vM}")
        for rho in range(16): g.e(f"v_exp_f32 v{b+rho}, v{b+rho}")
        g.e("s_nop 0")
        for rho in range(16): g.e(f"v_add_f32 v{vSUM+(rho&1)}, v{vSUM+(rho&1)}, v{b+rho}")
        pack16(g, b)
        g.e("s_nop 0")
        for f in range(2):
            g.need([('V', t, f)])
            g.e(f"v_mfma_f32_32x32x16_bf16 {vr(vO,16)}, {vr(vF+8*t+4*f,4)}, {vr(b+4*f,4)}, " + ("0" if (t == 0 and f == 0) else vr(vO,16)))
        if t + 6 < 9: vread(t+6)
    g.e(f"v_add_f32 v{vSUM}, v{vSUM}, v{vSUM+1}")
    g.e(f"v_mov_b32 v{vSUM+1}, v{vSUM}")
    g.e("s_nop 1")
    g.e(f"v_permlane32_swap_b32 v{vSUM}, v{vSUM+1}")
    g.e(f"v_add_f32 v{vSUM}, v{vSUM}, v{vSUM+1}")
    g.e(f"v_rcp_f32 v{vSUM}, v{vSUM}")
    g.e(f"s_lshl_b32 s{sT+6}, s{sRB}, 3")
    g.e(f"s_add_u32 s{sT+6}, s{sT+6}, s{sW}")
    g.e(f"s_mul_i32 s{sT+6}, s{sT+6}, {288*1024}")
    g.e(f"s_lshl_b32 s{sT+7}, s{sH}, 11")
    g.e(f"s_add_u32 s{sT+6}, s{sT+6}, s{sT+7}")
    g.e("s_nop 3")
    for rho in range(16): g.e(f"v_mul_f32 v{vO+rho}, v{vO+rho}, v{vSUM}")
    pack16(g, vO)
    for f in range(2):
        g.e(f"buffer_store_dwordx4 {vr(vO+4*f,4)}, v{vL16}, {sr(sWS,4)}, s{sT+6} offen offset:{f*1024}")
    stamp(g, 6, sST)
    stamp_out(g, 7, sST, sW, sWS, 0, 3)
    g.lab("L1_end")
    g.e("s_endpgm")
    g.lab("L1_mask0")
    g.e(f"s_sub_u32 s{sT+6}, 8, s{sW}")
    for t in range(8):
        g.e(f"s_cmp_le_u32 s{sT+6}, {t}")
        g.e("s_cbranch_scc1 L1_maskback")
        for rho in range(16): g.e(f"v_mov_b32 v{vS+16*t+rho}, v{vM+1}")
    g.e("s_branch L1_maskback")

K2_LDS = 131072
def gen_k2(g):
    NP = OPT['np_stages']
    sW, sMT, sNT, sROLE = 3, 4, 5, 6
    sA, sWt, sOUT, sWS, sDBG = 8, 12, 16, 20, 24
    sAK, sWK, sWK2, sLD, sEND, sSTG, sSLOT, sMD, sTILE, sRS = 28, 29, 30, 31, 32, 33, 34, 35, 36, 37
    sAK2 = 38
    sT = 40; sP = 52; sST = 82
    vL, vL16, vDW, vRB, vRA, vG = 1, 2, 4, 8, 12, 16
    vT = 18
    vWF, vAR, vSV, vACC = 32, 64, 128, 192
    g.L += [".globl " + K2, ".p2align 8", f".type {K2},@function"]
    g.lab(K2)
    g.e("s_cmp_ge_u32 s2, 256")
    g.e("s_cbranch_scc1 L2_end")
    stamp(g, 0, sST)
    g.e(f"s_load_dwordx2 {sr(sP,2)}, s[0:1], 16")
    g.e(f"s_load_dwordx2 {sr(sP+2,2)}, s[0:1], 48")
    g.e(f"s_load_dwordx2 {sr(sP+4,2)}, s[0:1], 64")
    g.e(f"s_load_dwordx4 {sr(sP+8,4)}, s[0:1], 72")
    g.e(f"v_lshrrev_b32 v{vT}, 6, v0")
    g.e(f"v_and_b32 v{vL}, 63, v0")
    g.e(f"v_readfirstlane_b32 s{sW}, v{vT}")
    g.e(f"s_lshr_b32 s{sROLE}, s2, 7")
    g.e(f"s_bfe_u32 s{sMT}, s2, {(2<<16)|1:#x}")
    g.e(f"s_lshl_b32 s{sMT}, s{sMT}, 2")
    g.e(f"s_bfe_u32 s{sT}, s2, {(2<<16)|3:#x}")
    g.e(f"s_add_u32 s{sMT}, s{sMT}, s{sT}")
    g.e(f"s_and_b32 s{sNT}, s2, 1")
    g.e(f"s_lshl_b32 s{sNT}, s{sNT}, 2")
    g.e(f"s_bfe_u32 s{sT}, s2, {(2<<16)|5:#x}")
    g.e(f"s_add_u32 s{sNT}, s{sNT}, s{sT}")
    g.e(f"s_and_b32 s{sTILE}, s2, 127")
    g.e(f"v_lshlrev_b32 v{vL16}, 4, v{vL}")
    g.e(f"v_lshrrev_b32 v{vT}, 4, v{vL}")
    g.e(f"v_bfe_u32 v{vT+1}, v{vL}, 2, 2")
    g.e(f"v_xor_b32 v{vT+1}, v{vT+1}, v{vT}")
    g.e(f"v_lshlrev_b32 v{vT}, 11, v{vT}")
    g.e(f"v_lshl_add_u32 v{vT}, v{vT+1}, 6, v{vT}")
    g.e(f"v_and_b32 v{vT+1}, 3, v{vL}")
    g.e(f"v_lshl_add_u32 v{vDW}, v{vT+1}, 4, v{vT}")
    for n in range(1, 4): g.e(f"v_add_u32 v{vDW+n}, {7168*n}, v{vDW}")
    g.e(f"s_cmp_eq_u32 s{sROLE}, 0")
    g.e(f"s_cselect_b32 s{sSTG}, 0, {NP}")
    g.e(f"s_cselect_b32 s{sEND}, {NP}, 36")
    g.e(f"s_cselect_b32 s{sWK}, 0, {(NP-8)*128*2048:#x}")
    g.e(f"s_mov_b32 s{sLD}, s{sSTG}")
    g.e(f"s_lshl_b32 s{sRS}, s{sW}, 16")
    g.e(f"s_lshl_b32 s{sT}, s{sNT}, 8")
    g.e(f"s_add_u32 s{sRS}, s{sRS}, s{sT}")
    g.e(f"s_add_u32 s{sWK}, s{sWK}, s{sRS}")
    g.e(f"s_add_u32 s{sWK2}, s{sWK}, 32768")
    g.e(f"s_lshl_b32 s{sMD}, s{sW}, 13")
    g.e(f"s_lshl_b32 s{sT}, s{sMT}, 2")
    g.e(f"s_add_u32 s{sT}, s{sT}, s{sW}")
    g.e(f"s_mul_i32 s{sAK}, s{sT}, {288*1024}")
    g.e(f"s_lshl_b32 s{sT+1}, s{sSTG}, 13")
    g.e(f"s_add_u32 s{sAK}, s{sAK}, s{sT+1}")
    g.e(f"s_add_u32 s{sAK2}, s{sAK}, 4096")
    g.e(f"s_lshl_b32 s{sT+2}, s{sT}, 7")
    g.e(f"s_add_u32 s{sT+2}, s{sT+2}, {WS_G:#x}")
    g.e("s_waitcnt lgkmcnt(0)")
    srd(g, sWS, sP+10, sP+11, WS_SIZE)
    srd(g, sA, sP+10, sP+11, A_BYTES)
    g.e(f"s_cmp_eq_u32 s{sROLE}, 0")
    g.e(f"s_cselect_b32 s{sWt}, s{sP}, s{sP+2}")
    g.e(f"s_cselect_b32 s{sWt+1}, s{sP+1}, s{sP+3}")
    g.e(f"s_cselect_b32 s{sWt+2}, {1024*2048:#x}, {3584*2048:#x}".replace(f"{1024*2048:#x}, {3584*2048:#x}", f"{1024*2048:#x}, s{sT+3}") if False else f"s_mov_b32 s{sT+3}, {3584*2048:#x}")
    g.e(f"s_cselect_b32 s{sWt+2}, {1024*2048:#x}, s{sT+3}")
    g.e(f"s_and_b32 s{sWt+1}, s{sWt+1}, 0xffff")
    g.e(f"s_mov_b32 s{sWt+3}, 0x20000")
    g.e(f"s_and_b32 s{sP+3}, s{sP+3}, 0xffff")

    def dma(n):
        if n % 4 == 0:
            g.e(f"s_add_u32 m0, s{sMD}, {(n//4)*4096}")
            g.e("s_nop 0")
        g.e(f"buffer_load_dwordx4 v{vDW+(n&3)}, {sr(sWt,4)}, s{sWK if n < 4 else sWK2} offen offset:{(n&3)*1024} lds")
    def adv_w():
        g.e(f"s_add_u32 s{sLD}, s{sLD}, 1")
        g.e(f"s_add_u32 s{sWK}, s{sWK}, {128*2048}")
        g.e(f"s_cmp_eq_u32 s{sLD}, 8")
        g.e(f"s_cselect_b32 s{sWK}, s{sRS}, s{sWK}")
        g.e(f"s_cselect_b32 s{sWt}, s{sP+2}, s{sWt}")
        g.e(f"s_cselect_b32 s{sWt+1}, s{sP+3}, s{sWt+1}")
        g.e(f"s_cselect_b32 s{sWt+2}, s{sT+3}, s{sWt+2}")
        g.e(f"s_cmp_ge_u32 s{sLD}, s{sEND}")
        g.e(f"s_cselect_b32 s{sWt+2}, 0, s{sWt+2}")
        g.e(f"s_add_u32 s{sWK2}, s{sWK}, 32768")
        g.e(f"s_add_u32 s{sMD}, s{sMD}, 32768")
        g.e(f"s_and_b32 s{sMD}, s{sMD}, 0x1ffff")
    def aload(p, n):
        g.e(f"buffer_load_dwordx4 {vr(vAR+32*p+4*n,4)}, v{vL16}, {sr(sA,4)}, s{sAK if n < 4 else sAK2} offen offset:{(n&3)*1024}")
    def adv_a():
        g.e(f"s_add_u32 s{sAK}, s{sAK}, 8192")
        g.e(f"s_add_u32 s{sAK2}, s{sAK}, 4096")
        g.e(f"s_cmp_gt_u32 s{sLD}, s{sEND}")
        g.e(f"s_cselect_b32 s{sA+2}, 0, s{sA+2}")
    for n in range(8): dma(n)
    adv_w()
    g.e(f"v_and_b32 v{vT}, 31, v{vL}")
    g.e(f"v_lshlrev_b32 v{vT}, 2, v{vT}")
    g.e(f"buffer_load_dword v{vG}, v{vT}, {sr(sWS,4)}, s{sT+2} offen")
    for p in range(2):
        for n in range(8):
            dma(n); aload(p, n)
        adv_w(); adv_a()
    srd(g, sOUT, sP+4, sP+5, 2048*2048)
    srd(g, sDBG, sP+8, sP+9, 256)
    g.e(f"v_lshrrev_b32 v{vT}, 5, v{vL}")
    g.e(f"v_bfe_u32 v{vT+1}, v{vL}, 2, 2")
    g.e(f"v_lshl_add_u32 v{vT}, v{vT}, 2, v{vT+1}")
    g.e(f"v_lshlrev_b32 v{vT}, 8, v{vT}")
    g.e(f"v_lshl_add_u32 v{vT}, v{vT+1}, 6, v{vT}")
    g.e(f"v_bfe_u32 v{vT+1}, v{vL}, 4, 1")
    g.e(f"v_lshl_add_u32 v{vT}, v{vT+1}, 5, v{vT}")
    g.e(f"v_and_b32 v{vT+1}, 3, v{vL}")
    g.e(f"v_lshl_add_u32 v{vRB}, v{vT+1}, 3, v{vT}")
    for u in range(1, 4): g.e(f"v_xor_b32 v{vRB+u}, {64*u}, v{vRB}")
    for u in range(4): g.e(f"v_mov_b32 v{vRA+u}, v{vRB+u}")
    g.e(f"s_mov_b32 s{sSLOT}, 0")
    for r in range(vACC, 256): g.e(f"v_mov_b32 v{r}, 0")
    g.e("s_waitcnt vmcnt(32)")
    g.e("s_barrier")
    stamp(g, 1, sST)
    if OPT['stamp']: g.e("s_waitcnt lgkmcnt(0)")
    def wread(u, n):
        for tr in range(2):
            g.lds(f"ds_read_b64_tr_b16 {vr(vWF+16*(n&1)+4*u+2*tr,2)}, v{vRA+u} offset:{n*4096+tr*2048}", ('W', n & 1, u))
    def stage(p):
        for n in range(8):
            for u in range(4):
                g.need([('W', n & 1, u)], vm=30 if u == 0 else None)
                g.e(f"v_mfma_f32_32x32x16_bf16 {vr(vACC+16*u,16)}, {vr(vWF+16*(n&1)+4*u,4)}, {vr(vAR+32*p+4*n,4)}, {vr(vACC+16*u,16)}")
                if n < 7:
                    wread(u, n+1)
                    if u == 1: dma(n)
                else:
                    if u == 0:
                        g.e(f"s_add_u32 s{sSLOT}, s{sSLOT}, 32768")
                        g.e(f"s_and_b32 s{sSLOT}, s{sSLOT}, 0x1ffff")
                        for k in range(4): g.e(f"v_add_u32 v{vRA+k}, s{sSLOT}, v{vRB+k}")
                        dma(n)
                    if u == 1:
                        g.need([('W', 1, k) for k in range(4)])
                        g.e("s_barrier")
                        wread(0, 0); wread(1, 0)
                    if u == 2:
                        wread(2, 0); wread(3, 0)
                if u == 3: aload(p, n)
        adv_w(); adv_a()
    tmp = g.L; g.L = []; g.q = []; stage(0); steady = list(g.q); g.L = tmp
    g.q = []
    for u in range(4): wread(u, 0)
    g.e("s_waitcnt lgkmcnt(0)")
    g.q = list(steady)
    g.L.append(".p2align 6")
    g.lab("L2_loop")
    stage(0)
    g.e(f"s_add_u32 s{sSTG}, s{sSTG}, 1")
    g.e(f"s_cmp_ge_u32 s{sSTG}, s{sEND}")
    g.e("s_cbranch_scc1 L2_done")
    stage(1)
    assert g.q == steady
    g.e(f"s_add_u32 s{sSTG}, s{sSTG}, 1")
    g.e(f"s_cmp_eq_u32 s{sSTG}, 8")
    g.e("s_cbranch_scc1 L2_ab")
    g.e(f"s_cmp_lt_u32 s{sSTG}, s{sEND}")
    g.e("s_cbranch_scc1 L2_loop")
    g.lab("L2_done")
    stamp(g, 2, sST)
    g.e(f"v_sub_f32 v{vT}, 1.0, v{vG}")
    g.e(f"v_cvt_pk_bf16_f32 v{vT}, v{vT}, v{vT}")
    g.e(f"v_and_b32 v{vT}, 0xffff0000, v{vT}")
    g.e(f"s_lshl_b32 s{sT}, s{sTILE}, 16")
    g.e(f"s_lshl_b32 s{sT+1}, s{sW}, 14")
    g.e(f"s_add_u32 s{sT}, s{sT}, s{sT+1}")
    g.e(f"s_add_u32 s{sT}, s{sT}, {WS_PART:#x}")
    for k in range(1, 4): g.e(f"s_add_u32 s{sT+4+k}, s{sT}, {4096*k}")
    g.e(f"s_mov_b32 s{sT+4}, s{sT}")
    g.e(f"s_lshr_b32 s{sT+1}, s{sTILE}, 1")
    g.e(f"s_lshl_b32 s{sT+1}, s{sT+1}, 2")
    g.e(f"s_and_b32 s{sT+2}, s{sTILE}, 1")
    g.e(f"s_cmp_eq_u32 s{sROLE}, 0")
    g.e("s_cbranch_scc0 L2_cons")
    for q in range(16):
        for r in range(4): g.e(f"v_fmac_f32 v{vSV+4*q+r}, v{vT}, v{vACC+4*q+r}")
        g.e(f"buffer_store_dwordx4 {vr(vSV+4*q,4)}, v{vL16}, {sr(sWS,4)}, s{sT+4+(q>>2)} offen offset:{(q&3)*1024} sc1")
    g.e("s_waitcnt vmcnt(0)")
    g.e("s_barrier")
    g.e(f"s_cmp_lg_u32 s{sW}, 0")
    g.e("s_cbranch_scc1 L2_fin")
    g.e(f"s_lshl_b32 s{sT+2}, 1, s{sT+2}")
    g.e(f"v_mov_b32 v{vT+1}, s{sT+2}")
    g.e("s_mov_b64 exec, 1")
    g.e(f"buffer_atomic_or v{vT+1}, off, {sr(sDBG,4)}, s{sT+1} sc1")
    g.e("s_mov_b64 exec, -1")
    g.e("s_branch L2_fin")
    g.lab("L2_cons")
    g.e(f"s_mov_b32 s{sT+9}, 0x8000")
    g.lab("L2_poll")
    g.e(f"buffer_load_dword v{vT+2}, off, {sr(sDBG,4)}, s{sT+1} sc1")
    g.e("s_waitcnt vmcnt(0)")
    g.e(f"v_readfirstlane_b32 s{sT+10}, v{vT+2}")
    g.e(f"s_sub_u32 s{sT+9}, s{sT+9}, 1")
    g.e("s_cbranch_scc1 L2_got")
    g.e(f"s_bitcmp1_b32 s{sT+10}, s{sT+2}")
    g.e("s_cbranch_scc1 L2_got")
    g.e("s_sleep 2")
    g.e("s_branch L2_poll")
    g.lab("L2_got")
    stamp(g, 3, sST)
    for q in range(16):
        g.e(f"buffer_load_dwordx4 {vr(vSV+4*q,4)}, v{vL16}, {sr(sWS,4)}, s{sT+4+(q>>2)} offen offset:{(q&3)*1024} sc1")
    g.e(f"v_and_b32 v{vT+1}, 31, v{vL}")
    g.e(f"v_lshlrev_b32 v{vT+1}, 11, v{vT+1}")
    g.e(f"v_lshrrev_b32 v{vT+2}, 5, v{vL}")
    g.e(f"v_lshl_add_u32 v{vT+1}, v{vT+2}, 4, v{vT+1}")
    g.e(f"s_lshl_b32 s{sT+1}, s{sMT}, 18")
    g.e(f"s_add_u32 s{sT+1}, s{sT+1}, s{sRS}")
    nst = 0
    for qq in range(8):
        b = 8*qq
        g.e(f"s_waitcnt vmcnt({14-2*qq+nst})")
        for r in range(8): g.e(f"v_fmac_f32 v{vSV+b+r}, v{vT}, v{vACC+b+r}")
        for r in range(4): g.e(f"v_cvt_pk_bf16_f32 v{vSV+b+r}, v{vSV+b+2*r}, v{vSV+b+2*r+1}")
        g.e("s_nop 1")
        g.e(f"v_permlane32_swap_b32 v{vSV+b}, v{vSV+b+2}")
        g.e(f"v_permlane32_swap_b32 v{vSV+b+1}, v{vSV+b+3}")
        g.e(f"buffer_store_dwordx4 {vr(vSV+b,4)}, v{vT+1}, {sr(sOUT,4)}, s{sT+1} offen offset:{qq*32}")
        nst += 1
    g.lab("L2_fin")
    stamp(g, 4, sST)
    stamp_out(g, 5, sST, sW, sWS, 1, 2)
    g.lab("L2_end")
    g.e("s_endpgm")
    g.lab("L2_ab")
    g.e("s_nop 7")
    for r in range(64): g.e(f"v_mul_f32 v{vSV+r}, v{vG}, v{vACC+r}")
    for r in range(64): g.e(f"v_mov_b32 v{vACC+r}, 0")
    g.e("s_nop 1")
    g.e("s_branch L2_loop")

def kd(name, vg):
    return f""".amdhsa_kernel {name}
  .amdhsa_next_free_vgpr {vg}
  .amdhsa_next_free_sgpr 102
  .amdhsa_accum_offset {vg}
  .amdhsa_group_segment_fixed_size 0
  .amdhsa_kernarg_size 88
  .amdhsa_user_sgpr_count 2
  .amdhsa_user_sgpr_kernarg_segment_ptr 1
  .amdhsa_system_sgpr_workgroup_id_x 1
.end_amdhsa_kernel
"""

def main():
    hdr = [l.rstrip('\n') for l in open("cdna_kernels/%s.s.ref" % NAME)]
    hdr = [l for l in hdr if l.startswith(';') and 'launch' not in l.lower() and 'grid=' not in l]
    g = Gen()
    gen_k1(g); gen_k2(g)
    out = hdr + [f"; @launch kernel={K1} grid=(256,1,1) block=(512,1,1) lds={K1_LDS}",
                 f"; @launch kernel={K2} grid=(256,1,1) block=(256,1,1) lds={K2_LDS}",
                 '.amdgcn_target "amdgcn-amd-amdhsa--gfx950"', ".text"] + g.L
    out += ['.section .rodata,"a"', ".p2align 6", kd(K1, 256), ".p2align 6", kd(K2, 256)]
    text = "\n".join(out) + "\n"
    open(sys.argv[1], "w").write(text)
    import hazard
    errs = hazard.check("\n".join(g.L))
    print("\n".join(errs) if errs else "hazard check clean")
main()
```

```python
import sys, struct
NAME = "gated_mix__sliding_block__swiglu_ffn__prompt"
KN = NAME + "_kernel"
OPT = dict(stamp=0, NP=16, jbx=5, xrd=[0,0,1,1], xpos=[2,4,6,8], wpos=[1,3,5,7,9], pfpos=19, stag=0, PD=3, pf=1, CB=1, defer=0, slp=2, touch=0, pfnt=0, wnt=0, bprio=0, amap=1, fast=1, pfast=1, wb=0, pre=0, cmap=1, m16=288*512, c3=0, kvs1=1, cprio=0, AB=0,
           noX=0, noW=0, noA=0, noW2=0, prio=0, kvs=2, nobar=0, nodma=0, nolds=0)
for a in sys.argv[2:]:
    k, v = a.split('='); assert k in OPT, k
    OPT[k] = eval(v)
def f32(x): return "0x%08x" % struct.unpack('<I', struct.pack('<f', x))[0]
def vr(a, n=1): return f"v[{a}:{a+n-1}]" if n > 1 else f"v{a}"
def sr(a, n=1): return f"s[{a}:{a+n-1}]" if n > 1 else f"s{a}"
class Gen:
    def __init__(s): s.L = []; s.q = []; s.v = []; s.tail = []; s.tail2 = []
    def e(s, t): s.L.append("    " + t)
    def lab(s, t): s.L.append(t + ":")
    def lds(s, t, tag): s.e(t); s.q.append(tag)
    def vm(s, t, tag): s.e(t); s.v.append(tag)
    def need(s, tags=(), vt=()):
        w = []
        idx = [i for i, t in enumerate(s.v) if t in vt]
        if idx:
            n = len(s.v) - 1 - max(idx); s.v = s.v[max(idx)+1:]; assert n < 64
            w.append(f"vmcnt({n})")
        idx = [i for i, t in enumerate(s.q) if t in tags]
        if idx:
            n = len(s.q) - 1 - max(idx); s.q = s.q[max(idx)+1:]
            w.append(f"lgkmcnt({min(n,15)})")
        if w: s.e("s_waitcnt " + " ".join(w))
    def steady(s, body):
        sv = s.L; s.L = []; s.q = []; s.v = []
        body(); body(); r = (list(s.q), list(s.v)); s.L = sv
        return r
g = Gen(); e = g.e
M16 = OPT['m16']; A_BYTES = 128*M16
WS_KV = 0x1400000; WS_PART = 0x1C00000; WS_G = 0x2400000; WS_FL = 0x2410000; WS_STAMP = 0x3000000; WS_SIZE = 0x4000000
FL_KV, FL_H, FL_O, FL_P, FL_X = 0, 4, 8, 12, 16
sFAST = 34+1
LOG2E = 1.4426950408889634
SPIN = 0x8000
MF16 = "v_mfma_f32_16x16x32_bf16"; MF32 = "v_mfma_f32_32x32x16_bf16"
sW, sRB, sH, sMW, sNW = 3, 4, 5, 6, 7
sX, sA, sB, sQ, sWS, sDBG, sPF = 8, 12, 16, 20, 24, 28, 32
sKX, sOW, sMWd, sINCA, sMX, sCNT, sKXE, sPFO, sPFI, sLAM, sOK, sGO = 36, 37, 42, 47, 48, 49, 50, 51, 52, 53, 54, 55
sT = 56; sP = 64; sST = 86
pX, pQKV, pWO, pWG, pWU, pWD, pGW, pOUT, pDBG, pWSp = sP, sP+2, sP+4, sP+8, sP+10, sP+12, sP+14, sP+16, sP+18, sP+20
sFAST = 101
sK = sP+6
vL, vL16, vPF, vDX, vDA, vDB, vXR, vWG, vWQ, vDUM, vCN, vGV, vT = 1, 2, 3, 4, 8, 9, 10, 12, 14, 18, 19, 20, 26
vWF, vXF, vACC = 44, 64, 96
L = vL
def ACC(j, i): return vACC + (4*j+i)*4
XSLOT = 32768; WBASE = 65536; HALF = 20480; WSLOT = 2*HALF; GOFF = 6144; UOFF = 6144+7168
LDS_BYTES = 163840; QLDS = 65536; CNTLDS = 163832; CNT2 = 81920
UNITS = [['q0','q1','k0','k1','g0','u0','g1','u1','g2','u2'], ['v0','v1','g3','u3','g4','u4','g5','u5','g6','u6']]
def srd(d, p, size):
    e(f"s_mov_b32 s{d}, s{p}"); e(f"s_and_b32 s{d+1}, s{p+1}, 0xffff"); e(f"s_mov_b32 s{d+2}, {size:#x}"); e(f"s_mov_b32 s{d+3}, 0x20000")
SN = ['start','loopA','endA','kvsig','hdone','kvok','kvld','bar2','sph','pv','attn','bar3','loopC','endC','fin']
def stamp(name):
    if name not in SN: SN.append(name)
    idx = SN.index(name); assert idx < 16
    if not OPT['stamp']: return
    e(f"s_memtime s[{sST}:{sST+1}]"); e(f"s_memrealtime s[{sST+2}:{sST+3}]"); e("s_waitcnt lgkmcnt(0)")
    e(f"v_writelane_b32 v0, s{sST}, {idx}"); e(f"v_writelane_b32 v0, s{sST+2}, {idx+16}")
def pstamp(k):
    if OPT['stamp']: e(f"s_memtime s[{92+2*k}:{93+2*k}]")
NDS = [0]
def dstore(lines, on=True):
    if not on:
        for l in lines: e(l + " sc1")
        return
    k = NDS[0]; NDS[0] += 1
    e(f"s_cmp_eq_u32 s{sFAST}, 1"); e(f"s_cbranch_scc0 LS_s{k}")
    for l in lines: e(l)
    g.lab(f"LS_r{k}")
    g.tail2 += [f"LS_s{k}:"] + ["    " + l + " sc1" for l in lines] + [f"    s_branch LS_r{k}"]
def one_lane(f):
    e("s_mov_b64 exec, 1"); f(); e("s_mov_b64 exec, -1")

def a_wread(nw, n):
    n %= 40; t = n // 10; j = n % 10
    sig = (t+1) >> 1; half = (t+1) & 1; slot = sig & 1; un = UNITS[nw][j]
    for tr in range(2):
        if un[0] in 'qkv':
            a = vWQ + 2*slot + int(un[1]); off = half*HALF + 'qkv'.index(un[0])*2048 + tr*512
        else:
            a = vWG + slot; off = half*HALF + (GOFF if un[0] == 'g' else UOFF) + tr*1792 + int(un[1])*32
        g.lds(f"ds_read_b64_tr_b16 {vr(vWF+4*(n%5)+2*tr,2)}, v{a} offset:{off}", ('W', n % 5))
def a_xread(i, t):
    t %= 4
    g.lds(f"ds_read_b128 {vr(vXF+16*(t&1)+4*i,4)}, v{vXR+(t&1)} offset:{(t>>1)*XSLOT+i*2048}", ('X', t & 1, i))
def a_m0(k, n, slot):
    if k == 'x': e(f"s_add_u32 m0, s{sMX}, {slot*XSLOT}")
    elif k == 'w': e(f"s_add_u32 m0, s{sMWd+n}, {slot*WSLOT}")
def a_op(k, n, slot, first=False):
    if k == 'x':
        g.vm(f"buffer_load_dwordx4 v{vDX+n}, {sr(sX,4)}, s{sKX} offen offset:{1024*n} lds", ('x', slot, n))
        if n == 3:
            e(f"s_add_u32 s{sKX}, s{sKX}, 128"); e(f"s_cmp_ge_u32 s{sKX}, s{sKXE}"); e(f"s_cselect_b32 s{sX+2}, 0, s{sX+2}")
    elif k == 'w':
        d = [sA, sA, sB, sB, sQ][n]; v = vDA if n < 4 else vDB
        if first: e(f"s_cmp_lt_i32 s{sOW+n}, 0"); e(f"s_cbranch_scc1 LA_skipw{n}")
        g.vm(f"buffer_load_dwordx4 v{v}, {sr(d,4)}, s{sOW+n} offen" + (" nt" if OPT['wnt'] & 1 else "") + " lds", ('w', slot, n))
        if first: g.lab(f"LA_skipw{n}")
        e(f"s_add_u32 s{sOW+n}, s{sOW+n}, " + (f"s{sINCA}" if n < 4 else f"{64*6144}"))
    else:
        g.vm(f"buffer_load_dword v{vDUM}, v{vPF}, {sr(sPF,4)}, s{sPFO} offen" + (" nt" if OPT['wnt'] & 2 and NWCUR[0] == 0 else ""), ('p', 0, 0))
        e(f"s_add_u32 s{sPFO}, s{sPFO}, s{sPFI}")
def a_full(k, n, slot, first=False):
    a_m0(k, n, slot)
    if not first: e("s_nop 0")
    a_op(k, n, slot, first)
JBW = 6
def a_events(nw):
    ev = {}; st = OPT['stag']*nw
    for t in (1, 3):
        for n, o in enumerate(OPT['xpos']): assert 0 <= o+st < 20; ev.setdefault((t*10+OPT['jbx']+o+st) % 40, []).append(('x', n, t >> 1))
    for t in (0, 2):
        for n, o in enumerate(OPT['wpos']): assert 0 <= o+st < 20; ev.setdefault((t*10+JBW+o+st) % 40, []).append(('w', n, t >> 1))
        if OPT['pf']: ev.setdefault((t*10+JBW+OPT['pfpos']-st) % 40, []).append(('p', 0, 0))
    return ev
NWCUR = [0]
def a_body(nw):
    NWCUR[0] = nw
    ev = a_events(nw)
    for t in range(4):
        for j in range(10):
            n = t*10 + j; un = UNITS[nw][j]; evs = ev.get(n, [])
            for i in range(4):
                g.need([('W', n % 5), ('X', t & 1, i)])
                a, b = vr(vWF+4*(n % 5), 4), vr(vXF+16*(t & 1)+4*i, 4)
                if un[0] == 'v': a, b = b, a
                e(f"{MF16} {vr(ACC(j,i),4)}, {a}, {b}, {vr(ACC(j,i),4)}")
                if i == 0:
                    if t % 2 == 0 and j == JBW:
                        g.need([('W', k) for k in range(5)], [('w', 1-(t >> 1), k) for k in range(5)]); e("s_barrier")
                    if t % 2 == 1 and j == OPT['jbx']:
                        g.need([], [('x', 1-(t >> 1), k) for k in range(4)]); e("s_barrier")
                    a_wread(nw, n+4)
                if i == 1:
                    for ii in range(4):
                        if OPT['jbx'] + OPT['xrd'][ii] == j: a_xread(ii, t+1)
                    if evs: a_m0(*evs[0])
                if i == 2 and evs:
                    a_op(*evs[0])
                    for x in evs[1:]: a_full(*x)

def silu(jg, i, t):
    G = ACC(jg, i); U = ACC(jg+1, i)
    for r in range(0, 8, 2): e(f"v_pk_mul_f32 {vr(t+r,2)}, {vr(G+r,2)}, {sr(sK,2)}")
    for r in range(8): e(f"v_exp_f32 v{t+r}, v{t+r}")
    for r in range(0, 8, 2): e(f"v_pk_mul_f32 {vr(G+r,2)}, {vr(G+r,2)}, {vr(U+r,2)}")
    for r in range(0, 8, 2):
        c = vGV + i + (r >> 2); c2 = c & ~1; s = c & 1
        e(f"v_pk_fma_f32 {vr(t+r,2)}, {vr(t+r,2)}, {vr(c2,2)}, {vr(c2,2)} op_sel:[0,{s},{s}] op_sel_hi:[1,{s},{s}]")
    for r in range(8): e(f"v_rcp_f32 v{t+r}, v{t+r}")
    e("s_nop 0")
    for r in range(0, 8, 2): e(f"v_pk_mul_f32 {vr(G+r,2)}, {vr(G+r,2)}, {vr(t+r,2)}")
    for r in range(4): e(f"v_cvt_pk_bf16_f32 v{G+r}, v{G+2*r}, v{G+2*r+1}")
    e("s_nop 1")
    e(f"v_permlane32_swap_b32 v{G}, v{G+2}"); e(f"v_permlane32_swap_b32 v{G+1}, v{G+3}")
def pack2(j, i):
    a, b = ACC(j, i), ACC(j+1, i)
    e(f"v_cvt_pk_bf16_f32 v{a}, v{a}, v{a+1}"); e(f"v_cvt_pk_bf16_f32 v{a+1}, v{a+2}, v{a+3}")
    e(f"v_cvt_pk_bf16_f32 v{a+2}, v{b}, v{b+1}"); e(f"v_cvt_pk_bf16_f32 v{a+3}, v{b+2}, v{b+3}")
def spin(name, load, test, cnt):
    e(f"s_mov_b32 s{cnt}, {SPIN:#x}")
    g.lab(name)
    load(); e("s_waitcnt vmcnt(0)"); test()
    e(f"s_cbranch_scc1 {name}_ok")
    e(f"s_sub_u32 s{cnt}, s{cnt}, 1"); e(f"s_cbranch_scc1 {name}_ok")
    e(f"s_sleep {OPT['slp']}"); e(f"s_branch {name}")
    g.lab(name + "_ok")
def g_loads():
    e(f"s_lshl_b32 s{sT}, s{sRB}, 10"); e(f"s_add_u32 s{sT}, s{sT}, {WS_G:#x}")
    e(f"s_lshl_b32 s{sT+1}, s{sMW}, 8"); e(f"s_add_u32 s{sT+1}, s{sT+1}, s{sT}")
    e(f"s_lshl_b32 s{sT+2}, s{sW}, 7"); e(f"s_add_u32 s{sT+2}, s{sT+2}, s{sT}")
    e(f"v_and_b32 v{vT}, 15, v{vL}"); e(f"v_lshlrev_b32 v{vT}, 2, v{vT}")
    e(f"v_and_b32 v{vT+1}, 31, v{vL}"); e(f"v_lshlrev_b32 v{vT+1}, 2, v{vT+1}")
    for i in range(4): e(f"buffer_load_dword v{vGV+i}, v{vT}, {sr(sWS,4)}, s{sT+1} offen offset:{64*i} sc1")
    e(f"buffer_load_dword v{vGV+4}, v{vT+1}, {sr(sWS,4)}, s{sT+2} offen sc1")
    e(f"v_lshlrev_b32 v{vT+1}, 5, v{vT+1}"); e(f"s_lshl_b32 s{sT}, s{sRB}, 12"); e(f"s_add_u32 s{sT}, s{sT}, {WS_FL:#x}")
    e(f"buffer_load_dword v25, v{vT+1}, {sr(sWS,4)}, s{sT} offen offset:{FL_X} sc1")
def gate_compute():
    t = 20
    e(f"v_mov_b32 v{t+5}, 0"); e(f"v_mov_b32 v19, 0x3f803f80")
    for d in range(8):
        e(f"v_lshlrev_b32 v{t}, 16, v{26+d}"); e(f"v_and_b32 v{t+1}, 0xffff0000, v{26+d}")
        e(f"v_lshlrev_b32 v{t+2}, 16, v{34+d}"); e(f"v_and_b32 v{t+3}, 0xffff0000, v{34+d}")
        e(f"v_pk_mul_f32 {vr(t,2)}, {vr(t,2)}, {vr(t+2,2)}")
        e(f"v_cvt_pk_bf16_f32 v{26+d}, v{t}, v{t+1}")
    for d in range(8): e(f"v_dot2_f32_bf16 v{t+5}, v{26+d}, v19, v{t+5}")
    e("s_nop 1")
    for m in ("quad_perm:[1,0,3,2] row_mask:0xf", "quad_perm:[2,3,0,1] row_mask:0xf", "row_half_mirror row_mask:0xf",
              "row_mirror row_mask:0xf", "row_bcast:15 row_mask:0xa", "row_bcast:31 row_mask:0xc"):
        e("s_nop 1"); e(f"v_add_f32_dpp v{t+5}, v{t+5}, v{t+5} {m} bank_mask:0xf")
    e(f"v_cvt_pk_bf16_f32 v{t}, v{t+5}, v{t+5}"); e(f"v_and_b32 v{t}, 0xffff0000, v{t}")
    e(f"v_mul_f32 v{t}, {f32(-LOG2E)}, v{t}"); e(f"v_exp_f32 v{t}, v{t}"); e("s_nop 0")
    e(f"v_add_f32 v{t}, 1.0, v{t}"); e(f"v_rcp_f32 v{t}, v{t}"); e("s_nop 0")
    e(f"v_cvt_pk_bf16_f32 v{t}, v{t}, v{t}"); e(f"v_and_b32 v{t}, 0xffff0000, v{t}")
    e("s_mov_b32 exec_lo, 0"); e("s_brev_b32 exec_hi, 1")
    e(f"buffer_store_dword v{t}, off, {sr(sWS,4)}, s{sGO} sc1")
    e("s_mov_b64 exec, -1")

D = 4; NP = OPT['NP']; WL = 3; CB = OPT['CB']
cA, cWt, cOUT = 8, 12, 16
cAK, cWK, cEND, cSTG, cRS, cROLE, cMT, cNT, cM0 = 20, 21, 23, 36, 38, 39, 40, 41, 42
cvDW, cvA2, cvPL, cvC3 = 4, 3, 16, 12
cC3 = 22; cS3 = 32
cvWF, cvAR, cvPT, cvRA, cvACC = 28, 60, 124, 156, 192
SLOTS = [98304, 131072, 0, 32768]; DUMMY = 65536
def c_setup():
    e(f"s_lshr_b32 s{cROLE}, s2, 7")
    if OPT['cmap'] == 1:
        e(f"s_and_b32 s{cMT}, s2, 7"); e(f"s_lshl_b32 s{cMT}, s{cMT}, 1"); e(f"s_bfe_u32 s{sT}, s2, {(1<<16)|3:#x}"); e(f"s_add_u32 s{cMT}, s{cMT}, s{sT}")
        e(f"s_bfe_u32 s{cNT}, s2, {(3<<16)|4:#x}")
    else:
        e(f"s_bfe_u32 s{cMT}, s2, {(2<<16)|1:#x}"); e(f"s_lshl_b32 s{cMT}, s{cMT}, 2")
        e(f"s_bfe_u32 s{sT}, s2, {(2<<16)|3:#x}"); e(f"s_add_u32 s{cMT}, s{cMT}, s{sT}")
        e(f"s_and_b32 s{cNT}, s2, 1"); e(f"s_lshl_b32 s{cNT}, s{cNT}, 2")
        e(f"s_bfe_u32 s{sT}, s2, {(2<<16)|5:#x}"); e(f"s_add_u32 s{cNT}, s{cNT}, s{sT}")
    if OPT['c3']:
        assert OPT['cmap'] == 0
        e(f"s_bfe_u32 s{sT}, s2, {(4<<16)|3:#x}"); e(f"s_mul_i32 s{sT}, s{sT}, {OPT['c3']*8*2048}")
        e(f"s_and_b32 s{cC3}, s2, 1"); e(f"s_lshl_b32 s{cC3}, s{cC3}, 10"); e(f"s_add_u32 s{cC3}, s{cC3}, s{sT}"); e(f"s_add_u32 s{cC3}, s{cC3}, 384")
        e(f"v_lshlrev_b32 v{cvC3}, 11, v{vL}"); e(f"v_cmp_gt_u32 vcc, {OPT['c3']*8}, v{vL}"); e(f"v_bfrev_b32 v{vT}, 1"); e("s_nop 0")
        e(f"v_cndmask_b32 v{cvC3}, v{vT}, v{cvC3}, vcc")
    e(f"s_cmp_eq_u32 s{cROLE}, 0")
    e(f"s_cselect_b32 s{cSTG}, 0, {NP}"); e(f"s_cselect_b32 s{cEND}, {NP}, 36")
    e(f"s_lshl_b32 s{cRS}, s{sW}, 15"); e(f"s_lshl_b32 s{sT}, s{cNT}, 8"); e(f"s_add_u32 s{cRS}, s{cRS}, s{sT}")
    e(f"s_lshl_b32 s{cWK}, s{cSTG}, 18"); e(f"s_add_u32 s{cWK}, s{cWK}, s{cRS}")
    e(f"s_lshl_b32 s{sT}, s{sW}, 12")
    for k in range(4): e(f"s_add_u32 s{cM0+k}, s{sT}, {SLOTS[k]}")
    srd(cWt, pWD, 0 if OPT['noW2'] else 3584*2048)
    srd(cA, pWSp, 0 if OPT['noA'] else A_BYTES); srd(cOUT, pOUT, 2048*2048)
    e(f"s_lshl_b32 s{sT}, s{cMT}, 3"); e(f"s_lshl_b32 s{cAK}, s{sMW}, 1"); e(f"s_add_u32 s{sT}, s{sT}, s{cAK}")
    e(f"s_mul_i32 s{cAK}, s{sT}, {M16}"); e(f"s_lshl_b32 s{sT}, s{cSTG}, 12"); e(f"s_add_u32 s{cAK}, s{cAK}, s{sT}")
    e(f"s_lshl_b32 s{sT}, s{sNW}, 11"); e(f"s_add_u32 s{cAK}, s{cAK}, s{sT}")
    e(f"v_add_u32 v{cvA2}, {M16}, v{vL16}")
    e(f"v_lshrrev_b32 v{vT}, 4, v{vL}"); e(f"v_bfe_u32 v{vT+1}, v{vL}, 1, 3"); e(f"v_xor_b32 v{vT+1}, v{vT+1}, v{vT}")
    e(f"v_lshlrev_b32 v{vT}, 11, v{vT}"); e(f"v_lshl_add_u32 v{vT}, v{vT+1}, 5, v{vT}")
    e(f"v_and_b32 v{vT+1}, 1, v{vL}"); e(f"v_lshl_add_u32 v{cvDW}, v{vT+1}, 4, v{vT}")
    e(f"v_xor_b32 v{cvDW+1}, 128, v{cvDW}")
    e(f"v_add_u32 v{cvDW+2}, {2*7168}, v{cvDW}"); e(f"v_add_u32 v{cvDW+3}, {3*7168}, v{cvDW+1}"); e(f"v_add_u32 v{cvDW+1}, 7168, v{cvDW+1}")
    e(f"v_and_b32 v{cvPL+1}, 31, v{L}"); e(f"v_lshlrev_b32 v{cvPL+1}, 7, v{cvPL+1}")
def c_dma(n, tag=None):
    g.vm(f"buffer_load_dwordx4 v{cvDW+n}, {sr(cWt,4)}, s{cWK} offen offset:{n*1024} lds", tag)
    if n == 3: e(f"s_add_u32 s{cWK}, s{cWK}, {128*2048}")
def c_aload(p, k):
    ku, mf = k >> 1, k & 1
    g.vm(f"buffer_load_dwordx4 {vr(cvAR+16*p+8*ku+4*mf,4)}, v{vL16 if mf == 0 else cvA2}, {sr(cA,4)}, s{cAK} offen offset:{ku*1024} sc1", ('a', p, k))
    if k == 3: e(f"s_add_u32 s{cAK}, s{cAK}, 4096")
def c_wread(p, n):
    p = (p + n // 16) % 4; n %= 16; ku = n >> 3; u = n & 7
    for tr in range(2):
        g.lds(f"ds_read_b64_tr_b16 {vr(cvWF+4*u+2*tr,2)}, v{cvRA+8*(p>>1)+u} offset:{(p&1)*32768+ku*8192+tr*2048}", ('W', u))
CST = [0]
def c_stage(p):
    s = CST[0]; CST[0] += 1
    ops = []
    for k in range(4): ops += [('a', k), ('d', k)]
    def vop():
        k, i = ops.pop(0)
        if k == 'a': c_aload((p + D-1) % D, i)
        else: c_dma(i, ('d', s+WL))
    e(f"s_mov_b32 m0, s{cM0+(p+WL)%4}")
    if CB == 1:
        for n in range(16):
            ku = n >> 3; u = n & 7
            for mf in range(2):
                g.need([('W', u)], [('a', p, 2*ku+mf)])
                a = cvACC + 8*u + 4*mf
                e(f"{MF16} {vr(a,4)}, {vr(cvWF+4*u,4)}, {vr(cvAR+16*p+8*ku+4*mf,4)}, {vr(a,4)}")
                if mf == 0:
                    if n == 9: g.need([('W', k) for k in range(8)], [('d', s+1)]); e("s_barrier")
                    c_wread(p, n+7)
                elif n % 2 == 0: vop()
    else:
        for n0 in range(0, 16, CB):
            ku = n0 >> 3
            g.need([('W', n & 7) for n in range(n0, n0+CB)], [('a', p, 2*ku), ('a', p, 2*ku+1)])
            if OPT['cprio']: e("s_setprio 1")
            for n in range(n0, n0+CB):
                u = n & 7
                for mf in range(2):
                    a = cvACC + 8*u + 4*mf
                    e(f"{MF16} {vr(a,4)}, {vr(cvWF+4*u,4)}, {vr(cvAR+16*p+8*ku+4*mf,4)}, {vr(a,4)}")
            if OPT['cprio']: e("s_setprio 0")
            if n0 == 8: g.need([('W', k) for k in range(8)], [('d', s+1)]); e("s_barrier")
            for n in range(n0, n0+CB):
                c_wread(p, n+8)
                if n % 2 == 1: vop()
    assert not ops

g.L += [".globl " + KN, ".p2align 8", f".type {KN},@function"]
g.lab(KN)
e("s_cmp_ge_u32 s2, 256"); e("s_cbranch_scc1 L_end")
e(f"s_load_dwordx16 {sr(sP,16)}, s[0:1], 0"); e(f"s_load_dwordx4 {sr(sP+16,4)}, s[0:1], 64"); e(f"s_load_dwordx2 {sr(sP+20,2)}, s[0:1], 80")
if OPT['stamp']: e(f"s_memtime s[{sST+4}:{sST+5}]"); e(f"s_memrealtime s[{sST+6}:{sST+7}]")
e(f"v_lshrrev_b32 v{vT}, 6, v0"); e(f"v_and_b32 v{vL}, 63, v0"); e(f"v_readfirstlane_b32 s{sW}, v{vT}")
if OPT['amap'] == 0:
    e(f"s_lshr_b32 s{sRB}, s2, 5"); e(f"s_and_b32 s{sH}, s2, 7"); e(f"s_lshl_b32 s{sH}, s{sH}, 2")
    e(f"s_bfe_u32 s{sT}, s2, {(2<<16)|3:#x}"); e(f"s_add_u32 s{sH}, s{sH}, s{sT}")
elif OPT['amap'] == 1:
    e(f"s_and_b32 s{sRB}, s2, 7"); e(f"s_lshr_b32 s{sH}, s2, 3")
elif OPT['amap'] == 2:
    e(f"s_and_b32 s{sRB}, s2, 6"); e(f"s_lshr_b32 s{sT}, s2, 7"); e(f"s_add_u32 s{sRB}, s{sRB}, s{sT}")
    e(f"s_and_b32 s{sH}, s2, 1"); e(f"s_lshl_b32 s{sH}, s{sH}, 4"); e(f"s_bfe_u32 s{sT}, s2, {(4<<16)|3:#x}"); e(f"s_add_u32 s{sH}, s{sH}, s{sT}")
e(f"s_and_b32 s{sMW}, s{sW}, 3"); e(f"s_lshr_b32 s{sNW}, s{sW}, 2")
e(f"s_lshl_b32 s{sLAM}, s{sRB}, 5"); e(f"s_add_u32 s{sLAM}, s{sLAM}, s{sH}")
e(f"v_lshlrev_b32 v{vL16}, 4, v{L}")
e(f"v_lshrrev_b32 v{vT}, 3, v{L}"); e(f"v_lshlrev_b32 v{vT}, 11, v{vT}")
e(f"v_lshrrev_b32 v{vT+1}, 4, v{L}"); e(f"v_and_b32 v{vT+2}, 7, v{L}"); e(f"v_xor_b32 v{vT+1}, v{vT+1}, v{vT+2}")
e(f"v_lshl_add_u32 v{vDX}, v{vT+1}, 4, v{vT}"); e(f"v_xor_b32 v{vDX+1}, 64, v{vDX}")
e(f"v_add_u32 v{vDX+2}, {2*15360}, v{vDX}"); e(f"v_add_u32 v{vDX+3}, {3*15360}, v{vDX+1}"); e(f"v_add_u32 v{vDX+1}, 15360, v{vDX+1}")
def swap23(d, s, t):
    e(f"v_and_b32 v{d}, 0x13, v{s}")
    e(f"v_and_b32 v{t}, 4, v{s}"); e(f"v_lshl_or_b32 v{d}, v{t}, 1, v{d}")
    e(f"v_and_b32 v{t}, 8, v{s}"); e(f"v_lshrrev_b32 v{t}, 1, v{t}"); e(f"v_or_b32 v{d}, v{d}, v{t}")
e(f"v_lshrrev_b32 v{vT}, 2, v{L}"); swap23(vT+1, vT, vT+2)
e(f"v_mul_u32_u24 v{vT+1}, 6144, v{vT+1}")
e(f"v_lshrrev_b32 v{vT}, 3, v{L}"); e(f"v_and_b32 v{vT}, 2, v{vT}"); e(f"v_and_b32 v{vT+2}, 3, v{L}"); e(f"v_xor_b32 v{vT}, v{vT}, v{vT+2}")
e(f"v_lshl_add_u32 v{vDB}, v{vT}, 4, v{vT+1}")
e(f"v_mul_u32_u24 v{vT}, 4682, v0"); e(f"v_lshrrev_b32 v{vT}, 16, v{vT}")
e(f"v_mul_u32_u24 v{vT+3}, 14, v{vT}"); e(f"v_sub_u32 v{vT+3}, v0, v{vT+3}")
swap23(vT+1, vT, vT+2)
e(f"v_mul_u32_u24 v{vT+1}, 7168, v{vT+1}"); e(f"v_lshl_add_u32 v{vDA}, v{vT+3}, 4, v{vT+1}")
e(f"s_lshl_b32 s{sKX}, s{sRB}, 19"); e(f"s_lshl_b32 s{sT}, s{sW}, 16"); e(f"s_add_u32 s{sKX}, s{sKX}, s{sT}")
e(f"s_add_u32 s{sKXE}, s{sKX}, 2048"); e(f"s_lshl_b32 s{sMX}, s{sW}, 12")
e(f"s_mul_i32 s{sOW+1}, s{sH}, 224"); e(f"s_sub_u32 s{sOW}, s{sOW+1}, {32*7168}")
e(f"s_mov_b32 s{sOW+2}, s{sOW}"); e(f"s_mov_b32 s{sOW+3}, s{sOW+1}")
e(f"s_lshl_b32 s{sT}, s{sW}, 10")
for n, o in enumerate((GOFF, GOFF+HALF, UOFF, UOFF+HALF)): e(f"s_add_u32 s{sMWd+n}, s{sT}, {WBASE+o}")
e(f"s_mov_b32 s{sINCA}, {64*7168}")
def qpiece(p):
    half, unit, rg = p // 6, (p % 6) // 2, p % 2
    return (WBASE + half*HALF + unit*2048 + rg*1024, ((-32 + half*32 + rg*16)*6144 + unit*2048) & 0xffffffff)
e(f"s_lshl_b32 s{sT+1}, s{sH}, 6")
e(f"s_add_u32 s{sMWd+4}, s{sT}, {WBASE}")
e(f"s_and_b32 s{sT+2}, s{sW}, 1"); e(f"s_mul_i32 s{sT+2}, s{sT+2}, {16*6144}")
e(f"s_lshr_b32 s{sT+3}, s{sW}, 1"); e(f"s_lshl_b32 s{sT+3}, s{sT+3}, 11"); e(f"s_add_u32 s{sT+2}, s{sT+2}, s{sT+3}")
e(f"s_sub_u32 s{sOW+4}, s{sT+2}, {32*6144}")
for w, p in ((6, 6), (7, 11)):
    l, o = qpiece(p)
    e(f"s_cmp_eq_u32 s{sW}, {w}"); e(f"s_cselect_b32 s{sMWd+4}, {l:#x}, s{sMWd+4}"); e(f"s_cselect_b32 s{sOW+4}, {o:#x}, s{sOW+4}")
e(f"s_add_u32 s{sOW+4}, s{sOW+4}, s{sT+1}")
e("s_waitcnt lgkmcnt(0)")
if OPT['stamp']: e(f"v_writelane_b32 v0, s{sST+4}, 0"); e(f"v_writelane_b32 v0, s{sST+6}, 16")
srd(sX, pX, 0 if OPT['noX'] else 2048*2048)
for n in range(4): a_full('x', n, 0)
srd(sQ, pQKV, 0 if OPT['noW'] else 1024*6144); srd(sA, pWG, 0 if OPT['noW'] else 1024*7168); srd(sB, pWU, 0 if OPT['noW'] else 1024*7168)
e(f"s_cmp_eq_u32 s{sW}, 7"); e("s_cbranch_scc0 LA_not7")
for d in (sA, sB):
    for k in range(3): e(f"s_mov_b32 s{d+k}, s{sQ+k}")
for n in range(4):
    l, o = qpiece(7+n)
    e(f"s_mov_b32 s{sMWd+n}, {l:#x}"); e(f"s_add_u32 s{sOW+n}, s{sT+1}, {o:#x}")
e(f"s_mov_b32 s{sINCA}, {64*6144}"); e(f"v_mov_b32 v{vDA}, v{vDB}")
g.lab("LA_not7")
for n in range(5): a_full('w', n, 0, True)
srd(sWS, pWSp, WS_SIZE); srd(sDBG, pDBG, 256); srd(sPF, pGW, 2048)
e(f"v_and_b32 v{vT}, 15, v{L}"); e(f"s_lshl_b32 s{sT}, s{sMW}, 6"); e(f"v_add_u32 v{vT}, s{sT}, v{vT}"); e(f"v_lshlrev_b32 v{vT}, 7, v{vT}")
e(f"v_lshrrev_b32 v{vT+1}, 4, v{L}"); e(f"v_bfe_u32 v{vT+2}, v{L}, 1, 3"); e(f"v_xor_b32 v{vT+2}, v{vT+1}, v{vT+2}")
e(f"v_lshl_add_u32 v{vXR}, v{vT+2}, 4, v{vT}"); e(f"v_xor_b32 v{vXR+1}, 64, v{vXR}")
e(f"v_bfe_u32 v{vT}, v{L}, 2, 3")
e(f"v_lshrrev_b32 v{vT+1}, 5, v{L}"); e(f"v_lshl_add_u32 v{vT}, v{vT+1}, 4, v{vT}")
e(f"v_and_b32 v{vT+1}, 3, v{L}"); e(f"v_lshlrev_b32 v{vT+1}, 3, v{vT+1}"); e(f"v_add_u32 v{vT+1}, {WBASE}, v{vT+1}")
e(f"v_mul_u32_u24 v{vWG}, 224, v{vT}"); e(f"v_add_u32 v{vWG}, v{vWG}, v{vT+1}"); e(f"v_add_u32 v{vWG+1}, {WSLOT}, v{vWG}")
e(f"v_lshl_add_u32 v{vWQ}, v{vT}, 6, v{vT+1}"); e(f"v_bfe_u32 v{vT+2}, v{L}, 4, 1"); e(f"v_lshl_add_u32 v{vWQ}, v{vT+2}, 5, v{vWQ}")
e(f"v_xor_b32 v{vWQ+1}, 32, v{vWQ}"); e(f"v_add_u32 v{vWQ+2}, {WSLOT}, v{vWQ}"); e(f"v_add_u32 v{vWQ+3}, {WSLOT}, v{vWQ+1}")
for r in range(vACC, 256): e(f"v_mov_b32 v{r}, 0")
e(f"s_mov_b32 s{sK}, {f32(-LOG2E)}"); e(f"s_mov_b32 s{sK+1}, {f32(-LOG2E)}")
e(f"s_lshl_b32 s{sGO}, s{sLAM}, 3"); e(f"s_add_u32 s{sGO}, s{sGO}, s{sW}"); e(f"s_lshl_b32 s{sT+5}, s{sGO}, 11")
e(f"s_lshl_b32 s{sGO}, s{sGO}, 2"); e(f"s_add_u32 s{sGO}, s{sGO}, {WS_G:#x}")
e(f"v_lshlrev_b32 v42, 5, v{L}")
e(f"s_getreg_b32 s{sFAST}, hwreg(HW_REG_XCC_ID, 0, 4)")
PD = OPT['PD'] - OPT['pre']; sPB = sT+6
e(f"s_and_b32 s{sT}, s{sH}, 3"); e(f"s_lshl_b32 s{sT+1}, s{sRB}, 2"); e(f"s_add_u32 s{sT+1}, s{sT+1}, s{sT}")
e(f"s_lshr_b32 s{sT+2}, s{sH}, 2")
e(f"v_lshlrev_b32 v{vPF}, 7, v{L}"); e(f"s_mov_b32 s{sT+3}, 0"); e(f"s_mov_b32 s{sCNT}, 0"); e(f"s_mov_b32 s{sPFO}, 0"); e(f"s_mov_b32 s{sPFI}, 0")
e(f"s_mov_b32 s{sPB}, s{pX}"); e(f"s_mov_b32 s{sPB+1}, s{pX+1}")
def pfcase(w, body):
    e(f"s_cmp_lg_u32 s{sW}, {w}"); e(f"s_cbranch_scc1 LA_pf{w}"); body(); g.lab(f"LA_pf{w}")
def base(p, size): e(f"s_mov_b32 s{sPB}, s{p}"); e(f"s_mov_b32 s{sPB+1}, s{p+1}"); e(f"s_mov_b32 s{sCNT}, {size:#x}")
def pf_x():
    base(pX, 2048*2048); e(f"v_lshlrev_b32 v{vPF}, 11, v{L}"); e(f"s_lshl_b32 s{sPFO}, s{sLAM}, 14" if OPT['amap'] == 1 else f"s_lshl_b32 s{sPFO}, s{sT+1}, 17"); e(f"s_add_u32 s{sPFO}, s{sPFO}, {PD*128}")
    e(f"s_mov_b32 s{sPFI}, 128"); e(f"s_mov_b32 s{sT+3}, {8 if OPT['amap'] == 1 else 64}")
def pf_gu(p):
    def f():
        base(p, 1024*7168); e(f"v_cmp_le_u32 vcc, 7, v{L}"); e(f"v_add_u32 v{vT}, {7168-896}, v{vPF}"); e("s_nop 0")
        e(f"v_cndmask_b32 v{vPF}, v{vPF}, v{vT}, vcc")
        e(f"s_mul_i32 s{sPFO}, s{sT+1}, {2*7168}"); e(f"s_mul_i32 s{sT+4}, s{sT+2}, 896"); e(f"s_add_u32 s{sPFO}, s{sPFO}, s{sT+4}")
        e(f"s_add_u32 s{sPFO}, s{sPFO}, {(64*PD-32)*7168}"); e(f"s_mov_b32 s{sPFI}, {64*7168}"); e(f"s_mov_b32 s{sT+3}, 14")
    return f
def pf_q():
    base(pQKV, 1024*6144); e(f"v_lshrrev_b32 v{vT}, 1, v{L}"); e(f"v_lshlrev_b32 v{vT}, 11, v{vT}"); e(f"v_and_b32 v{vPF}, 1, v{L}")
    e(f"v_lshl_add_u32 v{vPF}, v{vPF}, 7, v{vT}")
    e(f"s_mul_i32 s{sPFO}, s{sT+1}, {2*6144}"); e(f"s_lshl_b32 s{sT+4}, s{sT+2}, 8"); e(f"s_add_u32 s{sPFO}, s{sPFO}, s{sT+4}")
    e(f"s_add_u32 s{sPFO}, s{sPFO}, {(64*PD-32)*6144}"); e(f"s_mov_b32 s{sPFI}, {64*6144}"); e(f"s_mov_b32 s{sT+3}, 12")
def pf_lin(p, size, nl):
    def f():
        base(p, size); e(f"s_mul_i32 s{sPFO}, s{sLAM}, {nl*128}"); e(f"s_mov_b32 s{sPFI}, {nl*128*256}"); e(f"s_mov_b32 s{sT+3}, {nl}")
    return f
if OPT['pf']:
    if PD > 0: pfcase(6, pf_x); pfcase(1, pf_gu(pWG)); pfcase(2, pf_gu(pWU)); pfcase(3, pf_q)
    pfcase(4, pf_lin(pWD, 3584*2048, 20)); pfcase(5, pf_lin(pWO, 1024*2048, 8))
    if OPT['touch'] & 1: pfcase(6, pf_lin(pWSp, A_BYTES, 64))
    def pf_kv():
        pf_lin(pWSp, WS_KV + (0x1000000 if OPT['touch'] & 4 else 0x800000), 64)(); e(f"s_add_u32 s{sPFO}, s{sPFO}, {WS_KV:#x}")
    if OPT['touch'] & 2: pfcase(7, pf_kv)
e(f"v_cmp_gt_u32 vcc, s{sT+3}, v{L}"); e(f"v_bfrev_b32 v{vT}, 1"); e("s_nop 0"); e(f"v_cndmask_b32 v{vPF}, v{vT}, v{vPF}, vcc")
for n in range(5): a_full('w', n, 1)
e("s_waitcnt vmcnt(5)"); e("s_barrier")
e(f"s_cmp_eq_u32 s{sNW}, 1"); e("s_cbranch_scc1 LA_pre1")
for nw in range(2):
    if nw == 1: g.lab("LA_pre1")
    sq, sv_ = g.steady(lambda: a_body(nw))
    g.q = []
    for i in range(4): a_xread(i, 0)
    for n in range(4): a_wread(nw, n)
    assert [t for t in sv_ if t[0] == 'w'] == [('w', 1, k) for k in range(5)], sv_
    for t in sv_:
        if t[0] == 'x': assert t[1] == 1; a_full('x', t[2], 1)
    assert not any(t[0] == 'p' for t in sv_[sv_.index(('w', 1, 0)):]), sv_
    e(f"buffer_load_dwordx4 {vr(26,4)}, v42, {sr(sX,4)}, s{sT+5} offen"); e(f"buffer_load_dwordx4 {vr(30,4)}, v42, {sr(sX,4)}, s{sT+5} offen offset:16")
    e(f"buffer_load_dwordx4 {vr(34,4)}, v42, {sr(sPF,4)}, 0 offen"); e(f"buffer_load_dwordx4 {vr(38,4)}, v42, {sr(sPF,4)}, 0 offen offset:16")
    if nw == 0:
        e(f"s_cmp_lg_u32 s{sW}, 0"); e("s_cbranch_scc1 LA_noclr")
        e(f"s_add_u32 s{sT}, s2, 256"); e(f"s_add_u32 s{sT+1}, s{sLAM}, 512")
        e(f"v_mov_b32 v20, s{sLAM}"); e(f"v_writelane_b32 v20, s{sT}, 3"); e(f"v_writelane_b32 v20, s{sT+1}, 0"); e(f"v_lshlrev_b32 v20, 7, v20")
        e(f"v_lshl_add_u32 v20, v{L}, 2, v20"); e(f"v_mov_b32 v21, 0"); e(f"s_mov_b32 s{sT}, {WS_FL:#x}")
        e(f"v_mov_b32 v22, {CNTLDS}"); e("v_mov_b32 v23, 0"); e("ds_write_b32 v22, v23")
        e(f"v_writelane_b32 v21, s{sFAST}, 4")
        e("s_mov_b64 exec, 31"); e(f"buffer_store_dword v21, v20, {sr(sWS,4)}, s{sT} offen sc1"); e("s_mov_b64 exec, -1")
        g.lab("LA_noclr")
    e(f"s_mov_b32 s{sPF}, s{sPB}"); e(f"s_and_b32 s{sPF+1}, s{sPB+1}, 0xffff"); e(f"s_mov_b32 s{sPF+2}, s{sCNT}")
    for k in range(OPT['pre']): a_op('p', 0, 0)
    e(f"s_mov_b32 s{sCNT}, 8"); e(f"s_mov_b32 s{sOK}, 0")
    stamp('loopA')
    if OPT['prio'] and nw == 1: e("s_setprio 1")
    e("s_waitcnt lgkmcnt(0)")
    g.q = list(sq); g.v = list(sv_)
    g.L.append(".p2align 6"); g.lab(f"LA_loop{nw}")
    a_body(nw); assert g.q == sq and g.v == sv_
    e(f"s_sub_u32 s{sCNT}, s{sCNT}, 1")
    e(f"s_cmp_ge_u32 s{sCNT}, 6"); e(f"s_cbranch_scc1 LA_h1_{nw}")
    e(f"s_cmp_lt_u32 s{sCNT}, 3"); e(f"s_cbranch_scc0 LA_loop{nw}")
    e(f"s_cmp_eq_u32 s{sCNT}, 2"); e(f"s_cbranch_scc1 LA_h2_{nw}")
    e(f"s_cmp_eq_u32 s{sCNT}, 1"); e(f"s_cbranch_scc1 LA_h3_{nw}")
    sv = g.L; g.L = g.tail
    g.lab(f"LA_h1_{nw}")
    e(f"s_cmp_eq_u32 s{sCNT}, 6"); e(f"s_cbranch_scc1 LA_h1b_{nw}")
    gate_compute(); e(f"s_branch LA_loop{nw}")
    g.lab(f"LA_h1b_{nw}")
    if nw == 0:
        e(f"s_cmp_lg_u32 s{sW}, 0"); e(f"s_cbranch_scc1 LA_loop{nw}")
        e(f"v_mov_b32 v{vT}, 1")
        one_lane(lambda: e(f"buffer_atomic_add v{vT}, off, {sr(sDBG,4)}, 0 sc1"))
    e(f"s_branch LA_loop{nw}")
    g.lab(f"LA_h2_{nw}")
    e(f"buffer_load_dword v{vCN}, off, {sr(sDBG,4)}, 0 sc1"); e(f"s_branch LA_loop{nw}")
    g.lab(f"LA_h3_{nw}")
    e("s_waitcnt vmcnt(12)"); e(f"v_readfirstlane_b32 s{sT}, v{vCN}"); e("s_nop 0")
    e(f"s_cmp_eq_u32 s{sT}, 256"); e(f"s_cbranch_scc0 LA_loop{nw}")
    e(f"s_mov_b32 s{sOK}, 1"); g_loads(); e(f"s_branch LA_loop{nw}")
    g.lab(f"LA_slow{nw}")
    def ld(): e(f"buffer_load_dword v{vCN}, off, {sr(sDBG,4)}, 0 sc1")
    def ts(): e(f"v_readfirstlane_b32 s{sT}, v{vCN}"); e("s_nop 0"); e(f"s_cmp_eq_u32 s{sT}, 256")
    spin(f"LA_spin{nw}", ld, ts, sT+3); g_loads(); e("s_waitcnt vmcnt(0)"); e(f"s_branch LB_go{nw}")
    g.L = sv
    if OPT['prio'] and nw == 1: e("s_setprio 0")
    stamp('endA')
    U = UNITS[nw]; jkv = 2 if nw == 0 else 0
    if OPT['bprio'] and nw == 1: e("s_setprio 1")
    e("s_waitcnt vmcnt(0) lgkmcnt(0)"); e("s_barrier")
    for i in range(4): pack2(jkv, i)
    e(f"s_lshl_b32 s{sT+4}, s{sLAM}, 15"); e(f"s_add_u32 s{sT+4}, s{sT+4}, {WS_KV:#x}")
    e(f"s_lshl_b32 s{sT+5}, s{sMW}, 13"); e(f"v_add_u32 v{vT+8}, s{sT+5}, v{vL16}")
    e(f"s_add_u32 s{sT+5}, s{sT+5}, s{sT+4}"); e(f"s_add_u32 s{sT+6}, s{sT+5}, 4096")
    if nw == 1:
        for i in range(4):
            a = ACC(0, i); e(f"v_permlane32_swap_b32 v{a}, v{a+2}"); e(f"v_permlane32_swap_b32 v{a+1}, v{a+3}")
    e(f"s_cmp_eq_u32 s{sRB}, 7"); e(f"s_cbranch_scc1 LB_nokvst{nw}")
    for i in range(4):
        e(f"buffer_store_dwordx4 {vr(ACC(jkv,i),4)}, v{vL16}, {sr(sWS,4)}, s{sT+5+(i>>1)} offen offset:{nw*2048+(i&1)*1024} sc1")
    g.lab(f"LB_nokvst{nw}")
    for i in range(4):
        e(f"ds_write_b128 v{vT+8}, {vr(ACC(jkv,i),4)} offset:{32768+(i>>1)*4096+nw*2048+(i&1)*1024}")
    e(f"s_cmp_eq_u32 s{sOK}, 0"); e(f"s_cbranch_scc1 LA_slow{nw}")
    g.lab(f"LB_go{nw}")
    e(f"v_cmp_ne_u32 vcc, s{sFAST}, v25"); e("s_nop 1"); e("s_cmp_eq_u64 vcc, 0"); e(f"s_cselect_b32 s{sFAST}, {OPT['fast']}, 0")
    for i in range(4):
        e(f"v_sub_f32 v{vGV+i}, 1.0, v{vGV+i}"); e(f"v_cvt_pk_bf16_f32 v{vGV+i}, v{vGV+i}, v{vGV+i}"); e(f"v_and_b32 v{vGV+i}, 0xffff0000, v{vGV+i}")
    for i in range(4): e(f"v_rcp_f32 v{vGV+i}, v{vGV+i}")
    e(f"v_and_b32 v{vT+10}, 31, v{L}"); e(f"v_lshlrev_b32 v{vT+10}, 4, v{vT+10}"); e(f"v_lshrrev_b32 v{vT+11}, 5, v{L}")
    e(f"v_mul_u32_u24 v{vT+11}, {M16}, v{vT+11}"); e(f"v_add_u32 v{vT+10}, v{vT+10}, v{vT+11}")
    for i in range(4): e(f"v_min_f32 v{vGV+i}, {f32(2.0**100)}, v{vGV+i}")
    e(f"s_lshl_b32 s{sT}, s{sRB}, 4"); e(f"s_lshl_b32 s{sT+1}, s{sMW}, 2"); e(f"s_add_u32 s{sT}, s{sT}, s{sT+1}")
    e(f"s_mul_i32 s{sT+1}, s{sT}, {M16}"); e(f"s_mul_i32 s{sT}, s{sH}, {7*512}"); e(f"s_add_u32 s{sT+1}, s{sT+1}, s{sT}")
    e(f"s_add_u32 s{sT+2}, s{sT+1}, {2*M16}")
    e(f"s_lshl_b32 s{sT+7}, s{sLAM}, 7"); e(f"s_add_u32 s{sT+7}, s{sT+7}, {WS_FL:#x}")
    e(f"v_mov_b32 v{vCN}, 1"); e(f"v_mov_b32 v{vT+12}, {CNTLDS}")
    gus = [j for j in range(10) if U[j][0] == 'g']
    def hstore(j, i): dstore([f"buffer_store_dwordx4 {vr(ACC(j,i),4)}, v{vT+10}, {sr(sWS,4)}, s{sT+1+(i>>1)} offen offset:{int(U[j][1])*512}"])
    ns = 0; nst = 0; DEF = OPT['defer']; todo = []; KVS = OPT['kvs'] if nw == 0 else OPT['kvs1']
    def ldK(): e(f"buffer_load_dword v{vT+14}, off, {sr(sWS,4)}, s{sT+3} offset:{FL_KV} sc1")
    def tsK(): e(f"v_readfirstlane_b32 s{sT}, v{vT+14}"); e("s_nop 0"); e(f"s_cmp_eq_u32 s{sT}, 1")
    e(f"s_add_u32 s{sT+3}, s{sT+7}, {65536-4096}")
    for n, j in enumerate(gus):
        for i in (0, 2):
            silu(j, i, vT); ns += 1
            if DEF == 1 or (DEF == 2 and nw == 0): todo.append((j, i))
            else: hstore(j, i); nst += 1
            if ns == KVS:
                e(f"s_waitcnt vmcnt({nst})")
                e("s_mov_b64 exec, 1"); e(f"ds_add_rtn_u32 v{vT+13}, v{vT+12}, v{vCN}"); e("s_mov_b64 exec, -1")
                stamp('kvsig')
            if ns == KVS:
                e("s_waitcnt lgkmcnt(0)"); e(f"v_readfirstlane_b32 s{sT}, v{vT+13}"); e("s_nop 0"); e(f"s_cmp_lg_u32 s{sT}, 7"); e(f"s_cbranch_scc1 LB_nf1{nw}")
                e(f"s_add_u32 s{sT}, s{sT+7}, 65536")
                one_lane(lambda: e(f"buffer_store_dword v{vCN}, off, {sr(sWS,4)}, s{sT} offset:{FL_KV} sc1"))
                g.lab(f"LB_nf1{nw}")
    if nw == 0:
        ldK()
        for i in range(4): pack2(0, i)
        e(f"s_lshl_b32 s{sT}, s{sMW}, 12"); e(f"s_add_u32 s{sT}, s{sT}, {QLDS}"); e(f"v_add_u32 v{vT+9}, s{sT}, v{vL16}")
        for i in range(4): e(f"ds_write_b128 v{vT+9}, {vr(ACC(0,i),4)} offset:{i*1024}")
        e(f"v_mov_b32 v{vT+12}, {CNT2}"); e(f"v_mov_b32 v{vT+13}, 0"); e(f"ds_write_b32 v{vT+12}, v{vT+13}")
    stamp('hdone')
    if nw == 0:
        e(f"s_cmp_eq_u32 s{sRB}, 0"); e("s_cbranch_scc1 LB_rb0")
        e("s_waitcnt vmcnt(0)"); tsK(); e("s_cbranch_scc1 LB_spin_ok")
        spin("LB_spin", ldK, tsK, sT+5)
        e(f"s_sub_u32 s{sT+5}, s{sT+4}, {32*32768}"); e(f"s_add_u32 s{sT+6}, s{sT+5}, 4096")
        for f in range(8): e(f"buffer_load_dwordx4 {vr(44+4*f,4)}, v{vT+8}, {sr(sWS,4)}, s{sT+5+(f>>2)} offen offset:{(f&3)*1024} sc1")
        e("s_branch LB_st0")
        g.lab("LB_rb0")
        for r in range(44, 76): e(f"v_mov_b32 v{r}, 0")
        g.lab("LB_st0")
        NDEF0 = len(todo)
    stamp('kvok')
    for (j, i) in todo: hstore(j, i)
    if nw == 0: e("s_branch LB_common")
g.lab("LB_common")
c_setup()
vF = 40; vQ = 32; vS = 112; vM = 26; vSUM = 28
BIG = 2.0**100
e(f"v_and_b32 v{vM}, 31, v{L}"); e(f"v_lshrrev_b32 v{vM+1}, 5, v{L}"); e(f"v_lshlrev_b32 v{vM+1}, 2, v{vM+1}")
e(f"v_sub_u32 v{vM}, v{vM}, v{vM+1}"); e(f"v_cvt_f32_i32 v{vM}, v{vM}"); e(f"v_mul_f32 v{vM}, {f32(BIG)}, v{vM}")
for rho in range(16):
    cst = 8*(rho >> 2) + (rho & 3)
    e(f"v_sub_f32 v{vS+rho}, {f32((cst-1)*BIG)}, v{vM}"); e(f"v_add_f32 v{vS+128+rho}, {f32(-cst*BIG)}, v{vM}")
for rho in range(16):
    e(f"v_min_f32 v{vS+rho}, 0, v{vS+rho}"); e(f"v_min_f32 v{vS+128+rho}, 0, v{vS+128+rho}")
vKA, vVA, vQA, vOA = 8, 9, 10, 11
e(f"v_and_b32 v{vM+1}, 15, v{L}"); e(f"v_lshlrev_b32 v{vM+1}, 4, v{vM+1}"); e(f"v_lshrrev_b32 v{vM+2}, 5, v{L}")
e(f"v_lshl_add_u32 v{vM+1}, v{vM+2}, 8, v{vM+1}"); e(f"v_bfe_u32 v{vM+2}, v{L}, 4, 1")
e(f"v_lshl_add_u32 v{vQA}, v{vM+2}, 10, v{vM+1}"); e(f"v_lshl_add_u32 v{vVA}, v{vM+2}, 9, v{vM+1}")
e(f"v_mul_u32_u24 v{vOA}, {M16}, v{vM+2}"); e(f"v_add_u32 v{vOA}, v{vOA}, v{vM+1}")
e(f"s_lshl_b32 s{sT}, s{sW}, 12"); e(f"v_add_u32 v{vKA}, s{sT}, v{vQA}"); e(f"v_add_u32 v{vVA}, s{sT}, v{vVA}")
e(f"s_lshl_b32 s{sT}, s{sW}, 11"); e(f"s_add_u32 s{sT}, s{sT}, {QLDS}"); e(f"v_add_u32 v{vQA}, s{sT}, v{vQA}")
e(f"s_cmp_eq_u32 s{sNW}, 1"); e("s_cbranch_scc1 LB_nokv")
for f in range(8):
    e(f"s_waitcnt vmcnt({7-f+NDEF0})"); e(f"ds_write_b128 v{vT+8}, {vr(44+4*f,4)} offset:{f*1024}")
g.lab("LB_nokv")
stamp('kvld')
if OPT['bprio']: e("s_setprio 0")
e("s_waitcnt lgkmcnt(0)"); e("s_barrier")
stamp('bar2')
def kread(t):
    for f in range(2): g.lds(f"ds_read_b128 {vr(vF+8*t+4*f,4)}, v{vKA} offset:{t*4096+f*512}", ('K', t, f))
def vread(t):
    for f in range(2): g.lds(f"ds_read_b128 {vr(vF+8*t+4*f,4)}, v{vVA} offset:{t*4096+2048+f*1024}", ('V', t, f))
def mx(t, half=None):
    b = vS + 16*t
    for r in range(0, 16, 2):
        if half is not None and (r >> 3) != half: continue
        k = (r >> 1) & 1
        if t == 0 and r < 4: e(f"v_max_f32 v{vM+k}, v{b+r}, v{b+r+1}")
        else: e(f"v_max3_f32 v{vM+k}, v{vM+k}, v{b+r}, v{b+r+1}")
def s_phase(rb0):
    g.q = []
    for f in range(2): g.lds(f"ds_read_b128 {vr(vQ+4*f,4)}, v{vQA} offset:{f*512}", ('Q', f))
    for t in range(5): kread(t)
    for t in range(9):
        for f in range(2):
            g.need([('K', t, f), ('Q', f)])
            c = vr(vS+16*t, 16) if (f == 1 or t in (0, 8)) else "0"
            e(f"{MF32} {vr(vS+16*t,16)}, {vr(vF+8*t+4*f,4)}, {vr(vQ+4*f,4)}, {c}")
            if not rb0 and t >= 3: mx(t-3, f)
        if t + 5 < 9: kread(t+5)
        elif t >= 5: vread(t-5)
    vread(4); vread(5)
    if rb0:
        e(f"s_sub_u32 s{sT}, 8, s{sW}"); e("s_nop 7")
        for t in range(8):
            e(f"s_cmp_le_u32 s{sT}, {t}"); e("s_cbranch_scc1 LB_maskdone")
            for rho in range(16): e(f"v_mov_b32 v{vS+16*t+rho}, {f32(-BIG)}")
        g.lab("LB_maskdone")
        for t in range(6): mx(t)
e(f"s_cmp_eq_u32 s{sRB}, 0"); e("s_cbranch_scc1 LB_s0")
sv = g.L; g.L = g.tail; g.lab("LB_s0"); s_phase(True); e("s_branch LB_sdone"); g.L = sv
s_phase(False)
g.lab("LB_sdone")
for t in range(6, 9): mx(t)
e(f"v_mov_b32 v{vSUM}, {CNT2}")
stamp('sph')
e("s_waitcnt vmcnt(0)")
e("s_mov_b64 exec, 1"); g.lds(f"ds_add_rtn_u32 v{vSUM+1}, v{vSUM}, v{vCN}", 'C'); e("s_mov_b64 exec, -1")
e(f"v_max_f32 v{vM}, v{vM}, v{vM+1}"); e(f"v_mov_b32 v{vM+1}, v{vM}"); e("s_nop 1")
e(f"v_permlane32_swap_b32 v{vM}, v{vM+1}"); e(f"v_max_f32 v{vM}, v{vM}, v{vM+1}")
CC = 32 ** -0.5 * LOG2E
e(f"s_mov_b32 s{sK}, {f32(CC)}"); e(f"s_mov_b32 s{sK+1}, {f32(CC)}")
e(f"v_mul_f32 v{vM}, {f32(-CC)}, v{vM}"); e(f"v_mov_b32 v{vM+1}, v{vM}")
vO = vS + 8
def pbase(t): return vS if t == 0 else vS + 16*t + 8
def soft(t, mid=None):
    b = vS + 16*t
    for r in range(0, 16, 2): e(f"v_pk_fma_f32 {vr(b+r,2)}, {vr(b+r,2)}, {sr(sK,2)}, {vr(vM,2)}")
    if mid: mid()
    for r in range(16): e(f"v_exp_f32 v{b+r}, v{b+r}")
    for r in range(0, 16, 2):
        s = vSUM + 2*((r >> 1) & 1)
        if t == 0 and r < 4: e(f"v_pk_add_f32 {vr(s,2)}, {vr(b+r,2)}, {vr(b+r+4,2)}")
        elif t == 0 and r < 8: pass
        else: e(f"v_pk_add_f32 {vr(s,2)}, {vr(s,2)}, {vr(b+r,2)}")
    if t == 0:
        for r in range(8): e(f"v_cvt_pk_bf16_f32 v{b+r}, v{b+2*r}, v{b+2*r+1}")
    else:
        for r in range(7, -1, -1): e(f"v_cvt_pk_bf16_f32 v{b+8+r}, v{b+2*r}, v{b+2*r+1}")
def pv(t):
    for f in range(2):
        g.need([('V', t, f)])
        e(f"{MF32} {vr(vO,16)}, {vr(vF+8*t+4*f,4)}, {vr(pbase(t)+4*f,4)}, " + ("0" if (t == 0 and f == 0) else vr(vO, 16)))
    if t + 6 < 9: vread(t+6)
def hsig():
    g.need(['C']); e(f"v_readfirstlane_b32 s{sT}, v{vSUM+1}"); e("s_nop 0"); e(f"s_cmp_lg_u32 s{sT}, 7"); e("s_cbranch_scc1 LB_nf2")
    one_lane(lambda: dstore([f"buffer_store_dword v{vCN}, off, {sr(sWS,4)}, s{sT+7} offset:{FL_H}"]))
    g.lab("LB_nf2")
e(f"s_lshr_b32 s{sT+4}, s{cMT}, 1"); e(f"s_lshl_b32 s{sT+4}, s{sT+4}, 12"); e(f"s_add_u32 s{sT+4}, s{sT+4}, {WS_FL:#x}")
def ldH(): e(f"buffer_load_dword v{cvPL}, v{cvPL+1}, {sr(sWS,4)}, s{sT+4} offen offset:{FL_H} sc1")
def tsL(): e(f"v_cmp_ne_u32 vcc, 1, v{cvPL}"); e("s_nop 1"); e("s_cmp_eq_u64 vcc, 0")
def predma(t):
    k = 2*(t-1)
    if k % 4 == 0: e(f"s_mov_b32 m0, s{cM0+k//4}"); e("s_nop 0")
    c_dma(k % 4); c_dma(k % 4 + 1)
soft(0, hsig); soft(1, lambda: predma(1)); e("s_nop 0"); pv(0)
for t in range(2, 9):
    if t <= 4: predma(t)
    if t == 5 and OPT['c3']:
        e(f"s_cmp_lg_u32 s{sW}, 7"); e("s_cbranch_scc1 LB_noc3")
        e(f"s_add_u32 s{sT}, s{cSTG}, 2"); e(f"s_lshl_b32 s{sT}, s{sT}, 18"); e(f"s_add_u32 s{sT}, s{sT}, s{cC3}")
        e(f"buffer_load_dword v{vDUM}, v{cvC3}, {sr(cWt,4)}, s{sT} offen")
        g.lab("LB_noc3")
    if t == 7: ldH()
    soft(t, lambda: pv(t-1))
e("s_nop 1"); pv(8)
e(f"v_pk_add_f32 {vr(vSUM,2)}, {vr(vSUM,2)}, {vr(vSUM+2,2)}"); e(f"v_add_f32 v{vSUM}, v{vSUM}, v{vSUM+1}")
e(f"v_mov_b32 v{vSUM+1}, v{vSUM}"); e("s_nop 1"); e(f"v_permlane32_swap_b32 v{vSUM}, v{vSUM+1}")
e(f"v_add_f32 v{vSUM}, v{vSUM}, v{vSUM+1}"); e(f"v_rcp_f32 v{vSUM}, v{vSUM}")
e(f"s_lshl_b32 s{sT}, s{sRB}, 4"); e(f"s_lshl_b32 s{sT+1}, s{sW}, 1"); e(f"s_add_u32 s{sT}, s{sT}, s{sT+1}")
e(f"s_mul_i32 s{sT}, s{sT}, {M16}"); e(f"s_lshl_b32 s{sT+1}, s{sH}, 10"); e(f"s_add_u32 s{sT}, s{sT}, s{sT+1}"); e(f"s_add_u32 s{sT+1}, s{sT}, {224*512}")
e(f"v_mul_f32 v{vSUM}, v{vSUM}, v{vGV+4}")
stamp('pv')
e("s_waitcnt vmcnt(0)"); tsL(); e("s_cbranch_scc0 LC_slowH")
g.lab("LC_goH")
g.v = []; CST[0] = 0
for k in range(4): c_aload(0, k)
for r in range(0, 16, 2): e(f"v_pk_mul_f32 {vr(vO+r,2)}, {vr(vO+r,2)}, {vr(vSUM,2)} op_sel_hi:[1,0]")
for r in range(8): e(f"v_cvt_pk_bf16_f32 v{vO+8+7-r}, v{vO+14-2*r}, v{vO+15-2*r}")
dstore([f"buffer_store_dwordx4 {vr(vO+8+4*f,4)}, v{vOA}, {sr(sWS,4)}, s{sT+1} offen offset:{f*512}" for f in range(2)])
stamp('attn')
e(f"v_bfe_u32 v{vT}, v{L}, 2, 3"); e(f"v_lshrrev_b32 v{vT+1}, 5, v{L}"); e(f"v_lshl_add_u32 v{vT+1}, v{vT+1}, 4, v{vT}")
e(f"v_lshlrev_b32 v{vT+1}, 8, v{vT+1}"); e(f"v_lshl_add_u32 v{vT+1}, v{vT}, 5, v{vT+1}")
e(f"v_and_b32 v{vT}, 3, v{L}"); e(f"v_lshl_add_u32 v{vT+1}, v{vT}, 3, v{vT+1}")
e(f"s_lshl_b32 s{sT}, s{sNW}, 14"); e(f"v_add_u32 v{cvRA+8}, s{sT}, v{vT+1}")
for u in range(1, 8): e(f"v_xor_b32 v{cvRA+8+u}, {32*u}, v{cvRA+8}")
for u in range(8): e(f"v_add_u32 v{cvRA+u}, {SLOTS[0]}, v{cvRA+8+u}")
for p in range(1, D-1):
    for k in range(4): c_aload(p, k)
for r in range(cvACC, 256): e(f"v_mov_b32 v{r}, 0")
e(f"s_mov_b32 s{sOK}, 0")
e(f"s_and_b32 s{sT+5}, s2, 127"); e(f"s_lshl_b32 s{sT+6}, s{sT+5}, 7"); e(f"s_add_u32 s{sT+6}, s{sT+6}, {WS_FL+32768:#x}")
e(f"s_lshl_b32 s{sT+5}, s{sT+5}, 16"); e(f"s_lshl_b32 s{sT}, s{sW}, 13"); e(f"s_add_u32 s{sT+5}, s{sT+5}, s{sT}"); e(f"s_add_u32 s{sT+5}, s{sT+5}, {WS_PART:#x}")
e(f"s_add_u32 s{sT+2}, s{sT+5}, 4096")
e("s_barrier")
stamp('bar3')
g.q = []
for n in range(7 if CB == 1 else 8): c_wread(0, n)
e(f"s_mov_b32 m0, s{cM0+2}"); e("s_nop 0")
for k in range(4): c_dma(k, ('d', 2))
pro_v = list(g.v)
def ldO(): e(f"buffer_load_dword v{cvPL}, v{cvPL+1}, {sr(sWS,4)}, s{sT+4} offen offset:{FL_O} sc1")
def ldP(): e(f"buffer_load_dword v{cvPL}, off, {sr(sWS,4)}, s{sT+6} offset:{FL_P} sc1")
def ploads():
    for q in range(8): e(f"buffer_load_dwordx4 {vr(cvPT+4*q,4)}, v{vL16}, {sr(sWS,4)}, s{sT+5 if q < 4 else sT+2} offen offset:{(q&3)*1024} sc1")
def h_of():
    e(f"s_cmp_lg_u32 s{sW}, 0"); e("s_cbranch_scc1 RET")
    one_lane(lambda: dstore([f"buffer_store_dword v{vCN}, off, {sr(sWS,4)}, s{sT+7} offset:{FL_O}"]))
def h_oc():
    e(f"s_mov_b32 s{cWK}, s{cRS}"); e(f"s_mov_b32 s{cWt}, s{pWO}"); e(f"s_and_b32 s{cWt+1}, s{pWO+1}, 0xffff")
    e(f"s_mov_b32 s{cWt+2}, {0 if OPT['noW2'] else 1024*2048:#x}")
    e("s_waitcnt vmcnt(8)"); tsL(); e("s_cbranch_scc1 RET"); spin("LC_spinO", ldO, tsL, sT+3)
def h_end():
    e(f"s_mov_b32 s{cWt+2}, 0"); e(f"s_mov_b32 s{cA+2}, 0"); e(f"s_lshl_b32 s{sT}, s{sW}, 12")
    for k in range(4): e(f"s_add_u32 s{cM0+k}, s{sT}, {DUMMY}")
def h_pc():
    e("s_waitcnt vmcnt(8)"); tsL(); e("s_cbranch_scc0 RET"); ploads(); e(f"s_mov_b32 s{sOK}, 1")
def c3pf(st):
    def f():
        e(f"s_cmp_lg_u32 s{sW}, 7"); e("s_cbranch_scc1 RET")
        if st < 28: srd(cS3, pWD, 3584*2048); e(f"s_add_u32 s{sT}, s{cC3}, {st*128*2048:#x}")
        else: srd(cS3, pWO, 1024*2048); e(f"s_add_u32 s{sT}, s{cC3}, {(st-28)*128*2048:#x}")
        e(f"buffer_load_dword v{vDUM}, v{cvC3}, {sr(cS3,4)}, s{sT} offen")
    return f
def h_wb():
    e(f"s_cmp_lg_u32 s{sW}, 0"); e("s_cbranch_scc1 RET"); e(f"s_cmp_lg_u32 s{sH}, 0"); e("s_cbranch_scc1 RET"); e("buffer_wbl2 sc1")
hooks = ([(OPT['wb'], h_wb)] if OPT['wb'] else []) + [(1, h_of), (NP+1, h_of), (NP-4, h_end), (23, ldO), (24, h_oc), (32, h_end), (33, ldP), (34, h_pc)]
if OPT['c3']:
    C3 = OPT['c3']; used = set(h[0] for h in hooks)
    def addpf(at, st, lo):
        while at in used: at -= 1
        assert at >= lo, (at, lo); used.add(at); hooks.append((at, c3pf(st)))
    for st in range(2+C3, NP, C3): addpf(max(st-C3-1, 0), st, 0)
    for st in list(range(NP+2+C3, 28, C3)) + list(range(28, 36, C3)): addpf(max(st-C3-1, NP), st, NP)
assert len(set(h[0] for h in hooks)) == len(hooks) and NP + 1 < 23
mask = sum(1 << h[0] for h in hooks)
cHM = 46
e(f"s_mov_b32 s{cHM}, {mask & 0xffffffff:#x}"); e(f"s_mov_b32 s{cHM+1}, {mask >> 32:#x}")
e("s_waitcnt lgkmcnt(0)")
stamp('loopC')
import re
def run(init_q, init_v, first):
    sv = g.L; g.L = []; g.q = list(init_q); g.v = list(init_v); CST[0] = first
    for p in range(D): c_stage(p)
    r = g.L; g.L = sv; return r, list(g.q), list(g.v)
t1, q1, v1 = run([], pro_v, 0); t2, q2, v2 = run(q1, v1, D); t3, q3, v3 = run(q2, v2, 2*D); t4, q4, v4 = run(q3, v3, 3*D)
assert t3 == t4
def split(t):
    out = []; pend = None
    for l in t:
        if 's_waitcnt' in l: assert pend is None; pend = l
        else: out.append((pend, l)); pend = None
    assert pend is None; return out
def cnts(w):
    if w is None: return (None, None)
    a = re.search(r'vmcnt\((\d+)\)', w); b = re.search(r'lgkmcnt\((\d+)\)', w)
    return (int(a.group(1)) if a else None, int(b.group(1)) if b else None)
S = [split(t) for t in (t1, t2, t3)]
assert [x[1] for x in S[0]] == [x[1] for x in S[2]]
per = len(S[2]) // D
g.L.append(".p2align 6"); g.lab("LC_loop0")
for idx in range(len(S[2])):
    c = [cnts(q[idx][0]) for q in S]
    vmn = [x[0] for x in c if x[0] is not None]; lk = [x[1] for x in c if x[1] is not None]
    w = ([f"vmcnt({min(vmn)})"] if vmn else []) + ([f"lgkmcnt({min(lk)})"] if lk else [])
    if w: e("s_waitcnt " + " ".join(w))
    g.L.append(S[2][idx][1])
    if (idx+1) % per == 0:
        p = idx // per
        hs = [h for h in hooks if (h[0] - (0 if h[0] < NP else NP)) % D == p]
        if hs:
            e(f"s_bitcmp1_b64 {sr(cHM,2)}, s{cSTG}"); e(f"s_cbranch_scc1 LC_hk{p}"); g.lab(f"LC_rt{p}")
            sv = g.L; g.L = []
            g.lab(f"LC_hk{p}")
            for st, f in hs:
                e(f"s_cmp_lg_u32 s{cSTG}, {st}"); e(f"s_cbranch_scc1 LC_n{st}"); f(); e("s_branch RET"); g.lab(f"LC_n{st}")
            e("s_branch RET")
            g.tail += [l.replace("RET", f"LC_rt{p}") for l in g.L]; g.L = sv
        e(f"s_add_u32 s{cSTG}, s{cSTG}, 1")
        if p == D-1: e(f"s_cmp_lt_u32 s{cSTG}, s{cEND}"); e("s_cbranch_scc1 LC_loop0")
        elif p in ((NP-1) % D, (35-NP) % D): e(f"s_cmp_ge_u32 s{cSTG}, s{cEND}"); e("s_cbranch_scc1 LC_done")
g.lab("LC_done")
sv = g.L; g.L = g.tail
g.lab("LC_slowP"); spin("LC_spinP", ldP, tsL, sT+3); ploads(); e("s_branch LC_fin2")
g.lab("LC_slowH"); spin("LC_spinH", ldH, tsL, sT+3); e("s_branch LC_goH")
g.L = sv
stamp('endC')
e(f"s_lshl_b32 s{sT}, s{sW}, 13"); e(f"v_add_u32 v{vT}, s{sT}, v{vL16}"); e(f"v_xor_b32 v{vT+1}, 0x8000, v{vT}")
XC = cvPT + 32
e(f"s_cmp_eq_u32 s{sNW}, 1"); e("s_cbranch_scc1 LC_x1")
for q in range(8): e(f"ds_write_b128 v{vT}, {vr(cvACC+32+4*q,4)} offset:{q*1024}")
e("s_branch LC_x2")
g.lab("LC_x1")
for q in range(8): e(f"ds_write_b128 v{vT}, {vr(cvACC+4*q,4)} offset:{q*1024}")
g.lab("LC_x2")
e("s_waitcnt lgkmcnt(0)"); e("s_barrier")
for q in range(8): e(f"ds_read_b128 {vr(XC+4*q,4)}, v{vT+1} offset:{q*1024}")
e(f"s_cmp_eq_u32 s{sNW}, 0"); e("s_cbranch_scc1 LC_x3")
for r in range(32): e(f"v_mov_b32 v{cvACC+r}, v{cvACC+32+r}")
g.lab("LC_x3")
e(f"s_cmp_eq_u32 s{cROLE}, 0"); e("s_cbranch_scc0 LC_cons")
for q in range(8):
    e(f"s_waitcnt lgkmcnt({7-q})")
    for r in range(0, 4, 2): e(f"v_pk_add_f32 {vr(XC+4*q+r,2)}, {vr(XC+4*q+r,2)}, {vr(cvACC+4*q+r,2)}")
    dstore([f"buffer_store_dwordx4 {vr(XC+4*q,4)}, v{vL16}, {sr(sWS,4)}, s{sT+5 if q < 4 else sT+2} offen offset:{(q&3)*1024}"], OPT['pfast'])
e("s_waitcnt vmcnt(0)"); e("s_barrier")
e(f"s_cmp_lg_u32 s{sW}, 0"); e("s_cbranch_scc1 LC_fin")
one_lane(lambda: dstore([f"buffer_store_dword v{vCN}, off, {sr(sWS,4)}, s{sT+6} offset:{FL_P}"], OPT['pfast']))
e("s_branch LC_fin")
g.lab("LC_cons")
e(f"s_cmp_eq_u32 s{sOK}, 0"); e("s_cbranch_scc1 LC_slowP")
g.lab("LC_fin2")
e(f"v_and_b32 v{vT+2}, 15, v{L}"); e(f"v_lshlrev_b32 v{vT+2}, 11, v{vT+2}"); e(f"v_bfe_u32 v{vT+3}, v{L}, 4, 1")
e(f"v_lshl_add_u32 v{vT+2}, v{vT+3}, 5, v{vT+2}"); e(f"v_lshrrev_b32 v{vT+3}, 5, v{L}"); e(f"v_lshl_add_u32 v{vT+2}, v{vT+3}, 4, v{vT+2}")
e(f"s_lshl_b32 s{sT}, s{cMT}, 18"); e(f"s_lshl_b32 s{sT+1}, s{sMW}, 16"); e(f"s_add_u32 s{sT}, s{sT}, s{sT+1}")
e(f"s_lshl_b32 s{sT+1}, s{cNT}, 8"); e(f"s_add_u32 s{sT}, s{sT}, s{sT+1}"); e(f"s_lshl_b32 s{sT+1}, s{sNW}, 7"); e(f"s_add_u32 s{sT}, s{sT}, s{sT+1}")
e(f"s_add_u32 s{sT+1}, s{sT}, 32768")
e("s_waitcnt vmcnt(0)")
for r in range(0, 32, 2): e(f"v_pk_add_f32 {vr(cvACC+r,2)}, {vr(cvACC+r,2)}, {vr(cvPT+r,2)}")
e("s_waitcnt lgkmcnt(0)")
for pr in range(2):
    for r in range(0, 16, 2): e(f"v_pk_add_f32 {vr(cvACC+16*pr+r,2)}, {vr(cvACC+16*pr+r,2)}, {vr(XC+16*pr+r,2)}")
    for mf in range(2):
        x = cvACC + 16*pr + 4*mf; y = x + 8; d = cvPT + 8*pr + 4*mf
        e(f"v_cvt_pk_bf16_f32 v{d}, v{x}, v{x+1}"); e(f"v_cvt_pk_bf16_f32 v{d+1}, v{x+2}, v{x+3}")
        e(f"v_cvt_pk_bf16_f32 v{d+2}, v{y}, v{y+1}"); e(f"v_cvt_pk_bf16_f32 v{d+3}, v{y+2}, v{y+3}")
        e("s_nop 1")
        e(f"v_permlane16_swap_b32 v{d}, v{d+2}"); e(f"v_permlane16_swap_b32 v{d+1}, v{d+3}")
        e(f"buffer_store_dwordx4 {vr(d,4)}, v{vT+2}, {sr(cOUT,4)}, s{sT+mf} offen offset:{pr*64}")
g.lab("LC_fin")
stamp('fin')
if OPT['stamp']:
    e(f"s_lshl_b32 s{sT}, s2, 3"); e(f"s_add_u32 s{sT}, s{sT}, s{sW}"); e(f"s_lshl_b32 s{sT}, s{sT}, 7"); e(f"s_add_u32 s{sT}, s{sT}, {WS_STAMP:#x}")
    e(f"v_lshlrev_b32 v{vT}, 2, v{L}"); e("s_mov_b32 exec_hi, 0")
    e(f"buffer_store_dword v0, v{vT}, {sr(sWS,4)}, s{sT} offen")
g.lab("L_end")
e("s_endpgm")
g.L += g.tail + g.tail2
if OPT['nobar'] or OPT['nodma'] or OPT['nolds']:
    o = []; inl = False
    for l in g.L:
        if l.startswith('LA_loop') or l.startswith('LC_loop'): inl = True
        if 'LA_h1_' in l or l.startswith('LC_done'): inl = False
        if inl and OPT['nobar'] and 's_barrier' in l: continue
        if inl and OPT['nodma'] and 'buffer_load' in l: continue
        if inl and OPT['nolds'] and 'ds_read' in l: continue
        o.append(l)
    g.L = o

hdr = [l.rstrip('\n') for l in open("cdna_kernels/%s.s.ref" % NAME)]
hdr = [l for l in hdr if l.startswith(';') and '@launch' not in l]
out = hdr + [f"; @launch grid=(256,1,1) block=(512,1,1) lds={LDS_BYTES}", '.amdgcn_target "amdgcn-amd-amdhsa--gfx950"', ".text"] + g.L
out += ['.section .rodata,"a"', ".p2align 6", f""".amdhsa_kernel {KN}
  .amdhsa_next_free_vgpr 256
  .amdhsa_next_free_sgpr 102
  .amdhsa_accum_offset 256
  .amdhsa_group_segment_fixed_size 0
  .amdhsa_kernarg_size 88
  .amdhsa_user_sgpr_count 2
  .amdhsa_user_sgpr_kernarg_segment_ptr 1
  .amdhsa_system_sgpr_workgroup_id_x 1
.end_amdhsa_kernel"""]
out.insert(0, "; stamps: " + ",".join(SN)) if OPT['stamp'] else None
open(sys.argv[1], "w").write("\n".join(out) + "\n")
import hazard
errs = hazard.check("\n".join(g.L))
print("\n".join(errs) if errs else "hazard check clean")
```

```python
import sys, struct
NAME = "gated_mix__sliding_block__swiglu_ffn__prompt"
KN = NAME + "_kernel"
OPT = dict(stamp=0, NP=16, jbx=5, xrd=[0,0,1,1], xpos=[2,4,6,8], wpos=[1,3,5,7,9], pfpos=19, stag=0, PD=3, pf=1, CB=1, defer=0, slp=2, touch=0, pfnt=0, wnt=0, bprio=0, amap=1, fast=1, pfast=1, wb=0, pre=0, cmap=1, m16=288*512, c3=0, kvs1=1, cprio=0, AB=0,
           noX=0, noW=0, noA=0, noW2=0, prio=0, kvs=2, nobar=0, nodma=0, nolds=0)
for a in sys.argv[2:]:
    k, v = a.split('='); assert k in OPT, k
    OPT[k] = eval(v)
def f32(x): return "0x%08x" % struct.unpack('<I', struct.pack('<f', x))[0]
def vr(a, n=1): return f"v[{a}:{a+n-1}]" if n > 1 else f"v{a}"
def sr(a, n=1): return f"s[{a}:{a+n-1}]" if n > 1 else f"s{a}"
class Gen:
    def __init__(s): s.L = []; s.q = []; s.v = []; s.tail = []; s.tail2 = []
    def e(s, t): s.L.append("    " + t)
    def lab(s, t): s.L.append(t + ":")
    def lds(s, t, tag): s.e(t); s.q.append(tag)
    def vm(s, t, tag): s.e(t); s.v.append(tag)
    def need(s, tags=(), vt=()):
        w = []
        idx = [i for i, t in enumerate(s.v) if t in vt]
        if idx:
            n = len(s.v) - 1 - max(idx); s.v = s.v[max(idx)+1:]; assert n < 64
            w.append(f"vmcnt({n})")
        idx = [i for i, t in enumerate(s.q) if t in tags]
        if idx:
            n = len(s.q) - 1 - max(idx); s.q = s.q[max(idx)+1:]
            w.append(f"lgkmcnt({min(n,15)})")
        if w: s.e("s_waitcnt " + " ".join(w))
    def steady(s, body):
        sv = s.L; s.L = []; s.q = []; s.v = []
        body(); body(); r = (list(s.q), list(s.v)); s.L = sv
        return r
g = Gen(); e = g.e
M16 = OPT['m16']; A_BYTES = 128*M16
WS_KV = 0x1400000; WS_PART = 0x1C00000; WS_G = 0x2400000; WS_FL = 0x2410000; WS_STAMP = 0x3000000; WS_SIZE = 0x4000000
FL_KV, FL_H, FL_O, FL_P, FL_X = 0, 4, 8, 12, 16
sFAST = 34+1
LOG2E = 1.4426950408889634
SPIN = 0x8000
MF16 = "v_mfma_f32_16x16x32_bf16"; MF32 = "v_mfma_f32_32x32x16_bf16"
sW, sRB, sH, sMW, sNW = 3, 4, 5, 6, 7
sX, sA, sB, sQ, sWS, sDBG, sPF = 8, 12, 16, 20, 24, 28, 32
sKX, sOW, sMWd, sINCA, sMX, sCNT, sKXE, sPFO, sPFI, sLAM, sOK, sGO = 36, 37, 42, 47, 48, 49, 50, 51, 52, 53, 54, 55
sT = 56; sP = 64; sST = 86
pX, pQKV, pWO, pWG, pWU, pWD, pGW, pOUT, pDBG, pWSp = sP, sP+2, sP+4, sP+8, sP+10, sP+12, sP+14, sP+16, sP+18, sP+20
sFAST = 101
sK = sP+6
vL, vL16, vPF, vDX, vDA, vDB, vXR, vWG, vWQ, vDUM, vCN, vGV, vT = 1, 2, 3, 4, 8, 9, 10, 12, 14, 18, 19, 20, 26
vWF, vXF, vACC = 44, 64, 96
L = vL
def ACC(j, i): return vACC + (4*j+i)*4
XSLOT = 32768; WBASE = 65536; HALF = 20480; WSLOT = 2*HALF; GOFF = 6144; UOFF = 6144+7168
LDS_BYTES = 163840; QLDS = 65536; CNTLDS = 163832; CNT2 = 81920
UNITS = [['q0','q1','k0','k1','g0','u0','g1','u1','g2','u2'], ['v0','v1','g3','u3','g4','u4','g5','u5','g6','u6']]
def srd(d, p, size):
    e(f"s_mov_b32 s{d}, s{p}"); e(f"s_and_b32 s{d+1}, s{p+1}, 0xffff"); e(f"s_mov_b32 s{d+2}, {size:#x}"); e(f"s_mov_b32 s{d+3}, 0x20000")
SN = ['start','loopA','endA','kvsig','hdone','kvok','kvld','bar2','sph','pv','attn','bar3','loopC','endC','fin']
def stamp(name):
    if name not in SN: SN.append(name)
    idx = SN.index(name); assert idx < 16
    if not OPT['stamp']: return
    e(f"s_memtime s[{sST}:{sST+1}]"); e(f"s_memrealtime s[{sST+2}:{sST+3}]"); e("s_waitcnt lgkmcnt(0)")
    e(f"v_writelane_b32 v0, s{sST}, {idx}"); e(f"v_writelane_b32 v0, s{sST+2}, {idx+16}")
def pstamp(k):
    if OPT['stamp']: e(f"s_memtime s[{92+2*k}:{93+2*k}]")
NDS = [0]
def dstore(lines, on=True):
    if not on:
        for l in lines: e(l + " sc1")
        return
    k = NDS[0]; NDS[0] += 1
    e(f"s_cmp_eq_u32 s{sFAST}, 1"); e(f"s_cbranch_scc0 LS_s{k}")
    for l in lines: e(l)
    g.lab(f"LS_r{k}")
    g.tail2 += [f"LS_s{k}:"] + ["    " + l + " sc1" for l in lines] + [f"    s_branch LS_r{k}"]
def one_lane(f):
    e("s_mov_b64 exec, 1"); f(); e("s_mov_b64 exec, -1")

def a_wread(nw, n):
    n %= 40; t = n // 10; j = n % 10
    sig = (t+1) >> 1; half = (t+1) & 1; slot = sig & 1; un = UNITS[nw][j]
    for tr in range(2):
        if un[0] in 'qkv':
            a = vWQ + 2*slot + int(un[1]); off = half*HALF + 'qkv'.index(un[0])*2048 + tr*512
        else:
            a = vWG + slot; off = half*HALF + (GOFF if un[0] == 'g' else UOFF) + tr*1792 + int(un[1])*32
        g.lds(f"ds_read_b64_tr_b16 {vr(vWF+4*(n%5)+2*tr,2)}, v{a} offset:{off}", ('W', n % 5))
def a_xread(i, t):
    t %= 4
    g.lds(f"ds_read_b128 {vr(vXF+16*(t&1)+4*i,4)}, v{vXR+(t&1)} offset:{(t>>1)*XSLOT+i*2048}", ('X', t & 1, i))
def a_m0(k, n, slot):
    if k == 'x': e(f"s_add_u32 m0, s{sMX}, {slot*XSLOT}")
    elif k == 'w': e(f"s_add_u32 m0, s{sMWd+n}, {slot*WSLOT}")
def a_op(k, n, slot, first=False):
    if k == 'x':
        g.vm(f"buffer_load_dwordx4 v{vDX+n}, {sr(sX,4)}, s{sKX} offen offset:{1024*n} lds", ('x', slot, n))
        if n == 3:
            e(f"s_add_u32 s{sKX}, s{sKX}, 128"); e(f"s_cmp_ge_u32 s{sKX}, s{sKXE}"); e(f"s_cselect_b32 s{sX+2}, 0, s{sX+2}")
    elif k == 'w':
        d = [sA, sA, sB, sB, sQ][n]; v = vDA if n < 4 else vDB
        if first: e(f"s_cmp_lt_i32 s{sOW+n}, 0"); e(f"s_cbranch_scc1 LA_skipw{n}")
        g.vm(f"buffer_load_dwordx4 v{v}, {sr(d,4)}, s{sOW+n} offen" + (" nt" if OPT['wnt'] & 1 else "") + " lds", ('w', slot, n))
        if first: g.lab(f"LA_skipw{n}")
        e(f"s_add_u32 s{sOW+n}, s{sOW+n}, " + (f"s{sINCA}" if n < 4 else f"{64*6144}"))
    else:
        g.vm(f"buffer_load_dword v{vDUM}, v{vPF}, {sr(sPF,4)}, s{sPFO} offen" + (" nt" if OPT['wnt'] & 2 and NWCUR[0] == 0 else ""), ('p', 0, 0))
        e(f"s_add_u32 s{sPFO}, s{sPFO}, s{sPFI}")
def a_full(k, n, slot, first=False):
    a_m0(k, n, slot)
    if not first: e("s_nop 0")
    a_op(k, n, slot, first)
JBW = 6
def a_events(nw):
    ev = {}; st = OPT['stag']*nw
    for t in (1, 3):
        for n, o in enumerate(OPT['xpos']): assert 0 <= o+st < 20; ev.setdefault((t*10+OPT['jbx']+o+st) % 40, []).append(('x', n, t >> 1))
    for t in (0, 2):
        for n, o in enumerate(OPT['wpos']): assert 0 <= o+st < 20; ev.setdefault((t*10+JBW+o+st) % 40, []).append(('w', n, t >> 1))
        if OPT['pf']: ev.setdefault((t*10+JBW+OPT['pfpos']-st) % 40, []).append(('p', 0, 0))
    return ev
NWCUR = [0]
def a_body(nw):
    NWCUR[0] = nw
    ev = a_events(nw)
    for t in range(4):
        for j in range(10):
            n = t*10 + j; un = UNITS[nw][j]; evs = ev.get(n, [])
            for i in range(4):
                g.need([('W', n % 5), ('X', t & 1, i)])
                a, b = vr(vWF+4*(n % 5), 4), vr(vXF+16*(t & 1)+4*i, 4)
                if un[0] == 'v': a, b = b, a
                e(f"{MF16} {vr(ACC(j,i),4)}, {a}, {b}, {vr(ACC(j,i),4)}")
                if i == 0:
                    if t % 2 == 0 and j == JBW:
                        g.need([('W', k) for k in range(5)], [('w', 1-(t >> 1), k) for k in range(5)]); e("s_barrier")
                    if t % 2 == 1 and j == OPT['jbx']:
                        g.need([], [('x', 1-(t >> 1), k) for k in range(4)]); e("s_barrier")
                    a_wread(nw, n+4)
                if i == 1:
                    for ii in range(4):
                        if OPT['jbx'] + OPT['xrd'][ii] == j: a_xread(ii, t+1)
                    if evs: a_m0(*evs[0])
                if i == 2 and evs:
                    a_op(*evs[0])
                    for x in evs[1:]: a_full(*x)

def silu(jg, i, t):
    G = ACC(jg, i); U = ACC(jg+1, i)
    for r in range(0, 8, 2): e(f"v_pk_mul_f32 {vr(t+r,2)}, {vr(G+r,2)}, {sr(sK,2)}")
    for r in range(8): e(f"v_exp_f32 v{t+r}, v{t+r}")
    for r in range(0, 8, 2): e(f"v_pk_mul_f32 {vr(G+r,2)}, {vr(G+r,2)}, {vr(U+r,2)}")
    for r in range(0, 8, 2):
        c = vGV + i + (r >> 2); c2 = c & ~1; s = c & 1
        e(f"v_pk_fma_f32 {vr(t+r,2)}, {vr(t+r,2)}, {vr(c2,2)}, {vr(c2,2)} op_sel:[0,{s},{s}] op_sel_hi:[1,{s},{s}]")
    for r in range(8): e(f"v_rcp_f32 v{t+r}, v{t+r}")
    e("s_nop 0")
    for r in range(0, 8, 2): e(f"v_pk_mul_f32 {vr(G+r,2)}, {vr(G+r,2)}, {vr(t+r,2)}")
    for r in range(4): e(f"v_cvt_pk_bf16_f32 v{G+r}, v{G+2*r}, v{G+2*r+1}")
    e("s_nop 1")
    e(f"v_permlane32_swap_b32 v{G}, v{G+2}"); e(f"v_permlane32_swap_b32 v{G+1}, v{G+3}")
def pack2(j, i):
    a, b = ACC(j, i), ACC(j+1, i)
    e(f"v_cvt_pk_bf16_f32 v{a}, v{a}, v{a+1}"); e(f"v_cvt_pk_bf16_f32 v{a+1}, v{a+2}, v{a+3}")
    e(f"v_cvt_pk_bf16_f32 v{a+2}, v{b}, v{b+1}"); e(f"v_cvt_pk_bf16_f32 v{a+3}, v{b+2}, v{b+3}")
def spin(name, load, test, cnt):
    e(f"s_mov_b32 s{cnt}, {SPIN:#x}")
    g.lab(name)
    load(); e("s_waitcnt vmcnt(0)"); test()
    e(f"s_cbranch_scc1 {name}_ok")
    e(f"s_sub_u32 s{cnt}, s{cnt}, 1"); e(f"s_cbranch_scc1 {name}_ok")
    e(f"s_sleep {OPT['slp']}"); e(f"s_branch {name}")
    g.lab(name + "_ok")
def g_loads():
    e(f"s_lshl_b32 s{sT}, s{sRB}, 10"); e(f"s_add_u32 s{sT}, s{sT}, {WS_G:#x}")
    e(f"s_lshl_b32 s{sT+1}, s{sMW}, 8"); e(f"s_add_u32 s{sT+1}, s{sT+1}, s{sT}")
    e(f"s_lshl_b32 s{sT+2}, s{sW}, 7"); e(f"s_add_u32 s{sT+2}, s{sT+2}, s{sT}")
    e(f"v_and_b32 v{vT}, 15, v{vL}"); e(f"v_lshlrev_b32 v{vT}, 2, v{vT}")
    e(f"v_and_b32 v{vT+1}, 31, v{vL}"); e(f"v_lshlrev_b32 v{vT+1}, 2, v{vT+1}")
    for i in range(4): e(f"buffer_load_dword v{vGV+i}, v{vT}, {sr(sWS,4)}, s{sT+1} offen offset:{64*i} sc1")
    e(f"buffer_load_dword v{vGV+4}, v{vT+1}, {sr(sWS,4)}, s{sT+2} offen sc1")
    e(f"v_lshlrev_b32 v{vT+1}, 5, v{vT+1}"); e(f"s_lshl_b32 s{sT}, s{sRB}, 12"); e(f"s_add_u32 s{sT}, s{sT}, {WS_FL:#x}")
    e(f"buffer_load_dword v25, v{vT+1}, {sr(sWS,4)}, s{sT} offen offset:{FL_X} sc1")
def gate_compute():
    t = 20
    e(f"v_mov_b32 v{t+5}, 0"); e(f"v_mov_b32 v19, 0x3f803f80")
    for d in range(8):
        e(f"v_lshlrev_b32 v{t}, 16, v{26+d}"); e(f"v_and_b32 v{t+1}, 0xffff0000, v{26+d}")
        e(f"v_lshlrev_b32 v{t+2}, 16, v{34+d}"); e(f"v_and_b32 v{t+3}, 0xffff0000, v{34+d}")
        e(f"v_pk_mul_f32 {vr(t,2)}, {vr(t,2)}, {vr(t+2,2)}")
        e(f"v_cvt_pk_bf16_f32 v{26+d}, v{t}, v{t+1}")
    for d in range(8): e(f"v_dot2_f32_bf16 v{t+5}, v{26+d}, v19, v{t+5}")
    e("s_nop 1")
    for m in ("quad_perm:[1,0,3,2] row_mask:0xf", "quad_perm:[2,3,0,1] row_mask:0xf", "row_half_mirror row_mask:0xf",
              "row_mirror row_mask:0xf", "row_bcast:15 row_mask:0xa", "row_bcast:31 row_mask:0xc"):
        e("s_nop 1"); e(f"v_add_f32_dpp v{t+5}, v{t+5}, v{t+5} {m} bank_mask:0xf")
    e(f"v_cvt_pk_bf16_f32 v{t}, v{t+5}, v{t+5}"); e(f"v_and_b32 v{t}, 0xffff0000, v{t}")
    e(f"v_mul_f32 v{t}, {f32(-LOG2E)}, v{t}"); e(f"v_exp_f32 v{t}, v{t}"); e("s_nop 0")
    e(f"v_add_f32 v{t}, 1.0, v{t}"); e(f"v_rcp_f32 v{t}, v{t}"); e("s_nop 0")
    e(f"v_cvt_pk_bf16_f32 v{t}, v{t}, v{t}"); e(f"v_and_b32 v{t}, 0xffff0000, v{t}")
    e("s_mov_b32 exec_lo, 0"); e("s_brev_b32 exec_hi, 1")
    e(f"buffer_store_dword v{t}, off, {sr(sWS,4)}, s{sGO} sc1")
    e("s_mov_b64 exec, -1")

D = 4; NP = OPT['NP']; WL = 3; CB = OPT['CB']
cA, cWt, cOUT = 8, 12, 16
cAK, cWK, cEND, cSTG, cRS, cROLE, cMT, cNT, cM0 = 20, 21, 23, 36, 38, 39, 40, 41, 42
cvDW, cvA2, cvPL, cvC3 = 4, 3, 16, 12
cC3 = 22; cS3 = 32
cvWF, cvAR, cvPT, cvRA, cvACC = 28, 60, 124, 156, 192
SLOTS = [98304, 131072, 0, 32768]; DUMMY = 65536
def c_setup():
    e(f"s_lshr_b32 s{cROLE}, s2, 7")
    if OPT['cmap'] == 1:
        e(f"s_and_b32 s{cMT}, s2, 7"); e(f"s_lshl_b32 s{cMT}, s{cMT}, 1"); e(f"s_bfe_u32 s{sT}, s2, {(1<<16)|3:#x}"); e(f"s_add_u32 s{cMT}, s{cMT}, s{sT}")
        e(f"s_bfe_u32 s{cNT}, s2, {(3<<16)|4:#x}")
    else:
        e(f"s_bfe_u32 s{cMT}, s2, {(2<<16)|1:#x}"); e(f"s_lshl_b32 s{cMT}, s{cMT}, 2")
        e(f"s_bfe_u32 s{sT}, s2, {(2<<16)|3:#x}"); e(f"s_add_u32 s{cMT}, s{cMT}, s{sT}")
        e(f"s_and_b32 s{cNT}, s2, 1"); e(f"s_lshl_b32 s{cNT}, s{cNT}, 2")
        e(f"s_bfe_u32 s{sT}, s2, {(2<<16)|5:#x}"); e(f"s_add_u32 s{cNT}, s{cNT}, s{sT}")
    if OPT['c3']:
        assert OPT['cmap'] == 0
        e(f"s_bfe_u32 s{sT}, s2, {(4<<16)|3:#x}"); e(f"s_mul_i32 s{sT}, s{sT}, {OPT['c3']*8*2048}")
        e(f"s_and_b32 s{cC3}, s2, 1"); e(f"s_lshl_b32 s{cC3}, s{cC3}, 10"); e(f"s_add_u32 s{cC3}, s{cC3}, s{sT}"); e(f"s_add_u32 s{cC3}, s{cC3}, 384")
        e(f"v_lshlrev_b32 v{cvC3}, 11, v{vL}"); e(f"v_cmp_gt_u32 vcc, {OPT['c3']*8}, v{vL}"); e(f"v_bfrev_b32 v{vT}, 1"); e("s_nop 0")
        e(f"v_cndmask_b32 v{cvC3}, v{vT}, v{cvC3}, vcc")
    e(f"s_cmp_eq_u32 s{cROLE}, 0")
    e(f"s_cselect_b32 s{cSTG}, 0, {NP}"); e(f"s_cselect_b32 s{cEND}, {NP}, 36")
    e(f"s_lshl_b32 s{cRS}, s{sW}, 15"); e(f"s_lshl_b32 s{sT}, s{cNT}, 8"); e(f"s_add_u32 s{cRS}, s{cRS}, s{sT}")
    e(f"s_lshl_b32 s{cWK}, s{cSTG}, 18"); e(f"s_add_u32 s{cWK}, s{cWK}, s{cRS}")
    e(f"s_lshl_b32 s{sT}, s{sW}, 12")
    for k in range(4): e(f"s_add_u32 s{cM0+k}, s{sT}, {SLOTS[k]}")
    srd(cWt, pWD, 0 if OPT['noW2'] else 3584*2048)
    srd(cA, pWSp, 0 if OPT['noA'] else A_BYTES); srd(cOUT, pOUT, 2048*2048)
    e(f"s_lshl_b32 s{sT}, s{cMT}, 3"); e(f"s_lshl_b32 s{cAK}, s{sMW}, 1"); e(f"s_add_u32 s{sT}, s{sT}, s{cAK}")
    e(f"s_mul_i32 s{cAK}, s{sT}, {M16}"); e(f"s_lshl_b32 s{sT}, s{cSTG}, 12"); e(f"s_add_u32 s{cAK}, s{cAK}, s{sT}")
    e(f"s_lshl_b32 s{sT}, s{sNW}, 11"); e(f"s_add_u32 s{cAK}, s{cAK}, s{sT}")
    e(f"v_add_u32 v{cvA2}, {M16}, v{vL16}")
    e(f"v_lshrrev_b32 v{vT}, 4, v{vL}"); e(f"v_bfe_u32 v{vT+1}, v{vL}, 1, 3"); e(f"v_xor_b32 v{vT+1}, v{vT+1}, v{vT}")
    e(f"v_lshlrev_b32 v{vT}, 11, v{vT}"); e(f"v_lshl_add_u32 v{vT}, v{vT+1}, 5, v{vT}")
    e(f"v_and_b32 v{vT+1}, 1, v{vL}"); e(f"v_lshl_add_u32 v{cvDW}, v{vT+1}, 4, v{vT}")
    e(f"v_xor_b32 v{cvDW+1}, 128, v{cvDW}")
    e(f"v_add_u32 v{cvDW+2}, {2*7168}, v{cvDW}"); e(f"v_add_u32 v{cvDW+3}, {3*7168}, v{cvDW+1}"); e(f"v_add_u32 v{cvDW+1}, 7168, v{cvDW+1}")
    e(f"v_and_b32 v{cvPL+1}, 31, v{L}"); e(f"v_lshlrev_b32 v{cvPL+1}, 7, v{cvPL+1}")
def c_dma(n, tag=None):
    g.vm(f"buffer_load_dwordx4 v{cvDW+n}, {sr(cWt,4)}, s{cWK} offen offset:{n*1024} lds", tag)
    if n == 3: e(f"s_add_u32 s{cWK}, s{cWK}, {128*2048}")
def c_aload(p, k):
    ku, mf = k >> 1, k & 1
    g.vm(f"buffer_load_dwordx4 {vr(cvAR+16*p+8*ku+4*mf,4)}, v{vL16 if mf == 0 else cvA2}, {sr(cA,4)}, s{cAK} offen offset:{ku*1024} sc1", ('a', p, k))
    if k == 3: e(f"s_add_u32 s{cAK}, s{cAK}, 4096")
def c_wread(p, n):
    p = (p + n // 16) % 4; n %= 16; ku = n >> 3; u = n & 7
    for tr in range(2):
        g.lds(f"ds_read_b64_tr_b16 {vr(cvWF+4*u+2*tr,2)}, v{cvRA+8*(p>>1)+u} offset:{(p&1)*32768+ku*8192+tr*2048}", ('W', u))
CST = [0]
def c_stage(p):
    s = CST[0]; CST[0] += 1
    ops = []
    for k in range(4): ops += [('a', k), ('d', k)]
    def vop():
        k, i = ops.pop(0)
        if k == 'a': c_aload((p + D-1) % D, i)
        else: c_dma(i, ('d', s+WL))
    e(f"s_mov_b32 m0, s{cM0+(p+WL)%4}")
    if CB == 1:
        for n in range(16):
            ku = n >> 3; u = n & 7
            for mf in range(2):
                g.need([('W', u)], [('a', p, 2*ku+mf)])
                a = cvACC + 8*u + 4*mf
                e(f"{MF16} {vr(a,4)}, {vr(cvWF+4*u,4)}, {vr(cvAR+16*p+8*ku+4*mf,4)}, {vr(a,4)}")
                if mf == 0:
                    if n == 9: g.need([('W', k) for k in range(8)], [('d', s+1)]); e("s_barrier")
                    c_wread(p, n+7)
                elif n % 2 == 0: vop()
    else:
        for n0 in range(0, 16, CB):
            ku = n0 >> 3
            g.need([('W', n & 7) for n in range(n0, n0+CB)], [('a', p, 2*ku), ('a', p, 2*ku+1)])
            if OPT['cprio']: e("s_setprio 1")
            for n in range(n0, n0+CB):
                u = n & 7
                for mf in range(2):
                    a = cvACC + 8*u + 4*mf
                    e(f"{MF16} {vr(a,4)}, {vr(cvWF+4*u,4)}, {vr(cvAR+16*p+8*ku+4*mf,4)}, {vr(a,4)}")
            if OPT['cprio']: e("s_setprio 0")
            if n0 == 8: g.need([('W', k) for k in range(8)], [('d', s+1)]); e("s_barrier")
            for n in range(n0, n0+CB):
                c_wread(p, n+8)
                if n % 2 == 1: vop()
    assert not ops

g.L += [".globl " + KN, ".p2align 8", f".type {KN},@function"]
g.lab(KN)
e("s_cmp_ge_u32 s2, 256"); e("s_cbranch_scc1 L_end")
e(f"s_load_dwordx16 {sr(sP,16)}, s[0:1], 0"); e(f"s_load_dwordx4 {sr(sP+16,4)}, s[0:1], 64"); e(f"s_load_dwordx2 {sr(sP+20,2)}, s[0:1], 80")
if OPT['stamp']: e(f"s_memtime s[{sST+4}:{sST+5}]"); e(f"s_memrealtime s[{sST+6}:{sST+7}]")
e(f"v_lshrrev_b32 v{vT}, 6, v0"); e(f"v_and_b32 v{vL}, 63, v0"); e(f"v_readfirstlane_b32 s{sW}, v{vT}")
if OPT['amap'] == 0:
    e(f"s_lshr_b32 s{sRB}, s2, 5"); e(f"s_and_b32 s{sH}, s2, 7"); e(f"s_lshl_b32 s{sH}, s{sH}, 2")
    e(f"s_bfe_u32 s{sT}, s2, {(2<<16)|3:#x}"); e(f"s_add_u32 s{sH}, s{sH}, s{sT}")
elif OPT['amap'] == 1:
    e(f"s_and_b32 s{sRB}, s2, 7"); e(f"s_lshr_b32 s{sH}, s2, 3")
elif OPT['amap'] == 2:
    e(f"s_and_b32 s{sRB}, s2, 6"); e(f"s_lshr_b32 s{sT}, s2, 7"); e(f"s_add_u32 s{sRB}, s{sRB}, s{sT}")
    e(f"s_and_b32 s{sH}, s2, 1"); e(f"s_lshl_b32 s{sH}, s{sH}, 4"); e(f"s_bfe_u32 s{sT}, s2, {(4<<16)|3:#x}"); e(f"s_add_u32 s{sH}, s{sH}, s{sT}")
e(f"s_and_b32 s{sMW}, s{sW}, 3"); e(f"s_lshr_b32 s{sNW}, s{sW}, 2")
e(f"s_lshl_b32 s{sLAM}, s{sRB}, 5"); e(f"s_add_u32 s{sLAM}, s{sLAM}, s{sH}")
e(f"v_lshlrev_b32 v{vL16}, 4, v{L}")
e(f"v_lshrrev_b32 v{vT}, 3, v{L}"); e(f"v_lshlrev_b32 v{vT}, 11, v{vT}")
e(f"v_lshrrev_b32 v{vT+1}, 4, v{L}"); e(f"v_and_b32 v{vT+2}, 7, v{L}"); e(f"v_xor_b32 v{vT+1}, v{vT+1}, v{vT+2}")
e(f"v_lshl_add_u32 v{vDX}, v{vT+1}, 4, v{vT}"); e(f"v_xor_b32 v{vDX+1}, 64, v{vDX}")
e(f"v_add_u32 v{vDX+2}, {2*15360}, v{vDX}"); e(f"v_add_u32 v{vDX+3}, {3*15360}, v{vDX+1}"); e(f"v_add_u32 v{vDX+1}, 15360, v{vDX+1}")
def swap23(d, s, t):
    e(f"v_and_b32 v{d}, 0x13, v{s}")
    e(f"v_and_b32 v{t}, 4, v{s}"); e(f"v_lshl_or_b32 v{d}, v{t}, 1, v{d}")
    e(f"v_and_b32 v{t}, 8, v{s}"); e(f"v_lshrrev_b32 v{t}, 1, v{t}"); e(f"v_or_b32 v{d}, v{d}, v{t}")
e(f"v_lshrrev_b32 v{vT}, 2, v{L}"); swap23(vT+1, vT, vT+2)
e(f"v_mul_u32_u24 v{vT+1}, 6144, v{vT+1}")
e(f"v_lshrrev_b32 v{vT}, 3, v{L}"); e(f"v_and_b32 v{vT}, 2, v{vT}"); e(f"v_and_b32 v{vT+2}, 3, v{L}"); e(f"v_xor_b32 v{vT}, v{vT}, v{vT+2}")
e(f"v_lshl_add_u32 v{vDB}, v{vT}, 4, v{vT+1}")
e(f"v_mul_u32_u24 v{vT}, 4682, v0"); e(f"v_lshrrev_b32 v{vT}, 16, v{vT}")
e(f"v_mul_u32_u24 v{vT+3}, 14, v{vT}"); e(f"v_sub_u32 v{vT+3}, v0, v{vT+3}")
swap23(vT+1, vT, vT+2)
e(f"v_mul_u32_u24 v{vT+1}, 7168, v{vT+1}"); e(f"v_lshl_add_u32 v{vDA}, v{vT+3}, 4, v{vT+1}")
e(f"s_lshl_b32 s{sKX}, s{sRB}, 19"); e(f"s_lshl_b32 s{sT}, s{sW}, 16"); e(f"s_add_u32 s{sKX}, s{sKX}, s{sT}")
e(f"s_add_u32 s{sKXE}, s{sKX}, 2048"); e(f"s_lshl_b32 s{sMX}, s{sW}, 12")
e(f"s_mul_i32 s{sOW+1}, s{sH}, 224"); e(f"s_sub_u32 s{sOW}, s{sOW+1}, {32*7168}")
e(f"s_mov_b32 s{sOW+2}, s{sOW}"); e(f"s_mov_b32 s{sOW+3}, s{sOW+1}")
e(f"s_lshl_b32 s{sT}, s{sW}, 10")
for n, o in enumerate((GOFF, GOFF+HALF, UOFF, UOFF+HALF)): e(f"s_add_u32 s{sMWd+n}, s{sT}, {WBASE+o}")
e(f"s_mov_b32 s{sINCA}, {64*7168}")
def qpiece(p):
    half, unit, rg = p // 6, (p % 6) // 2, p % 2
    return (WBASE + half*HALF + unit*2048 + rg*1024, ((-32 + half*32 + rg*16)*6144 + unit*2048) & 0xffffffff)
e(f"s_lshl_b32 s{sT+1}, s{sH}, 6")
e(f"s_add_u32 s{sMWd+4}, s{sT}, {WBASE}")
e(f"s_and_b32 s{sT+2}, s{sW}, 1"); e(f"s_mul_i32 s{sT+2}, s{sT+2}, {16*6144}")
e(f"s_lshr_b32 s{sT+3}, s{sW}, 1"); e(f"s_lshl_b32 s{sT+3}, s{sT+3}, 11"); e(f"s_add_u32 s{sT+2}, s{sT+2}, s{sT+3}")
e(f"s_sub_u32 s{sOW+4}, s{sT+2}, {32*6144}")
for w, p in ((6, 6), (7, 11)):
    l, o = qpiece(p)
    e(f"s_cmp_eq_u32 s{sW}, {w}"); e(f"s_cselect_b32 s{sMWd+4}, {l:#x}, s{sMWd+4}"); e(f"s_cselect_b32 s{sOW+4}, {o:#x}, s{sOW+4}")
e(f"s_add_u32 s{sOW+4}, s{sOW+4}, s{sT+1}")
e("s_waitcnt lgkmcnt(0)")
if OPT['stamp']: e(f"v_writelane_b32 v0, s{sST+4}, 0"); e(f"v_writelane_b32 v0, s{sST+6}, 16")
srd(sX, pX, 0 if OPT['noX'] else 2048*2048)
for n in range(4): a_full('x', n, 0)
srd(sQ, pQKV, 0 if OPT['noW'] else 1024*6144); srd(sA, pWG, 0 if OPT['noW'] else 1024*7168); srd(sB, pWU, 0 if OPT['noW'] else 1024*7168)
e(f"s_cmp_eq_u32 s{sW}, 7"); e("s_cbranch_scc0 LA_not7")
for d in (sA, sB):
    for k in range(3): e(f"s_mov_b32 s{d+k}, s{sQ+k}")
for n in range(4):
    l, o = qpiece(7+n)
    e(f"s_mov_b32 s{sMWd+n}, {l:#x}"); e(f"s_add_u32 s{sOW+n}, s{sT+1}, {o:#x}")
e(f"s_mov_b32 s{sINCA}, {64*6144}"); e(f"v_mov_b32 v{vDA}, v{vDB}")
g.lab("LA_not7")
for n in range(5): a_full('w', n, 0, True)
srd(sWS, pWSp, WS_SIZE); srd(sDBG, pDBG, 256); srd(sPF, pGW, 2048)
e(f"v_and_b32 v{vT}, 15, v{L}"); e(f"s_lshl_b32 s{sT}, s{sMW}, 6"); e(f"v_add_u32 v{vT}, s{sT}, v{vT}"); e(f"v_lshlrev_b32 v{vT}, 7, v{vT}")
e(f"v_lshrrev_b32 v{vT+1}, 4, v{L}"); e(f"v_bfe_u32 v{vT+2}, v{L}, 1, 3"); e(f"v_xor_b32 v{vT+2}, v{vT+1}, v{vT+2}")
e(f"v_lshl_add_u32 v{vXR}, v{vT+2}, 4, v{vT}"); e(f"v_xor_b32 v{vXR+1}, 64, v{vXR}")
e(f"v_bfe_u32 v{vT}, v{L}, 2, 3")
e(f"v_lshrrev_b32 v{vT+1}, 5, v{L}"); e(f"v_lshl_add_u32 v{vT}, v{vT+1}, 4, v{vT}")
e(f"v_and_b32 v{vT+1}, 3, v{L}"); e(f"v_lshlrev_b32 v{vT+1}, 3, v{vT+1}"); e(f"v_add_u32 v{vT+1}, {WBASE}, v{vT+1}")
e(f"v_mul_u32_u24 v{vWG}, 224, v{vT}"); e(f"v_add_u32 v{vWG}, v{vWG}, v{vT+1}"); e(f"v_add_u32 v{vWG+1}, {WSLOT}, v{vWG}")
e(f"v_lshl_add_u32 v{vWQ}, v{vT}, 6, v{vT+1}"); e(f"v_bfe_u32 v{vT+2}, v{L}, 4, 1"); e(f"v_lshl_add_u32 v{vWQ}, v{vT+2}, 5, v{vWQ}")
e(f"v_xor_b32 v{vWQ+1}, 32, v{vWQ}"); e(f"v_add_u32 v{vWQ+2}, {WSLOT}, v{vWQ}"); e(f"v_add_u32 v{vWQ+3}, {WSLOT}, v{vWQ+1}")
for r in range(vACC, 256): e(f"v_mov_b32 v{r}, 0")
e(f"s_mov_b32 s{sK}, {f32(-LOG2E)}"); e(f"s_mov_b32 s{sK+1}, {f32(-LOG2E)}")
e(f"s_lshl_b32 s{sGO}, s{sLAM}, 3"); e(f"s_add_u32 s{sGO}, s{sGO}, s{sW}"); e(f"s_lshl_b32 s{sT+5}, s{sGO}, 11")
e(f"s_lshl_b32 s{sGO}, s{sGO}, 2"); e(f"s_add_u32 s{sGO}, s{sGO}, {WS_G:#x}")
e(f"v_lshlrev_b32 v42, 5, v{L}")
e(f"s_getreg_b32 s{sFAST}, hwreg(HW_REG_XCC_ID, 0, 4)")
PD = OPT['PD'] - OPT['pre']; sPB = sT+6
e(f"s_and_b32 s{sT}, s{sH}, 3"); e(f"s_lshl_b32 s{sT+1}, s{sRB}, 2"); e(f"s_add_u32 s{sT+1}, s{sT+1}, s{sT}")
e(f"s_lshr_b32 s{sT+2}, s{sH}, 2")
e(f"v_lshlrev_b32 v{vPF}, 7, v{L}"); e(f"s_mov_b32 s{sT+3}, 0"); e(f"s_mov_b32 s{sCNT}, 0"); e(f"s_mov_b32 s{sPFO}, 0"); e(f"s_mov_b32 s{sPFI}, 0")
e(f"s_mov_b32 s{sPB}, s{pX}"); e(f"s_mov_b32 s{sPB+1}, s{pX+1}")
def pfcase(w, body):
    e(f"s_cmp_lg_u32 s{sW}, {w}"); e(f"s_cbranch_scc1 LA_pf{w}"); body(); g.lab(f"LA_pf{w}")
def base(p, size): e(f"s_mov_b32 s{sPB}, s{p}"); e(f"s_mov_b32 s{sPB+1}, s{p+1}"); e(f"s_mov_b32 s{sCNT}, {size:#x}")
def pf_x():
    base(pX, 2048*2048); e(f"v_lshlrev_b32 v{vPF}, 11, v{L}"); e(f"s_lshl_b32 s{sPFO}, s{sLAM}, 14" if OPT['amap'] == 1 else f"s_lshl_b32 s{sPFO}, s{sT+1}, 17"); e(f"s_add_u32 s{sPFO}, s{sPFO}, {PD*128}")
    e(f"s_mov_b32 s{sPFI}, 128"); e(f"s_mov_b32 s{sT+3}, {8 if OPT['amap'] == 1 else 64}")
def pf_gu(p):
    def f():
        base(p, 1024*7168); e(f"v_cmp_le_u32 vcc, 7, v{L}"); e(f"v_add_u32 v{vT}, {7168-896}, v{vPF}"); e("s_nop 0")
        e(f"v_cndmask_b32 v{vPF}, v{vPF}, v{vT}, vcc")
        e(f"s_mul_i32 s{sPFO}, s{sT+1}, {2*7168}"); e(f"s_mul_i32 s{sT+4}, s{sT+2}, 896"); e(f"s_add_u32 s{sPFO}, s{sPFO}, s{sT+4}")
        e(f"s_add_u32 s{sPFO}, s{sPFO}, {(64*PD-32)*7168}"); e(f"s_mov_b32 s{sPFI}, {64*7168}"); e(f"s_mov_b32 s{sT+3}, 14")
    return f
def pf_q():
    base(pQKV, 1024*6144); e(f"v_lshrrev_b32 v{vT}, 1, v{L}"); e(f"v_lshlrev_b32 v{vT}, 11, v{vT}"); e(f"v_and_b32 v{vPF}, 1, v{L}")
    e(f"v_lshl_add_u32 v{vPF}, v{vPF}, 7, v{vT}")
    e(f"s_mul_i32 s{sPFO}, s{sT+1}, {2*6144}"); e(f"s_lshl_b32 s{sT+4}, s{sT+2}, 8"); e(f"s_add_u32 s{sPFO}, s{sPFO}, s{sT+4}")
    e(f"s_add_u32 s{sPFO}, s{sPFO}, {(64*PD-32)*6144}"); e(f"s_mov_b32 s{sPFI}, {64*6144}"); e(f"s_mov_b32 s{sT+3}, 12")
def pf_lin(p, size, nl):
    def f():
        base(p, size); e(f"s_mul_i32 s{sPFO}, s{sLAM}, {nl*128}"); e(f"s_mov_b32 s{sPFI}, {nl*128*256}"); e(f"s_mov_b32 s{sT+3}, {nl}")
    return f
if OPT['pf']:
    if PD > 0: pfcase(6, pf_x); pfcase(1, pf_gu(pWG)); pfcase(2, pf_gu(pWU)); pfcase(3, pf_q)
    pfcase(4, pf_lin(pWD, 3584*2048, 20)); pfcase(5, pf_lin(pWO, 1024*2048, 8))
    if OPT['touch'] & 1: pfcase(6, pf_lin(pWSp, A_BYTES, 64))
    def pf_kv():
        pf_lin(pWSp, WS_KV + (0x1000000 if OPT['touch'] & 4 else 0x800000), 64)(); e(f"s_add_u32 s{sPFO}, s{sPFO}, {WS_KV:#x}")
    if OPT['touch'] & 2: pfcase(7, pf_kv)
e(f"v_cmp_gt_u32 vcc, s{sT+3}, v{L}"); e(f"v_bfrev_b32 v{vT}, 1"); e("s_nop 0"); e(f"v_cndmask_b32 v{vPF}, v{vT}, v{vPF}, vcc")
for n in range(5): a_full('w', n, 1)
e("s_waitcnt vmcnt(5)"); e("s_barrier")
e(f"s_cmp_eq_u32 s{sNW}, 1"); e("s_cbranch_scc1 LA_pre1")
for nw in range(2):
    if nw == 1: g.lab("LA_pre1")
    sq, sv_ = g.steady(lambda: a_body(nw))
    g.q = []
    for i in range(4): a_xread(i, 0)
    for n in range(4): a_wread(nw, n)
    assert [t for t in sv_ if t[0] == 'w'] == [('w', 1, k) for k in range(5)], sv_
    for t in sv_:
        if t[0] == 'x': assert t[1] == 1; a_full('x', t[2], 1)
    assert not any(t[0] == 'p' for t in sv_[sv_.index(('w', 1, 0)):]), sv_
    e(f"buffer_load_dwordx4 {vr(26,4)}, v42, {sr(sX,4)}, s{sT+5} offen"); e(f"buffer_load_dwordx4 {vr(30,4)}, v42, {sr(sX,4)}, s{sT+5} offen offset:16")
    e(f"buffer_load_dwordx4 {vr(34,4)}, v42, {sr(sPF,4)}, 0 offen"); e(f"buffer_load_dwordx4 {vr(38,4)}, v42, {sr(sPF,4)}, 0 offen offset:16")
    if nw == 0:
        e(f"s_cmp_lg_u32 s{sW}, 0"); e("s_cbranch_scc1 LA_noclr")
        e(f"s_add_u32 s{sT}, s2, 256"); e(f"s_add_u32 s{sT+1}, s{sLAM}, 512")
        e(f"v_mov_b32 v20, s{sLAM}"); e(f"v_writelane_b32 v20, s{sT}, 3"); e(f"v_writelane_b32 v20, s{sT+1}, 0"); e(f"v_lshlrev_b32 v20, 7, v20")
        e(f"v_lshl_add_u32 v20, v{L}, 2, v20"); e(f"v_mov_b32 v21, 0"); e(f"s_mov_b32 s{sT}, {WS_FL:#x}")
        e(f"v_mov_b32 v22, {CNTLDS}"); e("v_mov_b32 v23, 0"); e("ds_write_b32 v22, v23")
        e(f"v_writelane_b32 v21, s{sFAST}, 4")
        e("s_mov_b64 exec, 31"); e(f"buffer_store_dword v21, v20, {sr(sWS,4)}, s{sT} offen sc1"); e("s_mov_b64 exec, -1")
        g.lab("LA_noclr")
    e(f"s_mov_b32 s{sPF}, s{sPB}"); e(f"s_and_b32 s{sPF+1}, s{sPB+1}, 0xffff"); e(f"s_mov_b32 s{sPF+2}, s{sCNT}")
    for k in range(OPT['pre']): a_op('p', 0, 0)
    e(f"s_mov_b32 s{sCNT}, 8"); e(f"s_mov_b32 s{sOK}, 0")
    stamp('loopA')
    if OPT['prio'] and nw == 1: e("s_setprio 1")
    e("s_waitcnt lgkmcnt(0)")
    g.q = list(sq); g.v = list(sv_)
    g.L.append(".p2align 6"); g.lab(f"LA_loop{nw}")
    a_body(nw); assert g.q == sq and g.v == sv_
    e(f"s_sub_u32 s{sCNT}, s{sCNT}, 1")
    e(f"s_cmp_ge_u32 s{sCNT}, 6"); e(f"s_cbranch_scc1 LA_h1_{nw}")
    e(f"s_cmp_lt_u32 s{sCNT}, 3"); e(f"s_cbranch_scc0 LA_loop{nw}")
    e(f"s_cmp_eq_u32 s{sCNT}, 2"); e(f"s_cbranch_scc1 LA_h2_{nw}")
    e(f"s_cmp_eq_u32 s{sCNT}, 1"); e(f"s_cbranch_scc1 LA_h3_{nw}")
    sv = g.L; g.L = g.tail
    g.lab(f"LA_h1_{nw}")
    e(f"s_cmp_eq_u32 s{sCNT}, 6"); e(f"s_cbranch_scc1 LA_h1b_{nw}")
    gate_compute(); e(f"s_branch LA_loop{nw}")
    g.lab(f"LA_h1b_{nw}")
    if nw == 0:
        e(f"s_cmp_lg_u32 s{sW}, 0"); e(f"s_cbranch_scc1 LA_loop{nw}")
        e(f"v_mov_b32 v{vT}, 1")
        one_lane(lambda: e(f"buffer_atomic_add v{vT}, off, {sr(sDBG,4)}, 0 sc1"))
    e(f"s_branch LA_loop{nw}")
    g.lab(f"LA_h2_{nw}")
    e(f"buffer_load_dword v{vCN}, off, {sr(sDBG,4)}, 0 sc1"); e(f"s_branch LA_loop{nw}")
    g.lab(f"LA_h3_{nw}")
    e("s_waitcnt vmcnt(12)"); e(f"v_readfirstlane_b32 s{sT}, v{vCN}"); e("s_nop 0")
    e(f"s_cmp_ge_u32 s{sT}, 256"); e(f"s_cbranch_scc0 LA_loop{nw}")
    e(f"s_mov_b32 s{sOK}, 1"); g_loads(); e(f"s_branch LA_loop{nw}")
    g.lab(f"LA_slow{nw}")
    def ld(): e(f"buffer_load_dword v{vCN}, off, {sr(sDBG,4)}, 0 sc1")
    def ts(): e(f"v_readfirstlane_b32 s{sT}, v{vCN}"); e("s_nop 0"); e(f"s_cmp_ge_u32 s{sT}, 256")
    spin(f"LA_spin{nw}", ld, ts, sT+3); g_loads(); e("s_waitcnt vmcnt(0)"); e(f"s_branch LB_go{nw}")
    g.L = sv
    if OPT['prio'] and nw == 1: e("s_setprio 0")
    stamp('endA')
    U = UNITS[nw]; jkv = 2 if nw == 0 else 0
    if OPT['bprio'] and nw == 1: e("s_setprio 1")
    e("s_waitcnt vmcnt(0) lgkmcnt(0)"); e("s_barrier")
    for i in range(4): pack2(jkv, i)
    e(f"s_lshl_b32 s{sT+4}, s{sLAM}, 15"); e(f"s_add_u32 s{sT+4}, s{sT+4}, {WS_KV:#x}")
    e(f"s_lshl_b32 s{sT+5}, s{sMW}, 13"); e(f"v_add_u32 v{vT+8}, s{sT+5}, v{vL16}")
    e(f"s_add_u32 s{sT+5}, s{sT+5}, s{sT+4}"); e(f"s_add_u32 s{sT+6}, s{sT+5}, 4096")
    if nw == 1:
        for i in range(4):
            a = ACC(0, i); e(f"v_permlane32_swap_b32 v{a}, v{a+2}"); e(f"v_permlane32_swap_b32 v{a+1}, v{a+3}")
    e(f"s_cmp_eq_u32 s{sRB}, 7"); e(f"s_cbranch_scc1 LB_nokvst{nw}")
    for i in range(4):
        e(f"buffer_store_dwordx4 {vr(ACC(jkv,i),4)}, v{vL16}, {sr(sWS,4)}, s{sT+5+(i>>1)} offen offset:{nw*2048+(i&1)*1024} sc1")
    g.lab(f"LB_nokvst{nw}")
    for i in range(4):
        e(f"ds_write_b128 v{vT+8}, {vr(ACC(jkv,i),4)} offset:{32768+(i>>1)*4096+nw*2048+(i&1)*1024}")
    e(f"s_cmp_eq_u32 s{sOK}, 0"); e(f"s_cbranch_scc1 LA_slow{nw}")
    g.lab(f"LB_go{nw}")
    e(f"v_cmp_ne_u32 vcc, s{sFAST}, v25"); e("s_nop 1"); e("s_cmp_eq_u64 vcc, 0"); e(f"s_cselect_b32 s{sFAST}, {OPT['fast']}, 0")
    for i in range(4):
        e(f"v_sub_f32 v{vGV+i}, 1.0, v{vGV+i}"); e(f"v_cvt_pk_bf16_f32 v{vGV+i}, v{vGV+i}, v{vGV+i}"); e(f"v_and_b32 v{vGV+i}, 0xffff0000, v{vGV+i}")
    for i in range(4): e(f"v_rcp_f32 v{vGV+i}, v{vGV+i}")
    e(f"v_and_b32 v{vT+10}, 31, v{L}"); e(f"v_lshlrev_b32 v{vT+10}, 4, v{vT+10}"); e(f"v_lshrrev_b32 v{vT+11}, 5, v{L}")
    e(f"v_mul_u32_u24 v{vT+11}, {M16}, v{vT+11}"); e(f"v_add_u32 v{vT+10}, v{vT+10}, v{vT+11}")
    for i in range(4): e(f"v_min_f32 v{vGV+i}, {f32(2.0**100)}, v{vGV+i}")
    e(f"s_lshl_b32 s{sT}, s{sRB}, 4"); e(f"s_lshl_b32 s{sT+1}, s{sMW}, 2"); e(f"s_add_u32 s{sT}, s{sT}, s{sT+1}")
    e(f"s_mul_i32 s{sT+1}, s{sT}, {M16}"); e(f"s_mul_i32 s{sT}, s{sH}, {7*512}"); e(f"s_add_u32 s{sT+1}, s{sT+1}, s{sT}")
    e(f"s_add_u32 s{sT+2}, s{sT+1}, {2*M16}")
    e(f"s_lshl_b32 s{sT+7}, s{sLAM}, 7"); e(f"s_add_u32 s{sT+7}, s{sT+7}, {WS_FL:#x}")
    e(f"v_mov_b32 v{vCN}, 1"); e(f"v_mov_b32 v{vT+12}, {CNTLDS}")
    gus = [j for j in range(10) if U[j][0] == 'g']
    def hstore(j, i): dstore([f"buffer_store_dwordx4 {vr(ACC(j,i),4)}, v{vT+10}, {sr(sWS,4)}, s{sT+1+(i>>1)} offen offset:{int(U[j][1])*512}"])
    ns = 0; nst = 0; DEF = OPT['defer']; todo = []; KVS = OPT['kvs'] if nw == 0 else OPT['kvs1']
    def ldK(): e(f"buffer_load_dword v{vT+14}, off, {sr(sWS,4)}, s{sT+3} offset:{FL_KV} sc1")
    def tsK(): e(f"v_readfirstlane_b32 s{sT}, v{vT+14}"); e("s_nop 0"); e(f"s_cmp_eq_u32 s{sT}, 1")
    e(f"s_add_u32 s{sT+3}, s{sT+7}, {65536-4096}")
    for n, j in enumerate(gus):
        for i in (0, 2):
            silu(j, i, vT); ns += 1
            if DEF == 1 or (DEF == 2 and nw == 0): todo.append((j, i))
            else: hstore(j, i); nst += 1
            if ns == KVS:
                e(f"s_waitcnt vmcnt({nst})")
                e("s_mov_b64 exec, 1"); e(f"ds_add_rtn_u32 v{vT+13}, v{vT+12}, v{vCN}"); e("s_mov_b64 exec, -1")
                stamp('kvsig')
            if ns == KVS:
                e("s_waitcnt lgkmcnt(0)"); e(f"v_readfirstlane_b32 s{sT}, v{vT+13}"); e("s_nop 0"); e(f"s_cmp_lg_u32 s{sT}, 7"); e(f"s_cbranch_scc1 LB_nf1{nw}")
                e(f"s_add_u32 s{sT}, s{sT+7}, 65536")
                one_lane(lambda: e(f"buffer_store_dword v{vCN}, off, {sr(sWS,4)}, s{sT} offset:{FL_KV} sc1"))
                g.lab(f"LB_nf1{nw}")
    if nw == 0:
        ldK()
        for i in range(4): pack2(0, i)
        e(f"s_lshl_b32 s{sT}, s{sMW}, 12"); e(f"s_add_u32 s{sT}, s{sT}, {QLDS}"); e(f"v_add_u32 v{vT+9}, s{sT}, v{vL16}")
        for i in range(4): e(f"ds_write_b128 v{vT+9}, {vr(ACC(0,i),4)} offset:{i*1024}")
        e(f"v_mov_b32 v{vT+12}, {CNT2}"); e(f"v_mov_b32 v{vT+13}, 0"); e(f"ds_write_b32 v{vT+12}, v{vT+13}")
    stamp('hdone')
    if nw == 0:
        e(f"s_cmp_eq_u32 s{sRB}, 0"); e("s_cbranch_scc1 LB_rb0")
        e("s_waitcnt vmcnt(0)"); tsK(); e("s_cbranch_scc1 LB_spin_ok")
        spin("LB_spin", ldK, tsK, sT+5)
        e(f"s_sub_u32 s{sT+5}, s{sT+4}, {32*32768}"); e(f"s_add_u32 s{sT+6}, s{sT+5}, 4096")
        for f in range(8): e(f"buffer_load_dwordx4 {vr(44+4*f,4)}, v{vT+8}, {sr(sWS,4)}, s{sT+5+(f>>2)} offen offset:{(f&3)*1024} sc1")
        e("s_branch LB_st0")
        g.lab("LB_rb0")
        for r in range(44, 76): e(f"v_mov_b32 v{r}, 0")
        g.lab("LB_st0")
        NDEF0 = len(todo)
    stamp('kvok')
    for (j, i) in todo: hstore(j, i)
    if nw == 0: e("s_branch LB_common")
g.lab("LB_common")
c_setup()
vF = 40; vQ = 32; vS = 112; vM = 26; vSUM = 28
BIG = 2.0**100
e(f"v_and_b32 v{vM}, 31, v{L}"); e(f"v_lshrrev_b32 v{vM+1}, 5, v{L}"); e(f"v_lshlrev_b32 v{vM+1}, 2, v{vM+1}")
e(f"v_sub_u32 v{vM}, v{vM}, v{vM+1}"); e(f"v_cvt_f32_i32 v{vM}, v{vM}"); e(f"v_mul_f32 v{vM}, {f32(BIG)}, v{vM}")
for rho in range(16):
    cst = 8*(rho >> 2) + (rho & 3)
    e(f"v_sub_f32 v{vS+rho}, {f32((cst-1)*BIG)}, v{vM}"); e(f"v_add_f32 v{vS+128+rho}, {f32(-cst*BIG)}, v{vM}")
for rho in range(16):
    e(f"v_min_f32 v{vS+rho}, 0, v{vS+rho}"); e(f"v_min_f32 v{vS+128+rho}, 0, v{vS+128+rho}")
vKA, vVA, vQA, vOA = 8, 9, 10, 11
e(f"v_and_b32 v{vM+1}, 15, v{L}"); e(f"v_lshlrev_b32 v{vM+1}, 4, v{vM+1}"); e(f"v_lshrrev_b32 v{vM+2}, 5, v{L}")
e(f"v_lshl_add_u32 v{vM+1}, v{vM+2}, 8, v{vM+1}"); e(f"v_bfe_u32 v{vM+2}, v{L}, 4, 1")
e(f"v_lshl_add_u32 v{vQA}, v{vM+2}, 10, v{vM+1}"); e(f"v_lshl_add_u32 v{vVA}, v{vM+2}, 9, v{vM+1}")
e(f"v_mul_u32_u24 v{vOA}, {M16}, v{vM+2}"); e(f"v_add_u32 v{vOA}, v{vOA}, v{vM+1}")
e(f"s_lshl_b32 s{sT}, s{sW}, 12"); e(f"v_add_u32 v{vKA}, s{sT}, v{vQA}"); e(f"v_add_u32 v{vVA}, s{sT}, v{vVA}")
e(f"s_lshl_b32 s{sT}, s{sW}, 11"); e(f"s_add_u32 s{sT}, s{sT}, {QLDS}"); e(f"v_add_u32 v{vQA}, s{sT}, v{vQA}")
e(f"s_cmp_eq_u32 s{sNW}, 1"); e("s_cbranch_scc1 LB_nokv")
for f in range(8):
    e(f"s_waitcnt vmcnt({7-f+NDEF0})"); e(f"ds_write_b128 v{vT+8}, {vr(44+4*f,4)} offset:{f*1024}")
g.lab("LB_nokv")
stamp('kvld')
if OPT['bprio']: e("s_setprio 0")
e("s_waitcnt lgkmcnt(0)"); e("s_barrier")
stamp('bar2')
def kread(t):
    for f in range(2): g.lds(f"ds_read_b128 {vr(vF+8*t+4*f,4)}, v{vKA} offset:{t*4096+f*512}", ('K', t, f))
def vread(t):
    for f in range(2): g.lds(f"ds_read_b128 {vr(vF+8*t+4*f,4)}, v{vVA} offset:{t*4096+2048+f*1024}", ('V', t, f))
def mx(t, half=None):
    b = vS + 16*t
    for r in range(0, 16, 2):
        if half is not None and (r >> 3) != half: continue
        k = (r >> 1) & 1
        if t == 0 and r < 4: e(f"v_max_f32 v{vM+k}, v{b+r}, v{b+r+1}")
        else: e(f"v_max3_f32 v{vM+k}, v{vM+k}, v{b+r}, v{b+r+1}")
def s_phase(rb0):
    g.q = []
    for f in range(2): g.lds(f"ds_read_b128 {vr(vQ+4*f,4)}, v{vQA} offset:{f*512}", ('Q', f))
    for t in range(5): kread(t)
    for t in range(9):
        for f in range(2):
            g.need([('K', t, f), ('Q', f)])
            c = vr(vS+16*t, 16) if (f == 1 or t in (0, 8)) else "0"
            e(f"{MF32} {vr(vS+16*t,16)}, {vr(vF+8*t+4*f,4)}, {vr(vQ+4*f,4)}, {c}")
            if not rb0 and t >= 3: mx(t-3, f)
        if t + 5 < 9: kread(t+5)
        elif t >= 5: vread(t-5)
    vread(4); vread(5)
    if rb0:
        e(f"s_sub_u32 s{sT}, 8, s{sW}"); e("s_nop 7")
        for t in range(8):
            e(f"s_cmp_le_u32 s{sT}, {t}"); e("s_cbranch_scc1 LB_maskdone")
            for rho in range(16): e(f"v_mov_b32 v{vS+16*t+rho}, {f32(-BIG)}")
        g.lab("LB_maskdone")
        for t in range(6): mx(t)
e(f"s_cmp_eq_u32 s{sRB}, 0"); e("s_cbranch_scc1 LB_s0")
sv = g.L; g.L = g.tail; g.lab("LB_s0"); s_phase(True); e("s_branch LB_sdone"); g.L = sv
s_phase(False)
g.lab("LB_sdone")
for t in range(6, 9): mx(t)
e(f"v_mov_b32 v{vSUM}, {CNT2}")
stamp('sph')
e("s_waitcnt vmcnt(0)")
e("s_mov_b64 exec, 1"); g.lds(f"ds_add_rtn_u32 v{vSUM+1}, v{vSUM}, v{vCN}", 'C'); e("s_mov_b64 exec, -1")
e(f"v_max_f32 v{vM}, v{vM}, v{vM+1}"); e(f"v_mov_b32 v{vM+1}, v{vM}"); e("s_nop 1")
e(f"v_permlane32_swap_b32 v{vM}, v{vM+1}"); e(f"v_max_f32 v{vM}, v{vM}, v{vM+1}")
CC = 32 ** -0.5 * LOG2E
e(f"s_mov_b32 s{sK}, {f32(CC)}"); e(f"s_mov_b32 s{sK+1}, {f32(CC)}")
e(f"v_mul_f32 v{vM}, {f32(-CC)}, v{vM}"); e(f"v_mov_b32 v{vM+1}, v{vM}")
vO = vS + 8
def pbase(t): return vS if t == 0 else vS + 16*t + 8
def soft(t, mid=None):
    b = vS + 16*t
    for r in range(0, 16, 2): e(f"v_pk_fma_f32 {vr(b+r,2)}, {vr(b+r,2)}, {sr(sK,2)}, {vr(vM,2)}")
    if mid: mid()
    for r in range(16): e(f"v_exp_f32 v{b+r}, v{b+r}")
    for r in range(0, 16, 2):
        s = vSUM + 2*((r >> 1) & 1)
        if t == 0 and r < 4: e(f"v_pk_add_f32 {vr(s,2)}, {vr(b+r,2)}, {vr(b+r+4,2)}")
        elif t == 0 and r < 8: pass
        else: e(f"v_pk_add_f32 {vr(s,2)}, {vr(s,2)}, {vr(b+r,2)}")
    if t == 0:
        for r in range(8): e(f"v_cvt_pk_bf16_f32 v{b+r}, v{b+2*r}, v{b+2*r+1}")
    else:
        for r in range(7, -1, -1): e(f"v_cvt_pk_bf16_f32 v{b+8+r}, v{b+2*r}, v{b+2*r+1}")
def pv(t):
    for f in range(2):
        g.need([('V', t, f)])
        e(f"{MF32} {vr(vO,16)}, {vr(vF+8*t+4*f,4)}, {vr(pbase(t)+4*f,4)}, " + ("0" if (t == 0 and f == 0) else vr(vO, 16)))
    if t + 6 < 9: vread(t+6)
def hsig():
    g.need(['C']); e(f"v_readfirstlane_b32 s{sT}, v{vSUM+1}"); e("s_nop 0"); e(f"s_cmp_lg_u32 s{sT}, 7"); e("s_cbranch_scc1 LB_nf2")
    one_lane(lambda: dstore([f"buffer_store_dword v{vCN}, off, {sr(sWS,4)}, s{sT+7} offset:{FL_H}"]))
    g.lab("LB_nf2")
e(f"s_lshr_b32 s{sT+4}, s{cMT}, 1"); e(f"s_lshl_b32 s{sT+4}, s{sT+4}, 12"); e(f"s_add_u32 s{sT+4}, s{sT+4}, {WS_FL:#x}")
def ldH(): e(f"buffer_load_dword v{cvPL}, v{cvPL+1}, {sr(sWS,4)}, s{sT+4} offen offset:{FL_H} sc1")
def tsL(): e(f"v_cmp_ne_u32 vcc, 1, v{cvPL}"); e("s_nop 1"); e("s_cmp_eq_u64 vcc, 0")
def predma(t):
    k = 2*(t-1)
    if k % 4 == 0: e(f"s_mov_b32 m0, s{cM0+k//4}"); e("s_nop 0")
    c_dma(k % 4); c_dma(k % 4 + 1)
soft(0, hsig); soft(1, lambda: predma(1)); e("s_nop 0"); pv(0)
for t in range(2, 9):
    if t <= 4: predma(t)
    if t == 5 and OPT['c3']:
        e(f"s_cmp_lg_u32 s{sW}, 7"); e("s_cbranch_scc1 LB_noc3")
        e(f"s_add_u32 s{sT}, s{cSTG}, 2"); e(f"s_lshl_b32 s{sT}, s{sT}, 18"); e(f"s_add_u32 s{sT}, s{sT}, s{cC3}")
        e(f"buffer_load_dword v{vDUM}, v{cvC3}, {sr(cWt,4)}, s{sT} offen")
        g.lab("LB_noc3")
    if t == 7: ldH()
    soft(t, lambda: pv(t-1))
e("s_nop 1"); pv(8)
e(f"v_pk_add_f32 {vr(vSUM,2)}, {vr(vSUM,2)}, {vr(vSUM+2,2)}"); e(f"v_add_f32 v{vSUM}, v{vSUM}, v{vSUM+1}")
e(f"v_mov_b32 v{vSUM+1}, v{vSUM}"); e("s_nop 1"); e(f"v_permlane32_swap_b32 v{vSUM}, v{vSUM+1}")
e(f"v_add_f32 v{vSUM}, v{vSUM}, v{vSUM+1}"); e(f"v_rcp_f32 v{vSUM}, v{vSUM}")
e(f"s_lshl_b32 s{sT}, s{sRB}, 4"); e(f"s_lshl_b32 s{sT+1}, s{sW}, 1"); e(f"s_add_u32 s{sT}, s{sT}, s{sT+1}")
e(f"s_mul_i32 s{sT}, s{sT}, {M16}"); e(f"s_lshl_b32 s{sT+1}, s{sH}, 10"); e(f"s_add_u32 s{sT}, s{sT}, s{sT+1}"); e(f"s_add_u32 s{sT+1}, s{sT}, {224*512}")
e(f"v_mul_f32 v{vSUM}, v{vSUM}, v{vGV+4}")
stamp('pv')
e("s_waitcnt vmcnt(0)"); tsL(); e("s_cbranch_scc0 LC_slowH")
g.lab("LC_goH")
g.v = []; CST[0] = 0
for k in range(4): c_aload(0, k)
for r in range(0, 16, 2): e(f"v_pk_mul_f32 {vr(vO+r,2)}, {vr(vO+r,2)}, {vr(vSUM,2)} op_sel_hi:[1,0]")
for r in range(8): e(f"v_cvt_pk_bf16_f32 v{vO+8+7-r}, v{vO+14-2*r}, v{vO+15-2*r}")
dstore([f"buffer_store_dwordx4 {vr(vO+8+4*f,4)}, v{vOA}, {sr(sWS,4)}, s{sT+1} offen offset:{f*512}" for f in range(2)])
stamp('attn')
e(f"v_bfe_u32 v{vT}, v{L}, 2, 3"); e(f"v_lshrrev_b32 v{vT+1}, 5, v{L}"); e(f"v_lshl_add_u32 v{vT+1}, v{vT+1}, 4, v{vT}")
e(f"v_lshlrev_b32 v{vT+1}, 8, v{vT+1}"); e(f"v_lshl_add_u32 v{vT+1}, v{vT}, 5, v{vT+1}")
e(f"v_and_b32 v{vT}, 3, v{L}"); e(f"v_lshl_add_u32 v{vT+1}, v{vT}, 3, v{vT+1}")
e(f"s_lshl_b32 s{sT}, s{sNW}, 14"); e(f"v_add_u32 v{cvRA+8}, s{sT}, v{vT+1}")
for u in range(1, 8): e(f"v_xor_b32 v{cvRA+8+u}, {32*u}, v{cvRA+8}")
for u in range(8): e(f"v_add_u32 v{cvRA+u}, {SLOTS[0]}, v{cvRA+8+u}")
for p in range(1, D-1):
    for k in range(4): c_aload(p, k)
for r in range(cvACC, 256): e(f"v_mov_b32 v{r}, 0")
e(f"s_mov_b32 s{sOK}, 0")
e(f"s_and_b32 s{sT+5}, s2, 127"); e(f"s_lshl_b32 s{sT+6}, s{sT+5}, 7"); e(f"s_add_u32 s{sT+6}, s{sT+6}, {WS_FL+32768:#x}")
e(f"s_lshl_b32 s{sT+5}, s{sT+5}, 16"); e(f"s_lshl_b32 s{sT}, s{sW}, 13"); e(f"s_add_u32 s{sT+5}, s{sT+5}, s{sT}"); e(f"s_add_u32 s{sT+5}, s{sT+5}, {WS_PART:#x}")
e(f"s_add_u32 s{sT+2}, s{sT+5}, 4096")
e("s_barrier")
stamp('bar3')
g.q = []
for n in range(7 if CB == 1 else 8): c_wread(0, n)
e(f"s_mov_b32 m0, s{cM0+2}"); e("s_nop 0")
for k in range(4): c_dma(k, ('d', 2))
pro_v = list(g.v)
def ldO(): e(f"buffer_load_dword v{cvPL}, v{cvPL+1}, {sr(sWS,4)}, s{sT+4} offen offset:{FL_O} sc1")
def ldP(): e(f"buffer_load_dword v{cvPL}, off, {sr(sWS,4)}, s{sT+6} offset:{FL_P} sc1")
def ploads():
    for q in range(8): e(f"buffer_load_dwordx4 {vr(cvPT+4*q,4)}, v{vL16}, {sr(sWS,4)}, s{sT+5 if q < 4 else sT+2} offen offset:{(q&3)*1024} sc1")
def h_of():
    e(f"s_cmp_lg_u32 s{sW}, 0"); e("s_cbranch_scc1 RET")
    one_lane(lambda: dstore([f"buffer_store_dword v{vCN}, off, {sr(sWS,4)}, s{sT+7} offset:{FL_O}"]))
def h_oc():
    e(f"s_mov_b32 s{cWK}, s{cRS}"); e(f"s_mov_b32 s{cWt}, s{pWO}"); e(f"s_and_b32 s{cWt+1}, s{pWO+1}, 0xffff")
    e(f"s_mov_b32 s{cWt+2}, {0 if OPT['noW2'] else 1024*2048:#x}")
    e("s_waitcnt vmcnt(8)"); tsL(); e("s_cbranch_scc1 RET"); spin("LC_spinO", ldO, tsL, sT+3)
def h_end():
    e(f"s_mov_b32 s{cWt+2}, 0"); e(f"s_mov_b32 s{cA+2}, 0"); e(f"s_lshl_b32 s{sT}, s{sW}, 12")
    for k in range(4): e(f"s_add_u32 s{cM0+k}, s{sT}, {DUMMY}")
def h_pc():
    e("s_waitcnt vmcnt(8)"); tsL(); e("s_cbranch_scc0 RET"); ploads(); e(f"s_mov_b32 s{sOK}, 1")
def c3pf(st):
    def f():
        e(f"s_cmp_lg_u32 s{sW}, 7"); e("s_cbranch_scc1 RET")
        if st < 28: srd(cS3, pWD, 3584*2048); e(f"s_add_u32 s{sT}, s{cC3}, {st*128*2048:#x}")
        else: srd(cS3, pWO, 1024*2048); e(f"s_add_u32 s{sT}, s{cC3}, {(st-28)*128*2048:#x}")
        e(f"buffer_load_dword v{vDUM}, v{cvC3}, {sr(cS3,4)}, s{sT} offen")
    return f
def h_wb():
    e(f"s_cmp_lg_u32 s{sW}, 0"); e("s_cbranch_scc1 RET"); e(f"s_cmp_lg_u32 s{sH}, 0"); e("s_cbranch_scc1 RET"); e("buffer_wbl2 sc1")
hooks = ([(OPT['wb'], h_wb)] if OPT['wb'] else []) + [(1, h_of), (NP+1, h_of), (NP-4, h_end), (23, ldO), (24, h_oc), (32, h_end), (33, ldP), (34, h_pc)]
if OPT['c3']:
    C3 = OPT['c3']; used = set(h[0] for h in hooks)
    def addpf(at, st, lo):
        while at in used: at -= 1
        assert at >= lo, (at, lo); used.add(at); hooks.append((at, c3pf(st)))
    for st in range(2+C3, NP, C3): addpf(max(st-C3-1, 0), st, 0)
    for st in list(range(NP+2+C3, 28, C3)) + list(range(28, 36, C3)): addpf(max(st-C3-1, NP), st, NP)
assert len(set(h[0] for h in hooks)) == len(hooks) and NP + 1 < 23
mask = sum(1 << h[0] for h in hooks)
cHM = 46
e(f"s_mov_b32 s{cHM}, {mask & 0xffffffff:#x}"); e(f"s_mov_b32 s{cHM+1}, {mask >> 32:#x}")
e("s_waitcnt lgkmcnt(0)")
stamp('loopC')
import re
def run(init_q, init_v, first):
    sv = g.L; g.L = []; g.q = list(init_q); g.v = list(init_v); CST[0] = first
    for p in range(D): c_stage(p)
    r = g.L; g.L = sv; return r, list(g.q), list(g.v)
t1, q1, v1 = run([], pro_v, 0); t2, q2, v2 = run(q1, v1, D); t3, q3, v3 = run(q2, v2, 2*D); t4, q4, v4 = run(q3, v3, 3*D)
assert t3 == t4
def split(t):
    out = []; pend = None
    for l in t:
        if 's_waitcnt' in l: assert pend is None; pend = l
        else: out.append((pend, l)); pend = None
    assert pend is None; return out
def cnts(w):
    if w is None: return (None, None)
    a = re.search(r'vmcnt\((\d+)\)', w); b = re.search(r'lgkmcnt\((\d+)\)', w)
    return (int(a.group(1)) if a else None, int(b.group(1)) if b else None)
S = [split(t) for t in (t1, t2, t3)]
assert [x[1] for x in S[0]] == [x[1] for x in S[2]]
per = len(S[2]) // D
g.L.append(".p2align 6"); g.lab("LC_loop0")
for idx in range(len(S[2])):
    c = [cnts(q[idx][0]) for q in S]
    vmn = [x[0] for x in c if x[0] is not None]; lk = [x[1] for x in c if x[1] is not None]
    w = ([f"vmcnt({min(vmn)})"] if vmn else []) + ([f"lgkmcnt({min(lk)})"] if lk else [])
    if w: e("s_waitcnt " + " ".join(w))
    g.L.append(S[2][idx][1])
    if (idx+1) % per == 0:
        p = idx // per
        hs = [h for h in hooks if (h[0] - (0 if h[0] < NP else NP)) % D == p]
        if hs:
            e(f"s_bitcmp1_b64 {sr(cHM,2)}, s{cSTG}"); e(f"s_cbranch_scc1 LC_hk{p}"); g.lab(f"LC_rt{p}")
            sv = g.L; g.L = []
            g.lab(f"LC_hk{p}")
            for st, f in hs:
                e(f"s_cmp_lg_u32 s{cSTG}, {st}"); e(f"s_cbranch_scc1 LC_n{st}"); f(); e("s_branch RET"); g.lab(f"LC_n{st}")
            e("s_branch RET")
            g.tail += [l.replace("RET", f"LC_rt{p}") for l in g.L]; g.L = sv
        e(f"s_add_u32 s{cSTG}, s{cSTG}, 1")
        if p == D-1: e(f"s_cmp_lt_u32 s{cSTG}, s{cEND}"); e("s_cbranch_scc1 LC_loop0")
        elif p in ((NP-1) % D, (35-NP) % D): e(f"s_cmp_ge_u32 s{cSTG}, s{cEND}"); e("s_cbranch_scc1 LC_done")
g.lab("LC_done")
sv = g.L; g.L = g.tail
g.lab("LC_slowP"); spin("LC_spinP", ldP, tsL, sT+3); ploads(); e("s_branch LC_fin2")
g.lab("LC_slowH"); spin("LC_spinH", ldH, tsL, sT+3); e("s_branch LC_goH")
g.L = sv
stamp('endC')
e(f"s_lshl_b32 s{sT}, s{sW}, 13"); e(f"v_add_u32 v{vT}, s{sT}, v{vL16}"); e(f"v_xor_b32 v{vT+1}, 0x8000, v{vT}")
XC = cvPT + 32
e(f"s_cmp_eq_u32 s{sNW}, 1"); e("s_cbranch_scc1 LC_x1")
for q in range(8): e(f"ds_write_b128 v{vT}, {vr(cvACC+32+4*q,4)} offset:{q*1024}")
e("s_branch LC_x2")
g.lab("LC_x1")
for q in range(8): e(f"ds_write_b128 v{vT}, {vr(cvACC+4*q,4)} offset:{q*1024}")
g.lab("LC_x2")
e("s_waitcnt lgkmcnt(0)"); e("s_barrier")
for q in range(8): e(f"ds_read_b128 {vr(XC+4*q,4)}, v{vT+1} offset:{q*1024}")
e(f"s_cmp_eq_u32 s{sNW}, 0"); e("s_cbranch_scc1 LC_x3")
for r in range(32): e(f"v_mov_b32 v{cvACC+r}, v{cvACC+32+r}")
g.lab("LC_x3")
e(f"s_cmp_eq_u32 s{cROLE}, 0"); e("s_cbranch_scc0 LC_cons")
for q in range(8):
    e(f"s_waitcnt lgkmcnt({7-q})")
    for r in range(0, 4, 2): e(f"v_pk_add_f32 {vr(XC+4*q+r,2)}, {vr(XC+4*q+r,2)}, {vr(cvACC+4*q+r,2)}")
    dstore([f"buffer_store_dwordx4 {vr(XC+4*q,4)}, v{vL16}, {sr(sWS,4)}, s{sT+5 if q < 4 else sT+2} offen offset:{(q&3)*1024}"], OPT['pfast'])
e("s_waitcnt vmcnt(0)"); e("s_barrier")
e(f"s_cmp_lg_u32 s{sW}, 0"); e("s_cbranch_scc1 LC_fin")
one_lane(lambda: dstore([f"buffer_store_dword v{vCN}, off, {sr(sWS,4)}, s{sT+6} offset:{FL_P}"], OPT['pfast']))
e("s_branch LC_fin")
g.lab("LC_cons")
e(f"s_cmp_eq_u32 s{sOK}, 0"); e("s_cbranch_scc1 LC_slowP")
g.lab("LC_fin2")
e(f"v_and_b32 v{vT+2}, 15, v{L}"); e(f"v_lshlrev_b32 v{vT+2}, 11, v{vT+2}"); e(f"v_bfe_u32 v{vT+3}, v{L}, 4, 1")
e(f"v_lshl_add_u32 v{vT+2}, v{vT+3}, 5, v{vT+2}"); e(f"v_lshrrev_b32 v{vT+3}, 5, v{L}"); e(f"v_lshl_add_u32 v{vT+2}, v{vT+3}, 4, v{vT+2}")
e(f"s_lshl_b32 s{sT}, s{cMT}, 18"); e(f"s_lshl_b32 s{sT+1}, s{sMW}, 16"); e(f"s_add_u32 s{sT}, s{sT}, s{sT+1}")
e(f"s_lshl_b32 s{sT+1}, s{cNT}, 8"); e(f"s_add_u32 s{sT}, s{sT}, s{sT+1}"); e(f"s_lshl_b32 s{sT+1}, s{sNW}, 7"); e(f"s_add_u32 s{sT}, s{sT}, s{sT+1}")
e(f"s_add_u32 s{sT+1}, s{sT}, 32768")
e("s_waitcnt vmcnt(0)")
for r in range(0, 32, 2): e(f"v_pk_add_f32 {vr(cvACC+r,2)}, {vr(cvACC+r,2)}, {vr(cvPT+r,2)}")
e("s_waitcnt lgkmcnt(0)")
for pr in range(2):
    for r in range(0, 16, 2): e(f"v_pk_add_f32 {vr(cvACC+16*pr+r,2)}, {vr(cvACC+16*pr+r,2)}, {vr(XC+16*pr+r,2)}")
    for mf in range(2):
        x = cvACC + 16*pr + 4*mf; y = x + 8; d = cvPT + 8*pr + 4*mf
        e(f"v_cvt_pk_bf16_f32 v{d}, v{x}, v{x+1}"); e(f"v_cvt_pk_bf16_f32 v{d+1}, v{x+2}, v{x+3}")
        e(f"v_cvt_pk_bf16_f32 v{d+2}, v{y}, v{y+1}"); e(f"v_cvt_pk_bf16_f32 v{d+3}, v{y+2}, v{y+3}")
        e("s_nop 1")
        e(f"v_permlane16_swap_b32 v{d}, v{d+2}"); e(f"v_permlane16_swap_b32 v{d+1}, v{d+3}")
        e(f"buffer_store_dwordx4 {vr(d,4)}, v{vT+2}, {sr(cOUT,4)}, s{sT+mf} offen offset:{pr*64}")
g.lab("LC_fin")
stamp('fin')
if OPT['stamp']:
    e(f"s_lshl_b32 s{sT}, s2, 3"); e(f"s_add_u32 s{sT}, s{sT}, s{sW}"); e(f"s_lshl_b32 s{sT}, s{sT}, 7"); e(f"s_add_u32 s{sT}, s{sT}, {WS_STAMP:#x}")
    e(f"v_lshlrev_b32 v{vT}, 2, v{L}"); e("s_mov_b32 exec_hi, 0")
    e(f"buffer_store_dword v0, v{vT}, {sr(sWS,4)}, s{sT} offen")
    if OPT['stamp'] == 2:
        e(f"v_readlane_b32 s{sT}, v0, 16"); e(f"s_not_b32 s{sT}, s{sT}"); e(f"v_writelane_b32 v0, s{sT}, 16")
        e(f"v_subrev_u32 v{vT}, 60, v{vT}"); e(f"s_mov_b32 exec_lo, {((1<<len(SN))-1)<<16:#x}")
        e(f"buffer_atomic_umax v0, v{vT}, {sr(sDBG,4)}, 0 offen sc1")
g.lab("L_end")
e("s_endpgm")
g.L += g.tail + g.tail2
if OPT['nobar'] or OPT['nodma'] or OPT['nolds']:
    o = []; inl = False
    for l in g.L:
        if l.startswith('LA_loop') or l.startswith('LC_loop'): inl = True
        if 'LA_h1_' in l or l.startswith('LC_done'): inl = False
        if inl and OPT['nobar'] and 's_barrier' in l: continue
        if inl and OPT['nodma'] and 'buffer_load' in l: continue
        if inl and OPT['nolds'] and 'ds_read' in l: continue
        o.append(l)
    g.L = o

hdr = [l.rstrip('\n') for l in open("cdna_kernels/%s.s.ref" % NAME)]
hdr = [l for l in hdr if l.startswith(';') and '@launch' not in l]
out = hdr + [f"; @launch grid=(256,1,1) block=(512,1,1) lds={LDS_BYTES}", '.amdgcn_target "amdgcn-amd-amdhsa--gfx950"', ".text"] + g.L
out += ['.section .rodata,"a"', ".p2align 6", f""".amdhsa_kernel {KN}
  .amdhsa_next_free_vgpr 256
  .amdhsa_next_free_sgpr 102
  .amdhsa_accum_offset 256
  .amdhsa_group_segment_fixed_size 0
  .amdhsa_kernarg_size 88
  .amdhsa_user_sgpr_count 2
  .amdhsa_user_sgpr_kernarg_segment_ptr 1
  .amdhsa_system_sgpr_workgroup_id_x 1
.end_amdhsa_kernel"""]
out.insert(0, "; stamps: " + ",".join(SN)) if OPT['stamp'] else None
open(sys.argv[1], "w").write("\n".join(out) + "\n")
import hazard
errs = hazard.check("\n".join(g.L))
print("\n".join(errs) if errs else "hazard check clean")
```

```python
import sys, struct
NAME = "gated_mix__sliding_block__swiglu_ffn__prompt"
KN = NAME + "_kernel"
OPT = dict(stamp=0, NP=16, jbx=5, xrd=[0,0,1,1], xpos=[2,4,6,8], wpos=[1,3,5,7,9], pfpos=19, stag=0, PD=3, pf=1, CB=1, defer=0, slp=2, touch=0, pfnt=0, wnt=0, bprio=0, amap=3, fast=0, D=4, npre=3, apre=1, hpos=[0,1,2,4,6,8], dpos=[10,11,12,13], pf2=0, wdst=4, wdn=24, otail=0, gl=2, p3=0, rc=24, dbg=2, hq=15, early1=2, snake=0, tst=0, wshift=0, noadv=0, aflag='sc1', kvfast=0, rfast=0, pfast=1, wb=0, pre=0, cmap=1, m16=288*512, c3=0, kvs1=1, cprio=0, AB=0,
           noX=0, noW=0, noA=0, noW2=0, prio=0, kvs=2, nobar=0, nodma=0, nolds=0)
for a in sys.argv[2:]:
    k, v = a.split('='); assert k in OPT, k
    OPT[k] = eval(v)
def f32(x): return "0x%08x" % struct.unpack('<I', struct.pack('<f', x))[0]
def vr(a, n=1): return f"v[{a}:{a+n-1}]" if n > 1 else f"v{a}"
def sr(a, n=1): return f"s[{a}:{a+n-1}]" if n > 1 else f"s{a}"
NV = [0]
class Gen:
    def __init__(s): s.L = []; s.q = []; s.v = []; s.tail = []; s.tail2 = []
    def e(s, t): s.L.append("    " + t)
    def lab(s, t): s.L.append(t + ":")
    def lds(s, t, tag): s.e(t); s.q.append(tag)
    def vm(s, t, tag): s.e(t); s.v.append(tag); NV[0] += 1
    def need(s, tags=(), vt=()):
        w = []
        idx = [i for i, t in enumerate(s.v) if t in vt]
        if idx:
            n = len(s.v) - 1 - max(idx); s.v = s.v[max(idx)+1:]; assert n < 64
            w.append(f"vmcnt({n})")
        idx = [i for i, t in enumerate(s.q) if t in tags]
        if idx:
            n = len(s.q) - 1 - max(idx); s.q = s.q[max(idx)+1:]
            w.append(f"lgkmcnt({min(n,15)})")
        if w: s.e("s_waitcnt " + " ".join(w))
    def steady(s, body):
        sv = s.L; s.L = []; s.q = []; s.v = []
        body(); body(); r = (list(s.q), list(s.v)); s.L = sv
        return r
g = Gen(); e = g.e
M16 = OPT['m16']; A_BYTES = 128*M16
WS_KV = 0x1400000; WS_PART = 0x1C00000; WS_G = 0x2C00000; WS_FL = 0x2C10000; WS_STAMP = 0x3000000; WS_SIZE = 0x4000000
FL_KV, FL_H, FL_O, FL_P, FL_P2 = 128, 256, 260, 384, 388
sFAST = 34+1
LOG2E = 1.4426950408889634
SPIN = 0x8000
MF16 = "v_mfma_f32_16x16x32_bf16"; MF32 = "v_mfma_f32_32x32x16_bf16"
sW, sRB, sH, sMW, sNW = 3, 4, 5, 6, 7
sX, sA, sB, sQ, sWS, sDBG, sPF = 8, 12, 16, 20, 24, 28, 32
sKX, sOW, sMWd, sINCA, sMX, sCNT, sKXE, sPFO, sPFI, sLAM, sOK, sGO = 36, 37, 42, 47, 48, 49, 50, 51, 52, 53, 54, 55
sT = 56; sP = 64; sST = 86
pX, pQKV, pWO, pWG, pWU, pWD, pGW, pOUT, pDBG, pWSp = sP, sP+2, sP+4, sP+8, sP+10, sP+12, sP+14, sP+16, sP+18, sP+20
sFAST = 101
sK = sP+6
vL, vL16, vPF, vDX, vDA, vDB, vXR, vWG, vWQ, vDUM, vCN, vGV, vT = 1, 2, 3, 4, 8, 9, 10, 12, 14, 18, 19, 20, 26
vWF, vXF, vACC = 44, 64, 96
L = vL
def ACC(j, i): return vACC + (4*j+i)*4
XSLOT = 32768; WBASE = 65536; HALF = 20480; WSLOT = 2*HALF; GOFF = 6144; UOFF = 6144+7168
LDS_BYTES = 163840; QLDS = 65536; CNTLDS = 163832; CNT2 = 81920; GLDS = 163776; sGW = 96
UNITS = [['q0','q1','k0','k1','g0','u0','g1','u1','g2','u2'], ['v0','v1','g3','u3','g4','u4','g5','u5','g6','u6']]
def srd(d, p, size):
    e(f"s_mov_b32 s{d}, s{p}"); e(f"s_and_b32 s{d+1}, s{p+1}, 0xffff"); e(f"s_mov_b32 s{d+2}, {size:#x}"); e(f"s_mov_b32 s{d+3}, 0x20000")
SN = ['start','loopA','endA','ks','hdone','kvok','bar2','sph','hs','pv','attn','loopC','endH','rs','endC','fin']
SN = ['start','loopA','endA','hdone','kvok','bar2','sph','hs','pv','loopC','endH','rs','endC','rs2','fin']
if OPT['tst']: SN = ['start','loopA'] + [f't{i}' for i in range(8)] + ['fin']
def stamp(name):
    if OPT['tst'] and name not in ('loopA', 'fin'): return
    if name not in SN: return
    idx = SN.index(name); assert idx < 16
    if not OPT['stamp']: return
    e(f"s_memtime s[{sST}:{sST+1}]"); e(f"s_memrealtime s[{sST+2}:{sST+3}]"); e("s_waitcnt lgkmcnt(0)")
    e(f"v_writelane_b32 v0, s{sST}, {idx}"); e(f"v_writelane_b32 v0, s{sST+2}, {idx+16}")
def pstamp(k):
    if OPT['stamp']: e(f"s_memtime s[{92+2*k}:{93+2*k}]")
NDS = [0]
def dstore(lines, on=True):
    if True:
        for l in lines: e(l + " sc1")
        return
    k = NDS[0]; NDS[0] += 1
    e(f"s_cmp_eq_u32 s{sFAST}, 1"); e(f"s_cbranch_scc0 LS_s{k}")
    for l in lines: e(l)
    g.lab(f"LS_r{k}")
    g.tail2 += [f"LS_s{k}:"] + ["    " + l + " sc1" for l in lines] + [f"    s_branch LS_r{k}"]
def one_lane(f):
    e("s_mov_b64 exec, 1"); f(); e("s_mov_b64 exec, -1")

def a_wread(nw, n):
    n %= 40; t = n // 10; j = n % 10
    sig = (t+1) >> 1; half = (t+1) & 1; slot = sig & 1; un = UNITS[nw][j]
    for tr in range(2):
        if un[0] in 'qkv':
            a = vWQ + 2*slot + int(un[1]); off = half*HALF + 'qkv'.index(un[0])*2048 + tr*512
        else:
            a = vWG + slot; off = half*HALF + (GOFF if un[0] == 'g' else UOFF) + tr*1792 + int(un[1])*32
        g.lds(f"ds_read_b64_tr_b16 {vr(vWF+4*(n%5)+2*tr,2)}, v{a} offset:{off}", ('W', n % 5))
def a_xread(i, t):
    t %= 4
    g.lds(f"ds_read_b128 {vr(vXF+16*(t&1)+4*i,4)}, v{vXR+(t&1)} offset:{(t>>1)*XSLOT+i*2048}", ('X', t & 1, i))
def a_m0(k, n, slot):
    if k == 'x': e(f"s_add_u32 m0, s{sMX}, {slot*XSLOT}")
    elif k == 'w': e(f"s_add_u32 m0, s{sMWd+n}, {slot*WSLOT}")
def a_op(k, n, slot, first=False):
    if k == 'x':
        g.vm(f"buffer_load_dwordx4 v{vDX+n}, {sr(sX,4)}, s{sKX} offen offset:{1024*n} lds", ('x', slot, n))
        if n == 3:
            e(f"s_add_u32 s{sKX}, s{sKX}, 128"); e(f"s_cmp_ge_u32 s{sKX}, s{sKXE}"); e(f"s_cselect_b32 s{sX+2}, 0, s{sX+2}")
    elif k == 'w':
        d = [sA, sA, sB, sB, sQ][n]; v = vDA if n < 4 else vDB
        if first: e(f"s_cmp_lt_i32 s{sOW+n}, 0"); e(f"s_cbranch_scc1 LA_skipw{n}")
        g.vm(f"buffer_load_dwordx4 v{v}, {sr(d,4)}, s{sOW+n} offen" + (" nt" if OPT['wnt'] & 1 else "") + " lds", ('w', slot, n))
        if first: g.lab(f"LA_skipw{n}")
        e(f"s_add_u32 s{sOW+n}, s{sOW+n}, " + (f"s{sINCA}" if n < 4 else f"{64*6144}"))
    else:
        g.vm(f"buffer_load_dword v{vDUM}, v{vPF}, {sr(sPF,4)}, s{sPFO} offen" + (" nt" if OPT['wnt'] & 2 and NWCUR[0] == 0 else ""), ('p', 0, 0))
        e(f"s_add_u32 s{sPFO}, s{sPFO}, s{sPFI}")
def a_full(k, n, slot, first=False):
    a_m0(k, n, slot)
    if not first: e("s_nop 0")
    a_op(k, n, slot, first)
JBW = 6
def a_events(nw):
    ev = {}; st = OPT['stag']*nw
    for t in (1, 3):
        for n, o in enumerate(OPT['xpos']): assert 0 <= o+st < 20; ev.setdefault((t*10+OPT['jbx']+o+st) % 40, []).append(('x', n, t >> 1))
    for t in (0, 2):
        for n, o in enumerate(OPT['wpos']): assert 0 <= o+st < 20; ev.setdefault((t*10+JBW+o+st) % 40, []).append(('w', n, t >> 1))
        if OPT['pf']: ev.setdefault((t*10+JBW+OPT['pfpos']-st) % 40, []).append(('p', 0, 0))
    return ev
NWCUR = [0]
def a_body(nw):
    NWCUR[0] = nw
    ev = a_events(nw)
    for t in range(4):
        for j in range(10):
            n = t*10 + j; un = UNITS[nw][j]; evs = ev.get(n, [])
            for i in range(4):
                i2 = 3-i if (OPT['snake'] and j & 1) else i
                g.need([('W', n % 5), ('X', t & 1, i2)])
                a, b = vr(vWF+4*(n % 5), 4), vr(vXF+16*(t & 1)+4*i2, 4)
                if un[0] == 'v': a, b = b, a
                e(f"{MF16} {vr(ACC(j,i2),4)}, {a}, {b}, {vr(ACC(j,i2),4)}")
                if i == 0:
                    if t % 2 == 0 and j == JBW:
                        g.need([('W', k) for k in range(5)], [('w', 1-(t >> 1), k) for k in range(5)]); e("s_barrier")
                    if t % 2 == 1 and j == OPT['jbx']:
                        g.need([], [('x', 1-(t >> 1), k) for k in range(4)]); e("s_barrier")
                    a_wread(nw, n+4)
                if i == 1:
                    for ii in range(4):
                        if OPT['jbx'] + OPT['xrd'][ii] == j: a_xread(ii, t+1)
                    if evs: a_m0(*evs[0])
                if i == 2 and evs:
                    a_op(*evs[0])
                    for x in evs[1:]: a_full(*x)

def silu(jg, i, t, R):
    G = ACC(jg, i); U = ACC(jg+1, i)
    for r in range(0, 8, 2): e(f"v_pk_mul_f32 {vr(t+r,2)}, {vr(G+r,2)}, {sr(sK,2)}")
    for r in range(8): e(f"v_exp_f32 v{t+r}, v{t+r}")
    for r in range(0, 8, 2): e(f"v_pk_mul_f32 {vr(G+r,2)}, {vr(G+r,2)}, {vr(U+r,2)}")
    for r in range(0, 8, 2): e(f"v_pk_add_f32 {vr(t+r,2)}, {vr(t+r,2)}, s[94:95]")
    for r in range(8): e(f"v_rcp_f32 v{t+r}, v{t+r}")
    e("s_nop 0")
    for r in range(0, 8, 2): e(f"v_pk_mul_f32 {vr(G+r,2)}, {vr(G+r,2)}, {vr(t+r,2)}")
    for r in range(4): e(f"v_cvt_pk_bf16_f32 v{R+r}, v{G+2*r}, v{G+2*r+1}")
    e("s_nop 1")
    e(f"v_permlane32_swap_b32 v{R}, v{R+2}"); e(f"v_permlane32_swap_b32 v{R+1}, v{R+3}")
def pack2(j, i):
    a, b = ACC(j, i), ACC(j+1, i)
    e(f"v_cvt_pk_bf16_f32 v{a}, v{a}, v{a+1}"); e(f"v_cvt_pk_bf16_f32 v{a+1}, v{a+2}, v{a+3}")
    e(f"v_cvt_pk_bf16_f32 v{a+2}, v{b}, v{b+1}"); e(f"v_cvt_pk_bf16_f32 v{a+3}, v{b+2}, v{b+3}")
def spin(name, load, test, cnt):
    e(f"s_mov_b32 s{cnt}, {SPIN:#x}")
    g.lab(name)
    load(); e("s_waitcnt vmcnt(0)"); test()
    e(f"s_cbranch_scc1 {name}_ok")
    e(f"s_sub_u32 s{cnt}, s{cnt}, 1"); e(f"s_cbranch_scc1 {name}_ok")
    e(f"s_sleep {OPT['slp']}"); e(f"s_branch {name}")
    g.lab(name + "_ok")
NSIG = [0]
sDN, sHB, sFO = 46, 44, 47
vSG = 12
def trysig(n, ldsaddr, flagadd, flagoff, force=False):
    k = NSIG[0]; NSIG[0] += 1
    if force: e(f"s_cmp_eq_u32 s{sDN}, 0")
    else:
        e(f"s_getreg_b32 s{sFO}, hwreg(HW_REG_IB_STS)"); e(f"s_and_b32 s{sFO}, s{sFO}, 0xc0000f"); e(f"s_or_b32 s{sFO}, s{sFO}, s{sDN}"); e(f"s_cmp_le_u32 s{sFO}, {n}")
    e(f"s_cbranch_scc1 LG_s{k}"); g.lab(f"LG_r{k}")
    g.tail2 += [f"LG_s{k}:"] + ["    " + x for x in (
        f"v_mov_b32 v{vSG}, {ldsaddr}", f"s_mov_b32 s{sDN}, 0x10000", "s_mov_b64 exec, 1", f"s_waitcnt vmcnt({n})",
        f"ds_add_rtn_u32 v{vSG+1}, v{vSG}, v{vCN}", "s_waitcnt lgkmcnt(0)", f"v_readfirstlane_b32 s{sFO}, v{vSG+1}", "s_nop 1",
        f"s_cmp_lg_u32 s{sFO}, 7", f"s_cbranch_scc1 LG_x{k}", f"s_add_u32 s{sFO}, s{sT+7}, {flagadd}",
        f"buffer_store_dword v{vCN}, off, {sr(sWS,4)}, s{sFO} offset:{flagoff} sc1")] + [f"LG_x{k}:", "    s_mov_b64 exec, -1"]
    sv = g.L; g.L = g.tail2; stamp({FL_KV:'ks',FL_H:'hs',FL_P:'rs',FL_P2:'rs2'}[flagoff]); e(f"s_branch LG_r{k}"); g.L = sv
def gate_list(X, t, one):
    o = [[f"v_mov_b32 v{t+5}, 0"], [f"v_mov_b32 v{one}, 0x3f803f80"]]
    for d in range(8):
        o += [[f"v_lshlrev_b32 v{t}, 16, v{X+d}"], [f"v_and_b32 v{t+1}, 0xffff0000, v{X+d}"], [f"v_lshlrev_b32 v{t+2}, 16, v{X+8+d}"],
              [f"v_and_b32 v{t+3}, 0xffff0000, v{X+8+d}"], [f"v_pk_mul_f32 {vr(t,2)}, {vr(t,2)}, {vr(t+2,2)}"], [f"v_cvt_pk_bf16_f32 v{X+d}, v{t}, v{t+1}"]]
    for d in range(8): o.append([f"v_dot2_f32_bf16 v{t+5}, v{X+d}, v{one}, v{t+5}"])
    o.append(["s_nop 1"])
    for m in ("quad_perm:[1,0,3,2] row_mask:0xf", "quad_perm:[2,3,0,1] row_mask:0xf", "row_half_mirror row_mask:0xf",
              "row_mirror row_mask:0xf", "row_bcast:15 row_mask:0xa", "row_bcast:31 row_mask:0xc"):
        o.append(["s_nop 1", f"v_add_f32_dpp v{t+5}, v{t+5}, v{t+5} {m} bank_mask:0xf"])
    o += [[f"v_cvt_pk_bf16_f32 v{t}, v{t+5}, v{t+5}", f"v_and_b32 v{t}, 0xffff0000, v{t}"], [f"v_mul_f32 v{t}, {f32(-LOG2E)}, v{t}", f"v_exp_f32 v{t}, v{t}", "s_nop 0"],
          [f"v_add_f32 v{t}, 1.0, v{t}", f"v_rcp_f32 v{t}, v{t}", "s_nop 0"], [f"v_cvt_pk_bf16_f32 v{t}, v{t}, v{t}", f"v_and_b32 v{t}, 0xffff0000, v{t}"],
          [f"s_lshl_b32 s{sT}, s{sW}, 2", f"s_add_u32 s{sT}, s{sT}, {GLDS}", f"v_mov_b32 v{t+1}, s{sT}"],
          ["s_mov_b32 exec_lo, 0", "s_brev_b32 exec_hi, 1", f"ds_write_b32 v{t+1}, v{t}", "s_mov_b64 exec, -1"]]
    return o

D = OPT['D']; NH = 14; OT = OPT['otail']; NT = 8 if OT else 4; NS = NH + NT
cA, cWt, cOUT, cWo, cX = 8, 12, 16, 32, 40
cAK, cWK, cWK2, cQ, cNT, cM0, cAK2 = 20, 21, 22, 23, 36, 37, 38
cvDW, cvA, cvPL, cvDW2 = 4, 6, 16, 20
cvWF, cvAR, cvRB, cvRA, cvPT, cvOA, cvACC = 28, 60, 124, 136, 144, 176, 192
CRING = 98304
def c_setup():
    e(f"s_lshr_b32 s{cQ}, s{sH}, 3"); e(f"s_and_b32 s{cNT}, s{sH}, 7")
    e(f"s_lshl_b32 s{sT}, s{cNT}, 8")
    e(f"s_lshl_b32 s{cWK}, s{sW}, 14"); e(f"s_add_u32 s{cWK}, s{cWK}, s{sT}")
    e(f"s_lshl_b32 s{cWK2}, s{sW}, {15 if OT else 14}"); e(f"s_add_u32 s{cWK2}, s{cWK2}, s{sT}")
    e(f"s_mul_i32 s{sT}, s{cQ}, {896*2048}"); e(f"s_add_u32 s{cWK}, s{cWK}, s{sT}")
    if OT: e(f"s_lshr_b32 s{sT}, s{cQ}, 1"); e(f"s_lshl_b32 s{sT}, s{sT}, 7")
    else: e(f"s_lshl_b32 s{sT}, s{cQ}, 19")
    e(f"s_add_u32 s{cWK2}, s{cWK2}, s{sT}")
    e(f"s_lshl_b32 s{cM0}, s{sW}, 11"); e(f"s_add_u32 s{cM0}, s{cM0}, {CRING}")
    srd(cWt, pWD, 0 if OPT['noW2'] else 3584*2048); srd(cWo, pWO, 0 if OPT['noW2'] else 1024*2048)
    srd(cA, pWSp, 0 if OPT['noA'] else A_BYTES); srd(cOUT, pOUT, 2048*2048)
    e(f"s_lshl_b32 s{sT}, s{sRB}, 4"); e(f"s_lshl_b32 s{cAK}, s{sW}, 1"); e(f"s_add_u32 s{sT}, s{sT}, s{cAK}")
    e(f"s_mul_i32 s{cAK}, s{sT}, {M16}"); e(f"s_add_u32 s{cAK2}, s{cAK}, {56*512}")
    e(f"s_mul_i32 s{sT}, s{cQ}, {72*512}"); e(f"s_add_u32 s{cAK}, s{cAK}, s{sT}")
    e(f"s_and_b32 s{sT}, s{cQ}, 1"); e(f"s_mul_i32 s{sT}, s{sT}, {M16}"); e(f"v_add_u32 v{cvA}, s{sT}, v{vL16}")
    e(f"s_sub_u32 s{sT}, {M16}, s{sT}"); e(f"v_add_u32 v{cvA+1}, s{sT}, v{vL16}")
    e(f"v_lshrrev_b32 v{vT}, 4, v{vL}"); e(f"v_bfe_u32 v{vT+1}, v{vL}, 1, 3"); e(f"v_xor_b32 v{vT+1}, v{vT+1}, v{vT}")
    e(f"v_lshlrev_b32 v{vT}, 11, v{vT}"); e(f"v_lshl_add_u32 v{vT}, v{vT+1}, 5, v{vT}")
    e(f"v_and_b32 v{vT+1}, 1, v{vL}"); e(f"v_lshl_add_u32 v{cvDW}, v{vT+1}, 4, v{vT}")
    e(f"v_xor_b32 v{cvDW+1}, 128, v{cvDW}"); e(f"v_add_u32 v{cvDW+1}, 7168, v{cvDW+1}")
    e(f"v_and_b32 v{cvPL+1}, 7, v{L}"); e(f"v_lshlrev_b32 v{cvPL+1}, 9, v{cvPL+1}")
def c_m0(s): e(f"s_add_u32 m0, s{cM0}, {(s % 4)*16384}")
def c_dma(s, n):
    if s < NH:
        g.vm(f"buffer_load_dwordx4 v{cvDW+n}, {sr(cWt,4)}, s{cWK} offen offset:{n*1024} lds", ('d', s))
        if n == 1: e(f"s_add_u32 s{cWK}, s{cWK}, {64*2048}")
    else:
        g.vm(f"buffer_load_dwordx4 v{(cvDW2 if OT else cvDW)+n}, {sr(cWo,4)}, s{cWK2} offen offset:{n*1024} lds", ('d', s))
        if n == 1: e(f"s_add_u32 s{cWK2}, s{cWK2}, {(128 if OT else 64)*2048}")
def c_aload(s, k):
    if s < NH or not OT:
        ku, mf = k >> 1, k & 1
        g.vm(f"buffer_load_dwordx4 {vr(cvAR+16*(s%D)+4*k,4)}, v{cvA+mf}, {sr(cA,4)}, s{cAK} offen offset:{(s&1)*2048+ku*1024} sc1", ('a', s, k))
        if k == 3 and s & 1: e(f"s_add_u32 s{cAK}, s{cAK}, 4096")
    else:
        g.vm(f"buffer_load_dwordx4 {vr(cvAR+16*(s%D)+4*k,4)}, v{cvA}, {sr(cA,4)}, s{cAK2} offen offset:{k*1024} sc1", ('a', s, k))
        if k == 3: e(f"s_add_u32 s{cAK2}, s{cAK2}, {4096 if (s-NH) % 2 == 0 else 72*512-4096}")
def c_wread(s, n):
    s += n // 16; n %= 16
    if s >= NS: return
    for tr in range(2):
        if s < NH or not OT: a, off = cvRA + (n & 7), (n >> 3)*8192 + tr*2048
        else: a, off = cvRB + (n & 3), (n >> 2)*4096 + tr*1024
        g.lds(f"ds_read_b64_tr_b16 {vr(cvWF+4*(n&7)+2*tr,2)}, v{a} offset:{(s%4)*16384+off}", ('W', n & 7))

g.L += [".globl " + KN, ".p2align 8", f".type {KN},@function"]
g.lab(KN)
e("s_cmp_ge_u32 s2, 256"); e("s_cbranch_scc1 L_end")
e(f"s_load_dwordx16 {sr(sP,16)}, s[0:1], 0"); e(f"s_load_dwordx4 {sr(sP+16,4)}, s[0:1], 64"); e(f"s_load_dwordx2 {sr(sP+20,2)}, s[0:1], 80")
if OPT['stamp']: e(f"s_memtime s[{sST+4}:{sST+5}]"); e(f"s_memrealtime s[{sST+6}:{sST+7}]")
e(f"v_lshrrev_b32 v{vT}, 6, v0"); e(f"v_and_b32 v{vL}, 63, v0"); e(f"v_readfirstlane_b32 s{sW}, v{vT}")
if OPT['amap'] == 0:
    e(f"s_lshr_b32 s{sRB}, s2, 5"); e(f"s_and_b32 s{sH}, s2, 7"); e(f"s_lshl_b32 s{sH}, s{sH}, 2")
    e(f"s_bfe_u32 s{sT}, s2, {(2<<16)|3:#x}"); e(f"s_add_u32 s{sH}, s{sH}, s{sT}")
elif OPT['amap'] == 1:
    e(f"s_and_b32 s{sRB}, s2, 7"); e(f"s_lshr_b32 s{sH}, s2, 3")
elif OPT['amap'] == 2:
    e(f"s_and_b32 s{sRB}, s2, 6"); e(f"s_lshr_b32 s{sT}, s2, 7"); e(f"s_add_u32 s{sRB}, s{sRB}, s{sT}")
    e(f"s_and_b32 s{sH}, s2, 1"); e(f"s_lshl_b32 s{sH}, s{sH}, 4"); e(f"s_bfe_u32 s{sT}, s2, {(4<<16)|3:#x}"); e(f"s_add_u32 s{sH}, s{sH}, s{sT}")
if OPT['amap'] == 3:
    e(f"s_and_b32 s{sRB}, s2, 4"); e(f"s_lshr_b32 s{sT}, s2, 6"); e(f"s_add_u32 s{sRB}, s{sRB}, s{sT}")
    e(f"s_and_b32 s{sH}, s2, 3"); e(f"s_lshl_b32 s{sH}, s{sH}, 3"); e(f"s_bfe_u32 s{sT}, s2, {(3<<16)|3:#x}"); e(f"s_add_u32 s{sH}, s{sH}, s{sT}")
e(f"s_and_b32 s{sMW}, s{sW}, 3"); e(f"s_lshr_b32 s{sNW}, s{sW}, 2")
e(f"s_lshl_b32 s{sLAM}, s{sRB}, 5"); e(f"s_add_u32 s{sLAM}, s{sLAM}, s{sH}")
e(f"v_lshlrev_b32 v{vL16}, 4, v{L}")
e(f"v_lshrrev_b32 v{vT}, 3, v{L}"); e(f"v_lshlrev_b32 v{vT}, 11, v{vT}")
e(f"v_lshrrev_b32 v{vT+1}, 4, v{L}"); e(f"v_and_b32 v{vT+2}, 7, v{L}"); e(f"v_xor_b32 v{vT+1}, v{vT+1}, v{vT+2}")
e(f"v_lshl_add_u32 v{vDX}, v{vT+1}, 4, v{vT}"); e(f"v_xor_b32 v{vDX+1}, 64, v{vDX}")
e(f"v_add_u32 v{vDX+2}, {2*15360}, v{vDX}"); e(f"v_add_u32 v{vDX+3}, {3*15360}, v{vDX+1}"); e(f"v_add_u32 v{vDX+1}, 15360, v{vDX+1}")
def swap23(d, s, t):
    e(f"v_and_b32 v{d}, 0x13, v{s}")
    e(f"v_and_b32 v{t}, 4, v{s}"); e(f"v_lshl_or_b32 v{d}, v{t}, 1, v{d}")
    e(f"v_and_b32 v{t}, 8, v{s}"); e(f"v_lshrrev_b32 v{t}, 1, v{t}"); e(f"v_or_b32 v{d}, v{d}, v{t}")
e(f"v_lshrrev_b32 v{vT}, 2, v{L}"); swap23(vT+1, vT, vT+2)
e(f"v_mul_u32_u24 v{vT+1}, 6144, v{vT+1}")
e(f"v_lshrrev_b32 v{vT}, 3, v{L}"); e(f"v_and_b32 v{vT}, 2, v{vT}"); e(f"v_and_b32 v{vT+2}, 3, v{L}"); e(f"v_xor_b32 v{vT}, v{vT}, v{vT+2}")
e(f"v_lshl_add_u32 v{vDB}, v{vT}, 4, v{vT+1}")
e(f"v_mul_u32_u24 v{vT}, 4682, v0"); e(f"v_lshrrev_b32 v{vT}, 16, v{vT}")
e(f"v_mul_u32_u24 v{vT+3}, 14, v{vT}"); e(f"v_sub_u32 v{vT+3}, v0, v{vT+3}")
swap23(vT+1, vT, vT+2)
e(f"v_mul_u32_u24 v{vT+1}, 7168, v{vT+1}"); e(f"v_lshl_add_u32 v{vDA}, v{vT+3}, 4, v{vT+1}")
e(f"s_lshl_b32 s{sKX}, s{sRB}, 19"); e(f"s_lshl_b32 s{sT}, s{sW}, 16"); e(f"s_add_u32 s{sKX}, s{sKX}, s{sT}")
e(f"s_add_u32 s{sKXE}, s{sKX}, 2048"); e(f"s_lshl_b32 s{sMX}, s{sW}, 12")
e(f"s_mul_i32 s{sOW+1}, s{sH}, 224"); e(f"s_sub_u32 s{sOW}, s{sOW+1}, {32*7168}")
e(f"s_mov_b32 s{sOW+2}, s{sOW}"); e(f"s_mov_b32 s{sOW+3}, s{sOW+1}")
e(f"s_lshl_b32 s{sT}, s{sW}, 10")
for n, o in enumerate((GOFF, GOFF+HALF, UOFF, UOFF+HALF)): e(f"s_add_u32 s{sMWd+n}, s{sT}, {WBASE+o}")
e(f"s_mov_b32 s{sINCA}, {64*7168}")
def qpiece(p):
    half, unit, rg = p // 6, (p % 6) // 2, p % 2
    return (WBASE + half*HALF + unit*2048 + rg*1024, ((-32 + half*32 + rg*16)*6144 + unit*2048) & 0xffffffff)
e(f"s_lshl_b32 s{sT+1}, s{sH}, 6")
e(f"s_add_u32 s{sMWd+4}, s{sT}, {WBASE}")
e(f"s_and_b32 s{sT+2}, s{sW}, 1"); e(f"s_mul_i32 s{sT+2}, s{sT+2}, {16*6144}")
e(f"s_lshr_b32 s{sT+3}, s{sW}, 1"); e(f"s_lshl_b32 s{sT+3}, s{sT+3}, 11"); e(f"s_add_u32 s{sT+2}, s{sT+2}, s{sT+3}")
e(f"s_sub_u32 s{sOW+4}, s{sT+2}, {32*6144}")
for w, p in ((6, 6), (7, 11)):
    l, o = qpiece(p)
    e(f"s_cmp_eq_u32 s{sW}, {w}"); e(f"s_cselect_b32 s{sMWd+4}, {l:#x}, s{sMWd+4}"); e(f"s_cselect_b32 s{sOW+4}, {o:#x}, s{sOW+4}")
e(f"s_add_u32 s{sOW+4}, s{sOW+4}, s{sT+1}")
e("s_waitcnt lgkmcnt(0)")
if OPT['stamp']: e(f"v_writelane_b32 v0, s{sST+4}, 0"); e(f"v_writelane_b32 v0, s{sST+6}, 16")
srd(sX, pX, 0 if OPT['noX'] else 2048*2048)
for n in range(4): a_full('x', n, 0)
srd(sQ, pQKV, 0 if OPT['noW'] else 1024*6144); srd(sA, pWG, 0 if OPT['noW'] else 1024*7168); srd(sB, pWU, 0 if OPT['noW'] else 1024*7168)
e(f"s_cmp_eq_u32 s{sW}, 7"); e("s_cbranch_scc0 LA_not7")
for d in (sA, sB):
    for k in range(3): e(f"s_mov_b32 s{d+k}, s{sQ+k}")
for n in range(4):
    l, o = qpiece(7+n)
    e(f"s_mov_b32 s{sMWd+n}, {l:#x}"); e(f"s_add_u32 s{sOW+n}, s{sT+1}, {o:#x}")
e(f"s_mov_b32 s{sINCA}, {64*6144}"); e(f"v_mov_b32 v{vDA}, v{vDB}")
g.lab("LA_not7")
if OPT['wshift']:
    for n in range(5): e(f"s_add_u32 s{sOW+n}, s{sOW+n}, " + (f"s{sINCA}" if n < 4 else f"{64*6144}"))
for n in range(5): a_full('w', n, 0, True)
srd(sWS, pWSp, WS_SIZE); srd(sDBG, pDBG, 256); srd(sPF, pGW, 2048)
e(f"v_and_b32 v{vT}, 15, v{L}"); e(f"s_lshl_b32 s{sT}, s{sMW}, 6"); e(f"v_add_u32 v{vT}, s{sT}, v{vT}"); e(f"v_lshlrev_b32 v{vT}, 7, v{vT}")
e(f"v_lshrrev_b32 v{vT+1}, 4, v{L}"); e(f"v_bfe_u32 v{vT+2}, v{L}, 1, 3"); e(f"v_xor_b32 v{vT+2}, v{vT+1}, v{vT+2}")
e(f"v_lshl_add_u32 v{vXR}, v{vT+2}, 4, v{vT}"); e(f"v_xor_b32 v{vXR+1}, 64, v{vXR}")
e(f"v_bfe_u32 v{vT}, v{L}, 2, 3")
e(f"v_lshrrev_b32 v{vT+1}, 5, v{L}"); e(f"v_lshl_add_u32 v{vT}, v{vT+1}, 4, v{vT}")
e(f"v_and_b32 v{vT+1}, 3, v{L}"); e(f"v_lshlrev_b32 v{vT+1}, 3, v{vT+1}"); e(f"v_add_u32 v{vT+1}, {WBASE}, v{vT+1}")
e(f"v_mul_u32_u24 v{vWG}, 224, v{vT}"); e(f"v_add_u32 v{vWG}, v{vWG}, v{vT+1}"); e(f"v_add_u32 v{vWG+1}, {WSLOT}, v{vWG}")
e(f"v_lshl_add_u32 v{vWQ}, v{vT}, 6, v{vT+1}"); e(f"v_bfe_u32 v{vT+2}, v{L}, 4, 1"); e(f"v_lshl_add_u32 v{vWQ}, v{vT+2}, 5, v{vWQ}")
e(f"v_xor_b32 v{vWQ+1}, 32, v{vWQ}"); e(f"v_add_u32 v{vWQ+2}, {WSLOT}, v{vWQ}"); e(f"v_add_u32 v{vWQ+3}, {WSLOT}, v{vWQ+1}")
for r in range(vACC, 256): e(f"v_mov_b32 v{r}, 0")
e(f"s_mov_b32 s{sK}, {f32(-LOG2E)}"); e(f"s_mov_b32 s{sK+1}, {f32(-LOG2E)}")
e(f"s_lshl_b32 s{sGO}, s{sLAM}, 3"); e(f"s_add_u32 s{sGO}, s{sGO}, s{sW}"); e(f"s_lshl_b32 s{sGO}, s{sGO}, 11")
srd(sGW, pGW, 2048); e("s_mov_b32 s94, 1.0"); e("s_mov_b32 s95, 1.0")
PD = OPT['PD'] - OPT['pre']; sPB = sT+6
assert OPT['amap'] == 3
e(f"s_lshr_b32 s{sT+1}, s2, 3"); e(f"s_lshr_b32 s{sT+2}, s{sH}, 3")
e(f"v_lshlrev_b32 v{vPF}, 7, v{L}"); e(f"s_mov_b32 s{sT+3}, 0"); e(f"s_mov_b32 s{sCNT}, 0"); e(f"s_mov_b32 s{sPFO}, 0"); e(f"s_mov_b32 s{sPFI}, 0")
e(f"s_mov_b32 s{sPB}, s{pX}"); e(f"s_mov_b32 s{sPB+1}, s{pX+1}")
def pfcase(w, body):
    e(f"s_cmp_lg_u32 s{sW}, {w}"); e(f"s_cbranch_scc1 LA_pf{w}"); body(); g.lab(f"LA_pf{w}")
def base(p, size): e(f"s_mov_b32 s{sPB}, s{p}"); e(f"s_mov_b32 s{sPB+1}, s{p+1}"); e(f"s_mov_b32 s{sCNT}, {size:#x}")
R2 = 2 if OPT['pf2'] else 1
def pf_x():
    base(pX, 2048*2048); e(f"v_and_b32 v{vT}, 31, v{L}"); e(f"v_lshlrev_b32 v{vT}, 11, v{vT}"); e(f"v_lshrrev_b32 v{vPF}, 5, v{L}"); e(f"v_lshl_add_u32 v{vPF}, v{vPF}, 7, v{vT}")
    e(f"s_and_b32 s{sT+4}, s{sH}, 7"); e(f"s_lshl_b32 s{sT+4}, s{sT+4}, 16"); e(f"s_lshl_b32 s{sPFO}, s{sRB}, 19"); e(f"s_add_u32 s{sPFO}, s{sPFO}, s{sT+4}")
    e(f"s_add_u32 s{sPFO}, s{sPFO}, {PD*128}"); e(f"s_mov_b32 s{sPFI}, {128*R2}"); e(f"s_mov_b32 s{sT+3}, {32*R2}")
def pf_gu(p):
    def f():
        base(p, 1024*7168); e(f"v_mul_u32_u24 v{vT}, 4682, v{L}"); e(f"v_lshrrev_b32 v{vT}, 16, v{vT}")
        e(f"v_mul_u32_u24 v{vT+1}, {7168-1792}, v{vT}"); e(f"v_add_u32 v{vPF}, v{vPF}, v{vT+1}")
        e(f"v_lshrrev_b32 v{vT}, 1, v{vT}"); e(f"v_mul_u32_u24 v{vT}, {62*7168}, v{vT}"); e(f"v_add_u32 v{vPF}, v{vPF}, v{vT}")
        e(f"s_mul_i32 s{sPFO}, s{sT+1}, {2*7168}"); e(f"s_mul_i32 s{sT+4}, s{sT+2}, 1792"); e(f"s_add_u32 s{sPFO}, s{sPFO}, s{sT+4}")
        e(f"s_add_u32 s{sPFO}, s{sPFO}, {(64*PD-32)*7168}"); e(f"s_mov_b32 s{sPFI}, {64*7168*R2}"); e(f"s_mov_b32 s{sT+3}, {28*R2}")
    return f
def pf_q():
    base(pQKV, 1024*6144); e(f"v_lshrrev_b32 v{vT}, 2, v{L}"); e(f"v_lshlrev_b32 v{vT}, 11, v{vT}"); e(f"v_and_b32 v{vPF}, 3, v{L}")
    e(f"v_lshl_add_u32 v{vPF}, v{vPF}, 7, v{vT}")
    e(f"v_cmp_le_u32 vcc, 24, v{L}"); e(f"v_add_u32 v{vT}, {62*6144}, v{vPF}"); e("s_nop 0"); e(f"v_cndmask_b32 v{vPF}, v{vPF}, v{vT}, vcc")
    e(f"s_mul_i32 s{sPFO}, s{sT+1}, {2*6144}"); e(f"s_lshl_b32 s{sT+4}, s{sT+2}, 9"); e(f"s_add_u32 s{sPFO}, s{sPFO}, s{sT+4}")
    e(f"s_add_u32 s{sPFO}, s{sPFO}, {(64*PD-32)*6144}"); e(f"s_mov_b32 s{sPFI}, {64*6144*R2}"); e(f"s_mov_b32 s{sT+3}, {24*R2}")
def pf_lin(p, size, nl, st=0):
    def f():
        base(p, size); e(f"s_mul_i32 s{sPFO}, s{sLAM}, {nl*128}"); e(f"s_mov_b32 s{sPFI}, {nl*128*256}"); e(f"s_mov_b32 s{sT+3}, {nl}")
        if st: e(f"s_sub_u32 s{sPFO}, s{sPFO}, {st*nl*128*256}")
    return f
if OPT['pf']:
    if PD > 0: pfcase(6, pf_x); pfcase(1, pf_gu(pWG)); pfcase(2, pf_gu(pWU)); pfcase(3, pf_q)
    pfcase(4, pf_lin(pWD, 3584*2048, OPT['wdn'], OPT['wdst'])); pfcase(5, pf_lin(pWO, 1024*2048, 16, OPT['wdst']))
    if OPT['touch'] & 1: pfcase(6, pf_lin(pWSp, A_BYTES, 64))
    def pf_kv():
        pf_lin(pWSp, WS_KV + (0x1000000 if OPT['touch'] & 4 else 0x800000), 64)(); e(f"s_add_u32 s{sPFO}, s{sPFO}, {WS_KV:#x}")
    if OPT['touch'] & 2: pfcase(7, pf_kv)
e(f"v_cmp_gt_u32 vcc, s{sT+3}, v{L}"); e(f"v_bfrev_b32 v{vT}, 1"); e("s_nop 0"); e(f"v_cndmask_b32 v{vPF}, v{vT}, v{vPF}, vcc")
for n in range(5): a_full('w', n, 1)
e("s_waitcnt vmcnt(5)"); e("s_barrier")
e(f"s_cmp_eq_u32 s{sNW}, 1"); e("s_cbranch_scc1 LA_pre1")
for nw in range(2):
    if nw == 1: g.lab("LA_pre1")
    sq, sv_ = g.steady(lambda: a_body(nw))
    g.q = []
    for i in range(4): a_xread(i, 0)
    for n in range(4): a_wread(nw, n)
    assert [t for t in sv_ if t[0] == 'w'] == [('w', 1, k) for k in range(5)], sv_
    for t in sv_:
        if t[0] == 'x': assert t[1] == 1; a_full('x', t[2], 1)
    assert not any(t[0] == 'p' for t in sv_[sv_.index(('w', 1, 0)):]), sv_
    e(f"s_mov_b32 s{sPF}, s{sPB}"); e(f"s_and_b32 s{sPF+1}, s{sPB+1}, 0xffff"); e(f"s_mov_b32 s{sPF+2}, s{sCNT}")
    for k in range(OPT['pre']): a_op('p', 0, 0)
    e(f"s_mov_b32 s{sCNT}, 8"); e(f"s_mov_b32 s{sOK}, 0")
    stamp('loopA')
    if OPT['prio'] and nw == 1: e("s_setprio 1")
    e("s_waitcnt lgkmcnt(0)")
    g.q = list(sq); g.v = list(sv_)
    g.L.append(".p2align 6"); g.lab(f"LA_loop{nw}")
    a_body(nw); assert g.q == sq and g.v == sv_
    if OPT['tst']:
        e(f"s_memtime s[{sST}:{sST+1}]"); e(f"s_memrealtime s[{sST+2}:{sST+3}]"); e(f"s_sub_u32 s{sST+4}, 10, s{sCNT}"); e(f"s_add_u32 s{sST+5}, s{sST+4}, 16")
        e("s_waitcnt lgkmcnt(0)"); e(f"s_mov_b32 m0, s{sST+4}"); e("s_nop 0"); e(f"v_writelane_b32 v0, s{sST}, m0"); e(f"s_mov_b32 m0, s{sST+5}"); e("s_nop 0"); e(f"v_writelane_b32 v0, s{sST+2}, m0")
    e(f"s_sub_u32 s{sCNT}, s{sCNT}, 1")
    e(f"s_cmp_lg_u32 s{sCNT}, 0"); e(f"s_cbranch_scc1 LA_h1_{nw}")
    sv = g.L; g.L = g.tail
    g.lab(f"LA_h1_{nw}")
    def hook(c, body, w0=False):
        if w0 and nw == 1: return
        e(f"s_cmp_lg_u32 s{sCNT}, {c}"); e(f"s_cbranch_scc1 LA_n{c}_{nw}")
        if w0: e(f"s_cmp_lg_u32 s{sW}, 0"); e(f"s_cbranch_scc1 LA_loop{nw}")
        body(); e(f"s_branch LA_loop{nw}"); g.lab(f"LA_n{c}_{nw}")
    def rec_store():
        for r in range(28, 32): e(f"v_mov_b32 v{r}, 0")
        e(f"v_mov_b32 v26, {CNTLDS}"); e("ds_write_b32 v26, v28")
        e(f"s_lshl_b32 s{sT}, s{sLAM}, 9"); e(f"s_add_u32 s{sT}, s{sT}, {WS_FL:#x}")
        e("s_mov_b32 exec_hi, 0")
        e(f"buffer_store_dwordx4 v[28:31], v{vL16}, {sr(sWS,4)}, s{sT} offen sc1"); e("s_mov_b64 exec, -1")
    def ack():
        e(f"v_mov_b32 v{vT}, 1"); e(f"s_and_b32 s{sT}, s{sLAM}, 1"); e(f"s_lshl_b32 s{sT}, s{sT}, 7")
        one_lane(lambda: e(f"buffer_atomic_add v{vT}, off, {sr(sDBG,4)}, s{sT} sc1"))
    def ld(): e(f"v_and_b32 v{vT}, 1, v{L}"); e(f"v_lshlrev_b32 v{vT}, 7, v{vT}"); e(f"buffer_load_dword v{vCN}, v{vT}, {sr(sDBG,4)}, 0 offen sc1")
    def ts(): e(f"v_cmp_gt_u32 vcc, 128, v{vCN}"); e("s_nop 1"); e("s_cmp_eq_u64 vcc, 0")
    def gate_loads():
        e(f"v_lshlrev_b32 v42, 5, v{L}")
        e(f"buffer_load_dwordx4 {vr(26,4)}, v42, {sr(sX,4)}, s{sGO} offen"); e(f"buffer_load_dwordx4 {vr(30,4)}, v42, {sr(sX,4)}, s{sGO} offen offset:16")
        e(f"buffer_load_dwordx4 {vr(34,4)}, v42, {sr(sGW,4)}, 0 offen"); e(f"buffer_load_dwordx4 {vr(38,4)}, v42, {sr(sGW,4)}, 0 offen offset:16")
    def gate_compute():
        for grp in gate_list(26, 20, 43):
            for x in grp: e(x)
        ld()
    assert OPT['gl'] >= 2
    hook(6, rec_store, True); hook(5, ack, True); hook(OPT['gl'], gate_loads); hook(1, gate_compute)
    e(f"s_branch LA_loop{nw}")
    g.lab(f"LA_slow{nw}")
    spin(f"LA_spin{nw}", ld, ts, sT+3); e(f"s_branch LB_go{nw}")
    g.L = sv
    if OPT['prio'] and nw == 1: e("s_setprio 0")
    stamp('endA')
    U = UNITS[nw]; jkv = 2 if nw == 0 else 0
    if OPT['bprio'] and nw == 1: e("s_setprio 1")
    e("s_waitcnt vmcnt(0) lgkmcnt(0)"); e("s_barrier")
    for i in range(4): pack2(jkv, i)
    e(f"s_lshl_b32 s{sT+4}, s{sLAM}, 15"); e(f"s_add_u32 s{sT+4}, s{sT+4}, {WS_KV:#x}")
    e(f"s_lshl_b32 s{sT+5}, s{sMW}, 13"); e(f"v_add_u32 v{vT+8}, s{sT+5}, v{vL16}")
    e(f"s_add_u32 s{sT+5}, s{sT+5}, s{sT+4}"); e(f"s_add_u32 s{sT+6}, s{sT+5}, 4096")
    if nw == 1:
        for i in range(4):
            a = ACC(0, i); e(f"v_permlane32_swap_b32 v{a}, v{a+2}"); e(f"v_permlane32_swap_b32 v{a+1}, v{a+3}")
    e(f"s_cmp_eq_u32 s{sRB}, 7"); e(f"s_cbranch_scc1 LB_nokvst{nw}")
    for i in range(4):
        e(f"buffer_store_dwordx4 {vr(ACC(jkv,i),4)}, v{vL16}, {sr(sWS,4)}, s{sT+5+(i>>1)} offen offset:{nw*2048+(i&1)*1024}" + ("" if OPT['kvfast'] else " sc1"))
    g.lab(f"LB_nokvst{nw}")
    for i in range(4):
        e(f"ds_write_b128 v{vT+8}, {vr(ACC(jkv,i),4)} offset:{32768+(i>>1)*4096+nw*2048+(i&1)*1024}")
    ts(); e(f"s_cbranch_scc0 LA_slow{nw}")
    g.lab(f"LB_go{nw}")
    vHA = 14; vST = 72; vNB = 208
    e(f"v_and_b32 v{vHA}, 31, v{L}"); e(f"v_lshlrev_b32 v{vHA}, 4, v{vHA}"); e(f"v_lshrrev_b32 v{vT+11}, 5, v{L}")
    e(f"v_mul_u32_u24 v{vT+11}, {M16}, v{vT+11}"); e(f"v_add_u32 v{vHA}, v{vHA}, v{vT+11}")
    e(f"s_lshl_b32 s{sT}, s{sRB}, 4"); e(f"s_lshl_b32 s{sT+1}, s{sMW}, 2"); e(f"s_add_u32 s{sT}, s{sT}, s{sT+1}")
    e(f"s_mul_i32 s{sHB}, s{sT}, {M16}"); e(f"s_mul_i32 s{sT}, s{sH}, {7*512}"); e(f"s_add_u32 s{sHB}, s{sHB}, s{sT}")
    e(f"s_lshr_b32 s{sT}, s{sH}, 3"); e(f"s_lshl_b32 s{sT}, s{sT}, 13"); e(f"s_add_u32 s{sHB}, s{sHB}, s{sT}")
    if nw == 1: e(f"s_add_u32 s{sHB}, s{sHB}, {3*512}")
    e(f"s_add_u32 s{sHB+1}, s{sHB}, {2*M16}")
    e(f"s_lshl_b32 s{sT+7}, s{sLAM}, 9"); e(f"s_add_u32 s{sT+7}, s{sT+7}, {WS_FL:#x}")
    e(f"v_mov_b32 v{vCN}, 1"); e(f"s_mov_b32 s{sDN}, 0")
    if nw == 0:
        e(f"s_cmp_lg_u32 s{sW}, 0"); e("s_cbranch_scc1 LB_nog")
        e(f"v_lshlrev_b32 v{vT}, 2, v{L}"); e(f"v_add_u32 v{vT+1}, {GLDS}, v{vT}"); e("s_mov_b64 exec, 0xff"); e(f"ds_read_b32 v{vT+1}, v{vT+1}"); e("s_waitcnt lgkmcnt(0)")
        e(f"buffer_store_dword v{vT+1}, v{vT}, {sr(sWS,4)}, s{sT+7} offen sc1"); e("s_mov_b64 exec, -1")
        g.lab("LB_nog")
    gus = [j for j in range(10) if U[j][0] == 'g']
    def hst(R, k): e(f"buffer_store_dwordx4 {vr(R,4)}, v{vHA}, {sr(sWS,4)}, s{sHB+(k&1)} offen offset:{(k>>1)*512} sc1")
    def ldK(): e(f"buffer_load_dword v{vT+14}, off, {sr(sWS,4)}, s{sT+3} offset:{FL_KV} sc1")
    def tsK(): e(f"v_readfirstlane_b32 s{sT}, v{vT+14}"); e("s_nop 0"); e(f"s_cmp_eq_u32 s{sT}, 1")
    e(f"s_sub_u32 s{sT+3}, s{sT+7}, {32*512}")
    nk = 2*len(gus); nst = 0
    for k in range(nk):
        j, i = gus[k >> 1], 2*(k & 1)
        R = vST + 4*k if k < 6 else ACC(j, i)
        silu(j, i, vT, R)
        if k <= 5: trysig(nst, CNTLDS, 0, FL_KV, force=(k == 5))
        if k >= 6: hst(R, k); nst += 1
    if nw == 0:
        ldK()
        for i in range(4): pack2(0, i)
        e(f"s_lshl_b32 s{sT}, s{sMW}, 12"); e(f"s_add_u32 s{sT}, s{sT}, {QLDS}"); e(f"v_add_u32 v{vT+9}, s{sT}, v{vL16}")
        for i in range(4): e(f"ds_write_b128 v{vT+9}, {vr(ACC(0,i),4)} offset:{i*1024}")
        e(f"v_mov_b32 v{vT+12}, {CNT2}"); e(f"v_mov_b32 v{vT+13}, 0"); e(f"ds_write_b32 v{vT+12}, v{vT+13}"); e(f"ds_write_b32 v{vT+12}, v{vT+13} offset:4"); e(f"ds_write_b32 v{vT+12}, v{vT+13} offset:8")
    stamp('hdone')
    if nw == 0:
        e(f"s_mov_b32 s{sT+5}, {WS_SIZE:#x}")
        e(f"s_cmp_eq_u32 s{sRB}, 0"); e("s_cbranch_scc1 LB_rb0")
        e("s_waitcnt vmcnt(0)"); tsK(); e("s_cbranch_scc1 LB_spin_ok")
        spin("LB_spin", ldK, tsK, sT+5)
        e(f"s_sub_u32 s{sT+5}, s{sT+4}, {32*32768}")
        g.lab("LB_rb0")
        e(f"s_add_u32 s{sT+6}, s{sT+5}, 4096")
        for f in range(8): e(f"buffer_load_dwordx4 {vr(vNB+4*f,4)}, v{vT+8}, {sr(sWS,4)}, s{sT+5+(f>>2)} offen offset:{(f&3)*1024} sc1")
    stamp('kvok')
    if nw == 0: e("s_branch LB_common")
g.lab("LB_common")
c_setup()
FR = [40, 48, 56, 64, 96, 104]; vQ = 32; vS = 112; vM = 26; vSUM = 28
BIG = 2.0**100
vKA, vVA, vQA, vOA = 8, 9, 10, 11
e(f"v_and_b32 v{vM+1}, 15, v{L}"); e(f"v_lshlrev_b32 v{vM+1}, 4, v{vM+1}"); e(f"v_lshrrev_b32 v{vM+2}, 5, v{L}")
e(f"v_lshl_add_u32 v{vM+1}, v{vM+2}, 8, v{vM+1}"); e(f"v_bfe_u32 v{vM+2}, v{L}, 4, 1")
e(f"v_lshl_add_u32 v{vQA}, v{vM+2}, 10, v{vM+1}"); e(f"v_lshl_add_u32 v{vVA}, v{vM+2}, 9, v{vM+1}")
e(f"v_mul_u32_u24 v{vOA}, {M16}, v{vM+2}"); e(f"v_add_u32 v{vOA}, v{vOA}, v{vM+1}")
e(f"s_lshl_b32 s{sT}, s{sW}, 12"); e(f"v_add_u32 v{vKA}, s{sT}, v{vQA}"); e(f"v_add_u32 v{vVA}, s{sT}, v{vVA}")
e(f"s_lshl_b32 s{sT}, s{sW}, 11"); e(f"s_add_u32 s{sT}, s{sT}, {QLDS}"); e(f"v_add_u32 v{vQA}, s{sT}, v{vQA}")
e(f"s_mov_b32 s{sDN}, 0")
e(f"s_andn2_b32 s{sT+4}, s{sLAM}, 7"); e(f"s_lshl_b32 s{sT+4}, s{sT+4}, 9"); e(f"s_add_u32 s{sT+4}, s{sT+4}, {WS_FL:#x}")
e(f"s_cmp_eq_u32 s{sNW}, 1"); e("s_cbranch_scc1 LB_nokv")
for f in range(8):
    e(f"s_waitcnt vmcnt({7-f})"); e(f"ds_write_b128 v{vT+8}, {vr(vNB+4*f,4)} offset:{f*1024}")
g.lab("LB_nokv")
e("s_waitcnt lgkmcnt(0)"); e("s_barrier")
stamp('bar2')
ORD = [0, 8, 1, 2, 3, 4, 5, 6, 7]
def kread(x):
    t = ORD[x]
    for f in range(2): g.lds(f"ds_read_b128 {vr(FR[x%6]+4*f,4)}, v{vKA} offset:{t*4096+f*512}", ('K', x, f))
def vread(x):
    t = ORD[x]
    for f in range(2): g.lds(f"ds_read_b128 {vr(FR[(x+3)%6]+4*f,4)}, v{vVA} offset:{t*4096+2048+f*1024}", ('V', x, f))
def mx(t, half=None):
    b = vS + 16*t
    for r in range(0, 16, 2):
        if half is not None and (r >> 3) != half: continue
        k = (r >> 1) & 1
        if t == 8 and r < 4: e(f"v_max_f32 v{vM+k}, v{b+r}, v{b+r+1}")
        else: e(f"v_max3_f32 v{vM+k}, v{vM+k}, v{b+r}, v{b+r+1}")
def masked(op):
    for rho in range(16):
        cst = 8*(rho >> 2) + (rho & 3)
        e(f"s_bfm_b32 exec_lo, {cst}, 0"); e(f"s_bfm_b32 exec_hi, {cst+4}, 0"); e(f"{op} v{vS+128+rho}, v{vS+rho}")
    e("s_mov_b64 exec, -1")
def merge():
    masked("v_mov_b32")
    for rho in range(16): e(f"v_mov_b32 v{vS+rho}, 0")
NPRE = OPT['npre']
def ldH(): e(f"buffer_load_dword v{cvPL}, v{cvPL+1}, {sr(sWS,4)}, s{sT+4} offen offset:{FL_H} sc1")
def tsL(): e(f"v_cmp_ne_u32 vcc, 1, v{cvPL}"); e("s_nop 1"); e("s_cmp_eq_u64 vcc, 0")
AFTER = [0]
def event(x):
    for k, p in enumerate(OPT['hpos']):
        if p == x: hst(vST+4*k, k); AFTER[0] = 0
    if max(OPT['hpos']) < x <= OPT['hq']: trysig(AFTER[0], CNT2, 0, FL_H, force=(x == OPT['hq']))
    for k, p in enumerate(OPT['dpos'][:NPRE]):
        if p == x: c_m0(k); e("s_nop 0"); c_dma(k, 0); c_dma(k, 1); AFTER[0] += 2
    if x == OPT['hq']: ldH(); AFTER[0] += 1
assert min(OPT['dpos']) >= 9 and max(OPT['hpos']) >= 8
def s_phase(rb0):
    g.q = []
    for f in range(2): g.lds(f"ds_read_b128 {vr(vQ+4*f,4)}, v{vQA} offset:{f*512}", ('Q', f))
    for x in range(6): kread(x)
    for x in range(9):
        t = ORD[x]
        for f in range(2):
            g.need([('K', x, f), ('Q', f)])
            c = vr(vS+16*t, 16) if f == 1 else "0"
            e(f"{MF32} {vr(vS+16*t,16)}, {vr(FR[x%6]+4*f,4)}, {vr(vQ+4*f,4)}, {c}")
            if not rb0:
                if x == 4 and f == 1: merge()
                if x >= 5: mx(ORD[x-4], f)
        if x + 6 < 9: kread(x+6)
        else: vread(x-3)
        event(x)
    if rb0:
        e(f"s_sub_u32 s{sT}, 8, s{sW}"); e("s_nop 7")
        for t in range(8):
            e(f"s_cmp_le_u32 s{sT}, {t}"); e("s_cbranch_scc1 LB_maskdone")
            for rho in range(16): e(f"v_mov_b32 v{vS+16*t+rho}, {f32(-BIG)}")
        g.lab("LB_maskdone")
        merge()
        for x in range(1, 5): mx(ORD[x])
e(f"s_cmp_eq_u32 s{sRB}, 0"); e("s_cbranch_scc1 LB_s0")
sv = g.L; g.L = g.tail; g.lab("LB_s0"); s_phase(True); e("s_branch LB_sdone"); g.L = sv
s_phase(False)
g.lab("LB_sdone")
for x in range(5, 9): mx(ORD[x])
stamp('sph')
e(f"v_max_f32 v{vM}, v{vM}, v{vM+1}"); e(f"v_mov_b32 v{vM+1}, v{vM}"); e("s_nop 1")
e(f"v_permlane32_swap_b32 v{vM}, v{vM+1}"); e(f"v_max_f32 v{vM}, v{vM}, v{vM+1}")
CC = 32 ** -0.5 * LOG2E
e(f"s_mov_b32 s{sK}, {f32(CC)}"); e(f"s_mov_b32 s{sK+1}, {f32(CC)}")
e(f"v_mul_f32 v{vM}, {f32(-CC)}, v{vM}"); e(f"v_mov_b32 v{vM+1}, v{vM}")
vO = vS + 8
def pbase(t): return vS if t == 0 else vS + 16*t + 8
def soft(t, mid=None):
    b = vS + 16*t
    for r in range(0, 16, 2): e(f"v_pk_fma_f32 {vr(b+r,2)}, {vr(b+r,2)}, {sr(sK,2)}, {vr(vM,2)}")
    if mid: mid()
    for r in range(16): e(f"v_exp_f32 v{b+r}, v{b+r}")
    for r in range(0, 16, 2):
        s = vSUM + 2*((r >> 1) & 1)
        if t == 8 and r < 4: e(f"v_pk_add_f32 {vr(s,2)}, {vr(b+r,2)}, {vr(b+r+4,2)}")
        elif t == 8 and r < 8: pass
        else: e(f"v_pk_add_f32 {vr(s,2)}, {vr(s,2)}, {vr(b+r,2)}")
    if t == 8:
        masked("v_swap_b32")
        for r in range(8): e(f"v_cvt_pk_bf16_f32 v{vS+r}, v{vS+2*r}, v{vS+2*r+1}")
    for r in range(7, -1, -1): e(f"v_cvt_pk_bf16_f32 v{b+8+r}, v{b+2*r}, v{b+2*r+1}")
def pv(x):
    t = ORD[x]
    for f in range(2):
        g.need([('V', x, f)])
        e(f"{MF32} {vr(vO,16)}, {vr(FR[(x+3)%6]+4*f,4)}, {vr(pbase(t)+4*f,4)}, " + ("0" if (x == 0 and f == 0) else vr(vO, 16)))
    if x + 6 < 9: vread(x+6)
event(9); soft(8); event(10); soft(1); e("s_nop 0"); pv(0); pv(1)
for t in range(2, 8):
    event(9+t); soft(t, lambda: pv(t))
e("s_nop 1"); pv(8)
e(f"v_pk_add_f32 {vr(vSUM,2)}, {vr(vSUM,2)}, {vr(vSUM+2,2)}"); e(f"v_add_f32 v{vSUM}, v{vSUM}, v{vSUM+1}")
e(f"v_mov_b32 v{vSUM+1}, v{vSUM}"); e("s_nop 1"); e(f"v_permlane32_swap_b32 v{vSUM}, v{vSUM+1}")
e(f"v_add_f32 v{vSUM}, v{vSUM}, v{vSUM+1}"); e(f"v_rcp_f32 v{vSUM}, v{vSUM}")
e(f"s_lshl_b32 s{sT}, s{sRB}, 4"); e(f"s_lshl_b32 s{sT+1}, s{sW}, 1"); e(f"s_add_u32 s{sT}, s{sT}, s{sT+1}")
e(f"s_lshl_b32 s{sT+1}, s{cNT}, 10"); e(f"s_add_u32 s{sT+1}, s{sT+1}, s{cAK}"); e(f"s_add_u32 s{sT+1}, s{sT+1}, {56*512}")
stamp('pv')
e("s_waitcnt vmcnt(0)"); tsL(); e("s_cbranch_scc0 LC_slowH")
g.lab("LC_goH")
g.v = []
for k in range(4): c_aload(0, k)
for r in range(16): e(f"v_mul_f32 v{vO+r}, v{vO+r}, v{vSUM}")
for r in range(8): e(f"v_cvt_pk_bf16_f32 v{vO+8+7-r}, v{vO+14-2*r}, v{vO+15-2*r}")
dstore([f"buffer_store_dwordx4 {vr(vO+8+4*f,4)}, v{vOA}, {sr(sWS,4)}, s{sT+1} offen offset:{f*512}" for f in range(2)])
stamp('attn')
g.v += ['st', 'st']
e(f"v_bfe_u32 v{vT}, v{L}, 2, 3"); e(f"v_lshrrev_b32 v{vT+1}, 5, v{L}"); e(f"v_lshl_add_u32 v{vT+1}, v{vT+1}, 4, v{vT}")
e(f"v_lshlrev_b32 v{vT+1}, 8, v{vT+1}"); e(f"v_lshl_add_u32 v{vT+1}, v{vT}, 5, v{vT+1}")
e(f"v_and_b32 v{vT}, 3, v{L}"); e(f"v_lshl_add_u32 v{vT+1}, v{vT}, 3, v{vT+1}")
e(f"s_lshr_b32 s{sT}, s{cQ}, 1"); e(f"s_lshl_b32 s{sT}, s{sT}, 7"); e(f"v_xor_b32 v{vT+1}, s{sT}, v{vT+1}"); e(f"v_add_u32 v{cvRA}, {CRING}, v{vT+1}")
for u in range(1, 8): e(f"v_xor_b32 v{cvRA+u}, {32*u}, v{cvRA}")
for p in range(1, OPT['apre']):
    for k in range(4): c_aload(p, k)
e("s_barrier")
SEQ = []
for s in range(NH):
    for ku in range(2):
        us = list(range(8)) if not (s == NH-1 and ku == 1) else [4,5,6,7,0,1,2,3]
        SEQ += [(s, ku, u, (0, 1)) for u in us]
I1 = len(SEQ)
SEQ += [(s, ku, u, (0, 1)) for s in range(NH, NS) for ku in range(2) for u in range(4, 8)]
I2 = len(SEQ)
if OPT['p3']:
    SEQ += [(s, ku, u, (1,)) for s in range(NH, NS) for ku in range(2) for u in range(4)]
    I3 = len(SEQ)
    SEQ += [(s, ku, u, (0,)) for s in range(NH, NS) for ku in range(2) for u in range(4)]
else:
    SEQ += [(s, ku, u, (1, 0)) for s in range(NH, NS) for ku in range(2) for u in range(4)]
    I3 = len(SEQ)
def wread(i):
    if i >= len(SEQ): return
    s, ku, u, _ = SEQ[i]
    for tr in range(2):
        g.lds(f"ds_read_b64_tr_b16 {vr(cvWF+4*(i&7)+2*tr,2)}, v{cvRA+u} offset:{(s%4)*16384+ku*8192+tr*2048}", ('W', i & 7))
g.q = []
for i in range(7): wread(i)
stamp('loopC')
cRD = 48
cvO32, cvRF, cvOUT, cvG = 22, 23, 24, 25
cRV = cvACC + 32
def ldO(): e(f"buffer_load_dword v{cvPL}, v{cvO32}, {sr(sWS,4)}, s54 offen offset:{FL_O} sc1")
def ldR(): e(f"buffer_load_dword v{cvPL}, v{cvRF}, {sr(sWS,4)}, s{sT+6} offen offset:{FL_P} sc1")
def ldR2(): e(f"buffer_load_dword v{cvPL}, off, {sr(sWS,4)}, s{sT+5} offset:{FL_P2} sc1")
def rloads(ii):
    for i in ii:
        e(f"s_add_u32 s{sT}, s{cRD+3}, {i*16384}")
        for f in range(2): e(f"buffer_load_dwordx4 {vr(cRV+8*(i-1)+4*f,4)}, v{vL16}, {sr(sWS,4)}, s{sT} offen offset:{f*1024} sc1")
t0, t1 = vT, vT+1
fill = {s: [] for s in range(NS)}
fill[1] = [[x] for x in (
    f"v_and_b32 v{cvO32}, 31, v{L}", f"v_lshlrev_b32 v{cvO32}, 9, v{cvO32}", f"s_lshl_b32 s54, s{sRB}, 14", f"s_add_u32 s54, s54, {WS_FL:#x}",
    f"v_and_b32 v{t0}, 1, v{L}", f"v_or_b32 v{t0}, 2, v{t0}", f"v_lshlrev_b32 v{t0}, 3, v{t0}", f"s_xor_b32 s{sT+5}, s{sT+7}, {8*512}", f"v_xor_b32 v{t0}, s{sLAM}, v{t0}", f"v_lshlrev_b32 v{cvRF}, 9, v{t0}",
    f"s_mov_b32 s{sT+6}, {WS_FL:#x}", f"s_mov_b32 s{sDN}, 0", f"s_mov_b32 s{sOK+1}, 0")]
fill[2] = [[x] for x in (
    f"s_lshl_b32 s{sT}, s{sRB}, 3", f"s_add_u32 s{sT}, s{sT}, s{cNT}", f"s_lshl_b32 s{sT}, s{sT}, 18", f"s_lshl_b32 s{sT+1}, s{sW}, 11", f"s_add_u32 s{sT}, s{sT}, s{sT+1}", f"s_add_u32 s{sT}, s{sT}, {WS_PART:#x}")]
for i in (1, 2, 3):
    fill[2] += [[x] for x in (f"s_xor_b32 s{sT+1}, s{cQ}, {i}", f"s_lshl_b32 s{sT+1}, s{sT+1}, 16", f"s_add_u32 s{sT+1}, s{sT+1}, s{sT}", f"s_add_u32 s{cRD+i-1}, s{sT+1}, {i*16384}")]
fill[2] += [[x] for x in (f"s_lshl_b32 s{sT+1}, s{cQ}, 16", f"s_add_u32 s{cRD+3}, s{sT+1}, s{sT}",
    f"s_lshl_b32 s{sT}, s{sRB}, 19", f"s_lshl_b32 s{sT+1}, s{sW}, 16", f"s_add_u32 s{sT}, s{sT}, s{sT+1}", f"s_and_b32 s{sT+1}, s{cQ}, 1", f"s_lshl_b32 s{sT+1}, s{sT+1}, 15",
    f"s_add_u32 s{sT}, s{sT}, s{sT+1}", f"s_lshl_b32 s{sT+1}, s{cNT}, 8", f"s_add_u32 s{sT}, s{sT}, s{sT+1}", f"s_lshr_b32 s{sT+1}, s{cQ}, 1", f"s_lshl_b32 s{sT+1}, s{sT+1}, 7",
    f"s_add_u32 s{cRD+4}, s{sT}, s{sT+1}",
    f"v_and_b32 v{cvOUT}, 15, v{L}", f"v_lshlrev_b32 v{cvOUT}, 11, v{cvOUT}", f"v_bfe_u32 v{t0}, v{L}, 4, 1", f"v_lshl_add_u32 v{cvOUT}, v{t0}, 5, v{cvOUT}",
    f"v_lshrrev_b32 v{t0}, 5, v{L}", f"v_lshl_add_u32 v{cvOUT}, v{t0}, 4, v{cvOUT}")]
send = {1: [], 2: [], 3: []}
for i in (1, 2, 3):
    d = cvPT + 8*(i-1)
    for k in range(4):
        a = cvACC + 8*(4*(i >> 1)+k) + 4*(i & 1)
        send[i] += [[f"v_cvt_pk_bf16_f32 v{d+2*k}, v{a}, v{a+1}", f"v_cvt_pk_bf16_f32 v{d+2*k+1}, v{a+2}, v{a+3}"]]
        if k & 1: send[i] += [[f"@S buffer_store_dwordx4 {vr(d+4*(k>>1),4)}, v{vL16}, {sr(sWS,4)}, s{cRD+i-1} offen offset:{(k>>1)*1024} sc1"]]
pa = [(s, k) for s in range(OPT['apre'], NS) for k in range(4)]
pd = [(s, k) for s in range(NPRE, NS) for k in range(2)]
cvG2 = 128
def gload():
    e(f"v_and_b32 v{t0}, 7, v{L}"); e(f"v_bfe_u32 v{t1}, v{L}, 3, 1"); e(f"v_lshlrev_b32 v{t1}, 9, v{t1}"); e(f"v_lshl_add_u32 v{t0}, v{t0}, 2, v{t1}")
    e(f"s_lshl_b32 s{sT}, s{sW}, 1"); e(f"s_and_b32 s{sT+1}, s{cQ}, 1"); e(f"s_add_u32 s{sT}, s{sT}, s{sT+1}"); e(f"s_lshl_b32 s{sT}, s{sT}, 10"); e(f"s_add_u32 s{sT}, s{sT}, s54")
    g.vm(f"buffer_load_dword v{cvG}, v{t0}, {sr(sWS,4)}, s{sT} offen sc1", 'gv')
    if not OT:
        e(f"s_xor_b32 s{sT}, s{sT}, 1024"); g.vm(f"buffer_load_dword v{cvG2+1}, v{t0}, {sr(sWS,4)}, s{sT} offen sc1", 'gv')
if not OT:
    fill[NH-1] = [["@G"], [f"v_mov_b32 v{cvG2}, v{cvG}"]]
    for k in range(2):
        r = cvG2 + k
        fill[NH-1] += [[f"v_max_f32 v{t0}, {f32(2.0**-60)}, v{r}"], [f"v_sub_f32 v{r}, 1.0, v{r}"], [f"v_cvt_pk_bf16_f32 v{r}, v{r}, v{r}"], [f"v_and_b32 v{r}, 0xffff0000, v{r}"],
                       [f"v_rcp_f32 v{t0}, v{t0}", "s_nop 0"], [f"v_mul_f32 v{r}, v{r}, v{t0}"]]
    fill[NH-1] += [[f"v_max_f32 v{cvG}, {f32(2.0**-60)}, v{cvG}"]]
def rescale(u, mf):
    a = cvACC + 8*u + 4*mf
    if OPT['dbg'] & 2:
        for r in range(4): e(f"v_mul_f32 v{a+r}, v{a+r}, v{cvG2+mf}")
        return
    for r in (0, 2): e(f"v_pk_mul_f32 {vr(a+r,2)}, {vr(a+r,2)}, {vr(cvG2,2)} op_sel:[0,{mf}] op_sel_hi:[1,{mf}]")
WIN = [[16, 31, fill[1]], [32, 47, fill[2]], [16*(NH-1), 16*(NH-1)+11, fill[NH-1]], [I2+2, I2+13, send[2]+send[3]]]
if OPT['p3']: WIN.append([I3+4, I3+9, send[1]])
for w in WIN: w.append(len(w[2]))
vis = 0; freed = -1
def nafter(tag): return min(15, len(g.v) - 1 - max(i for i, t in enumerate(g.v) if t == tag)) if tag in g.v else min(15, len(g.v))
for i, (s, ku, u, mfs) in enumerate(SEQ):
    if i == I1: stamp('endH')
    if i == I3: stamp('p3')
    cur = min(s, NH) if i >= I1 else s
    for idx, mf in enumerate(mfs):
        k = 2*ku + mf; a = cvACC + 8*u + 4*mf
        g.need([('W', i & 7)], [('a', s, k)])
        e(f"{MF16} {vr(a,4)}, {vr(cvWF+4*(i&7),4)}, {vr(cvAR+16*(s%D)+4*k,4)}, " + ("0" if i < 8 else vr(a,4)))
        if I1 - 4 <= i < I1 + 4: rescale(SEQ[i-4][2], mf)
        if idx == 0:
            if i + 7 < len(SEQ) and SEQ[i+7][0] > vis:
                vis = SEQ[i+7][0]
                g.need([('W', k) for k in range(8)] if vis <= NH else [], [('d', vis)] + (['st'] if vis == 2 else [])); e("s_barrier")
                if vis == 2:
                    e(f"s_cmp_lg_u32 s{sW}, 0"); e("s_cbranch_scc1 LC_nof1")
                    one_lane(lambda: e(f"buffer_store_dword v{vCN}, off, {sr(sWS,4)}, s{sT+7} offset:{FL_O} sc1"))
                    g.lab("LC_nof1")
            wread(i+7)
            nxt = None
            if i % 2 == 0 or i >= I1:
                okd = pd and pd[0][0] <= (vis + 3 if pd[0][0] == NS-1 else cur + 3); oka = pa and pa[0][0] <= cur + D - 1
                if okd and (not oka or pd[0][0] <= pa[0][0] and (i % 16 % 6 == 2 or pd[0][0] < pa[0][0])): nxt = 'd'
                elif oka: nxt = 'a'
                if nxt == 'd' and pd[0][1] == 0: c_m0(pd[0][0])
        for lo, hi, fl, n0 in WIN:
            if lo <= i <= hi:
                frac = (i - lo + (idx+1)/len(mfs)) / (hi - lo + 1)
                while fl and (n0 - len(fl)) < n0 * frac - 1e-9:
                    for x in fl.pop(0):
                        if x.startswith("@S "): g.vm(x[3:], 'snd')
                        elif x == "@G": g.need([], ['gv'])
                        else: e(x)
        if idx == len(mfs) - 1:
            if nxt == 'd': c_dma(*pd.pop(0))
            elif nxt == 'a':
                if pa[0] == (NH, 0):
                    g.need([], ['opoll']); tsL(); e("s_cbranch_scc0 LC_slowO"); g.lab("LC_goO"); gload()
                c_aload(*pa.pop(0))
            if i == 16*(NH - D - 1) + 1: ldO(); g.v.append('opoll')
            if OPT['dbg'] & 1: continue
            if I2 + 14 <= i < I3 and (i - I2) % 4 == 3: trysig(nafter('snd'), CNT2+4, 0, FL_P, force=(i == I3-1))
            if i == I3 - 1: e(f"s_mov_b32 s{sDN}, 0")
            if OPT['p3']:
                if I3 + 12 <= i < I3 + OPT['rc'] and (i - I3) % 4 == 3: trysig(nafter('snd'), CNT2+8, 0, FL_P2)
                if i == I3 + 10: ldR(); g.v.append('rpoll')
                if i == I3 + OPT['rc']:
                    g.need([], ['rpoll']); trysig(15, CNT2+8, 0, FL_P2, force=True); tsL(); e("s_cbranch_scc0 LC_nor"); rloads((2, 3)); e(f"s_mov_b32 s{sOK+1}, 1"); g.lab("LC_nor")
assert not pa and not pd and not any(w[2] for w in WIN)
g.lab("LC_done")
sv = g.L; g.L = g.tail
g.lab("LC_slowO"); spin("LC_spinO", ldO, tsL, sT+3); e("s_branch LC_goO")
g.lab("LC_slowH"); spin("LC_spinH", ldH, tsL, sT+3); e("s_branch LC_goH")
g.lab("LC_slowR"); spin("LC_spinR", ldR, tsL, sT+3); rloads((2, 3)); e("s_branch LC_goR")
g.L = sv
stamp('endC')
if not OPT['p3']:
    e("s_nop 3")
    for grp in send[1]:
        for x in grp: e(x[3:] if x.startswith("@S ") else x)
    ldR()
    trysig(1, CNT2+8, 0, FL_P2, force=True)
    e("s_waitcnt vmcnt(1)" if False else "s_waitcnt vmcnt(0)"); tsL(); e("s_cbranch_scc0 LC_slowR"); rloads((2, 3)); e("s_branch LC_goR")
if OPT['dbg'] & 1:
    e("s_nop 15"); trysig(0, CNT2+4, 0, FL_P, force=True); e(f"s_mov_b32 s{sDN}, 0"); trysig(0, CNT2+8, 0, FL_P2, force=True)
e(f"s_cmp_eq_u32 s{sOK+1}, 0"); e("s_cbranch_scc1 LC_slowR")
g.lab("LC_goR")
spin("LC_spinR2", ldR2, tsL, sT+3); rloads((1,))
e(f"v_mov_b32 v{vT+4}, 0x3f80"); e(f"v_mov_b32 v{vT+5}, 0x3f800000")
if OT:
    e(f"v_sub_f32 v{vT+2}, 1.0, v{cvG}"); e(f"v_cvt_pk_bf16_f32 v{vT+2}, v{vT+2}, v{vT+2}"); e(f"v_and_b32 v{vT+2}, 0xffff0000, v{vT+2}")
    for r in range(16): e(f"v_mul_f32 v{cvOA+r}, v{cvG}, v{cvOA+r}")
for i in (2, 3, 1):
    if i == 1: e("s_waitcnt vmcnt(0)")
    d = cRV + 8*(i-1)
    for k in range(4):
        a = cvACC + 8*k
        for r in range(4): e(f"v_dot2_f32_bf16 v{a+r}, v{d+2*k+(r>>1)}, v{vT+4+(r&1)}, v{a+r}")
e("s_nop 2")
for pr in range(2):
    for k in (2*pr, 2*pr+1):
        for r in range(4): e(f"v_fmac_f32 v{cvOA+4*k+r}, v{vT+2}, v{cvACC+8*k+r}" if OT else f"v_mul_f32 v{cvOA+4*k+r}, v{cvG}, v{cvACC+8*k+r}")
    x = cvOA + 8*pr; y = x + 4; d = cvPT + 24 + 4*pr
    e(f"v_cvt_pk_bf16_f32 v{d}, v{x}, v{x+1}"); e(f"v_cvt_pk_bf16_f32 v{d+1}, v{x+2}, v{x+3}")
    e(f"v_cvt_pk_bf16_f32 v{d+2}, v{y}, v{y+1}"); e(f"v_cvt_pk_bf16_f32 v{d+3}, v{y+2}, v{y+3}")
    e("s_nop 1")
    e(f"v_permlane16_swap_b32 v{d}, v{d+2}"); e(f"v_permlane16_swap_b32 v{d+1}, v{d+3}")
    e(f"buffer_store_dwordx4 {vr(d,4)}, v{cvOUT}, {sr(cOUT,4)}, s{cRD+4} offen offset:{pr*64}")
g.lab("LC_fin")
stamp('fin')
if OPT['stamp']:
    e(f"s_lshl_b32 s{sT}, s2, 3"); e(f"s_add_u32 s{sT}, s{sT}, s{sW}"); e(f"s_lshl_b32 s{sT}, s{sT}, 7"); e(f"s_add_u32 s{sT}, s{sT}, {WS_STAMP:#x}")
    e(f"v_lshlrev_b32 v{vT}, 2, v{L}"); e("s_mov_b32 exec_hi, 0")
    e(f"buffer_store_dword v0, v{vT}, {sr(sWS,4)}, s{sT} offen")
    if OPT['stamp'] == 2:
        e(f"v_readlane_b32 s{sT}, v0, 16"); e(f"s_not_b32 s{sT}, s{sT}"); e(f"v_writelane_b32 v0, s{sT}, 16")
        e(f"v_subrev_u32 v{vT}, 60, v{vT}"); e(f"s_mov_b32 exec_lo, {((1<<len(SN))-1)<<16:#x}")
        e(f"buffer_atomic_umax v0, v{vT}, {sr(sDBG,4)}, 0 offen sc1")
g.lab("L_end")
e("s_endpgm")
g.L += g.tail + g.tail2
if OPT['nobar'] or OPT['nodma'] or OPT['nolds'] or OPT['noadv']:
    o = []; inl = False
    for l in g.L:
        if l.startswith('LA_loop') or l.startswith('LC_loop'): inl = True
        if 'LA_h1_' in l or l.startswith('LC_done'): inl = False
        if inl and OPT['nobar'] and 's_barrier' in l: continue
        if inl and OPT['nodma'] and 'buffer_load' in l: continue
        if inl and OPT['nolds'] and 'ds_read' in l: continue
        if inl and OPT['noadv'] and any(f's_add_u32 s{k}, s{k},' in l for k in list(range(sOW, sOW+5)) + [sKX]): continue
        o.append(l)
    g.L = o

hdr = [l.rstrip('\n') for l in open("cdna_kernels/%s.s.ref" % NAME)]
hdr = [l for l in hdr if l.startswith(';') and '@launch' not in l]
out = hdr + [f"; @launch grid=(256,1,1) block=(512,1,1) lds={LDS_BYTES}", '.amdgcn_target "amdgcn-amd-amdhsa--gfx950"', ".text"] + g.L
out += ['.section .rodata,"a"', ".p2align 6", f""".amdhsa_kernel {KN}
  .amdhsa_next_free_vgpr 256
  .amdhsa_next_free_sgpr 102
  .amdhsa_accum_offset 256
  .amdhsa_group_segment_fixed_size 0
  .amdhsa_kernarg_size 88
  .amdhsa_user_sgpr_count 2
  .amdhsa_user_sgpr_kernarg_segment_ptr 1
  .amdhsa_system_sgpr_workgroup_id_x 1
.end_amdhsa_kernel"""]
out.insert(0, "; stamps: " + ",".join(SN)) if OPT['stamp'] else None
open(sys.argv[1], "w").write("\n".join(out) + "\n")
import hazard
errs = hazard.check("\n".join(g.L))
print("\n".join(errs) if errs else "hazard check clean")
```

```python
import sys, struct
NAME = "gated_mix__sliding_block__swiglu_ffn__prompt"
KN = NAME + "_kernel"
OPT = dict(stamp=0, NP=16, jbx=5, xrd=[0,0,1,1], xpos=[2,4,6,8], wpos=[1,3,5,7,9], pfpos=19, stag=0, PD=3, pf=1, CB=1, defer=0, slp=2, touch=0, pfnt=0, wnt=0, bprio=0, amap=3, fast=0, D=4, npre=3, apre=1, hpos=[0,1,2,4,6,8], dpos=[10,11,12,13], fr=5, hx=0, fnt=1, cpf=3, h0=2, nopk=0, pf2=0, wdst=4, wdn=24, otail=0, gl=2, p3=0, rc=24, dbg=2, hq=15, early1=2, snake=0, tst=0, wshift=0, noadv=0, aflag='sc1', kvfast=0, rfast=0, pfast=1, wb=0, pre=0, cmap=1, m16=288*512, c3=0, kvs1=1, cprio=0, AB=0,
           noX=0, noW=0, noA=0, noW2=0, prio=0, kvs=2, nobar=0, nodma=0, nolds=0)
for a in sys.argv[2:]:
    k, v = a.split('='); assert k in OPT, k
    OPT[k] = eval(v)
def f32(x): return "0x%08x" % struct.unpack('<I', struct.pack('<f', x))[0]
def vr(a, n=1): return f"v[{a}:{a+n-1}]" if n > 1 else f"v{a}"
def sr(a, n=1): return f"s[{a}:{a+n-1}]" if n > 1 else f"s{a}"
NV = [0]
class Gen:
    def __init__(s): s.L = []; s.q = []; s.v = []; s.tail = []; s.tail2 = []
    def e(s, t): s.L.append("    " + t)
    def lab(s, t): s.L.append(t + ":")
    def lds(s, t, tag): s.e(t); s.q.append(tag)
    def vm(s, t, tag): s.e(t); s.v.append(tag); NV[0] += 1
    def need(s, tags=(), vt=()):
        w = []
        idx = [i for i, t in enumerate(s.v) if t in vt]
        if idx:
            n = len(s.v) - 1 - max(idx); s.v = s.v[max(idx)+1:]; assert n < 64
            w.append(f"vmcnt({n})")
        idx = [i for i, t in enumerate(s.q) if t in tags]
        if idx:
            n = len(s.q) - 1 - max(idx); s.q = s.q[max(idx)+1:]
            w.append(f"lgkmcnt({min(n,15)})")
        if w: s.e("s_waitcnt " + " ".join(w))
    def steady(s, body):
        sv = s.L; s.L = []; s.q = []; s.v = []
        body(); body(); r = (list(s.q), list(s.v)); s.L = sv
        return r
g = Gen(); e = g.e
M16 = OPT['m16']; A_BYTES = 128*M16
WS_KV = 0x1400000; WS_PART = 0x1C00000; WS_G = 0x2C00000; WS_FL = 0x2C10000; WS_STAMP = 0x3000000; WS_SIZE = 0x4000000
FL_KV, FL_H, FL_O, FL_P, FL_P2 = 128, 256, 260, 384, 388
sFAST = 34+1
LOG2E = 1.4426950408889634
SPIN = 0x8000
MF16 = "v_mfma_f32_16x16x32_bf16"; MF32 = "v_mfma_f32_32x32x16_bf16"
sW, sRB, sH, sMW, sNW = 3, 4, 5, 6, 7
sX, sA, sB, sQ, sWS, sDBG, sPF = 8, 12, 16, 20, 24, 28, 32
sKX, sOW, sMWd, sINCA, sMX, sCNT, sKXE, sPFO, sPFI, sLAM, sOK, sGO = 36, 37, 42, 47, 48, 49, 50, 51, 52, 53, 54, 55
sT = 56; sP = 64; sST = 86
pX, pQKV, pWO, pWG, pWU, pWD, pGW, pOUT, pDBG, pWSp = sP, sP+2, sP+4, sP+8, sP+10, sP+12, sP+14, sP+16, sP+18, sP+20
sFAST = 101
sK = sP+6
vL, vL16, vPF, vDX, vDA, vDB, vXR, vWG, vWQ, vDUM, vCN, vGV, vT = 1, 2, 3, 4, 8, 9, 10, 12, 14, 18, 19, 20, 26
vWF, vXF, vACC = 44, 64, 96
L = vL
def ACC(j, i): return vACC + (4*j+i)*4
XSLOT = 32768; WBASE = 65536; HALF = 20480; WSLOT = 2*HALF; GOFF = 6144; UOFF = 6144+7168
LDS_BYTES = 163840; QLDS = 65536; CNTLDS = 163832; CNT2 = 81920; GLDS = 163776; sGW = 96
UNITS = [['q0','q1','k0','k1','g0','u0','g1','u1','g2','u2'], ['v0','v1','g3','u3','g4','u4','g5','u5','g6','u6']]
def srd(d, p, size):
    e(f"s_mov_b32 s{d}, s{p}"); e(f"s_and_b32 s{d+1}, s{p+1}, 0xffff"); e(f"s_mov_b32 s{d+2}, {size:#x}"); e(f"s_mov_b32 s{d+3}, 0x20000")
SN = ['start','loopA','endA','ks','hdone','kvok','bar2','sph','hs','pv','attn','loopC','endH','rs','endC','fin']
SN = ['start','loopA','ks','endA','hdone','kvok','bar2','sph','hs','pv','loopC','endH','rs','endC','rs2','fin']
if OPT['tst']: SN = ['start','loopA'] + [f't{i}' for i in range(7)] + ['endA', 'fin']
def stamp(name):
    if OPT['tst'] and name not in ('loopA', 'endA', 'fin'): return
    if name not in SN: return
    idx = SN.index(name); assert idx < 16
    if not OPT['stamp']: return
    e(f"s_memtime s[{sST}:{sST+1}]"); e(f"s_memrealtime s[{sST+2}:{sST+3}]"); e("s_waitcnt lgkmcnt(0)")
    e(f"v_writelane_b32 v0, s{sST}, {idx}"); e(f"v_writelane_b32 v0, s{sST+2}, {idx+16}")
def pstamp(k):
    if OPT['stamp']: e(f"s_memtime s[{92+2*k}:{93+2*k}]")
NDS = [0]
def dstore(lines, on=True):
    if True:
        for l in lines: e(l + " sc1")
        return
    k = NDS[0]; NDS[0] += 1
    e(f"s_cmp_eq_u32 s{sFAST}, 1"); e(f"s_cbranch_scc0 LS_s{k}")
    for l in lines: e(l)
    g.lab(f"LS_r{k}")
    g.tail2 += [f"LS_s{k}:"] + ["    " + l + " sc1" for l in lines] + [f"    s_branch LS_r{k}"]
def one_lane(f):
    e("s_mov_b64 exec, 1"); f(); e("s_mov_b64 exec, -1")

def a_wread(nw, n, tj=None):
    n %= 40; t = n // 10; j = n % 10
    if tj: t, j = tj
    sig = (t+1) >> 1; half = (t+1) & 1; slot = sig & 1; un = UNITS[nw][j]
    for tr in range(2):
        if un[0] in 'qkv':
            a = vWQ + 2*slot + int(un[1]); off = half*HALF + 'qkv'.index(un[0])*2048 + tr*512
        else:
            a = vWG + slot; off = half*HALF + (GOFF if un[0] == 'g' else UOFF) + tr*1792 + int(un[1])*32
        g.lds(f"ds_read_b64_tr_b16 {vr(vWF+4*(n%5)+2*tr,2)}, v{a} offset:{off}", ('W', n % 5))
def a_xread(i, t):
    t %= 4
    g.lds(f"ds_read_b128 {vr(vXF+16*(t&1)+4*i,4)}, v{vXR+(t&1)} offset:{(t>>1)*XSLOT+i*2048}", ('X', t & 1, i))
def a_m0(k, n, slot):
    if k == 'x': e(f"s_add_u32 m0, s{sMX}, {slot*XSLOT}")
    elif k == 'w': e(f"s_add_u32 m0, s{sMWd+n}, {slot*WSLOT}")
def a_op(k, n, slot, first=False):
    if k == 'x':
        g.vm(f"buffer_load_dwordx4 v{vDX+n}, {sr(sX,4)}, s{sKX} offen offset:{1024*n} lds", ('x', slot, n))
        if n == 3:
            e(f"s_add_u32 s{sKX}, s{sKX}, 128")
    elif k == 'w':
        d = [sA, sA, sB, sB, sQ][n]; v = vDA if n < 4 else vDB
        if first: e(f"s_cmp_lt_i32 s{sOW+n}, 0"); e(f"s_cbranch_scc1 LA_skipw{n}")
        g.vm(f"buffer_load_dwordx4 v{v}, {sr(d,4)}, s{sOW+n} offen" + (" nt" if (OPT['wnt'] & 1 or (first and OPT['fnt'])) else "") + " lds", ('w', slot, n))
        if first: g.lab(f"LA_skipw{n}")
        e(f"s_add_u32 s{sOW+n}, s{sOW+n}, " + (f"s{sINCA}" if n < 4 else f"{64*6144}"))
    else:
        g.vm(f"buffer_load_dword v{vDUM}, v{vPF}, {sr(sPF,4)}, s{sPFO} offen" + (" nt" if OPT['wnt'] & 2 and NWCUR[0] == 0 else ""), ('p', 0, 0))
        e(f"s_add_u32 s{sPFO}, s{sPFO}, s{sPFI}")
def a_full(k, n, slot, first=False):
    a_m0(k, n, slot)
    if not first: e("s_nop 0")
    a_op(k, n, slot, first)
JBW = 6
def a_events(nw):
    ev = {}; st = OPT['stag']*nw
    for t in (1, 3):
        for n, o in enumerate(OPT['xpos']): assert 0 <= o+st < 20; ev.setdefault((t*10+OPT['jbx']+o+st) % 40, []).append(('x', n, t >> 1))
    for t in (0, 2):
        for n, o in enumerate(OPT['wpos']): assert 0 <= o+st < 20; ev.setdefault((t*10+JBW+o+st) % 40, []).append(('w', n, t >> 1))
        if OPT['pf']: ev.setdefault((t*10+JBW+OPT['pfpos']-st) % 40, []).append(('p', 0, 0))
    return ev
NWCUR = [0]
def a_body(nw):
    NWCUR[0] = nw
    ev = a_events(nw)
    for t in range(4):
        for j in range(10):
            n = t*10 + j; un = UNITS[nw][j]; evs = ev.get(n, [])
            for i in range(4):
                i2 = 3-i if (OPT['snake'] and j & 1) else i
                g.need([('W', n % 5), ('X', t & 1, i2)])
                a, b = vr(vWF+4*(n % 5), 4), vr(vXF+16*(t & 1)+4*i2, 4)
                if un[0] == 'v': a, b = b, a
                e(f"{MF16} {vr(ACC(j,i2),4)}, {a}, {b}, {vr(ACC(j,i2),4)}")
                if i == 0:
                    if t % 2 == 0 and j == JBW:
                        g.need([('W', k) for k in range(5)], [('w', 1-(t >> 1), k) for k in range(5)]); e("s_barrier")
                    if t % 2 == 1 and j == OPT['jbx']:
                        g.need([], [('x', 1-(t >> 1), k) for k in range(4)]); e("s_barrier")
                    a_wread(nw, n+4)
                if i == 1:
                    for ii in range(4):
                        if OPT['jbx'] + OPT['xrd'][ii] == j: a_xread(ii, t+1)
                    if evs: a_m0(*evs[0])
                if i == 2 and evs:
                    a_op(*evs[0])
                    for x in evs[1:]: a_full(*x)

def silu(jg, i, t, R):
    G = ACC(jg, i); U = ACC(jg+1, i)
    for r in range(0, 8, 2): e(f"v_pk_mul_f32 {vr(t+r,2)}, {vr(G+r,2)}, {sr(sK,2)}")
    for r in range(8): e(f"v_exp_f32 v{t+r}, v{t+r}")
    for r in range(0, 8, 2): e(f"v_pk_mul_f32 {vr(G+r,2)}, {vr(G+r,2)}, {vr(U+r,2)}")
    for r in range(0, 8, 2): e(f"v_pk_add_f32 {vr(t+r,2)}, {vr(t+r,2)}, s[94:95]")
    for r in range(8): e(f"v_rcp_f32 v{t+r}, v{t+r}")
    e("s_nop 0")
    for r in range(0, 8, 2): e(f"v_pk_mul_f32 {vr(G+r,2)}, {vr(G+r,2)}, {vr(t+r,2)}")
    for r in range(4): e(f"v_cvt_pk_bf16_f32 v{R+r}, v{G+2*r}, v{G+2*r+1}")
    e("s_nop 1")
    e(f"v_permlane32_swap_b32 v{R}, v{R+2}"); e(f"v_permlane32_swap_b32 v{R+1}, v{R+3}")
def pack2(j, i):
    a, b = ACC(j, i), ACC(j+1, i)
    e(f"v_cvt_pk_bf16_f32 v{a}, v{a}, v{a+1}"); e(f"v_cvt_pk_bf16_f32 v{a+1}, v{a+2}, v{a+3}")
    e(f"v_cvt_pk_bf16_f32 v{a+2}, v{b}, v{b+1}"); e(f"v_cvt_pk_bf16_f32 v{a+3}, v{b+2}, v{b+3}")
def spin(name, load, test, cnt):
    e(f"s_mov_b32 s{cnt}, {SPIN:#x}")
    g.lab(name)
    load(); e("s_waitcnt vmcnt(0)"); test()
    e(f"s_cbranch_scc1 {name}_ok")
    e(f"s_sub_u32 s{cnt}, s{cnt}, 1"); e(f"s_cbranch_scc1 {name}_ok")
    e(f"s_sleep {OPT['slp']}"); e(f"s_branch {name}")
    g.lab(name + "_ok")
NSIG = [0]
sDN, sHB, sFO = 100, 92, 101
vSG = 20
def trysig(n, ldsaddr, flagadd, flagoff, force=False):
    k = NSIG[0]; NSIG[0] += 1
    if force: e(f"s_cmp_eq_u32 s{sDN}, 0")
    else:
        e(f"s_getreg_b32 s{sFO}, hwreg(HW_REG_IB_STS)"); e(f"s_and_b32 s{sFO}, s{sFO}, 0xc0000f"); e(f"s_or_b32 s{sFO}, s{sFO}, s{sDN}"); e(f"s_cmp_le_u32 s{sFO}, {n}")
    e(f"s_cbranch_scc1 LG_s{k}"); g.lab(f"LG_r{k}")
    g.tail2 += [f"LG_s{k}:"] + ["    " + x for x in (
        f"v_mov_b32 v{vSG}, {ldsaddr}", f"s_mov_b32 s{sDN}, 0x10000", "s_mov_b64 exec, 1", f"s_waitcnt vmcnt({n})",
        f"ds_add_rtn_u32 v{vSG+1}, v{vSG}, v{vCN}", "s_waitcnt lgkmcnt(0)", f"v_readfirstlane_b32 s{sFO}, v{vSG+1}", "s_nop 1",
        f"s_cmp_lg_u32 s{sFO}, 7", f"s_cbranch_scc1 LG_x{k}", f"s_add_u32 s{sFO}, s{sT+7}, {flagadd}",
        f"buffer_store_dword v{vCN}, off, {sr(sWS,4)}, s{sFO} offset:{flagoff} sc1")] + [f"LG_x{k}:", "    s_mov_b64 exec, -1"]
    sv = g.L; g.L = g.tail2; stamp({FL_KV:'ks',FL_H:'hs',FL_P:'rs',FL_P2:'rs2'}[flagoff]); e(f"s_branch LG_r{k}"); g.L = sv
def gate_list(X, t, one):
    o = [[f"v_mov_b32 v{t+5}, 0"], [f"v_mov_b32 v{one}, 0x3f803f80"]]
    for d in range(8):
        o += [[f"v_lshlrev_b32 v{t}, 16, v{X+d}"], [f"v_and_b32 v{t+1}, 0xffff0000, v{X+d}"], [f"v_lshlrev_b32 v{t+2}, 16, v{X+8+d}"],
              [f"v_and_b32 v{t+3}, 0xffff0000, v{X+8+d}"], [f"v_pk_mul_f32 {vr(t,2)}, {vr(t,2)}, {vr(t+2,2)}"], [f"v_cvt_pk_bf16_f32 v{X+d}, v{t}, v{t+1}"]]
    for d in range(8): o.append([f"v_dot2_f32_bf16 v{t+5}, v{X+d}, v{one}, v{t+5}"])
    o.append(["s_nop 1"])
    for m in ("quad_perm:[1,0,3,2] row_mask:0xf", "quad_perm:[2,3,0,1] row_mask:0xf", "row_half_mirror row_mask:0xf",
              "row_mirror row_mask:0xf", "row_bcast:15 row_mask:0xa", "row_bcast:31 row_mask:0xc"):
        o.append(["s_nop 1", f"v_add_f32_dpp v{t+5}, v{t+5}, v{t+5} {m} bank_mask:0xf"])
    o += [[f"v_cvt_pk_bf16_f32 v{t}, v{t+5}, v{t+5}", f"v_and_b32 v{t}, 0xffff0000, v{t}"], [f"v_mul_f32 v{t}, {f32(-LOG2E)}, v{t}", f"v_exp_f32 v{t}, v{t}", "s_nop 0"],
          [f"v_add_f32 v{t}, 1.0, v{t}", f"v_rcp_f32 v{t}, v{t}", "s_nop 0"], [f"v_cvt_pk_bf16_f32 v{t}, v{t}, v{t}", f"v_and_b32 v{t}, 0xffff0000, v{t}"],
          [f"s_lshl_b32 s{sT}, s{sW}, 2", f"s_add_u32 s{sT}, s{sT}, {GLDS}", f"v_mov_b32 v{t+1}, s{sT}"],
          ["s_mov_b32 exec_lo, 0", "s_brev_b32 exec_hi, 1", f"ds_write_b32 v{t+1}, v{t}", "s_mov_b64 exec, -1"]]
    return o

D = OPT['D']; NH = 14; OT = OPT['otail']; NT = 8 if OT else 4; NS = NH + NT
cA, cWt, cOUT, cWo, cX = 8, 12, 16, 32, 40
cAK, cWK, cWK2, cQ, cNT, cM0, cAK2 = 20, 21, 22, 23, 36, 37, 38
cvDW, cvA, cvPL, cvDW2 = 4, 6, 16, 20
cvWF, cvAR, cvRB, cvRA, cvPT, cvOA, cvACC = 28, 60, 124, 136, 144, 176, 192
CRING = 98304
def c_setup():
    e(f"s_lshr_b32 s{cQ}, s{sH}, 3"); e(f"s_and_b32 s{cNT}, s{sH}, 7")
    e(f"s_lshl_b32 s{sT}, s{cNT}, 8")
    e(f"s_lshl_b32 s{cWK}, s{sW}, 14"); e(f"s_add_u32 s{cWK}, s{cWK}, s{sT}")
    e(f"s_lshl_b32 s{cWK2}, s{sW}, {15 if OT else 14}"); e(f"s_add_u32 s{cWK2}, s{cWK2}, s{sT}")
    e(f"s_mul_i32 s{sT}, s{cQ}, {896*2048}"); e(f"s_add_u32 s{cWK}, s{cWK}, s{sT}")
    if OT: e(f"s_lshr_b32 s{sT}, s{cQ}, 1"); e(f"s_lshl_b32 s{sT}, s{sT}, 7")
    else: e(f"s_lshl_b32 s{sT}, s{cQ}, 19")
    e(f"s_add_u32 s{cWK2}, s{cWK2}, s{sT}")
    e(f"s_lshl_b32 s{cM0}, s{sW}, 11"); e(f"s_add_u32 s{cM0}, s{cM0}, {CRING}")
    srd(cWt, pWD, 0 if OPT['noW2'] else 3584*2048); srd(cWo, pWO, 0 if OPT['noW2'] else 1024*2048)
    srd(cA, pWSp, 0 if OPT['noA'] else A_BYTES); srd(cOUT, pOUT, 2048*2048)
    e(f"s_lshl_b32 s{sT}, s{sRB}, 4"); e(f"s_lshl_b32 s{cAK}, s{sW}, 1"); e(f"s_add_u32 s{sT}, s{sT}, s{cAK}")
    e(f"s_mul_i32 s{cAK}, s{sT}, {M16}"); e(f"s_add_u32 s{cAK2}, s{cAK}, {56*512}")
    e(f"s_mul_i32 s{sT}, s{cQ}, {72*512}"); e(f"s_add_u32 s{cAK}, s{cAK}, s{sT}")
    e(f"s_and_b32 s{sT}, s{cQ}, 1"); e(f"s_mul_i32 s{sT}, s{sT}, {M16}"); e(f"v_add_u32 v{cvA}, s{sT}, v{vL16}")
    e(f"s_sub_u32 s{sT}, {M16}, s{sT}"); e(f"v_add_u32 v{cvA+1}, s{sT}, v{vL16}")
    e(f"v_lshrrev_b32 v{vT}, 4, v{vL}"); e(f"v_bfe_u32 v{vT+1}, v{vL}, 1, 3"); e(f"v_xor_b32 v{vT+1}, v{vT+1}, v{vT}")
    e(f"v_lshlrev_b32 v{vT}, 11, v{vT}"); e(f"v_lshl_add_u32 v{vT}, v{vT+1}, 5, v{vT}")
    e(f"v_and_b32 v{vT+1}, 1, v{vL}"); e(f"v_lshl_add_u32 v{cvDW}, v{vT+1}, 4, v{vT}")
    e(f"v_xor_b32 v{cvDW+1}, 128, v{cvDW}"); e(f"v_add_u32 v{cvDW+1}, 7168, v{cvDW+1}")
    e(f"v_and_b32 v{cvPL+1}, 7, v{L}"); e(f"v_lshlrev_b32 v{cvPL+1}, 9, v{cvPL+1}")
def c_m0(s): e(f"s_add_u32 m0, s{cM0}, {(s % 4)*16384}")
def c_dma(s, n):
    if s < NH:
        g.vm(f"buffer_load_dwordx4 v{cvDW+n}, {sr(cWt,4)}, s{cWK} offen offset:{n*1024} lds", ('d', s))
        if n == 1: e(f"s_add_u32 s{cWK}, s{cWK}, {64*2048}")
    else:
        g.vm(f"buffer_load_dwordx4 v{(cvDW2 if OT else cvDW)+n}, {sr(cWo,4)}, s{cWK2} offen offset:{n*1024} lds", ('d', s))
        if n == 1: e(f"s_add_u32 s{cWK2}, s{cWK2}, {(128 if OT else 64)*2048}")
def c_aload(s, k):
    if s < NH or not OT:
        ku, mf = k >> 1, k & 1
        g.vm(f"buffer_load_dwordx4 {vr(cvAR+16*(s%D)+4*k,4)}, v{cvA+mf}, {sr(cA,4)}, s{cAK} offen offset:{(s&1)*2048+ku*1024} sc1", ('a', s, k))
        if k == 3 and s & 1: e(f"s_add_u32 s{cAK}, s{cAK}, 4096")
    else:
        g.vm(f"buffer_load_dwordx4 {vr(cvAR+16*(s%D)+4*k,4)}, v{cvA}, {sr(cA,4)}, s{cAK2} offen offset:{k*1024} sc1", ('a', s, k))
        if k == 3: e(f"s_add_u32 s{cAK2}, s{cAK2}, {4096 if (s-NH) % 2 == 0 else 72*512-4096}")
def c_wread(s, n):
    s += n // 16; n %= 16
    if s >= NS: return
    for tr in range(2):
        if s < NH or not OT: a, off = cvRA + (n & 7), (n >> 3)*8192 + tr*2048
        else: a, off = cvRB + (n & 3), (n >> 2)*4096 + tr*1024
        g.lds(f"ds_read_b64_tr_b16 {vr(cvWF+4*(n&7)+2*tr,2)}, v{a} offset:{(s%4)*16384+off}", ('W', n & 7))

g.L += [".globl " + KN, ".p2align 8", f".type {KN},@function"]
g.lab(KN)
e("s_cmp_ge_u32 s2, 256"); e("s_cbranch_scc1 L_end")
e(f"s_load_dwordx16 {sr(sP,16)}, s[0:1], 0"); e(f"s_load_dwordx4 {sr(sP+16,4)}, s[0:1], 64"); e(f"s_load_dwordx2 {sr(sP+20,2)}, s[0:1], 80")
if OPT['stamp']: e(f"s_memtime s[{sST+4}:{sST+5}]"); e(f"s_memrealtime s[{sST+6}:{sST+7}]")
e(f"v_lshrrev_b32 v{vT}, 6, v0"); e(f"v_and_b32 v{vL}, 63, v0"); e(f"v_readfirstlane_b32 s{sW}, v{vT}")
if OPT['amap'] == 0:
    e(f"s_lshr_b32 s{sRB}, s2, 5"); e(f"s_and_b32 s{sH}, s2, 7"); e(f"s_lshl_b32 s{sH}, s{sH}, 2")
    e(f"s_bfe_u32 s{sT}, s2, {(2<<16)|3:#x}"); e(f"s_add_u32 s{sH}, s{sH}, s{sT}")
elif OPT['amap'] == 1:
    e(f"s_and_b32 s{sRB}, s2, 7"); e(f"s_lshr_b32 s{sH}, s2, 3")
elif OPT['amap'] == 2:
    e(f"s_and_b32 s{sRB}, s2, 6"); e(f"s_lshr_b32 s{sT}, s2, 7"); e(f"s_add_u32 s{sRB}, s{sRB}, s{sT}")
    e(f"s_and_b32 s{sH}, s2, 1"); e(f"s_lshl_b32 s{sH}, s{sH}, 4"); e(f"s_bfe_u32 s{sT}, s2, {(4<<16)|3:#x}"); e(f"s_add_u32 s{sH}, s{sH}, s{sT}")
if OPT['amap'] == 3:
    e(f"s_and_b32 s{sRB}, s2, 4"); e(f"s_lshr_b32 s{sT}, s2, 6"); e(f"s_add_u32 s{sRB}, s{sRB}, s{sT}")
    e(f"s_and_b32 s{sH}, s2, 3"); e(f"s_lshl_b32 s{sH}, s{sH}, 3"); e(f"s_bfe_u32 s{sT}, s2, {(3<<16)|3:#x}"); e(f"s_add_u32 s{sH}, s{sH}, s{sT}")
e(f"s_and_b32 s{sMW}, s{sW}, 3"); e(f"s_lshr_b32 s{sNW}, s{sW}, 2")
e(f"s_lshl_b32 s{sLAM}, s{sRB}, 5"); e(f"s_add_u32 s{sLAM}, s{sLAM}, s{sH}")
e(f"v_lshlrev_b32 v{vL16}, 4, v{L}")
e(f"v_lshrrev_b32 v{vT}, 3, v{L}"); e(f"v_lshlrev_b32 v{vT}, 11, v{vT}")
e(f"v_lshrrev_b32 v{vT+1}, 4, v{L}"); e(f"v_and_b32 v{vT+2}, 7, v{L}"); e(f"v_xor_b32 v{vT+1}, v{vT+1}, v{vT+2}")
e(f"v_lshl_add_u32 v{vDX}, v{vT+1}, 4, v{vT}"); e(f"v_xor_b32 v{vDX+1}, 64, v{vDX}")
e(f"v_add_u32 v{vDX+2}, {2*15360}, v{vDX}"); e(f"v_add_u32 v{vDX+3}, {3*15360}, v{vDX+1}"); e(f"v_add_u32 v{vDX+1}, 15360, v{vDX+1}")
def swap23(d, s, t):
    e(f"v_and_b32 v{d}, 0x13, v{s}")
    e(f"v_and_b32 v{t}, 4, v{s}"); e(f"v_lshl_or_b32 v{d}, v{t}, 1, v{d}")
    e(f"v_and_b32 v{t}, 8, v{s}"); e(f"v_lshrrev_b32 v{t}, 1, v{t}"); e(f"v_or_b32 v{d}, v{d}, v{t}")
e(f"v_lshrrev_b32 v{vT}, 2, v{L}"); swap23(vT+1, vT, vT+2)
e(f"v_mul_u32_u24 v{vT+1}, 6144, v{vT+1}")
e(f"v_lshrrev_b32 v{vT}, 3, v{L}"); e(f"v_and_b32 v{vT}, 2, v{vT}"); e(f"v_and_b32 v{vT+2}, 3, v{L}"); e(f"v_xor_b32 v{vT}, v{vT}, v{vT+2}")
e(f"v_lshl_add_u32 v{vDB}, v{vT}, 4, v{vT+1}")
e(f"v_mul_u32_u24 v{vT}, 4682, v0"); e(f"v_lshrrev_b32 v{vT}, 16, v{vT}")
e(f"v_mul_u32_u24 v{vT+3}, 14, v{vT}"); e(f"v_sub_u32 v{vT+3}, v0, v{vT+3}")
swap23(vT+1, vT, vT+2)
e(f"v_mul_u32_u24 v{vT+1}, 7168, v{vT+1}"); e(f"v_lshl_add_u32 v{vDA}, v{vT+3}, 4, v{vT+1}")
e(f"s_lshl_b32 s{sKX}, s{sRB}, 19"); e(f"s_lshl_b32 s{sT}, s{sW}, 16"); e(f"s_add_u32 s{sKX}, s{sKX}, s{sT}")
e(f"s_add_u32 s{sKXE}, s{sKX}, 2048"); e(f"s_lshl_b32 s{sMX}, s{sW}, 12")
e(f"s_mul_i32 s{sOW+1}, s{sH}, 224"); e(f"s_sub_u32 s{sOW}, s{sOW+1}, {32*7168}")
e(f"s_mov_b32 s{sOW+2}, s{sOW}"); e(f"s_mov_b32 s{sOW+3}, s{sOW+1}")
e(f"s_lshl_b32 s{sT}, s{sW}, 10")
for n, o in enumerate((GOFF, GOFF+HALF, UOFF, UOFF+HALF)): e(f"s_add_u32 s{sMWd+n}, s{sT}, {WBASE+o}")
e(f"s_mov_b32 s{sINCA}, {64*7168}")
def qpiece(p):
    half, unit, rg = p // 6, (p % 6) // 2, p % 2
    return (WBASE + half*HALF + unit*2048 + rg*1024, ((-32 + half*32 + rg*16)*6144 + unit*2048) & 0xffffffff)
e(f"s_lshl_b32 s{sT+1}, s{sH}, 6")
e(f"s_add_u32 s{sMWd+4}, s{sT}, {WBASE}")
e(f"s_and_b32 s{sT+2}, s{sW}, 1"); e(f"s_mul_i32 s{sT+2}, s{sT+2}, {16*6144}")
e(f"s_lshr_b32 s{sT+3}, s{sW}, 1"); e(f"s_lshl_b32 s{sT+3}, s{sT+3}, 11"); e(f"s_add_u32 s{sT+2}, s{sT+2}, s{sT+3}")
e(f"s_sub_u32 s{sOW+4}, s{sT+2}, {32*6144}")
for w, p in ((6, 6), (7, 11)):
    l, o = qpiece(p)
    e(f"s_cmp_eq_u32 s{sW}, {w}"); e(f"s_cselect_b32 s{sMWd+4}, {l:#x}, s{sMWd+4}"); e(f"s_cselect_b32 s{sOW+4}, {o:#x}, s{sOW+4}")
e(f"s_add_u32 s{sOW+4}, s{sOW+4}, s{sT+1}")
e("s_waitcnt lgkmcnt(0)")
if OPT['stamp']: e(f"v_writelane_b32 v0, s{sST+4}, 0"); e(f"v_writelane_b32 v0, s{sST+6}, 16")
srd(sX, pX, 0 if OPT['noX'] else 2048*2048)
for n in range(4): a_full('x', n, 0)
srd(sQ, pQKV, 0 if OPT['noW'] else 1024*6144); srd(sA, pWG, 0 if OPT['noW'] else 1024*7168); srd(sB, pWU, 0 if OPT['noW'] else 1024*7168)
e(f"s_cmp_eq_u32 s{sW}, 7"); e("s_cbranch_scc0 LA_not7")
for d in (sA, sB):
    for k in range(3): e(f"s_mov_b32 s{d+k}, s{sQ+k}")
for n in range(4):
    l, o = qpiece(7+n)
    e(f"s_mov_b32 s{sMWd+n}, {l:#x}"); e(f"s_add_u32 s{sOW+n}, s{sT+1}, {o:#x}")
e(f"s_mov_b32 s{sINCA}, {64*6144}"); e(f"v_mov_b32 v{vDA}, v{vDB}")
g.lab("LA_not7")
if OPT['wshift']:
    for n in range(5): e(f"s_add_u32 s{sOW+n}, s{sOW+n}, " + (f"s{sINCA}" if n < 4 else f"{64*6144}"))
for n in range(5): a_full('w', n, 0, True)
srd(sWS, pWSp, WS_SIZE); srd(sDBG, pDBG, 256); srd(sPF, pGW, 2048)
PD = OPT['PD'] - OPT['pre']; sPB = sT+6
assert OPT['amap'] == 3
e(f"s_lshr_b32 s{sT+1}, s2, 3"); e(f"s_lshr_b32 s{sT+2}, s{sH}, 3")
e(f"v_lshlrev_b32 v{vPF}, 7, v{L}"); e(f"s_mov_b32 s{sT+3}, 0"); e(f"s_mov_b32 s{sCNT}, 0"); e(f"s_mov_b32 s{sPFO}, 0"); e(f"s_mov_b32 s{sPFI}, 0")
e(f"s_mov_b32 s{sPB}, s{pX}"); e(f"s_mov_b32 s{sPB+1}, s{pX+1}")
def pfcase(w, body):
    e(f"s_cmp_lg_u32 s{sW}, {w}"); e(f"s_cbranch_scc1 LA_pf{w}"); body(); g.lab(f"LA_pf{w}")
def base(p, size): e(f"s_mov_b32 s{sPB}, s{p}"); e(f"s_mov_b32 s{sPB+1}, s{p+1}"); e(f"s_mov_b32 s{sCNT}, {size:#x}")
R2 = 2 if OPT['pf2'] else 1
def pf_x():
    base(pX, 2048*2048); e(f"v_and_b32 v{vT}, 31, v{L}"); e(f"v_lshlrev_b32 v{vT}, 11, v{vT}"); e(f"v_lshrrev_b32 v{vPF}, 5, v{L}"); e(f"v_lshl_add_u32 v{vPF}, v{vPF}, 7, v{vT}")
    e(f"s_and_b32 s{sT+4}, s{sH}, 7"); e(f"s_lshl_b32 s{sT+4}, s{sT+4}, 16"); e(f"s_lshl_b32 s{sPFO}, s{sRB}, 19"); e(f"s_add_u32 s{sPFO}, s{sPFO}, s{sT+4}")
    e(f"s_add_u32 s{sPFO}, s{sPFO}, {PD*128}"); e(f"s_mov_b32 s{sPFI}, {128*R2}"); e(f"s_mov_b32 s{sT+3}, {32*R2}")
def pf_gu(p):
    def f():
        base(p, 1024*7168); e(f"v_mul_u32_u24 v{vT}, 4682, v{L}"); e(f"v_lshrrev_b32 v{vT}, 16, v{vT}")
        e(f"v_mul_u32_u24 v{vT+1}, {7168-1792}, v{vT}"); e(f"v_add_u32 v{vPF}, v{vPF}, v{vT+1}")
        e(f"v_lshrrev_b32 v{vT}, 1, v{vT}"); e(f"v_mul_u32_u24 v{vT}, {62*7168}, v{vT}"); e(f"v_add_u32 v{vPF}, v{vPF}, v{vT}")
        e(f"s_mul_i32 s{sPFO}, s{sT+1}, {2*7168}"); e(f"s_mul_i32 s{sT+4}, s{sT+2}, 1792"); e(f"s_add_u32 s{sPFO}, s{sPFO}, s{sT+4}")
        e(f"s_add_u32 s{sPFO}, s{sPFO}, {(64*PD-32)*7168}"); e(f"s_mov_b32 s{sPFI}, {64*7168*R2}"); e(f"s_mov_b32 s{sT+3}, {28*R2}")
    return f
def pf_q():
    base(pQKV, 1024*6144); e(f"v_lshrrev_b32 v{vT}, 2, v{L}"); e(f"v_lshlrev_b32 v{vT}, 11, v{vT}"); e(f"v_and_b32 v{vPF}, 3, v{L}")
    e(f"v_lshl_add_u32 v{vPF}, v{vPF}, 7, v{vT}")
    e(f"v_cmp_le_u32 vcc, 24, v{L}"); e(f"v_add_u32 v{vT}, {62*6144}, v{vPF}"); e("s_nop 0"); e(f"v_cndmask_b32 v{vPF}, v{vPF}, v{vT}, vcc")
    e(f"s_mul_i32 s{sPFO}, s{sT+1}, {2*6144}"); e(f"s_lshl_b32 s{sT+4}, s{sT+2}, 9"); e(f"s_add_u32 s{sPFO}, s{sPFO}, s{sT+4}")
    e(f"s_add_u32 s{sPFO}, s{sPFO}, {(64*PD-32)*6144}"); e(f"s_mov_b32 s{sPFI}, {64*6144*R2}"); e(f"s_mov_b32 s{sT+3}, {24*R2}")
def pf_lin(p, size, nl, st=0):
    def f():
        base(p, size); e(f"s_mul_i32 s{sPFO}, s{sLAM}, {nl*128}"); e(f"s_mov_b32 s{sPFI}, {nl*128*256}"); e(f"s_mov_b32 s{sT+3}, {nl}")
        if st: e(f"s_sub_u32 s{sPFO}, s{sPFO}, {st*nl*128*256}")
    return f
if OPT['pf']:
    if PD > 0: pfcase(6, pf_x); pfcase(1, pf_gu(pWG)); pfcase(2, pf_gu(pWU)); pfcase(3, pf_q)
    pfcase(4, pf_lin(pWD, 3584*2048, OPT['wdn'], OPT['wdst'])); pfcase(5, pf_lin(pWO, 1024*2048, 16, OPT['wdst']))
    if OPT['touch'] & 1: pfcase(6, pf_lin(pWSp, A_BYTES, 64))
    def pf_kv():
        pf_lin(pWSp, WS_KV + (0x1000000 if OPT['touch'] & 4 else 0x800000), 64)(); e(f"s_add_u32 s{sPFO}, s{sPFO}, {WS_KV:#x}")
    if OPT['touch'] & 2: pfcase(7, pf_kv)
e(f"v_cmp_gt_u32 vcc, s{sT+3}, v{L}"); e(f"v_bfrev_b32 v{vT}, 1"); e("s_nop 0"); e(f"v_cndmask_b32 v{vPF}, v{vT}, v{vPF}, vcc")
e(f"s_mov_b32 s{sPF}, s{sPB}"); e(f"s_and_b32 s{sPF+1}, s{sPB+1}, 0xffff"); e(f"s_mov_b32 s{sPF+2}, s{sCNT}")
for k in range(OPT['pre']): a_op('p', 0, 0)
e(f"v_and_b32 v{vT}, 15, v{L}"); e(f"s_lshl_b32 s{sT}, s{sMW}, 6"); e(f"v_add_u32 v{vT}, s{sT}, v{vT}"); e(f"v_lshlrev_b32 v{vT}, 7, v{vT}")
e(f"v_lshrrev_b32 v{vT+1}, 4, v{L}"); e(f"v_bfe_u32 v{vT+2}, v{L}, 1, 3"); e(f"v_xor_b32 v{vT+2}, v{vT+1}, v{vT+2}")
e(f"v_lshl_add_u32 v{vXR}, v{vT+2}, 4, v{vT}"); e(f"v_xor_b32 v{vXR+1}, 64, v{vXR}")
e(f"v_bfe_u32 v{vT}, v{L}, 2, 3")
e(f"v_lshrrev_b32 v{vT+1}, 5, v{L}"); e(f"v_lshl_add_u32 v{vT}, v{vT+1}, 4, v{vT}")
e(f"v_and_b32 v{vT+1}, 3, v{L}"); e(f"v_lshlrev_b32 v{vT+1}, 3, v{vT+1}"); e(f"v_add_u32 v{vT+1}, {WBASE}, v{vT+1}")
e(f"v_mul_u32_u24 v{vWG}, 224, v{vT}"); e(f"v_add_u32 v{vWG}, v{vWG}, v{vT+1}"); e(f"v_add_u32 v{vWG+1}, {WSLOT}, v{vWG}")
e(f"v_lshl_add_u32 v{vWQ}, v{vT}, 6, v{vT+1}"); e(f"v_bfe_u32 v{vT+2}, v{L}, 4, 1"); e(f"v_lshl_add_u32 v{vWQ}, v{vT+2}, 5, v{vWQ}")
e(f"v_xor_b32 v{vWQ+1}, 32, v{vWQ}"); e(f"v_add_u32 v{vWQ+2}, {WSLOT}, v{vWQ}"); e(f"v_add_u32 v{vWQ+3}, {WSLOT}, v{vWQ+1}")
for r in range(vACC, 256): e(f"v_mov_b32 v{r}, 0")
e(f"s_mov_b32 s{sK}, {f32(-LOG2E)}"); e(f"s_mov_b32 s{sK+1}, {f32(-LOG2E)}")
e(f"s_lshl_b32 s{sGO}, s{sLAM}, 3"); e(f"s_add_u32 s{sGO}, s{sGO}, s{sW}"); e(f"s_lshl_b32 s{sGO}, s{sGO}, 11")
srd(sGW, pGW, 2048); e("s_mov_b32 s94, 1.0"); e("s_mov_b32 s95, 1.0")
for n in range(5): a_full('w', n, 1)
e(f"s_waitcnt vmcnt({5+OPT['pre']})"); e("s_barrier")
e(f"s_cmp_eq_u32 s{sNW}, 1"); e("s_cbranch_scc1 LA_pre1")
for nw in range(2):
    if nw == 1: g.lab("LA_pre1")
    sq, sv_ = g.steady(lambda: a_body(nw))
    g.q = []
    for i in range(4): a_xread(i, 0)
    for n in range(4): a_wread(nw, n)
    assert [t for t in sv_ if t[0] == 'w'] == [('w', 1, k) for k in range(5)], sv_
    for t in sv_:
        if t[0] == 'x': assert t[1] == 1; a_full('x', t[2], 1)
    assert not any(t[0] == 'p' for t in sv_[sv_.index(('w', 1, 0)):]), sv_
    e(f"s_mov_b32 s{sCNT}, 8"); e(f"s_mov_b32 s{sOK}, 0")
    stamp('loopA')
    if OPT['prio'] and nw == 1: e("s_setprio 1")
    e("s_waitcnt lgkmcnt(0)")
    g.q = list(sq); g.v = list(sv_)
    g.L.append(".p2align 6"); g.lab(f"LA_loop{nw}")
    a_body(nw); assert g.q == sq and g.v == sv_
    if OPT['tst']:
        e(f"s_memtime s[{sST}:{sST+1}]"); e(f"s_memrealtime s[{sST+2}:{sST+3}]"); e(f"s_sub_u32 s{sST+4}, 10, s{sCNT}"); e(f"s_add_u32 s{sST+5}, s{sST+4}, 16")
        e("s_waitcnt lgkmcnt(0)"); e(f"s_mov_b32 m0, s{sST+4}"); e("s_nop 0"); e(f"v_writelane_b32 v0, s{sST}, m0"); e(f"s_mov_b32 m0, s{sST+5}"); e("s_nop 0"); e(f"v_writelane_b32 v0, s{sST+2}, m0")
    e(f"s_sub_u32 s{sCNT}, s{sCNT}, 1")
    e(f"s_cmp_lg_u32 s{sCNT}, 1"); e(f"s_cbranch_scc1 LA_h1_{nw}")
    sv = g.L; g.L = g.tail
    g.lab(f"LA_h1_{nw}")
    def hook(c, body, w0=False):
        if w0 and nw == 1: return
        e(f"s_cmp_lg_u32 s{sCNT}, {c}"); e(f"s_cbranch_scc1 LA_n{c}_{nw}")
        if w0: e(f"s_cmp_lg_u32 s{sW}, 0"); e(f"s_cbranch_scc1 LA_loop{nw}")
        body(); e(f"s_branch LA_loop{nw}"); g.lab(f"LA_n{c}_{nw}")
    def rec_store():
        for r in range(28, 32): e(f"v_mov_b32 v{r}, 0")
        e(f"v_mov_b32 v26, {CNTLDS}"); e("ds_write_b32 v26, v28")
        e(f"s_lshl_b32 s{sT}, s{sLAM}, 9"); e(f"s_add_u32 s{sT}, s{sT}, {WS_FL:#x}")
        e("s_mov_b32 exec_hi, 0")
        e(f"buffer_store_dwordx4 v[28:31], v{vL16}, {sr(sWS,4)}, s{sT} offen sc1"); e("s_mov_b64 exec, -1")
    def ack():
        e(f"v_mov_b32 v{vT}, 1"); e(f"s_and_b32 s{sT}, s{sLAM}, 1"); e(f"s_lshl_b32 s{sT}, s{sT}, 7")
        one_lane(lambda: e(f"buffer_atomic_add v{vT}, off, {sr(sDBG,4)}, s{sT} sc1"))
    def ld(): e(f"v_and_b32 v43, 1, v{L}"); e(f"v_lshlrev_b32 v43, 7, v43"); e(f"buffer_load_dword v{vCN}, v43, {sr(sDBG,4)}, 0 offen sc1")
    def ts(): e(f"v_cmp_gt_u32 vcc, 128, v{vCN}"); e("s_nop 1"); e("s_cmp_eq_u64 vcc, 0")
    def gate_loads():
        e(f"v_lshlrev_b32 v42, 5, v{L}")
        e(f"buffer_load_dwordx4 {vr(26,4)}, v42, {sr(sX,4)}, s{sGO} offen"); e(f"buffer_load_dwordx4 {vr(30,4)}, v42, {sr(sX,4)}, s{sGO} offen offset:16")
        e(f"buffer_load_dwordx4 {vr(34,4)}, v42, {sr(sGW,4)}, 0 offen"); e(f"buffer_load_dwordx4 {vr(38,4)}, v42, {sr(sGW,4)}, 0 offen offset:16")
        ld()
    def code_pf():
        e(f"s_getpc_b64 s[{sT}:{sT+1}]"); g.lab("LA_pc")
        e(f"s_sub_u32 s{sT}, s{sT}, LA_pc-{KN}"); e(f"s_subb_u32 s{sT+1}, s{sT+1}, 0")
        e(f"s_lshr_b32 s{sT+2}, s2, 3"); e(f"s_lshl_b32 s{sT+2}, s{sT+2}, 11")
        e(f"v_and_b32 v26, 15, v{L}"); e(f"v_lshlrev_b32 v26, 7, v26"); e(f"v_add_u32 v26, s{sT+2}, v26")
        e(f"v_min_u32 v26, LZ_end-{KN}-4, v26")
        e(f"v_mov_b32 v27, s{sT+1}"); e(f"v_add_co_u32 v26, vcc, s{sT}, v26"); e("s_nop 1"); e(f"v_addc_co_u32 v27, vcc, 0, v27, vcc")
        e(f"global_load_dword v{vDUM}, v[26:27], off")
    hook(6, rec_store, True); hook(5, ack, True); hook(2, gate_loads)
    if OPT['cpf']: hook(OPT['cpf'], code_pf, True)
    e(f"s_branch LA_loop{nw}")
    g.lab(f"LA_slow{nw}")
    spin(f"LA_spin{nw}", ld, ts, sT+3); e(f"s_branch LB_go{nw}")
    g.L = sv
    ts(); e(f"s_cbranch_scc0 LA_slow{nw}")
    g.lab(f"LB_go{nw}")
    U = UNITS[nw]; jkv = 2 if nw == 0 else 0
    vHA = 3; vST = 96 - 4*len(OPT['hpos']); vNB = 208; assert len(OPT['hpos']) % 2 == 0
    def cap(f, atomic=False):
        sv = g.L; g.L = []; f(); r = g.L; g.L = sv
        return [r] if atomic else [[x] for x in r]
    def setupB():
        e(f"s_lshl_b32 s{sT+4}, s{sLAM}, 15"); e(f"s_add_u32 s{sT+4}, s{sT+4}, {WS_KV:#x}")
        e(f"s_lshl_b32 s{sT+5}, s{sMW}, 13"); e(f"v_add_u32 v{vT+8}, s{sT+5}, v{vL16}")
        e(f"s_add_u32 s{sT+5}, s{sT+5}, s{sT+4}")
    def setupB2():
        e(f"s_cmp_eq_u32 s{sRB}, 7"); e(f"s_cselect_b32 s{sT+5}, {WS_SIZE:#x}, s{sT+5}")
    def setupB3():
        e(f"s_add_u32 s{sT+6}, s{sT+5}, 4096")
        e(f"v_and_b32 v{vHA}, 31, v{L}"); e(f"v_lshlrev_b32 v{vHA}, 4, v{vHA}"); e(f"v_lshrrev_b32 v{vT+11}, 5, v{L}")
        e(f"v_mul_u32_u24 v{vT+11}, {M16}, v{vT+11}"); e(f"v_add_u32 v{vHA}, v{vHA}, v{vT+11}")
        e(f"s_lshl_b32 s{sT}, s{sRB}, 4"); e(f"s_lshl_b32 s{sT+1}, s{sMW}, 2"); e(f"s_add_u32 s{sT}, s{sT}, s{sT+1}")
        e(f"s_mul_i32 s{sHB}, s{sT}, {M16}"); e(f"s_mul_i32 s{sT}, s{sH}, {7*512}"); e(f"s_add_u32 s{sHB}, s{sHB}, s{sT}")
        e(f"s_lshr_b32 s{sT}, s{sH}, 3"); e(f"s_lshl_b32 s{sT}, s{sT}, 13"); e(f"s_add_u32 s{sHB}, s{sHB}, s{sT}")
        if nw == 1: e(f"s_add_u32 s{sHB}, s{sHB}, {3*512}")
        e(f"s_add_u32 s{sHB+1}, s{sHB}, {2*M16}")
        e(f"s_lshl_b32 s{sT+7}, s{sLAM}, 9"); e(f"s_add_u32 s{sT+7}, s{sT+7}, {WS_FL:#x}")
        e(f"v_mov_b32 v{vCN}, 1"); e(f"s_mov_b32 s{sDN}, 0"); e(f"s_sub_u32 s{sT+3}, s{sT+7}, {32*512}")
    def gpub():
        e(f"s_cmp_lg_u32 s{sW}, 0"); e("s_cbranch_scc1 LB_nog")
        e(f"v_lshlrev_b32 v{vT}, 2, v{L}"); e(f"v_add_u32 v{vT+1}, {GLDS}, v{vT}"); e("s_mov_b64 exec, 0xff"); e(f"ds_read_b32 v{vT+1}, v{vT+1}"); e("s_waitcnt lgkmcnt(0)")
        e(f"buffer_store_dword v{vT+1}, v{vT}, {sr(sWS,4)}, s{sT+7} offen sc1"); e("s_mov_b64 exec, -1")
        g.lab("LB_nog")
    def kvout():
        for i in range(4):
            pack2(jkv, i)
            if nw == 1:
                a = ACC(0, i); e("s_nop 1"); e(f"v_permlane32_swap_b32 v{a}, v{a+2}"); e(f"v_permlane32_swap_b32 v{a+1}, v{a+3}")
            e(f"buffer_store_dwordx4 {vr(ACC(jkv,i),4)}, v{vL16}, {sr(sWS,4)}, s{sT+5+(i>>1)} offen offset:{nw*2048+(i&1)*1024} sc1")
    gus = [j for j in range(10) if U[j][0] == 'g']
    def hst(R, k): e(f"buffer_store_dwordx4 {vr(R,4)}, v{vHA}, {sr(sWS,4)}, s{sHB+(k&1)} offen offset:{(k>>1)*512}" + ("" if OPT['hx'] == 1 else " sc1")) if OPT['hx'] != 2 else None
    def ldK(): e(f"buffer_load_dword v{vT+10}, off, {sr(sWS,4)}, s{sT+3} offset:{FL_KV} sc1")
    def tsK(): e(f"v_readfirstlane_b32 s{sT}, v{vT+10}"); e("s_nop 0"); e(f"s_cmp_eq_u32 s{sT}, 1")
    J = [2,3,4,5,6,7,8,9,0,1] if nw == 0 else list(range(10))
    SQ = [(t, j) for t in range(2) for j in range(10)]
    for p in range(5): a_, b_ = J[2*p], J[2*p+1]; SQ += [(2, a_), (2, b_), (3, a_), (3, b_)]
    F = []
    F += [(1, [("    " + x) for x in u]) for u in gate_list(26, 20, 43)]
    F += [(12, u) for u in cap(setupB) + cap(setupB2, True) + cap(setupB3)]
    if nw == 0: F += [(19, u) for u in cap(gpub, True)]
    F += [(24, u) for u in cap(kvout)]
    nk = 2*len(gus)
    for k in range(nk):
        j, i = gus[k >> 1], 2*(k & 1); av = 28 + 4*(k >> 1)
        F += [(av, u) for u in cap(lambda: silu(j, i, vT, ACC(j, i)))]
        NE = nk - len(OPT['hpos'])
        F += [(av, u) for u in cap(lambda: trysig(min(k, NE), CNTLDS, 0, FL_KV, force=(k == nk-1)), True)]
        if k < NE: F += [(av, u) for u in cap(lambda: hst(ACC(j, i), k))]
    ev = {n: [x for x in v if x[0] == 'x' and x[2] == 1] for n, v in a_events(nw).items() if n < 10}
    for n, k in zip((7, 8, 9), (0, 2, 4)): ev.setdefault(n, []).append(('w', k, 0))
    for n, (t, j) in enumerate(SQ):
        un = U[j]; evs = ev.get(n, [])
        for i in range(4):
            g.need([('W', n % 5), ('X', t & 1, i)])
            a, b = vr(vWF+4*(n % 5), 4), vr(vXF+16*(t & 1)+4*i, 4)
            if un[0] == 'v': a, b = b, a
            e(f"{MF16} {vr(ACC(j,i),4)}, {a}, {b}, {vr(ACC(j,i),4)}")
            if i == 0:
                if n == JBW: g.need([('W', k) for k in range(5)], [('w', 1, k) for k in range(5)]); e("s_barrier")
                if n == 17:
                    assert not any(av < 12 for av, u in F)
                    g.need([('W', k) for k in range(5)], [('x', 1, k) for k in range(4)] + [('w', 0, k) for k in range(5)]); e("s_barrier")
                if n + 4 < 40: a_wread(nw, n+4, SQ[n+4])
            if i == 1:
                for ii in range(4):
                    if n == OPT['jbx'] + OPT['xrd'][ii]: a_xread(ii, 1)
                    if n == 17 + (ii >> 1): a_xread(ii, 2)
                    if n == 20: a_xread(ii, 3)
                if evs: a_m0(*evs[0])
            if i == 2 and evs:
                a_op(*evs[0])
                for x in evs[1:]: a_full(*x)
            c = 0
            while F and F[0][0] <= n and c < (2 if n < 20 else OPT['fr']) and not (i == 1 and evs):
                u = F.pop(0)[1]; g.L += u; c += len(u)
    stamp('endA')
    e("s_barrier")
    for i in range(4):
        e(f"ds_write_b128 v{vT+8}, {vr(ACC(jkv,i),4)} offset:{32768+(i>>1)*4096+nw*2048+(i&1)*1024}")
    if nw == 0:
        ldK()
        e("s_nop 3")
        for i in range(4): pack2(0, i)
        e(f"s_lshl_b32 s{sT}, s{sMW}, 12"); e(f"s_add_u32 s{sT}, s{sT}, {QLDS}"); e(f"v_add_u32 v{vT+9}, s{sT}, v{vL16}")
        for i in range(4): e(f"ds_write_b128 v{vT+9}, {vr(ACC(0,i),4)} offset:{i*1024}")
        e(f"v_mov_b32 v{vT+12}, {CNT2}"); e(f"v_mov_b32 v{vT+13}, 0"); e(f"ds_write_b32 v{vT+12}, v{vT+13}"); e(f"ds_write_b32 v{vT+12}, v{vT+13} offset:4"); e(f"ds_write_b32 v{vT+12}, v{vT+13} offset:8")
    else: e("s_nop 3")
    left = sum(1 for av, u in F for x in u if 'buffer_store_dwordx4' in x)
    print("path", nw, "leftover filler instrs", sum(len(u) for av, u in F), "stores", left)
    if nw == 0 and OPT['h0']:
        vNB = 40
        e(f"s_mov_b32 s{sT+5}, {WS_SIZE:#x}")
        e(f"s_cmp_eq_u32 s{sRB}, 0"); e("s_cbranch_scc1 LB_rb0")
        e("s_waitcnt vmcnt(0)"); trysig(15, CNTLDS, 0, FL_KV, force=True); tsK(); e("s_cbranch_scc0 LB_late")
        e(f"s_sub_u32 s{sT+5}, s{sT+4}, {32*32768}")
        g.lab("LB_rb0")
        e(f"s_add_u32 s{sT+6}, s{sT+5}, 4096")
        def nbl():
            for f in range(8): e(f"buffer_load_dwordx4 {vr(vNB+4*f,4)}, v{vT+8}, {sr(sWS,4)}, s{sT+5+(f>>2)} offen offset:{(f&3)*1024} sc1")
        nbl(); e(f"s_mov_b32 s{sT+4}, 0")
        g.lab("LB_late")
    for av, u in F: g.L += u
    for k in range(NE, nk):
        for r in range(4): e(f"v_mov_b32 v{vST+4*(k-NE)+r}, v{ACC(gus[k>>1], 2*(k&1))+r}")
    if NE: e(f"s_add_u32 s{sHB}, s{sHB}, {NE*256}"); e(f"s_add_u32 s{sHB+1}, s{sHB+1}, {NE*256}")
    stamp('hdone')
    if nw == 0:
        e(f"s_cmp_eq_u32 s{sT+4}, 0"); e("s_cbranch_scc1 LB_have")
        spin("LB_spin", ldK, tsK, sT+5)
        e(f"s_sub_u32 s{sT+5}, s{sT+4}, {32*32768}"); e(f"s_add_u32 s{sT+6}, s{sT+5}, 4096")
        nbl(); e("s_waitcnt vmcnt(0)")
        g.lab("LB_have")
        NLEFT = left; vNB0 = vNB
    stamp('kvok')
    if nw == 0: e("s_branch LB_common")
g.lab("LB_common")
c_setup()
FR = [40, 48, 56, 64, 96, 104]; vQ = 32; vS = 112; vM = 26; vSUM = 28
BIG = 2.0**100
vKA, vVA, vQA, vOA = 8, 9, 10, 11
e(f"v_and_b32 v{vM+1}, 15, v{L}"); e(f"v_lshlrev_b32 v{vM+1}, 4, v{vM+1}"); e(f"v_lshrrev_b32 v{vM+2}, 5, v{L}")
e(f"v_lshl_add_u32 v{vM+1}, v{vM+2}, 8, v{vM+1}"); e(f"v_bfe_u32 v{vM+2}, v{L}, 4, 1")
e(f"v_lshl_add_u32 v{vQA}, v{vM+2}, 10, v{vM+1}"); e(f"v_lshl_add_u32 v{vVA}, v{vM+2}, 9, v{vM+1}")
e(f"v_mul_u32_u24 v{vOA}, {M16}, v{vM+2}"); e(f"v_add_u32 v{vOA}, v{vOA}, v{vM+1}")
e(f"s_lshl_b32 s{sT}, s{sW}, 12"); e(f"v_add_u32 v{vKA}, s{sT}, v{vQA}"); e(f"v_add_u32 v{vVA}, s{sT}, v{vVA}")
e(f"s_lshl_b32 s{sT}, s{sW}, 11"); e(f"s_add_u32 s{sT}, s{sT}, {QLDS}"); e(f"v_add_u32 v{vQA}, s{sT}, v{vQA}")
e(f"s_mov_b32 s{sDN}, 0")
e(f"s_andn2_b32 s{sT+4}, s{sLAM}, 7"); e(f"s_lshl_b32 s{sT+4}, s{sT+4}, 9"); e(f"s_add_u32 s{sT+4}, s{sT+4}, {WS_FL:#x}")
e(f"s_cmp_eq_u32 s{sNW}, 1"); e("s_cbranch_scc1 LB_nokv")
for f in range(8):
    e(f"s_waitcnt vmcnt({7-f+NLEFT})"); e(f"ds_write_b128 v{vT+8}, {vr(vNB0+4*f,4)} offset:{f*1024}")
g.lab("LB_nokv")
e("s_waitcnt lgkmcnt(0)"); e("s_barrier")
stamp('bar2')
ORD = [0, 8, 1, 2, 3, 4, 5, 6, 7]
def kread(x):
    t = ORD[x]
    for f in range(2): g.lds(f"ds_read_b128 {vr(FR[x%6]+4*f,4)}, v{vKA} offset:{t*4096+f*512}", ('K', x, f))
def vread(x):
    t = ORD[x]
    for f in range(2): g.lds(f"ds_read_b128 {vr(FR[(x+3)%6]+4*f,4)}, v{vVA} offset:{t*4096+2048+f*1024}", ('V', x, f))
def mx(t, half=None):
    b = vS + 16*t
    for r in range(0, 16, 2):
        if half is not None and (r >> 3) != half: continue
        k = (r >> 1) & 1
        if t == 8 and r < 4: e(f"v_max_f32 v{vM+k}, v{b+r}, v{b+r+1}")
        else: e(f"v_max3_f32 v{vM+k}, v{vM+k}, v{b+r}, v{b+r+1}")
def masked(op):
    for rho in range(16):
        cst = 8*(rho >> 2) + (rho & 3)
        e(f"s_bfm_b32 exec_lo, {cst}, 0"); e(f"s_bfm_b32 exec_hi, {cst+4}, 0"); e(f"{op} v{vS+128+rho}, v{vS+rho}")
    e("s_mov_b64 exec, -1")
def merge():
    masked("v_mov_b32")
    for rho in range(16): e(f"v_mov_b32 v{vS+rho}, 0")
NPRE = OPT['npre']
def ldH(): e(f"buffer_load_dword v{cvPL}, v{cvPL+1}, {sr(sWS,4)}, s{sT+4} offen offset:{FL_H} sc1")
def tsL(): e(f"v_cmp_ne_u32 vcc, 1, v{cvPL}"); e("s_nop 1"); e("s_cmp_eq_u64 vcc, 0")
AFTER = [0]
def event(x):
    for k, p in enumerate(OPT['hpos']):
        if p == x: hst(vST+4*k, k); AFTER[0] = 0
    if max(OPT['hpos'] + [-1]) < x <= OPT['hq'] and (x >= 9 or x % 3 == 2): trysig(AFTER[0], CNT2, 0, FL_H, force=(x == OPT['hq']))
    for k, p in enumerate(OPT['dpos'][:NPRE]):
        if p == x: c_m0(k); e("s_nop 0"); c_dma(k, 0); c_dma(k, 1); AFTER[0] += 2
    if x == OPT['hq']: ldH(); AFTER[0] += 1
assert min(OPT['dpos']) >= 9
def s_phase(rb0):
    g.q = []
    for f in range(2): g.lds(f"ds_read_b128 {vr(vQ+4*f,4)}, v{vQA} offset:{f*512}", ('Q', f))
    for x in range(6): kread(x)
    for x in range(9):
        t = ORD[x]
        for f in range(2):
            g.need([('K', x, f), ('Q', f)])
            c = vr(vS+16*t, 16) if f == 1 else "0"
            e(f"{MF32} {vr(vS+16*t,16)}, {vr(FR[x%6]+4*f,4)}, {vr(vQ+4*f,4)}, {c}")
            if not rb0:
                if x == 4 and f == 1: merge()
                if x >= 5: mx(ORD[x-4], f)
        if x + 6 < 9: kread(x+6)
        else: vread(x-3)
        event(x)
    if rb0:
        e(f"s_sub_u32 s{sT}, 8, s{sW}"); e("s_nop 7")
        for t in range(8):
            e(f"s_cmp_le_u32 s{sT}, {t}"); e("s_cbranch_scc1 LB_maskdone")
            for rho in range(16): e(f"v_mov_b32 v{vS+16*t+rho}, {f32(-BIG)}")
        g.lab("LB_maskdone")
        merge()
        for x in range(1, 5): mx(ORD[x])
e(f"s_cmp_eq_u32 s{sRB}, 0"); e("s_cbranch_scc1 LB_s0")
sv = g.L; g.L = g.tail; g.lab("LB_s0"); s_phase(True); e("s_branch LB_sdone"); g.L = sv
s_phase(False)
g.lab("LB_sdone")
for x in range(5, 9): mx(ORD[x])
stamp('sph')
e(f"v_max_f32 v{vM}, v{vM}, v{vM+1}"); e(f"v_mov_b32 v{vM+1}, v{vM}"); e("s_nop 1")
e(f"v_permlane32_swap_b32 v{vM}, v{vM+1}"); e(f"v_max_f32 v{vM}, v{vM}, v{vM+1}")
CC = 32 ** -0.5 * LOG2E
e(f"s_mov_b32 s{sK}, {f32(CC)}"); e(f"s_mov_b32 s{sK+1}, {f32(CC)}")
e(f"v_mul_f32 v{vM}, {f32(-CC)}, v{vM}"); e(f"v_mov_b32 v{vM+1}, v{vM}")
vO = vS + 8
def pbase(t): return vS if t == 0 else vS + 16*t + 8
def soft(t, mid=None):
    b = vS + 16*t
    for r in range(0, 16, 2): e(f"v_pk_fma_f32 {vr(b+r,2)}, {vr(b+r,2)}, {sr(sK,2)}, {vr(vM,2)}")
    if mid: mid()
    for r in range(16): e(f"v_exp_f32 v{b+r}, v{b+r}")
    for r in range(0, 16, 2):
        s = vSUM + 2*((r >> 1) & 1)
        if t == 8 and r < 4: e(f"v_pk_add_f32 {vr(s,2)}, {vr(b+r,2)}, {vr(b+r+4,2)}")
        elif t == 8 and r < 8: pass
        else: e(f"v_pk_add_f32 {vr(s,2)}, {vr(s,2)}, {vr(b+r,2)}")
    if t == 8:
        masked("v_swap_b32")
        for r in range(8): e(f"v_cvt_pk_bf16_f32 v{vS+r}, v{vS+2*r}, v{vS+2*r+1}")
    for r in range(7, -1, -1): e(f"v_cvt_pk_bf16_f32 v{b+8+r}, v{b+2*r}, v{b+2*r+1}")
def pv(x):
    t = ORD[x]
    for f in range(2):
        g.need([('V', x, f)])
        e(f"{MF32} {vr(vO,16)}, {vr(FR[(x+3)%6]+4*f,4)}, {vr(pbase(t)+4*f,4)}, " + ("0" if (x == 0 and f == 0) else vr(vO, 16)))
    if x + 6 < 9: vread(x+6)
event(9); soft(8); event(10); soft(1); e("s_nop 0"); pv(0); pv(1)
for t in range(2, 8):
    event(9+t); soft(t, lambda: pv(t))
e("s_nop 1"); pv(8)
e(f"v_pk_add_f32 {vr(vSUM,2)}, {vr(vSUM,2)}, {vr(vSUM+2,2)}"); e(f"v_add_f32 v{vSUM}, v{vSUM}, v{vSUM+1}")
e(f"v_mov_b32 v{vSUM+1}, v{vSUM}"); e("s_nop 1"); e(f"v_permlane32_swap_b32 v{vSUM}, v{vSUM+1}")
e(f"v_add_f32 v{vSUM}, v{vSUM}, v{vSUM+1}"); e(f"v_rcp_f32 v{vSUM}, v{vSUM}")
e(f"s_lshl_b32 s{sT}, s{sRB}, 4"); e(f"s_lshl_b32 s{sT+1}, s{sW}, 1"); e(f"s_add_u32 s{sT}, s{sT}, s{sT+1}")
e(f"s_lshl_b32 s{sT+1}, s{cNT}, 10"); e(f"s_add_u32 s{sT+1}, s{sT+1}, s{cAK}"); e(f"s_add_u32 s{sT+1}, s{sT+1}, {56*512}")
stamp('pv')
e("s_waitcnt vmcnt(0)"); tsL(); e("s_cbranch_scc0 LC_slowH")
g.lab("LC_goH")
g.v = []
for k in range(4): c_aload(0, k)
for r in range(16): e(f"v_mul_f32 v{vO+r}, v{vO+r}, v{vSUM}")
for r in range(8): e(f"v_cvt_pk_bf16_f32 v{vO+8+7-r}, v{vO+14-2*r}, v{vO+15-2*r}")
dstore([f"buffer_store_dwordx4 {vr(vO+8+4*f,4)}, v{vOA}, {sr(sWS,4)}, s{sT+1} offen offset:{f*512}" for f in range(2)])
stamp('attn')
g.v += ['st', 'st']
e(f"v_bfe_u32 v{vT}, v{L}, 2, 3"); e(f"v_lshrrev_b32 v{vT+1}, 5, v{L}"); e(f"v_lshl_add_u32 v{vT+1}, v{vT+1}, 4, v{vT}")
e(f"v_lshlrev_b32 v{vT+1}, 8, v{vT+1}"); e(f"v_lshl_add_u32 v{vT+1}, v{vT}, 5, v{vT+1}")
e(f"v_and_b32 v{vT}, 3, v{L}"); e(f"v_lshl_add_u32 v{vT+1}, v{vT}, 3, v{vT+1}")
e(f"s_lshr_b32 s{sT}, s{cQ}, 1"); e(f"s_lshl_b32 s{sT}, s{sT}, 7"); e(f"v_xor_b32 v{vT+1}, s{sT}, v{vT+1}"); e(f"v_add_u32 v{cvRA}, {CRING}, v{vT+1}")
for u in range(1, 8): e(f"v_xor_b32 v{cvRA+u}, {32*u}, v{cvRA}")
for p in range(1, OPT['apre']):
    for k in range(4): c_aload(p, k)
e("s_barrier")
SEQ = []
for s in range(NH):
    for ku in range(2):
        us = list(range(8)) if not (s == NH-1 and ku == 1) else [4,5,6,7,0,1,2,3]
        SEQ += [(s, ku, u, (0, 1)) for u in us]
I1 = len(SEQ)
SEQ += [(s, ku, u, (0, 1)) for s in range(NH, NS) for ku in range(2) for u in range(4, 8)]
I2 = len(SEQ)
if OPT['p3']:
    SEQ += [(s, ku, u, (1,)) for s in range(NH, NS) for ku in range(2) for u in range(4)]
    I3 = len(SEQ)
    SEQ += [(s, ku, u, (0,)) for s in range(NH, NS) for ku in range(2) for u in range(4)]
else:
    SEQ += [(s, ku, u, (1, 0)) for s in range(NH, NS) for ku in range(2) for u in range(4)]
    I3 = len(SEQ)
def wread(i):
    if i >= len(SEQ): return
    s, ku, u, _ = SEQ[i]
    for tr in range(2):
        g.lds(f"ds_read_b64_tr_b16 {vr(cvWF+4*(i&7)+2*tr,2)}, v{cvRA+u} offset:{(s%4)*16384+ku*8192+tr*2048}", ('W', i & 7))
g.q = []
for i in range(7): wread(i)
stamp('loopC')
cRD = 48
cvO32, cvRF, cvOUT, cvG = 22, 23, 24, 25
cRV = cvACC + 32
def ldO(): e(f"buffer_load_dword v{cvPL}, v{cvO32}, {sr(sWS,4)}, s54 offen offset:{FL_O} sc1")
def ldR(): e(f"buffer_load_dword v{cvPL}, v{cvRF}, {sr(sWS,4)}, s{sT+6} offen offset:{FL_P} sc1")
def ldR2(): e(f"buffer_load_dword v{cvPL}, off, {sr(sWS,4)}, s{sT+5} offset:{FL_P2} sc1")
def rloads(ii):
    for i in ii:
        e(f"s_add_u32 s{sT}, s{cRD+3}, {i*16384}")
        for f in range(2): e(f"buffer_load_dwordx4 {vr(cRV+8*(i-1)+4*f,4)}, v{vL16}, {sr(sWS,4)}, s{sT} offen offset:{f*1024} sc1")
t0, t1 = vT, vT+1
fill = {s: [] for s in range(NS)}
fill[1] = [[x] for x in (
    f"v_and_b32 v{cvO32}, 31, v{L}", f"v_lshlrev_b32 v{cvO32}, 9, v{cvO32}", f"s_lshl_b32 s54, s{sRB}, 14", f"s_add_u32 s54, s54, {WS_FL:#x}",
    f"v_and_b32 v{t0}, 1, v{L}", f"v_or_b32 v{t0}, 2, v{t0}", f"v_lshlrev_b32 v{t0}, 3, v{t0}", f"s_xor_b32 s{sT+5}, s{sT+7}, {8*512}", f"v_xor_b32 v{t0}, s{sLAM}, v{t0}", f"v_lshlrev_b32 v{cvRF}, 9, v{t0}",
    f"s_mov_b32 s{sT+6}, {WS_FL:#x}", f"s_mov_b32 s{sDN}, 0", f"s_mov_b32 s{sOK+1}, 0")]
fill[2] = [[x] for x in (
    f"s_lshl_b32 s{sT}, s{sRB}, 3", f"s_add_u32 s{sT}, s{sT}, s{cNT}", f"s_lshl_b32 s{sT}, s{sT}, 18", f"s_lshl_b32 s{sT+1}, s{sW}, 11", f"s_add_u32 s{sT}, s{sT}, s{sT+1}", f"s_add_u32 s{sT}, s{sT}, {WS_PART:#x}")]
for i in (1, 2, 3):
    fill[2] += [[x] for x in (f"s_xor_b32 s{sT+1}, s{cQ}, {i}", f"s_lshl_b32 s{sT+1}, s{sT+1}, 16", f"s_add_u32 s{sT+1}, s{sT+1}, s{sT}", f"s_add_u32 s{cRD+i-1}, s{sT+1}, {i*16384}")]
fill[2] += [[x] for x in (f"s_lshl_b32 s{sT+1}, s{cQ}, 16", f"s_add_u32 s{cRD+3}, s{sT+1}, s{sT}",
    f"s_lshl_b32 s{sT}, s{sRB}, 19", f"s_lshl_b32 s{sT+1}, s{sW}, 16", f"s_add_u32 s{sT}, s{sT}, s{sT+1}", f"s_and_b32 s{sT+1}, s{cQ}, 1", f"s_lshl_b32 s{sT+1}, s{sT+1}, 15",
    f"s_add_u32 s{sT}, s{sT}, s{sT+1}", f"s_lshl_b32 s{sT+1}, s{cNT}, 8", f"s_add_u32 s{sT}, s{sT}, s{sT+1}", f"s_lshr_b32 s{sT+1}, s{cQ}, 1", f"s_lshl_b32 s{sT+1}, s{sT+1}, 7",
    f"s_add_u32 s{cRD+4}, s{sT}, s{sT+1}",
    f"v_and_b32 v{cvOUT}, 15, v{L}", f"v_lshlrev_b32 v{cvOUT}, 11, v{cvOUT}", f"v_bfe_u32 v{t0}, v{L}, 4, 1", f"v_lshl_add_u32 v{cvOUT}, v{t0}, 5, v{cvOUT}",
    f"v_lshrrev_b32 v{t0}, 5, v{L}", f"v_lshl_add_u32 v{cvOUT}, v{t0}, 4, v{cvOUT}")]
send = {1: [], 2: [], 3: []}
for i in (1, 2, 3):
    d = cvPT + 8*(i-1)
    for k in range(4):
        a = cvACC + 8*(4*(i >> 1)+k) + 4*(i & 1)
        send[i] += [[f"v_cvt_pk_bf16_f32 v{d+2*k}, v{a}, v{a+1}", f"v_cvt_pk_bf16_f32 v{d+2*k+1}, v{a+2}, v{a+3}"]]
        if k & 1: send[i] += [[f"@S buffer_store_dwordx4 {vr(d+4*(k>>1),4)}, v{vL16}, {sr(sWS,4)}, s{cRD+i-1} offen offset:{(k>>1)*1024} sc1"]]
pa = [(s, k) for s in range(OPT['apre'], NS) for k in range(4)]
pd = [(s, k) for s in range(NPRE, NS) for k in range(2)]
cvG2 = 128
def gload():
    e(f"v_and_b32 v{t0}, 7, v{L}"); e(f"v_bfe_u32 v{t1}, v{L}, 3, 1"); e(f"v_lshlrev_b32 v{t1}, 9, v{t1}"); e(f"v_lshl_add_u32 v{t0}, v{t0}, 2, v{t1}")
    e(f"s_lshl_b32 s{sT}, s{sW}, 1"); e(f"s_and_b32 s{sT+1}, s{cQ}, 1"); e(f"s_add_u32 s{sT}, s{sT}, s{sT+1}"); e(f"s_lshl_b32 s{sT}, s{sT}, 10"); e(f"s_add_u32 s{sT}, s{sT}, s54")
    g.vm(f"buffer_load_dword v{cvG}, v{t0}, {sr(sWS,4)}, s{sT} offen sc1", 'gv')
    if not OT:
        e(f"s_xor_b32 s{sT}, s{sT}, 1024"); g.vm(f"buffer_load_dword v{cvG2+1}, v{t0}, {sr(sWS,4)}, s{sT} offen sc1", 'gv')
if not OT:
    fill[NH-1] = [["@G"], [f"v_mov_b32 v{cvG2}, v{cvG}"]]
    for k in range(2):
        r = cvG2 + k
        fill[NH-1] += [[f"v_max_f32 v{t0}, {f32(2.0**-60)}, v{r}"], [f"v_sub_f32 v{r}, 1.0, v{r}"], [f"v_cvt_pk_bf16_f32 v{r}, v{r}, v{r}"], [f"v_and_b32 v{r}, 0xffff0000, v{r}"],
                       [f"v_rcp_f32 v{t0}, v{t0}", "s_nop 0"], [f"v_mul_f32 v{r}, v{r}, v{t0}"]]
    fill[NH-1] += [[f"v_max_f32 v{cvG}, {f32(2.0**-60)}, v{cvG}"]]
def rescale(u, mf):
    a = cvACC + 8*u + 4*mf
    if OPT['dbg'] & 2:
        for r in range(4): e(f"v_mul_f32 v{a+r}, v{a+r}, v{cvG2+mf}")
        return
    for r in (0, 2): e(f"v_pk_mul_f32 {vr(a+r,2)}, {vr(a+r,2)}, {vr(cvG2,2)} op_sel:[0,{mf}] op_sel_hi:[1,{mf}]")
WIN = [[16, 31, fill[1]], [32, 47, fill[2]], [16*(NH-1), 16*(NH-1)+11, fill[NH-1]], [I2+2, I2+13, send[2]+send[3]]]
if OPT['p3']: WIN.append([I3+4, I3+9, send[1]])
for w in WIN: w.append(len(w[2]))
vis = 0; freed = -1
def nafter(tag): return min(15, len(g.v) - 1 - max(i for i, t in enumerate(g.v) if t == tag)) if tag in g.v else min(15, len(g.v))
for i, (s, ku, u, mfs) in enumerate(SEQ):
    if i == I1: stamp('endH')
    if i == I3: stamp('p3')
    cur = min(s, NH) if i >= I1 else s
    for idx, mf in enumerate(mfs):
        k = 2*ku + mf; a = cvACC + 8*u + 4*mf
        g.need([('W', i & 7)], [('a', s, k)])
        e(f"{MF16} {vr(a,4)}, {vr(cvWF+4*(i&7),4)}, {vr(cvAR+16*(s%D)+4*k,4)}, " + ("0" if i < 8 else vr(a,4)))
        if I1 - 4 <= i < I1 + 4: rescale(SEQ[i-4][2], mf)
        if idx == 0:
            if i + 7 < len(SEQ) and SEQ[i+7][0] > vis:
                vis = SEQ[i+7][0]
                g.need([('W', k) for k in range(8)] if vis <= NH else [], [('d', vis)] + (['st'] if vis == 2 else [])); e("s_barrier")
                if vis == 2:
                    e(f"s_cmp_lg_u32 s{sW}, 0"); e("s_cbranch_scc1 LC_nof1")
                    one_lane(lambda: e(f"buffer_store_dword v{vCN}, off, {sr(sWS,4)}, s{sT+7} offset:{FL_O} sc1"))
                    g.lab("LC_nof1")
            wread(i+7)
            nxt = None
            if i % 2 == 0 or i >= I1:
                okd = pd and pd[0][0] <= (vis + 3 if pd[0][0] == NS-1 else cur + 3); oka = pa and pa[0][0] <= cur + D - 1
                if okd and (not oka or pd[0][0] <= pa[0][0] and (i % 16 % 6 == 2 or pd[0][0] < pa[0][0])): nxt = 'd'
                elif oka: nxt = 'a'
                if nxt == 'd' and pd[0][1] == 0: c_m0(pd[0][0])
        for lo, hi, fl, n0 in WIN:
            if lo <= i <= hi:
                frac = (i - lo + (idx+1)/len(mfs)) / (hi - lo + 1)
                while fl and (n0 - len(fl)) < n0 * frac - 1e-9:
                    for x in fl.pop(0):
                        if x.startswith("@S "): g.vm(x[3:], 'snd')
                        elif x == "@G": g.need([], ['gv'])
                        else: e(x)
        if idx == len(mfs) - 1:
            if nxt == 'd': c_dma(*pd.pop(0))
            elif nxt == 'a':
                if pa[0] == (NH, 0):
                    g.need([], ['opoll']); tsL(); e("s_cbranch_scc0 LC_slowO"); g.lab("LC_goO"); gload()
                c_aload(*pa.pop(0))
            if i == 16*(NH - D - 1) + 1: ldO(); g.v.append('opoll')
            if OPT['dbg'] & 1: continue
            if I2 + 14 <= i < I3 and (i - I2) % 4 == 3: trysig(nafter('snd'), CNT2+4, 0, FL_P, force=(i == I3-1))
            if i == I3 - 1: e(f"s_mov_b32 s{sDN}, 0")
            if OPT['p3']:
                if I3 + 12 <= i < I3 + OPT['rc'] and (i - I3) % 4 == 3: trysig(nafter('snd'), CNT2+8, 0, FL_P2)
                if i == I3 + 10: ldR(); g.v.append('rpoll')
                if i == I3 + OPT['rc']:
                    g.need([], ['rpoll']); trysig(15, CNT2+8, 0, FL_P2, force=True); tsL(); e("s_cbranch_scc0 LC_nor"); rloads((2, 3)); e(f"s_mov_b32 s{sOK+1}, 1"); g.lab("LC_nor")
assert not pa and not pd and not any(w[2] for w in WIN)
g.lab("LC_done")
sv = g.L; g.L = g.tail
g.lab("LC_slowO"); spin("LC_spinO", ldO, tsL, sT+3); e("s_branch LC_goO")
g.lab("LC_slowH"); spin("LC_spinH", ldH, tsL, sT+3); e("s_branch LC_goH")
g.lab("LC_slowR"); spin("LC_spinR", ldR, tsL, sT+3); rloads((2, 3)); e("s_branch LC_goR")
g.L = sv
stamp('endC')
if not OPT['p3']:
    e("s_nop 3")
    for grp in send[1]:
        for x in grp: e(x[3:] if x.startswith("@S ") else x)
    ldR()
    trysig(1, CNT2+8, 0, FL_P2, force=True)
    e("s_waitcnt vmcnt(1)" if False else "s_waitcnt vmcnt(0)"); tsL(); e("s_cbranch_scc0 LC_slowR"); rloads((2, 3)); e("s_branch LC_goR")
if OPT['dbg'] & 1:
    e("s_nop 15"); trysig(0, CNT2+4, 0, FL_P, force=True); e(f"s_mov_b32 s{sDN}, 0"); trysig(0, CNT2+8, 0, FL_P2, force=True)
e(f"s_cmp_eq_u32 s{sOK+1}, 0"); e("s_cbranch_scc1 LC_slowR")
g.lab("LC_goR")
spin("LC_spinR2", ldR2, tsL, sT+3); rloads((1,))
e(f"v_mov_b32 v{vT+4}, 0x3f80"); e(f"v_mov_b32 v{vT+5}, 0x3f800000")
if OT:
    e(f"v_sub_f32 v{vT+2}, 1.0, v{cvG}"); e(f"v_cvt_pk_bf16_f32 v{vT+2}, v{vT+2}, v{vT+2}"); e(f"v_and_b32 v{vT+2}, 0xffff0000, v{vT+2}")
    for r in range(16): e(f"v_mul_f32 v{cvOA+r}, v{cvG}, v{cvOA+r}")
for i in (2, 3, 1):
    if i == 1: e("s_waitcnt vmcnt(0)")
    d = cRV + 8*(i-1)
    for k in range(4):
        a = cvACC + 8*k
        for r in range(4): e(f"v_dot2_f32_bf16 v{a+r}, v{d+2*k+(r>>1)}, v{vT+4+(r&1)}, v{a+r}")
e("s_nop 2")
for pr in range(2):
    for k in (2*pr, 2*pr+1):
        for r in range(4): e(f"v_fmac_f32 v{cvOA+4*k+r}, v{vT+2}, v{cvACC+8*k+r}" if OT else f"v_mul_f32 v{cvOA+4*k+r}, v{cvG}, v{cvACC+8*k+r}")
    x = cvOA + 8*pr; y = x + 4; d = cvPT + 24 + 4*pr
    e(f"v_cvt_pk_bf16_f32 v{d}, v{x}, v{x+1}"); e(f"v_cvt_pk_bf16_f32 v{d+1}, v{x+2}, v{x+3}")
    e(f"v_cvt_pk_bf16_f32 v{d+2}, v{y}, v{y+1}"); e(f"v_cvt_pk_bf16_f32 v{d+3}, v{y+2}, v{y+3}")
    e("s_nop 1")
    e(f"v_permlane16_swap_b32 v{d}, v{d+2}"); e(f"v_permlane16_swap_b32 v{d+1}, v{d+3}")
    e(f"buffer_store_dwordx4 {vr(d,4)}, v{cvOUT}, {sr(cOUT,4)}, s{cRD+4} offen offset:{pr*64}")
g.lab("LC_fin")
stamp('fin')
if OPT['stamp']:
    e(f"s_lshl_b32 s{sT}, s2, 3"); e(f"s_add_u32 s{sT}, s{sT}, s{sW}"); e(f"s_lshl_b32 s{sT}, s{sT}, 7"); e(f"s_add_u32 s{sT}, s{sT}, {WS_STAMP:#x}")
    e(f"v_lshlrev_b32 v{vT}, 2, v{L}"); e("s_mov_b32 exec_hi, 0")
    e(f"buffer_store_dword v0, v{vT}, {sr(sWS,4)}, s{sT} offen")
    if OPT['stamp'] == 2:
        e(f"v_readlane_b32 s{sT}, v0, 16"); e(f"s_not_b32 s{sT}, s{sT}"); e(f"v_writelane_b32 v0, s{sT}, 16")
        e(f"v_subrev_u32 v{vT}, 60, v{vT}"); e(f"s_mov_b32 exec_lo, {((1<<len(SN))-1)<<16:#x}")
        e(f"buffer_atomic_umax v0, v{vT}, {sr(sDBG,4)}, 0 offen sc1")
g.lab("L_end")
e("s_endpgm")
g.L += g.tail + g.tail2 + ['LZ_end:']
if OPT['nobar'] or OPT['nodma'] or OPT['nolds'] or OPT['noadv']:
    o = []; inl = False
    for l in g.L:
        if l.startswith('LA_loop') or l.startswith('LC_loop'): inl = True
        if 'LA_h1_' in l or l.startswith('LC_done'): inl = False
        if inl and OPT['nobar'] and 's_barrier' in l: continue
        if inl and OPT['nodma'] and 'buffer_load' in l: continue
        if inl and OPT['nolds'] and 'ds_read' in l: continue
        if inl and OPT['noadv'] and any(f's_add_u32 s{k}, s{k},' in l for k in list(range(sOW, sOW+5)) + [sKX]): continue
        o.append(l)
    g.L = o

hdr = [l.rstrip('\n') for l in open("cdna_kernels/%s.s.ref" % NAME)]
hdr = [l for l in hdr if l.startswith(';') and '@launch' not in l]
out = hdr + [f"; @launch grid=(256,1,1) block=(512,1,1) lds={LDS_BYTES}", '.amdgcn_target "amdgcn-amd-amdhsa--gfx950"', ".text"] + g.L
out += ['.section .rodata,"a"', ".p2align 6", f""".amdhsa_kernel {KN}
  .amdhsa_next_free_vgpr 256
  .amdhsa_next_free_sgpr 102
  .amdhsa_accum_offset 256
  .amdhsa_group_segment_fixed_size 0
  .amdhsa_kernarg_size 88
  .amdhsa_user_sgpr_count 2
  .amdhsa_user_sgpr_kernarg_segment_ptr 1
  .amdhsa_system_sgpr_workgroup_id_x 1
.end_amdhsa_kernel"""]
out.insert(0, "; stamps: " + ",".join(SN)) if OPT['stamp'] else None
open(sys.argv[1], "w").write("\n".join(out) + "\n")
import hazard
errs = hazard.check("\n".join(g.L))
print("\n".join(errs) if errs else "hazard check clean")
```

```python
import sys, struct
NAME = "gated_mix__sliding_block__swiglu_ffn__prompt"
KN = NAME + "_kernel"
OPT = dict(stamp=0, NP=16, jbx=5, xrd=[0,0,1,1], xpos=[2,4,6,8], wpos=[1,3,5,7,9], pfpos=19, stag=0, PD=3, pf=1, CB=1, defer=0, slp=2, touch=0, pfnt=0, wnt=0, bprio=0, amap=3, fast=0, D=4, npre=3, apre=1, hpos=[0,1,2,4,6,8], dpos=[10,11,12,13], fr=5, hx=0, fnt=1, cpf=3, cpf0=1, h0=2, nopk=0, pf2=0, wdst=4, wdn=24, otail=0, gl=2, p3=0, rc=24, dbg=2, hq=15, early1=2, snake=0, tst=0, wshift=0, noadv=0, aflag='sc1', kvfast=0, rfast=0, pfast=1, wb=0, pre=0, cmap=1, m16=288*512, c3=0, kvs1=1, cprio=0, AB=0,
           noX=0, noW=0, noA=0, noW2=0, prio=0, kvs=2, nobar=0, nodma=0, nolds=0)
for a in sys.argv[2:]:
    k, v = a.split('='); assert k in OPT, k
    OPT[k] = eval(v)
def f32(x): return "0x%08x" % struct.unpack('<I', struct.pack('<f', x))[0]
def vr(a, n=1): return f"v[{a}:{a+n-1}]" if n > 1 else f"v{a}"
def sr(a, n=1): return f"s[{a}:{a+n-1}]" if n > 1 else f"s{a}"
NV = [0]
class Gen:
    def __init__(s): s.L = []; s.q = []; s.v = []; s.tail = []; s.tail2 = []
    def e(s, t): s.L.append("    " + t)
    def lab(s, t): s.L.append(t + ":")
    def lds(s, t, tag): s.e(t); s.q.append(tag)
    def vm(s, t, tag): s.e(t); s.v.append(tag); NV[0] += 1
    def need(s, tags=(), vt=()):
        w = []
        idx = [i for i, t in enumerate(s.v) if t in vt]
        if idx:
            n = len(s.v) - 1 - max(idx); s.v = s.v[max(idx)+1:]; assert n < 64
            w.append(f"vmcnt({n})")
        idx = [i for i, t in enumerate(s.q) if t in tags]
        if idx:
            n = len(s.q) - 1 - max(idx); s.q = s.q[max(idx)+1:]
            w.append(f"lgkmcnt({min(n,15)})")
        if w: s.e("s_waitcnt " + " ".join(w))
    def steady(s, body):
        sv = s.L; s.L = []; s.q = []; s.v = []
        body(); body(); r = (list(s.q), list(s.v)); s.L = sv
        return r
g = Gen(); e = g.e
M16 = OPT['m16']; A_BYTES = 128*M16
WS_KV = 0x1400000; WS_PART = 0x1C00000; WS_G = 0x2C00000; WS_FL = 0x2C10000; WS_STAMP = 0x3000000; WS_SIZE = 0x4000000
FL_KV, FL_H, FL_O, FL_P, FL_P2 = 128, 256, 260, 384, 388
sFAST = 34+1
LOG2E = 1.4426950408889634
SPIN = 0x8000
MF16 = "v_mfma_f32_16x16x32_bf16"; MF32 = "v_mfma_f32_32x32x16_bf16"
sW, sRB, sH, sMW, sNW = 3, 4, 5, 6, 7
sX, sA, sB, sQ, sWS, sDBG, sPF = 8, 12, 16, 20, 24, 28, 32
sKX, sOW, sMWd, sINCA, sMX, sCNT, sKXE, sPFO, sPFI, sLAM, sOK, sGO = 36, 37, 42, 47, 48, 49, 50, 51, 52, 53, 54, 55
sT = 56; sP = 64; sST = 86
pX, pQKV, pWO, pWG, pWU, pWD, pGW, pOUT, pDBG, pWSp = sP, sP+2, sP+4, sP+8, sP+10, sP+12, sP+14, sP+16, sP+18, sP+20
sFAST = 101
sK = sP+6
vL, vL16, vPF, vDX, vDA, vDB, vXR, vWG, vWQ, vDUM, vCN, vGV, vT = 1, 2, 3, 4, 8, 9, 10, 12, 14, 18, 19, 20, 26
vWF, vXF, vACC = 44, 64, 96
L = vL
def ACC(j, i): return vACC + (4*j+i)*4
XSLOT = 32768; WBASE = 65536; HALF = 20480; WSLOT = 2*HALF; GOFF = 6144; UOFF = 6144+7168
LDS_BYTES = 163840; QLDS = 65536; CNTLDS = 163832; CNT2 = 81920; GLDS = 163776; sGW = 96
UNITS = [['q0','q1','k0','k1','g0','u0','g1','u1','g2','u2'], ['v0','v1','g3','u3','g4','u4','g5','u5','g6','u6']]
def srd(d, p, size):
    e(f"s_mov_b32 s{d}, s{p}"); e(f"s_and_b32 s{d+1}, s{p+1}, 0xffff"); e(f"s_mov_b32 s{d+2}, {size:#x}"); e(f"s_mov_b32 s{d+3}, 0x20000")
SN = ['start','loopA','endA','ks','hdone','kvok','bar2','sph','hs','pv','attn','loopC','endH','rs','endC','fin']
SN = ['start','loopA','ks','endA','hdone','kvok','bar2','sph','hs','pv','loopC','endH','rs','endC','rs2','fin']
if OPT['tst']: SN = ['start','loopA'] + [f't{i}' for i in range(7)] + ['endA', 'fin']
def stamp(name):
    if OPT['tst'] and name not in ('loopA', 'endA', 'fin'): return
    if name not in SN: return
    idx = SN.index(name); assert idx < 16
    if not OPT['stamp']: return
    e(f"s_memtime s[{sST}:{sST+1}]"); e(f"s_memrealtime s[{sST+2}:{sST+3}]"); e("s_waitcnt lgkmcnt(0)")
    e(f"v_writelane_b32 v0, s{sST}, {idx}"); e(f"v_writelane_b32 v0, s{sST+2}, {idx+16}")
def pstamp(k):
    if OPT['stamp']: e(f"s_memtime s[{92+2*k}:{93+2*k}]")
NDS = [0]
def dstore(lines, on=True):
    if True:
        for l in lines: e(l + " sc1")
        return
    k = NDS[0]; NDS[0] += 1
    e(f"s_cmp_eq_u32 s{sFAST}, 1"); e(f"s_cbranch_scc0 LS_s{k}")
    for l in lines: e(l)
    g.lab(f"LS_r{k}")
    g.tail2 += [f"LS_s{k}:"] + ["    " + l + " sc1" for l in lines] + [f"    s_branch LS_r{k}"]
def one_lane(f):
    e("s_mov_b64 exec, 1"); f(); e("s_mov_b64 exec, -1")

def a_wread(nw, n, tj=None):
    n %= 40; t = n // 10; j = n % 10
    if tj: t, j = tj
    sig = (t+1) >> 1; half = (t+1) & 1; slot = sig & 1; un = UNITS[nw][j]
    for tr in range(2):
        if un[0] in 'qkv':
            a = vWQ + 2*slot + int(un[1]); off = half*HALF + 'qkv'.index(un[0])*2048 + tr*512
        else:
            a = vWG + slot; off = half*HALF + (GOFF if un[0] == 'g' else UOFF) + tr*1792 + int(un[1])*32
        g.lds(f"ds_read_b64_tr_b16 {vr(vWF+4*(n%5)+2*tr,2)}, v{a} offset:{off}", ('W', n % 5))
def a_xread(i, t):
    t %= 4
    g.lds(f"ds_read_b128 {vr(vXF+16*(t&1)+4*i,4)}, v{vXR+(t&1)} offset:{(t>>1)*XSLOT+i*2048}", ('X', t & 1, i))
def a_m0(k, n, slot):
    if k == 'x': e(f"s_add_u32 m0, s{sMX}, {slot*XSLOT}")
    elif k == 'w': e(f"s_add_u32 m0, s{sMWd+n}, {slot*WSLOT}")
def a_op(k, n, slot, first=False):
    if k == 'x':
        g.vm(f"buffer_load_dwordx4 v{vDX+n}, {sr(sX,4)}, s{sKX} offen offset:{1024*n} lds", ('x', slot, n))
        if n == 3:
            e(f"s_add_u32 s{sKX}, s{sKX}, 128")
    elif k == 'w':
        d = [sA, sA, sB, sB, sQ][n]; v = vDA if n < 4 else vDB
        if first: e(f"s_cmp_lt_i32 s{sOW+n}, 0"); e(f"s_cbranch_scc1 LA_skipw{n}")
        g.vm(f"buffer_load_dwordx4 v{v}, {sr(d,4)}, s{sOW+n} offen" + (" nt" if (OPT['wnt'] & 1 or (first and OPT['fnt'])) else "") + " lds", ('w', slot, n))
        if first: g.lab(f"LA_skipw{n}")
        e(f"s_add_u32 s{sOW+n}, s{sOW+n}, " + (f"s{sINCA}" if n < 4 else f"{64*6144}"))
    else:
        g.vm(f"buffer_load_dword v{vDUM}, v{vPF}, {sr(sPF,4)}, s{sPFO} offen" + (" nt" if OPT['wnt'] & 2 and NWCUR[0] == 0 else ""), ('p', 0, 0))
        e(f"s_add_u32 s{sPFO}, s{sPFO}, s{sPFI}")
def a_full(k, n, slot, first=False):
    a_m0(k, n, slot)
    if not first: e("s_nop 0")
    a_op(k, n, slot, first)
JBW = 6
def a_events(nw):
    ev = {}; st = OPT['stag']*nw
    for t in (1, 3):
        for n, o in enumerate(OPT['xpos']): assert 0 <= o+st < 20; ev.setdefault((t*10+OPT['jbx']+o+st) % 40, []).append(('x', n, t >> 1))
    for t in (0, 2):
        for n, o in enumerate(OPT['wpos']): assert 0 <= o+st < 20; ev.setdefault((t*10+JBW+o+st) % 40, []).append(('w', n, t >> 1))
        if OPT['pf']: ev.setdefault((t*10+JBW+OPT['pfpos']-st) % 40, []).append(('p', 0, 0))
    return ev
NWCUR = [0]
def a_body(nw):
    NWCUR[0] = nw
    ev = a_events(nw)
    for t in range(4):
        for j in range(10):
            n = t*10 + j; un = UNITS[nw][j]; evs = ev.get(n, [])
            for i in range(4):
                i2 = 3-i if (OPT['snake'] and j & 1) else i
                g.need([('W', n % 5), ('X', t & 1, i2)])
                a, b = vr(vWF+4*(n % 5), 4), vr(vXF+16*(t & 1)+4*i2, 4)
                if un[0] == 'v': a, b = b, a
                e(f"{MF16} {vr(ACC(j,i2),4)}, {a}, {b}, {vr(ACC(j,i2),4)}")
                if i == 0:
                    if t % 2 == 0 and j == JBW:
                        g.need([('W', k) for k in range(5)], [('w', 1-(t >> 1), k) for k in range(5)]); e("s_barrier")
                    if t % 2 == 1 and j == OPT['jbx']:
                        g.need([], [('x', 1-(t >> 1), k) for k in range(4)]); e("s_barrier")
                    a_wread(nw, n+4)
                if i == 1:
                    for ii in range(4):
                        if OPT['jbx'] + OPT['xrd'][ii] == j: a_xread(ii, t+1)
                    if evs: a_m0(*evs[0])
                if i == 2 and evs:
                    a_op(*evs[0])
                    for x in evs[1:]: a_full(*x)

def silu(jg, i, t, R):
    G = ACC(jg, i); U = ACC(jg+1, i)
    for r in range(0, 8, 2): e(f"v_pk_mul_f32 {vr(t+r,2)}, {vr(G+r,2)}, {sr(sK,2)}")
    for r in range(8): e(f"v_exp_f32 v{t+r}, v{t+r}")
    for r in range(0, 8, 2): e(f"v_pk_mul_f32 {vr(G+r,2)}, {vr(G+r,2)}, {vr(U+r,2)}")
    for r in range(0, 8, 2): e(f"v_pk_add_f32 {vr(t+r,2)}, {vr(t+r,2)}, s[94:95]")
    for r in range(8): e(f"v_rcp_f32 v{t+r}, v{t+r}")
    e("s_nop 0")
    for r in range(0, 8, 2): e(f"v_pk_mul_f32 {vr(G+r,2)}, {vr(G+r,2)}, {vr(t+r,2)}")
    for r in range(4): e(f"v_cvt_pk_bf16_f32 v{R+r}, v{G+2*r}, v{G+2*r+1}")
    e("s_nop 1")
    e(f"v_permlane32_swap_b32 v{R}, v{R+2}"); e(f"v_permlane32_swap_b32 v{R+1}, v{R+3}")
def pack2(j, i):
    a, b = ACC(j, i), ACC(j+1, i)
    e(f"v_cvt_pk_bf16_f32 v{a}, v{a}, v{a+1}"); e(f"v_cvt_pk_bf16_f32 v{a+1}, v{a+2}, v{a+3}")
    e(f"v_cvt_pk_bf16_f32 v{a+2}, v{b}, v{b+1}"); e(f"v_cvt_pk_bf16_f32 v{a+3}, v{b+2}, v{b+3}")
def spin(name, load, test, cnt):
    e(f"s_mov_b32 s{cnt}, {SPIN:#x}")
    g.lab(name)
    load(); e("s_waitcnt vmcnt(0)"); test()
    e(f"s_cbranch_scc1 {name}_ok")
    e(f"s_sub_u32 s{cnt}, s{cnt}, 1"); e(f"s_cbranch_scc1 {name}_ok")
    e(f"s_sleep {OPT['slp']}"); e(f"s_branch {name}")
    g.lab(name + "_ok")
NSIG = [0]
sDN, sHB, sFO = 100, 92, 101
vSG = 20
def trysig(n, ldsaddr, flagadd, flagoff, force=False):
    k = NSIG[0]; NSIG[0] += 1
    if force: e(f"s_cmp_eq_u32 s{sDN}, 0")
    else:
        e(f"s_getreg_b32 s{sFO}, hwreg(HW_REG_IB_STS)"); e(f"s_and_b32 s{sFO}, s{sFO}, 0xc0000f"); e(f"s_or_b32 s{sFO}, s{sFO}, s{sDN}"); e(f"s_cmp_le_u32 s{sFO}, {n}")
    e(f"s_cbranch_scc1 LG_s{k}"); g.lab(f"LG_r{k}")
    g.tail2 += [f"LG_s{k}:"] + ["    " + x for x in (
        f"v_mov_b32 v{vSG}, {ldsaddr}", f"s_mov_b32 s{sDN}, 0x10000", "s_mov_b64 exec, 1", f"s_waitcnt vmcnt({n})",
        f"ds_add_rtn_u32 v{vSG+1}, v{vSG}, v{vCN}", "s_waitcnt lgkmcnt(0)", f"v_readfirstlane_b32 s{sFO}, v{vSG+1}", "s_nop 1",
        f"s_cmp_lg_u32 s{sFO}, 7", f"s_cbranch_scc1 LG_x{k}", f"s_add_u32 s{sFO}, s{sT+7}, {flagadd}",
        f"buffer_store_dword v{vCN}, off, {sr(sWS,4)}, s{sFO} offset:{flagoff} sc1")] + [f"LG_x{k}:", "    s_mov_b64 exec, -1"]
    sv = g.L; g.L = g.tail2; stamp({FL_KV:'ks',FL_H:'hs',FL_P:'rs',FL_P2:'rs2'}[flagoff]); e(f"s_branch LG_r{k}"); g.L = sv
def gate_list(X, t, one):
    o = [[f"v_mov_b32 v{t+5}, 0"], [f"v_mov_b32 v{one}, 0x3f803f80"]]
    for d in range(8):
        o += [[f"v_lshlrev_b32 v{t}, 16, v{X+d}"], [f"v_and_b32 v{t+1}, 0xffff0000, v{X+d}"], [f"v_lshlrev_b32 v{t+2}, 16, v{X+8+d}"],
              [f"v_and_b32 v{t+3}, 0xffff0000, v{X+8+d}"], [f"v_pk_mul_f32 {vr(t,2)}, {vr(t,2)}, {vr(t+2,2)}"], [f"v_cvt_pk_bf16_f32 v{X+d}, v{t}, v{t+1}"]]
    for d in range(8): o.append([f"v_dot2_f32_bf16 v{t+5}, v{X+d}, v{one}, v{t+5}"])
    o.append(["s_nop 1"])
    for m in ("quad_perm:[1,0,3,2] row_mask:0xf", "quad_perm:[2,3,0,1] row_mask:0xf", "row_half_mirror row_mask:0xf",
              "row_mirror row_mask:0xf", "row_bcast:15 row_mask:0xa", "row_bcast:31 row_mask:0xc"):
        o.append(["s_nop 1", f"v_add_f32_dpp v{t+5}, v{t+5}, v{t+5} {m} bank_mask:0xf"])
    o += [[f"v_cvt_pk_bf16_f32 v{t}, v{t+5}, v{t+5}", f"v_and_b32 v{t}, 0xffff0000, v{t}"], [f"v_mul_f32 v{t}, {f32(-LOG2E)}, v{t}", f"v_exp_f32 v{t}, v{t}", "s_nop 0"],
          [f"v_add_f32 v{t}, 1.0, v{t}", f"v_rcp_f32 v{t}, v{t}", "s_nop 0"], [f"v_cvt_pk_bf16_f32 v{t}, v{t}, v{t}", f"v_and_b32 v{t}, 0xffff0000, v{t}"],
          [f"s_lshl_b32 s{sT}, s{sW}, 2", f"s_add_u32 s{sT}, s{sT}, {GLDS}", f"v_mov_b32 v{t+1}, s{sT}"],
          ["s_mov_b32 exec_lo, 0", "s_brev_b32 exec_hi, 1", f"ds_write_b32 v{t+1}, v{t}", "s_mov_b64 exec, -1"]]
    return o

D = OPT['D']; NH = 14; OT = OPT['otail']; NT = 8 if OT else 4; NS = NH + NT
cA, cWt, cOUT, cWo, cX = 8, 12, 16, 32, 40
cAK, cWK, cWK2, cQ, cNT, cM0, cAK2 = 20, 21, 22, 23, 36, 37, 38
cvDW, cvA, cvPL, cvDW2 = 4, 6, 16, 20
cvWF, cvAR, cvRB, cvRA, cvPT, cvOA, cvACC = 28, 60, 124, 136, 144, 176, 192
CRING = 98304
def c_setup():
    e(f"s_lshr_b32 s{cQ}, s{sH}, 3"); e(f"s_and_b32 s{cNT}, s{sH}, 7")
    e(f"s_lshl_b32 s{sT}, s{cNT}, 8")
    e(f"s_lshl_b32 s{cWK}, s{sW}, 14"); e(f"s_add_u32 s{cWK}, s{cWK}, s{sT}")
    e(f"s_lshl_b32 s{cWK2}, s{sW}, {15 if OT else 14}"); e(f"s_add_u32 s{cWK2}, s{cWK2}, s{sT}")
    e(f"s_mul_i32 s{sT}, s{cQ}, {896*2048}"); e(f"s_add_u32 s{cWK}, s{cWK}, s{sT}")
    if OT: e(f"s_lshr_b32 s{sT}, s{cQ}, 1"); e(f"s_lshl_b32 s{sT}, s{sT}, 7")
    else: e(f"s_lshl_b32 s{sT}, s{cQ}, 19")
    e(f"s_add_u32 s{cWK2}, s{cWK2}, s{sT}")
    e(f"s_lshl_b32 s{cM0}, s{sW}, 11"); e(f"s_add_u32 s{cM0}, s{cM0}, {CRING}")
    srd(cWt, pWD, 0 if OPT['noW2'] else 3584*2048); srd(cWo, pWO, 0 if OPT['noW2'] else 1024*2048)
    srd(cA, pWSp, 0 if OPT['noA'] else A_BYTES); srd(cOUT, pOUT, 2048*2048)
    e(f"s_lshl_b32 s{sT}, s{sRB}, 4"); e(f"s_lshl_b32 s{cAK}, s{sW}, 1"); e(f"s_add_u32 s{sT}, s{sT}, s{cAK}")
    e(f"s_mul_i32 s{cAK}, s{sT}, {M16}"); e(f"s_add_u32 s{cAK2}, s{cAK}, {56*512}")
    e(f"s_mul_i32 s{sT}, s{cQ}, {72*512}"); e(f"s_add_u32 s{cAK}, s{cAK}, s{sT}")
    e(f"s_and_b32 s{sT}, s{cQ}, 1"); e(f"s_mul_i32 s{sT}, s{sT}, {M16}"); e(f"v_add_u32 v{cvA}, s{sT}, v{vL16}")
    e(f"s_sub_u32 s{sT}, {M16}, s{sT}"); e(f"v_add_u32 v{cvA+1}, s{sT}, v{vL16}")
    e(f"v_lshrrev_b32 v{vT}, 4, v{vL}"); e(f"v_bfe_u32 v{vT+1}, v{vL}, 1, 3"); e(f"v_xor_b32 v{vT+1}, v{vT+1}, v{vT}")
    e(f"v_lshlrev_b32 v{vT}, 11, v{vT}"); e(f"v_lshl_add_u32 v{vT}, v{vT+1}, 5, v{vT}")
    e(f"v_and_b32 v{vT+1}, 1, v{vL}"); e(f"v_lshl_add_u32 v{cvDW}, v{vT+1}, 4, v{vT}")
    e(f"v_xor_b32 v{cvDW+1}, 128, v{cvDW}"); e(f"v_add_u32 v{cvDW+1}, 7168, v{cvDW+1}")
    e(f"v_and_b32 v{cvPL+1}, 7, v{L}"); e(f"v_lshlrev_b32 v{cvPL+1}, 9, v{cvPL+1}")
def c_m0(s): e(f"s_add_u32 m0, s{cM0}, {(s % 4)*16384}")
def c_dma(s, n):
    if s < NH:
        g.vm(f"buffer_load_dwordx4 v{cvDW+n}, {sr(cWt,4)}, s{cWK} offen offset:{n*1024} lds", ('d', s))
        if n == 1: e(f"s_add_u32 s{cWK}, s{cWK}, {64*2048}")
    else:
        g.vm(f"buffer_load_dwordx4 v{(cvDW2 if OT else cvDW)+n}, {sr(cWo,4)}, s{cWK2} offen offset:{n*1024} lds", ('d', s))
        if n == 1: e(f"s_add_u32 s{cWK2}, s{cWK2}, {(128 if OT else 64)*2048}")
def c_aload(s, k):
    if s < NH or not OT:
        ku, mf = k >> 1, k & 1
        g.vm(f"buffer_load_dwordx4 {vr(cvAR+16*(s%D)+4*k,4)}, v{cvA+mf}, {sr(cA,4)}, s{cAK} offen offset:{(s&1)*2048+ku*1024} sc1", ('a', s, k))
        if k == 3 and s & 1: e(f"s_add_u32 s{cAK}, s{cAK}, 4096")
    else:
        g.vm(f"buffer_load_dwordx4 {vr(cvAR+16*(s%D)+4*k,4)}, v{cvA}, {sr(cA,4)}, s{cAK2} offen offset:{k*1024} sc1", ('a', s, k))
        if k == 3: e(f"s_add_u32 s{cAK2}, s{cAK2}, {4096 if (s-NH) % 2 == 0 else 72*512-4096}")
def c_wread(s, n):
    s += n // 16; n %= 16
    if s >= NS: return
    for tr in range(2):
        if s < NH or not OT: a, off = cvRA + (n & 7), (n >> 3)*8192 + tr*2048
        else: a, off = cvRB + (n & 3), (n >> 2)*4096 + tr*1024
        g.lds(f"ds_read_b64_tr_b16 {vr(cvWF+4*(n&7)+2*tr,2)}, v{a} offset:{(s%4)*16384+off}", ('W', n & 7))

g.L += [".globl " + KN, ".p2align 8", f".type {KN},@function"]
g.lab(KN)
e("s_cmp_ge_u32 s2, 256"); e("s_cbranch_scc1 L_end")
e(f"s_load_dwordx16 {sr(sP,16)}, s[0:1], 0"); e(f"s_load_dwordx4 {sr(sP+16,4)}, s[0:1], 64"); e(f"s_load_dwordx2 {sr(sP+20,2)}, s[0:1], 80")
if OPT['stamp']: e(f"s_memtime s[{sST+4}:{sST+5}]"); e(f"s_memrealtime s[{sST+6}:{sST+7}]")
if OPT['cpf0']:
    e(f"s_getpc_b64 s[{sT}:{sT+1}]"); g.lab("LA_pc0")
    e(f"s_sub_u32 s{sT}, s{sT}, LA_pc0-{KN}"); e(f"s_subb_u32 s{sT+1}, s{sT+1}, 0")
    e(f"s_lshr_b32 s{sT+2}, s2, 3"); e(f"s_lshl_b32 s{sT+2}, s{sT+2}, 7")
    e(f"v_lshlrev_b32 v26, 12, v0"); e(f"v_add_u32 v26, s{sT+2}, v26")
    e(f"v_cmp_gt_u32 vcc, LZ_end-{KN}-4, v26"); e(f"v_mov_b32 v27, s{sT+1}"); e(f"s_and_saveexec_b64 s[{sT+2}:{sT+3}], vcc"); e("s_cbranch_execz LA_nopc")
    e(f"v_add_co_u32 v26, vcc, s{sT}, v26"); e("s_nop 1"); e(f"v_addc_co_u32 v27, vcc, 0, v27, vcc")
    e(f"global_load_dword v{vDUM}, v[26:27], off")
    g.lab("LA_nopc"); e("s_mov_b64 exec, -1")
e(f"v_lshrrev_b32 v{vT}, 6, v0"); e(f"v_and_b32 v{vL}, 63, v0"); e(f"v_readfirstlane_b32 s{sW}, v{vT}")
if OPT['amap'] == 0:
    e(f"s_lshr_b32 s{sRB}, s2, 5"); e(f"s_and_b32 s{sH}, s2, 7"); e(f"s_lshl_b32 s{sH}, s{sH}, 2")
    e(f"s_bfe_u32 s{sT}, s2, {(2<<16)|3:#x}"); e(f"s_add_u32 s{sH}, s{sH}, s{sT}")
elif OPT['amap'] == 1:
    e(f"s_and_b32 s{sRB}, s2, 7"); e(f"s_lshr_b32 s{sH}, s2, 3")
elif OPT['amap'] == 2:
    e(f"s_and_b32 s{sRB}, s2, 6"); e(f"s_lshr_b32 s{sT}, s2, 7"); e(f"s_add_u32 s{sRB}, s{sRB}, s{sT}")
    e(f"s_and_b32 s{sH}, s2, 1"); e(f"s_lshl_b32 s{sH}, s{sH}, 4"); e(f"s_bfe_u32 s{sT}, s2, {(4<<16)|3:#x}"); e(f"s_add_u32 s{sH}, s{sH}, s{sT}")
if OPT['amap'] == 3:
    e(f"s_and_b32 s{sRB}, s2, 4"); e(f"s_lshr_b32 s{sT}, s2, 6"); e(f"s_add_u32 s{sRB}, s{sRB}, s{sT}")
    e(f"s_and_b32 s{sH}, s2, 3"); e(f"s_lshl_b32 s{sH}, s{sH}, 3"); e(f"s_bfe_u32 s{sT}, s2, {(3<<16)|3:#x}"); e(f"s_add_u32 s{sH}, s{sH}, s{sT}")
e(f"s_and_b32 s{sMW}, s{sW}, 3"); e(f"s_lshr_b32 s{sNW}, s{sW}, 2")
e(f"s_lshl_b32 s{sLAM}, s{sRB}, 5"); e(f"s_add_u32 s{sLAM}, s{sLAM}, s{sH}")
e(f"v_lshlrev_b32 v{vL16}, 4, v{L}")
e(f"v_lshrrev_b32 v{vT}, 3, v{L}"); e(f"v_lshlrev_b32 v{vT}, 11, v{vT}")
e(f"v_lshrrev_b32 v{vT+1}, 4, v{L}"); e(f"v_and_b32 v{vT+2}, 7, v{L}"); e(f"v_xor_b32 v{vT+1}, v{vT+1}, v{vT+2}")
e(f"v_lshl_add_u32 v{vDX}, v{vT+1}, 4, v{vT}"); e(f"v_xor_b32 v{vDX+1}, 64, v{vDX}")
e(f"v_add_u32 v{vDX+2}, {2*15360}, v{vDX}"); e(f"v_add_u32 v{vDX+3}, {3*15360}, v{vDX+1}"); e(f"v_add_u32 v{vDX+1}, 15360, v{vDX+1}")
def swap23(d, s, t):
    e(f"v_and_b32 v{d}, 0x13, v{s}")
    e(f"v_and_b32 v{t}, 4, v{s}"); e(f"v_lshl_or_b32 v{d}, v{t}, 1, v{d}")
    e(f"v_and_b32 v{t}, 8, v{s}"); e(f"v_lshrrev_b32 v{t}, 1, v{t}"); e(f"v_or_b32 v{d}, v{d}, v{t}")
e(f"v_lshrrev_b32 v{vT}, 2, v{L}"); swap23(vT+1, vT, vT+2)
e(f"v_mul_u32_u24 v{vT+1}, 6144, v{vT+1}")
e(f"v_lshrrev_b32 v{vT}, 3, v{L}"); e(f"v_and_b32 v{vT}, 2, v{vT}"); e(f"v_and_b32 v{vT+2}, 3, v{L}"); e(f"v_xor_b32 v{vT}, v{vT}, v{vT+2}")
e(f"v_lshl_add_u32 v{vDB}, v{vT}, 4, v{vT+1}")
e(f"v_mul_u32_u24 v{vT}, 4682, v0"); e(f"v_lshrrev_b32 v{vT}, 16, v{vT}")
e(f"v_mul_u32_u24 v{vT+3}, 14, v{vT}"); e(f"v_sub_u32 v{vT+3}, v0, v{vT+3}")
swap23(vT+1, vT, vT+2)
e(f"v_mul_u32_u24 v{vT+1}, 7168, v{vT+1}"); e(f"v_lshl_add_u32 v{vDA}, v{vT+3}, 4, v{vT+1}")
e(f"s_lshl_b32 s{sKX}, s{sRB}, 19"); e(f"s_lshl_b32 s{sT}, s{sW}, 16"); e(f"s_add_u32 s{sKX}, s{sKX}, s{sT}")
e(f"s_add_u32 s{sKXE}, s{sKX}, 2048"); e(f"s_lshl_b32 s{sMX}, s{sW}, 12")
e(f"s_mul_i32 s{sOW+1}, s{sH}, 224"); e(f"s_sub_u32 s{sOW}, s{sOW+1}, {32*7168}")
e(f"s_mov_b32 s{sOW+2}, s{sOW}"); e(f"s_mov_b32 s{sOW+3}, s{sOW+1}")
e(f"s_lshl_b32 s{sT}, s{sW}, 10")
for n, o in enumerate((GOFF, GOFF+HALF, UOFF, UOFF+HALF)): e(f"s_add_u32 s{sMWd+n}, s{sT}, {WBASE+o}")
e(f"s_mov_b32 s{sINCA}, {64*7168}")
def qpiece(p):
    half, unit, rg = p // 6, (p % 6) // 2, p % 2
    return (WBASE + half*HALF + unit*2048 + rg*1024, ((-32 + half*32 + rg*16)*6144 + unit*2048) & 0xffffffff)
e(f"s_lshl_b32 s{sT+1}, s{sH}, 6")
e(f"s_add_u32 s{sMWd+4}, s{sT}, {WBASE}")
e(f"s_and_b32 s{sT+2}, s{sW}, 1"); e(f"s_mul_i32 s{sT+2}, s{sT+2}, {16*6144}")
e(f"s_lshr_b32 s{sT+3}, s{sW}, 1"); e(f"s_lshl_b32 s{sT+3}, s{sT+3}, 11"); e(f"s_add_u32 s{sT+2}, s{sT+2}, s{sT+3}")
e(f"s_sub_u32 s{sOW+4}, s{sT+2}, {32*6144}")
for w, p in ((6, 6), (7, 11)):
    l, o = qpiece(p)
    e(f"s_cmp_eq_u32 s{sW}, {w}"); e(f"s_cselect_b32 s{sMWd+4}, {l:#x}, s{sMWd+4}"); e(f"s_cselect_b32 s{sOW+4}, {o:#x}, s{sOW+4}")
e(f"s_add_u32 s{sOW+4}, s{sOW+4}, s{sT+1}")
e("s_waitcnt lgkmcnt(0)")
if OPT['stamp']: e(f"v_writelane_b32 v0, s{sST+4}, 0"); e(f"v_writelane_b32 v0, s{sST+6}, 16")
srd(sX, pX, 0 if OPT['noX'] else 2048*2048)
for n in range(4): a_full('x', n, 0)
srd(sQ, pQKV, 0 if OPT['noW'] else 1024*6144); srd(sA, pWG, 0 if OPT['noW'] else 1024*7168); srd(sB, pWU, 0 if OPT['noW'] else 1024*7168)
e(f"s_cmp_eq_u32 s{sW}, 7"); e("s_cbranch_scc0 LA_not7")
for d in (sA, sB):
    for k in range(3): e(f"s_mov_b32 s{d+k}, s{sQ+k}")
for n in range(4):
    l, o = qpiece(7+n)
    e(f"s_mov_b32 s{sMWd+n}, {l:#x}"); e(f"s_add_u32 s{sOW+n}, s{sT+1}, {o:#x}")
e(f"s_mov_b32 s{sINCA}, {64*6144}"); e(f"v_mov_b32 v{vDA}, v{vDB}")
g.lab("LA_not7")
if OPT['wshift']:
    for n in range(5): e(f"s_add_u32 s{sOW+n}, s{sOW+n}, " + (f"s{sINCA}" if n < 4 else f"{64*6144}"))
for n in range(5): a_full('w', n, 0, True)
srd(sWS, pWSp, WS_SIZE); srd(sDBG, pDBG, 256); srd(sPF, pGW, 2048)
PD = OPT['PD'] - OPT['pre']; sPB = sT+6
assert OPT['amap'] == 3
e(f"s_lshr_b32 s{sT+1}, s2, 3"); e(f"s_lshr_b32 s{sT+2}, s{sH}, 3")
e(f"v_lshlrev_b32 v{vPF}, 7, v{L}"); e(f"s_mov_b32 s{sT+3}, 0"); e(f"s_mov_b32 s{sCNT}, 0"); e(f"s_mov_b32 s{sPFO}, 0"); e(f"s_mov_b32 s{sPFI}, 0")
e(f"s_mov_b32 s{sPB}, s{pX}"); e(f"s_mov_b32 s{sPB+1}, s{pX+1}")
def pfcase(w, body):
    e(f"s_cmp_lg_u32 s{sW}, {w}"); e(f"s_cbranch_scc1 LA_pf{w}"); body(); g.lab(f"LA_pf{w}")
def base(p, size): e(f"s_mov_b32 s{sPB}, s{p}"); e(f"s_mov_b32 s{sPB+1}, s{p+1}"); e(f"s_mov_b32 s{sCNT}, {size:#x}")
R2 = 2 if OPT['pf2'] else 1
def pf_x():
    base(pX, 2048*2048); e(f"v_and_b32 v{vT}, 31, v{L}"); e(f"v_lshlrev_b32 v{vT}, 11, v{vT}"); e(f"v_lshrrev_b32 v{vPF}, 5, v{L}"); e(f"v_lshl_add_u32 v{vPF}, v{vPF}, 7, v{vT}")
    e(f"s_and_b32 s{sT+4}, s{sH}, 7"); e(f"s_lshl_b32 s{sT+4}, s{sT+4}, 16"); e(f"s_lshl_b32 s{sPFO}, s{sRB}, 19"); e(f"s_add_u32 s{sPFO}, s{sPFO}, s{sT+4}")
    e(f"s_add_u32 s{sPFO}, s{sPFO}, {PD*128}"); e(f"s_mov_b32 s{sPFI}, {128*R2}"); e(f"s_mov_b32 s{sT+3}, {32*R2}")
def pf_gu(p):
    def f():
        base(p, 1024*7168); e(f"v_mul_u32_u24 v{vT}, 4682, v{L}"); e(f"v_lshrrev_b32 v{vT}, 16, v{vT}")
        e(f"v_mul_u32_u24 v{vT+1}, {7168-1792}, v{vT}"); e(f"v_add_u32 v{vPF}, v{vPF}, v{vT+1}")
        e(f"v_lshrrev_b32 v{vT}, 1, v{vT}"); e(f"v_mul_u32_u24 v{vT}, {62*7168}, v{vT}"); e(f"v_add_u32 v{vPF}, v{vPF}, v{vT}")
        e(f"s_mul_i32 s{sPFO}, s{sT+1}, {2*7168}"); e(f"s_mul_i32 s{sT+4}, s{sT+2}, 1792"); e(f"s_add_u32 s{sPFO}, s{sPFO}, s{sT+4}")
        e(f"s_add_u32 s{sPFO}, s{sPFO}, {(64*PD-32)*7168}"); e(f"s_mov_b32 s{sPFI}, {64*7168*R2}"); e(f"s_mov_b32 s{sT+3}, {28*R2}")
    return f
def pf_q():
    base(pQKV, 1024*6144); e(f"v_lshrrev_b32 v{vT}, 2, v{L}"); e(f"v_lshlrev_b32 v{vT}, 11, v{vT}"); e(f"v_and_b32 v{vPF}, 3, v{L}")
    e(f"v_lshl_add_u32 v{vPF}, v{vPF}, 7, v{vT}")
    e(f"v_cmp_le_u32 vcc, 24, v{L}"); e(f"v_add_u32 v{vT}, {62*6144}, v{vPF}"); e("s_nop 0"); e(f"v_cndmask_b32 v{vPF}, v{vPF}, v{vT}, vcc")
    e(f"s_mul_i32 s{sPFO}, s{sT+1}, {2*6144}"); e(f"s_lshl_b32 s{sT+4}, s{sT+2}, 9"); e(f"s_add_u32 s{sPFO}, s{sPFO}, s{sT+4}")
    e(f"s_add_u32 s{sPFO}, s{sPFO}, {(64*PD-32)*6144}"); e(f"s_mov_b32 s{sPFI}, {64*6144*R2}"); e(f"s_mov_b32 s{sT+3}, {24*R2}")
def pf_lin(p, size, nl, st=0):
    def f():
        base(p, size); e(f"s_mul_i32 s{sPFO}, s{sLAM}, {nl*128}"); e(f"s_mov_b32 s{sPFI}, {nl*128*256}"); e(f"s_mov_b32 s{sT+3}, {nl}")
        if st: e(f"s_sub_u32 s{sPFO}, s{sPFO}, {st*nl*128*256}")
    return f
if OPT['pf']:
    if PD > 0: pfcase(6, pf_x); pfcase(1, pf_gu(pWG)); pfcase(2, pf_gu(pWU)); pfcase(3, pf_q)
    pfcase(4, pf_lin(pWD, 3584*2048, OPT['wdn'], OPT['wdst'])); pfcase(5, pf_lin(pWO, 1024*2048, 16, OPT['wdst']))
    if OPT['touch'] & 1: pfcase(6, pf_lin(pWSp, A_BYTES, 64))
    def pf_kv():
        pf_lin(pWSp, WS_KV + (0x1000000 if OPT['touch'] & 4 else 0x800000), 64)(); e(f"s_add_u32 s{sPFO}, s{sPFO}, {WS_KV:#x}")
    if OPT['touch'] & 2: pfcase(7, pf_kv)
e(f"v_cmp_gt_u32 vcc, s{sT+3}, v{L}"); e(f"v_bfrev_b32 v{vT}, 1"); e("s_nop 0"); e(f"v_cndmask_b32 v{vPF}, v{vT}, v{vPF}, vcc")
e(f"s_mov_b32 s{sPF}, s{sPB}"); e(f"s_and_b32 s{sPF+1}, s{sPB+1}, 0xffff"); e(f"s_mov_b32 s{sPF+2}, s{sCNT}")
for k in range(OPT['pre']): a_op('p', 0, 0)
e(f"v_and_b32 v{vT}, 15, v{L}"); e(f"s_lshl_b32 s{sT}, s{sMW}, 6"); e(f"v_add_u32 v{vT}, s{sT}, v{vT}"); e(f"v_lshlrev_b32 v{vT}, 7, v{vT}")
e(f"v_lshrrev_b32 v{vT+1}, 4, v{L}"); e(f"v_bfe_u32 v{vT+2}, v{L}, 1, 3"); e(f"v_xor_b32 v{vT+2}, v{vT+1}, v{vT+2}")
e(f"v_lshl_add_u32 v{vXR}, v{vT+2}, 4, v{vT}"); e(f"v_xor_b32 v{vXR+1}, 64, v{vXR}")
e(f"v_bfe_u32 v{vT}, v{L}, 2, 3")
e(f"v_lshrrev_b32 v{vT+1}, 5, v{L}"); e(f"v_lshl_add_u32 v{vT}, v{vT+1}, 4, v{vT}")
e(f"v_and_b32 v{vT+1}, 3, v{L}"); e(f"v_lshlrev_b32 v{vT+1}, 3, v{vT+1}"); e(f"v_add_u32 v{vT+1}, {WBASE}, v{vT+1}")
e(f"v_mul_u32_u24 v{vWG}, 224, v{vT}"); e(f"v_add_u32 v{vWG}, v{vWG}, v{vT+1}"); e(f"v_add_u32 v{vWG+1}, {WSLOT}, v{vWG}")
e(f"v_lshl_add_u32 v{vWQ}, v{vT}, 6, v{vT+1}"); e(f"v_bfe_u32 v{vT+2}, v{L}, 4, 1"); e(f"v_lshl_add_u32 v{vWQ}, v{vT+2}, 5, v{vWQ}")
e(f"v_xor_b32 v{vWQ+1}, 32, v{vWQ}"); e(f"v_add_u32 v{vWQ+2}, {WSLOT}, v{vWQ}"); e(f"v_add_u32 v{vWQ+3}, {WSLOT}, v{vWQ+1}")
for r in range(vACC, 256): e(f"v_mov_b32 v{r}, 0")
e(f"s_mov_b32 s{sK}, {f32(-LOG2E)}"); e(f"s_mov_b32 s{sK+1}, {f32(-LOG2E)}")
e(f"s_lshl_b32 s{sGO}, s{sLAM}, 3"); e(f"s_add_u32 s{sGO}, s{sGO}, s{sW}"); e(f"s_lshl_b32 s{sGO}, s{sGO}, 11")
srd(sGW, pGW, 2048); e("s_mov_b32 s94, 1.0"); e("s_mov_b32 s95, 1.0")
for n in range(5): a_full('w', n, 1)
e(f"s_waitcnt vmcnt({5+OPT['pre']})"); e("s_barrier")
e(f"s_cmp_eq_u32 s{sNW}, 1"); e("s_cbranch_scc1 LA_pre1")
for nw in range(2):
    if nw == 1: g.lab("LA_pre1")
    sq, sv_ = g.steady(lambda: a_body(nw))
    g.q = []
    for i in range(4): a_xread(i, 0)
    for n in range(4): a_wread(nw, n)
    assert [t for t in sv_ if t[0] == 'w'] == [('w', 1, k) for k in range(5)], sv_
    for t in sv_:
        if t[0] == 'x': assert t[1] == 1; a_full('x', t[2], 1)
    assert not any(t[0] == 'p' for t in sv_[sv_.index(('w', 1, 0)):]), sv_
    e(f"s_mov_b32 s{sCNT}, 8"); e(f"s_mov_b32 s{sOK}, 0")
    stamp('loopA')
    if OPT['prio'] and nw == 1: e("s_setprio 1")
    e("s_waitcnt lgkmcnt(0)")
    g.q = list(sq); g.v = list(sv_)
    g.L.append(".p2align 6"); g.lab(f"LA_loop{nw}")
    a_body(nw); assert g.q == sq and g.v == sv_
    if OPT['tst']:
        e(f"s_memtime s[{sST}:{sST+1}]"); e(f"s_memrealtime s[{sST+2}:{sST+3}]"); e(f"s_sub_u32 s{sST+4}, 10, s{sCNT}"); e(f"s_add_u32 s{sST+5}, s{sST+4}, 16")
        e("s_waitcnt lgkmcnt(0)"); e(f"s_mov_b32 m0, s{sST+4}"); e("s_nop 0"); e(f"v_writelane_b32 v0, s{sST}, m0"); e(f"s_mov_b32 m0, s{sST+5}"); e("s_nop 0"); e(f"v_writelane_b32 v0, s{sST+2}, m0")
    e(f"s_sub_u32 s{sCNT}, s{sCNT}, 1")
    e(f"s_cmp_lg_u32 s{sCNT}, 1"); e(f"s_cbranch_scc1 LA_h1_{nw}")
    sv = g.L; g.L = g.tail
    g.lab(f"LA_h1_{nw}")
    def hook(c, body, w0=False):
        if w0 and nw == 1: return
        e(f"s_cmp_lg_u32 s{sCNT}, {c}"); e(f"s_cbranch_scc1 LA_n{c}_{nw}")
        if w0: e(f"s_cmp_lg_u32 s{sW}, 0"); e(f"s_cbranch_scc1 LA_loop{nw}")
        body(); e(f"s_branch LA_loop{nw}"); g.lab(f"LA_n{c}_{nw}")
    def rec_store():
        for r in range(28, 32): e(f"v_mov_b32 v{r}, 0")
        e(f"v_mov_b32 v26, {CNTLDS}"); e("ds_write_b32 v26, v28")
        e(f"s_lshl_b32 s{sT}, s{sLAM}, 9"); e(f"s_add_u32 s{sT}, s{sT}, {WS_FL:#x}")
        e("s_mov_b32 exec_hi, 0")
        e(f"buffer_store_dwordx4 v[28:31], v{vL16}, {sr(sWS,4)}, s{sT} offen sc1"); e("s_mov_b64 exec, -1")
    def ack():
        e(f"v_mov_b32 v{vT}, 1"); e(f"s_and_b32 s{sT}, s{sLAM}, 1"); e(f"s_lshl_b32 s{sT}, s{sT}, 7")
        one_lane(lambda: e(f"buffer_atomic_add v{vT}, off, {sr(sDBG,4)}, s{sT} sc1"))
    def ld(): e(f"v_and_b32 v43, 1, v{L}"); e(f"v_lshlrev_b32 v43, 7, v43"); e(f"buffer_load_dword v{vCN}, v43, {sr(sDBG,4)}, 0 offen sc1")
    def ts(): e(f"v_cmp_gt_u32 vcc, 128, v{vCN}"); e("s_nop 1"); e("s_cmp_eq_u64 vcc, 0")
    def gate_loads():
        e(f"v_lshlrev_b32 v42, 5, v{L}")
        e(f"buffer_load_dwordx4 {vr(26,4)}, v42, {sr(sX,4)}, s{sGO} offen"); e(f"buffer_load_dwordx4 {vr(30,4)}, v42, {sr(sX,4)}, s{sGO} offen offset:16")
        e(f"buffer_load_dwordx4 {vr(34,4)}, v42, {sr(sGW,4)}, 0 offen"); e(f"buffer_load_dwordx4 {vr(38,4)}, v42, {sr(sGW,4)}, 0 offen offset:16")
        ld()
    def code_pf():
        e(f"s_getpc_b64 s[{sT}:{sT+1}]"); g.lab("LA_pc")
        e(f"s_sub_u32 s{sT}, s{sT}, LA_pc-{KN}"); e(f"s_subb_u32 s{sT+1}, s{sT+1}, 0")
        e(f"s_lshr_b32 s{sT+2}, s2, 3"); e(f"s_lshl_b32 s{sT+2}, s{sT+2}, 11")
        e(f"v_and_b32 v26, 15, v{L}"); e(f"v_lshlrev_b32 v26, 7, v26"); e(f"v_add_u32 v26, s{sT+2}, v26")
        e(f"v_min_u32 v26, LZ_end-{KN}-4, v26")
        e(f"v_mov_b32 v27, s{sT+1}"); e(f"v_add_co_u32 v26, vcc, s{sT}, v26"); e("s_nop 1"); e(f"v_addc_co_u32 v27, vcc, 0, v27, vcc")
        e(f"global_load_dword v{vDUM}, v[26:27], off")
    hook(6, rec_store, True); hook(5, ack, True); hook(2, gate_loads)
    if OPT['cpf']: hook(OPT['cpf'], code_pf, True)
    e(f"s_branch LA_loop{nw}")
    g.lab(f"LA_slow{nw}")
    spin(f"LA_spin{nw}", ld, ts, sT+3); e(f"s_branch LB_go{nw}")
    g.L = sv
    ts(); e(f"s_cbranch_scc0 LA_slow{nw}")
    g.lab(f"LB_go{nw}")
    U = UNITS[nw]; jkv = 2 if nw == 0 else 0
    vHA = 3; vST = 96 - 4*len(OPT['hpos']); vNB = 208; assert len(OPT['hpos']) % 2 == 0
    def cap(f, atomic=False):
        sv = g.L; g.L = []; f(); r = g.L; g.L = sv
        return [r] if atomic else [[x] for x in r]
    def setupB():
        e(f"s_lshl_b32 s{sT+4}, s{sLAM}, 15"); e(f"s_add_u32 s{sT+4}, s{sT+4}, {WS_KV:#x}")
        e(f"s_lshl_b32 s{sT+5}, s{sMW}, 13"); e(f"v_add_u32 v{vT+8}, s{sT+5}, v{vL16}")
        e(f"s_add_u32 s{sT+5}, s{sT+5}, s{sT+4}")
    def setupB2():
        e(f"s_cmp_eq_u32 s{sRB}, 7"); e(f"s_cselect_b32 s{sT+5}, {WS_SIZE:#x}, s{sT+5}")
    def setupB3():
        e(f"s_add_u32 s{sT+6}, s{sT+5}, 4096")
        e(f"v_and_b32 v{vHA}, 31, v{L}"); e(f"v_lshlrev_b32 v{vHA}, 4, v{vHA}"); e(f"v_lshrrev_b32 v{vT+11}, 5, v{L}")
        e(f"v_mul_u32_u24 v{vT+11}, {M16}, v{vT+11}"); e(f"v_add_u32 v{vHA}, v{vHA}, v{vT+11}")
        e(f"s_lshl_b32 s{sT}, s{sRB}, 4"); e(f"s_lshl_b32 s{sT+1}, s{sMW}, 2"); e(f"s_add_u32 s{sT}, s{sT}, s{sT+1}")
        e(f"s_mul_i32 s{sHB}, s{sT}, {M16}"); e(f"s_mul_i32 s{sT}, s{sH}, {7*512}"); e(f"s_add_u32 s{sHB}, s{sHB}, s{sT}")
        e(f"s_lshr_b32 s{sT}, s{sH}, 3"); e(f"s_lshl_b32 s{sT}, s{sT}, 13"); e(f"s_add_u32 s{sHB}, s{sHB}, s{sT}")
        if nw == 1: e(f"s_add_u32 s{sHB}, s{sHB}, {3*512}")
        e(f"s_add_u32 s{sHB+1}, s{sHB}, {2*M16}")
        e(f"s_lshl_b32 s{sT+7}, s{sLAM}, 9"); e(f"s_add_u32 s{sT+7}, s{sT+7}, {WS_FL:#x}")
        e(f"v_mov_b32 v{vCN}, 1"); e(f"s_mov_b32 s{sDN}, 0"); e(f"s_sub_u32 s{sT+3}, s{sT+7}, {32*512}")
    def gpub():
        e(f"s_cmp_lg_u32 s{sW}, 0"); e("s_cbranch_scc1 LB_nog")
        e(f"v_lshlrev_b32 v{vT}, 2, v{L}"); e(f"v_add_u32 v{vT+1}, {GLDS}, v{vT}"); e("s_mov_b64 exec, 0xff"); e(f"ds_read_b32 v{vT+1}, v{vT+1}"); e("s_waitcnt lgkmcnt(0)")
        e(f"buffer_store_dword v{vT+1}, v{vT}, {sr(sWS,4)}, s{sT+7} offen sc1"); e("s_mov_b64 exec, -1")
        g.lab("LB_nog")
    def kvout():
        for i in range(4):
            pack2(jkv, i)
            if nw == 1:
                a = ACC(0, i); e("s_nop 1"); e(f"v_permlane32_swap_b32 v{a}, v{a+2}"); e(f"v_permlane32_swap_b32 v{a+1}, v{a+3}")
            e(f"buffer_store_dwordx4 {vr(ACC(jkv,i),4)}, v{vL16}, {sr(sWS,4)}, s{sT+5+(i>>1)} offen offset:{nw*2048+(i&1)*1024} sc1")
    gus = [j for j in range(10) if U[j][0] == 'g']
    def hst(R, k): e(f"buffer_store_dwordx4 {vr(R,4)}, v{vHA}, {sr(sWS,4)}, s{sHB+(k&1)} offen offset:{(k>>1)*512}" + ("" if OPT['hx'] == 1 else " sc1")) if OPT['hx'] != 2 else None
    def ldK(): e(f"buffer_load_dword v{vT+10}, off, {sr(sWS,4)}, s{sT+3} offset:{FL_KV} sc1")
    def tsK(): e(f"v_readfirstlane_b32 s{sT}, v{vT+10}"); e("s_nop 0"); e(f"s_cmp_eq_u32 s{sT}, 1")
    J = [2,3,4,5,6,7,8,9,0,1] if nw == 0 else list(range(10))
    SQ = [(t, j) for t in range(2) for j in range(10)]
    for p in range(5): a_, b_ = J[2*p], J[2*p+1]; SQ += [(2, a_), (2, b_), (3, a_), (3, b_)]
    F = []
    F += [(1, [("    " + x) for x in u]) for u in gate_list(26, 20, 43)]
    F += [(12, u) for u in cap(setupB) + cap(setupB2, True) + cap(setupB3)]
    if nw == 0: F += [(19, u) for u in cap(gpub, True)]
    F += [(24, u) for u in cap(kvout)]
    nk = 2*len(gus)
    for k in range(nk):
        j, i = gus[k >> 1], 2*(k & 1); av = 28 + 4*(k >> 1)
        F += [(av, u) for u in cap(lambda: silu(j, i, vT, ACC(j, i)))]
        NE = nk - len(OPT['hpos'])
        F += [(av, u) for u in cap(lambda: trysig(min(k, NE), CNTLDS, 0, FL_KV, force=(k == nk-1)), True)]
        if k < NE: F += [(av, u) for u in cap(lambda: hst(ACC(j, i), k))]
    ev = {n: [x for x in v if x[0] == 'x' and x[2] == 1] for n, v in a_events(nw).items() if n < 10}
    for n, k in zip((7, 8, 9), (0, 2, 4)): ev.setdefault(n, []).append(('w', k, 0))
    for n, (t, j) in enumerate(SQ):
        un = U[j]; evs = ev.get(n, [])
        for i in range(4):
            g.need([('W', n % 5), ('X', t & 1, i)])
            a, b = vr(vWF+4*(n % 5), 4), vr(vXF+16*(t & 1)+4*i, 4)
            if un[0] == 'v': a, b = b, a
            e(f"{MF16} {vr(ACC(j,i),4)}, {a}, {b}, {vr(ACC(j,i),4)}")
            if i == 0:
                if n == JBW: g.need([('W', k) for k in range(5)], [('w', 1, k) for k in range(5)]); e("s_barrier")
                if n == 17:
                    assert not any(av < 12 for av, u in F)
                    g.need([('W', k) for k in range(5)], [('x', 1, k) for k in range(4)] + [('w', 0, k) for k in range(5)]); e("s_barrier")
                if n + 4 < 40: a_wread(nw, n+4, SQ[n+4])
            if i == 1:
                for ii in range(4):
                    if n == OPT['jbx'] + OPT['xrd'][ii]: a_xread(ii, 1)
                    if n == 17 + (ii >> 1): a_xread(ii, 2)
                    if n == 20: a_xread(ii, 3)
                if evs: a_m0(*evs[0])
            if i == 2 and evs:
                a_op(*evs[0])
                for x in evs[1:]: a_full(*x)
            c = 0
            while F and F[0][0] <= n and c < (2 if n < 20 else OPT['fr']) and not (i == 1 and evs):
                u = F.pop(0)[1]; g.L += u; c += len(u)
    stamp('endA')
    e("s_barrier")
    for i in range(4):
        e(f"ds_write_b128 v{vT+8}, {vr(ACC(jkv,i),4)} offset:{32768+(i>>1)*4096+nw*2048+(i&1)*1024}")
    if nw == 0:
        ldK()
        e("s_nop 3")
        for i in range(4): pack2(0, i)
        e(f"s_lshl_b32 s{sT}, s{sMW}, 12"); e(f"s_add_u32 s{sT}, s{sT}, {QLDS}"); e(f"v_add_u32 v{vT+9}, s{sT}, v{vL16}")
        for i in range(4): e(f"ds_write_b128 v{vT+9}, {vr(ACC(0,i),4)} offset:{i*1024}")
        e(f"v_mov_b32 v{vT+12}, {CNT2}"); e(f"v_mov_b32 v{vT+13}, 0"); e(f"ds_write_b32 v{vT+12}, v{vT+13}"); e(f"ds_write_b32 v{vT+12}, v{vT+13} offset:4"); e(f"ds_write_b32 v{vT+12}, v{vT+13} offset:8")
    else: e("s_nop 3")
    left = sum(1 for av, u in F for x in u if 'buffer_store_dwordx4' in x)
    print("path", nw, "leftover filler instrs", sum(len(u) for av, u in F), "stores", left)
    if nw == 0 and OPT['h0']:
        vNB = 40
        e(f"s_mov_b32 s{sT+5}, {WS_SIZE:#x}")
        e(f"s_cmp_eq_u32 s{sRB}, 0"); e("s_cbranch_scc1 LB_rb0")
        e("s_waitcnt vmcnt(0)"); trysig(15, CNTLDS, 0, FL_KV, force=True); tsK(); e("s_cbranch_scc0 LB_late")
        e(f"s_sub_u32 s{sT+5}, s{sT+4}, {32*32768}")
        g.lab("LB_rb0")
        e(f"s_add_u32 s{sT+6}, s{sT+5}, 4096")
        def nbl():
            for f in range(8): e(f"buffer_load_dwordx4 {vr(vNB+4*f,4)}, v{vT+8}, {sr(sWS,4)}, s{sT+5+(f>>2)} offen offset:{(f&3)*1024} sc1")
        nbl(); e(f"s_mov_b32 s{sT+4}, 0")
        g.lab("LB_late")
    for av, u in F: g.L += u
    for k in range(NE, nk):
        for r in range(4): e(f"v_mov_b32 v{vST+4*(k-NE)+r}, v{ACC(gus[k>>1], 2*(k&1))+r}")
    if NE: e(f"s_add_u32 s{sHB}, s{sHB}, {NE*256}"); e(f"s_add_u32 s{sHB+1}, s{sHB+1}, {NE*256}")
    stamp('hdone')
    if nw == 0:
        e(f"s_cmp_eq_u32 s{sT+4}, 0"); e("s_cbranch_scc1 LB_have")
        spin("LB_spin", ldK, tsK, sT+5)
        e(f"s_sub_u32 s{sT+5}, s{sT+4}, {32*32768}"); e(f"s_add_u32 s{sT+6}, s{sT+5}, 4096")
        nbl(); e("s_waitcnt vmcnt(0)")
        g.lab("LB_have")
        NLEFT = left; vNB0 = vNB
    stamp('kvok')
    if nw == 0: e("s_branch LB_common")
g.lab("LB_common")
c_setup()
FR = [40, 48, 56, 64, 96, 104]; vQ = 32; vS = 112; vM = 26; vSUM = 28
BIG = 2.0**100
vKA, vVA, vQA, vOA = 8, 9, 10, 11
e(f"v_and_b32 v{vM+1}, 15, v{L}"); e(f"v_lshlrev_b32 v{vM+1}, 4, v{vM+1}"); e(f"v_lshrrev_b32 v{vM+2}, 5, v{L}")
e(f"v_lshl_add_u32 v{vM+1}, v{vM+2}, 8, v{vM+1}"); e(f"v_bfe_u32 v{vM+2}, v{L}, 4, 1")
e(f"v_lshl_add_u32 v{vQA}, v{vM+2}, 10, v{vM+1}"); e(f"v_lshl_add_u32 v{vVA}, v{vM+2}, 9, v{vM+1}")
e(f"v_mul_u32_u24 v{vOA}, {M16}, v{vM+2}"); e(f"v_add_u32 v{vOA}, v{vOA}, v{vM+1}")
e(f"s_lshl_b32 s{sT}, s{sW}, 12"); e(f"v_add_u32 v{vKA}, s{sT}, v{vQA}"); e(f"v_add_u32 v{vVA}, s{sT}, v{vVA}")
e(f"s_lshl_b32 s{sT}, s{sW}, 11"); e(f"s_add_u32 s{sT}, s{sT}, {QLDS}"); e(f"v_add_u32 v{vQA}, s{sT}, v{vQA}")
e(f"s_mov_b32 s{sDN}, 0")
e(f"s_andn2_b32 s{sT+4}, s{sLAM}, 7"); e(f"s_lshl_b32 s{sT+4}, s{sT+4}, 9"); e(f"s_add_u32 s{sT+4}, s{sT+4}, {WS_FL:#x}")
e(f"s_cmp_eq_u32 s{sNW}, 1"); e("s_cbranch_scc1 LB_nokv")
for f in range(8):
    e(f"s_waitcnt vmcnt({7-f+NLEFT})"); e(f"ds_write_b128 v{vT+8}, {vr(vNB0+4*f,4)} offset:{f*1024}")
g.lab("LB_nokv")
e("s_waitcnt lgkmcnt(0)"); e("s_barrier")
stamp('bar2')
ORD = [0, 8, 1, 2, 3, 4, 5, 6, 7]
def kread(x):
    t = ORD[x]
    for f in range(2): g.lds(f"ds_read_b128 {vr(FR[x%6]+4*f,4)}, v{vKA} offset:{t*4096+f*512}", ('K', x, f))
def vread(x):
    t = ORD[x]
    for f in range(2): g.lds(f"ds_read_b128 {vr(FR[(x+3)%6]+4*f,4)}, v{vVA} offset:{t*4096+2048+f*1024}", ('V', x, f))
def mx(t, half=None):
    b = vS + 16*t
    for r in range(0, 16, 2):
        if half is not None and (r >> 3) != half: continue
        k = (r >> 1) & 1
        if t == 8 and r < 4: e(f"v_max_f32 v{vM+k}, v{b+r}, v{b+r+1}")
        else: e(f"v_max3_f32 v{vM+k}, v{vM+k}, v{b+r}, v{b+r+1}")
def masked(op):
    for rho in range(16):
        cst = 8*(rho >> 2) + (rho & 3)
        e(f"s_bfm_b32 exec_lo, {cst}, 0"); e(f"s_bfm_b32 exec_hi, {cst+4}, 0"); e(f"{op} v{vS+128+rho}, v{vS+rho}")
    e("s_mov_b64 exec, -1")
def merge():
    masked("v_mov_b32")
    for rho in range(16): e(f"v_mov_b32 v{vS+rho}, 0")
NPRE = OPT['npre']
def ldH(): e(f"buffer_load_dword v{cvPL}, v{cvPL+1}, {sr(sWS,4)}, s{sT+4} offen offset:{FL_H} sc1")
def tsL(): e(f"v_cmp_ne_u32 vcc, 1, v{cvPL}"); e("s_nop 1"); e("s_cmp_eq_u64 vcc, 0")
AFTER = [0]
def event(x):
    for k, p in enumerate(OPT['hpos']):
        if p == x: hst(vST+4*k, k); AFTER[0] = 0
    if max(OPT['hpos'] + [-1]) < x <= OPT['hq'] and (x >= 9 or x % 3 == 2): trysig(AFTER[0], CNT2, 0, FL_H, force=(x == OPT['hq']))
    for k, p in enumerate(OPT['dpos'][:NPRE]):
        if p == x: c_m0(k); e("s_nop 0"); c_dma(k, 0); c_dma(k, 1); AFTER[0] += 2
    if x == OPT['hq']: ldH(); AFTER[0] += 1
assert min(OPT['dpos']) >= 9
def s_phase(rb0):
    g.q = []
    for f in range(2): g.lds(f"ds_read_b128 {vr(vQ+4*f,4)}, v{vQA} offset:{f*512}", ('Q', f))
    for x in range(6): kread(x)
    for x in range(9):
        t = ORD[x]
        for f in range(2):
            g.need([('K', x, f), ('Q', f)])
            c = vr(vS+16*t, 16) if f == 1 else "0"
            e(f"{MF32} {vr(vS+16*t,16)}, {vr(FR[x%6]+4*f,4)}, {vr(vQ+4*f,4)}, {c}")
            if not rb0:
                if x == 4 and f == 1: merge()
                if x >= 5: mx(ORD[x-4], f)
        if x + 6 < 9: kread(x+6)
        else: vread(x-3)
        event(x)
    if rb0:
        e(f"s_sub_u32 s{sT}, 8, s{sW}"); e("s_nop 7")
        for t in range(8):
            e(f"s_cmp_le_u32 s{sT}, {t}"); e("s_cbranch_scc1 LB_maskdone")
            for rho in range(16): e(f"v_mov_b32 v{vS+16*t+rho}, {f32(-BIG)}")
        g.lab("LB_maskdone")
        merge()
        for x in range(1, 5): mx(ORD[x])
e(f"s_cmp_eq_u32 s{sRB}, 0"); e("s_cbranch_scc1 LB_s0")
sv = g.L; g.L = g.tail; g.lab("LB_s0"); s_phase(True); e("s_branch LB_sdone"); g.L = sv
s_phase(False)
g.lab("LB_sdone")
for x in range(5, 9): mx(ORD[x])
stamp('sph')
e(f"v_max_f32 v{vM}, v{vM}, v{vM+1}"); e(f"v_mov_b32 v{vM+1}, v{vM}"); e("s_nop 1")
e(f"v_permlane32_swap_b32 v{vM}, v{vM+1}"); e(f"v_max_f32 v{vM}, v{vM}, v{vM+1}")
CC = 32 ** -0.5 * LOG2E
e(f"s_mov_b32 s{sK}, {f32(CC)}"); e(f"s_mov_b32 s{sK+1}, {f32(CC)}")
e(f"v_mul_f32 v{vM}, {f32(-CC)}, v{vM}"); e(f"v_mov_b32 v{vM+1}, v{vM}")
vO = vS + 8
def pbase(t): return vS if t == 0 else vS + 16*t + 8
def soft(t, mid=None):
    b = vS + 16*t
    for r in range(0, 16, 2): e(f"v_pk_fma_f32 {vr(b+r,2)}, {vr(b+r,2)}, {sr(sK,2)}, {vr(vM,2)}")
    if mid: mid()
    for r in range(16): e(f"v_exp_f32 v{b+r}, v{b+r}")
    for r in range(0, 16, 2):
        s = vSUM + 2*((r >> 1) & 1)
        if t == 8 and r < 4: e(f"v_pk_add_f32 {vr(s,2)}, {vr(b+r,2)}, {vr(b+r+4,2)}")
        elif t == 8 and r < 8: pass
        else: e(f"v_pk_add_f32 {vr(s,2)}, {vr(s,2)}, {vr(b+r,2)}")
    if t == 8:
        masked("v_swap_b32")
        for r in range(8): e(f"v_cvt_pk_bf16_f32 v{vS+r}, v{vS+2*r}, v{vS+2*r+1}")
    for r in range(7, -1, -1): e(f"v_cvt_pk_bf16_f32 v{b+8+r}, v{b+2*r}, v{b+2*r+1}")
def pv(x):
    t = ORD[x]
    for f in range(2):
        g.need([('V', x, f)])
        e(f"{MF32} {vr(vO,16)}, {vr(FR[(x+3)%6]+4*f,4)}, {vr(pbase(t)+4*f,4)}, " + ("0" if (x == 0 and f == 0) else vr(vO, 16)))
    if x + 6 < 9: vread(x+6)
event(9); soft(8); event(10); soft(1); e("s_nop 0"); pv(0); pv(1)
for t in range(2, 8):
    event(9+t); soft(t, lambda: pv(t))
e("s_nop 1"); pv(8)
e(f"v_pk_add_f32 {vr(vSUM,2)}, {vr(vSUM,2)}, {vr(vSUM+2,2)}"); e(f"v_add_f32 v{vSUM}, v{vSUM}, v{vSUM+1}")
e(f"v_mov_b32 v{vSUM+1}, v{vSUM}"); e("s_nop 1"); e(f"v_permlane32_swap_b32 v{vSUM}, v{vSUM+1}")
e(f"v_add_f32 v{vSUM}, v{vSUM}, v{vSUM+1}"); e(f"v_rcp_f32 v{vSUM}, v{vSUM}")
e(f"s_lshl_b32 s{sT}, s{sRB}, 4"); e(f"s_lshl_b32 s{sT+1}, s{sW}, 1"); e(f"s_add_u32 s{sT}, s{sT}, s{sT+1}")
e(f"s_lshl_b32 s{sT+1}, s{cNT}, 10"); e(f"s_add_u32 s{sT+1}, s{sT+1}, s{cAK}"); e(f"s_add_u32 s{sT+1}, s{sT+1}, {56*512}")
stamp('pv')
e("s_waitcnt vmcnt(0)"); tsL(); e("s_cbranch_scc0 LC_slowH")
g.lab("LC_goH")
g.v = []
for k in range(4): c_aload(0, k)
for r in range(16): e(f"v_mul_f32 v{vO+r}, v{vO+r}, v{vSUM}")
for r in range(8): e(f"v_cvt_pk_bf16_f32 v{vO+8+7-r}, v{vO+14-2*r}, v{vO+15-2*r}")
dstore([f"buffer_store_dwordx4 {vr(vO+8+4*f,4)}, v{vOA}, {sr(sWS,4)}, s{sT+1} offen offset:{f*512}" for f in range(2)])
stamp('attn')
g.v += ['st', 'st']
e(f"v_bfe_u32 v{vT}, v{L}, 2, 3"); e(f"v_lshrrev_b32 v{vT+1}, 5, v{L}"); e(f"v_lshl_add_u32 v{vT+1}, v{vT+1}, 4, v{vT}")
e(f"v_lshlrev_b32 v{vT+1}, 8, v{vT+1}"); e(f"v_lshl_add_u32 v{vT+1}, v{vT}, 5, v{vT+1}")
e(f"v_and_b32 v{vT}, 3, v{L}"); e(f"v_lshl_add_u32 v{vT+1}, v{vT}, 3, v{vT+1}")
e(f"s_lshr_b32 s{sT}, s{cQ}, 1"); e(f"s_lshl_b32 s{sT}, s{sT}, 7"); e(f"v_xor_b32 v{vT+1}, s{sT}, v{vT+1}"); e(f"v_add_u32 v{cvRA}, {CRING}, v{vT+1}")
for u in range(1, 8): e(f"v_xor_b32 v{cvRA+u}, {32*u}, v{cvRA}")
for p in range(1, OPT['apre']):
    for k in range(4): c_aload(p, k)
e("s_barrier")
SEQ = []
for s in range(NH):
    for ku in range(2):
        us = list(range(8)) if not (s == NH-1 and ku == 1) else [4,5,6,7,0,1,2,3]
        SEQ += [(s, ku, u, (0, 1)) for u in us]
I1 = len(SEQ)
SEQ += [(s, ku, u, (0, 1)) for s in range(NH, NS) for ku in range(2) for u in range(4, 8)]
I2 = len(SEQ)
if OPT['p3']:
    SEQ += [(s, ku, u, (1,)) for s in range(NH, NS) for ku in range(2) for u in range(4)]
    I3 = len(SEQ)
    SEQ += [(s, ku, u, (0,)) for s in range(NH, NS) for ku in range(2) for u in range(4)]
else:
    SEQ += [(s, ku, u, (1, 0)) for s in range(NH, NS) for ku in range(2) for u in range(4)]
    I3 = len(SEQ)
def wread(i):
    if i >= len(SEQ): return
    s, ku, u, _ = SEQ[i]
    for tr in range(2):
        g.lds(f"ds_read_b64_tr_b16 {vr(cvWF+4*(i&7)+2*tr,2)}, v{cvRA+u} offset:{(s%4)*16384+ku*8192+tr*2048}", ('W', i & 7))
g.q = []
for i in range(7): wread(i)
stamp('loopC')
cRD = 48
cvO32, cvRF, cvOUT, cvG = 22, 23, 24, 25
cRV = cvACC + 32
def ldO(): e(f"buffer_load_dword v{cvPL}, v{cvO32}, {sr(sWS,4)}, s54 offen offset:{FL_O} sc1")
def ldR(): e(f"buffer_load_dword v{cvPL}, v{cvRF}, {sr(sWS,4)}, s{sT+6} offen offset:{FL_P} sc1")
def ldR2(): e(f"buffer_load_dword v{cvPL}, off, {sr(sWS,4)}, s{sT+5} offset:{FL_P2} sc1")
def rloads(ii):
    for i in ii:
        e(f"s_add_u32 s{sT}, s{cRD+3}, {i*16384}")
        for f in range(2): e(f"buffer_load_dwordx4 {vr(cRV+8*(i-1)+4*f,4)}, v{vL16}, {sr(sWS,4)}, s{sT} offen offset:{f*1024} sc1")
t0, t1 = vT, vT+1
fill = {s: [] for s in range(NS)}
fill[1] = [[x] for x in (
    f"v_and_b32 v{cvO32}, 31, v{L}", f"v_lshlrev_b32 v{cvO32}, 9, v{cvO32}", f"s_lshl_b32 s54, s{sRB}, 14", f"s_add_u32 s54, s54, {WS_FL:#x}",
    f"v_and_b32 v{t0}, 1, v{L}", f"v_or_b32 v{t0}, 2, v{t0}", f"v_lshlrev_b32 v{t0}, 3, v{t0}", f"s_xor_b32 s{sT+5}, s{sT+7}, {8*512}", f"v_xor_b32 v{t0}, s{sLAM}, v{t0}", f"v_lshlrev_b32 v{cvRF}, 9, v{t0}",
    f"s_mov_b32 s{sT+6}, {WS_FL:#x}", f"s_mov_b32 s{sDN}, 0", f"s_mov_b32 s{sOK+1}, 0")]
fill[2] = [[x] for x in (
    f"s_lshl_b32 s{sT}, s{sRB}, 3", f"s_add_u32 s{sT}, s{sT}, s{cNT}", f"s_lshl_b32 s{sT}, s{sT}, 18", f"s_lshl_b32 s{sT+1}, s{sW}, 11", f"s_add_u32 s{sT}, s{sT}, s{sT+1}", f"s_add_u32 s{sT}, s{sT}, {WS_PART:#x}")]
for i in (1, 2, 3):
    fill[2] += [[x] for x in (f"s_xor_b32 s{sT+1}, s{cQ}, {i}", f"s_lshl_b32 s{sT+1}, s{sT+1}, 16", f"s_add_u32 s{sT+1}, s{sT+1}, s{sT}", f"s_add_u32 s{cRD+i-1}, s{sT+1}, {i*16384}")]
fill[2] += [[x] for x in (f"s_lshl_b32 s{sT+1}, s{cQ}, 16", f"s_add_u32 s{cRD+3}, s{sT+1}, s{sT}",
    f"s_lshl_b32 s{sT}, s{sRB}, 19", f"s_lshl_b32 s{sT+1}, s{sW}, 16", f"s_add_u32 s{sT}, s{sT}, s{sT+1}", f"s_and_b32 s{sT+1}, s{cQ}, 1", f"s_lshl_b32 s{sT+1}, s{sT+1}, 15",
    f"s_add_u32 s{sT}, s{sT}, s{sT+1}", f"s_lshl_b32 s{sT+1}, s{cNT}, 8", f"s_add_u32 s{sT}, s{sT}, s{sT+1}", f"s_lshr_b32 s{sT+1}, s{cQ}, 1", f"s_lshl_b32 s{sT+1}, s{sT+1}, 7",
    f"s_add_u32 s{cRD+4}, s{sT}, s{sT+1}",
    f"v_and_b32 v{cvOUT}, 15, v{L}", f"v_lshlrev_b32 v{cvOUT}, 11, v{cvOUT}", f"v_bfe_u32 v{t0}, v{L}, 4, 1", f"v_lshl_add_u32 v{cvOUT}, v{t0}, 5, v{cvOUT}",
    f"v_lshrrev_b32 v{t0}, 5, v{L}", f"v_lshl_add_u32 v{cvOUT}, v{t0}, 4, v{cvOUT}")]
send = {1: [], 2: [], 3: []}
for i in (1, 2, 3):
    d = cvPT + 8*(i-1)
    for k in range(4):
        a = cvACC + 8*(4*(i >> 1)+k) + 4*(i & 1)
        send[i] += [[f"v_cvt_pk_bf16_f32 v{d+2*k}, v{a}, v{a+1}", f"v_cvt_pk_bf16_f32 v{d+2*k+1}, v{a+2}, v{a+3}"]]
        if k & 1: send[i] += [[f"@S buffer_store_dwordx4 {vr(d+4*(k>>1),4)}, v{vL16}, {sr(sWS,4)}, s{cRD+i-1} offen offset:{(k>>1)*1024} sc1"]]
pa = [(s, k) for s in range(OPT['apre'], NS) for k in range(4)]
pd = [(s, k) for s in range(NPRE, NS) for k in range(2)]
cvG2 = 128
def gload():
    e(f"v_and_b32 v{t0}, 7, v{L}"); e(f"v_bfe_u32 v{t1}, v{L}, 3, 1"); e(f"v_lshlrev_b32 v{t1}, 9, v{t1}"); e(f"v_lshl_add_u32 v{t0}, v{t0}, 2, v{t1}")
    e(f"s_lshl_b32 s{sT}, s{sW}, 1"); e(f"s_and_b32 s{sT+1}, s{cQ}, 1"); e(f"s_add_u32 s{sT}, s{sT}, s{sT+1}"); e(f"s_lshl_b32 s{sT}, s{sT}, 10"); e(f"s_add_u32 s{sT}, s{sT}, s54")
    g.vm(f"buffer_load_dword v{cvG}, v{t0}, {sr(sWS,4)}, s{sT} offen sc1", 'gv')
    if not OT:
        e(f"s_xor_b32 s{sT}, s{sT}, 1024"); g.vm(f"buffer_load_dword v{cvG2+1}, v{t0}, {sr(sWS,4)}, s{sT} offen sc1", 'gv')
if not OT:
    fill[NH-1] = [["@G"], [f"v_mov_b32 v{cvG2}, v{cvG}"]]
    for k in range(2):
        r = cvG2 + k
        fill[NH-1] += [[f"v_max_f32 v{t0}, {f32(2.0**-60)}, v{r}"], [f"v_sub_f32 v{r}, 1.0, v{r}"], [f"v_cvt_pk_bf16_f32 v{r}, v{r}, v{r}"], [f"v_and_b32 v{r}, 0xffff0000, v{r}"],
                       [f"v_rcp_f32 v{t0}, v{t0}", "s_nop 0"], [f"v_mul_f32 v{r}, v{r}, v{t0}"]]
    fill[NH-1] += [[f"v_max_f32 v{cvG}, {f32(2.0**-60)}, v{cvG}"]]
def rescale(u, mf):
    a = cvACC + 8*u + 4*mf
    if OPT['dbg'] & 2:
        for r in range(4): e(f"v_mul_f32 v{a+r}, v{a+r}, v{cvG2+mf}")
        return
    for r in (0, 2): e(f"v_pk_mul_f32 {vr(a+r,2)}, {vr(a+r,2)}, {vr(cvG2,2)} op_sel:[0,{mf}] op_sel_hi:[1,{mf}]")
WIN = [[16, 31, fill[1]], [32, 47, fill[2]], [16*(NH-1), 16*(NH-1)+11, fill[NH-1]], [I2+2, I2+13, send[2]+send[3]]]
if OPT['p3']: WIN.append([I3+4, I3+9, send[1]])
for w in WIN: w.append(len(w[2]))
vis = 0; freed = -1
def nafter(tag): return min(15, len(g.v) - 1 - max(i for i, t in enumerate(g.v) if t == tag)) if tag in g.v else min(15, len(g.v))
for i, (s, ku, u, mfs) in enumerate(SEQ):
    if i == I1: stamp('endH')
    if i == I3: stamp('p3')
    cur = min(s, NH) if i >= I1 else s
    for idx, mf in enumerate(mfs):
        k = 2*ku + mf; a = cvACC + 8*u + 4*mf
        g.need([('W', i & 7)], [('a', s, k)])
        e(f"{MF16} {vr(a,4)}, {vr(cvWF+4*(i&7),4)}, {vr(cvAR+16*(s%D)+4*k,4)}, " + ("0" if i < 8 else vr(a,4)))
        if I1 - 4 <= i < I1 + 4: rescale(SEQ[i-4][2], mf)
        if idx == 0:
            if i + 7 < len(SEQ) and SEQ[i+7][0] > vis:
                vis = SEQ[i+7][0]
                g.need([('W', k) for k in range(8)] if vis <= NH else [], [('d', vis)] + (['st'] if vis == 2 else [])); e("s_barrier")
                if vis == 2:
                    e(f"s_cmp_lg_u32 s{sW}, 0"); e("s_cbranch_scc1 LC_nof1")
                    one_lane(lambda: e(f"buffer_store_dword v{vCN}, off, {sr(sWS,4)}, s{sT+7} offset:{FL_O} sc1"))
                    g.lab("LC_nof1")
            wread(i+7)
            nxt = None
            if i % 2 == 0 or i >= I1:
                okd = pd and pd[0][0] <= (vis + 3 if pd[0][0] == NS-1 else cur + 3); oka = pa and pa[0][0] <= cur + D - 1
                if okd and (not oka or pd[0][0] <= pa[0][0] and (i % 16 % 6 == 2 or pd[0][0] < pa[0][0])): nxt = 'd'
                elif oka: nxt = 'a'
                if nxt == 'd' and pd[0][1] == 0: c_m0(pd[0][0])
        for lo, hi, fl, n0 in WIN:
            if lo <= i <= hi:
                frac = (i - lo + (idx+1)/len(mfs)) / (hi - lo + 1)
                while fl and (n0 - len(fl)) < n0 * frac - 1e-9:
                    for x in fl.pop(0):
                        if x.startswith("@S "): g.vm(x[3:], 'snd')
                        elif x == "@G": g.need([], ['gv'])
                        else: e(x)
        if idx == len(mfs) - 1:
            if nxt == 'd': c_dma(*pd.pop(0))
            elif nxt == 'a':
                if pa[0] == (NH, 0):
                    g.need([], ['opoll']); tsL(); e("s_cbranch_scc0 LC_slowO"); g.lab("LC_goO"); gload()
                c_aload(*pa.pop(0))
            if i == 16*(NH - D - 1) + 1: ldO(); g.v.append('opoll')
            if OPT['dbg'] & 1: continue
            if I2 + 14 <= i < I3 and (i - I2) % 4 == 3: trysig(nafter('snd'), CNT2+4, 0, FL_P, force=(i == I3-1))
            if i == I3 - 1: e(f"s_mov_b32 s{sDN}, 0")
            if OPT['p3']:
                if I3 + 12 <= i < I3 + OPT['rc'] and (i - I3) % 4 == 3: trysig(nafter('snd'), CNT2+8, 0, FL_P2)
                if i == I3 + 10: ldR(); g.v.append('rpoll')
                if i == I3 + OPT['rc']:
                    g.need([], ['rpoll']); trysig(15, CNT2+8, 0, FL_P2, force=True); tsL(); e("s_cbranch_scc0 LC_nor"); rloads((2, 3)); e(f"s_mov_b32 s{sOK+1}, 1"); g.lab("LC_nor")
assert not pa and not pd and not any(w[2] for w in WIN)
g.lab("LC_done")
sv = g.L; g.L = g.tail
g.lab("LC_slowO"); spin("LC_spinO", ldO, tsL, sT+3); e("s_branch LC_goO")
g.lab("LC_slowH"); spin("LC_spinH", ldH, tsL, sT+3); e("s_branch LC_goH")
g.lab("LC_slowR"); spin("LC_spinR", ldR, tsL, sT+3); rloads((2, 3)); e("s_branch LC_goR")
g.L = sv
stamp('endC')
if not OPT['p3']:
    e("s_nop 3")
    for grp in send[1]:
        for x in grp: e(x[3:] if x.startswith("@S ") else x)
    ldR()
    trysig(1, CNT2+8, 0, FL_P2, force=True)
    e("s_waitcnt vmcnt(1)" if False else "s_waitcnt vmcnt(0)"); tsL(); e("s_cbranch_scc0 LC_slowR"); rloads((2, 3)); e("s_branch LC_goR")
if OPT['dbg'] & 1:
    e("s_nop 15"); trysig(0, CNT2+4, 0, FL_P, force=True); e(f"s_mov_b32 s{sDN}, 0"); trysig(0, CNT2+8, 0, FL_P2, force=True)
e(f"s_cmp_eq_u32 s{sOK+1}, 0"); e("s_cbranch_scc1 LC_slowR")
g.lab("LC_goR")
spin("LC_spinR2", ldR2, tsL, sT+3); rloads((1,))
e(f"v_mov_b32 v{vT+4}, 0x3f80"); e(f"v_mov_b32 v{vT+5}, 0x3f800000")
if OT:
    e(f"v_sub_f32 v{vT+2}, 1.0, v{cvG}"); e(f"v_cvt_pk_bf16_f32 v{vT+2}, v{vT+2}, v{vT+2}"); e(f"v_and_b32 v{vT+2}, 0xffff0000, v{vT+2}")
    for r in range(16): e(f"v_mul_f32 v{cvOA+r}, v{cvG}, v{cvOA+r}")
for i in (2, 3, 1):
    if i == 1: e("s_waitcnt vmcnt(0)")
    d = cRV + 8*(i-1)
    for k in range(4):
        a = cvACC + 8*k
        for r in range(4): e(f"v_dot2_f32_bf16 v{a+r}, v{d+2*k+(r>>1)}, v{vT+4+(r&1)}, v{a+r}")
e("s_nop 2")
for pr in range(2):
    for k in (2*pr, 2*pr+1):
        for r in range(4): e(f"v_fmac_f32 v{cvOA+4*k+r}, v{vT+2}, v{cvACC+8*k+r}" if OT else f"v_mul_f32 v{cvOA+4*k+r}, v{cvG}, v{cvACC+8*k+r}")
    x = cvOA + 8*pr; y = x + 4; d = cvPT + 24 + 4*pr
    e(f"v_cvt_pk_bf16_f32 v{d}, v{x}, v{x+1}"); e(f"v_cvt_pk_bf16_f32 v{d+1}, v{x+2}, v{x+3}")
    e(f"v_cvt_pk_bf16_f32 v{d+2}, v{y}, v{y+1}"); e(f"v_cvt_pk_bf16_f32 v{d+3}, v{y+2}, v{y+3}")
    e("s_nop 1")
    e(f"v_permlane16_swap_b32 v{d}, v{d+2}"); e(f"v_permlane16_swap_b32 v{d+1}, v{d+3}")
    e(f"buffer_store_dwordx4 {vr(d,4)}, v{cvOUT}, {sr(cOUT,4)}, s{cRD+4} offen offset:{pr*64}")
g.lab("LC_fin")
stamp('fin')
if OPT['stamp']:
    e(f"s_lshl_b32 s{sT}, s2, 3"); e(f"s_add_u32 s{sT}, s{sT}, s{sW}"); e(f"s_lshl_b32 s{sT}, s{sT}, 7"); e(f"s_add_u32 s{sT}, s{sT}, {WS_STAMP:#x}")
    e(f"v_lshlrev_b32 v{vT}, 2, v{L}"); e("s_mov_b32 exec_hi, 0")
    e(f"buffer_store_dword v0, v{vT}, {sr(sWS,4)}, s{sT} offen")
    if OPT['stamp'] == 2:
        e(f"v_readlane_b32 s{sT}, v0, 16"); e(f"s_not_b32 s{sT}, s{sT}"); e(f"v_writelane_b32 v0, s{sT}, 16")
        e(f"v_subrev_u32 v{vT}, 60, v{vT}"); e(f"s_mov_b32 exec_lo, {((1<<len(SN))-1)<<16:#x}")
        e(f"buffer_atomic_umax v0, v{vT}, {sr(sDBG,4)}, 0 offen sc1")
g.lab("L_end")
e("s_endpgm")
g.L += g.tail + g.tail2 + ['LZ_end:']
if OPT['nobar'] or OPT['nodma'] or OPT['nolds'] or OPT['noadv']:
    o = []; inl = False
    for l in g.L:
        if l.startswith('LA_loop') or l.startswith('LC_loop'): inl = True
        if 'LA_h1_' in l or l.startswith('LC_done'): inl = False
        if inl and OPT['nobar'] and 's_barrier' in l: continue
        if inl and OPT['nodma'] and 'buffer_load' in l: continue
        if inl and OPT['nolds'] and 'ds_read' in l: continue
        if inl and OPT['noadv'] and any(f's_add_u32 s{k}, s{k},' in l for k in list(range(sOW, sOW+5)) + [sKX]): continue
        o.append(l)
    g.L = o

hdr = [l.rstrip('\n') for l in open("cdna_kernels/%s.s.ref" % NAME)]
hdr = [l for l in hdr if l.startswith(';') and '@launch' not in l]
out = hdr + [f"; @launch grid=(256,1,1) block=(512,1,1) lds={LDS_BYTES}", '.amdgcn_target "amdgcn-amd-amdhsa--gfx950"', ".text"] + g.L
out += ['.section .rodata,"a"', ".p2align 6", f""".amdhsa_kernel {KN}
  .amdhsa_next_free_vgpr 256
  .amdhsa_next_free_sgpr 102
  .amdhsa_accum_offset 256
  .amdhsa_group_segment_fixed_size 0
  .amdhsa_kernarg_size 88
  .amdhsa_user_sgpr_count 2
  .amdhsa_user_sgpr_kernarg_segment_ptr 1
  .amdhsa_system_sgpr_workgroup_id_x 1
.end_amdhsa_kernel"""]
out.insert(0, "; stamps: " + ",".join(SN)) if OPT['stamp'] else None
open(sys.argv[1], "w").write("\n".join(out) + "\n")
import hazard
errs = hazard.check("\n".join(g.L))
print("\n".join(errs) if errs else "hazard check clean")
```

```python
import sys, struct
NAME = "gated_mix__sliding_block__swiglu_ffn__prompt"
KN = NAME + "_kernel"
OPT = dict(stamp=0, NP=16, jbx=5, xrd=[0,0,1,1], xpos=[2,4,6,8], wpos=[1,3,5,7,9], pfpos=19, stag=0, PD=3, pf=1, CB=1, defer=0, slp=2, touch=0, pfnt=0, wnt=0, bprio=0, amap=3, fast=0, D=4, npre=3, apre=1, hpos=[0,2,4,6], dpos=[10,11,12,13], fr=5, hx=0, fnt=1, cpf=3, cpf0=1, aprio=3, pvs=1, w1=2, csn=1, kq=34, rp=15, rsl=1, ginc=1, tlb=4, aearly=1, hq2=13, xfl='', wfl='', cfl='', ost='', h0=2, nopk=0, pf2=0, wdst=4, wdn=24, otail=0, gl=2, p3=0, rc=24, dbg=2, hq=15, early1=2, snake=1, tst=0, wshift=0, noadv=0, aflag='sc1', kvfast=0, rfast=0, pfast=1, wb=0, pre=0, cmap=1, m16=288*512, c3=0, kvs1=1, cprio=0, AB=0,
           noX=0, noW=0, noA=0, noW2=0, prio=0, kvs=2, nobar=0, nodma=0, nolds=0)
for a in sys.argv[2:]:
    k, v = a.split('='); assert k in OPT, k
    OPT[k] = eval(v)
def f32(x): return "0x%08x" % struct.unpack('<I', struct.pack('<f', x))[0]
def vr(a, n=1): return f"v[{a}:{a+n-1}]" if n > 1 else f"v{a}"
def sr(a, n=1): return f"s[{a}:{a+n-1}]" if n > 1 else f"s{a}"
NV = [0]
class Gen:
    def __init__(s): s.L = []; s.q = []; s.v = []; s.tail = []; s.tail2 = []
    def e(s, t): s.L.append("    " + t)
    def lab(s, t): s.L.append(t + ":")
    def lds(s, t, tag): s.e(t); s.q.append(tag)
    def vm(s, t, tag): s.e(t); s.v.append(tag); NV[0] += 1
    def need(s, tags=(), vt=()):
        w = []
        idx = [i for i, t in enumerate(s.v) if t in vt]
        if idx:
            n = len(s.v) - 1 - max(idx); s.v = s.v[max(idx)+1:]; assert n < 64
            w.append(f"vmcnt({n})")
        idx = [i for i, t in enumerate(s.q) if t in tags]
        if idx:
            n = len(s.q) - 1 - max(idx); s.q = s.q[max(idx)+1:]
            w.append(f"lgkmcnt({min(n,15)})")
        if w: s.e("s_waitcnt " + " ".join(w))
    def steady(s, body):
        sv = s.L; s.L = []; s.q = []; s.v = []
        body(); body(); r = (list(s.q), list(s.v)); s.L = sv
        return r
g = Gen(); e = g.e
M16 = OPT['m16']; A_BYTES = 128*M16
WS_KV = 0x1400000; WS_PART = 0x1C00000; WS_G = 0x2C00000; WS_FL = 0x2C10000; WS_STAMP = 0x3000000; WS_SIZE = 0x4000000
FL_KV, FL_H, FL_O, FL_P, FL_P2 = 128, 256, 260, 384, 388
sFAST = 34+1
LOG2E = 1.4426950408889634
SPIN = 0x8000
MF16 = "v_mfma_f32_16x16x32_bf16"; MF32 = "v_mfma_f32_32x32x16_bf16"
sW, sRB, sH, sMW, sNW = 3, 4, 5, 6, 7
sX, sA, sB, sQ, sWS, sDBG, sPF = 8, 12, 16, 20, 24, 28, 32
sKX, sOW, sMWd, sINCA, sMX, sCNT, sKXE, sPFO, sPFI, sLAM, sOK, sGO = 36, 37, 42, 47, 48, 49, 50, 51, 52, 53, 54, 55
sT = 56; sP = 64; sST = 86
pX, pQKV, pWO, pWG, pWU, pWD, pGW, pOUT, pDBG, pWSp = sP, sP+2, sP+4, sP+8, sP+10, sP+12, sP+14, sP+16, sP+18, sP+20
sFAST = 101
sK = sP+6
vL, vL16, vPF, vDX, vDA, vDB, vXR, vWG, vWQ, vDUM, vCN, vGV, vT = 1, 2, 3, 4, 8, 9, 10, 12, 14, 18, 19, 20, 26
vWF, vXF, vACC = 44, 64, 96
L = vL
def ACC(j, i): return vACC + (4*j+i)*4
XSLOT = 32768; WBASE = 65536; HALF = 20480; WSLOT = 2*HALF; GOFF = 6144; UOFF = 6144+7168
LDS_BYTES = 163840; QLDS = 147456; QLDS3 = 92160; CNTLDS = 163832; CNT2 = 96256; GLDS = 163776; sGW = 96
UNITS = [['q0','q1','k0','k1','g0','u0','g1','u1','g2','u2'], ['v0','v1','g3','u3','g4','u4','g5','u5','g6','u6']]
def srd(d, p, size):
    e(f"s_mov_b32 s{d}, s{p}"); e(f"s_and_b32 s{d+1}, s{p+1}, 0xffff"); e(f"s_mov_b32 s{d+2}, {size:#x}"); e(f"s_mov_b32 s{d+3}, 0x20000")
SN = ['start','loopA','endA','ks','hdone','kvok','bar2','sph','hs','pv','attn','loopC','endH','rs','endC','fin']
SN = ['start','loopA','ks','endA','hdone','kvok','bar2','sph','hs','pv','loopC','endH','rs','endC','rs2','fin']
if OPT['tst']: SN = ['start','loopA'] + [f't{i}' for i in range(7)] + ['endA', 'fin']
def stamp(name):
    if OPT['tst'] and name not in ('loopA', 'endA', 'fin'): return
    if name not in SN: return
    idx = SN.index(name); assert idx < 16
    if not OPT['stamp']: return
    e(f"s_memtime s[{sST}:{sST+1}]"); e(f"s_memrealtime s[{sST+2}:{sST+3}]"); e("s_waitcnt lgkmcnt(0)")
    e(f"v_writelane_b32 v0, s{sST}, {idx}"); e(f"v_writelane_b32 v0, s{sST+2}, {idx+16}")
def pstamp(k):
    if OPT['stamp']: e(f"s_memtime s[{92+2*k}:{93+2*k}]")
NDS = [0]
def dstore(lines, on=True):
    if True:
        for l in lines: e(l + " sc1")
        return
    k = NDS[0]; NDS[0] += 1
    e(f"s_cmp_eq_u32 s{sFAST}, 1"); e(f"s_cbranch_scc0 LS_s{k}")
    for l in lines: e(l)
    g.lab(f"LS_r{k}")
    g.tail2 += [f"LS_s{k}:"] + ["    " + l + " sc1" for l in lines] + [f"    s_branch LS_r{k}"]
def one_lane(f):
    e("s_mov_b64 exec, 1"); f(); e("s_mov_b64 exec, -1")

def a_wread(nw, n, tj=None):
    n %= 40; t = n // 10; j = n % 10
    if tj: t, j = tj
    sig = (t+1) >> 1; half = (t+1) & 1; slot = sig & 1; un = UNITS[nw][j]
    for tr in range(2):
        if un[0] in 'qkv':
            a = vWQ + 2*slot + int(un[1]); off = half*HALF + 'qkv'.index(un[0])*2048 + tr*512
        else:
            a = vWG + slot; off = half*HALF + (GOFF if un[0] == 'g' else UOFF) + tr*1792 + int(un[1])*32
        g.lds(f"ds_read_b64_tr_b16 {vr(vWF+4*(n%5)+2*tr,2)}, v{a} offset:{off}", ('W', n % 5))
def a_xread(i, t):
    t %= 4
    g.lds(f"ds_read_b128 {vr(vXF+16*(t&1)+4*i,4)}, v{vXR+(t&1)} offset:{(t>>1)*XSLOT+i*2048}", ('X', t & 1, i))
def a_m0(k, n, slot):
    if k == 'x': e(f"s_add_u32 m0, s{sMX}, {slot*XSLOT}")
    elif k == 'w': e(f"s_add_u32 m0, s{sMWd+n}, {slot*WSLOT}")
def a_op(k, n, slot, first=False):
    if k == 'x':
        g.vm(f"buffer_load_dwordx4 v{vDX+n}, {sr(sX,4)}, s{sKX} offen offset:{1024*n} {OPT['xfl']} lds", ('x', slot, n))
        if n == 3:
            e(f"s_add_u32 s{sKX}, s{sKX}, 128")
    elif k == 'w':
        d = [sA, sA, sB, sB, sQ][n]; v = vDA if n < 4 else vDB
        if first: e(f"s_cmp_lt_i32 s{sOW+n}, 0"); e(f"s_cbranch_scc1 LA_skipw{n}")
        g.vm(f"buffer_load_dwordx4 v{v}, {sr(d,4)}, s{sOW+n} offen" + (" nt" if (OPT['wnt'] & 1 or (first and OPT['fnt'])) else "") + f" {OPT['wfl']} lds", ('w', slot, n))
        if first: g.lab(f"LA_skipw{n}")
        e(f"s_add_u32 s{sOW+n}, s{sOW+n}, " + (f"s{sINCA}" if n < 4 else f"{64*6144}"))
    else:
        g.vm(f"buffer_load_dword v{vDUM}, v{vPF}, {sr(sPF,4)}, s{sPFO} offen" + (" nt" if OPT['wnt'] & 2 and NWCUR[0] == 0 else ""), ('p', 0, 0))
        e(f"s_add_u32 s{sPFO}, s{sPFO}, s{sPFI}")
def a_full(k, n, slot, first=False):
    a_m0(k, n, slot)
    if not first: e("s_nop 0")
    a_op(k, n, slot, first)
JBW = 6
def a_events(nw):
    ev = {}; st = OPT['stag']*nw
    for t in (1, 3):
        for n, o in enumerate(OPT['xpos']): assert 0 <= o+st < 20; ev.setdefault((t*10+OPT['jbx']+o+st) % 40, []).append(('x', n, t >> 1))
    for t in (0, 2):
        for n, o in enumerate(OPT['wpos']): assert 0 <= o+st < 20; ev.setdefault((t*10+JBW+o+st) % 40, []).append(('w', n, t >> 1))
        if OPT['pf']: ev.setdefault((t*10+JBW+OPT['pfpos']-st) % 40, []).append(('p', 0, 0))
    return ev
NWCUR = [0]
def a_body(nw):
    NWCUR[0] = nw
    ev = a_events(nw)
    for t in range(4):
        for j in range(10):
            n = t*10 + j; un = UNITS[nw][j]; evs = ev.get(n, [])
            for i in range(4):
                i2 = 3-i if (OPT['snake'] and j & 1) else i
                g.need([('W', n % 5), ('X', t & 1, i2)])
                a, b = vr(vWF+4*(n % 5), 4), vr(vXF+16*(t & 1)+4*i2, 4)
                if un[0] == 'v': a, b = b, a
                e(f"{MF16} {vr(ACC(j,i2),4)}, {a}, {b}, {vr(ACC(j,i2),4)}")
                if i == 0:
                    if t % 2 == 0 and j == JBW:
                        g.need([('W', k) for k in range(5)], [('w', 1-(t >> 1), k) for k in range(5)]); e("s_barrier")
                    if t % 2 == 1 and j == OPT['jbx']:
                        g.need([], [('x', 1-(t >> 1), k) for k in range(4)]); e("s_barrier")
                    a_wread(nw, n+4)
                if i == 1:
                    for ii in range(4):
                        if OPT['jbx'] + OPT['xrd'][ii] == j: a_xread(ii, t+1)
                    if evs: a_m0(*evs[0])
                if i == 2 and evs:
                    a_op(*evs[0])
                    for x in evs[1:]: a_full(*x)

def silu(jg, i, t, R):
    G = ACC(jg, i); U = ACC(jg+1, i)
    for r in range(0, 8, 2): e(f"v_pk_mul_f32 {vr(t+r,2)}, {vr(G+r,2)}, {sr(sK,2)}")
    for r in range(8): e(f"v_exp_f32 v{t+r}, v{t+r}")
    for r in range(0, 8, 2): e(f"v_pk_mul_f32 {vr(G+r,2)}, {vr(G+r,2)}, {vr(U+r,2)}")
    for r in range(0, 8, 2): e(f"v_pk_add_f32 {vr(t+r,2)}, {vr(t+r,2)}, s[94:95]")
    for r in range(8): e(f"v_rcp_f32 v{t+r}, v{t+r}")
    e("s_nop 0")
    for r in range(0, 8, 2): e(f"v_pk_mul_f32 {vr(G+r,2)}, {vr(G+r,2)}, {vr(t+r,2)}")
    for r in range(4): e(f"v_cvt_pk_bf16_f32 v{R+r}, v{G+2*r}, v{G+2*r+1}")
    e("s_nop 1")
    e(f"v_permlane32_swap_b32 v{R}, v{R+2}"); e(f"v_permlane32_swap_b32 v{R+1}, v{R+3}")
def pack2(j, i):
    a, b = ACC(j, i), ACC(j+1, i)
    e(f"v_cvt_pk_bf16_f32 v{a}, v{a}, v{a+1}"); e(f"v_cvt_pk_bf16_f32 v{a+1}, v{a+2}, v{a+3}")
    e(f"v_cvt_pk_bf16_f32 v{a+2}, v{b}, v{b+1}"); e(f"v_cvt_pk_bf16_f32 v{a+3}, v{b+2}, v{b+3}")
def spin(name, load, test, cnt):
    e(f"s_mov_b32 s{cnt}, {SPIN:#x}")
    g.lab(name)
    load(); e("s_waitcnt vmcnt(0)"); test()
    e(f"s_cbranch_scc1 {name}_ok")
    e(f"s_sub_u32 s{cnt}, s{cnt}, 1"); e(f"s_cbranch_scc1 {name}_ok")
    e(f"s_sleep {OPT['slp']}"); e(f"s_branch {name}")
    g.lab(name + "_ok")
NSIG = [0]
sDN, sHB, sFO = 100, 92, 101
vSG = 20
def trysig(n, ldsaddr, flagadd, flagoff, force=False, sDN=sDN):
    k = NSIG[0]; NSIG[0] += 1
    if force: e(f"s_cmp_eq_u32 s{sDN}, 0")
    else:
        e(f"s_getreg_b32 s{sFO}, hwreg(HW_REG_IB_STS)"); e(f"s_and_b32 s{sFO}, s{sFO}, 0xc0000f"); e(f"s_or_b32 s{sFO}, s{sFO}, s{sDN}"); e(f"s_cmp_le_u32 s{sFO}, {n}")
    e(f"s_cbranch_scc1 LG_s{k}"); g.lab(f"LG_r{k}")
    g.tail2 += [f"LG_s{k}:"] + ["    " + x for x in (
        f"v_mov_b32 v{vSG}, {ldsaddr}", f"s_mov_b32 s{sDN}, 0x10000", "s_mov_b64 exec, 1", f"s_waitcnt vmcnt({n})",
        f"ds_add_rtn_u32 v{vSG+1}, v{vSG}, v{vCN}", "s_waitcnt lgkmcnt(0)", f"v_readfirstlane_b32 s{sFO}, v{vSG+1}", "s_nop 1",
        f"s_cmp_lg_u32 s{sFO}, 7", f"s_cbranch_scc1 LG_x{k}", f"s_add_u32 s{sFO}, s{sT+7}, {flagadd}",
        f"buffer_store_dword v{vCN}, off, {sr(sWS,4)}, s{sFO} offset:{flagoff} sc1")] + [f"LG_x{k}:", "    s_mov_b64 exec, -1"]
    sv = g.L; g.L = g.tail2; stamp({FL_KV:'ks',FL_H:'hs',FL_P:'rs',FL_P2:'rs2'}[flagoff]); e(f"s_branch LG_r{k}"); g.L = sv
def gate_acc(X, W, t, one):
    return [[f"v_lshlrev_b32 v{t}, 16, v{X}"], [f"v_and_b32 v{t+1}, 0xffff0000, v{X}"], [f"v_lshlrev_b32 v{t+2}, 16, v{W}"],
            [f"v_and_b32 v{t+3}, 0xffff0000, v{W}"], [f"v_pk_mul_f32 {vr(t,2)}, {vr(t,2)}, {vr(t+2,2)}"], [f"v_cvt_pk_bf16_f32 v{t+4}, v{t}, v{t+1}"],
            [f"v_dot2_f32_bf16 v{t+5}, v{t+4}, v{one}, v{t+5}"]]
def gate_list(t, one):
    o = gate_acc(40, 41, t, one) + gate_acc(38, 39, t, one)
    o.append(["s_nop 1"])
    for m in ("quad_perm:[1,0,3,2] row_mask:0xf", "quad_perm:[2,3,0,1] row_mask:0xf", "row_half_mirror row_mask:0xf",
              "row_mirror row_mask:0xf", "row_bcast:15 row_mask:0xa", "row_bcast:31 row_mask:0xc"):
        o.append(["s_nop 1", f"v_add_f32_dpp v{t+5}, v{t+5}, v{t+5} {m} bank_mask:0xf"])
    o += [[f"v_cvt_pk_bf16_f32 v{t}, v{t+5}, v{t+5}", f"v_and_b32 v{t}, 0xffff0000, v{t}"], [f"v_mul_f32 v{t}, {f32(-LOG2E)}, v{t}", f"v_exp_f32 v{t}, v{t}", "s_nop 0"],
          [f"v_add_f32 v{t}, 1.0, v{t}", f"v_rcp_f32 v{t}, v{t}", "s_nop 0"], [f"v_cvt_pk_bf16_f32 v{t}, v{t}, v{t}", f"v_and_b32 v{t}, 0xffff0000, v{t}"],
          [f"s_lshl_b32 s{sT}, s{sW}, 2", f"s_add_u32 s{sT}, s{sT}, {GLDS}", f"v_mov_b32 v{t+1}, s{sT}"],
          ["s_mov_b32 exec_lo, 0", "s_brev_b32 exec_hi, 1", f"ds_write_b32 v{t+1}, v{t}", "s_mov_b64 exec, -1"]]
    return o

D = OPT['D']; NH = 14; OT = OPT['otail']; NT = 8 if OT else 4; NS = NH + NT
cA, cWt, cOUT, cWo, cX = 8, 12, 16, 32, 40
cAK, cWK, cWK2, cQ, cNT, cM0, cAK2 = 20, 21, 22, 23, 36, 37, 38
cvDW, cvA, cvPL, cvDW2, cvPA = 4, 6, 16, 20, 18
cvWF, cvAR, cvRB, cvRA, cvPT, cvOA, cvACC = 28, 60, 124, 136, 144, 176, 192
CRING = 98304
def c_setup():
    e(f"s_lshr_b32 s{cQ}, s{sH}, 3"); e(f"s_and_b32 s{cNT}, s{sH}, 7")
    e(f"s_lshl_b32 s{sT}, s{cNT}, 8")
    e(f"s_lshl_b32 s{cWK}, s{sW}, 14"); e(f"s_add_u32 s{cWK}, s{cWK}, s{sT}")
    e(f"s_lshl_b32 s{cWK2}, s{sW}, {15 if OT else 14}"); e(f"s_add_u32 s{cWK2}, s{cWK2}, s{sT}")
    e(f"s_mul_i32 s{sT}, s{cQ}, {896*2048}"); e(f"s_add_u32 s{cWK}, s{cWK}, s{sT}")
    if OT: e(f"s_lshr_b32 s{sT}, s{cQ}, 1"); e(f"s_lshl_b32 s{sT}, s{sT}, 7")
    else: e(f"s_lshl_b32 s{sT}, s{cQ}, 19")
    e(f"s_add_u32 s{cWK2}, s{cWK2}, s{sT}")
    e(f"s_lshl_b32 s{cM0}, s{sW}, 11"); e(f"s_add_u32 s{cM0}, s{cM0}, {CRING}")
    srd(cWt, pWD, 0 if OPT['noW2'] else 3584*2048); srd(cWo, pWO, 0 if OPT['noW2'] else 1024*2048)
    srd(cA, pWSp, 0 if OPT['noA'] else A_BYTES); srd(cOUT, pOUT, 2048*2048)
    e(f"s_lshl_b32 s{sT}, s{sRB}, 4"); e(f"s_lshl_b32 s{cAK}, s{sW}, 1"); e(f"s_add_u32 s{sT}, s{sT}, s{cAK}")
    e(f"s_mul_i32 s{cAK}, s{sT}, {M16}"); e(f"s_add_u32 s{cAK2}, s{cAK}, {56*512}")
    e(f"s_mul_i32 s{sT}, s{cQ}, {72*512}"); e(f"s_add_u32 s{cAK}, s{cAK}, s{sT}")
    e(f"v_mov_b32 v{cvA}, v{vL16}"); e(f"v_add_u32 v{cvA+1}, {M16}, v{vL16}")
    e(f"v_lshrrev_b32 v{vT}, 4, v{vL}"); e(f"v_bfe_u32 v{vT+1}, v{vL}, 1, 3"); e(f"v_xor_b32 v{vT+1}, v{vT+1}, v{vT}")
    e(f"v_lshlrev_b32 v{vT}, 11, v{vT}"); e(f"v_lshl_add_u32 v{vT}, v{vT+1}, 5, v{vT}")
    e(f"v_and_b32 v{vT+1}, 1, v{vL}"); e(f"v_lshl_add_u32 v{cvDW}, v{vT+1}, 4, v{vT}")
    e(f"v_xor_b32 v{cvDW+1}, 128, v{cvDW}"); e(f"v_add_u32 v{cvDW+1}, 7168, v{cvDW+1}")
    e(f"v_and_b32 v{cvPA}, 7, v{L}"); e(f"v_lshlrev_b32 v{cvPA}, 9, v{cvPA}")
def c_m0(s): e(f"s_add_u32 m0, s{cM0}, {(s % 4)*16384}")
def c_dma(s, n):
    if s < NH:
        g.vm(f"buffer_load_dwordx4 v{cvDW+n}, {sr(cWt,4)}, s{cWK} offen offset:{n*1024} {OPT['cfl']} lds", ('d', s))
        if n == 1: e(f"s_add_u32 s{cWK}, s{cWK}, {64*2048}")
    else:
        g.vm(f"buffer_load_dwordx4 v{(cvDW2 if OT else cvDW)+n}, {sr(cWo,4)}, s{cWK2} offen offset:{n*1024} {OPT['cfl']} lds", ('d', s))
        if n == 1: e(f"s_add_u32 s{cWK2}, s{cWK2}, {(128 if OT else 64)*2048}")
def c_aload(s, k):
    if s < NH or not OT:
        ku, mf = k >> 1, k & 1
        g.vm(f"buffer_load_dwordx4 {vr(cvAR+16*((s+1)%D)+4*k,4)}, v{cvA+mf}, {sr(cA,4)}, s{cAK} offen offset:{(s&1)*2048+ku*1024} sc1", ('a', s, k))
        if k == 3 and s & 1: e(f"s_add_u32 s{cAK}, s{cAK}, 4096")
    else:
        g.vm(f"buffer_load_dwordx4 {vr(cvAR+16*((s+1)%D)+4*k,4)}, v{cvA}, {sr(cA,4)}, s{cAK2} offen offset:{k*1024} sc1", ('a', s, k))
        if k == 3: e(f"s_add_u32 s{cAK2}, s{cAK2}, {4096 if (s-NH) % 2 == 0 else 72*512-4096}")
def c_wread(s, n):
    s += n // 16; n %= 16
    if s >= NS: return
    for tr in range(2):
        if s < NH or not OT: a, off = cvRA + (n & 7), (n >> 3)*8192 + tr*2048
        else: a, off = cvRB + (n & 3), (n >> 2)*4096 + tr*1024
        g.lds(f"ds_read_b64_tr_b16 {vr(cvWF+4*(n&7)+2*tr,2)}, v{a} offset:{(s%4)*16384+off}", ('W', n & 7))

g.L += [".globl " + KN, ".p2align 8", f".type {KN},@function"]
g.lab(KN)
e("s_cmp_ge_u32 s2, 256"); e("s_cbranch_scc1 L_end")
e(f"s_load_dwordx16 {sr(sP,16)}, s[0:1], 0"); e(f"s_load_dwordx4 {sr(sP+16,4)}, s[0:1], 64"); e(f"s_load_dwordx2 {sr(sP+20,2)}, s[0:1], 80")
if OPT['stamp']: e(f"s_memtime s[{sST+4}:{sST+5}]"); e(f"s_memrealtime s[{sST+6}:{sST+7}]")
if OPT['cpf0']:
    e(f"s_getpc_b64 s[{sT}:{sT+1}]"); g.lab("LA_pc0")
    e(f"s_sub_u32 s{sT}, s{sT}, LA_pc0-{KN}"); e(f"s_subb_u32 s{sT+1}, s{sT+1}, 0")
    e(f"s_lshr_b32 s{sT+2}, s2, 3"); e(f"s_lshl_b32 s{sT+2}, s{sT+2}, 7")
    e(f"v_lshlrev_b32 v26, 12, v0"); e(f"v_add_u32 v26, s{sT+2}, v26")
    e(f"v_cmp_gt_u32 vcc, LZ_end-{KN}-4, v26"); e(f"v_mov_b32 v27, s{sT+1}"); e(f"s_and_saveexec_b64 s[{sT+2}:{sT+3}], vcc"); e("s_cbranch_execz LA_nopc")
    e(f"v_add_co_u32 v26, vcc, s{sT}, v26"); e("s_nop 1"); e(f"v_addc_co_u32 v27, vcc, 0, v27, vcc")
    e(f"global_load_dword v{vDUM}, v[26:27], off")
    g.lab("LA_nopc"); e("s_mov_b64 exec, -1")
e(f"v_lshrrev_b32 v{vT}, 6, v0"); e(f"v_and_b32 v{vL}, 63, v0"); e(f"v_readfirstlane_b32 s{sW}, v{vT}")
if OPT['amap'] == 0:
    e(f"s_lshr_b32 s{sRB}, s2, 5"); e(f"s_and_b32 s{sH}, s2, 7"); e(f"s_lshl_b32 s{sH}, s{sH}, 2")
    e(f"s_bfe_u32 s{sT}, s2, {(2<<16)|3:#x}"); e(f"s_add_u32 s{sH}, s{sH}, s{sT}")
elif OPT['amap'] == 1:
    e(f"s_and_b32 s{sRB}, s2, 7"); e(f"s_lshr_b32 s{sH}, s2, 3")
elif OPT['amap'] == 2:
    e(f"s_and_b32 s{sRB}, s2, 6"); e(f"s_lshr_b32 s{sT}, s2, 7"); e(f"s_add_u32 s{sRB}, s{sRB}, s{sT}")
    e(f"s_and_b32 s{sH}, s2, 1"); e(f"s_lshl_b32 s{sH}, s{sH}, 4"); e(f"s_bfe_u32 s{sT}, s2, {(4<<16)|3:#x}"); e(f"s_add_u32 s{sH}, s{sH}, s{sT}")
if OPT['amap'] == 3:
    e(f"s_and_b32 s{sRB}, s2, 4"); e(f"s_lshr_b32 s{sT}, s2, 6"); e(f"s_add_u32 s{sRB}, s{sRB}, s{sT}")
    e(f"s_and_b32 s{sH}, s2, 3"); e(f"s_lshl_b32 s{sH}, s{sH}, 3"); e(f"s_bfe_u32 s{sT}, s2, {(3<<16)|3:#x}"); e(f"s_add_u32 s{sH}, s{sH}, s{sT}")
e(f"s_and_b32 s{sMW}, s{sW}, 3"); e(f"s_lshr_b32 s{sNW}, s{sW}, 2")
e(f"s_lshl_b32 s{sLAM}, s{sRB}, 5"); e(f"s_add_u32 s{sLAM}, s{sLAM}, s{sH}")
e(f"v_lshlrev_b32 v{vL16}, 4, v{L}")
e(f"v_lshrrev_b32 v{vT}, 3, v{L}"); e(f"v_lshlrev_b32 v{vT}, 11, v{vT}")
e(f"v_lshrrev_b32 v{vT+1}, 4, v{L}"); e(f"v_and_b32 v{vT+2}, 7, v{L}"); e(f"v_xor_b32 v{vT+1}, v{vT+1}, v{vT+2}")
e(f"v_lshl_add_u32 v{vDX}, v{vT+1}, 4, v{vT}"); e(f"v_xor_b32 v{vDX+1}, 64, v{vDX}")
e(f"v_add_u32 v{vDX+2}, {2*15360}, v{vDX}"); e(f"v_add_u32 v{vDX+3}, {3*15360}, v{vDX+1}"); e(f"v_add_u32 v{vDX+1}, 15360, v{vDX+1}")
def swap23(d, s, t):
    e(f"v_and_b32 v{d}, 0x13, v{s}")
    e(f"v_and_b32 v{t}, 4, v{s}"); e(f"v_lshl_or_b32 v{d}, v{t}, 1, v{d}")
    e(f"v_and_b32 v{t}, 8, v{s}"); e(f"v_lshrrev_b32 v{t}, 1, v{t}"); e(f"v_or_b32 v{d}, v{d}, v{t}")
e(f"v_lshrrev_b32 v{vT}, 2, v{L}"); swap23(vT+1, vT, vT+2)
e(f"v_mul_u32_u24 v{vT+1}, 6144, v{vT+1}")
e(f"v_lshrrev_b32 v{vT}, 3, v{L}"); e(f"v_and_b32 v{vT}, 2, v{vT}"); e(f"v_and_b32 v{vT+2}, 3, v{L}"); e(f"v_xor_b32 v{vT}, v{vT}, v{vT+2}")
e(f"v_lshl_add_u32 v{vDB}, v{vT}, 4, v{vT+1}")
e(f"v_mul_u32_u24 v{vT}, 4682, v0"); e(f"v_lshrrev_b32 v{vT}, 16, v{vT}")
e(f"v_mul_u32_u24 v{vT+3}, 14, v{vT}"); e(f"v_sub_u32 v{vT+3}, v0, v{vT+3}")
swap23(vT+1, vT, vT+2)
e(f"v_mul_u32_u24 v{vT+1}, 7168, v{vT+1}"); e(f"v_lshl_add_u32 v{vDA}, v{vT+3}, 4, v{vT+1}")
e(f"s_lshl_b32 s{sKX}, s{sRB}, 19"); e(f"s_lshl_b32 s{sT}, s{sW}, 16"); e(f"s_add_u32 s{sKX}, s{sKX}, s{sT}")
e(f"s_add_u32 s{sKXE}, s{sKX}, 2048"); e(f"s_lshl_b32 s{sMX}, s{sW}, 12")
e(f"s_mul_i32 s{sOW+1}, s{sH}, 224"); e(f"s_sub_u32 s{sOW}, s{sOW+1}, {32*7168}")
e(f"s_mov_b32 s{sOW+2}, s{sOW}"); e(f"s_mov_b32 s{sOW+3}, s{sOW+1}")
e(f"s_lshl_b32 s{sT}, s{sW}, 10")
for n, o in enumerate((GOFF, GOFF+HALF, UOFF, UOFF+HALF)): e(f"s_add_u32 s{sMWd+n}, s{sT}, {WBASE+o}")
e(f"s_mov_b32 s{sINCA}, {64*7168}")
def qpiece(p):
    half, unit, rg = p // 6, (p % 6) // 2, p % 2
    return (WBASE + half*HALF + unit*2048 + rg*1024, ((-32 + half*32 + rg*16)*6144 + unit*2048) & 0xffffffff)
e(f"s_lshl_b32 s{sT+1}, s{sH}, 6")
e(f"s_add_u32 s{sMWd+4}, s{sT}, {WBASE}")
e(f"s_and_b32 s{sT+2}, s{sW}, 1"); e(f"s_mul_i32 s{sT+2}, s{sT+2}, {16*6144}")
e(f"s_lshr_b32 s{sT+3}, s{sW}, 1"); e(f"s_lshl_b32 s{sT+3}, s{sT+3}, 11"); e(f"s_add_u32 s{sT+2}, s{sT+2}, s{sT+3}")
e(f"s_sub_u32 s{sOW+4}, s{sT+2}, {32*6144}")
for w, p in ((6, 6), (7, 11)):
    l, o = qpiece(p)
    e(f"s_cmp_eq_u32 s{sW}, {w}"); e(f"s_cselect_b32 s{sMWd+4}, {l:#x}, s{sMWd+4}"); e(f"s_cselect_b32 s{sOW+4}, {o:#x}, s{sOW+4}")
e(f"s_add_u32 s{sOW+4}, s{sOW+4}, s{sT+1}")
e("s_waitcnt lgkmcnt(0)")
if OPT['stamp']: e(f"v_writelane_b32 v0, s{sST+4}, 0"); e(f"v_writelane_b32 v0, s{sST+6}, 16")
srd(sX, pX, 0 if OPT['noX'] else 2048*2048)
for n in range(4): a_full('x', n, 0)
srd(sQ, pQKV, 0 if OPT['noW'] else 1024*6144); srd(sA, pWG, 0 if OPT['noW'] else 1024*7168); srd(sB, pWU, 0 if OPT['noW'] else 1024*7168)
e(f"s_cmp_eq_u32 s{sW}, 7"); e("s_cbranch_scc0 LA_not7")
for d in (sA, sB):
    for k in range(3): e(f"s_mov_b32 s{d+k}, s{sQ+k}")
for n in range(4):
    l, o = qpiece(7+n)
    e(f"s_mov_b32 s{sMWd+n}, {l:#x}"); e(f"s_add_u32 s{sOW+n}, s{sT+1}, {o:#x}")
e(f"s_mov_b32 s{sINCA}, {64*6144}"); e(f"v_mov_b32 v{vDA}, v{vDB}")
g.lab("LA_not7")
if OPT['wshift']:
    for n in range(5): e(f"s_add_u32 s{sOW+n}, s{sOW+n}, " + (f"s{sINCA}" if n < 4 else f"{64*6144}"))
for n in range(5): a_full('w', n, 0, True)
srd(sWS, pWSp, WS_SIZE); srd(sDBG, pDBG, 256); srd(sPF, pGW, 2048)
PD = OPT['PD'] - OPT['pre']; sPB = sT+6
assert OPT['amap'] == 3
e(f"s_lshr_b32 s{sT+1}, s2, 3"); e(f"s_lshr_b32 s{sT+2}, s{sH}, 3")
e(f"v_lshlrev_b32 v{vPF}, 7, v{L}"); e(f"s_mov_b32 s{sT+3}, 0"); e(f"s_mov_b32 s{sCNT}, 0"); e(f"s_mov_b32 s{sPFO}, 0"); e(f"s_mov_b32 s{sPFI}, 0")
e(f"s_mov_b32 s{sPB}, s{pX}"); e(f"s_mov_b32 s{sPB+1}, s{pX+1}")
def pfcase(w, body):
    e(f"s_cmp_lg_u32 s{sW}, {w}"); e(f"s_cbranch_scc1 LA_pf{w}"); body(); g.lab(f"LA_pf{w}")
def base(p, size): e(f"s_mov_b32 s{sPB}, s{p}"); e(f"s_mov_b32 s{sPB+1}, s{p+1}"); e(f"s_mov_b32 s{sCNT}, {size:#x}")
R2 = 2 if OPT['pf2'] else 1
def pf_x():
    base(pX, 2048*2048); e(f"v_and_b32 v{vT}, 31, v{L}"); e(f"v_lshlrev_b32 v{vT}, 11, v{vT}"); e(f"v_lshrrev_b32 v{vPF}, 5, v{L}"); e(f"v_lshl_add_u32 v{vPF}, v{vPF}, 7, v{vT}")
    e(f"s_and_b32 s{sT+4}, s{sH}, 7"); e(f"s_lshl_b32 s{sT+4}, s{sT+4}, 16"); e(f"s_lshl_b32 s{sPFO}, s{sRB}, 19"); e(f"s_add_u32 s{sPFO}, s{sPFO}, s{sT+4}")
    e(f"s_add_u32 s{sPFO}, s{sPFO}, {PD*128}"); e(f"s_mov_b32 s{sPFI}, {128*R2}"); e(f"s_mov_b32 s{sT+3}, {32*R2}")
def pf_gu(p):
    def f():
        base(p, 1024*7168); e(f"v_mul_u32_u24 v{vT}, 4682, v{L}"); e(f"v_lshrrev_b32 v{vT}, 16, v{vT}")
        e(f"v_mul_u32_u24 v{vT+1}, {7168-1792}, v{vT}"); e(f"v_add_u32 v{vPF}, v{vPF}, v{vT+1}")
        e(f"v_lshrrev_b32 v{vT}, 1, v{vT}"); e(f"v_mul_u32_u24 v{vT}, {62*7168}, v{vT}"); e(f"v_add_u32 v{vPF}, v{vPF}, v{vT}")
        e(f"s_mul_i32 s{sPFO}, s{sT+1}, {2*7168}"); e(f"s_mul_i32 s{sT+4}, s{sT+2}, 1792"); e(f"s_add_u32 s{sPFO}, s{sPFO}, s{sT+4}")
        e(f"s_add_u32 s{sPFO}, s{sPFO}, {(64*PD-32)*7168}"); e(f"s_mov_b32 s{sPFI}, {64*7168*R2}"); e(f"s_mov_b32 s{sT+3}, {28*R2}")
    return f
def pf_q():
    base(pQKV, 1024*6144); e(f"v_lshrrev_b32 v{vT}, 2, v{L}"); e(f"v_lshlrev_b32 v{vT}, 11, v{vT}"); e(f"v_and_b32 v{vPF}, 3, v{L}")
    e(f"v_lshl_add_u32 v{vPF}, v{vPF}, 7, v{vT}")
    e(f"v_cmp_le_u32 vcc, 24, v{L}"); e(f"v_add_u32 v{vT}, {62*6144}, v{vPF}"); e("s_nop 0"); e(f"v_cndmask_b32 v{vPF}, v{vPF}, v{vT}, vcc")
    e(f"s_mul_i32 s{sPFO}, s{sT+1}, {2*6144}"); e(f"s_lshl_b32 s{sT+4}, s{sT+2}, 9"); e(f"s_add_u32 s{sPFO}, s{sPFO}, s{sT+4}")
    e(f"s_add_u32 s{sPFO}, s{sPFO}, {(64*PD-32)*6144}"); e(f"s_mov_b32 s{sPFI}, {64*6144*R2}"); e(f"s_mov_b32 s{sT+3}, {24*R2}")
def pf_lin(p, size, nl, st=0):
    def f():
        base(p, size); e(f"s_mul_i32 s{sPFO}, s{sLAM}, {nl*128}"); e(f"s_mov_b32 s{sPFI}, {nl*128*256}"); e(f"s_mov_b32 s{sT+3}, {nl}")
        if st: e(f"s_sub_u32 s{sPFO}, s{sPFO}, {st*nl*128*256}")
    return f
if OPT['pf']:
    if PD > 0: pfcase(6, pf_x); pfcase(1, pf_gu(pWG)); pfcase(2, pf_gu(pWU)); pfcase(3, pf_q)
    pfcase(4, pf_lin(pWD, 3584*2048, OPT['wdn'], OPT['wdst'])); pfcase(5, pf_lin(pWO, 1024*2048, 16, OPT['wdst']))
    if OPT['touch'] & 1: pfcase(6, pf_lin(pWSp, A_BYTES, 64))
    def pf_kv():
        pf_lin(pWSp, WS_KV + (0x1000000 if OPT['touch'] & 4 else 0x800000), 64)(); e(f"s_add_u32 s{sPFO}, s{sPFO}, {WS_KV:#x}")
    if OPT['touch'] & 2: pfcase(7, pf_kv)
e(f"v_cmp_gt_u32 vcc, s{sT+3}, v{L}"); e(f"v_bfrev_b32 v{vT}, 1"); e("s_nop 0"); e(f"v_cndmask_b32 v{vPF}, v{vT}, v{vPF}, vcc")
e(f"s_mov_b32 s{sPF}, s{sPB}"); e(f"s_and_b32 s{sPF+1}, s{sPB+1}, 0xffff"); e(f"s_mov_b32 s{sPF+2}, s{sCNT}")
for k in range(OPT['pre']): a_op('p', 0, 0)
e(f"v_and_b32 v{vT}, 15, v{L}"); e(f"s_lshl_b32 s{sT}, s{sMW}, 6"); e(f"v_add_u32 v{vT}, s{sT}, v{vT}"); e(f"v_lshlrev_b32 v{vT}, 7, v{vT}")
e(f"v_lshrrev_b32 v{vT+1}, 4, v{L}"); e(f"v_bfe_u32 v{vT+2}, v{L}, 1, 3"); e(f"v_xor_b32 v{vT+2}, v{vT+1}, v{vT+2}")
e(f"v_lshl_add_u32 v{vXR}, v{vT+2}, 4, v{vT}"); e(f"v_xor_b32 v{vXR+1}, 64, v{vXR}")
e(f"v_bfe_u32 v{vT}, v{L}, 2, 3")
e(f"v_lshrrev_b32 v{vT+1}, 5, v{L}"); e(f"v_lshl_add_u32 v{vT}, v{vT+1}, 4, v{vT}")
e(f"v_and_b32 v{vT+1}, 3, v{L}"); e(f"v_lshlrev_b32 v{vT+1}, 3, v{vT+1}"); e(f"v_add_u32 v{vT+1}, {WBASE}, v{vT+1}")
e(f"v_mul_u32_u24 v{vWG}, 224, v{vT}"); e(f"v_add_u32 v{vWG}, v{vWG}, v{vT+1}"); e(f"v_add_u32 v{vWG+1}, {WSLOT}, v{vWG}")
e(f"v_lshl_add_u32 v{vWQ}, v{vT}, 6, v{vT+1}"); e(f"v_bfe_u32 v{vT+2}, v{L}, 4, 1"); e(f"v_lshl_add_u32 v{vWQ}, v{vT+2}, 5, v{vWQ}")
e(f"v_xor_b32 v{vWQ+1}, 32, v{vWQ}"); e(f"v_add_u32 v{vWQ+2}, {WSLOT}, v{vWQ}"); e(f"v_add_u32 v{vWQ+3}, {WSLOT}, v{vWQ+1}")
for r in range(vACC, 256): e(f"v_mov_b32 v{r}, 0")
e(f"s_mov_b32 s{sK}, {f32(-LOG2E)}"); e(f"s_mov_b32 s{sK+1}, {f32(-LOG2E)}")
e(f"s_lshl_b32 s{sGO}, s{sLAM}, 3"); e(f"s_add_u32 s{sGO}, s{sGO}, s{sW}"); e(f"s_lshl_b32 s{sGO}, s{sGO}, 11")
e("v_mov_b32 v40, 0"); e("v_mov_b32 v41, 0"); e("v_mov_b32 v25, 0"); e("v_mov_b32 v43, 0x3f803f80"); e(f"v_lshlrev_b32 v42, 2, v{L}"); e(f"s_mov_b32 s{sKXE}, 0")
srd(sGW, pGW, 2048); e("s_mov_b32 s94, 1.0"); e("s_mov_b32 s95, 1.0")
W1A = {0: [0,1,2,3,4], 1: [], 2: [0,2,4]}[OPT['w1']]
for n in W1A: a_full('w', n, 1)
e(f"s_waitcnt vmcnt({len(W1A)+OPT['pre']})"); e("s_barrier")
e(f"s_cmp_eq_u32 s{sNW}, 1"); e("s_cbranch_scc1 LA_pre1")
for nw in range(2):
    if nw == 1: g.lab("LA_pre1")
    sq, sv_ = g.steady(lambda: a_body(nw))
    g.q = []
    for i in range(4): a_xread(i, 0)
    for n in range(4): a_wread(nw, n)
    assert [t for t in sv_ if t[0] == 'w'] == [('w', 1, k) for k in range(5)], sv_
    for n in range(5):
        if n not in W1A: a_full('w', n, 1)
    for t in sv_:
        if t[0] == 'x': assert t[1] == 1; a_full('x', t[2], 1)
    assert not any(t[0] == 'p' for t in sv_[sv_.index(('w', 1, 0)):]), sv_
    e(f"s_mov_b32 s{sCNT}, 8"); e(f"s_mov_b32 s{sOK}, 0")
    stamp('loopA')
    if OPT['prio'] and nw == 1: e("s_setprio 1")
    e("s_waitcnt lgkmcnt(0)")
    g.q = list(sq); g.v = list(sv_)
    g.L.append(".p2align 6"); g.lab(f"LA_loop{nw}")
    a_body(nw); assert g.q == sq and g.v == sv_
    if OPT['tst']:
        e(f"s_memtime s[{sST}:{sST+1}]"); e(f"s_memrealtime s[{sST+2}:{sST+3}]"); e(f"s_sub_u32 s{sST+4}, 10, s{sCNT}"); e(f"s_add_u32 s{sST+5}, s{sST+4}, 16")
        e("s_waitcnt lgkmcnt(0)"); e(f"s_mov_b32 m0, s{sST+4}"); e("s_nop 0"); e(f"v_writelane_b32 v0, s{sST}, m0"); e(f"s_mov_b32 m0, s{sST+5}"); e("s_nop 0"); e(f"v_writelane_b32 v0, s{sST+2}, m0")
    e(f"s_sub_u32 s{sCNT}, s{sCNT}, 1")
    for u in gate_acc(40, 41, 20, 43):
        for x in u: e(x)
    e(f"buffer_load_dword v40, v42, {sr(sX,4)}, s{sGO} offen"); e(f"buffer_load_dword v41, v42, {sr(sGW,4)}, s{sKXE} offen")
    e(f"s_add_u32 s{sGO}, s{sGO}, 256"); e(f"s_add_u32 s{sKXE}, s{sKXE}, 256")
    e(f"s_cmp_lg_u32 s{sCNT}, 1"); e(f"s_cbranch_scc1 LA_h1_{nw}")
    sv = g.L; g.L = g.tail
    g.lab(f"LA_h1_{nw}")
    def hook(c, body, w0=False):
        if w0 and nw == 1: return
        e(f"s_cmp_lg_u32 s{sCNT}, {c}"); e(f"s_cbranch_scc1 LA_n{c}_{nw}")
        if w0: e(f"s_cmp_lg_u32 s{sW}, 0"); e(f"s_cbranch_scc1 LA_loop{nw}")
        body(); e(f"s_branch LA_loop{nw}"); g.lab(f"LA_n{c}_{nw}")
    def rec_store():
        for r in range(28, 32): e(f"v_mov_b32 v{r}, 0")
        e(f"v_mov_b32 v26, {CNTLDS}"); e("ds_write_b32 v26, v28")
        e(f"s_lshl_b32 s{sT}, s{sLAM}, 9"); e(f"s_add_u32 s{sT}, s{sT}, {WS_FL:#x}")
        e("s_mov_b32 exec_hi, 0")
        e(f"buffer_store_dwordx4 v[28:31], v{vL16}, {sr(sWS,4)}, s{sT} offen sc1"); e("s_mov_b64 exec, -1")
    def ack():
        e(f"v_mov_b32 v{vT}, 1"); e(f"s_and_b32 s{sT}, s{sLAM}, 1"); e(f"s_lshl_b32 s{sT}, s{sT}, 7")
        one_lane(lambda: e(f"buffer_atomic_add v{vT}, off, {sr(sDBG,4)}, s{sT} sc1"))
    def ld(): e(f"v_and_b32 v37, 1, v{L}"); e(f"v_lshlrev_b32 v37, 7, v37"); e(f"buffer_load_dword v{vCN}, v37, {sr(sDBG,4)}, 0 offen sc1")
    def ts(): e(f"v_cmp_gt_u32 vcc, 128, v{vCN}"); e("s_nop 1"); e("s_cmp_eq_u64 vcc, 0")
    def gate_loads():
        e(f"v_lshlrev_b32 v42, 5, v{L}")
        e(f"buffer_load_dwordx4 {vr(26,4)}, v42, {sr(sX,4)}, s{sGO} offen"); e(f"buffer_load_dwordx4 {vr(30,4)}, v42, {sr(sX,4)}, s{sGO} offen offset:16")
        e(f"buffer_load_dwordx4 {vr(34,4)}, v42, {sr(sGW,4)}, 0 offen"); e(f"buffer_load_dwordx4 {vr(38,4)}, v42, {sr(sGW,4)}, 0 offen offset:16")
        ld()
    def code_pf():
        e(f"s_getpc_b64 s[{sT}:{sT+1}]"); g.lab("LA_pc")
        e(f"s_sub_u32 s{sT}, s{sT}, LA_pc-{KN}"); e(f"s_subb_u32 s{sT+1}, s{sT+1}, 0")
        e(f"s_lshr_b32 s{sT+2}, s2, 3"); e(f"s_lshl_b32 s{sT+2}, s{sT+2}, 11")
        e(f"v_and_b32 v26, 15, v{L}"); e(f"v_lshlrev_b32 v26, 7, v26"); e(f"v_add_u32 v26, s{sT+2}, v26")
        e(f"v_min_u32 v26, LZ_end-{KN}-4, v26")
        e(f"v_mov_b32 v27, s{sT+1}"); e(f"v_add_co_u32 v26, vcc, s{sT}, v26"); e("s_nop 1"); e(f"v_addc_co_u32 v27, vcc, 0, v27, vcc")
        e(f"global_load_dword v{vDUM}, v[26:27], off")
    hook(6, rec_store, True); hook(5, ack, True); hook(2, ld)
    if OPT['cpf']: hook(OPT['cpf'], code_pf, True)
    def tlb_warm():
        e(f"s_mul_i32 s{sT}, s{sRB}, {16*M16}"); e(f"v_mov_b32 v26, s{sT}")
        e(f"s_add_u32 s{sT+1}, s{sT}, {8*M16}"); e(f"v_writelane_b32 v26, s{sT+1}, 1")
        e(f"s_add_u32 s{sT+1}, s{sT}, {16*M16-128}"); e(f"v_writelane_b32 v26, s{sT+1}, 2")
        e(f"s_lshl_b32 s{sT}, s{sLAM}, 15"); e(f"s_add_u32 s{sT}, s{sT}, {WS_KV:#x}"); e(f"v_writelane_b32 v26, s{sT}, 3")
        e(f"s_sub_u32 s{sT}, s{sT}, {32*32768}"); e(f"v_writelane_b32 v26, s{sT}, 4")
        e(f"s_lshl_b32 s{sT}, s{sRB}, 21"); e(f"s_add_u32 s{sT}, s{sT}, {WS_PART:#x}"); e(f"v_writelane_b32 v26, s{sT}, 5")
        e("s_mov_b64 exec, 63"); e(f"buffer_load_dword v{vDUM}, v26, {sr(sWS,4)}, 0 offen"); e("s_mov_b64 exec, 1")
        srd(88, pOUT, 2048*2048); e(f"s_lshl_b32 s{sT}, s{sRB}, 19"); e(f"buffer_load_dword v{vDUM}, off, s[88:91], s{sT}")
        srd(88, pWO, 1024*2048); e(f"buffer_load_dword v{vDUM}, off, s[88:91], 0")
        srd(88, pWD, 3584*2048); e(f"s_lshr_b32 s{sT}, s{sH}, 3"); e(f"s_mul_i32 s{sT}, s{sT}, {896*2048}"); e(f"buffer_load_dword v{vDUM}, off, s[88:91], s{sT}")
        e(f"s_add_u32 s{sT}, s{sT}, {895*2048}"); e(f"buffer_load_dword v{vDUM}, off, s[88:91], s{sT}")
        e("s_mov_b64 exec, -1")
    if OPT['tlb']: hook(OPT['tlb'], tlb_warm, True)
    e(f"s_branch LA_loop{nw}")
    g.lab(f"LA_slow{nw}")
    spin(f"LA_spin{nw}", ld, ts, sT+3); e(f"s_branch LB_go{nw}")
    g.L = sv
    ts(); e(f"s_cbranch_scc0 LA_slow{nw}")
    g.lab(f"LB_go{nw}")
    e(f"buffer_load_dword v38, v42, {sr(sX,4)}, s{sGO} offen"); e(f"buffer_load_dword v39, v42, {sr(sGW,4)}, s{sKXE} offen")
    U = UNITS[nw]; jkv = 2 if nw == 0 else 0
    vHA = 3; vST = 96 - 4*len(OPT['hpos']); vNB = 208; assert len(OPT['hpos']) % 2 == 0
    def cap(f, atomic=False):
        sv = g.L; g.L = []; f(); r = g.L; g.L = sv
        return [r] if atomic else [[x] for x in r]
    def setupB():
        e(f"s_lshl_b32 s{sT+4}, s{sLAM}, 15"); e(f"s_add_u32 s{sT+4}, s{sT+4}, {WS_KV:#x}")
        e(f"s_lshl_b32 s{sT+5}, s{sMW}, 13"); e(f"v_add_u32 v{vT+8}, s{sT+5}, v{vL16}")
        e(f"s_add_u32 s{sT+5}, s{sT+5}, s{sT+4}")
    def setupB2():
        e(f"s_cmp_eq_u32 s{sRB}, 7"); e(f"s_cselect_b32 s{sT+5}, {WS_SIZE:#x}, s{sT+5}")
    def setupB3():
        e(f"s_add_u32 s{sT+6}, s{sT+5}, 4096")
        e(f"v_and_b32 v{vHA}, 31, v{L}"); e(f"v_lshlrev_b32 v{vHA}, 4, v{vHA}"); e(f"v_lshrrev_b32 v{vT+11}, 5, v{L}")
        e(f"v_mul_u32_u24 v{vT+11}, {M16}, v{vT+11}"); e(f"v_add_u32 v{vHA}, v{vHA}, v{vT+11}")
        e(f"s_lshl_b32 s{sT}, s{sRB}, 4"); e(f"s_lshl_b32 s{sT+1}, s{sMW}, 2"); e(f"s_add_u32 s{sT}, s{sT}, s{sT+1}")
        e(f"s_mul_i32 s{sHB}, s{sT}, {M16}"); e(f"s_mul_i32 s{sT}, s{sH}, {7*512}"); e(f"s_add_u32 s{sHB}, s{sHB}, s{sT}")
        e(f"s_lshr_b32 s{sT}, s{sH}, 3"); e(f"s_lshl_b32 s{sT}, s{sT}, 13"); e(f"s_add_u32 s{sHB}, s{sHB}, s{sT}")
        if nw == 1: e(f"s_add_u32 s{sHB}, s{sHB}, {3*512}")
        e(f"s_add_u32 s{sHB+1}, s{sHB}, {2*M16}")
        e(f"s_lshl_b32 s{sT+7}, s{sLAM}, 9"); e(f"s_add_u32 s{sT+7}, s{sT+7}, {WS_FL:#x}")
        e(f"v_mov_b32 v{vCN}, 1"); e(f"s_mov_b32 s{sDN}, 0"); e(f"s_sub_u32 s{sT+3}, s{sT+7}, {32*512}")
    def gpub():
        e(f"s_cmp_lg_u32 s{sW}, 0"); e("s_cbranch_scc1 LB_nog")
        e(f"v_lshlrev_b32 v{vT}, 2, v{L}"); e(f"v_add_u32 v{vT+1}, {GLDS}, v{vT}"); e("s_mov_b64 exec, 0xff"); e(f"ds_read_b32 v{vT+1}, v{vT+1}"); e("s_waitcnt lgkmcnt(0)")
        e(f"buffer_store_dword v{vT+1}, v{vT}, {sr(sWS,4)}, s{sT+7} offen sc1"); e("s_mov_b64 exec, -1")
        g.lab("LB_nog")
    def kvout():
        for i in range(4):
            pack2(jkv, i)
            if nw == 1:
                a = ACC(0, i); e("s_nop 1"); e(f"v_permlane32_swap_b32 v{a}, v{a+2}"); e(f"v_permlane32_swap_b32 v{a+1}, v{a+3}")
            e(f"buffer_store_dwordx4 {vr(ACC(jkv,i),4)}, v{vL16}, {sr(sWS,4)}, s{sT+5+(i>>1)} offen offset:{nw*2048+(i&1)*1024} sc1")
    gus = [j for j in range(10) if U[j][0] == 'g']
    def hst(R, k): e(f"buffer_store_dwordx4 {vr(R,4)}, v{vHA}, {sr(sWS,4)}, s{sHB+(k&1)} offen offset:{(k>>1)*512}" + ("" if OPT['hx'] == 1 else " sc1")) if OPT['hx'] != 2 else None
    def ldK(): e(f"buffer_load_dword v{vT+10}, off, {sr(sWS,4)}, s{sT+3} offset:{FL_KV} sc1")
    def tsK(): e(f"v_readfirstlane_b32 s{sT}, v{vT+10}"); e("s_nop 0"); e(f"s_cmp_eq_u32 s{sT}, 1")
    J = [2,3,4,5,6,7,8,9,0,1] if nw == 0 else list(range(10))
    SQ = [(t, j) for t in range(2) for j in range(10)]
    for p in range(5): a_, b_ = J[2*p], J[2*p+1]; SQ += [(2, a_), (2, b_), (3, a_), (3, b_)]
    F = []
    F += [(1, u) for u in cap(setupB) + cap(setupB2, True) + cap(setupB3)]
    vKA, vVA, vQA, vOA = 8, 9, 10, 11
    def att_setup():
        m = vT
        e(f"v_and_b32 v{m+1}, 15, v{L}"); e(f"v_lshlrev_b32 v{m+1}, 4, v{m+1}"); e(f"v_lshrrev_b32 v{m+2}, 5, v{L}")
        e(f"v_lshl_add_u32 v{m+1}, v{m+2}, 8, v{m+1}"); e(f"v_bfe_u32 v{m+2}, v{L}, 4, 1")
        e(f"v_lshl_add_u32 v{vQA}, v{m+2}, 10, v{m+1}"); e(f"v_lshl_add_u32 v{vVA}, v{m+2}, 9, v{m+1}")
        e(f"v_mul_u32_u24 v{vOA}, {M16}, v{m+2}"); e(f"v_add_u32 v{vOA}, v{vOA}, v{m+1}")
        e(f"s_lshl_b32 s{sT}, s{sW}, 12"); e(f"v_add_u32 v{vKA}, s{sT}, v{vQA}"); e(f"v_add_u32 v{vVA}, s{sT}, v{vVA}")
    def q_addr():
        e(f"s_lshl_b32 s{sT}, s{sW}, 11"); e(f"s_cmp_ge_u32 s{sW}, 6"); e(f"s_cselect_b32 s{sT+1}, {QLDS3-6*2048}, {QLDS}".replace(f", {QLDS}", f", s{sT+2}"))
        e(f"s_add_u32 s{sT}, s{sT}, s{sT+1}"); e(f"v_add_u32 v{vQA}, s{sT}, v{vQA}")
        if nw == 0:
            e(f"s_lshl_b32 s{sT}, s{sMW}, 12"); e(f"s_cmp_eq_u32 s{sMW}, 3"); e(f"s_cselect_b32 s{sT+1}, {QLDS3-3*4096}, s{sT+2}")
            e(f"s_add_u32 s{sT}, s{sT}, s{sT+1}"); e(f"v_add_u32 v{vT+9}, s{sT}, v{vL16}")
    def cnt0():
        e(f"v_mov_b32 v{vT+12}, {CNT2}"); e(f"v_mov_b32 v{vT+13}, 0"); e(f"ds_write_b32 v{vT+12}, v{vT+13}"); e(f"ds_write_b32 v{vT+12}, v{vT+13} offset:4"); e(f"ds_write_b32 v{vT+12}, v{vT+13} offset:8")
    def kvlds():
        for i in range(4): e(f"ds_write_b128 v{vT+8}, {vr(ACC(jkv,i),4)} offset:{32768+(i>>1)*4096+nw*2048+(i&1)*1024}")
    F += [(10, u) for u in cap(c_setup)]
    F += [(18, [("    " + x) for x in u]) for u in gate_list(20, 43)]
    if nw == 0: F += [(19, u) for u in cap(cnt0)]
    F += [(21, u) for u in cap(att_setup) + [[f"    s_mov_b32 s{sT+2}, {QLDS}"]] + cap(q_addr, True)]
    F += [(24, u) for u in cap(kvout) + cap(kvlds)]
    if nw == 0: F += [(24, u) for u in cap(gpub, True)]
    nk = 2*len(gus)
    for k in range(nk):
        j, i = gus[k >> 1], 2*(k & 1); av = 28 + 4*(k >> 1)
        F += [(av, u) for u in cap(lambda: silu(j, i, vT, ACC(j, i)))]
        NE = nk - len(OPT['hpos'])
        F += [(av, u) for u in cap(lambda: trysig(min(k, NE), CNTLDS, 0, FL_KV, force=(k == nk-1)), True)]
        if k < NE: F += [(av, u) for u in cap(lambda: hst(ACC(j, i), k))]
    ev = {n: [x for x in v if x[0] == 'x' and x[2] == 1] for n, v in a_events(nw).items() if n < 10}
    for n, k in zip((7, 8, 9), (0, 2, 4)): ev.setdefault(n, []).append(('w', k, 0))
    for n, (t, j) in enumerate(SQ):
        un = U[j]; evs = ev.get(n, [])
        for i in range(4):
            g.need([('W', n % 5), ('X', t & 1, i)])
            a, b = vr(vWF+4*(n % 5), 4), vr(vXF+16*(t & 1)+4*i, 4)
            if un[0] == 'v': a, b = b, a
            e(f"{MF16} {vr(ACC(j,i),4)}, {a}, {b}, {vr(ACC(j,i),4)}")
            if i == 0:
                if n == JBW: g.need([('W', k) for k in range(5)], [('w', 1, k) for k in range(5)]); e("s_barrier")
                if n == 17:
                    g.need([('W', k) for k in range(5)], [('x', 1, k) for k in range(4)] + [('w', 0, k) for k in range(5)]); e("s_barrier")
                if n == 22: assert not any(av <= 18 for av, u in F)
                if n == 23: g.need([('X', 1, k) for k in range(4)] + [('W', k) for k in range(5)]); e("s_barrier")
                if n + 4 < 40: a_wread(nw, n+4, SQ[n+4])
                if nw == 0 and n == OPT['kq']: ldK()
            if i == 1:
                for ii in range(4):
                    if n == OPT['jbx'] + OPT['xrd'][ii]: a_xread(ii, 1)
                    if n == 17 + (ii >> 1): a_xread(ii, 2)
                    if n == 20: a_xread(ii, 3)
                if evs: a_m0(*evs[0])
            if i == 2 and evs:
                a_op(*evs[0])
                for x in evs[1:]: a_full(*x)
            c = 0
            while F and F[0][0] <= n and c < (2 if n < 12 else 3 if n < 20 else OPT['fr']) and not (i == 1 and evs):
                u = F.pop(0)[1]; g.L += u; c += len(u)
    stamp('endA')
    left = sum(1 for av, u in F for x in u if 'buffer_store_dwordx4' in x)
    print("path", nw, "leftover filler instrs", sum(len(u) for av, u in F), "stores", left)
    if nw == 0 and OPT['h0']:
        vNB = 40
        e(f"s_mov_b32 s{sT+5}, {WS_SIZE:#x}")
        e(f"s_cmp_eq_u32 s{sRB}, 0"); e("s_cbranch_scc1 LB_rb0")
        e("s_waitcnt vmcnt(0)"); trysig(15, CNTLDS, 0, FL_KV, force=True); tsK(); e("s_cbranch_scc0 LB_late")
        e(f"s_sub_u32 s{sT+5}, s{sT+4}, {32*32768}")
        g.lab("LB_rb0")
        e(f"s_add_u32 s{sT+6}, s{sT+5}, 4096")
        def nbl():
            for f in range(8): e(f"buffer_load_dwordx4 {vr(vNB+4*f,4)}, v{vT+8}, {sr(sWS,4)}, s{sT+5+(f>>2)} offen offset:{(f&3)*1024} sc1")
        nbl(); e(f"s_mov_b32 s{sT+4}, 0")
        g.lab("LB_late")
        for i in range(4): pack2(0, i)
        for i in range(4): e(f"ds_write_b128 v{vT+9}, {vr(ACC(0,i),4)} offset:{i*1024}")
    else: e("s_nop 7")
    assert not any('ds_write' in x for av, u in F for x in u)
    for av, u in F: g.L += u
    for k in range(NE, nk):
        for r in range(4): e(f"v_mov_b32 v{vST+4*(k-NE)+r}, v{ACC(gus[k>>1], 2*(k&1))+r}")
    if NE: e(f"s_add_u32 s{sHB}, s{sHB}, {NE*256}"); e(f"s_add_u32 s{sHB+1}, s{sHB+1}, {NE*256}")
    stamp('hdone')
    if nw == 0:
        e(f"s_cmp_eq_u32 s{sT+4}, 0"); e("s_cbranch_scc1 LB_have")
        spin("LB_spin", ldK, tsK, sT+5)
        e(f"s_sub_u32 s{sT+5}, s{sT+4}, {32*32768}"); e(f"s_add_u32 s{sT+6}, s{sT+5}, 4096")
        nbl(); e("s_waitcnt vmcnt(0)")
        g.lab("LB_have")
        NLEFT = left; vNB0 = vNB
    stamp('kvok')
    if nw == 0: e("s_branch LB_common")
g.lab("LB_common")
FR = [40, 48, 56, 64, 96, 104]; vQ = 32; vS = 112; vM = 26; vSUM = 28
BIG = 2.0**100
assert OPT['npre'] <= 3
e(f"s_mov_b32 s{sDN}, 0")
e(f"s_andn2_b32 s{sT+4}, s{sLAM}, 7"); e(f"s_lshl_b32 s{sT+4}, s{sT+4}, 9"); e(f"s_add_u32 s{sT+4}, s{sT+4}, {WS_FL:#x}")
e(f"s_cmp_eq_u32 s{sNW}, 1"); e("s_cbranch_scc1 LB_nokv")
for f in range(8):
    e(f"s_waitcnt vmcnt({7-f+NLEFT})"); e(f"ds_write_b128 v{vT+8}, {vr(vNB0+4*f,4)} offset:{f*1024}")
g.lab("LB_nokv")
e(f"s_cmp_eq_u32 s{sRB}, 0"); e("s_cbranch_scc1 LB_pre0"); g.lab("LB_pre0r")
sv = g.L; g.L = g.tail; g.lab("LB_pre0")
e(f"s_sub_u32 s{sT}, 8, s{sW}")
for t in range(8):
    e(f"s_cmp_gt_u32 s{sT}, {t}"); e(f"s_cselect_b32 s{sT+1}, {f32(-BIG)}, 0")
    for rho in range(16): e(f"v_mov_b32 v{vS+16*t+rho}, s{sT+1}")
e("s_branch LB_pre0r"); g.L = sv
e("s_waitcnt lgkmcnt(0)"); e("s_barrier")
stamp('bar2')
ORD = [0, 8, 1, 2, 3, 4, 5, 6, 7]
def yprio(k):
    e(f"s_cmp_eq_u32 s{sNW}, 0"); e(f"s_cbranch_scc1 LP_{k}"); e("s_setprio 1"); g.lab(f"LP_{k}")
if OPT['aprio'] == 1: yprio(0)
def kread(x):
    t = ORD[x]
    for f in range(2): g.lds(f"ds_read_b128 {vr(FR[x%6]+4*f,4)}, v{vKA} offset:{t*4096+f*512}", ('K', x, f))
def vread(x):
    t = ORD[x]
    for f in range(2): g.lds(f"ds_read_b128 {vr(FR[(x+3)%6]+4*f,4)}, v{vVA} offset:{t*4096+2048+f*1024}", ('V', x, f))
def mx(t, half=None):
    b = vS + 16*t
    for r in range(0, 16, 2):
        if half is not None and (r >> 3) != half: continue
        k = (r >> 1) & 1
        if t == 8 and r < 4: e(f"v_max_f32 v{vM+k}, v{b+r}, v{b+r+1}")
        else: e(f"v_max3_f32 v{vM+k}, v{vM+k}, v{b+r}, v{b+r+1}")
def masked(op):
    for rho in range(16):
        cst = 8*(rho >> 2) + (rho & 3)
        e(f"s_bfm_b32 exec_lo, {cst}, 0"); e(f"s_bfm_b32 exec_hi, {cst+4}, 0"); e(f"{op} v{vS+128+rho}, v{vS+rho}")
    e("s_mov_b64 exec, -1")
def merge():
    masked("v_mov_b32")
    for rho in range(16): e(f"v_mov_b32 v{vS+rho}, 0")
NPRE = OPT['npre']
def ldH(): e(f"buffer_load_dword v{cvPL}, v{cvPA}, {sr(sWS,4)}, s{sT+4} offen offset:{FL_H} sc1")
def tsL(): e(f"v_cmp_ne_u32 vcc, 1, v{cvPL}"); e("s_nop 1"); e("s_cmp_eq_u64 vcc, 0")
AFTER = [0]; NH2 = [0]
def event(x):
    for k, p in enumerate(OPT['hpos']):
        if p == x: hst(vST+4*k, k); AFTER[0] = 0
    if max(OPT['hpos'] + [-1]) < x <= OPT['hq'] and (x >= 9 or x % 3 == 2): trysig(AFTER[0], CNT2, 0, FL_H, force=(x == OPT['hq']))
    for k, p in enumerate(OPT['dpos'][:NPRE]):
        if p == x: c_m0(k); e("s_nop 0"); c_dma(k, 0); c_dma(k, 1); AFTER[0] += 2
    if OPT['aearly'] and x == OPT['hq2']: ldH(); AFTER[0] += 1; NH2[0] = AFTER[0]
    if OPT['aearly'] and x == OPT['hq2'] + 2:
        e(f"s_mov_b32 s{sOK+1}, 0"); e(f"s_waitcnt vmcnt({AFTER[0]-NH2[0]})"); tsL(); e("s_cbranch_scc0 LB_noe")
        for k in range(4): c_aload(0, k)
        e(f"s_mov_b32 s{sOK+1}, 1"); e("s_branch LB_e2")
        g.lab("LB_noe"); ldH(); g.lab("LB_e2")
    if not OPT['aearly'] and x == OPT['hq']: ldH(); AFTER[0] += 1
assert min(OPT['dpos']) >= 9
def s_phase(rb0):
    g.q = []
    for f in range(2): g.lds(f"ds_read_b128 {vr(vQ+4*f,4)}, v{vQA} offset:{f*512}", ('Q', f))
    for x in range(6): kread(x)
    for x in range(9):
        t = ORD[x]
        for f in range(2):
            g.need([('K', x, f), ('Q', f)])
            c = vr(vS+16*t, 16) if (f == 1 or (rb0 and t < 8)) else "0"
            e(f"{MF32} {vr(vS+16*t,16)}, {vr(FR[x%6]+4*f,4)}, {vr(vQ+4*f,4)}, {c}")
            if x == 4 and f == 1: merge()
            if x >= 5: mx(ORD[x-4], f)
        if x + 6 < 9: kread(x+6)
        else: vread(x-3)
        event(x)
e(f"s_cmp_eq_u32 s{sRB}, 0"); e("s_cbranch_scc1 LB_s0")
sv = g.L; g.L = g.tail; g.lab("LB_s0"); s_phase(True); e("s_branch LB_sdone"); g.L = sv
s_phase(False)
g.lab("LB_sdone")
for x in range(5, 9): mx(ORD[x])
stamp('sph')
e(f"v_max_f32 v{vM}, v{vM}, v{vM+1}"); e(f"v_mov_b32 v{vM+1}, v{vM}"); e("s_nop 1")
e(f"v_permlane32_swap_b32 v{vM}, v{vM+1}"); e(f"v_max_f32 v{vM}, v{vM}, v{vM+1}")
CC = 32 ** -0.5 * LOG2E
e(f"s_mov_b32 s{sK}, {f32(CC)}"); e(f"s_mov_b32 s{sK+1}, {f32(CC)}")
e(f"v_mul_f32 v{vM}, {f32(-CC)}, v{vM}"); e(f"v_mov_b32 v{vM+1}, v{vM}")
vO = vS + 8
def pbase(t): return vS if t == 0 else vS + 16*t + 8
def soft(t, mid=None, mid2=None):
    b = vS + 16*t
    if OPT['aprio'] == 3:
        if t in (8, 2, 4, 6): yprio(t)
        else: e("s_setprio 0")
    if OPT['aprio'] == 4 and t == 3: yprio(t)
    for r in range(0, 16, 2): e(f"v_pk_fma_f32 {vr(b+r,2)}, {vr(b+r,2)}, {sr(sK,2)}, {vr(vM,2)}")
    if mid: mid()
    for r in range(16):
        e(f"v_exp_f32 v{b+r}, v{b+r}")
        if r == 7 and mid2: mid2()
    for r in range(0, 16, 2):
        s = vSUM + 2*((r >> 1) & 1)
        if t == 8 and r < 4: e(f"v_pk_add_f32 {vr(s,2)}, {vr(b+r,2)}, {vr(b+r+4,2)}")
        elif t == 8 and r < 8: pass
        else: e(f"v_pk_add_f32 {vr(s,2)}, {vr(s,2)}, {vr(b+r,2)}")
    if t == 8:
        masked("v_swap_b32")
        for r in range(8): e(f"v_cvt_pk_bf16_f32 v{vS+r}, v{vS+2*r}, v{vS+2*r+1}")
    for r in range(7, -1, -1): e(f"v_cvt_pk_bf16_f32 v{b+8+r}, v{b+2*r}, v{b+2*r+1}")
def pv(x, fs=(0, 1)):
    t = ORD[x]
    for f in fs:
        g.need([('V', x, f)])
        e(f"{MF32} {vr(vO,16)}, {vr(FR[(x+3)%6]+4*f,4)}, {vr(pbase(t)+4*f,4)}, " + ("0" if (x == 0 and f == 0) else vr(vO, 16)))
    if x + 6 < 9 and 1 in fs: vread(x+6)
if OPT['aprio'] == 2: yprio(1)
event(9); soft(8); event(10); soft(1); e("s_nop 0"); pv(0); pv(1)
for t in range(2, 8):
    event(9+t)
    if OPT['pvs']: soft(t, lambda: pv(t, (0,)), lambda: pv(t, (1,)))
    else: soft(t, lambda: pv(t))
e("s_nop 1"); pv(8)
e(f"v_pk_add_f32 {vr(vSUM,2)}, {vr(vSUM,2)}, {vr(vSUM+2,2)}"); e(f"v_add_f32 v{vSUM}, v{vSUM}, v{vSUM+1}")
e(f"v_mov_b32 v{vSUM+1}, v{vSUM}"); e("s_nop 1"); e(f"v_permlane32_swap_b32 v{vSUM}, v{vSUM+1}")
e(f"v_add_f32 v{vSUM}, v{vSUM}, v{vSUM+1}"); e(f"v_rcp_f32 v{vSUM}, v{vSUM}")
e(f"s_lshl_b32 s{sT}, s{sRB}, 4"); e(f"s_lshl_b32 s{sT+1}, s{sW}, 1"); e(f"s_add_u32 s{sT}, s{sT}, s{sT+1}")
e(f"s_lshl_b32 s{sT+1}, s{cNT}, 10"); e(f"s_add_u32 s{sT+1}, s{sT+1}, s{cAK}"); e(f"s_add_u32 s{sT+1}, s{sT+1}, {56*512}")
if OPT['aprio']: e("s_setprio 0")
stamp('pv')
if OPT['aearly']: e(f"s_cmp_eq_u32 s{sOK+1}, 1"); e("s_cbranch_scc1 LC_haveA")
e("s_waitcnt vmcnt(0)"); tsL(); e("s_cbranch_scc0 LC_slowH")
g.lab("LC_goH")
g.v = []
for k in range(4): c_aload(0, k)
g.lab("LC_haveA")
assert not OPT['aearly'] or (max(OPT['dpos'][:NPRE]) <= OPT['hq2'] and OPT['hq'] <= OPT['hq2'] + 2 and len(OPT['hpos']) <= 4)
for r in range(16): e(f"v_mul_f32 v{vO+r}, v{vO+r}, v{vSUM}")
for r in range(8): e(f"v_cvt_pk_bf16_f32 v{vO+8+7-r}, v{vO+14-2*r}, v{vO+15-2*r}")
dstore([f"buffer_store_dwordx4 {vr(vO+8+4*f,4)}, v{vOA}, {sr(sWS,4)}, s{sT+1} offen offset:{f*512}" for f in range(2)])
stamp('attn')
g.v += ['st', 'st']
e(f"v_bfe_u32 v{vT}, v{L}, 2, 3"); e(f"v_lshrrev_b32 v{vT+1}, 5, v{L}"); e(f"v_lshl_add_u32 v{vT+1}, v{vT+1}, 4, v{vT}")
e(f"v_lshlrev_b32 v{vT+1}, 8, v{vT+1}"); e(f"v_lshl_add_u32 v{vT+1}, v{vT}, 5, v{vT+1}")
e(f"v_and_b32 v{vT}, 3, v{L}"); e(f"v_lshl_add_u32 v{vT+1}, v{vT}, 3, v{vT+1}")
e(f"s_lshl_b32 s{sT}, s{cQ}, 6"); e(f"v_xor_b32 v{vT+1}, s{sT}, v{vT+1}"); e(f"v_add_u32 v{cvRA}, {CRING}, v{vT+1}")
for u in range(1, 8): e(f"v_xor_b32 v{cvRA+u}, {32*u}, v{cvRA}")
for p in range(1, OPT['apre']):
    for k in range(4): c_aload(p, k)
e("s_barrier")
SEQ = []
for s in range(NH):
    for ku in range(2):
        us = list(range(8)) if not (s == NH-1 and ku == 1) else [4,5,6,7,0,1,2,3]
        SEQ += [(s, ku, u, (0, 1)) for u in us]
I1 = len(SEQ)
SEQ += [(s, ku, u, (0, 1)) for s in range(NH, NS) for ku in range(2) for u in range(4, 8)]
I2 = len(SEQ)
SEQ += [(s, ku, u, (0, 1)) for s in range(NH, NS) for ku in range(2) for u in (2, 3)]
I3 = len(SEQ)
SEQ += [(s, ku, u, (0, 1)) for s in range(NH, NS) for ku in range(2) for u in (0, 1)]
if OPT['csn']: SEQ = [(s, ku, u, m[::-1] if (i & 1) else m) for i, (s, ku, u, m) in enumerate(SEQ)]
def wread(i):
    if i >= len(SEQ): return
    s, ku, u, _ = SEQ[i]
    for tr in range(2):
        g.lds(f"ds_read_b64_tr_b16 {vr(cvWF+4*(i&7)+2*tr,2)}, v{cvRA+u} offset:{(s%4)*16384+ku*8192+tr*2048}", ('W', i & 7))
g.q = []
for i in range(7): wread(i)
stamp('loopC')
cRD = 48
cvO32, cvRF, cvOUT, cvG = 22, 23, 24, 25
cRV = cvACC + 32
def ldO(): e(f"buffer_load_dword v{cvPL}, v{cvO32}, {sr(sWS,4)}, s54 offen offset:{FL_O} sc1")
def ldR(): e(f"buffer_load_dword v{cvPL}, v{cvRF}, {sr(sWS,4)}, s{sT+6} offen offset:{FL_P} sc1")
def ldR2(): e(f"buffer_load_dword v{cvPL}, off, {sr(sWS,4)}, s{sT+5} offset:{FL_P2} sc1")
def rloads(ii):
    for i in ii:
        e(f"s_add_u32 s{sT}, s{cRD+3}, {i*16384}")
        for f in range(2): e(f"buffer_load_dwordx4 {vr(cRV+8*(i-1)+4*f,4)}, v{vL16}, {sr(sWS,4)}, s{sT} offen offset:{f*1024} sc1")
t0, t1 = vT, vT+1
fill = {s: [] for s in range(NS)}
fill[1] = [[x] for x in (
    f"v_and_b32 v{cvO32}, 31, v{L}", f"v_lshlrev_b32 v{cvO32}, 9, v{cvO32}", f"s_lshl_b32 s54, s{sRB}, 14", f"s_add_u32 s54, s54, {WS_FL:#x}",
    f"v_and_b32 v{t0}, 3, v{L}", f"v_max_u32 v{t0}, 1, v{t0}", f"v_lshlrev_b32 v{t1}, 1, v{t0}", f"v_and_b32 v{t1}, 4, v{t1}", f"v_xor_b32 v{t1}, 4, v{t1}",
    f"v_lshlrev_b32 v{t0}, 3, v{t0}", f"v_xor_b32 v{t0}, s{sLAM}, v{t0}", f"v_lshl_add_u32 v{cvRF}, v{t0}, 9, v{t1}",
    f"s_mov_b32 s{sT+6}, {WS_FL:#x}", f"s_mov_b32 s{sDN}, 0", f"s_mov_b32 s{sOK+1}, 0")]
fill[2] = [[x] for x in (
    f"s_lshl_b32 s{sT}, s{sRB}, 3", f"s_add_u32 s{sT}, s{sT}, s{cNT}", f"s_lshl_b32 s{sT}, s{sT}, 18", f"s_lshl_b32 s{sT+1}, s{sW}, 11", f"s_add_u32 s{sT}, s{sT}, s{sT+1}", f"s_add_u32 s{sT}, s{sT}, {WS_PART:#x}")]
for i in (1, 2, 3):
    fill[2] += [[x] for x in (f"s_xor_b32 s{sT+1}, s{cQ}, {i}", f"s_lshl_b32 s{sT+1}, s{sT+1}, 16", f"s_add_u32 s{sT+1}, s{sT+1}, s{sT}", f"s_add_u32 s{cRD+i-1}, s{sT+1}, {i*16384}")]
fill[2] += [[x] for x in (f"s_lshl_b32 s{sT+1}, s{cQ}, 16", f"s_add_u32 s{cRD+3}, s{sT+1}, s{sT}",
    f"s_lshl_b32 s{sT}, s{sRB}, 19", f"s_lshl_b32 s{sT+1}, s{sW}, 16", f"s_add_u32 s{sT}, s{sT}, s{sT+1}",
    f"s_lshl_b32 s{sT+1}, s{cNT}, 8", f"s_add_u32 s{sT}, s{sT}, s{sT+1}", f"s_lshl_b32 s{sT+1}, s{cQ}, 6",
    f"s_add_u32 s{cRD+4}, s{sT}, s{sT+1}", f"s_add_u32 s39, s{cRD+4}, 32768",
    f"v_and_b32 v{cvOUT}, 15, v{L}", f"v_lshlrev_b32 v{cvOUT}, 11, v{cvOUT}", f"v_bfe_u32 v{t0}, v{L}, 4, 1", f"v_lshl_add_u32 v{cvOUT}, v{t0}, 5, v{cvOUT}",
    f"v_lshrrev_b32 v{t0}, 5, v{L}", f"v_lshl_add_u32 v{cvOUT}, v{t0}, 4, v{cvOUT}")]
send = {1: [], 2: [], 3: []}
for i in (1, 2, 3):
    d = cvPT + 8*(i-1)
    for k in range(4):
        a = cvACC + 16*i + 4*k
        send[i] += [[f"v_cvt_pk_bf16_f32 v{d+2*k}, v{a}, v{a+1}", f"v_cvt_pk_bf16_f32 v{d+2*k+1}, v{a+2}, v{a+3}"]]
        if k & 1: send[i] += [[f"@{'T' if i == 1 else 'S'} buffer_store_dwordx4 {vr(d+4*(k>>1),4)}, v{vL16}, {sr(sWS,4)}, s{cRD+i-1} offen offset:{(k>>1)*1024} sc1"]]
pa = [(s, k) for s in range(OPT['apre'], NS) for k in range(4)]
pd = [(s, k) for s in range(NPRE, NS) for k in range(2)]
cvG2 = 128
cvGc = 130
def gload():
    e(f"v_and_b32 v{t0}, 7, v{L}"); e(f"v_bfe_u32 v{t1}, v{L}, 3, 1"); e(f"v_lshlrev_b32 v{t1}, 9, v{t1}"); e(f"v_lshl_add_u32 v{t0}, v{t0}, 2, v{t1}")
    e(f"s_lshl_b32 s{sT}, s{sW}, 11"); e(f"s_add_u32 s{sT}, s{sT}, s54")
    for k in range(2): g.vm(f"buffer_load_dword v{cvG2+k}, v{t0}, {sr(sWS,4)}, s{sT} offen offset:{1024*k} sc1", 'gv')
fill[NH-1] = [["@G"]]
for k in range(2):
    r = cvG2 + k
    fill[NH-1] += [[f"v_max_f32 v{cvGc+k}, {f32(2.0**-60)}, v{r}"], [f"v_sub_f32 v{r}, 1.0, v{r}"], [f"v_cvt_pk_bf16_f32 v{r}, v{r}, v{r}"], [f"v_and_b32 v{r}, 0xffff0000, v{r}"],
                   [f"v_rcp_f32 v{t0}, v{cvGc+k}", "s_nop 0"], [f"v_mul_f32 v{r}, v{r}, v{t0}"]]
def rescale(u, mf):
    a = cvACC + 8*u + 4*mf
    if OPT['dbg'] & 2:
        for r in range(4): e(f"v_mul_f32 v{a+r}, v{a+r}, v{cvG2+mf}")
        return
    for r in (0, 2): e(f"v_pk_mul_f32 {vr(a+r,2)}, {vr(a+r,2)}, {vr(cvG2,2)} op_sel:[0,{mf}] op_sel_hi:[1,{mf}]")
WIN = [[16, 31, fill[1]], [32, 47, fill[2]], [16*(NH-1), 16*(NH-1)+11, fill[NH-1]], [I2+1, I2+8, send[2]+send[3]], [I3+1, I3+4, send[1]]]
for w in WIN: w.append(len(w[2]))
vis = 0; freed = -1
def nafter(tag): return min(15, len(g.v) - 1 - max(i for i, t in enumerate(g.v) if t == tag)) if tag in g.v else min(15, len(g.v))
for i, (s, ku, u, mfs) in enumerate(SEQ):
    if i == I1: stamp('endH')
    if i == I3: stamp('p3')
    cur = min(s, NH) if i >= I1 else s
    for idx, mf in enumerate(mfs):
        k = 2*ku + mf; a = cvACC + 8*u + 4*mf
        g.need([('W', i & 7)], [('a', s, k)])
        e(f"{MF16} {vr(a,4)}, {vr(cvWF+4*(i&7),4)}, {vr(cvAR+16*((s+1)%D)+4*k,4)}, " + ("0" if i < 8 else vr(a,4)))
        if I1 - 4 <= i < I1 + 4: rescale(SEQ[i-4][2], mf)
        if idx == 0:
            if i + 7 < len(SEQ) and SEQ[i+7][0] > vis:
                vis = SEQ[i+7][0]
                g.need([('W', k) for k in range(8)] if vis <= NH else [], [('d', vis)] + (['st'] if vis == 2 else [])); e("s_barrier")
                if vis == 2:
                    e(f"s_cmp_lg_u32 s{sW}, 0"); e("s_cbranch_scc1 LC_nof1")
                    one_lane(lambda: e(f"buffer_store_dword v{vCN}, off, {sr(sWS,4)}, s{sT+7} offset:{FL_O} sc1"))
                    g.lab("LC_nof1")
            wread(i+7)
            nxt = None
            if i % 2 == 0 or i >= I1:
                okd = pd and pd[0][0] <= (vis + 3 if pd[0][0] == NS-1 else cur + 3); oka = pa and pa[0][0] <= cur + D - 1
                if okd and (not oka or pd[0][0] <= pa[0][0] and (i % 16 % 6 == 2 or pd[0][0] < pa[0][0])): nxt = 'd'
                elif oka: nxt = 'a'
                if nxt == 'd' and pd[0][1] == 0: c_m0(pd[0][0])
        for lo, hi, fl, n0 in WIN:
            if lo <= i <= hi:
                frac = (i - lo + (idx+1)/len(mfs)) / (hi - lo + 1)
                while fl and (n0 - len(fl)) < n0 * frac - 1e-9:
                    for x in fl.pop(0):
                        if x.startswith("@S "): g.vm(x[3:], 'snd')
                        elif x.startswith("@T "): g.vm(x[3:], 'snd2')
                        elif x == "@G": g.need([], ['gv'])
                        else: e(x)
        if idx == len(mfs) - 1:
            if nxt == 'd': c_dma(*pd.pop(0))
            elif nxt == 'a':
                if pa[0] == (NH, 0):
                    g.need([], ['opoll']); tsL(); e("s_cbranch_scc0 LC_slowO"); g.lab("LC_goO"); gload()
                c_aload(*pa.pop(0))
            if i == 16*(NH - D - 1) + 1: ldO(); g.v.append('opoll')
            if i >= I2 + 11 and (i - I2) % 4 == 3: trysig(nafter('snd'), CNT2+4, 0, FL_P, force=(i == len(SEQ)-1))
            if i >= I3 + 9 and (i - I3) % 4 == 1: trysig(nafter('snd2'), CNT2+8, 0, FL_P2, sDN=sOK+1)
            if i == I3 + OPT['rp']: ldR(); g.v.append('rpoll')
assert not pa and not pd and not any(w[2] for w in WIN)
g.lab("LC_done")
sv = g.L; g.L = g.tail
g.lab("LC_slowO"); spin("LC_spinO", ldO, tsL, sT+3); e("s_branch LC_goO")
g.lab("LC_slowH"); spin("LC_spinH", ldH, tsL, sT+3); e("s_branch LC_goH")
g.L = sv
stamp('endC')
trysig(nafter('snd2'), CNT2+8, 0, FL_P2, force=True, sDN=sOK+1)
e(f"s_mov_b32 s{sT+5}, 1"); e(f"s_mov_b32 s{sT+3}, {SPIN:#x}")
e(f"v_mov_b32 v{vT+4}, 0x3f80"); e(f"v_mov_b32 v{vT+5}, 0x3f800000")
g.lab("LC_rl")
e("s_waitcnt vmcnt(0)"); e(f"v_cmp_eq_u32 vcc, 1, v{cvPL}"); e(f"s_sub_u32 s{sT+3}, s{sT+3}, 1"); e(f"s_cselect_b32 s{sT+1}, 15, 0")
e(f"s_or_b32 s{sT+1}, s{sT+1}, vcc_lo"); e(f"s_andn2_b32 s{sT+1}, s{sT+1}, s{sT+5}"); e(f"s_and_b32 s{sT+1}, s{sT+1}, 15"); e(f"s_or_b32 s{sT+5}, s{sT+5}, s{sT+1}")
for i in (1, 2, 3):
    e(f"s_bitcmp1_b32 s{sT+1}, {i}"); e(f"s_cbranch_scc0 LC_rn{i}"); rloads((i,)); g.lab(f"LC_rn{i}")
e(f"s_cmp_eq_u32 s{sT+5}, 15"); e("s_cbranch_scc1 LC_rd")
if OPT['rsl']: e(f"s_sleep {OPT['rsl']}")
ldR(); e("s_branch LC_rl")
g.lab("LC_rd")
e("s_waitcnt vmcnt(0)")
for i in (2, 3, 1):
    d = cRV + 8*(i-1)
    for r in range(16): e(f"v_dot2_f32_bf16 v{cvACC+r}, v{d+(r>>1)}, v{vT+4+(r&1)}, v{cvACC+r}")
e("s_nop 2")
for mf in range(2):
    x = cvACC + 4*mf; y = x + 8; d = cvPT + 24 + 4*mf
    for r in range(4): e(f"v_mul_f32 v{x+r}, v{cvGc+mf}, v{x+r}"); e(f"v_mul_f32 v{y+r}, v{cvGc+mf}, v{y+r}")
    e(f"v_cvt_pk_bf16_f32 v{d}, v{x}, v{x+1}"); e(f"v_cvt_pk_bf16_f32 v{d+1}, v{x+2}, v{x+3}")
    e(f"v_cvt_pk_bf16_f32 v{d+2}, v{y}, v{y+1}"); e(f"v_cvt_pk_bf16_f32 v{d+3}, v{y+2}, v{y+3}")
    e("s_nop 1")
    e(f"v_permlane16_swap_b32 v{d}, v{d+2}"); e(f"v_permlane16_swap_b32 v{d+1}, v{d+3}")
    e(f"buffer_store_dwordx4 {vr(d,4)}, v{cvOUT}, {sr(cOUT,4)}, s{cRD+4 if mf == 0 else 39} offen {OPT['ost']}")
g.lab("LC_fin")
stamp('fin')
if OPT['stamp']:
    e(f"s_lshl_b32 s{sT}, s2, 3"); e(f"s_add_u32 s{sT}, s{sT}, s{sW}"); e(f"s_lshl_b32 s{sT}, s{sT}, 7"); e(f"s_add_u32 s{sT}, s{sT}, {WS_STAMP:#x}")
    e(f"v_lshlrev_b32 v{vT}, 2, v{L}"); e("s_mov_b32 exec_hi, 0")
    e(f"buffer_store_dword v0, v{vT}, {sr(sWS,4)}, s{sT} offen")
    if OPT['stamp'] == 2:
        e(f"v_readlane_b32 s{sT}, v0, 16"); e(f"s_not_b32 s{sT}, s{sT}"); e(f"v_writelane_b32 v0, s{sT}, 16")
        e(f"v_subrev_u32 v{vT}, 60, v{vT}"); e(f"s_mov_b32 exec_lo, {((1<<len(SN))-1)<<16:#x}")
        e(f"buffer_atomic_umax v0, v{vT}, {sr(sDBG,4)}, 0 offen sc1")
g.lab("L_end")
e("s_endpgm")
g.L += g.tail + g.tail2 + ['LZ_end:']
if OPT['nobar'] or OPT['nodma'] or OPT['nolds'] or OPT['noadv']:
    o = []; inl = False
    for l in g.L:
        if l.startswith('LA_loop') or l.startswith('LC_loop'): inl = True
        if 'LA_h1_' in l or l.startswith('LC_done'): inl = False
        if inl and OPT['nobar'] and 's_barrier' in l: continue
        if inl and OPT['nodma'] and 'buffer_load' in l: continue
        if inl and OPT['nolds'] and 'ds_read' in l: continue
        if inl and OPT['noadv'] and any(f's_add_u32 s{k}, s{k},' in l for k in list(range(sOW, sOW+5)) + [sKX]): continue
        o.append(l)
    g.L = o

hdr = [l.rstrip('\n') for l in open("cdna_kernels/%s.s.ref" % NAME)]
hdr = [l for l in hdr if l.startswith(';') and '@launch' not in l]
out = hdr + [f"; @launch grid=(256,1,1) block=(512,1,1) lds={LDS_BYTES}", '.amdgcn_target "amdgcn-amd-amdhsa--gfx950"', ".text"] + g.L
out += ['.section .rodata,"a"', ".p2align 6", f""".amdhsa_kernel {KN}
  .amdhsa_next_free_vgpr 256
  .amdhsa_next_free_sgpr 102
  .amdhsa_accum_offset 256
  .amdhsa_group_segment_fixed_size 0
  .amdhsa_kernarg_size 88
  .amdhsa_user_sgpr_count 2
  .amdhsa_user_sgpr_kernarg_segment_ptr 1
  .amdhsa_system_sgpr_workgroup_id_x 1
.end_amdhsa_kernel"""]
out.insert(0, "; stamps: " + ",".join(SN)) if OPT['stamp'] else None
open(sys.argv[1], "w").write("\n".join(out) + "\n")
import hazard
errs = hazard.check("\n".join(g.L))
print("\n".join(errs) if errs else "hazard check clean")
```

```python
import sys, struct
NAME = "gated_mix__sliding_block__swiglu_ffn__prompt"
KN = NAME + "_kernel"
OPT = dict(stamp=0, NP=16, jbx=5, xrd=[0,0,1,1], xpos=[2,4,6,8], wpos=[1,3,5,7,9], pfpos=19, stag=0, PD=3, pf=1, CB=1, defer=0, slp=2, touch=0, pfnt=0, wnt=0, bprio=0, amap=3, fast=0, D=4, npre=3, apre=1, hpos=[0,2,4,6], dpos=[10,11,12,13], fr=5, hx=0, fnt=1, cpf=3, cpf0=1, aprio=3, pvs=1, w1=2, csn=1, kq=34, rp=15, rsl=1, ginc=1, bal={0:[(1,13)],2:[(3,13)],3:-1,1:-1}, tlb=0, aearly=1, hq2=13, xfl='', wfl='', cfl='', ost='', h0=2, nopk=0, pf2=0, wdst=4, wdn=24, otail=0, gl=2, p3=0, rc=24, dbg=2, hq=15, early1=2, snake=1, tst=0, wshift=0, noadv=0, aflag='sc1', kvfast=0, rfast=0, pfast=1, wb=0, pre=0, cmap=1, m16=288*512, c3=0, kvs1=1, cprio=0, AB=0,
           noX=0, noW=0, noA=0, noW2=0, prio=0, kvs=2, nobar=0, nodma=0, nolds=0)
for a in sys.argv[2:]:
    k, v = a.split('='); assert k in OPT, k
    OPT[k] = eval(v)
def f32(x): return "0x%08x" % struct.unpack('<I', struct.pack('<f', x))[0]
def vr(a, n=1): return f"v[{a}:{a+n-1}]" if n > 1 else f"v{a}"
def sr(a, n=1): return f"s[{a}:{a+n-1}]" if n > 1 else f"s{a}"
NV = [0]
class Gen:
    def __init__(s): s.L = []; s.q = []; s.v = []; s.tail = []; s.tail2 = []
    def e(s, t): s.L.append("    " + t)
    def lab(s, t): s.L.append(t + ":")
    def lds(s, t, tag): s.e(t); s.q.append(tag)
    def vm(s, t, tag): s.e(t); s.v.append(tag); NV[0] += 1
    def need(s, tags=(), vt=()):
        w = []
        idx = [i for i, t in enumerate(s.v) if t in vt]
        if idx:
            n = len(s.v) - 1 - max(idx); s.v = s.v[max(idx)+1:]; assert n < 64
            w.append(f"vmcnt({n})")
        idx = [i for i, t in enumerate(s.q) if t in tags]
        if idx:
            n = len(s.q) - 1 - max(idx); s.q = s.q[max(idx)+1:]
            w.append(f"lgkmcnt({min(n,15)})")
        if w: s.e("s_waitcnt " + " ".join(w))
    def steady(s, body):
        sv = s.L; s.L = []; s.q = []; s.v = []
        body(); body(); r = (list(s.q), list(s.v)); s.L = sv
        return r
g = Gen(); e = g.e
M16 = OPT['m16']; A_BYTES = 128*M16
WS_KV = 0x1400000; WS_PART = 0x1C00000; WS_G = 0x2C00000; WS_FL = 0x2C10000; WS_STAMP = 0x3000000; WS_SIZE = 0x4000000
FL_KV, FL_H, FL_O, FL_P, FL_P2 = 128, 256, 260, 384, 388
sFAST = 34+1
LOG2E = 1.4426950408889634
SPIN = 0x8000
MF16 = "v_mfma_f32_16x16x32_bf16"; MF32 = "v_mfma_f32_32x32x16_bf16"
sW, sRB, sH, sMW, sNW = 3, 4, 5, 6, 7
sX, sA, sB, sQ, sWS, sDBG, sPF = 8, 12, 16, 20, 24, 28, 32
sKX, sOW, sMWd, sINCA, sMX, sCNT, sKXE, sPFO, sPFI, sLAM, sOK, sGO = 36, 37, 42, 47, 48, 49, 50, 51, 52, 53, 54, 55
sT = 56; sP = 64; sST = 86
pX, pQKV, pWO, pWG, pWU, pWD, pGW, pOUT, pDBG, pWSp = sP, sP+2, sP+4, sP+8, sP+10, sP+12, sP+14, sP+16, sP+18, sP+20
sFAST = 101
sK = sP+6
vL, vL16, vPF, vDX, vDA, vDB, vXR, vWG, vWQ, vDUM, vCN, vGV, vT = 1, 2, 3, 4, 8, 9, 10, 12, 14, 18, 19, 20, 26
vWF, vXF, vACC = 44, 64, 96
L = vL
def ACC(j, i): return vACC + (4*j+i)*4
XSLOT = 32768; WBASE = 65536; HALF = 20480; WSLOT = 2*HALF; GOFF = 6144; UOFF = 6144+7168
LDS_BYTES = 163840; QLDS = 147456; QLDS3 = 92160; CNTLDS = 163832; CNT2 = 96256; GLDS = 163776; sGW = 96
UNITS = [['q0','q1','k0','k1','g0','u0','g1','u1','g2','u2'], ['v0','v1','g3','u3','g4','u4','g5','u5','g6','u6']]
def srd(d, p, size):
    e(f"s_mov_b32 s{d}, s{p}"); e(f"s_and_b32 s{d+1}, s{p+1}, 0xffff"); e(f"s_mov_b32 s{d+2}, {size:#x}"); e(f"s_mov_b32 s{d+3}, 0x20000")
SN = ['start','loopA','endA','ks','hdone','kvok','bar2','sph','hs','pv','attn','loopC','endH','rs','endC','fin']
SN = ['start','loopA','ks','endA','hdone','kvok','bar2','sph','hs','pv','loopC','endH','rs','endC','rs2','fin']
if OPT['tst']: SN = ['start','loopA'] + [f't{i}' for i in range(7)] + ['endA', 'fin']
def stamp(name):
    if OPT['tst'] and name not in ('loopA', 'endA', 'fin'): return
    if name not in SN: return
    idx = SN.index(name); assert idx < 16
    if not OPT['stamp']: return
    e(f"s_memtime s[{sST}:{sST+1}]"); e(f"s_memrealtime s[{sST+2}:{sST+3}]"); e("s_waitcnt lgkmcnt(0)")
    e(f"v_writelane_b32 v0, s{sST}, {idx}"); e(f"v_writelane_b32 v0, s{sST+2}, {idx+16}")
def pstamp(k):
    if OPT['stamp']: e(f"s_memtime s[{92+2*k}:{93+2*k}]")
NDS = [0]
def dstore(lines, on=True):
    if True:
        for l in lines: e(l + " sc1")
        return
    k = NDS[0]; NDS[0] += 1
    e(f"s_cmp_eq_u32 s{sFAST}, 1"); e(f"s_cbranch_scc0 LS_s{k}")
    for l in lines: e(l)
    g.lab(f"LS_r{k}")
    g.tail2 += [f"LS_s{k}:"] + ["    " + l + " sc1" for l in lines] + [f"    s_branch LS_r{k}"]
def one_lane(f):
    e("s_mov_b64 exec, 1"); f(); e("s_mov_b64 exec, -1")

def a_wread(nw, n, tj=None):
    n %= 40; t = n // 10; j = n % 10
    if tj: t, j = tj
    sig = (t+1) >> 1; half = (t+1) & 1; slot = sig & 1; un = UNITS[nw][j]
    for tr in range(2):
        if un[0] in 'qkv':
            a = vWQ + 2*slot + int(un[1]); off = half*HALF + 'qkv'.index(un[0])*2048 + tr*512
        else:
            a = vWG + slot; off = half*HALF + (GOFF if un[0] == 'g' else UOFF) + tr*1792 + int(un[1])*32
        g.lds(f"ds_read_b64_tr_b16 {vr(vWF+4*(n%5)+2*tr,2)}, v{a} offset:{off}", ('W', n % 5))
def a_xread(i, t):
    t %= 4
    g.lds(f"ds_read_b128 {vr(vXF+16*(t&1)+4*i,4)}, v{vXR+(t&1)} offset:{(t>>1)*XSLOT+i*2048}", ('X', t & 1, i))
def a_m0(k, n, slot):
    if k == 'x': e(f"s_add_u32 m0, s{sMX}, {slot*XSLOT}")
    elif k == 'w': e(f"s_add_u32 m0, s{sMWd+n}, {slot*WSLOT}")
def a_op(k, n, slot, first=False):
    if k == 'x':
        g.vm(f"buffer_load_dwordx4 v{vDX+n}, {sr(sX,4)}, s{sKX} offen offset:{1024*n} {OPT['xfl']} lds", ('x', slot, n))
        if n == 3:
            e(f"s_add_u32 s{sKX}, s{sKX}, 128")
    elif k == 'w':
        d = [sA, sA, sB, sB, sQ][n]; v = vDA if n < 4 else vDB
        if first: e(f"s_cmp_lt_i32 s{sOW+n}, 0"); e(f"s_cbranch_scc1 LA_skipw{n}")
        g.vm(f"buffer_load_dwordx4 v{v}, {sr(d,4)}, s{sOW+n} offen" + (" nt" if (OPT['wnt'] & 1 or (first and OPT['fnt'])) else "") + f" {OPT['wfl']} lds", ('w', slot, n))
        if first: g.lab(f"LA_skipw{n}")
        e(f"s_add_u32 s{sOW+n}, s{sOW+n}, " + (f"s{sINCA}" if n < 4 else f"{64*6144}"))
    else:
        g.vm(f"buffer_load_dword v{vDUM}, v{vPF}, {sr(sPF,4)}, s{sPFO} offen" + (" nt" if OPT['wnt'] & 2 and NWCUR[0] == 0 else ""), ('p', 0, 0))
        e(f"s_add_u32 s{sPFO}, s{sPFO}, s{sPFI}")
def a_full(k, n, slot, first=False):
    a_m0(k, n, slot)
    if not first: e("s_nop 0")
    a_op(k, n, slot, first)
JBW = 6
def a_events(nw):
    ev = {}; st = OPT['stag']*nw
    for t in (1, 3):
        for n, o in enumerate(OPT['xpos']): assert 0 <= o+st < 20; ev.setdefault((t*10+OPT['jbx']+o+st) % 40, []).append(('x', n, t >> 1))
    for t in (0, 2):
        for n, o in enumerate(OPT['wpos']): assert 0 <= o+st < 20; ev.setdefault((t*10+JBW+o+st) % 40, []).append(('w', n, t >> 1))
        if OPT['pf']: ev.setdefault((t*10+JBW+OPT['pfpos']-st) % 40, []).append(('p', 0, 0))
    return ev
NWCUR = [0]
def a_body(nw):
    NWCUR[0] = nw
    ev = a_events(nw)
    for t in range(4):
        for j in range(10):
            n = t*10 + j; un = UNITS[nw][j]; evs = ev.get(n, [])
            for i in range(4):
                i2 = 3-i if (OPT['snake'] and j & 1) else i
                g.need([('W', n % 5), ('X', t & 1, i2)])
                a, b = vr(vWF+4*(n % 5), 4), vr(vXF+16*(t & 1)+4*i2, 4)
                if un[0] == 'v': a, b = b, a
                e(f"{MF16} {vr(ACC(j,i2),4)}, {a}, {b}, {vr(ACC(j,i2),4)}")
                if i == 0:
                    if t % 2 == 0 and j == JBW:
                        g.need([('W', k) for k in range(5)], [('w', 1-(t >> 1), k) for k in range(5)]); e("s_barrier")
                    if t % 2 == 1 and j == OPT['jbx']:
                        g.need([], [('x', 1-(t >> 1), k) for k in range(4)]); e("s_barrier")
                    a_wread(nw, n+4)
                if i == 1:
                    for ii in range(4):
                        if OPT['jbx'] + OPT['xrd'][ii] == j: a_xread(ii, t+1)
                    if evs: a_m0(*evs[0])
                if i == 2 and evs:
                    a_op(*evs[0])
                    for x in evs[1:]: a_full(*x)

def silu(jg, i, t, R):
    G = ACC(jg, i); U = ACC(jg+1, i)
    for r in range(0, 8, 2): e(f"v_pk_mul_f32 {vr(t+r,2)}, {vr(G+r,2)}, {sr(sK,2)}")
    for r in range(8): e(f"v_exp_f32 v{t+r}, v{t+r}")
    for r in range(0, 8, 2): e(f"v_pk_mul_f32 {vr(G+r,2)}, {vr(G+r,2)}, {vr(U+r,2)}")
    for r in range(0, 8, 2): e(f"v_pk_add_f32 {vr(t+r,2)}, {vr(t+r,2)}, s[94:95]")
    for r in range(8): e(f"v_rcp_f32 v{t+r}, v{t+r}")
    e("s_nop 0")
    for r in range(0, 8, 2): e(f"v_pk_mul_f32 {vr(G+r,2)}, {vr(G+r,2)}, {vr(t+r,2)}")
    for r in range(4): e(f"v_cvt_pk_bf16_f32 v{R+r}, v{G+2*r}, v{G+2*r+1}")
    e("s_nop 1")
    e(f"v_permlane32_swap_b32 v{R}, v{R+2}"); e(f"v_permlane32_swap_b32 v{R+1}, v{R+3}")
def pack2(j, i):
    a, b = ACC(j, i), ACC(j+1, i)
    e(f"v_cvt_pk_bf16_f32 v{a}, v{a}, v{a+1}"); e(f"v_cvt_pk_bf16_f32 v{a+1}, v{a+2}, v{a+3}")
    e(f"v_cvt_pk_bf16_f32 v{a+2}, v{b}, v{b+1}"); e(f"v_cvt_pk_bf16_f32 v{a+3}, v{b+2}, v{b+3}")
def spin(name, load, test, cnt):
    e(f"s_mov_b32 s{cnt}, {SPIN:#x}")
    g.lab(name)
    load(); e("s_waitcnt vmcnt(0)"); test()
    e(f"s_cbranch_scc1 {name}_ok")
    e(f"s_sub_u32 s{cnt}, s{cnt}, 1"); e(f"s_cbranch_scc1 {name}_ok")
    e(f"s_sleep {OPT['slp']}"); e(f"s_branch {name}")
    g.lab(name + "_ok")
NSIG = [0]
sDN, sHB, sFO = 100, 92, 101
vSG = 20
def trysig(n, ldsaddr, flagadd, flagoff, force=False, sDN=sDN):
    k = NSIG[0]; NSIG[0] += 1
    if force: e(f"s_cmp_eq_u32 s{sDN}, 0")
    else:
        e(f"s_getreg_b32 s{sFO}, hwreg(HW_REG_IB_STS)"); e(f"s_and_b32 s{sFO}, s{sFO}, 0xc0000f"); e(f"s_or_b32 s{sFO}, s{sFO}, s{sDN}"); e(f"s_cmp_le_u32 s{sFO}, {n}")
    e(f"s_cbranch_scc1 LG_s{k}"); g.lab(f"LG_r{k}")
    g.tail2 += [f"LG_s{k}:"] + ["    " + x for x in (
        f"v_mov_b32 v{vSG}, {ldsaddr}", f"s_mov_b32 s{sDN}, 0x10000", "s_mov_b64 exec, 1", f"s_waitcnt vmcnt({n})",
        f"ds_add_rtn_u32 v{vSG+1}, v{vSG}, v{vCN}", "s_waitcnt lgkmcnt(0)", f"v_readfirstlane_b32 s{sFO}, v{vSG+1}", "s_nop 1",
        f"s_cmp_lg_u32 s{sFO}, 7", f"s_cbranch_scc1 LG_x{k}", f"s_add_u32 s{sFO}, s{sT+7}, {flagadd}",
        f"buffer_store_dword v{vCN}, off, {sr(sWS,4)}, s{sFO} offset:{flagoff} sc1")] + [f"LG_x{k}:", "    s_mov_b64 exec, -1"]
    sv = g.L; g.L = g.tail2; stamp({FL_KV:'ks',FL_H:'hs',FL_P:'rs',FL_P2:'rs2'}[flagoff]); e(f"s_branch LG_r{k}"); g.L = sv
def gate_acc(X, W, t, one):
    return [[f"v_lshlrev_b32 v{t}, 16, v{X}"], [f"v_and_b32 v{t+1}, 0xffff0000, v{X}"], [f"v_lshlrev_b32 v{t+2}, 16, v{W}"],
            [f"v_and_b32 v{t+3}, 0xffff0000, v{W}"], [f"v_pk_mul_f32 {vr(t,2)}, {vr(t,2)}, {vr(t+2,2)}"], [f"v_cvt_pk_bf16_f32 v{t+4}, v{t}, v{t+1}"],
            [f"v_dot2_f32_bf16 v{t+5}, v{t+4}, v{one}, v{t+5}"]]
def gate_list(t, one):
    o = gate_acc(40, 41, t, one) + gate_acc(38, 39, t, one)
    o.append(["s_nop 1"])
    for m in ("quad_perm:[1,0,3,2] row_mask:0xf", "quad_perm:[2,3,0,1] row_mask:0xf", "row_half_mirror row_mask:0xf",
              "row_mirror row_mask:0xf", "row_bcast:15 row_mask:0xa", "row_bcast:31 row_mask:0xc"):
        o.append(["s_nop 1", f"v_add_f32_dpp v{t+5}, v{t+5}, v{t+5} {m} bank_mask:0xf"])
    o += [[f"v_cvt_pk_bf16_f32 v{t}, v{t+5}, v{t+5}", f"v_and_b32 v{t}, 0xffff0000, v{t}"], [f"v_mul_f32 v{t}, {f32(-LOG2E)}, v{t}", f"v_exp_f32 v{t}, v{t}", "s_nop 0"],
          [f"v_add_f32 v{t}, 1.0, v{t}", f"v_rcp_f32 v{t}, v{t}", "s_nop 0"], [f"v_cvt_pk_bf16_f32 v{t}, v{t}, v{t}", f"v_and_b32 v{t}, 0xffff0000, v{t}"],
          [f"s_lshl_b32 s{sT}, s{sW}, 2", f"s_add_u32 s{sT}, s{sT}, {GLDS}", f"v_mov_b32 v{t+1}, s{sT}"],
          ["s_mov_b32 exec_lo, 0", "s_brev_b32 exec_hi, 1", f"ds_write_b32 v{t+1}, v{t}", "s_mov_b64 exec, -1"]]
    return o

D = OPT['D']; NH = 14; OT = OPT['otail']; NT = 8 if OT else 4; NS = NH + NT
cA, cWt, cOUT, cWo, cX = 8, 12, 16, 32, 40
cAK, cWK, cWK2, cQ, cNT, cM0, cAK2 = 20, 21, 22, 23, 36, 37, 38
cvDW, cvA, cvPL, cvDW2, cvPA = 4, 6, 16, 20, 18
cvWF, cvAR, cvRB, cvRA, cvPT, cvOA, cvACC = 28, 60, 124, 136, 144, 176, 192
CRING = 98304
def c_setup():
    e(f"s_lshr_b32 s{cQ}, s{sH}, 3"); e(f"s_and_b32 s{cNT}, s{sH}, 7")
    e(f"s_lshl_b32 s{sT}, s{cNT}, 8")
    e(f"s_lshl_b32 s{cWK}, s{sW}, 14"); e(f"s_add_u32 s{cWK}, s{cWK}, s{sT}")
    e(f"s_lshl_b32 s{cWK2}, s{sW}, {15 if OT else 14}"); e(f"s_add_u32 s{cWK2}, s{cWK2}, s{sT}")
    e(f"s_mul_i32 s{sT}, s{cQ}, {896*2048}"); e(f"s_add_u32 s{cWK}, s{cWK}, s{sT}")
    if OT: e(f"s_lshr_b32 s{sT}, s{cQ}, 1"); e(f"s_lshl_b32 s{sT}, s{sT}, 7")
    else: e(f"s_lshl_b32 s{sT}, s{cQ}, 19")
    e(f"s_add_u32 s{cWK2}, s{cWK2}, s{sT}")
    e(f"s_lshl_b32 s{cM0}, s{sW}, 11"); e(f"s_add_u32 s{cM0}, s{cM0}, {CRING}")
    srd(cWt, pWD, 0 if OPT['noW2'] else 3584*2048); srd(cWo, pWO, 0 if OPT['noW2'] else 1024*2048)
    srd(cA, pWSp, 0 if OPT['noA'] else A_BYTES); srd(cOUT, pOUT, 2048*2048)
    e(f"s_lshl_b32 s{sT}, s{sRB}, 4"); e(f"s_lshl_b32 s{cAK}, s{sW}, 1"); e(f"s_add_u32 s{sT}, s{sT}, s{cAK}")
    e(f"s_mul_i32 s{cAK}, s{sT}, {M16}"); e(f"s_add_u32 s{cAK2}, s{cAK}, {56*512}")
    e(f"s_mul_i32 s{sT}, s{cQ}, {72*512}"); e(f"s_add_u32 s{cAK}, s{cAK}, s{sT}")
    e(f"v_mov_b32 v{cvA}, v{vL16}"); e(f"v_add_u32 v{cvA+1}, {M16}, v{vL16}")
    e(f"v_lshrrev_b32 v{vT}, 4, v{vL}"); e(f"v_bfe_u32 v{vT+1}, v{vL}, 1, 3"); e(f"v_xor_b32 v{vT+1}, v{vT+1}, v{vT}")
    e(f"v_lshlrev_b32 v{vT}, 11, v{vT}"); e(f"v_lshl_add_u32 v{vT}, v{vT+1}, 5, v{vT}")
    e(f"v_and_b32 v{vT+1}, 1, v{vL}"); e(f"v_lshl_add_u32 v{cvDW}, v{vT+1}, 4, v{vT}")
    e(f"v_xor_b32 v{cvDW+1}, 128, v{cvDW}"); e(f"v_add_u32 v{cvDW+1}, 7168, v{cvDW+1}")
    e(f"v_and_b32 v{cvPA}, 7, v{L}"); e(f"v_lshlrev_b32 v{cvPA}, 9, v{cvPA}")
def c_m0(s): e(f"s_add_u32 m0, s{cM0}, {(s % 4)*16384}")
HS = [(0, k) for k in range(14)]
CUR = {'a': 0, 'w': 0}
def c_dma(s, n):
    if s < NH:
        off = (HS[s][0]*896 + HS[s][1]*64)*2048
        if off != CUR['w']: e(f"s_add_u32 s{cWK}, s{cWK}, {(off-CUR['w']) & 0xffffffff:#x}"); CUR['w'] = off
        g.vm(f"buffer_load_dwordx4 v{cvDW+n}, {sr(cWt,4)}, s{cWK} offen offset:{n*1024} lds", ('d', s))
    else:
        g.vm(f"buffer_load_dwordx4 v{cvDW+n}, {sr(cWo,4)}, s{cWK2} offen offset:{n*1024} lds", ('d', s))
        if n == 1: e(f"s_add_u32 s{cWK2}, s{cWK2}, {64*2048}")
def c_aload(s, k):
    ku, mf = k >> 1, k & 1
    off = HS[s][0]*72*512 + HS[s][1]*2048 if s < NH else (14 + s - NH)*2048
    if not (0 <= off - CUR['a'] <= 2048): e(f"s_add_u32 s{cAK}, s{cAK}, {(off-CUR['a']) & 0xffffffff:#x}"); CUR['a'] = off
    g.vm(f"buffer_load_dwordx4 {vr(cvAR+16*((s+1)%D)+4*k,4)}, v{cvA+mf}, {sr(cA,4)}, s{cAK} offen offset:{off-CUR['a']+ku*1024} sc1", ('a', s, k))
def c_wread(s, n):
    s += n // 16; n %= 16
    if s >= NS: return
    for tr in range(2):
        if s < NH or not OT: a, off = cvRA + (n & 7), (n >> 3)*8192 + tr*2048
        else: a, off = cvRB + (n & 3), (n >> 2)*4096 + tr*1024
        g.lds(f"ds_read_b64_tr_b16 {vr(cvWF+4*(n&7)+2*tr,2)}, v{a} offset:{(s%4)*16384+off}", ('W', n & 7))

g.L += [".globl " + KN, ".p2align 8", f".type {KN},@function"]
g.lab(KN)
e("s_cmp_ge_u32 s2, 256"); e("s_cbranch_scc1 L_end")
e(f"s_load_dwordx16 {sr(sP,16)}, s[0:1], 0"); e(f"s_load_dwordx4 {sr(sP+16,4)}, s[0:1], 64"); e(f"s_load_dwordx2 {sr(sP+20,2)}, s[0:1], 80")
if OPT['stamp']: e(f"s_memtime s[{sST+4}:{sST+5}]"); e(f"s_memrealtime s[{sST+6}:{sST+7}]")
if OPT['cpf0']:
    e(f"s_getpc_b64 s[{sT}:{sT+1}]"); g.lab("LA_pc0")
    e(f"s_sub_u32 s{sT}, s{sT}, LA_pc0-{KN}"); e(f"s_subb_u32 s{sT+1}, s{sT+1}, 0")
    e(f"s_lshr_b32 s{sT+2}, s2, 3"); e(f"s_lshl_b32 s{sT+2}, s{sT+2}, 7")
    e(f"v_lshlrev_b32 v26, 12, v0"); e(f"v_add_u32 v26, s{sT+2}, v26")
    e(f"v_cmp_gt_u32 vcc, LZ_end-{KN}-4, v26"); e(f"v_mov_b32 v27, s{sT+1}"); e(f"s_and_saveexec_b64 s[{sT+2}:{sT+3}], vcc"); e("s_cbranch_execz LA_nopc")
    e(f"v_add_co_u32 v26, vcc, s{sT}, v26"); e("s_nop 1"); e(f"v_addc_co_u32 v27, vcc, 0, v27, vcc")
    e(f"global_load_dword v{vDUM}, v[26:27], off")
    g.lab("LA_nopc"); e("s_mov_b64 exec, -1")
e(f"v_lshrrev_b32 v{vT}, 6, v0"); e(f"v_and_b32 v{vL}, 63, v0"); e(f"v_readfirstlane_b32 s{sW}, v{vT}")
if OPT['amap'] == 0:
    e(f"s_lshr_b32 s{sRB}, s2, 5"); e(f"s_and_b32 s{sH}, s2, 7"); e(f"s_lshl_b32 s{sH}, s{sH}, 2")
    e(f"s_bfe_u32 s{sT}, s2, {(2<<16)|3:#x}"); e(f"s_add_u32 s{sH}, s{sH}, s{sT}")
elif OPT['amap'] == 1:
    e(f"s_and_b32 s{sRB}, s2, 7"); e(f"s_lshr_b32 s{sH}, s2, 3")
elif OPT['amap'] == 2:
    e(f"s_and_b32 s{sRB}, s2, 6"); e(f"s_lshr_b32 s{sT}, s2, 7"); e(f"s_add_u32 s{sRB}, s{sRB}, s{sT}")
    e(f"s_and_b32 s{sH}, s2, 1"); e(f"s_lshl_b32 s{sH}, s{sH}, 4"); e(f"s_bfe_u32 s{sT}, s2, {(4<<16)|3:#x}"); e(f"s_add_u32 s{sH}, s{sH}, s{sT}")
if OPT['amap'] == 3:
    e(f"s_and_b32 s{sRB}, s2, 4"); e(f"s_lshr_b32 s{sT}, s2, 6"); e(f"s_add_u32 s{sRB}, s{sRB}, s{sT}")
    e(f"s_and_b32 s{sH}, s2, 3"); e(f"s_lshl_b32 s{sH}, s{sH}, 3"); e(f"s_bfe_u32 s{sT}, s2, {(3<<16)|3:#x}"); e(f"s_add_u32 s{sH}, s{sH}, s{sT}")
e(f"s_and_b32 s{sMW}, s{sW}, 3"); e(f"s_lshr_b32 s{sNW}, s{sW}, 2")
e(f"s_lshl_b32 s{sLAM}, s{sRB}, 5"); e(f"s_add_u32 s{sLAM}, s{sLAM}, s{sH}")
e(f"v_lshlrev_b32 v{vL16}, 4, v{L}")
e(f"v_lshrrev_b32 v{vT}, 3, v{L}"); e(f"v_lshlrev_b32 v{vT}, 11, v{vT}")
e(f"v_lshrrev_b32 v{vT+1}, 4, v{L}"); e(f"v_and_b32 v{vT+2}, 7, v{L}"); e(f"v_xor_b32 v{vT+1}, v{vT+1}, v{vT+2}")
e(f"v_lshl_add_u32 v{vDX}, v{vT+1}, 4, v{vT}"); e(f"v_xor_b32 v{vDX+1}, 64, v{vDX}")
e(f"v_add_u32 v{vDX+2}, {2*15360}, v{vDX}"); e(f"v_add_u32 v{vDX+3}, {3*15360}, v{vDX+1}"); e(f"v_add_u32 v{vDX+1}, 15360, v{vDX+1}")
def swap23(d, s, t):
    e(f"v_and_b32 v{d}, 0x13, v{s}")
    e(f"v_and_b32 v{t}, 4, v{s}"); e(f"v_lshl_or_b32 v{d}, v{t}, 1, v{d}")
    e(f"v_and_b32 v{t}, 8, v{s}"); e(f"v_lshrrev_b32 v{t}, 1, v{t}"); e(f"v_or_b32 v{d}, v{d}, v{t}")
e(f"v_lshrrev_b32 v{vT}, 2, v{L}"); swap23(vT+1, vT, vT+2)
e(f"v_mul_u32_u24 v{vT+1}, 6144, v{vT+1}")
e(f"v_lshrrev_b32 v{vT}, 3, v{L}"); e(f"v_and_b32 v{vT}, 2, v{vT}"); e(f"v_and_b32 v{vT+2}, 3, v{L}"); e(f"v_xor_b32 v{vT}, v{vT}, v{vT+2}")
e(f"v_lshl_add_u32 v{vDB}, v{vT}, 4, v{vT+1}")
e(f"v_mul_u32_u24 v{vT}, 4682, v0"); e(f"v_lshrrev_b32 v{vT}, 16, v{vT}")
e(f"v_mul_u32_u24 v{vT+3}, 14, v{vT}"); e(f"v_sub_u32 v{vT+3}, v0, v{vT+3}")
swap23(vT+1, vT, vT+2)
e(f"v_mul_u32_u24 v{vT+1}, 7168, v{vT+1}"); e(f"v_lshl_add_u32 v{vDA}, v{vT+3}, 4, v{vT+1}")
e(f"s_lshl_b32 s{sKX}, s{sRB}, 19"); e(f"s_lshl_b32 s{sT}, s{sW}, 16"); e(f"s_add_u32 s{sKX}, s{sKX}, s{sT}")
e(f"s_add_u32 s{sKXE}, s{sKX}, 2048"); e(f"s_lshl_b32 s{sMX}, s{sW}, 12")
e(f"s_mul_i32 s{sOW+1}, s{sH}, 224"); e(f"s_sub_u32 s{sOW}, s{sOW+1}, {32*7168}")
e(f"s_mov_b32 s{sOW+2}, s{sOW}"); e(f"s_mov_b32 s{sOW+3}, s{sOW+1}")
e(f"s_lshl_b32 s{sT}, s{sW}, 10")
for n, o in enumerate((GOFF, GOFF+HALF, UOFF, UOFF+HALF)): e(f"s_add_u32 s{sMWd+n}, s{sT}, {WBASE+o}")
e(f"s_mov_b32 s{sINCA}, {64*7168}")
def qpiece(p):
    half, unit, rg = p // 6, (p % 6) // 2, p % 2
    return (WBASE + half*HALF + unit*2048 + rg*1024, ((-32 + half*32 + rg*16)*6144 + unit*2048) & 0xffffffff)
e(f"s_lshl_b32 s{sT+1}, s{sH}, 6")
e(f"s_add_u32 s{sMWd+4}, s{sT}, {WBASE}")
e(f"s_and_b32 s{sT+2}, s{sW}, 1"); e(f"s_mul_i32 s{sT+2}, s{sT+2}, {16*6144}")
e(f"s_lshr_b32 s{sT+3}, s{sW}, 1"); e(f"s_lshl_b32 s{sT+3}, s{sT+3}, 11"); e(f"s_add_u32 s{sT+2}, s{sT+2}, s{sT+3}")
e(f"s_sub_u32 s{sOW+4}, s{sT+2}, {32*6144}")
for w, p in ((6, 6), (7, 11)):
    l, o = qpiece(p)
    e(f"s_cmp_eq_u32 s{sW}, {w}"); e(f"s_cselect_b32 s{sMWd+4}, {l:#x}, s{sMWd+4}"); e(f"s_cselect_b32 s{sOW+4}, {o:#x}, s{sOW+4}")
e(f"s_add_u32 s{sOW+4}, s{sOW+4}, s{sT+1}")
e("s_waitcnt lgkmcnt(0)")
if OPT['stamp']: e(f"v_writelane_b32 v0, s{sST+4}, 0"); e(f"v_writelane_b32 v0, s{sST+6}, 16")
srd(sX, pX, 0 if OPT['noX'] else 2048*2048)
for n in range(4): a_full('x', n, 0)
srd(sQ, pQKV, 0 if OPT['noW'] else 1024*6144); srd(sA, pWG, 0 if OPT['noW'] else 1024*7168); srd(sB, pWU, 0 if OPT['noW'] else 1024*7168)
e(f"s_cmp_eq_u32 s{sW}, 7"); e("s_cbranch_scc0 LA_not7")
for d in (sA, sB):
    for k in range(3): e(f"s_mov_b32 s{d+k}, s{sQ+k}")
for n in range(4):
    l, o = qpiece(7+n)
    e(f"s_mov_b32 s{sMWd+n}, {l:#x}"); e(f"s_add_u32 s{sOW+n}, s{sT+1}, {o:#x}")
e(f"s_mov_b32 s{sINCA}, {64*6144}"); e(f"v_mov_b32 v{vDA}, v{vDB}")
g.lab("LA_not7")
if OPT['wshift']:
    for n in range(5): e(f"s_add_u32 s{sOW+n}, s{sOW+n}, " + (f"s{sINCA}" if n < 4 else f"{64*6144}"))
for n in range(5): a_full('w', n, 0, True)
srd(sWS, pWSp, WS_SIZE); srd(sDBG, pDBG, 256); srd(sPF, pGW, 2048)
PD = OPT['PD'] - OPT['pre']; sPB = sT+6
assert OPT['amap'] == 3
e(f"s_lshr_b32 s{sT+1}, s2, 3"); e(f"s_lshr_b32 s{sT+2}, s{sH}, 3")
e(f"v_lshlrev_b32 v{vPF}, 7, v{L}"); e(f"s_mov_b32 s{sT+3}, 0"); e(f"s_mov_b32 s{sCNT}, 0"); e(f"s_mov_b32 s{sPFO}, 0"); e(f"s_mov_b32 s{sPFI}, 0")
e(f"s_mov_b32 s{sPB}, s{pX}"); e(f"s_mov_b32 s{sPB+1}, s{pX+1}")
def pfcase(w, body):
    e(f"s_cmp_lg_u32 s{sW}, {w}"); e(f"s_cbranch_scc1 LA_pf{w}"); body(); g.lab(f"LA_pf{w}")
def base(p, size): e(f"s_mov_b32 s{sPB}, s{p}"); e(f"s_mov_b32 s{sPB+1}, s{p+1}"); e(f"s_mov_b32 s{sCNT}, {size:#x}")
R2 = 2 if OPT['pf2'] else 1
def pf_x():
    base(pX, 2048*2048); e(f"v_and_b32 v{vT}, 31, v{L}"); e(f"v_lshlrev_b32 v{vT}, 11, v{vT}"); e(f"v_lshrrev_b32 v{vPF}, 5, v{L}"); e(f"v_lshl_add_u32 v{vPF}, v{vPF}, 7, v{vT}")
    e(f"s_and_b32 s{sT+4}, s{sH}, 7"); e(f"s_lshl_b32 s{sT+4}, s{sT+4}, 16"); e(f"s_lshl_b32 s{sPFO}, s{sRB}, 19"); e(f"s_add_u32 s{sPFO}, s{sPFO}, s{sT+4}")
    e(f"s_add_u32 s{sPFO}, s{sPFO}, {PD*128}"); e(f"s_mov_b32 s{sPFI}, {128*R2}"); e(f"s_mov_b32 s{sT+3}, {32*R2}")
def pf_gu(p):
    def f():
        base(p, 1024*7168); e(f"v_mul_u32_u24 v{vT}, 4682, v{L}"); e(f"v_lshrrev_b32 v{vT}, 16, v{vT}")
        e(f"v_mul_u32_u24 v{vT+1}, {7168-1792}, v{vT}"); e(f"v_add_u32 v{vPF}, v{vPF}, v{vT+1}")
        e(f"v_lshrrev_b32 v{vT}, 1, v{vT}"); e(f"v_mul_u32_u24 v{vT}, {62*7168}, v{vT}"); e(f"v_add_u32 v{vPF}, v{vPF}, v{vT}")
        e(f"s_mul_i32 s{sPFO}, s{sT+1}, {2*7168}"); e(f"s_mul_i32 s{sT+4}, s{sT+2}, 1792"); e(f"s_add_u32 s{sPFO}, s{sPFO}, s{sT+4}")
        e(f"s_add_u32 s{sPFO}, s{sPFO}, {(64*PD-32)*7168}"); e(f"s_mov_b32 s{sPFI}, {64*7168*R2}"); e(f"s_mov_b32 s{sT+3}, {28*R2}")
    return f
def pf_q():
    base(pQKV, 1024*6144); e(f"v_lshrrev_b32 v{vT}, 2, v{L}"); e(f"v_lshlrev_b32 v{vT}, 11, v{vT}"); e(f"v_and_b32 v{vPF}, 3, v{L}")
    e(f"v_lshl_add_u32 v{vPF}, v{vPF}, 7, v{vT}")
    e(f"v_cmp_le_u32 vcc, 24, v{L}"); e(f"v_add_u32 v{vT}, {62*6144}, v{vPF}"); e("s_nop 0"); e(f"v_cndmask_b32 v{vPF}, v{vPF}, v{vT}, vcc")
    e(f"s_mul_i32 s{sPFO}, s{sT+1}, {2*6144}"); e(f"s_lshl_b32 s{sT+4}, s{sT+2}, 9"); e(f"s_add_u32 s{sPFO}, s{sPFO}, s{sT+4}")
    e(f"s_add_u32 s{sPFO}, s{sPFO}, {(64*PD-32)*6144}"); e(f"s_mov_b32 s{sPFI}, {64*6144*R2}"); e(f"s_mov_b32 s{sT+3}, {24*R2}")
def pf_lin(p, size, nl, st=0):
    def f():
        base(p, size); e(f"s_mul_i32 s{sPFO}, s{sLAM}, {nl*128}"); e(f"s_mov_b32 s{sPFI}, {nl*128*256}"); e(f"s_mov_b32 s{sT+3}, {nl}")
        if st: e(f"s_sub_u32 s{sPFO}, s{sPFO}, {st*nl*128*256}")
    return f
if OPT['pf']:
    if PD > 0: pfcase(6, pf_x); pfcase(1, pf_gu(pWG)); pfcase(2, pf_gu(pWU)); pfcase(3, pf_q)
    pfcase(4, pf_lin(pWD, 3584*2048, OPT['wdn'], OPT['wdst'])); pfcase(5, pf_lin(pWO, 1024*2048, 16, OPT['wdst']))
    if OPT['touch'] & 1: pfcase(6, pf_lin(pWSp, A_BYTES, 64))
    def pf_kv():
        pf_lin(pWSp, WS_KV + (0x1000000 if OPT['touch'] & 4 else 0x800000), 64)(); e(f"s_add_u32 s{sPFO}, s{sPFO}, {WS_KV:#x}")
    if OPT['touch'] & 2: pfcase(7, pf_kv)
e(f"v_cmp_gt_u32 vcc, s{sT+3}, v{L}"); e(f"v_bfrev_b32 v{vT}, 1"); e("s_nop 0"); e(f"v_cndmask_b32 v{vPF}, v{vT}, v{vPF}, vcc")
e(f"s_mov_b32 s{sPF}, s{sPB}"); e(f"s_and_b32 s{sPF+1}, s{sPB+1}, 0xffff"); e(f"s_mov_b32 s{sPF+2}, s{sCNT}")
for k in range(OPT['pre']): a_op('p', 0, 0)
e(f"v_and_b32 v{vT}, 15, v{L}"); e(f"s_lshl_b32 s{sT}, s{sMW}, 6"); e(f"v_add_u32 v{vT}, s{sT}, v{vT}"); e(f"v_lshlrev_b32 v{vT}, 7, v{vT}")
e(f"v_lshrrev_b32 v{vT+1}, 4, v{L}"); e(f"v_bfe_u32 v{vT+2}, v{L}, 1, 3"); e(f"v_xor_b32 v{vT+2}, v{vT+1}, v{vT+2}")
e(f"v_lshl_add_u32 v{vXR}, v{vT+2}, 4, v{vT}"); e(f"v_xor_b32 v{vXR+1}, 64, v{vXR}")
e(f"v_bfe_u32 v{vT}, v{L}, 2, 3")
e(f"v_lshrrev_b32 v{vT+1}, 5, v{L}"); e(f"v_lshl_add_u32 v{vT}, v{vT+1}, 4, v{vT}")
e(f"v_and_b32 v{vT+1}, 3, v{L}"); e(f"v_lshlrev_b32 v{vT+1}, 3, v{vT+1}"); e(f"v_add_u32 v{vT+1}, {WBASE}, v{vT+1}")
e(f"v_mul_u32_u24 v{vWG}, 224, v{vT}"); e(f"v_add_u32 v{vWG}, v{vWG}, v{vT+1}"); e(f"v_add_u32 v{vWG+1}, {WSLOT}, v{vWG}")
e(f"v_lshl_add_u32 v{vWQ}, v{vT}, 6, v{vT+1}"); e(f"v_bfe_u32 v{vT+2}, v{L}, 4, 1"); e(f"v_lshl_add_u32 v{vWQ}, v{vT+2}, 5, v{vWQ}")
e(f"v_xor_b32 v{vWQ+1}, 32, v{vWQ}"); e(f"v_add_u32 v{vWQ+2}, {WSLOT}, v{vWQ}"); e(f"v_add_u32 v{vWQ+3}, {WSLOT}, v{vWQ+1}")
for r in range(vACC, 256): e(f"v_mov_b32 v{r}, 0")
e(f"s_mov_b32 s{sK}, {f32(-LOG2E)}"); e(f"s_mov_b32 s{sK+1}, {f32(-LOG2E)}")
e(f"s_lshl_b32 s{sGO}, s{sLAM}, 3"); e(f"s_add_u32 s{sGO}, s{sGO}, s{sW}"); e(f"s_lshl_b32 s{sGO}, s{sGO}, 11")
e("v_mov_b32 v40, 0"); e("v_mov_b32 v41, 0"); e("v_mov_b32 v25, 0"); e("v_mov_b32 v43, 0x3f803f80"); e(f"v_lshlrev_b32 v42, 2, v{L}"); e(f"s_mov_b32 s{sKXE}, 0")
srd(sGW, pGW, 2048); e("s_mov_b32 s94, 1.0"); e("s_mov_b32 s95, 1.0")
W1A = {0: [0,1,2,3,4], 1: [], 2: [0,2,4]}[OPT['w1']]
for n in W1A: a_full('w', n, 1)
e(f"s_waitcnt vmcnt({len(W1A)+OPT['pre']})"); e("s_barrier")
e(f"s_cmp_eq_u32 s{sNW}, 1"); e("s_cbranch_scc1 LA_pre1")
for nw in range(2):
    if nw == 1: g.lab("LA_pre1")
    sq, sv_ = g.steady(lambda: a_body(nw))
    g.q = []
    for i in range(4): a_xread(i, 0)
    for n in range(4): a_wread(nw, n)
    assert [t for t in sv_ if t[0] == 'w'] == [('w', 1, k) for k in range(5)], sv_
    for n in range(5):
        if n not in W1A: a_full('w', n, 1)
    for t in sv_:
        if t[0] == 'x': assert t[1] == 1; a_full('x', t[2], 1)
    assert not any(t[0] == 'p' for t in sv_[sv_.index(('w', 1, 0)):]), sv_
    e(f"s_mov_b32 s{sCNT}, 8"); e(f"s_mov_b32 s{sOK}, 0")
    stamp('loopA')
    if OPT['prio'] and nw == 1: e("s_setprio 1")
    e("s_waitcnt lgkmcnt(0)")
    g.q = list(sq); g.v = list(sv_)
    g.L.append(".p2align 6"); g.lab(f"LA_loop{nw}")
    a_body(nw); assert g.q == sq and g.v == sv_
    if OPT['tst']:
        e(f"s_memtime s[{sST}:{sST+1}]"); e(f"s_memrealtime s[{sST+2}:{sST+3}]"); e(f"s_sub_u32 s{sST+4}, 10, s{sCNT}"); e(f"s_add_u32 s{sST+5}, s{sST+4}, 16")
        e("s_waitcnt lgkmcnt(0)"); e(f"s_mov_b32 m0, s{sST+4}"); e("s_nop 0"); e(f"v_writelane_b32 v0, s{sST}, m0"); e(f"s_mov_b32 m0, s{sST+5}"); e("s_nop 0"); e(f"v_writelane_b32 v0, s{sST+2}, m0")
    e(f"s_sub_u32 s{sCNT}, s{sCNT}, 1")
    for u in gate_acc(40, 41, 20, 43):
        for x in u: e(x)
    e(f"buffer_load_dword v40, v42, {sr(sX,4)}, s{sGO} offen"); e(f"buffer_load_dword v41, v42, {sr(sGW,4)}, s{sKXE} offen")
    e(f"s_add_u32 s{sGO}, s{sGO}, 256"); e(f"s_add_u32 s{sKXE}, s{sKXE}, 256")
    e(f"s_cmp_lg_u32 s{sCNT}, 1"); e(f"s_cbranch_scc1 LA_h1_{nw}")
    sv = g.L; g.L = g.tail
    g.lab(f"LA_h1_{nw}")
    def hook(c, body, w0=False):
        if w0 and nw == 1: return
        e(f"s_cmp_lg_u32 s{sCNT}, {c}"); e(f"s_cbranch_scc1 LA_n{c}_{nw}")
        if w0: e(f"s_cmp_lg_u32 s{sW}, 0"); e(f"s_cbranch_scc1 LA_loop{nw}")
        body(); e(f"s_branch LA_loop{nw}"); g.lab(f"LA_n{c}_{nw}")
    def rec_store():
        for r in range(28, 32): e(f"v_mov_b32 v{r}, 0")
        e(f"v_mov_b32 v26, {CNTLDS}"); e("ds_write_b32 v26, v28")
        e(f"s_lshl_b32 s{sT}, s{sLAM}, 9"); e(f"s_add_u32 s{sT}, s{sT}, {WS_FL:#x}")
        e("s_mov_b32 exec_hi, 0")
        e(f"buffer_store_dwordx4 v[28:31], v{vL16}, {sr(sWS,4)}, s{sT} offen sc1"); e("s_mov_b64 exec, -1")
    def ack():
        e(f"v_mov_b32 v{vT}, 1"); e(f"s_and_b32 s{sT}, s{sLAM}, 1"); e(f"s_lshl_b32 s{sT}, s{sT}, 7")
        one_lane(lambda: e(f"buffer_atomic_add v{vT}, off, {sr(sDBG,4)}, s{sT} sc1"))
    def ld(): e(f"v_and_b32 v37, 1, v{L}"); e(f"v_lshlrev_b32 v37, 7, v37"); e(f"buffer_load_dword v{vCN}, v37, {sr(sDBG,4)}, 0 offen sc1")
    def ts(): e(f"v_cmp_gt_u32 vcc, 128, v{vCN}"); e("s_nop 1"); e("s_cmp_eq_u64 vcc, 0")
    def gate_loads():
        e(f"v_lshlrev_b32 v42, 5, v{L}")
        e(f"buffer_load_dwordx4 {vr(26,4)}, v42, {sr(sX,4)}, s{sGO} offen"); e(f"buffer_load_dwordx4 {vr(30,4)}, v42, {sr(sX,4)}, s{sGO} offen offset:16")
        e(f"buffer_load_dwordx4 {vr(34,4)}, v42, {sr(sGW,4)}, 0 offen"); e(f"buffer_load_dwordx4 {vr(38,4)}, v42, {sr(sGW,4)}, 0 offen offset:16")
        ld()
    def code_pf():
        e(f"s_getpc_b64 s[{sT}:{sT+1}]"); g.lab("LA_pc")
        e(f"s_sub_u32 s{sT}, s{sT}, LA_pc-{KN}"); e(f"s_subb_u32 s{sT+1}, s{sT+1}, 0")
        e(f"s_lshr_b32 s{sT+2}, s2, 3"); e(f"s_lshl_b32 s{sT+2}, s{sT+2}, 12")
        e(f"v_and_b32 v26, 31, v{L}"); e(f"v_lshlrev_b32 v26, 7, v26"); e(f"v_add_u32 v26, s{sT+2}, v26")
        e(f"v_min_u32 v26, LZ_end-{KN}-4, v26")
        e(f"v_mov_b32 v27, s{sT+1}"); e(f"v_add_co_u32 v26, vcc, s{sT}, v26"); e("s_nop 1"); e(f"v_addc_co_u32 v27, vcc, 0, v27, vcc")
        e(f"global_load_dword v{vDUM}, v[26:27], off")
    hook(6, rec_store, True); hook(5, ack, True); hook(2, ld)
    if OPT['cpf']: hook(OPT['cpf'], code_pf, True)
    def tlb_warm():
        e(f"s_mul_i32 s{sT}, s{sRB}, {16*M16}"); e(f"v_mov_b32 v26, s{sT}")
        e(f"s_add_u32 s{sT+1}, s{sT}, {8*M16}"); e(f"v_writelane_b32 v26, s{sT+1}, 1")
        e(f"s_add_u32 s{sT+1}, s{sT}, {16*M16-128}"); e(f"v_writelane_b32 v26, s{sT+1}, 2")
        e(f"s_lshl_b32 s{sT}, s{sLAM}, 15"); e(f"s_add_u32 s{sT}, s{sT}, {WS_KV:#x}"); e(f"v_writelane_b32 v26, s{sT}, 3")
        e(f"s_sub_u32 s{sT}, s{sT}, {32*32768}"); e(f"v_writelane_b32 v26, s{sT}, 4")
        e(f"s_lshl_b32 s{sT}, s{sRB}, 21"); e(f"s_add_u32 s{sT}, s{sT}, {WS_PART:#x}"); e(f"v_writelane_b32 v26, s{sT}, 5")
        e("s_mov_b64 exec, 63"); e(f"buffer_load_dword v{vDUM}, v26, {sr(sWS,4)}, 0 offen"); e("s_mov_b64 exec, 1")
        srd(88, pOUT, 2048*2048); e(f"s_lshl_b32 s{sT}, s{sRB}, 19"); e(f"buffer_load_dword v{vDUM}, off, s[88:91], s{sT}")
        srd(88, pWO, 1024*2048); e(f"buffer_load_dword v{vDUM}, off, s[88:91], 0")
        srd(88, pWD, 3584*2048); e(f"s_lshr_b32 s{sT}, s{sH}, 3"); e(f"s_mul_i32 s{sT}, s{sT}, {896*2048}"); e(f"buffer_load_dword v{vDUM}, off, s[88:91], s{sT}")
        e(f"s_add_u32 s{sT}, s{sT}, {895*2048}"); e(f"buffer_load_dword v{vDUM}, off, s[88:91], s{sT}")
        e("s_mov_b64 exec, -1")
    if OPT['tlb']: hook(OPT['tlb'], tlb_warm, True)
    e(f"s_branch LA_loop{nw}")
    g.lab(f"LA_slow{nw}")
    spin(f"LA_spin{nw}", ld, ts, sT+3); e(f"s_branch LB_go{nw}")
    g.L = sv
    ts(); e(f"s_cbranch_scc0 LA_slow{nw}")
    g.lab(f"LB_go{nw}")
    e(f"buffer_load_dword v38, v42, {sr(sX,4)}, s{sGO} offen"); e(f"buffer_load_dword v39, v42, {sr(sGW,4)}, s{sKXE} offen")
    U = UNITS[nw]; jkv = 2 if nw == 0 else 0
    vHA = 3; vST = 96 - 4*len(OPT['hpos']); vNB = 208; assert len(OPT['hpos']) % 2 == 0
    def cap(f, atomic=False):
        sv = g.L; g.L = []; f(); r = g.L; g.L = sv
        return [r] if atomic else [[x] for x in r]
    def setupB():
        e(f"s_lshl_b32 s{sT+4}, s{sLAM}, 15"); e(f"s_add_u32 s{sT+4}, s{sT+4}, {WS_KV:#x}")
        e(f"s_lshl_b32 s{sT+5}, s{sMW}, 13"); e(f"v_add_u32 v{vT+8}, s{sT+5}, v{vL16}")
        e(f"s_add_u32 s{sT+5}, s{sT+5}, s{sT+4}")
    def setupB2():
        e(f"s_cmp_eq_u32 s{sRB}, 7"); e(f"s_cselect_b32 s{sT+5}, {WS_SIZE:#x}, s{sT+5}")
    def setupB3():
        e(f"s_add_u32 s{sT+6}, s{sT+5}, 4096")
        e(f"v_and_b32 v{vHA}, 31, v{L}"); e(f"v_lshlrev_b32 v{vHA}, 4, v{vHA}"); e(f"v_lshrrev_b32 v{vT+11}, 5, v{L}")
        e(f"v_mul_u32_u24 v{vT+11}, {M16}, v{vT+11}"); e(f"v_add_u32 v{vHA}, v{vHA}, v{vT+11}")
        e(f"s_lshl_b32 s{sT}, s{sRB}, 4"); e(f"s_lshl_b32 s{sT+1}, s{sMW}, 2"); e(f"s_add_u32 s{sT}, s{sT}, s{sT+1}")
        e(f"s_mul_i32 s{sHB}, s{sT}, {M16}"); e(f"s_mul_i32 s{sT}, s{sH}, {7*512}"); e(f"s_add_u32 s{sHB}, s{sHB}, s{sT}")
        e(f"s_lshr_b32 s{sT}, s{sH}, 3"); e(f"s_lshl_b32 s{sT}, s{sT}, 13"); e(f"s_add_u32 s{sHB}, s{sHB}, s{sT}")
        if nw == 1: e(f"s_add_u32 s{sHB}, s{sHB}, {3*512}")
        e(f"s_add_u32 s{sHB+1}, s{sHB}, {2*M16}")
        e(f"s_lshl_b32 s{sT+7}, s{sLAM}, 9"); e(f"s_add_u32 s{sT+7}, s{sT+7}, {WS_FL:#x}")
        e(f"v_mov_b32 v{vCN}, 1"); e(f"s_mov_b32 s{sDN}, 0"); e(f"s_sub_u32 s{sT+3}, s{sT+7}, {32*512}")
    def gpub():
        e(f"s_cmp_lg_u32 s{sW}, 0"); e("s_cbranch_scc1 LB_nog")
        e(f"v_lshlrev_b32 v{vT}, 2, v{L}"); e(f"v_add_u32 v{vT+1}, {GLDS}, v{vT}"); e("s_mov_b64 exec, 0xff"); e(f"ds_read_b32 v{vT+1}, v{vT+1}"); e("s_waitcnt lgkmcnt(0)")
        e(f"buffer_store_dword v{vT+1}, v{vT}, {sr(sWS,4)}, s{sT+7} offen sc1"); e("s_mov_b64 exec, -1")
        g.lab("LB_nog")
    def kvout():
        for i in range(4):
            pack2(jkv, i)
            if nw == 1:
                a = ACC(0, i); e("s_nop 1"); e(f"v_permlane32_swap_b32 v{a}, v{a+2}"); e(f"v_permlane32_swap_b32 v{a+1}, v{a+3}")
            e(f"buffer_store_dwordx4 {vr(ACC(jkv,i),4)}, v{vL16}, {sr(sWS,4)}, s{sT+5+(i>>1)} offen offset:{nw*2048+(i&1)*1024} sc1")
    gus = [j for j in range(10) if U[j][0] == 'g']
    def hst(R, k): e(f"buffer_store_dwordx4 {vr(R,4)}, v{vHA}, {sr(sWS,4)}, s{sHB+(k&1)} offen offset:{(k>>1)*512}" + ("" if OPT['hx'] == 1 else " sc1")) if OPT['hx'] != 2 else None
    def ldK(): e(f"buffer_load_dword v{vT+10}, off, {sr(sWS,4)}, s{sT+3} offset:{FL_KV} sc1")
    def tsK(): e(f"v_readfirstlane_b32 s{sT}, v{vT+10}"); e("s_nop 0"); e(f"s_cmp_eq_u32 s{sT}, 1")
    J = [2,3,4,5,6,7,8,9,0,1] if nw == 0 else list(range(10))
    SQ = [(t, j) for t in range(2) for j in range(10)]
    for p in range(5): a_, b_ = J[2*p], J[2*p+1]; SQ += [(2, a_), (2, b_), (3, a_), (3, b_)]
    F = []
    F += [(1, u) for u in cap(setupB) + cap(setupB2, True) + cap(setupB3)]
    vKA, vVA, vQA, vOA = 8, 9, 10, 11
    def att_setup():
        m = vT
        e(f"v_and_b32 v{m+1}, 15, v{L}"); e(f"v_lshlrev_b32 v{m+1}, 4, v{m+1}"); e(f"v_lshrrev_b32 v{m+2}, 5, v{L}")
        e(f"v_lshl_add_u32 v{m+1}, v{m+2}, 8, v{m+1}"); e(f"v_bfe_u32 v{m+2}, v{L}, 4, 1")
        e(f"v_lshl_add_u32 v{vQA}, v{m+2}, 10, v{m+1}"); e(f"v_lshl_add_u32 v{vVA}, v{m+2}, 9, v{m+1}")
        e(f"v_mul_u32_u24 v{vOA}, {M16}, v{m+2}"); e(f"v_add_u32 v{vOA}, v{vOA}, v{m+1}")
        e(f"s_lshl_b32 s{sT}, s{sW}, 12"); e(f"v_add_u32 v{vKA}, s{sT}, v{vQA}"); e(f"v_add_u32 v{vVA}, s{sT}, v{vVA}")
    def q_addr():
        e(f"s_lshl_b32 s{sT}, s{sW}, 11"); e(f"s_cmp_ge_u32 s{sW}, 6"); e(f"s_cselect_b32 s{sT+1}, {QLDS3-6*2048}, {QLDS}".replace(f", {QLDS}", f", s{sT+2}"))
        e(f"s_add_u32 s{sT}, s{sT}, s{sT+1}"); e(f"v_add_u32 v{vQA}, s{sT}, v{vQA}")
        if nw == 0:
            e(f"s_lshl_b32 s{sT}, s{sMW}, 12"); e(f"s_cmp_eq_u32 s{sMW}, 3"); e(f"s_cselect_b32 s{sT+1}, {QLDS3-3*4096}, s{sT+2}")
            e(f"s_add_u32 s{sT}, s{sT}, s{sT+1}"); e(f"v_add_u32 v{vT+9}, s{sT}, v{vL16}")
    def cnt0():
        e(f"v_mov_b32 v{vT+12}, {CNT2}"); e(f"v_mov_b32 v{vT+13}, 0"); e(f"ds_write_b32 v{vT+12}, v{vT+13}"); e(f"ds_write_b32 v{vT+12}, v{vT+13} offset:4"); e(f"ds_write_b32 v{vT+12}, v{vT+13} offset:8")
    def kvlds():
        for i in range(4): e(f"ds_write_b128 v{vT+8}, {vr(ACC(jkv,i),4)} offset:{32768+(i>>1)*4096+nw*2048+(i&1)*1024}")
    F += [(10, u) for u in cap(c_setup)]
    F += [(18, [("    " + x) for x in u]) for u in gate_list(20, 43)]
    if nw == 0: F += [(19, u) for u in cap(cnt0)]
    F += [(21, u) for u in cap(att_setup) + [[f"    s_mov_b32 s{sT+2}, {QLDS}"]] + cap(q_addr, True)]
    F += [(24, u) for u in cap(kvout) + cap(kvlds)]
    if nw == 0: F += [(24, u) for u in cap(gpub, True)]
    nk = 2*len(gus)
    for k in range(nk):
        j, i = gus[k >> 1], 2*(k & 1); av = 28 + 4*(k >> 1)
        F += [(av, u) for u in cap(lambda: silu(j, i, vT, ACC(j, i)))]
        NE = nk - len(OPT['hpos'])
        F += [(av, u) for u in cap(lambda: trysig(min(k, NE), CNTLDS, 0, FL_KV, force=(k == nk-1)), True)]
        if k < NE: F += [(av, u) for u in cap(lambda: hst(ACC(j, i), k))]
    ev = {n: [x for x in v if x[0] == 'x' and x[2] == 1] for n, v in a_events(nw).items() if n < 10}
    for n, k in zip((7, 8, 9), (0, 2, 4)): ev.setdefault(n, []).append(('w', k, 0))
    for n, (t, j) in enumerate(SQ):
        un = U[j]; evs = ev.get(n, [])
        for i in range(4):
            g.need([('W', n % 5), ('X', t & 1, i)])
            a, b = vr(vWF+4*(n % 5), 4), vr(vXF+16*(t & 1)+4*i, 4)
            if un[0] == 'v': a, b = b, a
            e(f"{MF16} {vr(ACC(j,i),4)}, {a}, {b}, {vr(ACC(j,i),4)}")
            if i == 0:
                if n == JBW: g.need([('W', k) for k in range(5)], [('w', 1, k) for k in range(5)]); e("s_barrier")
                if n == 17:
                    g.need([('W', k) for k in range(5)], [('x', 1, k) for k in range(4)] + [('w', 0, k) for k in range(5)]); e("s_barrier")
                if n == 22: assert not any(av <= 18 for av, u in F)
                if n == 23: g.need([('X', 1, k) for k in range(4)] + [('W', k) for k in range(5)]); e("s_barrier")
                if n + 4 < 40: a_wread(nw, n+4, SQ[n+4])
                if nw == 0 and n == OPT['kq']: ldK()
            if i == 1:
                for ii in range(4):
                    if n == OPT['jbx'] + OPT['xrd'][ii]: a_xread(ii, 1)
                    if n == 17 + (ii >> 1): a_xread(ii, 2)
                    if n == 20: a_xread(ii, 3)
                if evs: a_m0(*evs[0])
            if i == 2 and evs:
                a_op(*evs[0])
                for x in evs[1:]: a_full(*x)
            c = 0
            while F and F[0][0] <= n and c < (2 if n < 12 else 3 if n < 20 else OPT['fr']) and not (i == 1 and evs):
                u = F.pop(0)[1]; g.L += u; c += len(u)
    stamp('endA')
    left = sum(1 for av, u in F for x in u if 'buffer_store_dwordx4' in x)
    print("path", nw, "leftover filler instrs", sum(len(u) for av, u in F), "stores", left)
    if nw == 0 and OPT['h0']:
        vNB = 40
        e(f"s_mov_b32 s{sT+5}, {WS_SIZE:#x}")
        e(f"s_cmp_eq_u32 s{sRB}, 0"); e("s_cbranch_scc1 LB_rb0")
        e("s_waitcnt vmcnt(0)"); trysig(15, CNTLDS, 0, FL_KV, force=True); tsK(); e("s_cbranch_scc0 LB_late")
        e(f"s_sub_u32 s{sT+5}, s{sT+4}, {32*32768}")
        g.lab("LB_rb0")
        e(f"s_add_u32 s{sT+6}, s{sT+5}, 4096")
        def nbl():
            for f in range(8): e(f"buffer_load_dwordx4 {vr(vNB+4*f,4)}, v{vT+8}, {sr(sWS,4)}, s{sT+5+(f>>2)} offen offset:{(f&3)*1024} sc1")
        nbl(); e(f"s_mov_b32 s{sT+4}, 0")
        g.lab("LB_late")
        for i in range(4): pack2(0, i)
        for i in range(4): e(f"ds_write_b128 v{vT+9}, {vr(ACC(0,i),4)} offset:{i*1024}")
    else: e("s_nop 7")
    assert not any('ds_write' in x for av, u in F for x in u)
    for av, u in F: g.L += u
    for k in range(NE, nk):
        for r in range(4): e(f"v_mov_b32 v{vST+4*(k-NE)+r}, v{ACC(gus[k>>1], 2*(k&1))+r}")
    if NE: e(f"s_add_u32 s{sHB}, s{sHB}, {NE*256}"); e(f"s_add_u32 s{sHB+1}, s{sHB+1}, {NE*256}")
    stamp('hdone')
    if nw == 0:
        e(f"s_cmp_eq_u32 s{sT+4}, 0"); e("s_cbranch_scc1 LB_have")
        spin("LB_spin", ldK, tsK, sT+5)
        e(f"s_sub_u32 s{sT+5}, s{sT+4}, {32*32768}"); e(f"s_add_u32 s{sT+6}, s{sT+5}, 4096")
        nbl(); e("s_waitcnt vmcnt(0)")
        g.lab("LB_have")
        NLEFT = left; vNB0 = vNB
    stamp('kvok')
    if nw == 0: e("s_branch LB_common")
g.lab("LB_common")
FR = [40, 48, 56, 64, 96, 104]; vQ = 32; vS = 112; vM = 26; vSUM = 28
BIG = 2.0**100
assert OPT['npre'] <= 3
e(f"s_mov_b32 s{sDN}, 0")
e(f"s_andn2_b32 s{sT+4}, s{sLAM}, 7"); e(f"s_lshl_b32 s{sT+4}, s{sT+4}, 9"); e(f"s_add_u32 s{sT+4}, s{sT+4}, {WS_FL:#x}")
e(f"s_cmp_eq_u32 s{sNW}, 1"); e("s_cbranch_scc1 LB_nokv")
for f in range(8):
    e(f"s_waitcnt vmcnt({7-f+NLEFT})"); e(f"ds_write_b128 v{vT+8}, {vr(vNB0+4*f,4)} offset:{f*1024}")
g.lab("LB_nokv")
e("s_waitcnt lgkmcnt(0)"); e("s_barrier")
stamp('bar2')
ORD = [0, 8, 1, 2, 3, 4, 5, 6, 7]
def yprio(k):
    e(f"s_cmp_eq_u32 s{sNW}, 0"); e(f"s_cbranch_scc1 LP_{k}"); e("s_setprio 1"); g.lab(f"LP_{k}")
if OPT['aprio'] == 1: yprio(0)
def kread(x):
    t = ORD[x]
    for f in range(2): g.lds(f"ds_read_b128 {vr(FR[x%6]+4*f,4)}, v{vKA} offset:{t*4096+f*512}", ('K', x, f))
def vread(x):
    t = ORD[x]
    for f in range(2): g.lds(f"ds_read_b128 {vr(FR[(x+3)%6]+4*f,4)}, v{vVA} offset:{t*4096+2048+f*1024}", ('V', x, f))
def mx(t, half=None):
    b = vS + 16*t
    for r in range(0, 16, 2):
        if half is not None and (r >> 3) != half: continue
        k = (r >> 1) & 1
        if t == 8 and r < 4: e(f"v_max_f32 v{vM+k}, v{b+r}, v{b+r+1}")
        else: e(f"v_max3_f32 v{vM+k}, v{vM+k}, v{b+r}, v{b+r+1}")
def masked(op):
    for rho in range(16):
        cst = 8*(rho >> 2) + (rho & 3)
        e(f"s_bfm_b32 exec_lo, {cst}, 0"); e(f"s_bfm_b32 exec_hi, {cst+4}, 0"); e(f"{op} v{vS+128+rho}, v{vS+rho}")
    e("s_mov_b64 exec, -1")
def merge():
    masked("v_mov_b32")
    for rho in range(16): e(f"v_mov_b32 v{vS+rho}, 0")
NPRE = OPT['npre']
def ldH(): e(f"buffer_load_dword v{cvPL}, v{cvPA}, {sr(sWS,4)}, s{sT+4} offen offset:{FL_H} sc1")
def tsL(): e(f"v_cmp_ne_u32 vcc, 1, v{cvPL}"); e("s_nop 1"); e("s_cmp_eq_u64 vcc, 0")
AFTER = [0]; NH2 = [0]
def event(x):
    for k, p in enumerate(OPT['hpos']):
        if p == x: hst(vST+4*k, k); AFTER[0] = 0
    if max(OPT['hpos'] + [-1]) < x <= OPT['hq'] and (x >= 9 or x % 3 == 2): trysig(AFTER[0], CNT2, 0, FL_H, force=(x == OPT['hq']))
    for k, p in enumerate(OPT['dpos'][:NPRE]):
        if p == x: c_m0(k); e("s_nop 0"); c_dma(k, 0); c_dma(k, 1); AFTER[0] += 2
    if OPT['aearly'] and x == OPT['hq2']: ldH(); AFTER[0] += 1; NH2[0] = AFTER[0]
    if OPT['aearly'] and x == OPT['hq2'] + 2:
        e(f"s_mov_b32 s{sOK+1}, 0"); e(f"s_waitcnt vmcnt({AFTER[0]-NH2[0]})"); tsL(); e("s_cbranch_scc0 LB_noe")
        for k in range(4): c_aload(0, k)
        e(f"s_mov_b32 s{sOK+1}, 1"); e("s_branch LB_e2")
        g.lab("LB_noe"); ldH(); g.lab("LB_e2")
    if not OPT['aearly'] and x == OPT['hq']: ldH(); AFTER[0] += 1
assert min(OPT['dpos']) >= 9
def s_phase(rb0):
    g.q = []
    for f in range(2): g.lds(f"ds_read_b128 {vr(vQ+4*f,4)}, v{vQA} offset:{f*512}", ('Q', f))
    for x in range(6): kread(x)
    for x in range(9):
        t = ORD[x]
        if rb0 and t < 8:
            g.need([('K', x, 1), ('Q', 1)])
            e(f"s_cmp_ge_u32 s{sW}, {8-t}"); e(f"s_cbranch_scc1 LB_v{t}")
            for rho in range(16): e(f"v_mov_b32 v{vS+16*t+rho}, {f32(-BIG)}")
            e(f"s_branch LB_w{t}"); g.lab(f"LB_v{t}")
            for f in range(2): e(f"{MF32} {vr(vS+16*t,16)}, {vr(FR[x%6]+4*f,4)}, {vr(vQ+4*f,4)}, " + (vr(vS+16*t, 16) if f else "0"))
            g.lab(f"LB_w{t}")
            if x == 4: merge()
            if x >= 5: mx(ORD[x-4])
        else:
            for f in range(2):
                g.need([('K', x, f), ('Q', f)])
                c = vr(vS+16*t, 16) if f == 1 else "0"
                e(f"{MF32} {vr(vS+16*t,16)}, {vr(FR[x%6]+4*f,4)}, {vr(vQ+4*f,4)}, {c}")
                if x == 4 and f == 1: merge()
                if x >= 5: mx(ORD[x-4], f)
        if x + 6 < 9: kread(x+6)
        else: vread(x-3)
        event(x)
e(f"s_cmp_eq_u32 s{sRB}, 0"); e("s_cbranch_scc1 LB_s0")
sv = g.L; g.L = g.tail; g.lab("LB_s0"); s_phase(True); e("s_branch LB_sdone"); g.L = sv
s_phase(False)
g.lab("LB_sdone")
for x in range(5, 9): mx(ORD[x])
stamp('sph')
e(f"v_max_f32 v{vM}, v{vM}, v{vM+1}"); e(f"v_mov_b32 v{vM+1}, v{vM}"); e("s_nop 1")
e(f"v_permlane32_swap_b32 v{vM}, v{vM+1}"); e(f"v_max_f32 v{vM}, v{vM}, v{vM+1}")
CC = 32 ** -0.5 * LOG2E
e(f"s_mov_b32 s{sK}, {f32(CC)}"); e(f"s_mov_b32 s{sK+1}, {f32(CC)}")
e(f"v_mul_f32 v{vM}, {f32(-CC)}, v{vM}"); e(f"v_mov_b32 v{vM+1}, v{vM}")
vO = vS + 8
def pbase(t): return vS if t == 0 else vS + 16*t + 8
def soft(t, mid=None, mid2=None):
    b = vS + 16*t
    if OPT['aprio'] == 3:
        if t in (8, 2, 4, 6): yprio(t)
        else: e("s_setprio 0")
    if OPT['aprio'] == 4 and t == 3: yprio(t)
    for r in range(0, 16, 2): e(f"v_pk_fma_f32 {vr(b+r,2)}, {vr(b+r,2)}, {sr(sK,2)}, {vr(vM,2)}")
    if mid: mid()
    for r in range(16):
        e(f"v_exp_f32 v{b+r}, v{b+r}")
        if r == 7 and mid2: mid2()
    for r in range(0, 16, 2):
        s = vSUM + 2*((r >> 1) & 1)
        if t == 8 and r < 4: e(f"v_pk_add_f32 {vr(s,2)}, {vr(b+r,2)}, {vr(b+r+4,2)}")
        elif t == 8 and r < 8: pass
        else: e(f"v_pk_add_f32 {vr(s,2)}, {vr(s,2)}, {vr(b+r,2)}")
    if t == 8:
        masked("v_swap_b32")
        for r in range(8): e(f"v_cvt_pk_bf16_f32 v{vS+r}, v{vS+2*r}, v{vS+2*r+1}")
    for r in range(7, -1, -1): e(f"v_cvt_pk_bf16_f32 v{b+8+r}, v{b+2*r}, v{b+2*r+1}")
def pv(x, fs=(0, 1)):
    t = ORD[x]
    for f in fs:
        g.need([('V', x, f)])
        e(f"{MF32} {vr(vO,16)}, {vr(FR[(x+3)%6]+4*f,4)}, {vr(pbase(t)+4*f,4)}, " + ("0" if (x == 0 and f == 0) else vr(vO, 16)))
    if x + 6 < 9 and 1 in fs: vread(x+6)
if OPT['aprio'] == 2: yprio(1)
event(9); soft(8); event(10); soft(1); e("s_nop 0"); pv(0); pv(1)
for t in range(2, 8):
    event(9+t)
    if OPT['pvs']: soft(t, lambda: pv(t, (0,)), lambda: pv(t, (1,)))
    else: soft(t, lambda: pv(t))
e("s_nop 1"); pv(8)
e(f"v_pk_add_f32 {vr(vSUM,2)}, {vr(vSUM,2)}, {vr(vSUM+2,2)}"); e(f"v_add_f32 v{vSUM}, v{vSUM}, v{vSUM+1}")
e(f"v_mov_b32 v{vSUM+1}, v{vSUM}"); e("s_nop 1"); e(f"v_permlane32_swap_b32 v{vSUM}, v{vSUM+1}")
e(f"v_add_f32 v{vSUM}, v{vSUM}, v{vSUM+1}"); e(f"v_rcp_f32 v{vSUM}, v{vSUM}")
e(f"s_lshl_b32 s{sT}, s{sRB}, 4"); e(f"s_lshl_b32 s{sT+1}, s{sW}, 1"); e(f"s_add_u32 s{sT}, s{sT}, s{sT+1}")
e(f"s_lshl_b32 s{sT+1}, s{cNT}, 10"); e(f"s_add_u32 s{sT+1}, s{sT+1}, s{cAK}"); e(f"s_add_u32 s{sT+1}, s{sT+1}, {56*512}")
if OPT['aprio']: e("s_setprio 0")
stamp('pv')
if OPT['aearly']: e(f"s_cmp_eq_u32 s{sOK+1}, 1"); e("s_cbranch_scc1 LC_haveA")
e("s_waitcnt vmcnt(0)"); tsL(); e("s_cbranch_scc0 LC_slowH")
g.lab("LC_goH")
g.v = []
for k in range(4): c_aload(0, k)
g.lab("LC_haveA")
assert not OPT['aearly'] or (max(OPT['dpos'][:NPRE]) <= OPT['hq2'] and OPT['hq'] <= OPT['hq2'] + 2 and len(OPT['hpos']) <= 4)
for r in range(16): e(f"v_mul_f32 v{vO+r}, v{vO+r}, v{vSUM}")
for r in range(8): e(f"v_cvt_pk_bf16_f32 v{vO+8+7-r}, v{vO+14-2*r}, v{vO+15-2*r}")
dstore([f"buffer_store_dwordx4 {vr(vO+8+4*f,4)}, v{vOA}, {sr(sWS,4)}, s{sT+1} offen offset:{f*512}" for f in range(2)])
stamp('attn')
g.v += ['st', 'st']
e(f"v_bfe_u32 v{vT}, v{L}, 2, 3"); e(f"v_lshrrev_b32 v{vT+1}, 5, v{L}"); e(f"v_lshl_add_u32 v{vT+1}, v{vT+1}, 4, v{vT}")
e(f"v_lshlrev_b32 v{vT+1}, 8, v{vT+1}"); e(f"v_lshl_add_u32 v{vT+1}, v{vT}, 5, v{vT+1}")
e(f"v_and_b32 v{vT}, 3, v{L}"); e(f"v_lshl_add_u32 v{vT+1}, v{vT}, 3, v{vT+1}")
e(f"s_lshl_b32 s{sT}, s{cQ}, 6"); e(f"v_xor_b32 v{vT+1}, s{sT}, v{vT+1}"); e(f"v_add_u32 v{cvRA}, {CRING}, v{vT+1}")
for u in range(1, 8): e(f"v_xor_b32 v{cvRA+u}, {32*u}, v{cvRA}")
for p in range(1, OPT['apre']):
    for k in range(4): c_aload(p, k)
e("s_barrier")
VERS = {}
for q in range(4):
    b_ = OPT['bal'].get(q, [])
    hs = [(0, k) for k in range(14 + b_)] if isinstance(b_, int) else [(0, k) for k in range(14)] + [(qq - q, st) for qq, st in b_]
    VERS.setdefault(tuple(hs), []).append(q)
cov = sorted((q + dq, st) for hs, qs in VERS.items() for q in qs for dq, st in hs)
assert cov == [(q, st) for q in range(4) for st in range(14)], cov
VL = list(VERS.items())
for V, (hs, qs) in enumerate(VL[1:], 1):
    for q in qs: e(f"s_cmp_eq_u32 s{cQ}, {q}"); e(f"s_cbranch_scc1 LC_ver{V}")
V0 = list(g.v); CUR0 = dict(CUR)
for V, (hs, qs) in enumerate(VL):
    HS = list(hs); NH = len(HS); NS = NH + 4; NOWN = min(NH, 14); g.v = list(V0); CUR.update(CUR0)
    g.lab(f"LC_ver{V}")
    SEQ = []
    for s in range(NH):
        for ku in range(2):
            us = list(range(8)) if not (s == NH-1 and ku == 1) else [4,5,6,7,0,1,2,3]
            SEQ += [(s, ku, u, (0, 1)) for u in us]
    I1 = len(SEQ)
    SEQ += [(s, ku, u, (0, 1)) for s in range(NH, NS) for ku in range(2) for u in range(4, 8)]
    I2 = len(SEQ)
    SEQ += [(s, ku, u, (0, 1)) for s in range(NH, NS) for ku in range(2) for u in (2, 3)]
    I3 = len(SEQ)
    SEQ += [(s, ku, u, (0, 1)) for s in range(NH, NS) for ku in range(2) for u in (0, 1)]
    if OPT['csn']: SEQ = [(s, ku, u, m[::-1] if (i & 1) else m) for i, (s, ku, u, m) in enumerate(SEQ)]
    def wread(i):
        if i >= len(SEQ): return
        s, ku, u, _ = SEQ[i]
        for tr in range(2):
            g.lds(f"ds_read_b64_tr_b16 {vr(cvWF+4*(i&7)+2*tr,2)}, v{cvRA+u} offset:{(s%4)*16384+ku*8192+tr*2048}", ('W', i & 7))
    g.q = []
    for i in range(7): wread(i)
    stamp('loopC')
    cRD = 48
    cvO32, cvRF, cvOUT, cvG = 22, 23, 24, 25
    cRV = cvACC + 32
    def ldO(): e(f"buffer_load_dword v{cvPL}, v{cvO32}, {sr(sWS,4)}, s54 offen offset:{FL_O} sc1")
    def ldR(): e(f"buffer_load_dword v{cvPL}, v{cvRF}, {sr(sWS,4)}, s{sT+6} offen offset:{FL_P} sc1")
    def ldR2(): e(f"buffer_load_dword v{cvPL}, off, {sr(sWS,4)}, s{sT+5} offset:{FL_P2} sc1")
    def rloads(ii):
        for i in ii:
            e(f"s_add_u32 s{sT}, s{cRD+3}, {i*16384}")
            for f in range(2): e(f"buffer_load_dwordx4 {vr(cRV+8*(i-1)+4*f,4)}, v{vL16}, {sr(sWS,4)}, s{sT} offen offset:{f*1024} sc1")
    t0, t1 = vT, vT+1
    fill = {s: [] for s in range(NS)}
    fill[1] = [[x] for x in (
        f"v_and_b32 v{cvO32}, 31, v{L}", f"v_lshlrev_b32 v{cvO32}, 9, v{cvO32}", f"s_lshl_b32 s54, s{sRB}, 14", f"s_add_u32 s54, s54, {WS_FL:#x}",
        f"v_and_b32 v{t0}, 3, v{L}", f"v_max_u32 v{t0}, 1, v{t0}", f"v_lshlrev_b32 v{t1}, 1, v{t0}", f"v_and_b32 v{t1}, 4, v{t1}", f"v_xor_b32 v{t1}, 4, v{t1}",
        f"v_lshlrev_b32 v{t0}, 3, v{t0}", f"v_xor_b32 v{t0}, s{sLAM}, v{t0}", f"v_lshl_add_u32 v{cvRF}, v{t0}, 9, v{t1}",
        f"s_mov_b32 s{sT+6}, {WS_FL:#x}", f"s_mov_b32 s{sDN}, 0", f"s_mov_b32 s{sOK+1}, 0")]
    fill[2] = [[x] for x in (
        f"s_lshl_b32 s{sT}, s{sRB}, 3", f"s_add_u32 s{sT}, s{sT}, s{cNT}", f"s_lshl_b32 s{sT}, s{sT}, 18", f"s_lshl_b32 s{sT+1}, s{sW}, 11", f"s_add_u32 s{sT}, s{sT}, s{sT+1}", f"s_add_u32 s{sT}, s{sT}, {WS_PART:#x}")]
    for i in (1, 2, 3):
        fill[2] += [[x] for x in (f"s_xor_b32 s{sT+1}, s{cQ}, {i}", f"s_lshl_b32 s{sT+1}, s{sT+1}, 16", f"s_add_u32 s{sT+1}, s{sT+1}, s{sT}", f"s_add_u32 s{cRD+i-1}, s{sT+1}, {i*16384}")]
    fill[2] += [[x] for x in (f"s_lshl_b32 s{sT+1}, s{cQ}, 16", f"s_add_u32 s{cRD+3}, s{sT+1}, s{sT}",
        f"s_lshl_b32 s{sT}, s{sRB}, 19", f"s_lshl_b32 s{sT+1}, s{sW}, 16", f"s_add_u32 s{sT}, s{sT}, s{sT+1}",
        f"s_lshl_b32 s{sT+1}, s{cNT}, 8", f"s_add_u32 s{sT}, s{sT}, s{sT+1}", f"s_lshl_b32 s{sT+1}, s{cQ}, 6",
        f"s_add_u32 s{cRD+4}, s{sT}, s{sT+1}", f"s_add_u32 s39, s{cRD+4}, 32768",
        f"v_and_b32 v{cvOUT}, 15, v{L}", f"v_lshlrev_b32 v{cvOUT}, 11, v{cvOUT}", f"v_bfe_u32 v{t0}, v{L}, 4, 1", f"v_lshl_add_u32 v{cvOUT}, v{t0}, 5, v{cvOUT}",
        f"v_lshrrev_b32 v{t0}, 5, v{L}", f"v_lshl_add_u32 v{cvOUT}, v{t0}, 4, v{cvOUT}")]
    send = {1: [], 2: [], 3: []}
    for i in (1, 2, 3):
        d = cvPT + 8*(i-1)
        for k in range(4):
            a = cvACC + 16*i + 4*k
            send[i] += [[f"v_cvt_pk_bf16_f32 v{d+2*k}, v{a}, v{a+1}", f"v_cvt_pk_bf16_f32 v{d+2*k+1}, v{a+2}, v{a+3}"]]
            if k & 1: send[i] += [[f"@{'T' if i == 1 else 'S'} buffer_store_dwordx4 {vr(d+4*(k>>1),4)}, v{vL16}, {sr(sWS,4)}, s{cRD+i-1} offen offset:{(k>>1)*1024} sc1"]]
    pa = [(s, k) for s in range(OPT['apre'], NS) for k in range(4)]
    pd = [(s, k) for s in range(NPRE, NS) for k in range(2)]
    cvG2 = 128
    cvGc = 130
    def gload():
        e(f"v_and_b32 v{t0}, 7, v{L}"); e(f"v_bfe_u32 v{t1}, v{L}, 3, 1"); e(f"v_lshlrev_b32 v{t1}, 9, v{t1}"); e(f"v_lshl_add_u32 v{t0}, v{t0}, 2, v{t1}")
        e(f"s_lshl_b32 s{sT}, s{sW}, 11"); e(f"s_add_u32 s{sT}, s{sT}, s54")
        for k in range(2): g.vm(f"buffer_load_dword v{cvG2+k}, v{t0}, {sr(sWS,4)}, s{sT} offen offset:{1024*k} sc1", 'gv')
    fill[NH-1] = [["@G"]]
    for k in range(2):
        r = cvG2 + k
        fill[NH-1] += [[f"v_max_f32 v{cvGc+k}, {f32(2.0**-60)}, v{r}"], [f"v_sub_f32 v{r}, 1.0, v{r}"], [f"v_cvt_pk_bf16_f32 v{r}, v{r}, v{r}"], [f"v_and_b32 v{r}, 0xffff0000, v{r}"],
                       [f"v_rcp_f32 v{t0}, v{cvGc+k}", "s_nop 0"], [f"v_mul_f32 v{r}, v{r}, v{t0}"]]
    def rescale(u, mf):
        a = cvACC + 8*u + 4*mf
        if OPT['dbg'] & 2:
            for r in range(4): e(f"v_mul_f32 v{a+r}, v{a+r}, v{cvG2+mf}")
            return
        for r in (0, 2): e(f"v_pk_mul_f32 {vr(a+r,2)}, {vr(a+r,2)}, {vr(cvG2,2)} op_sel:[0,{mf}] op_sel_hi:[1,{mf}]")
    WIN = [[16, 31, fill[1]], [32, 47, fill[2]], [16*(NH-1), 16*(NH-1)+11, fill[NH-1]], [I2+1, I2+8, send[2]+send[3]], [I3+1, I3+4, send[1]]]
    for w in WIN: w.append(len(w[2]))
    vis = 0; freed = -1
    def nafter(tag): return min(15, len(g.v) - 1 - max(i for i, t in enumerate(g.v) if t == tag)) if tag in g.v else min(15, len(g.v))
    for i, (s, ku, u, mfs) in enumerate(SEQ):
        if i == I1: stamp('endH')
        if i == I3: stamp('p3')
        cur = min(s, NH) if i >= I1 else s
        for idx, mf in enumerate(mfs):
            k = 2*ku + mf; a = cvACC + 8*u + 4*mf
            g.need([('W', i & 7)], [('a', s, k)])
            e(f"{MF16} {vr(a,4)}, {vr(cvWF+4*(i&7),4)}, {vr(cvAR+16*((s+1)%D)+4*k,4)}, " + ("0" if i < 8 else vr(a,4)))
            if I1 - 4 <= i < I1 + 4: rescale(SEQ[i-4][2], mf)
            if idx == 0:
                if i + 7 < len(SEQ) and SEQ[i+7][0] > vis:
                    vis = SEQ[i+7][0]
                    g.need([('W', k) for k in range(8)] if vis <= NH else [], [('d', vis)] + (['st'] if vis == 2 else [])); e("s_barrier")
                    if vis == 2:
                        e(f"s_cmp_lg_u32 s{sW}, 0"); e(f"s_cbranch_scc1 LC_nof1{V}")
                        one_lane(lambda: e(f"buffer_store_dword v{vCN}, off, {sr(sWS,4)}, s{sT+7} offset:{FL_O} sc1"))
                        g.lab(f"LC_nof1{V}")
                wread(i+7)
                nxt = None
                if i % 2 == 0 or i >= I1:
                    okd = pd and pd[0][0] <= (vis + 3 if pd[0][0] == NS-1 else cur + 3); oka = pa and pa[0][0] <= cur + D - 1
                    if okd and (not oka or pd[0][0] <= pa[0][0] and (i % 16 % 6 == 2 or pd[0][0] < pa[0][0])): nxt = 'd'
                    elif oka: nxt = 'a'
                    if nxt == 'd' and pd[0][1] == 0: c_m0(pd[0][0])
            for lo, hi, fl, n0 in WIN:
                if lo <= i <= hi:
                    frac = (i - lo + (idx+1)/len(mfs)) / (hi - lo + 1)
                    while fl and (n0 - len(fl)) < n0 * frac - 1e-9:
                        for x in fl.pop(0):
                            if x.startswith("@S "): g.vm(x[3:], 'snd')
                            elif x.startswith("@T "): g.vm(x[3:], 'snd2')
                            elif x == "@G": g.need([], ['gv'])
                            else: e(x)
            if idx == len(mfs) - 1:
                if nxt == 'd': c_dma(*pd.pop(0))
                elif nxt == 'a':
                    if pa[0] == (NOWN, 0):
                        g.need([], ['opoll']); tsL(); e(f"s_cbranch_scc0 LC_slowO{V}"); g.lab(f"LC_goO{V}"); gload()
                    c_aload(*pa.pop(0))
                if i == 16*(NOWN - D - 1) + 1: ldO(); g.v.append('opoll')
                if i >= I2 + 11 and (i - I2) % 4 == 3: trysig(nafter('snd'), CNT2+4, 0, FL_P, force=(i == len(SEQ)-1))
                if i >= I3 + 9 and (i - I3) % 4 == 1: trysig(nafter('snd2'), CNT2+8, 0, FL_P2, sDN=sOK+1)
                if i == I3 + OPT['rp']: ldR(); g.v.append('rpoll')
    assert not pa and not pd and not any(w[2] for w in WIN)
    if V < len(VL) - 1: e("s_branch LC_done")
    sv = g.L; g.L = g.tail
    g.lab(f"LC_slowO{V}"); spin(f"LC_spinO{V}", ldO, tsL, sT+3); e(f"s_branch LC_goO{V}")
    g.L = sv
g.lab("LC_done")
sv = g.L; g.L = g.tail
g.lab("LC_slowH"); spin("LC_spinH", ldH, tsL, sT+3); e("s_branch LC_goH")
g.L = sv
stamp('endC')
trysig(nafter('snd2'), CNT2+8, 0, FL_P2, force=True, sDN=sOK+1)
e(f"s_mov_b32 s{sT+5}, 1"); e(f"s_mov_b32 s{sT+3}, {SPIN:#x}")
e(f"v_mov_b32 v{vT+4}, 0x3f80"); e(f"v_mov_b32 v{vT+5}, 0x3f800000")
g.lab("LC_rl")
e("s_waitcnt vmcnt(0)"); e(f"v_cmp_eq_u32 vcc, 1, v{cvPL}"); e(f"s_sub_u32 s{sT+3}, s{sT+3}, 1"); e(f"s_cselect_b32 s{sT+1}, 15, 0")
e(f"s_or_b32 s{sT+1}, s{sT+1}, vcc_lo"); e(f"s_andn2_b32 s{sT+1}, s{sT+1}, s{sT+5}"); e(f"s_and_b32 s{sT+1}, s{sT+1}, 15"); e(f"s_or_b32 s{sT+5}, s{sT+5}, s{sT+1}")
for i in (1, 2, 3):
    e(f"s_bitcmp1_b32 s{sT+1}, {i}"); e(f"s_cbranch_scc0 LC_rn{i}"); rloads((i,)); g.lab(f"LC_rn{i}")
e(f"s_cmp_eq_u32 s{sT+5}, 15"); e("s_cbranch_scc1 LC_rd")
if OPT['rsl']: e(f"s_sleep {OPT['rsl']}")
ldR(); e("s_branch LC_rl")
g.lab("LC_rd")
e("s_waitcnt vmcnt(0)")
for i in (2, 3, 1):
    d = cRV + 8*(i-1)
    for r in range(16): e(f"v_dot2_f32_bf16 v{cvACC+r}, v{d+(r>>1)}, v{vT+4+(r&1)}, v{cvACC+r}")
e("s_nop 2")
for mf in range(2):
    x = cvACC + 4*mf; y = x + 8; d = cvPT + 24 + 4*mf
    for r in range(4): e(f"v_mul_f32 v{x+r}, v{cvGc+mf}, v{x+r}"); e(f"v_mul_f32 v{y+r}, v{cvGc+mf}, v{y+r}")
    e(f"v_cvt_pk_bf16_f32 v{d}, v{x}, v{x+1}"); e(f"v_cvt_pk_bf16_f32 v{d+1}, v{x+2}, v{x+3}")
    e(f"v_cvt_pk_bf16_f32 v{d+2}, v{y}, v{y+1}"); e(f"v_cvt_pk_bf16_f32 v{d+3}, v{y+2}, v{y+3}")
    e("s_nop 1")
    e(f"v_permlane16_swap_b32 v{d}, v{d+2}"); e(f"v_permlane16_swap_b32 v{d+1}, v{d+3}")
    e(f"buffer_store_dwordx4 {vr(d,4)}, v{cvOUT}, {sr(cOUT,4)}, s{cRD+4 if mf == 0 else 39} offen {OPT['ost']}")
g.lab("LC_fin")
stamp('fin')
if OPT['stamp']:
    e(f"s_lshl_b32 s{sT}, s2, 3"); e(f"s_add_u32 s{sT}, s{sT}, s{sW}"); e(f"s_lshl_b32 s{sT}, s{sT}, 7"); e(f"s_add_u32 s{sT}, s{sT}, {WS_STAMP:#x}")
    e(f"v_lshlrev_b32 v{vT}, 2, v{L}"); e("s_mov_b32 exec_hi, 0")
    e(f"buffer_store_dword v0, v{vT}, {sr(sWS,4)}, s{sT} offen")
    if OPT['stamp'] == 2:
        e(f"v_readlane_b32 s{sT}, v0, 16"); e(f"s_not_b32 s{sT}, s{sT}"); e(f"v_writelane_b32 v0, s{sT}, 16")
        e(f"v_subrev_u32 v{vT}, 60, v{vT}"); e(f"s_mov_b32 exec_lo, {((1<<len(SN))-1)<<16:#x}")
        e(f"buffer_atomic_umax v0, v{vT}, {sr(sDBG,4)}, 0 offen sc1")
g.lab("L_end")
e("s_endpgm")
g.L += g.tail + g.tail2 + ['LZ_end:']
if OPT['nobar'] or OPT['nodma'] or OPT['nolds'] or OPT['noadv']:
    o = []; inl = False
    for l in g.L:
        if l.startswith('LA_loop') or l.startswith('LC_loop'): inl = True
        if 'LA_h1_' in l or l.startswith('LC_done'): inl = False
        if inl and OPT['nobar'] and 's_barrier' in l: continue
        if inl and OPT['nodma'] and 'buffer_load' in l: continue
        if inl and OPT['nolds'] and 'ds_read' in l: continue
        if inl and OPT['noadv'] and any(f's_add_u32 s{k}, s{k},' in l for k in list(range(sOW, sOW+5)) + [sKX]): continue
        o.append(l)
    g.L = o

hdr = [l.rstrip('\n') for l in open("cdna_kernels/%s.s.ref" % NAME)]
hdr = [l for l in hdr if l.startswith(';') and '@launch' not in l]
out = hdr + [f"; @launch grid=(256,1,1) block=(512,1,1) lds={LDS_BYTES}", '.amdgcn_target "amdgcn-amd-amdhsa--gfx950"', ".text"] + g.L
out += ['.section .rodata,"a"', ".p2align 6", f""".amdhsa_kernel {KN}
  .amdhsa_next_free_vgpr 256
  .amdhsa_next_free_sgpr 102
  .amdhsa_accum_offset 256
  .amdhsa_group_segment_fixed_size 0
  .amdhsa_kernarg_size 88
  .amdhsa_user_sgpr_count 2
  .amdhsa_user_sgpr_kernarg_segment_ptr 1
  .amdhsa_system_sgpr_workgroup_id_x 1
.end_amdhsa_kernel"""]
out.insert(0, "; stamps: " + ",".join(SN)) if OPT['stamp'] else None
open(sys.argv[1], "w").write("\n".join(out) + "\n")
import hazard
errs = hazard.check("\n".join(g.L))
print("\n".join(errs) if errs else "hazard check clean")
```

```python
import sys, struct
NAME = "gated_mix__sliding_block__swiglu_ffn__prompt"
KN = NAME + "_kernel"
OPT = dict(stamp=0, NP=16, jbx=5, xrd=[0,0,1,1], xpos=[2,4,6,8], wpos=[1,3,5,7,9], pfpos=19, stag=0, PD=3, pf=1, CB=1, defer=0, slp=2, touch=0, pfnt=0, wnt=0, bprio=0, amap=3, fast=0, D=4, npre=3, apre=1, hpos=[0,2,4,6], dpos=[10,11,12,13], fr=5, hx=0, fnt=1, cpf=3, cpf0=1, aprio=3, pvs=1, w1=2, csn=1, kq=34, rp=15, rsl=1, ginc=1, astag=1, pst=0, w1e=1, perr=0, pscale=0, bal={0:[(1,13)],2:[(3,13)],3:-1,1:-1}, tlb=0, aearly=1, hq2=13, xfl='', wfl='', cfl='', ost='', h0=2, nopk=0, pf2=0, wdst=4, wdn=24, otail=0, gl=2, p3=0, rc=24, dbg=2, hq=15, early1=2, snake=1, tst=0, wshift=0, noadv=0, aflag='sc1', kvfast=0, rfast=0, pfast=1, wb=0, pre=0, cmap=1, m16=288*512, c3=0, kvs1=1, cprio=0, AB=0,
           noX=0, noW=0, noA=0, noW2=0, prio=0, kvs=2, nobar=0, nodma=0, nolds=0)
for a in sys.argv[2:]:
    k, v = a.split('='); assert k in OPT, k
    OPT[k] = eval(v)
def f32(x): return "0x%08x" % struct.unpack('<I', struct.pack('<f', x))[0]
def vr(a, n=1): return f"v[{a}:{a+n-1}]" if n > 1 else f"v{a}"
def sr(a, n=1): return f"s[{a}:{a+n-1}]" if n > 1 else f"s{a}"
NV = [0]
class Gen:
    def __init__(s): s.L = []; s.q = []; s.v = []; s.tail = []; s.tail2 = []
    def e(s, t): s.L.append("    " + t)
    def lab(s, t): s.L.append(t + ":")
    def lds(s, t, tag): s.e(t); s.q.append(tag)
    def vm(s, t, tag): s.e(t); s.v.append(tag); NV[0] += 1
    def need(s, tags=(), vt=()):
        w = []
        idx = [i for i, t in enumerate(s.v) if t in vt]
        if idx:
            n = len(s.v) - 1 - max(idx); s.v = s.v[max(idx)+1:]; assert n < 64
            w.append(f"vmcnt({n})")
        idx = [i for i, t in enumerate(s.q) if t in tags]
        if idx:
            n = len(s.q) - 1 - max(idx); s.q = s.q[max(idx)+1:]
            w.append(f"lgkmcnt({min(n,15)})")
        if w: s.e("s_waitcnt " + " ".join(w))
    def steady(s, body):
        sv = s.L; s.L = []; s.q = []; s.v = []
        body(); body(); r = (list(s.q), list(s.v)); s.L = sv
        return r
g = Gen(); e = g.e
M16 = OPT['m16']; A_BYTES = 128*M16
WS_KV = 0x1400000; WS_PART = 0x1C00000; WS_G = 0x2C00000; WS_FL = 0x2C10000; WS_STAMP = 0x3000000; WS_SIZE = 0x4000000
FL_KV, FL_H, FL_O, FL_P, FL_P2 = 128, 256, 260, 384, 388
sFAST = 34+1
LOG2E = 1.4426950408889634
SPIN = 0x8000
MF16 = "v_mfma_f32_16x16x32_bf16"; MF32 = "v_mfma_f32_32x32x16_bf16"
sW, sRB, sH, sMW, sNW = 3, 4, 5, 6, 7
sX, sA, sB, sQ, sWS, sDBG, sPF = 8, 12, 16, 20, 24, 28, 32
sKX, sOW, sMWd, sINCA, sMX, sCNT, sKXE, sPFO, sPFI, sLAM, sOK, sGO = 36, 37, 42, 47, 48, 49, 50, 51, 52, 53, 54, 55
sT = 56; sP = 64; sST = 86
pX, pQKV, pWO, pWG, pWU, pWD, pGW, pOUT, pDBG, pWSp = sP, sP+2, sP+4, sP+8, sP+10, sP+12, sP+14, sP+16, sP+18, sP+20
sFAST = 101
sK = sP+6
vL, vL16, vPF, vDX, vDA, vDB, vXR, vWG, vWQ, vDUM, vCN, vGV, vT = 1, 2, 3, 4, 8, 9, 10, 12, 14, 18, 19, 20, 26
vWF, vXF, vACC = 44, 64, 96
L = vL
def ACC(j, i): return vACC + (4*j+i)*4
XSLOT = 32768; WBASE = 65536; HALF = 20480; WSLOT = 2*HALF; GOFF = 6144; UOFF = 6144+7168
LDS_BYTES = 163840; QLDS = 147456; QLDS3 = 92160; CNTLDS = 163832; CNT2 = 96256; GLDS = 163776; sGW = 96
UNITS = [['q0','q1','k0','k1','g0','u0','g1','u1','g2','u2'], ['v0','v1','g3','u3','g4','u4','g5','u5','g6','u6']]
def srd(d, p, size):
    e(f"s_mov_b32 s{d}, s{p}"); e(f"s_and_b32 s{d+1}, s{p+1}, 0xffff"); e(f"s_mov_b32 s{d+2}, {size:#x}"); e(f"s_mov_b32 s{d+3}, 0x20000")
SN = ['start','loopA','endA','ks','hdone','kvok','bar2','sph','hs','pv','attn','loopC','endH','rs','endC','fin']
SN = ['start','loopA','ks','endA','hdone','kvok','bar2','sph','hs','pv','loopC','endH','rs','endC','rs2','fin']
if OPT['pst']: SN = ['start','karg','x0','w0','setup','w1','land','bar','loopA','fin']
if OPT['tst']: SN = ['start','loopA'] + [f't{i}' for i in range(7)] + ['endA', 'fin']
def stamp(name):
    if OPT['tst'] and name not in ('loopA', 'endA', 'fin'): return
    if name not in SN: return
    idx = SN.index(name); assert idx < 16
    if not OPT['stamp']: return
    e(f"s_memtime s[{sST}:{sST+1}]"); e(f"s_memrealtime s[{sST+2}:{sST+3}]"); e("s_waitcnt lgkmcnt(0)")
    e(f"v_writelane_b32 v0, s{sST}, {idx}"); e(f"v_writelane_b32 v0, s{sST+2}, {idx+16}")
def pstamp(k):
    if OPT['stamp']: e(f"s_memtime s[{92+2*k}:{93+2*k}]")
NDS = [0]
def dstore(lines, on=True):
    if True:
        for l in lines: e(l + " sc1")
        return
    k = NDS[0]; NDS[0] += 1
    e(f"s_cmp_eq_u32 s{sFAST}, 1"); e(f"s_cbranch_scc0 LS_s{k}")
    for l in lines: e(l)
    g.lab(f"LS_r{k}")
    g.tail2 += [f"LS_s{k}:"] + ["    " + l + " sc1" for l in lines] + [f"    s_branch LS_r{k}"]
def one_lane(f):
    e("s_mov_b64 exec, 1"); f(); e("s_mov_b64 exec, -1")

def a_wread(nw, n, tj=None):
    n %= 40; t = n // 10; j = n % 10
    if tj: t, j = tj
    sig = (t+1) >> 1; half = (t+1) & 1; slot = sig & 1; un = UNITS[nw][j]
    for tr in range(2):
        if un[0] in 'qkv':
            a = vWQ + 2*slot + int(un[1]); off = half*HALF + 'qkv'.index(un[0])*2048 + tr*512
        else:
            a = vWG + slot; off = half*HALF + (GOFF if un[0] == 'g' else UOFF) + tr*1792 + int(un[1])*32
        g.lds(f"ds_read_b64_tr_b16 {vr(vWF+4*(n%5)+2*tr,2)}, v{a} offset:{off}", ('W', n % 5))
def a_xread(i, t):
    t %= 4
    g.lds(f"ds_read_b128 {vr(vXF+16*(t&1)+4*i,4)}, v{vXR+(t&1)} offset:{(t>>1)*XSLOT+i*2048}", ('X', t & 1, i))
def a_m0(k, n, slot):
    if k == 'x': e(f"s_add_u32 m0, s{sMX}, {slot*XSLOT}")
    elif k == 'w': e(f"s_add_u32 m0, s{sMWd+n}, {slot*WSLOT}")
def a_op(k, n, slot, first=False):
    if k == 'x':
        g.vm(f"buffer_load_dwordx4 v{vDX+n}, {sr(sX,4)}, s{sKX} offen offset:{1024*n} {OPT['xfl']} lds", ('x', slot, n))
        if n == 3:
            e(f"s_add_u32 s{sKX}, s{sKX}, 128")
    elif k == 'w':
        d = [sA, sA, sB, sB, sQ][n]; v = vDA if n < 4 else vDB
        if first: e(f"s_cmp_lt_i32 s{sOW+n}, 0"); e(f"s_cbranch_scc1 LA_skipw{n}")
        g.vm(f"buffer_load_dwordx4 v{v}, {sr(d,4)}, s{sOW+n} offen" + (" nt" if (OPT['wnt'] & 1 or (first and OPT['fnt'])) else "") + f" {OPT['wfl']} lds", ('w', slot, n))
        if first: g.lab(f"LA_skipw{n}")
        e(f"s_add_u32 s{sOW+n}, s{sOW+n}, " + (f"s{sINCA}" if n < 4 else f"{64*6144}"))
    else:
        g.vm(f"buffer_load_dword v{vDUM}, v{vPF}, {sr(sPF,4)}, s{sPFO} offen" + (" nt" if OPT['wnt'] & 2 and NWCUR[0] == 0 else ""), ('p', 0, 0))
        e(f"s_add_u32 s{sPFO}, s{sPFO}, s{sPFI}")
def a_full(k, n, slot, first=False):
    a_m0(k, n, slot)
    if not first: e("s_nop 0")
    a_op(k, n, slot, first)
JBW = 6
def a_events(nw):
    ev = {}; st = OPT['stag']*nw
    for t in (1, 3):
        for n, o in enumerate(OPT['xpos']): assert 0 <= o+st < 20; ev.setdefault((t*10+OPT['jbx']+o+st) % 40, []).append(('x', n, t >> 1))
    for t in (0, 2):
        for n, o in enumerate(OPT['wpos']): assert 0 <= o+st < 20; ev.setdefault((t*10+JBW+o+st) % 40, []).append(('w', n, t >> 1))
        if OPT['pf']: ev.setdefault((t*10+JBW+OPT['pfpos']-st) % 40, []).append(('p', 0, 0))
    return ev
NWCUR = [0]
def a_body(nw):
    NWCUR[0] = nw
    ev = a_events(nw)
    for t in range(4):
        for j in range(10):
            n = t*10 + j; un = UNITS[nw][j]; evs = ev.get(n, [])
            for i in range(4):
                i2 = 3-i if (OPT['snake'] and j & 1) else i
                g.need([('W', n % 5), ('X', t & 1, i2)])
                a, b = vr(vWF+4*(n % 5), 4), vr(vXF+16*(t & 1)+4*i2, 4)
                if un[0] == 'v': a, b = b, a
                e(f"{MF16} {vr(ACC(j,i2),4)}, {a}, {b}, {vr(ACC(j,i2),4)}")
                if i == 0:
                    if t % 2 == 0 and j == JBW:
                        g.need([('W', k) for k in range(5)], [('w', 1-(t >> 1), k) for k in range(5)]); e("s_barrier")
                    if t % 2 == 1 and j == OPT['jbx']:
                        g.need([], [('x', 1-(t >> 1), k) for k in range(4)]); e("s_barrier")
                    a_wread(nw, n+4)
                if i == 1:
                    for ii in range(4):
                        if OPT['jbx'] + OPT['xrd'][ii] == j: a_xread(ii, t+1)
                    if evs: a_m0(*evs[0])
                if i == 2 and evs:
                    a_op(*evs[0])
                    for x in evs[1:]: a_full(*x)

def silu(jg, i, t, R):
    G = ACC(jg, i); U = ACC(jg+1, i)
    for r in range(0, 8, 2): e(f"v_pk_mul_f32 {vr(t+r,2)}, {vr(G+r,2)}, {sr(sK,2)}")
    for r in range(8): e(f"v_exp_f32 v{t+r}, v{t+r}")
    for r in range(0, 8, 2): e(f"v_pk_mul_f32 {vr(G+r,2)}, {vr(G+r,2)}, {vr(U+r,2)}")
    for r in range(0, 8, 2): e(f"v_pk_add_f32 {vr(t+r,2)}, {vr(t+r,2)}, s[94:95]")
    for r in range(8): e(f"v_rcp_f32 v{t+r}, v{t+r}")
    e("s_nop 0")
    for r in range(0, 8, 2): e(f"v_pk_mul_f32 {vr(G+r,2)}, {vr(G+r,2)}, {vr(t+r,2)}")
    for r in range(4): e(f"v_cvt_pk_bf16_f32 v{R+r}, v{G+2*r}, v{G+2*r+1}")
    e("s_nop 1")
    e(f"v_permlane32_swap_b32 v{R}, v{R+2}"); e(f"v_permlane32_swap_b32 v{R+1}, v{R+3}")
def pack2(j, i):
    a, b = ACC(j, i), ACC(j+1, i)
    e(f"v_cvt_pk_bf16_f32 v{a}, v{a}, v{a+1}"); e(f"v_cvt_pk_bf16_f32 v{a+1}, v{a+2}, v{a+3}")
    e(f"v_cvt_pk_bf16_f32 v{a+2}, v{b}, v{b+1}"); e(f"v_cvt_pk_bf16_f32 v{a+3}, v{b+2}, v{b+3}")
def spin(name, load, test, cnt):
    e(f"s_mov_b32 s{cnt}, {SPIN:#x}")
    g.lab(name)
    load(); e("s_waitcnt vmcnt(0)"); test()
    e(f"s_cbranch_scc1 {name}_ok")
    e(f"s_sub_u32 s{cnt}, s{cnt}, 1"); e(f"s_cbranch_scc1 {name}_ok")
    e(f"s_sleep {OPT['slp']}"); e(f"s_branch {name}")
    g.lab(name + "_ok")
NSIG = [0]
sDN, sHB, sFO = 100, 92, 101
vSG = 20
def trysig(n, ldsaddr, flagadd, flagoff, force=False, sDN=sDN):
    k = NSIG[0]; NSIG[0] += 1
    if force: e(f"s_cmp_eq_u32 s{sDN}, 0")
    else:
        e(f"s_getreg_b32 s{sFO}, hwreg(HW_REG_IB_STS)"); e(f"s_and_b32 s{sFO}, s{sFO}, 0xc0000f"); e(f"s_or_b32 s{sFO}, s{sFO}, s{sDN}"); e(f"s_cmp_le_u32 s{sFO}, {n}")
    e(f"s_cbranch_scc1 LG_s{k}"); g.lab(f"LG_r{k}")
    g.tail2 += [f"LG_s{k}:"] + ["    " + x for x in (
        f"v_mov_b32 v{vSG}, {ldsaddr}", f"s_mov_b32 s{sDN}, 0x10000", "s_mov_b64 exec, 1", f"s_waitcnt vmcnt({n})",
        f"ds_add_rtn_u32 v{vSG+1}, v{vSG}, v{vCN}", "s_waitcnt lgkmcnt(0)", f"v_readfirstlane_b32 s{sFO}, v{vSG+1}", "s_nop 1",
        f"s_cmp_lg_u32 s{sFO}, 7", f"s_cbranch_scc1 LG_x{k}", f"s_add_u32 s{sFO}, s{sT+7}, {flagadd}",
        f"buffer_store_dword v{vCN}, off, {sr(sWS,4)}, s{sFO} offset:{flagoff} sc1")] + [f"LG_x{k}:", "    s_mov_b64 exec, -1"]
    sv = g.L; g.L = g.tail2; stamp({FL_KV:'ks',FL_H:'hs',FL_P:'rs',FL_P2:'rs2'}[flagoff]); e(f"s_branch LG_r{k}"); g.L = sv
def gate_acc(X, W, t, one):
    return [[f"v_lshlrev_b32 v{t}, 16, v{X}"], [f"v_and_b32 v{t+1}, 0xffff0000, v{X}"], [f"v_lshlrev_b32 v{t+2}, 16, v{W}"],
            [f"v_and_b32 v{t+3}, 0xffff0000, v{W}"], [f"v_pk_mul_f32 {vr(t,2)}, {vr(t,2)}, {vr(t+2,2)}"], [f"v_cvt_pk_bf16_f32 v{t+4}, v{t}, v{t+1}"],
            [f"v_dot2_f32_bf16 v{t+5}, v{t+4}, v{one}, v{t+5}"]]
def gate_list(t, one):
    o = gate_acc(40, 41, t, one) + gate_acc(38, 39, t, one)
    o.append(["s_nop 1"])
    for m in ("quad_perm:[1,0,3,2] row_mask:0xf", "quad_perm:[2,3,0,1] row_mask:0xf", "row_half_mirror row_mask:0xf",
              "row_mirror row_mask:0xf", "row_bcast:15 row_mask:0xa", "row_bcast:31 row_mask:0xc"):
        o.append(["s_nop 1", f"v_add_f32_dpp v{t+5}, v{t+5}, v{t+5} {m} bank_mask:0xf"])
    o += [[f"v_cvt_pk_bf16_f32 v{t}, v{t+5}, v{t+5}", f"v_and_b32 v{t}, 0xffff0000, v{t}"], [f"v_mul_f32 v{t}, {f32(-LOG2E)}, v{t}", f"v_exp_f32 v{t}, v{t}", "s_nop 0"],
          [f"v_add_f32 v{t}, 1.0, v{t}", f"v_rcp_f32 v{t}, v{t}", "s_nop 0"], [f"v_cvt_pk_bf16_f32 v{t}, v{t}, v{t}", f"v_and_b32 v{t}, 0xffff0000, v{t}"],
          [f"s_lshl_b32 s{sT}, s{sW}, 2", f"s_add_u32 s{sT}, s{sT}, {GLDS}", f"v_mov_b32 v{t+1}, s{sT}"],
          ["s_mov_b32 exec_lo, 0", "s_brev_b32 exec_hi, 1", f"ds_write_b32 v{t+1}, v{t}", "s_mov_b64 exec, -1"]]
    return o

D = OPT['D']; NH = 14; OT = OPT['otail']; NT = 8 if OT else 4; NS = NH + NT
cA, cWt, cOUT, cWo, cX = 8, 12, 16, 32, 40
cAK, cWK, cWK2, cQ, cNT, cM0, cAK2 = 20, 21, 22, 23, 36, 37, 38
cvDW, cvA, cvPL, cvDW2, cvPA = 4, 6, 16, 20, 18
cvWF, cvAR, cvRB, cvRA, cvPT, cvOA, cvACC = 28, 60, 124, 136, 144, 176, 192
CRING = 98304
def c_setup():
    e(f"s_lshr_b32 s{cQ}, s{sH}, 3"); e(f"s_and_b32 s{cNT}, s{sH}, 7")
    e(f"s_lshl_b32 s{sT}, s{cNT}, 8")
    e(f"s_lshl_b32 s{cWK}, s{sW}, 14"); e(f"s_add_u32 s{cWK}, s{cWK}, s{sT}")
    e(f"s_lshl_b32 s{cWK2}, s{sW}, {15 if OT else 14}"); e(f"s_add_u32 s{cWK2}, s{cWK2}, s{sT}")
    e(f"s_mul_i32 s{sT}, s{cQ}, {896*2048}"); e(f"s_add_u32 s{cWK}, s{cWK}, s{sT}")
    if OT: e(f"s_lshr_b32 s{sT}, s{cQ}, 1"); e(f"s_lshl_b32 s{sT}, s{sT}, 7")
    else: e(f"s_lshl_b32 s{sT}, s{cQ}, 19")
    e(f"s_add_u32 s{cWK2}, s{cWK2}, s{sT}")
    e(f"s_lshl_b32 s{cM0}, s{sW}, 11"); e(f"s_add_u32 s{cM0}, s{cM0}, {CRING}")
    srd(cWt, pWD, 0 if OPT['noW2'] else 3584*2048); srd(cWo, pWO, 0 if OPT['noW2'] else 1024*2048)
    srd(cA, pWSp, 0 if OPT['noA'] else A_BYTES); srd(cOUT, pOUT, 2048*2048)
    e(f"s_lshl_b32 s{sT}, s{sRB}, 4"); e(f"s_lshl_b32 s{cAK}, s{sW}, 1"); e(f"s_add_u32 s{sT}, s{sT}, s{cAK}")
    e(f"s_mul_i32 s{cAK}, s{sT}, {M16}"); e(f"s_add_u32 s{cAK2}, s{cAK}, {56*512}")
    e(f"s_mul_i32 s{sT}, s{cQ}, {72*512}"); e(f"s_add_u32 s{cAK}, s{cAK}, s{sT}")
    e(f"v_mov_b32 v{cvA}, v{vL16}"); e(f"v_add_u32 v{cvA+1}, {M16}, v{vL16}")
    e(f"v_lshrrev_b32 v{vT}, 4, v{vL}"); e(f"v_bfe_u32 v{vT+1}, v{vL}, 1, 3"); e(f"v_xor_b32 v{vT+1}, v{vT+1}, v{vT}")
    e(f"v_lshlrev_b32 v{vT}, 11, v{vT}"); e(f"v_lshl_add_u32 v{vT}, v{vT+1}, 5, v{vT}")
    e(f"v_and_b32 v{vT+1}, 1, v{vL}"); e(f"v_lshl_add_u32 v{cvDW}, v{vT+1}, 4, v{vT}")
    e(f"v_xor_b32 v{cvDW+1}, 128, v{cvDW}"); e(f"v_add_u32 v{cvDW+1}, 7168, v{cvDW+1}")
    e(f"v_and_b32 v{cvPA}, 7, v{L}"); e(f"v_lshlrev_b32 v{cvPA}, 9, v{cvPA}")
def c_m0(s): e(f"s_add_u32 m0, s{cM0}, {(s % 4)*16384}")
HS = [(0, k) for k in range(14)]
CUR = {'a': 0, 'w': 0}
def c_dma(s, n):
    if s < NH:
        off = (HS[s][0]*896 + HS[s][1]*64)*2048
        if off != CUR['w']: e(f"s_add_u32 s{cWK}, s{cWK}, {(off-CUR['w']) & 0xffffffff:#x}"); CUR['w'] = off
        g.vm(f"buffer_load_dwordx4 v{cvDW+n}, {sr(cWt,4)}, s{cWK} offen offset:{n*1024} lds", ('d', s))
    else:
        g.vm(f"buffer_load_dwordx4 v{cvDW+n}, {sr(cWo,4)}, s{cWK2} offen offset:{n*1024} lds", ('d', s))
        if n == 1: e(f"s_add_u32 s{cWK2}, s{cWK2}, {64*2048}")
def c_aload(s, k):
    ku, mf = k >> 1, k & 1
    off = HS[s][0]*72*512 + HS[s][1]*2048 if s < NH else (14 + s - NH)*2048
    if not (0 <= off - CUR['a'] <= 2048): e(f"s_add_u32 s{cAK}, s{cAK}, {(off-CUR['a']) & 0xffffffff:#x}"); CUR['a'] = off
    g.vm(f"buffer_load_dwordx4 {vr(cvAR+16*((s+1)%D)+4*k,4)}, v{cvA+mf}, {sr(cA,4)}, s{cAK} offen offset:{off-CUR['a']+ku*1024} sc1", ('a', s, k))
def c_wread(s, n):
    s += n // 16; n %= 16
    if s >= NS: return
    for tr in range(2):
        if s < NH or not OT: a, off = cvRA + (n & 7), (n >> 3)*8192 + tr*2048
        else: a, off = cvRB + (n & 3), (n >> 2)*4096 + tr*1024
        g.lds(f"ds_read_b64_tr_b16 {vr(cvWF+4*(n&7)+2*tr,2)}, v{a} offset:{(s%4)*16384+off}", ('W', n & 7))

g.L += [".globl " + KN, ".p2align 8", f".type {KN},@function"]
g.lab(KN)
e("s_cmp_ge_u32 s2, 256"); e("s_cbranch_scc1 L_end")
e(f"s_load_dwordx16 {sr(sP,16)}, s[0:1], 0"); e(f"s_load_dwordx4 {sr(sP+16,4)}, s[0:1], 64"); e(f"s_load_dwordx2 {sr(sP+20,2)}, s[0:1], 80")
if OPT['stamp']: e(f"s_memtime s[{sST+4}:{sST+5}]"); e(f"s_memrealtime s[{sST+6}:{sST+7}]")
if OPT['cpf0']:
    e(f"s_getpc_b64 s[{sT}:{sT+1}]"); g.lab("LA_pc0")
    e(f"s_sub_u32 s{sT}, s{sT}, LA_pc0-{KN}"); e(f"s_subb_u32 s{sT+1}, s{sT+1}, 0")
    e(f"s_lshr_b32 s{sT+2}, s2, 3"); e(f"s_lshl_b32 s{sT+2}, s{sT+2}, 7")
    e(f"v_lshlrev_b32 v26, 12, v0"); e(f"v_add_u32 v26, s{sT+2}, v26")
    e(f"v_cmp_gt_u32 vcc, LZ_end-{KN}-4, v26"); e(f"v_mov_b32 v27, s{sT+1}"); e(f"s_and_saveexec_b64 s[{sT+2}:{sT+3}], vcc"); e("s_cbranch_execz LA_nopc")
    e(f"v_add_co_u32 v26, vcc, s{sT}, v26"); e("s_nop 1"); e(f"v_addc_co_u32 v27, vcc, 0, v27, vcc")
    e(f"global_load_dword v{vDUM}, v[26:27], off")
    g.lab("LA_nopc"); e("s_mov_b64 exec, -1")
e(f"v_lshrrev_b32 v{vT}, 6, v0"); e(f"v_and_b32 v{vL}, 63, v0"); e(f"v_readfirstlane_b32 s{sW}, v{vT}")
if OPT['amap'] == 0:
    e(f"s_lshr_b32 s{sRB}, s2, 5"); e(f"s_and_b32 s{sH}, s2, 7"); e(f"s_lshl_b32 s{sH}, s{sH}, 2")
    e(f"s_bfe_u32 s{sT}, s2, {(2<<16)|3:#x}"); e(f"s_add_u32 s{sH}, s{sH}, s{sT}")
elif OPT['amap'] == 1:
    e(f"s_and_b32 s{sRB}, s2, 7"); e(f"s_lshr_b32 s{sH}, s2, 3")
elif OPT['amap'] == 2:
    e(f"s_and_b32 s{sRB}, s2, 6"); e(f"s_lshr_b32 s{sT}, s2, 7"); e(f"s_add_u32 s{sRB}, s{sRB}, s{sT}")
    e(f"s_and_b32 s{sH}, s2, 1"); e(f"s_lshl_b32 s{sH}, s{sH}, 4"); e(f"s_bfe_u32 s{sT}, s2, {(4<<16)|3:#x}"); e(f"s_add_u32 s{sH}, s{sH}, s{sT}")
if OPT['amap'] == 3:
    e(f"s_and_b32 s{sRB}, s2, 4"); e(f"s_lshr_b32 s{sT}, s2, 6"); e(f"s_add_u32 s{sRB}, s{sRB}, s{sT}")
    e(f"s_and_b32 s{sH}, s2, 3"); e(f"s_lshl_b32 s{sH}, s{sH}, 3"); e(f"s_bfe_u32 s{sT}, s2, {(3<<16)|3:#x}"); e(f"s_add_u32 s{sH}, s{sH}, s{sT}")
e(f"s_and_b32 s{sMW}, s{sW}, 3"); e(f"s_lshr_b32 s{sNW}, s{sW}, 2")
e(f"s_lshl_b32 s{sLAM}, s{sRB}, 5"); e(f"s_add_u32 s{sLAM}, s{sLAM}, s{sH}")
e(f"v_lshlrev_b32 v{vL16}, 4, v{L}")
e(f"v_lshrrev_b32 v{vT}, 3, v{L}"); e(f"v_lshlrev_b32 v{vT}, 11, v{vT}")
e(f"v_lshrrev_b32 v{vT+1}, 4, v{L}"); e(f"v_and_b32 v{vT+2}, 7, v{L}"); e(f"v_xor_b32 v{vT+1}, v{vT+1}, v{vT+2}")
e(f"v_lshl_add_u32 v{vDX}, v{vT+1}, 4, v{vT}"); e(f"v_xor_b32 v{vDX+1}, 64, v{vDX}")
e(f"v_add_u32 v{vDX+2}, {2*15360}, v{vDX}"); e(f"v_add_u32 v{vDX+3}, {3*15360}, v{vDX+1}"); e(f"v_add_u32 v{vDX+1}, 15360, v{vDX+1}")
def swap23(d, s, t):
    e(f"v_and_b32 v{d}, 0x13, v{s}")
    e(f"v_and_b32 v{t}, 4, v{s}"); e(f"v_lshl_or_b32 v{d}, v{t}, 1, v{d}")
    e(f"v_and_b32 v{t}, 8, v{s}"); e(f"v_lshrrev_b32 v{t}, 1, v{t}"); e(f"v_or_b32 v{d}, v{d}, v{t}")
e(f"v_lshrrev_b32 v{vT}, 2, v{L}"); swap23(vT+1, vT, vT+2)
e(f"v_mul_u32_u24 v{vT+1}, 6144, v{vT+1}")
e(f"v_lshrrev_b32 v{vT}, 3, v{L}"); e(f"v_and_b32 v{vT}, 2, v{vT}"); e(f"v_and_b32 v{vT+2}, 3, v{L}"); e(f"v_xor_b32 v{vT}, v{vT}, v{vT+2}")
e(f"v_lshl_add_u32 v{vDB}, v{vT}, 4, v{vT+1}")
e(f"v_mul_u32_u24 v{vT}, 4682, v0"); e(f"v_lshrrev_b32 v{vT}, 16, v{vT}")
e(f"v_mul_u32_u24 v{vT+3}, 14, v{vT}"); e(f"v_sub_u32 v{vT+3}, v0, v{vT+3}")
swap23(vT+1, vT, vT+2)
e(f"v_mul_u32_u24 v{vT+1}, 7168, v{vT+1}"); e(f"v_lshl_add_u32 v{vDA}, v{vT+3}, 4, v{vT+1}")
e(f"s_lshl_b32 s{sKX}, s{sRB}, 19"); e(f"s_lshl_b32 s{sT}, s{sW}, 16"); e(f"s_add_u32 s{sKX}, s{sKX}, s{sT}")
e(f"s_add_u32 s{sKXE}, s{sKX}, 2048"); e(f"s_lshl_b32 s{sMX}, s{sW}, 12")
e(f"s_mul_i32 s{sOW+1}, s{sH}, 224"); e(f"s_sub_u32 s{sOW}, s{sOW+1}, {32*7168}")
e(f"s_mov_b32 s{sOW+2}, s{sOW}"); e(f"s_mov_b32 s{sOW+3}, s{sOW+1}")
e(f"s_lshl_b32 s{sT}, s{sW}, 10")
for n, o in enumerate((GOFF, GOFF+HALF, UOFF, UOFF+HALF)): e(f"s_add_u32 s{sMWd+n}, s{sT}, {WBASE+o}")
e(f"s_mov_b32 s{sINCA}, {64*7168}")
def qpiece(p):
    half, unit, rg = p // 6, (p % 6) // 2, p % 2
    return (WBASE + half*HALF + unit*2048 + rg*1024, ((-32 + half*32 + rg*16)*6144 + unit*2048) & 0xffffffff)
e(f"s_lshl_b32 s{sT+1}, s{sH}, 6")
e(f"s_add_u32 s{sMWd+4}, s{sT}, {WBASE}")
e(f"s_and_b32 s{sT+2}, s{sW}, 1"); e(f"s_mul_i32 s{sT+2}, s{sT+2}, {16*6144}")
e(f"s_lshr_b32 s{sT+3}, s{sW}, 1"); e(f"s_lshl_b32 s{sT+3}, s{sT+3}, 11"); e(f"s_add_u32 s{sT+2}, s{sT+2}, s{sT+3}")
e(f"s_sub_u32 s{sOW+4}, s{sT+2}, {32*6144}")
for w, p in ((6, 6), (7, 11)):
    l, o = qpiece(p)
    e(f"s_cmp_eq_u32 s{sW}, {w}"); e(f"s_cselect_b32 s{sMWd+4}, {l:#x}, s{sMWd+4}"); e(f"s_cselect_b32 s{sOW+4}, {o:#x}, s{sOW+4}")
e(f"s_add_u32 s{sOW+4}, s{sOW+4}, s{sT+1}")
e("s_waitcnt lgkmcnt(0)")
if OPT['stamp']: e(f"v_writelane_b32 v0, s{sST+4}, 0"); e(f"v_writelane_b32 v0, s{sST+6}, 16")
stamp('karg')
srd(sX, pX, 0 if OPT['noX'] else 2048*2048)
for n in range(4): a_full('x', n, 0)
stamp('x0')
srd(sQ, pQKV, 0 if OPT['noW'] else 1024*6144); srd(sA, pWG, 0 if OPT['noW'] else 1024*7168); srd(sB, pWU, 0 if OPT['noW'] else 1024*7168)
e(f"s_cmp_eq_u32 s{sW}, 7"); e("s_cbranch_scc0 LA_not7")
for d in (sA, sB):
    for k in range(3): e(f"s_mov_b32 s{d+k}, s{sQ+k}")
for n in range(4):
    l, o = qpiece(7+n)
    e(f"s_mov_b32 s{sMWd+n}, {l:#x}"); e(f"s_add_u32 s{sOW+n}, s{sT+1}, {o:#x}")
e(f"s_mov_b32 s{sINCA}, {64*6144}"); e(f"v_mov_b32 v{vDA}, v{vDB}")
g.lab("LA_not7")
if OPT['wshift']:
    for n in range(5): e(f"s_add_u32 s{sOW+n}, s{sOW+n}, " + (f"s{sINCA}" if n < 4 else f"{64*6144}"))
for n in range(5): a_full('w', n, 0, True)
stamp('w0')
srd(sWS, pWSp, WS_SIZE); srd(sDBG, pDBG, 256); srd(sPF, pGW, 2048)
PD = OPT['PD'] - OPT['pre']; sPB = sT+6
assert OPT['amap'] == 3
e(f"s_lshr_b32 s{sT+1}, s2, 3"); e(f"s_lshr_b32 s{sT+2}, s{sH}, 3")
e(f"v_lshlrev_b32 v{vPF}, 7, v{L}"); e(f"s_mov_b32 s{sT+3}, 0"); e(f"s_mov_b32 s{sCNT}, 0"); e(f"s_mov_b32 s{sPFO}, 0"); e(f"s_mov_b32 s{sPFI}, 0")
e(f"s_mov_b32 s{sPB}, s{pX}"); e(f"s_mov_b32 s{sPB+1}, s{pX+1}")
def pfcase(w, body):
    e(f"s_cmp_lg_u32 s{sW}, {w}"); e(f"s_cbranch_scc1 LA_pf{w}"); body(); g.lab(f"LA_pf{w}")
def base(p, size): e(f"s_mov_b32 s{sPB}, s{p}"); e(f"s_mov_b32 s{sPB+1}, s{p+1}"); e(f"s_mov_b32 s{sCNT}, {size:#x}")
R2 = 2 if OPT['pf2'] else 1
def pf_x():
    base(pX, 2048*2048); e(f"v_and_b32 v{vT}, 31, v{L}"); e(f"v_lshlrev_b32 v{vT}, 11, v{vT}"); e(f"v_lshrrev_b32 v{vPF}, 5, v{L}"); e(f"v_lshl_add_u32 v{vPF}, v{vPF}, 7, v{vT}")
    e(f"s_and_b32 s{sT+4}, s{sH}, 7"); e(f"s_lshl_b32 s{sT+4}, s{sT+4}, 16"); e(f"s_lshl_b32 s{sPFO}, s{sRB}, 19"); e(f"s_add_u32 s{sPFO}, s{sPFO}, s{sT+4}")
    e(f"s_add_u32 s{sPFO}, s{sPFO}, {PD*128}"); e(f"s_mov_b32 s{sPFI}, {128*R2}"); e(f"s_mov_b32 s{sT+3}, {32*R2}")
def pf_gu(p):
    def f():
        base(p, 1024*7168); e(f"v_mul_u32_u24 v{vT}, 4682, v{L}"); e(f"v_lshrrev_b32 v{vT}, 16, v{vT}")
        e(f"v_mul_u32_u24 v{vT+1}, {7168-1792}, v{vT}"); e(f"v_add_u32 v{vPF}, v{vPF}, v{vT+1}")
        e(f"v_lshrrev_b32 v{vT}, 1, v{vT}"); e(f"v_mul_u32_u24 v{vT}, {62*7168}, v{vT}"); e(f"v_add_u32 v{vPF}, v{vPF}, v{vT}")
        e(f"s_mul_i32 s{sPFO}, s{sT+1}, {2*7168}"); e(f"s_mul_i32 s{sT+4}, s{sT+2}, 1792"); e(f"s_add_u32 s{sPFO}, s{sPFO}, s{sT+4}")
        e(f"s_add_u32 s{sPFO}, s{sPFO}, {(64*PD-32)*7168}"); e(f"s_mov_b32 s{sPFI}, {64*7168*R2}"); e(f"s_mov_b32 s{sT+3}, {28*R2}")
    return f
def pf_q():
    base(pQKV, 1024*6144); e(f"v_lshrrev_b32 v{vT}, 2, v{L}"); e(f"v_lshlrev_b32 v{vT}, 11, v{vT}"); e(f"v_and_b32 v{vPF}, 3, v{L}")
    e(f"v_lshl_add_u32 v{vPF}, v{vPF}, 7, v{vT}")
    e(f"v_cmp_le_u32 vcc, 24, v{L}"); e(f"v_add_u32 v{vT}, {62*6144}, v{vPF}"); e("s_nop 0"); e(f"v_cndmask_b32 v{vPF}, v{vPF}, v{vT}, vcc")
    e(f"s_mul_i32 s{sPFO}, s{sT+1}, {2*6144}"); e(f"s_lshl_b32 s{sT+4}, s{sT+2}, 9"); e(f"s_add_u32 s{sPFO}, s{sPFO}, s{sT+4}")
    e(f"s_add_u32 s{sPFO}, s{sPFO}, {(64*PD-32)*6144}"); e(f"s_mov_b32 s{sPFI}, {64*6144*R2}"); e(f"s_mov_b32 s{sT+3}, {24*R2}")
def pf_lin(p, size, nl, st=0):
    def f():
        base(p, size); e(f"s_mul_i32 s{sPFO}, s{sLAM}, {nl*128}"); e(f"s_mov_b32 s{sPFI}, {nl*128*256}"); e(f"s_mov_b32 s{sT+3}, {nl}")
        if st: e(f"s_sub_u32 s{sPFO}, s{sPFO}, {st*nl*128*256}")
    return f
if OPT['pf']:
    if PD > 0: pfcase(6, pf_x); pfcase(1, pf_gu(pWG)); pfcase(2, pf_gu(pWU)); pfcase(3, pf_q)
    pfcase(4, pf_lin(pWD, 3584*2048, OPT['wdn'], OPT['wdst'])); pfcase(5, pf_lin(pWO, 1024*2048, 16, OPT['wdst']))
    if OPT['touch'] & 1: pfcase(6, pf_lin(pWSp, A_BYTES, 64))
    def pf_kv():
        pf_lin(pWSp, WS_KV + (0x1000000 if OPT['touch'] & 4 else 0x800000), 64)(); e(f"s_add_u32 s{sPFO}, s{sPFO}, {WS_KV:#x}")
    if OPT['touch'] & 2: pfcase(7, pf_kv)
e(f"v_cmp_gt_u32 vcc, s{sT+3}, v{L}"); e(f"v_bfrev_b32 v{vT}, 1"); e("s_nop 0"); e(f"v_cndmask_b32 v{vPF}, v{vT}, v{vPF}, vcc")
e(f"s_mov_b32 s{sPF}, s{sPB}"); e(f"s_and_b32 s{sPF+1}, s{sPB+1}, 0xffff"); e(f"s_mov_b32 s{sPF+2}, s{sCNT}")
for k in range(OPT['pre']): a_op('p', 0, 0)
W1E = {0: [], 1: [0,2,4], 2: [0,2,4,1,3]}[OPT['w1e']]
for n in W1E: a_full('w', n, 1)
e(f"v_and_b32 v{vT}, 15, v{L}"); e(f"s_lshl_b32 s{sT}, s{sMW}, 6"); e(f"v_add_u32 v{vT}, s{sT}, v{vT}"); e(f"v_lshlrev_b32 v{vT}, 7, v{vT}")
e(f"v_lshrrev_b32 v{vT+1}, 4, v{L}"); e(f"v_bfe_u32 v{vT+2}, v{L}, 1, 3"); e(f"v_xor_b32 v{vT+2}, v{vT+1}, v{vT+2}")
e(f"v_lshl_add_u32 v{vXR}, v{vT+2}, 4, v{vT}"); e(f"v_xor_b32 v{vXR+1}, 64, v{vXR}")
e(f"v_bfe_u32 v{vT}, v{L}, 2, 3")
e(f"v_lshrrev_b32 v{vT+1}, 5, v{L}"); e(f"v_lshl_add_u32 v{vT}, v{vT+1}, 4, v{vT}")
e(f"v_and_b32 v{vT+1}, 3, v{L}"); e(f"v_lshlrev_b32 v{vT+1}, 3, v{vT+1}"); e(f"v_add_u32 v{vT+1}, {WBASE}, v{vT+1}")
e(f"v_mul_u32_u24 v{vWG}, 224, v{vT}"); e(f"v_add_u32 v{vWG}, v{vWG}, v{vT+1}"); e(f"v_add_u32 v{vWG+1}, {WSLOT}, v{vWG}")
e(f"v_lshl_add_u32 v{vWQ}, v{vT}, 6, v{vT+1}"); e(f"v_bfe_u32 v{vT+2}, v{L}, 4, 1"); e(f"v_lshl_add_u32 v{vWQ}, v{vT+2}, 5, v{vWQ}")
e(f"v_xor_b32 v{vWQ+1}, 32, v{vWQ}"); e(f"v_add_u32 v{vWQ+2}, {WSLOT}, v{vWQ}"); e(f"v_add_u32 v{vWQ+3}, {WSLOT}, v{vWQ+1}")
for r in range(vACC, 256): e(f"v_mov_b32 v{r}, 0")
e(f"s_mov_b32 s{sK}, {f32(-LOG2E)}"); e(f"s_mov_b32 s{sK+1}, {f32(-LOG2E)}")
e(f"s_lshl_b32 s{sGO}, s{sLAM}, 3"); e(f"s_add_u32 s{sGO}, s{sGO}, s{sW}"); e(f"s_lshl_b32 s{sGO}, s{sGO}, 11")
e("v_mov_b32 v40, 0"); e("v_mov_b32 v41, 0"); e("v_mov_b32 v25, 0"); e("v_mov_b32 v43, 0x3f803f80"); e(f"v_lshlrev_b32 v42, 2, v{L}"); e(f"s_mov_b32 s{sKXE}, 0")
srd(sGW, pGW, 2048); e("s_mov_b32 s94, 1.0"); e("s_mov_b32 s95, 1.0")
W1A = {0: [0,1,2,3,4], 1: [], 2: [0,2,4]}[OPT['w1']]
stamp('setup')
for n in W1A:
    if n not in W1E: a_full('w', n, 1)
W1A = sorted(set(W1A) | set(W1E))
stamp('w1')
e(f"s_waitcnt vmcnt({len(W1A)+OPT['pre']})"); stamp('land'); e("s_barrier"); stamp('bar')
e(f"s_cmp_eq_u32 s{sNW}, 1"); e("s_cbranch_scc1 LA_pre1")
for nw in range(2):
    if nw == 1: g.lab("LA_pre1")
    sq, sv_ = g.steady(lambda: a_body(nw))
    g.q = []
    for i in range(4): a_xread(i, 0)
    for n in range(4): a_wread(nw, n)
    assert [t for t in sv_ if t[0] == 'w'] == [('w', 1, k) for k in range(5)], sv_
    for n in range(5):
        if n not in W1A: a_full('w', n, 1)
    for t in sv_:
        if t[0] == 'x': assert t[1] == 1; a_full('x', t[2], 1)
    assert not any(t[0] == 'p' for t in sv_[sv_.index(('w', 1, 0)):]), sv_
    e(f"s_mov_b32 s{sCNT}, 8"); e(f"s_mov_b32 s{sOK}, 0")
    stamp('loopA')
    if OPT['prio'] and nw == 1: e("s_setprio 1")
    e("s_waitcnt lgkmcnt(0)")
    g.q = list(sq); g.v = list(sv_)
    g.L.append(".p2align 6"); g.lab(f"LA_loop{nw}")
    a_body(nw); assert g.q == sq and g.v == sv_
    if OPT['tst']:
        e(f"s_memtime s[{sST}:{sST+1}]"); e(f"s_memrealtime s[{sST+2}:{sST+3}]"); e(f"s_sub_u32 s{sST+4}, 10, s{sCNT}"); e(f"s_add_u32 s{sST+5}, s{sST+4}, 16")
        e("s_waitcnt lgkmcnt(0)"); e(f"s_mov_b32 m0, s{sST+4}"); e("s_nop 0"); e(f"v_writelane_b32 v0, s{sST}, m0"); e(f"s_mov_b32 m0, s{sST+5}"); e("s_nop 0"); e(f"v_writelane_b32 v0, s{sST+2}, m0")
    e(f"s_sub_u32 s{sCNT}, s{sCNT}, 1")
    for u in gate_acc(40, 41, 20, 43):
        for x in u: e(x)
    e(f"buffer_load_dword v40, v42, {sr(sX,4)}, s{sGO} offen"); e(f"buffer_load_dword v41, v42, {sr(sGW,4)}, s{sKXE} offen")
    e(f"s_add_u32 s{sGO}, s{sGO}, 256"); e(f"s_add_u32 s{sKXE}, s{sKXE}, 256")
    e(f"s_cmp_lg_u32 s{sCNT}, 1"); e(f"s_cbranch_scc1 LA_h1_{nw}")
    sv = g.L; g.L = g.tail
    g.lab(f"LA_h1_{nw}")
    def hook(c, body, w0=False):
        if w0 and nw == 1: return
        e(f"s_cmp_lg_u32 s{sCNT}, {c}"); e(f"s_cbranch_scc1 LA_n{c}_{nw}")
        if w0: e(f"s_cmp_lg_u32 s{sW}, 0"); e(f"s_cbranch_scc1 LA_loop{nw}")
        body(); e(f"s_branch LA_loop{nw}"); g.lab(f"LA_n{c}_{nw}")
    def rec_store():
        for r in range(28, 32): e(f"v_mov_b32 v{r}, 0")
        e(f"v_mov_b32 v26, {CNTLDS}"); e("ds_write_b32 v26, v28")
        e(f"s_lshl_b32 s{sT}, s{sLAM}, 9"); e(f"s_add_u32 s{sT}, s{sT}, {WS_FL:#x}")
        e("s_mov_b32 exec_hi, 0")
        e(f"buffer_store_dwordx4 v[28:31], v{vL16}, {sr(sWS,4)}, s{sT} offen sc1"); e("s_mov_b64 exec, -1")
    def ack():
        e(f"v_mov_b32 v{vT}, 1"); e(f"s_and_b32 s{sT}, s{sLAM}, 1"); e(f"s_lshl_b32 s{sT}, s{sT}, 7")
        one_lane(lambda: e(f"buffer_atomic_add v{vT}, off, {sr(sDBG,4)}, s{sT} sc1"))
    def ld(): e(f"v_and_b32 v37, 1, v{L}"); e(f"v_lshlrev_b32 v37, 7, v37"); e(f"buffer_load_dword v{vCN}, v37, {sr(sDBG,4)}, 0 offen sc1")
    def ts(): e(f"v_cmp_gt_u32 vcc, 128, v{vCN}"); e("s_nop 1"); e("s_cmp_eq_u64 vcc, 0")
    def gate_loads():
        e(f"v_lshlrev_b32 v42, 5, v{L}")
        e(f"buffer_load_dwordx4 {vr(26,4)}, v42, {sr(sX,4)}, s{sGO} offen"); e(f"buffer_load_dwordx4 {vr(30,4)}, v42, {sr(sX,4)}, s{sGO} offen offset:16")
        e(f"buffer_load_dwordx4 {vr(34,4)}, v42, {sr(sGW,4)}, 0 offen"); e(f"buffer_load_dwordx4 {vr(38,4)}, v42, {sr(sGW,4)}, 0 offen offset:16")
        ld()
    def code_pf():
        e(f"s_getpc_b64 s[{sT}:{sT+1}]"); g.lab("LA_pc")
        e(f"s_sub_u32 s{sT}, s{sT}, LA_pc-{KN}"); e(f"s_subb_u32 s{sT+1}, s{sT+1}, 0")
        e(f"s_lshr_b32 s{sT+2}, s2, 3"); e(f"s_lshl_b32 s{sT+2}, s{sT+2}, 12")
        e(f"v_and_b32 v26, 31, v{L}"); e(f"v_lshlrev_b32 v26, 7, v26"); e(f"v_add_u32 v26, s{sT+2}, v26")
        e(f"v_min_u32 v26, LZ_end-{KN}-4, v26")
        e(f"v_mov_b32 v27, s{sT+1}"); e(f"v_add_co_u32 v26, vcc, s{sT}, v26"); e("s_nop 1"); e(f"v_addc_co_u32 v27, vcc, 0, v27, vcc")
        e(f"global_load_dword v{vDUM}, v[26:27], off")
    if OPT['astag']:
        def ackif(k):
            def f():
                e(f"s_lshr_b32 s{sT}, s2, 3"); e(f"s_mul_i32 s{sT}, s{sT}, 3"); e(f"s_lshr_b32 s{sT}, s{sT}, 5")
                e(f"s_cmp_lg_u32 s{sT}, {k}"); e(f"s_cbranch_scc1 LA_loop{nw}"); ack()
            return f
        hook(7, rec_store, True); hook(6, ackif(0), True); hook(5, ackif(1), True); hook(4, ackif(2), True); hook(2, ld)
    else:
        hook(6, rec_store, True); hook(5, ack, True); hook(2, ld)
    if OPT['cpf']: hook(OPT['cpf'], code_pf, True)
    def tlb_warm():
        e(f"s_mul_i32 s{sT}, s{sRB}, {16*M16}"); e(f"v_mov_b32 v26, s{sT}")
        e(f"s_add_u32 s{sT+1}, s{sT}, {8*M16}"); e(f"v_writelane_b32 v26, s{sT+1}, 1")
        e(f"s_add_u32 s{sT+1}, s{sT}, {16*M16-128}"); e(f"v_writelane_b32 v26, s{sT+1}, 2")
        e(f"s_lshl_b32 s{sT}, s{sLAM}, 15"); e(f"s_add_u32 s{sT}, s{sT}, {WS_KV:#x}"); e(f"v_writelane_b32 v26, s{sT}, 3")
        e(f"s_sub_u32 s{sT}, s{sT}, {32*32768}"); e(f"v_writelane_b32 v26, s{sT}, 4")
        e(f"s_lshl_b32 s{sT}, s{sRB}, 21"); e(f"s_add_u32 s{sT}, s{sT}, {WS_PART:#x}"); e(f"v_writelane_b32 v26, s{sT}, 5")
        e("s_mov_b64 exec, 63"); e(f"buffer_load_dword v{vDUM}, v26, {sr(sWS,4)}, 0 offen"); e("s_mov_b64 exec, 1")
        srd(88, pOUT, 2048*2048); e(f"s_lshl_b32 s{sT}, s{sRB}, 19"); e(f"buffer_load_dword v{vDUM}, off, s[88:91], s{sT}")
        srd(88, pWO, 1024*2048); e(f"buffer_load_dword v{vDUM}, off, s[88:91], 0")
        srd(88, pWD, 3584*2048); e(f"s_lshr_b32 s{sT}, s{sH}, 3"); e(f"s_mul_i32 s{sT}, s{sT}, {896*2048}"); e(f"buffer_load_dword v{vDUM}, off, s[88:91], s{sT}")
        e(f"s_add_u32 s{sT}, s{sT}, {895*2048}"); e(f"buffer_load_dword v{vDUM}, off, s[88:91], s{sT}")
        e("s_mov_b64 exec, -1")
    if OPT['tlb']: hook(OPT['tlb'], tlb_warm, True)
    e(f"s_branch LA_loop{nw}")
    g.lab(f"LA_slow{nw}")
    spin(f"LA_spin{nw}", ld, ts, sT+3); e(f"s_branch LB_go{nw}")
    g.L = sv
    ts(); e(f"s_cbranch_scc0 LA_slow{nw}")
    g.lab(f"LB_go{nw}")
    e(f"buffer_load_dword v38, v42, {sr(sX,4)}, s{sGO} offen"); e(f"buffer_load_dword v39, v42, {sr(sGW,4)}, s{sKXE} offen")
    U = UNITS[nw]; jkv = 2 if nw == 0 else 0
    vHA = 3; vST = 96 - 4*len(OPT['hpos']); vNB = 208; assert len(OPT['hpos']) % 2 == 0
    def cap(f, atomic=False):
        sv = g.L; g.L = []; f(); r = g.L; g.L = sv
        return [r] if atomic else [[x] for x in r]
    def setupB():
        e(f"s_lshl_b32 s{sT+4}, s{sLAM}, 15"); e(f"s_add_u32 s{sT+4}, s{sT+4}, {WS_KV:#x}")
        e(f"s_lshl_b32 s{sT+5}, s{sMW}, 13"); e(f"v_add_u32 v{vT+8}, s{sT+5}, v{vL16}")
        e(f"s_add_u32 s{sT+5}, s{sT+5}, s{sT+4}")
    def setupB2():
        e(f"s_cmp_eq_u32 s{sRB}, 7"); e(f"s_cselect_b32 s{sT+5}, {WS_SIZE:#x}, s{sT+5}")
    def setupB3():
        e(f"s_add_u32 s{sT+6}, s{sT+5}, 4096")
        e(f"v_and_b32 v{vHA}, 31, v{L}"); e(f"v_lshlrev_b32 v{vHA}, 4, v{vHA}"); e(f"v_lshrrev_b32 v{vT+11}, 5, v{L}")
        e(f"v_mul_u32_u24 v{vT+11}, {M16}, v{vT+11}"); e(f"v_add_u32 v{vHA}, v{vHA}, v{vT+11}")
        e(f"s_lshl_b32 s{sT}, s{sRB}, 4"); e(f"s_lshl_b32 s{sT+1}, s{sMW}, 2"); e(f"s_add_u32 s{sT}, s{sT}, s{sT+1}")
        e(f"s_mul_i32 s{sHB}, s{sT}, {M16}"); e(f"s_mul_i32 s{sT}, s{sH}, {7*512}"); e(f"s_add_u32 s{sHB}, s{sHB}, s{sT}")
        e(f"s_lshr_b32 s{sT}, s{sH}, 3"); e(f"s_lshl_b32 s{sT}, s{sT}, 13"); e(f"s_add_u32 s{sHB}, s{sHB}, s{sT}")
        if nw == 1: e(f"s_add_u32 s{sHB}, s{sHB}, {3*512}")
        e(f"s_add_u32 s{sHB+1}, s{sHB}, {2*M16}")
        e(f"s_lshl_b32 s{sT+7}, s{sLAM}, 9"); e(f"s_add_u32 s{sT+7}, s{sT+7}, {WS_FL:#x}")
        e(f"v_mov_b32 v{vCN}, 1"); e(f"s_mov_b32 s{sDN}, 0"); e(f"s_sub_u32 s{sT+3}, s{sT+7}, {32*512}")
    def gpub():
        e(f"s_cmp_lg_u32 s{sW}, 0"); e("s_cbranch_scc1 LB_nog")
        e(f"v_lshlrev_b32 v{vT}, 2, v{L}"); e(f"v_add_u32 v{vT+1}, {GLDS}, v{vT}"); e("s_mov_b64 exec, 0xff"); e(f"ds_read_b32 v{vT+1}, v{vT+1}"); e("s_waitcnt lgkmcnt(0)")
        e(f"buffer_store_dword v{vT+1}, v{vT}, {sr(sWS,4)}, s{sT+7} offen sc1"); e("s_mov_b64 exec, -1")
        g.lab("LB_nog")
    def kvout():
        for i in range(4):
            pack2(jkv, i)
            if nw == 1:
                a = ACC(0, i); e("s_nop 1"); e(f"v_permlane32_swap_b32 v{a}, v{a+2}"); e(f"v_permlane32_swap_b32 v{a+1}, v{a+3}")
            e(f"buffer_store_dwordx4 {vr(ACC(jkv,i),4)}, v{vL16}, {sr(sWS,4)}, s{sT+5+(i>>1)} offen offset:{nw*2048+(i&1)*1024} sc1")
    gus = [j for j in range(10) if U[j][0] == 'g']
    def hst(R, k): e(f"buffer_store_dwordx4 {vr(R,4)}, v{vHA}, {sr(sWS,4)}, s{sHB+(k&1)} offen offset:{(k>>1)*512}" + ("" if OPT['hx'] == 1 else " sc1")) if OPT['hx'] != 2 else None
    def ldK(): e(f"buffer_load_dword v{vT+10}, off, {sr(sWS,4)}, s{sT+3} offset:{FL_KV} sc1")
    def tsK(): e(f"v_readfirstlane_b32 s{sT}, v{vT+10}"); e("s_nop 0"); e(f"s_cmp_eq_u32 s{sT}, 1")
    J = [2,3,4,5,6,7,8,9,0,1] if nw == 0 else list(range(10))
    SQ = [(t, j) for t in range(2) for j in range(10)]
    for p in range(5): a_, b_ = J[2*p], J[2*p+1]; SQ += [(2, a_), (2, b_), (3, a_), (3, b_)]
    F = []
    F += [(1, u) for u in cap(setupB) + cap(setupB2, True) + cap(setupB3)]
    vKA, vVA, vQA, vOA = 8, 9, 10, 11
    def att_setup():
        m = vT
        e(f"v_and_b32 v{m+1}, 15, v{L}"); e(f"v_lshlrev_b32 v{m+1}, 4, v{m+1}"); e(f"v_lshrrev_b32 v{m+2}, 5, v{L}")
        e(f"v_lshl_add_u32 v{m+1}, v{m+2}, 8, v{m+1}"); e(f"v_bfe_u32 v{m+2}, v{L}, 4, 1")
        e(f"v_lshl_add_u32 v{vQA}, v{m+2}, 10, v{m+1}"); e(f"v_lshl_add_u32 v{vVA}, v{m+2}, 9, v{m+1}")
        e(f"v_mul_u32_u24 v{vOA}, {M16}, v{m+2}"); e(f"v_add_u32 v{vOA}, v{vOA}, v{m+1}")
        e(f"s_lshl_b32 s{sT}, s{sW}, 12"); e(f"v_add_u32 v{vKA}, s{sT}, v{vQA}"); e(f"v_add_u32 v{vVA}, s{sT}, v{vVA}")
    def q_addr():
        e(f"s_lshl_b32 s{sT}, s{sW}, 11"); e(f"s_cmp_ge_u32 s{sW}, 6"); e(f"s_cselect_b32 s{sT+1}, {QLDS3-6*2048}, {QLDS}".replace(f", {QLDS}", f", s{sT+2}"))
        e(f"s_add_u32 s{sT}, s{sT}, s{sT+1}"); e(f"v_add_u32 v{vQA}, s{sT}, v{vQA}")
        if nw == 0:
            e(f"s_lshl_b32 s{sT}, s{sMW}, 12"); e(f"s_cmp_eq_u32 s{sMW}, 3"); e(f"s_cselect_b32 s{sT+1}, {QLDS3-3*4096}, s{sT+2}")
            e(f"s_add_u32 s{sT}, s{sT}, s{sT+1}"); e(f"v_add_u32 v{vT+9}, s{sT}, v{vL16}")
    def cnt0():
        e(f"v_mov_b32 v{vT+12}, {CNT2}"); e(f"v_mov_b32 v{vT+13}, 0"); e(f"ds_write_b32 v{vT+12}, v{vT+13}"); e(f"ds_write_b32 v{vT+12}, v{vT+13} offset:4"); e(f"ds_write_b32 v{vT+12}, v{vT+13} offset:8")
    def kvlds():
        for i in range(4): e(f"ds_write_b128 v{vT+8}, {vr(ACC(jkv,i),4)} offset:{32768+(i>>1)*4096+nw*2048+(i&1)*1024}")
    F += [(10, u) for u in cap(c_setup)]
    F += [(18, [("    " + x) for x in u]) for u in gate_list(20, 43)]
    if nw == 0: F += [(19, u) for u in cap(cnt0)]
    F += [(21, u) for u in cap(att_setup) + [[f"    s_mov_b32 s{sT+2}, {QLDS}"]] + cap(q_addr, True)]
    F += [(24, u) for u in cap(kvout) + cap(kvlds)]
    if nw == 0: F += [(24, u) for u in cap(gpub, True)]
    nk = 2*len(gus)
    for k in range(nk):
        j, i = gus[k >> 1], 2*(k & 1); av = 28 + 4*(k >> 1)
        F += [(av, u) for u in cap(lambda: silu(j, i, vT, ACC(j, i)))]
        NE = nk - len(OPT['hpos'])
        F += [(av, u) for u in cap(lambda: trysig(min(k, NE), CNTLDS, 0, FL_KV, force=(k == nk-1)), True)]
        if k < NE: F += [(av, u) for u in cap(lambda: hst(ACC(j, i), k))]
    ev = {n: [x for x in v if x[0] == 'x' and x[2] == 1] for n, v in a_events(nw).items() if n < 10}
    for n, k in zip((7, 8, 9), (0, 2, 4)): ev.setdefault(n, []).append(('w', k, 0))
    for n, (t, j) in enumerate(SQ):
        un = U[j]; evs = ev.get(n, [])
        for i in range(4):
            g.need([('W', n % 5), ('X', t & 1, i)])
            a, b = vr(vWF+4*(n % 5), 4), vr(vXF+16*(t & 1)+4*i, 4)
            if un[0] == 'v': a, b = b, a
            e(f"{MF16} {vr(ACC(j,i),4)}, {a}, {b}, {vr(ACC(j,i),4)}")
            if i == 0:
                if n == JBW: g.need([('W', k) for k in range(5)], [('w', 1, k) for k in range(5)]); e("s_barrier")
                if n == 17:
                    g.need([('W', k) for k in range(5)], [('x', 1, k) for k in range(4)] + [('w', 0, k) for k in range(5)]); e("s_barrier")
                if n == 22: assert not any(av <= 18 for av, u in F)
                if n == 23: g.need([('X', 1, k) for k in range(4)] + [('W', k) for k in range(5)]); e("s_barrier")
                if n + 4 < 40: a_wread(nw, n+4, SQ[n+4])
                if nw == 0 and n == OPT['kq']: ldK()
            if i == 1:
                for ii in range(4):
                    if n == OPT['jbx'] + OPT['xrd'][ii]: a_xread(ii, 1)
                    if n == 17 + (ii >> 1): a_xread(ii, 2)
                    if n == 20: a_xread(ii, 3)
                if evs: a_m0(*evs[0])
            if i == 2 and evs:
                a_op(*evs[0])
                for x in evs[1:]: a_full(*x)
            c = 0
            while F and F[0][0] <= n and c < (2 if n < 12 else 3 if n < 20 else OPT['fr']) and not (i == 1 and evs):
                u = F.pop(0)[1]; g.L += u; c += len(u)
    stamp('endA')
    left = sum(1 for av, u in F for x in u if 'buffer_store_dwordx4' in x)
    print("path", nw, "leftover filler instrs", sum(len(u) for av, u in F), "stores", left)
    if nw == 0 and OPT['h0']:
        vNB = 40
        e(f"s_mov_b32 s{sT+5}, {WS_SIZE:#x}")
        e(f"s_cmp_eq_u32 s{sRB}, 0"); e("s_cbranch_scc1 LB_rb0")
        e("s_waitcnt vmcnt(0)"); trysig(15, CNTLDS, 0, FL_KV, force=True); tsK(); e("s_cbranch_scc0 LB_late")
        e(f"s_sub_u32 s{sT+5}, s{sT+4}, {32*32768}")
        g.lab("LB_rb0")
        e(f"s_add_u32 s{sT+6}, s{sT+5}, 4096")
        def nbl():
            for f in range(8): e(f"buffer_load_dwordx4 {vr(vNB+4*f,4)}, v{vT+8}, {sr(sWS,4)}, s{sT+5+(f>>2)} offen offset:{(f&3)*1024} sc1")
        nbl(); e(f"s_mov_b32 s{sT+4}, 0")
        g.lab("LB_late")
        for i in range(4): pack2(0, i)
        for i in range(4): e(f"ds_write_b128 v{vT+9}, {vr(ACC(0,i),4)} offset:{i*1024}")
    else: e("s_nop 7")
    assert not any('ds_write' in x for av, u in F for x in u)
    for av, u in F: g.L += u
    for k in range(NE, nk):
        for r in range(4): e(f"v_mov_b32 v{vST+4*(k-NE)+r}, v{ACC(gus[k>>1], 2*(k&1))+r}")
    if NE: e(f"s_add_u32 s{sHB}, s{sHB}, {NE*256}"); e(f"s_add_u32 s{sHB+1}, s{sHB+1}, {NE*256}")
    stamp('hdone')
    if nw == 0:
        e(f"s_cmp_eq_u32 s{sT+4}, 0"); e("s_cbranch_scc1 LB_have")
        spin("LB_spin", ldK, tsK, sT+5)
        e(f"s_sub_u32 s{sT+5}, s{sT+4}, {32*32768}"); e(f"s_add_u32 s{sT+6}, s{sT+5}, 4096")
        nbl(); e("s_waitcnt vmcnt(0)")
        g.lab("LB_have")
        NLEFT = left; vNB0 = vNB
    stamp('kvok')
    if nw == 0: e("s_branch LB_common")
g.lab("LB_common")
FR = [40, 48, 56, 64, 96, 104]; vQ = 32; vS = 112; vM = 26; vSUM = 28
BIG = 2.0**100
assert OPT['npre'] <= 3
e(f"s_mov_b32 s{sDN}, 0")
e(f"s_andn2_b32 s{sT+4}, s{sLAM}, 7"); e(f"s_lshl_b32 s{sT+4}, s{sT+4}, 9"); e(f"s_add_u32 s{sT+4}, s{sT+4}, {WS_FL:#x}")
e(f"s_cmp_eq_u32 s{sNW}, 1"); e("s_cbranch_scc1 LB_nokv")
for f in range(8):
    e(f"s_waitcnt vmcnt({7-f+NLEFT})"); e(f"ds_write_b128 v{vT+8}, {vr(vNB0+4*f,4)} offset:{f*1024}")
g.lab("LB_nokv")
e("s_waitcnt lgkmcnt(0)"); e("s_barrier")
stamp('bar2')
ORD = [0, 8, 1, 2, 3, 4, 5, 6, 7]
def yprio(k):
    e(f"s_cmp_eq_u32 s{sNW}, 0"); e(f"s_cbranch_scc1 LP_{k}"); e("s_setprio 1"); g.lab(f"LP_{k}")
if OPT['aprio'] == 1: yprio(0)
def kread(x):
    t = ORD[x]
    for f in range(2): g.lds(f"ds_read_b128 {vr(FR[x%6]+4*f,4)}, v{vKA} offset:{t*4096+f*512}", ('K', x, f))
def vread(x):
    t = ORD[x]
    for f in range(2): g.lds(f"ds_read_b128 {vr(FR[(x+3)%6]+4*f,4)}, v{vVA} offset:{t*4096+2048+f*1024}", ('V', x, f))
def mx(t, half=None):
    b = vS + 16*t
    for r in range(0, 16, 2):
        if half is not None and (r >> 3) != half: continue
        k = (r >> 1) & 1
        if t == 8 and r < 4: e(f"v_max_f32 v{vM+k}, v{b+r}, v{b+r+1}")
        else: e(f"v_max3_f32 v{vM+k}, v{vM+k}, v{b+r}, v{b+r+1}")
def masked(op):
    for rho in range(16):
        cst = 8*(rho >> 2) + (rho & 3)
        e(f"s_bfm_b32 exec_lo, {cst}, 0"); e(f"s_bfm_b32 exec_hi, {cst+4}, 0"); e(f"{op} v{vS+128+rho}, v{vS+rho}")
    e("s_mov_b64 exec, -1")
def merge():
    masked("v_mov_b32")
    for rho in range(16): e(f"v_mov_b32 v{vS+rho}, 0")
NPRE = OPT['npre']
def ldH(): e(f"buffer_load_dword v{cvPL}, v{cvPA}, {sr(sWS,4)}, s{sT+4} offen offset:{FL_H} sc1")
def tsL(): e(f"v_cmp_ne_u32 vcc, 1, v{cvPL}"); e("s_nop 1"); e("s_cmp_eq_u64 vcc, 0")
AFTER = [0]; NH2 = [0]
def event(x):
    for k, p in enumerate(OPT['hpos']):
        if p == x: hst(vST+4*k, k); AFTER[0] = 0
    if max(OPT['hpos'] + [-1]) < x <= OPT['hq'] and (x >= 9 or x % 3 == 2): trysig(AFTER[0], CNT2, 0, FL_H, force=(x == OPT['hq']))
    for k, p in enumerate(OPT['dpos'][:NPRE]):
        if p == x: c_m0(k); e("s_nop 0"); c_dma(k, 0); c_dma(k, 1); AFTER[0] += 2
    if OPT['aearly'] and x == OPT['hq2']: ldH(); AFTER[0] += 1; NH2[0] = AFTER[0]
    if OPT['aearly'] and x == OPT['hq2'] + 2:
        e(f"s_mov_b32 s{sOK+1}, 0"); e(f"s_waitcnt vmcnt({AFTER[0]-NH2[0]})"); tsL(); e("s_cbranch_scc0 LB_noe")
        for k in range(4): c_aload(0, k)
        e(f"s_mov_b32 s{sOK+1}, 1"); e("s_branch LB_e2")
        g.lab("LB_noe"); ldH(); g.lab("LB_e2")
    if not OPT['aearly'] and x == OPT['hq']: ldH(); AFTER[0] += 1
assert min(OPT['dpos']) >= 9
def s_phase(rb0):
    g.q = []
    for f in range(2): g.lds(f"ds_read_b128 {vr(vQ+4*f,4)}, v{vQA} offset:{f*512}", ('Q', f))
    for x in range(6): kread(x)
    for x in range(9):
        t = ORD[x]
        if rb0 and t < 8:
            g.need([('K', x, 1), ('Q', 1)])
            e(f"s_cmp_ge_u32 s{sW}, {8-t}"); e(f"s_cbranch_scc1 LB_v{t}")
            for rho in range(16): e(f"v_mov_b32 v{vS+16*t+rho}, {f32(-BIG)}")
            e(f"s_branch LB_w{t}"); g.lab(f"LB_v{t}")
            for f in range(2): e(f"{MF32} {vr(vS+16*t,16)}, {vr(FR[x%6]+4*f,4)}, {vr(vQ+4*f,4)}, " + (vr(vS+16*t, 16) if f else "0"))
            g.lab(f"LB_w{t}")
            if x == 4: merge()
            if x >= 5: mx(ORD[x-4])
        else:
            for f in range(2):
                g.need([('K', x, f), ('Q', f)])
                c = vr(vS+16*t, 16) if f == 1 else "0"
                e(f"{MF32} {vr(vS+16*t,16)}, {vr(FR[x%6]+4*f,4)}, {vr(vQ+4*f,4)}, {c}")
                if x == 4 and f == 1: merge()
                if x >= 5: mx(ORD[x-4], f)
        if x + 6 < 9: kread(x+6)
        else: vread(x-3)
        event(x)
e(f"s_cmp_eq_u32 s{sRB}, 0"); e("s_cbranch_scc1 LB_s0")
sv = g.L; g.L = g.tail; g.lab("LB_s0"); s_phase(True); e("s_branch LB_sdone"); g.L = sv
s_phase(False)
g.lab("LB_sdone")
for x in range(5, 9): mx(ORD[x])
stamp('sph')
e(f"v_max_f32 v{vM}, v{vM}, v{vM+1}"); e(f"v_mov_b32 v{vM+1}, v{vM}"); e("s_nop 1")
e(f"v_permlane32_swap_b32 v{vM}, v{vM+1}"); e(f"v_max_f32 v{vM}, v{vM}, v{vM+1}")
CC = 32 ** -0.5 * LOG2E
e(f"s_mov_b32 s{sK}, {f32(CC)}"); e(f"s_mov_b32 s{sK+1}, {f32(CC)}")
e(f"v_mul_f32 v{vM}, {f32(-CC)}, v{vM}"); e(f"v_mov_b32 v{vM+1}, v{vM}")
vO = vS + 8
def pbase(t): return vS if t == 0 else vS + 16*t + 8
def soft(t, mid=None, mid2=None):
    b = vS + 16*t
    if OPT['aprio'] == 3:
        if t in (8, 2, 4, 6): yprio(t)
        else: e("s_setprio 0")
    if OPT['aprio'] == 4 and t == 3: yprio(t)
    for r in range(0, 16, 2): e(f"v_pk_fma_f32 {vr(b+r,2)}, {vr(b+r,2)}, {sr(sK,2)}, {vr(vM,2)}")
    if mid: mid()
    for r in range(16):
        e(f"v_exp_f32 v{b+r}, v{b+r}")
        if r == 7 and mid2: mid2()
    for r in range(0, 16, 2):
        s = vSUM + 2*((r >> 1) & 1)
        if t == 8 and r < 4: e(f"v_pk_add_f32 {vr(s,2)}, {vr(b+r,2)}, {vr(b+r+4,2)}")
        elif t == 8 and r < 8: pass
        else: e(f"v_pk_add_f32 {vr(s,2)}, {vr(s,2)}, {vr(b+r,2)}")
    if t == 8:
        masked("v_swap_b32")
        for r in range(8): e(f"v_cvt_pk_bf16_f32 v{vS+r}, v{vS+2*r}, v{vS+2*r+1}")
    for r in range(7, -1, -1): e(f"v_cvt_pk_bf16_f32 v{b+8+r}, v{b+2*r}, v{b+2*r+1}")
def pv(x, fs=(0, 1)):
    t = ORD[x]
    for f in fs:
        g.need([('V', x, f)])
        e(f"{MF32} {vr(vO,16)}, {vr(FR[(x+3)%6]+4*f,4)}, {vr(pbase(t)+4*f,4)}, " + ("0" if (x == 0 and f == 0) else vr(vO, 16)))
    if x + 6 < 9 and 1 in fs: vread(x+6)
if OPT['aprio'] == 2: yprio(1)
event(9); soft(8); event(10); soft(1); e("s_nop 0"); pv(0); pv(1)
for t in range(2, 8):
    event(9+t)
    if OPT['pvs']: soft(t, lambda: pv(t, (0,)), lambda: pv(t, (1,)))
    else: soft(t, lambda: pv(t))
e("s_nop 1"); pv(8)
e(f"v_pk_add_f32 {vr(vSUM,2)}, {vr(vSUM,2)}, {vr(vSUM+2,2)}"); e(f"v_add_f32 v{vSUM}, v{vSUM}, v{vSUM+1}")
e(f"v_mov_b32 v{vSUM+1}, v{vSUM}"); e("s_nop 1"); e(f"v_permlane32_swap_b32 v{vSUM}, v{vSUM+1}")
e(f"v_add_f32 v{vSUM}, v{vSUM}, v{vSUM+1}"); e(f"v_rcp_f32 v{vSUM}, v{vSUM}")
e(f"s_lshl_b32 s{sT}, s{sRB}, 4"); e(f"s_lshl_b32 s{sT+1}, s{sW}, 1"); e(f"s_add_u32 s{sT}, s{sT}, s{sT+1}")
e(f"s_lshl_b32 s{sT+1}, s{cNT}, 10"); e(f"s_add_u32 s{sT+1}, s{sT+1}, s{cAK}"); e(f"s_add_u32 s{sT+1}, s{sT+1}, {56*512}")
if OPT['aprio']: e("s_setprio 0")
stamp('pv')
if OPT['aearly']: e(f"s_cmp_eq_u32 s{sOK+1}, 1"); e("s_cbranch_scc1 LC_haveA")
e("s_waitcnt vmcnt(0)"); tsL(); e("s_cbranch_scc0 LC_slowH")
g.lab("LC_goH")
g.v = []
for k in range(4): c_aload(0, k)
g.lab("LC_haveA")
assert not OPT['aearly'] or (max(OPT['dpos'][:NPRE]) <= OPT['hq2'] and OPT['hq'] <= OPT['hq2'] + 2 and len(OPT['hpos']) <= 4)
for r in range(16): e(f"v_mul_f32 v{vO+r}, v{vO+r}, v{vSUM}")
for r in range(8): e(f"v_cvt_pk_bf16_f32 v{vO+8+7-r}, v{vO+14-2*r}, v{vO+15-2*r}")
dstore([f"buffer_store_dwordx4 {vr(vO+8+4*f,4)}, v{vOA}, {sr(sWS,4)}, s{sT+1} offen offset:{f*512}" for f in range(2)])
stamp('attn')
g.v += ['st', 'st']
e(f"v_bfe_u32 v{vT}, v{L}, 2, 3"); e(f"v_lshrrev_b32 v{vT+1}, 5, v{L}"); e(f"v_lshl_add_u32 v{vT+1}, v{vT+1}, 4, v{vT}")
e(f"v_lshlrev_b32 v{vT+1}, 8, v{vT+1}"); e(f"v_lshl_add_u32 v{vT+1}, v{vT}, 5, v{vT+1}")
e(f"v_and_b32 v{vT}, 3, v{L}"); e(f"v_lshl_add_u32 v{vT+1}, v{vT}, 3, v{vT+1}")
e(f"s_lshl_b32 s{sT}, s{cQ}, 6"); e(f"v_xor_b32 v{vT+1}, s{sT}, v{vT+1}"); e(f"v_add_u32 v{cvRA}, {CRING}, v{vT+1}")
for u in range(1, 8): e(f"v_xor_b32 v{cvRA+u}, {32*u}, v{cvRA}")
for p in range(1, OPT['apre']):
    for k in range(4): c_aload(p, k)
e("s_barrier")
VERS = {}
for q in range(4):
    b_ = OPT['bal'].get(q, [])
    hs = [(0, k) for k in range(14 + b_)] if isinstance(b_, int) else [(0, k) for k in range(14)] + [(qq - q, st) for qq, st in b_]
    VERS.setdefault(tuple(hs), []).append(q)
cov = sorted((q + dq, st) for hs, qs in VERS.items() for q in qs for dq, st in hs)
assert cov == [(q, st) for q in range(4) for st in range(14)], cov
VL = list(VERS.items())
for V, (hs, qs) in enumerate(VL[1:], 1):
    for q in qs: e(f"s_cmp_eq_u32 s{cQ}, {q}"); e(f"s_cbranch_scc1 LC_ver{V}")
V0 = list(g.v); CUR0 = dict(CUR)
for V, (hs, qs) in enumerate(VL):
    HS = list(hs); NH = len(HS); NS = NH + 4; NOWN = min(NH, 14); g.v = list(V0); CUR.update(CUR0)
    g.lab(f"LC_ver{V}")
    SEQ = []
    for s in range(NH):
        for ku in range(2):
            us = list(range(8)) if not (s == NH-1 and ku == 1) else [4,5,6,7,0,1,2,3]
            SEQ += [(s, ku, u, (0, 1)) for u in us]
    I1 = len(SEQ)
    SEQ += [(s, ku, u, (0, 1)) for s in range(NH, NS) for ku in range(2) for u in range(4, 8)]
    I2 = len(SEQ)
    SEQ += [(s, ku, u, (0, 1)) for s in range(NH, NS) for ku in range(2) for u in (2, 3)]
    I3 = len(SEQ)
    SEQ += [(s, ku, u, (0, 1)) for s in range(NH, NS) for ku in range(2) for u in (0, 1)]
    if OPT['csn']: SEQ = [(s, ku, u, m[::-1] if (i & 1) else m) for i, (s, ku, u, m) in enumerate(SEQ)]
    def wread(i):
        if i >= len(SEQ): return
        s, ku, u, _ = SEQ[i]
        for tr in range(2):
            g.lds(f"ds_read_b64_tr_b16 {vr(cvWF+4*(i&7)+2*tr,2)}, v{cvRA+u} offset:{(s%4)*16384+ku*8192+tr*2048}", ('W', i & 7))
    g.q = []
    for i in range(7): wread(i)
    stamp('loopC')
    cRD = 48
    cvO32, cvRF, cvOUT, cvG = 22, 23, 24, 25
    cRV = cvACC + 32
    def ldO(): e(f"buffer_load_dword v{cvPL}, v{cvO32}, {sr(sWS,4)}, s54 offen offset:{FL_O} sc1")
    def ldR(): e(f"buffer_load_dword v{cvPL}, v{cvRF}, {sr(sWS,4)}, s{sT+6} offen offset:{FL_P} sc1")
    def ldR2(): e(f"buffer_load_dword v{cvPL}, off, {sr(sWS,4)}, s{sT+5} offset:{FL_P2} sc1")
    def rloads(ii):
        for i in ii:
            e(f"s_add_u32 s{sT}, s{cRD+3}, {i*16384}")
            for f in range(2): e(f"buffer_load_dwordx4 {vr(cRV+8*(i-1)+4*f,4)}, v{vL16}, {sr(sWS,4)}, s{sT} offen offset:{f*1024} sc1")
    t0, t1 = vT, vT+1
    fill = {s: [] for s in range(NS)}
    fill[1] = [[x] for x in (
        f"v_and_b32 v{cvO32}, 31, v{L}", f"v_lshlrev_b32 v{cvO32}, 9, v{cvO32}", f"s_lshl_b32 s54, s{sRB}, 14", f"s_add_u32 s54, s54, {WS_FL:#x}",
        f"v_and_b32 v{t0}, 3, v{L}", f"v_max_u32 v{t0}, 1, v{t0}", f"v_lshlrev_b32 v{t1}, 1, v{t0}", f"v_and_b32 v{t1}, 4, v{t1}", f"v_xor_b32 v{t1}, 4, v{t1}",
        f"v_lshlrev_b32 v{t0}, 3, v{t0}", f"v_xor_b32 v{t0}, s{sLAM}, v{t0}", f"v_lshl_add_u32 v{cvRF}, v{t0}, 9, v{t1}",
        f"s_mov_b32 s{sT+6}, {WS_FL:#x}", f"s_mov_b32 s{sDN}, 0", f"s_mov_b32 s{sOK+1}, 0")]
    fill[2] = [[x] for x in (
        f"s_lshl_b32 s{sT}, s{sRB}, 3", f"s_add_u32 s{sT}, s{sT}, s{cNT}", f"s_lshl_b32 s{sT}, s{sT}, 18", f"s_lshl_b32 s{sT+1}, s{sW}, 11", f"s_add_u32 s{sT}, s{sT}, s{sT+1}", f"s_add_u32 s{sT}, s{sT}, {WS_PART:#x}")]
    for i in (1, 2, 3):
        fill[2] += [[x] for x in (f"s_xor_b32 s{sT+1}, s{cQ}, {i}", f"s_lshl_b32 s{sT+1}, s{sT+1}, 16", f"s_add_u32 s{sT+1}, s{sT+1}, s{sT}", f"s_add_u32 s{cRD+i-1}, s{sT+1}, {i*16384}")]
    fill[2] += [[x] for x in (f"s_lshl_b32 s{sT+1}, s{cQ}, 16", f"s_add_u32 s{cRD+3}, s{sT+1}, s{sT}",
        f"s_lshl_b32 s{sT}, s{sRB}, 19", f"s_lshl_b32 s{sT+1}, s{sW}, 16", f"s_add_u32 s{sT}, s{sT}, s{sT+1}",
        f"s_lshl_b32 s{sT+1}, s{cNT}, 8", f"s_add_u32 s{sT}, s{sT}, s{sT+1}", f"s_lshl_b32 s{sT+1}, s{cQ}, 6",
        f"s_add_u32 s{cRD+4}, s{sT}, s{sT+1}", f"s_add_u32 s39, s{cRD+4}, 32768",
        f"v_and_b32 v{cvOUT}, 15, v{L}", f"v_lshlrev_b32 v{cvOUT}, 11, v{cvOUT}", f"v_bfe_u32 v{t0}, v{L}, 4, 1", f"v_lshl_add_u32 v{cvOUT}, v{t0}, 5, v{cvOUT}",
        f"v_lshrrev_b32 v{t0}, 5, v{L}", f"v_lshl_add_u32 v{cvOUT}, v{t0}, 4, v{cvOUT}")]
    send = {1: [], 2: [], 3: []}
    for i in (1, 2, 3):
        d = cvPT + 8*(i-1)
        for k in range(4):
            a = cvACC + 16*i + 4*k
            send[i] += [[f"v_cvt_pk_bf16_f32 v{d+2*k}, v{a}, v{a+1}", f"v_cvt_pk_bf16_f32 v{d+2*k+1}, v{a+2}, v{a+3}"]]
            if k & 1: send[i] += [[f"@{'T' if i == 1 else 'S'} buffer_store_dwordx4 {vr(d+4*(k>>1),4)}, v{vL16}, {sr(sWS,4)}, s{cRD+i-1} offen offset:{(k>>1)*1024} sc1"]]
    pa = [(s, k) for s in range(OPT['apre'], NS) for k in range(4)]
    pd = [(s, k) for s in range(NPRE, NS) for k in range(2)]
    cvG2 = 128
    cvGc = 130
    def gload():
        e(f"v_and_b32 v{t0}, 7, v{L}"); e(f"v_bfe_u32 v{t1}, v{L}, 3, 1"); e(f"v_lshlrev_b32 v{t1}, 9, v{t1}"); e(f"v_lshl_add_u32 v{t0}, v{t0}, 2, v{t1}")
        e(f"s_lshl_b32 s{sT}, s{sW}, 11"); e(f"s_add_u32 s{sT}, s{sT}, s54")
        for k in range(2): g.vm(f"buffer_load_dword v{cvG2+k}, v{t0}, {sr(sWS,4)}, s{sT} offen offset:{1024*k} sc1", 'gv')
    fill[NH-1] = [["@G"]]
    for k in range(2):
        r = cvG2 + k
        fill[NH-1] += [[f"v_max_f32 v{cvGc+k}, {f32(2.0**-60)}, v{r}"], [f"v_sub_f32 v{r}, 1.0, v{r}"], [f"v_cvt_pk_bf16_f32 v{r}, v{r}, v{r}"], [f"v_and_b32 v{r}, 0xffff0000, v{r}"],
                       [f"v_rcp_f32 v{t0}, v{cvGc+k}", "s_nop 0"], [f"v_mul_f32 v{r}, v{r}, v{t0}"]]
    def rescale(u, mf):
        a = cvACC + 8*u + 4*mf
        if OPT['dbg'] & 2:
            for r in range(4): e(f"v_mul_f32 v{a+r}, v{a+r}, v{cvG2+mf}")
            return
        for r in (0, 2): e(f"v_pk_mul_f32 {vr(a+r,2)}, {vr(a+r,2)}, {vr(cvG2,2)} op_sel:[0,{mf}] op_sel_hi:[1,{mf}]")
    WIN = [[16, 31, fill[1]], [32, 47, fill[2]], [16*(NH-1), 16*(NH-1)+11, fill[NH-1]], [I2+1, I2+8, send[2]+send[3]], [I3+1, I3+4, send[1]]]
    for w in WIN: w.append(len(w[2]))
    vis = 0; freed = -1
    def nafter(tag): return min(15, len(g.v) - 1 - max(i for i, t in enumerate(g.v) if t == tag)) if tag in g.v else min(15, len(g.v))
    for i, (s, ku, u, mfs) in enumerate(SEQ):
        if i == I1: stamp('endH')
        if i == I3: stamp('p3')
        cur = min(s, NH) if i >= I1 else s
        for idx, mf in enumerate(mfs):
            k = 2*ku + mf; a = cvACC + 8*u + 4*mf
            g.need([('W', i & 7)], [('a', s, k)])
            e(f"{MF16} {vr(a,4)}, {vr(cvWF+4*(i&7),4)}, {vr(cvAR+16*((s+1)%D)+4*k,4)}, " + ("0" if i < 8 else vr(a,4)))
            if I1 - 4 <= i < I1 + 4: rescale(SEQ[i-4][2], mf)
            if idx == 0:
                if i + 7 < len(SEQ) and SEQ[i+7][0] > vis:
                    vis = SEQ[i+7][0]
                    g.need([('W', k) for k in range(8)] if vis <= NH else [], [('d', vis)] + (['st'] if vis == 2 else [])); e("s_barrier")
                    if vis == 2:
                        e(f"s_cmp_lg_u32 s{sW}, 0"); e(f"s_cbranch_scc1 LC_nof1{V}")
                        one_lane(lambda: e(f"buffer_store_dword v{vCN}, off, {sr(sWS,4)}, s{sT+7} offset:{FL_O} sc1"))
                        g.lab(f"LC_nof1{V}")
                wread(i+7)
                nxt = None
                if i % 2 == 0 or i >= I1:
                    okd = pd and pd[0][0] <= (vis + 3 if pd[0][0] == NS-1 else cur + 3); oka = pa and pa[0][0] <= cur + D - 1
                    if okd and (not oka or pd[0][0] <= pa[0][0] and (i % 16 % 6 == 2 or pd[0][0] < pa[0][0])): nxt = 'd'
                    elif oka: nxt = 'a'
                    if nxt == 'd' and pd[0][1] == 0: c_m0(pd[0][0])
            for lo, hi, fl, n0 in WIN:
                if lo <= i <= hi:
                    frac = (i - lo + (idx+1)/len(mfs)) / (hi - lo + 1)
                    while fl and (n0 - len(fl)) < n0 * frac - 1e-9:
                        for x in fl.pop(0):
                            if x.startswith("@S "): g.vm(x[3:], 'snd')
                            elif x.startswith("@T "): g.vm(x[3:], 'snd2')
                            elif x == "@G": g.need([], ['gv'])
                            else: e(x)
            if idx == len(mfs) - 1:
                if nxt == 'd': c_dma(*pd.pop(0))
                elif nxt == 'a':
                    if pa[0] == (NOWN, 0):
                        g.need([], ['opoll']); tsL(); e(f"s_cbranch_scc0 LC_slowO{V}"); g.lab(f"LC_goO{V}"); gload()
                    c_aload(*pa.pop(0))
                if i == 16*(NOWN - D - 1) + 1: ldO(); g.v.append('opoll')
                if i >= I2 + 11 and (i - I2) % 4 == 3: trysig(nafter('snd'), CNT2+4, 0, FL_P, force=(i == len(SEQ)-1))
                if i >= I3 + 9 and (i - I3) % 4 == 1: trysig(nafter('snd2'), CNT2+8, 0, FL_P2, sDN=sOK+1)
                if i == I3 + OPT['rp']: ldR(); g.v.append('rpoll')
    assert not pa and not pd and not any(w[2] for w in WIN)
    if V < len(VL) - 1: e("s_branch LC_done")
    sv = g.L; g.L = g.tail
    g.lab(f"LC_slowO{V}"); spin(f"LC_spinO{V}", ldO, tsL, sT+3); e(f"s_branch LC_goO{V}")
    g.L = sv
g.lab("LC_done")
sv = g.L; g.L = g.tail
g.lab("LC_slowH"); spin("LC_spinH", ldH, tsL, sT+3); e("s_branch LC_goH")
g.L = sv
stamp('endC')
trysig(nafter('snd2'), CNT2+8, 0, FL_P2, force=True, sDN=sOK+1)
e(f"s_mov_b32 s{sT+5}, 1"); e(f"s_mov_b32 s{sT+3}, {SPIN:#x}")
e(f"v_mov_b32 v{vT+4}, 0x3f80"); e(f"v_mov_b32 v{vT+5}, 0x3f800000")
g.lab("LC_rl")
e("s_waitcnt vmcnt(0)"); e(f"v_cmp_eq_u32 vcc, 1, v{cvPL}"); e(f"s_sub_u32 s{sT+3}, s{sT+3}, 1"); e(f"s_cselect_b32 s{sT+1}, 15, 0")
e(f"s_or_b32 s{sT+1}, s{sT+1}, vcc_lo"); e(f"s_andn2_b32 s{sT+1}, s{sT+1}, s{sT+5}"); e(f"s_and_b32 s{sT+1}, s{sT+1}, 15"); e(f"s_or_b32 s{sT+5}, s{sT+5}, s{sT+1}")
for i in (1, 2, 3):
    e(f"s_bitcmp1_b32 s{sT+1}, {i}"); e(f"s_cbranch_scc0 LC_rn{i}"); rloads((i,)); g.lab(f"LC_rn{i}")
e(f"s_cmp_eq_u32 s{sT+5}, 15"); e("s_cbranch_scc1 LC_rd")
if OPT['rsl']: e(f"s_sleep {OPT['rsl']}")
ldR(); e("s_branch LC_rl")
g.lab("LC_rd")
e("s_waitcnt vmcnt(0)")
for i in (2, 3, 1):
    d = cRV + 8*(i-1)
    for r in range(16): e(f"v_dot2_f32_bf16 v{cvACC+r}, v{d+(r>>1)}, v{vT+4+(r&1)}, v{cvACC+r}")
e("s_nop 2")
for mf in range(2):
    x = cvACC + 4*mf; y = x + 8; d = cvPT + 24 + 4*mf
    for r in range(4): e(f"v_mul_f32 v{x+r}, v{cvGc+mf}, v{x+r}"); e(f"v_mul_f32 v{y+r}, v{cvGc+mf}, v{y+r}")
    if OPT['pscale']:
        for r in range(4): e(f"v_mul_f32 v{x+r}, {f32(OPT['pscale'])}, v{x+r}"); e(f"v_mul_f32 v{y+r}, {f32(OPT['pscale'])}, v{y+r}")
    if OPT['perr'] and mf == 0:
        e(f"s_or_b32 s{sT}, s2, s{sW}"); e(f"s_cmp_eq_u32 s{sT}, 0"); e(f"s_cselect_b32 s{sT}, {f32(OPT['perr'])}, 0")
        e("s_mov_b64 exec, 1"); e(f"v_add_f32 v{x}, s{sT}, v{x}"); e("s_mov_b64 exec, -1")
    e(f"v_cvt_pk_bf16_f32 v{d}, v{x}, v{x+1}"); e(f"v_cvt_pk_bf16_f32 v{d+1}, v{x+2}, v{x+3}")
    e(f"v_cvt_pk_bf16_f32 v{d+2}, v{y}, v{y+1}"); e(f"v_cvt_pk_bf16_f32 v{d+3}, v{y+2}, v{y+3}")
    e("s_nop 1")
    e(f"v_permlane16_swap_b32 v{d}, v{d+2}"); e(f"v_permlane16_swap_b32 v{d+1}, v{d+3}")
    e(f"buffer_store_dwordx4 {vr(d,4)}, v{cvOUT}, {sr(cOUT,4)}, s{cRD+4 if mf == 0 else 39} offen {OPT['ost']}")
g.lab("LC_fin")
stamp('fin')
if OPT['stamp']:
    e(f"s_lshl_b32 s{sT}, s2, 3"); e(f"s_add_u32 s{sT}, s{sT}, s{sW}"); e(f"s_lshl_b32 s{sT}, s{sT}, 7"); e(f"s_add_u32 s{sT}, s{sT}, {WS_STAMP:#x}")
    e(f"v_lshlrev_b32 v{vT}, 2, v{L}"); e("s_mov_b32 exec_hi, 0")
    e(f"buffer_store_dword v0, v{vT}, {sr(sWS,4)}, s{sT} offen")
    if OPT['stamp'] == 2:
        e(f"v_readlane_b32 s{sT}, v0, 16"); e(f"s_not_b32 s{sT}, s{sT}"); e(f"v_writelane_b32 v0, s{sT}, 16")
        e(f"v_subrev_u32 v{vT}, 60, v{vT}"); e(f"s_mov_b32 exec_lo, {((1<<len(SN))-1)<<16:#x}")
        e(f"buffer_atomic_umax v0, v{vT}, {sr(sDBG,4)}, 0 offen sc1")
g.lab("L_end")
e("s_endpgm")
g.L += g.tail + g.tail2 + ['LZ_end:']
if OPT['nobar'] or OPT['nodma'] or OPT['nolds'] or OPT['noadv']:
    o = []; inl = False
    for l in g.L:
        if l.startswith('LA_loop') or l.startswith('LC_loop'): inl = True
        if 'LA_h1_' in l or l.startswith('LC_done'): inl = False
        if inl and OPT['nobar'] and 's_barrier' in l: continue
        if inl and OPT['nodma'] and 'buffer_load' in l: continue
        if inl and OPT['nolds'] and 'ds_read' in l: continue
        if inl and OPT['noadv'] and any(f's_add_u32 s{k}, s{k},' in l for k in list(range(sOW, sOW+5)) + [sKX]): continue
        o.append(l)
    g.L = o

hdr = [l.rstrip('\n') for l in open("cdna_kernels/%s.s.ref" % NAME)]
hdr = [l for l in hdr if l.startswith(';') and '@launch' not in l]
out = hdr + [f"; @launch grid=(256,1,1) block=(512,1,1) lds={LDS_BYTES}", '.amdgcn_target "amdgcn-amd-amdhsa--gfx950"', ".text"] + g.L
out += ['.section .rodata,"a"', ".p2align 6", f""".amdhsa_kernel {KN}
  .amdhsa_next_free_vgpr 256
  .amdhsa_next_free_sgpr 102
  .amdhsa_accum_offset 256
  .amdhsa_group_segment_fixed_size 0
  .amdhsa_kernarg_size 88
  .amdhsa_user_sgpr_count 2
  .amdhsa_user_sgpr_kernarg_segment_ptr 1
  .amdhsa_system_sgpr_workgroup_id_x 1
.end_amdhsa_kernel"""]
out.insert(0, "; stamps: " + ",".join(SN)) if OPT['stamp'] else None
open(sys.argv[1], "w").write("\n".join(out) + "\n")
import hazard
errs = hazard.check("\n".join(g.L))
print("\n".join(errs) if errs else "hazard check clean")
```

```python
import sys, struct
NAME = "gated_mix__sliding_block__swiglu_ffn__prompt"
KN = NAME + "_kernel"
OPT = dict(stamp=0, NP=16, jbx=5, xrd=[0,0,1,1], xpos=[2,4,6,8], wpos=[1,3,5,7,9], pfpos=19, stag=0, PD=3, pf=1, CB=1, defer=0, slp=2, touch=0, pfnt=0, wnt=0, bprio=0, amap=3, fast=0, D=4, npre=3, apre=1, hpos=[0,1,2,3], dpos=[4,5,6,7], lthr=80, ffb=0, fr=5, hx=0, fnt=1, cpf=3, cpf0=1, aprio=3, pvs=1, w1=2, csn=1, kq=34, rp=15, rsl=1, ginc=1, astag=1, pst=0, w1e=1, perr=0, dly=0, pscale=0, bal={0:[(1,13)],2:[(3,13)],3:-1,1:-1}, tlb=0, aearly=1, hq2=7, xfl='', wfl='', cfl='', ost='nt', h0=2, nopk=0, pf2=0, wdst=4, wdn=24, otail=0, gl=2, p3=0, rc=24, dbg=2, hq=9, early1=2, snake=1, tst=0, wshift=0, noadv=0, aflag='sc1', kvfast=0, rfast=0, pfast=1, wb=0, pre=0, cmap=1, m16=288*512, c3=0, kvs1=1, cprio=0, AB=0,
           noX=0, noW=0, noA=0, noW2=0, prio=0, kvs=2, nobar=0, nodma=0, nolds=0)
for a in sys.argv[2:]:
    k, v = a.split('='); assert k in OPT, k
    OPT[k] = eval(v)
def f32(x): return "0x%08x" % struct.unpack('<I', struct.pack('<f', x))[0]
def vr(a, n=1): return f"v[{a}:{a+n-1}]" if n > 1 else f"v{a}"
def sr(a, n=1): return f"s[{a}:{a+n-1}]" if n > 1 else f"s{a}"
NV = [0]
class Gen:
    def __init__(s): s.L = []; s.q = []; s.v = []; s.tail = []; s.tail2 = []
    def e(s, t): s.L.append("    " + t)
    def lab(s, t): s.L.append(t + ":")
    def lds(s, t, tag): s.e(t); s.q.append(tag)
    def vm(s, t, tag): s.e(t); s.v.append(tag); NV[0] += 1
    def need(s, tags=(), vt=()):
        w = []
        idx = [i for i, t in enumerate(s.v) if t in vt]
        if idx:
            n = len(s.v) - 1 - max(idx); s.v = s.v[max(idx)+1:]; assert n < 64
            w.append(f"vmcnt({n})")
        idx = [i for i, t in enumerate(s.q) if t in tags]
        if idx:
            n = len(s.q) - 1 - max(idx); s.q = s.q[max(idx)+1:]
            w.append(f"lgkmcnt({min(n,15)})")
        if w: s.e("s_waitcnt " + " ".join(w))
    def steady(s, body):
        sv = s.L; s.L = []; s.q = []; s.v = []
        body(); body(); r = (list(s.q), list(s.v)); s.L = sv
        return r
g = Gen(); e = g.e
M16 = OPT['m16']; A_BYTES = 128*M16
WS_KV = 0x1400000; WS_PART = 0x1C00000; WS_G = 0x2C00000; WS_FL = 0x2C10000; WS_STAMP = 0x3000000; WS_SIZE = 0x4000000
FL_KV, FL_H, FL_O, FL_P, FL_P2 = 128, 256, 260, 384, 388
sFAST = 34+1
LOG2E = 1.4426950408889634
SPIN = 0x8000
MF16 = "v_mfma_f32_16x16x32_bf16"; MF32 = "v_mfma_f32_32x32x16_bf16"
sW, sRB, sH, sMW, sNW = 3, 4, 5, 6, 7
sX, sA, sB, sQ, sWS, sDBG, sPF = 8, 12, 16, 20, 24, 28, 32
sKX, sOW, sMWd, sINCA, sMX, sCNT, sKXE, sPFO, sPFI, sLAM, sOK, sGO = 36, 37, 42, 47, 48, 49, 50, 51, 52, 53, 54, 55
sT = 56; sP = 64; sST = 86
pX, pQKV, pWO, pWG, pWU, pWD, pGW, pOUT, pDBG, pWSp = sP, sP+2, sP+4, sP+8, sP+10, sP+12, sP+14, sP+16, sP+18, sP+20
sFAST = 101
sK = sP+6
vL, vL16, vPF, vDX, vDA, vDB, vXR, vWG, vWQ, vDUM, vCN, vGV, vT = 1, 2, 3, 4, 8, 9, 10, 12, 14, 18, 19, 20, 26
vWF, vXF, vACC = 44, 64, 96
L = vL
def ACC(j, i): return vACC + (4*j+i)*4
XSLOT = 32768; WBASE = 65536; HALF = 20480; WSLOT = 2*HALF; GOFF = 6144; UOFF = 6144+7168
LDS_BYTES = 163840; QLDS = 147456; QLDS3 = 92160; CNTLDS = 163832; CNT2 = 96256; GLDS = 163776; sGW = 96
UNITS = [['q0','q1','k0','k1','g0','u0','g1','u1','g2','u2'], ['v0','v1','g3','u3','g4','u4','g5','u5','g6','u6']]
def srd(d, p, size):
    e(f"s_mov_b32 s{d}, s{p}"); e(f"s_and_b32 s{d+1}, s{p+1}, 0xffff"); e(f"s_mov_b32 s{d+2}, {size:#x}"); e(f"s_mov_b32 s{d+3}, 0x20000")
SN = ['start','loopA','endA','ks','hdone','kvok','bar2','sph','hs','pv','attn','loopC','endH','rs','endC','fin']
SN = ['start','loopA','ks','endA','hdone','kvok','bar2','sph','hs','pv','loopC','endH','rs','endC','rs2','fin']
if OPT['pst']: SN = ['start','karg','x0','w0','setup','w1','land','bar','loopA','fin']
if OPT['tst']: SN = ['start','loopA'] + [f't{i}' for i in range(7)] + ['endA', 'fin']
def stamp(name):
    if OPT['tst'] and name not in ('loopA', 'endA', 'fin'): return
    if name not in SN: return
    idx = SN.index(name); assert idx < 16
    if not OPT['stamp']: return
    e(f"s_memtime s[{sST}:{sST+1}]"); e(f"s_memrealtime s[{sST+2}:{sST+3}]"); e("s_waitcnt lgkmcnt(0)")
    e(f"v_writelane_b32 v0, s{sST}, {idx}"); e(f"v_writelane_b32 v0, s{sST+2}, {idx+16}")
def pstamp(k):
    if OPT['stamp']: e(f"s_memtime s[{92+2*k}:{93+2*k}]")
NDS = [0]
def dstore(lines, on=True):
    if True:
        for l in lines: e(l + " sc1")
        return
    k = NDS[0]; NDS[0] += 1
    e(f"s_cmp_eq_u32 s{sFAST}, 1"); e(f"s_cbranch_scc0 LS_s{k}")
    for l in lines: e(l)
    g.lab(f"LS_r{k}")
    g.tail2 += [f"LS_s{k}:"] + ["    " + l + " sc1" for l in lines] + [f"    s_branch LS_r{k}"]
def delay(k, bit):
    if not (OPT['dly'] >> k) & 1: return
    e(f"s_and_b32 s87, s2, 0x2f"); e(f"s_cmp_lg_u32 s87, {bit}"); e(f"s_cbranch_scc1 LD_{k}")
    for i in range(12): e("s_sleep 127")
    g.lab(f"LD_{k}")
def one_lane(f):
    e("s_mov_b64 exec, 1"); f(); e("s_mov_b64 exec, -1")

def a_wread(nw, n, tj=None):
    n %= 40; t = n // 10; j = n % 10
    if tj: t, j = tj
    sig = (t+1) >> 1; half = (t+1) & 1; slot = sig & 1; un = UNITS[nw][j]
    for tr in range(2):
        if un[0] in 'qkv':
            a = vWQ + 2*slot + int(un[1]); off = half*HALF + 'qkv'.index(un[0])*2048 + tr*512
        else:
            a = vWG + slot; off = half*HALF + (GOFF if un[0] == 'g' else UOFF) + tr*1792 + int(un[1])*32
        g.lds(f"ds_read_b64_tr_b16 {vr(vWF+4*(n%5)+2*tr,2)}, v{a} offset:{off}", ('W', n % 5))
def a_xread(i, t):
    t %= 4
    g.lds(f"ds_read_b128 {vr(vXF+16*(t&1)+4*i,4)}, v{vXR+(t&1)} offset:{(t>>1)*XSLOT+i*2048}", ('X', t & 1, i))
def a_m0(k, n, slot):
    if k == 'x': e(f"s_add_u32 m0, s{sMX}, {slot*XSLOT}")
    elif k == 'w': e(f"s_add_u32 m0, s{sMWd+n}, {slot*WSLOT}")
def a_op(k, n, slot, first=False):
    if k == 'x':
        g.vm(f"buffer_load_dwordx4 v{vDX+n}, {sr(sX,4)}, s{sKX} offen offset:{1024*n} {OPT['xfl']} lds", ('x', slot, n))
        if n == 3:
            e(f"s_add_u32 s{sKX}, s{sKX}, 128")
    elif k == 'w':
        d = [sA, sA, sB, sB, sQ][n]; v = vDA if n < 4 else vDB
        if first: e(f"s_cmp_lt_i32 s{sOW+n}, 0"); e(f"s_cbranch_scc1 LA_skipw{n}")
        g.vm(f"buffer_load_dwordx4 v{v}, {sr(d,4)}, s{sOW+n} offen" + (" nt" if (OPT['wnt'] & 1 or (first and OPT['fnt'])) else "") + f" {OPT['wfl']} lds", ('w', slot, n))
        if first: g.lab(f"LA_skipw{n}")
        e(f"s_add_u32 s{sOW+n}, s{sOW+n}, " + (f"s{sINCA}" if n < 4 else f"{64*6144}"))
    else:
        g.vm(f"buffer_load_dword v{vDUM}, v{vPF}, {sr(sPF,4)}, s{sPFO} offen" + (" nt" if OPT['wnt'] & 2 and NWCUR[0] == 0 else ""), ('p', 0, 0))
        e(f"s_add_u32 s{sPFO}, s{sPFO}, s{sPFI}")
def a_full(k, n, slot, first=False):
    a_m0(k, n, slot)
    if not first: e("s_nop 0")
    a_op(k, n, slot, first)
JBW = 6
def a_events(nw):
    ev = {}; st = OPT['stag']*nw
    for t in (1, 3):
        for n, o in enumerate(OPT['xpos']): assert 0 <= o+st < 20; ev.setdefault((t*10+OPT['jbx']+o+st) % 40, []).append(('x', n, t >> 1))
    for t in (0, 2):
        for n, o in enumerate(OPT['wpos']): assert 0 <= o+st < 20; ev.setdefault((t*10+JBW+o+st) % 40, []).append(('w', n, t >> 1))
        if OPT['pf']: ev.setdefault((t*10+JBW+OPT['pfpos']-st) % 40, []).append(('p', 0, 0))
    return ev
NWCUR = [0]
def a_body(nw):
    NWCUR[0] = nw
    ev = a_events(nw)
    for t in range(4):
        for j in range(10):
            n = t*10 + j; un = UNITS[nw][j]; evs = ev.get(n, [])
            for i in range(4):
                i2 = 3-i if (OPT['snake'] and j & 1) else i
                g.need([('W', n % 5), ('X', t & 1, i2)])
                a, b = vr(vWF+4*(n % 5), 4), vr(vXF+16*(t & 1)+4*i2, 4)
                if un[0] == 'v': a, b = b, a
                e(f"{MF16} {vr(ACC(j,i2),4)}, {a}, {b}, {vr(ACC(j,i2),4)}")
                if i == 0:
                    if t % 2 == 0 and j == JBW:
                        g.need([('W', k) for k in range(5)], [('w', 1-(t >> 1), k) for k in range(5)]); e("s_barrier")
                    if t % 2 == 1 and j == OPT['jbx']:
                        g.need([], [('x', 1-(t >> 1), k) for k in range(4)]); e("s_barrier")
                    a_wread(nw, n+4)
                if i == 1:
                    for ii in range(4):
                        if OPT['jbx'] + OPT['xrd'][ii] == j: a_xread(ii, t+1)
                    if evs: a_m0(*evs[0])
                if i == 2 and evs:
                    a_op(*evs[0])
                    for x in evs[1:]: a_full(*x)

def silu(jg, i, t, R):
    G = ACC(jg, i); U = ACC(jg+1, i)
    for r in range(0, 8, 2): e(f"v_pk_mul_f32 {vr(t+r,2)}, {vr(G+r,2)}, {sr(sK,2)}")
    for r in range(8): e(f"v_exp_f32 v{t+r}, v{t+r}")
    for r in range(0, 8, 2): e(f"v_pk_mul_f32 {vr(G+r,2)}, {vr(G+r,2)}, {vr(U+r,2)}")
    for r in range(0, 8, 2): e(f"v_pk_add_f32 {vr(t+r,2)}, {vr(t+r,2)}, s[94:95]")
    for r in range(8): e(f"v_rcp_f32 v{t+r}, v{t+r}")
    e("s_nop 0")
    for r in range(0, 8, 2): e(f"v_pk_mul_f32 {vr(G+r,2)}, {vr(G+r,2)}, {vr(t+r,2)}")
    for r in range(4): e(f"v_cvt_pk_bf16_f32 v{R+r}, v{G+2*r}, v{G+2*r+1}")
    e("s_nop 1")
    e(f"v_permlane32_swap_b32 v{R}, v{R+2}"); e(f"v_permlane32_swap_b32 v{R+1}, v{R+3}")
def pack2(j, i):
    a, b = ACC(j, i), ACC(j+1, i)
    e(f"v_cvt_pk_bf16_f32 v{a}, v{a}, v{a+1}"); e(f"v_cvt_pk_bf16_f32 v{a+1}, v{a+2}, v{a+3}")
    e(f"v_cvt_pk_bf16_f32 v{a+2}, v{b}, v{b+1}"); e(f"v_cvt_pk_bf16_f32 v{a+3}, v{b+2}, v{b+3}")
def spin(name, load, test, cnt):
    e(f"s_mov_b32 s{cnt}, {SPIN:#x}")
    g.lab(name)
    load(); e("s_waitcnt vmcnt(0)"); test()
    e(f"s_cbranch_scc1 {name}_ok")
    e(f"s_sub_u32 s{cnt}, s{cnt}, 1"); e(f"s_cbranch_scc1 {name}_ok")
    e(f"s_sleep {OPT['slp']}"); e(f"s_branch {name}")
    g.lab(name + "_ok")
NSIG = [0]
sDN, sHB, sFO = 100, 92, 101
vSG = 20
def trysig(n, ldsaddr, flagadd, flagoff, force=False, sDN=sDN):
    k = NSIG[0]; NSIG[0] += 1
    if force: e(f"s_cmp_eq_u32 s{sDN}, 0")
    else:
        e(f"s_getreg_b32 s{sFO}, hwreg(HW_REG_IB_STS)"); e(f"s_and_b32 s{sFO}, s{sFO}, 0xc0000f"); e(f"s_or_b32 s{sFO}, s{sFO}, s{sDN}"); e(f"s_cmp_le_u32 s{sFO}, {n}")
    e(f"s_cbranch_scc1 LG_s{k}"); g.lab(f"LG_r{k}")
    g.tail2 += [f"LG_s{k}:"] + ["    " + x for x in (
        f"v_mov_b32 v{vSG}, {ldsaddr}", f"s_mov_b32 s{sDN}, 0x10000", "s_mov_b64 exec, 1", f"s_waitcnt vmcnt({n})",
        f"ds_add_rtn_u32 v{vSG+1}, v{vSG}, v{vCN}", "s_waitcnt lgkmcnt(0)", f"v_readfirstlane_b32 s{sFO}, v{vSG+1}", "s_nop 1",
        f"s_cmp_lg_u32 s{sFO}, 7", f"s_cbranch_scc1 LG_x{k}", f"s_add_u32 s{sFO}, s{sT+7}, {flagadd}",
        f"buffer_store_dword v{vCN}, off, {sr(sWS,4)}, s{sFO} offset:{flagoff} sc1")] + [f"LG_x{k}:", "    s_mov_b64 exec, -1"]
    sv = g.L; g.L = g.tail2; stamp({FL_KV:'ks',FL_H:'hs',FL_P:'rs',FL_P2:'rs2'}[flagoff]); e(f"s_branch LG_r{k}"); g.L = sv
def gate_acc(X, W, t, one):
    return [[f"v_lshlrev_b32 v{t}, 16, v{X}"], [f"v_and_b32 v{t+1}, 0xffff0000, v{X}"], [f"v_lshlrev_b32 v{t+2}, 16, v{W}"],
            [f"v_and_b32 v{t+3}, 0xffff0000, v{W}"], [f"v_pk_mul_f32 {vr(t,2)}, {vr(t,2)}, {vr(t+2,2)}"], [f"v_cvt_pk_bf16_f32 v{t+4}, v{t}, v{t+1}"],
            [f"v_dot2_f32_bf16 v{t+5}, v{t+4}, v{one}, v{t+5}"]]
def gate_list(t, one):
    o = gate_acc(40, 41, t, one) + gate_acc(38, 39, t, one)
    o.append(["s_nop 1"])
    for m in ("quad_perm:[1,0,3,2] row_mask:0xf", "quad_perm:[2,3,0,1] row_mask:0xf", "row_half_mirror row_mask:0xf",
              "row_mirror row_mask:0xf", "row_bcast:15 row_mask:0xa", "row_bcast:31 row_mask:0xc"):
        o.append(["s_nop 1", f"v_add_f32_dpp v{t+5}, v{t+5}, v{t+5} {m} bank_mask:0xf"])
    o += [[f"v_cvt_pk_bf16_f32 v{t}, v{t+5}, v{t+5}", f"v_and_b32 v{t}, 0xffff0000, v{t}"], [f"v_mul_f32 v{t}, {f32(-LOG2E)}, v{t}", f"v_exp_f32 v{t}, v{t}", "s_nop 0"],
          [f"v_add_f32 v{t}, 1.0, v{t}", f"v_rcp_f32 v{t}, v{t}", "s_nop 0"], [f"v_cvt_pk_bf16_f32 v{t}, v{t}, v{t}", f"v_and_b32 v{t}, 0xffff0000, v{t}"],
          [f"s_lshl_b32 s{sT}, s{sW}, 2", f"s_add_u32 s{sT}, s{sT}, {GLDS}", f"v_mov_b32 v{t+1}, s{sT}"],
          ["s_mov_b32 exec_lo, 0", "s_brev_b32 exec_hi, 1", f"ds_write_b32 v{t+1}, v{t}", "s_mov_b64 exec, -1"]]
    return o

D = OPT['D']; NH = 14; OT = OPT['otail']; NT = 8 if OT else 4; NS = NH + NT
cA, cWt, cOUT, cWo, cX = 8, 12, 16, 32, 40
cAK, cWK, cWK2, cQ, cNT, cM0, cAK2 = 20, 21, 22, 23, 36, 37, 38
cvDW, cvA, cvPL, cvDW2, cvPA = 4, 6, 16, 20, 18
cvWF, cvAR, cvRB, cvRA, cvPT, cvOA, cvACC = 28, 60, 124, 136, 144, 176, 192
CRING = 98304
def c_setup():
    e(f"s_lshr_b32 s{cQ}, s{sH}, 3"); e(f"s_and_b32 s{cNT}, s{sH}, 7")
    e(f"s_lshl_b32 s{sT}, s{cNT}, 8")
    e(f"s_lshl_b32 s{cWK}, s{sW}, 14"); e(f"s_add_u32 s{cWK}, s{cWK}, s{sT}")
    e(f"s_lshl_b32 s{cWK2}, s{sW}, {15 if OT else 14}"); e(f"s_add_u32 s{cWK2}, s{cWK2}, s{sT}")
    e(f"s_mul_i32 s{sT}, s{cQ}, {896*2048}"); e(f"s_add_u32 s{cWK}, s{cWK}, s{sT}")
    if OT: e(f"s_lshr_b32 s{sT}, s{cQ}, 1"); e(f"s_lshl_b32 s{sT}, s{sT}, 7")
    else: e(f"s_lshl_b32 s{sT}, s{cQ}, 19")
    e(f"s_add_u32 s{cWK2}, s{cWK2}, s{sT}")
    e(f"s_lshl_b32 s{cM0}, s{sW}, 11"); e(f"s_add_u32 s{cM0}, s{cM0}, {CRING}")
    srd(cWt, pWD, 0 if OPT['noW2'] else 3584*2048); srd(cWo, pWO, 0 if OPT['noW2'] else 1024*2048)
    srd(cA, pWSp, 0 if OPT['noA'] else A_BYTES); srd(cOUT, pOUT, 2048*2048)
    e(f"s_lshl_b32 s{sT}, s{sRB}, 4"); e(f"s_lshl_b32 s{cAK}, s{sW}, 1"); e(f"s_add_u32 s{sT}, s{sT}, s{cAK}")
    e(f"s_mul_i32 s{cAK}, s{sT}, {M16}"); e(f"s_add_u32 s{cAK2}, s{cAK}, {56*512}")
    e(f"s_mul_i32 s{sT}, s{cQ}, {72*512}"); e(f"s_add_u32 s{cAK}, s{cAK}, s{sT}")
    e(f"v_mov_b32 v{cvA}, v{vL16}"); e(f"v_add_u32 v{cvA+1}, {M16}, v{vL16}")
    e(f"v_lshrrev_b32 v{vT}, 4, v{vL}"); e(f"v_bfe_u32 v{vT+1}, v{vL}, 1, 3"); e(f"v_xor_b32 v{vT+1}, v{vT+1}, v{vT}")
    e(f"v_lshlrev_b32 v{vT}, 11, v{vT}"); e(f"v_lshl_add_u32 v{vT}, v{vT+1}, 5, v{vT}")
    e(f"v_and_b32 v{vT+1}, 1, v{vL}"); e(f"v_lshl_add_u32 v{cvDW}, v{vT+1}, 4, v{vT}")
    e(f"v_xor_b32 v{cvDW+1}, 128, v{cvDW}"); e(f"v_add_u32 v{cvDW+1}, 7168, v{cvDW+1}")
    e(f"v_and_b32 v{cvPA}, 7, v{L}"); e(f"v_lshlrev_b32 v{cvPA}, 9, v{cvPA}")
def c_m0(s): e(f"s_add_u32 m0, s{cM0}, {(s % 4)*16384}")
HS = [(0, k) for k in range(14)]
CUR = {'a': 0, 'w': 0}
def c_dma(s, n):
    if s < NH:
        off = (HS[s][0]*896 + HS[s][1]*64)*2048
        if off != CUR['w']: e(f"s_add_u32 s{cWK}, s{cWK}, {(off-CUR['w']) & 0xffffffff:#x}"); CUR['w'] = off
        g.vm(f"buffer_load_dwordx4 v{cvDW+n}, {sr(cWt,4)}, s{cWK} offen offset:{n*1024} lds", ('d', s))
    else:
        g.vm(f"buffer_load_dwordx4 v{cvDW+n}, {sr(cWo,4)}, s{cWK2} offen offset:{n*1024} lds", ('d', s))
        if n == 1: e(f"s_add_u32 s{cWK2}, s{cWK2}, {64*2048}")
def c_aload(s, k):
    ku, mf = k >> 1, k & 1
    off = HS[s][0]*72*512 + HS[s][1]*2048 if s < NH else (14 + s - NH)*2048
    if not (0 <= off - CUR['a'] <= 2048): e(f"s_add_u32 s{cAK}, s{cAK}, {(off-CUR['a']) & 0xffffffff:#x}"); CUR['a'] = off
    g.vm(f"buffer_load_dwordx4 {vr(cvAR+16*((s+1)%D)+4*k,4)}, v{cvA+mf}, {sr(cA,4)}, s{cAK} offen offset:{off-CUR['a']+ku*1024} sc1", ('a', s, k))
def c_wread(s, n):
    s += n // 16; n %= 16
    if s >= NS: return
    for tr in range(2):
        if s < NH or not OT: a, off = cvRA + (n & 7), (n >> 3)*8192 + tr*2048
        else: a, off = cvRB + (n & 3), (n >> 2)*4096 + tr*1024
        g.lds(f"ds_read_b64_tr_b16 {vr(cvWF+4*(n&7)+2*tr,2)}, v{a} offset:{(s%4)*16384+off}", ('W', n & 7))

g.L += [".globl " + KN, ".p2align 8", f".type {KN},@function"]
g.lab(KN)
e("s_cmp_ge_u32 s2, 256"); e("s_cbranch_scc1 L_end")
e(f"s_load_dwordx16 {sr(sP,16)}, s[0:1], 0"); e(f"s_load_dwordx4 {sr(sP+16,4)}, s[0:1], 64"); e(f"s_load_dwordx2 {sr(sP+20,2)}, s[0:1], 80")
if OPT['stamp']: e(f"s_memtime s[{sST+4}:{sST+5}]"); e(f"s_memrealtime s[{sST+6}:{sST+7}]")
if OPT['cpf0']:
    e(f"s_getpc_b64 s[{sT}:{sT+1}]"); g.lab("LA_pc0")
    e(f"s_sub_u32 s{sT}, s{sT}, LA_pc0-{KN}"); e(f"s_subb_u32 s{sT+1}, s{sT+1}, 0")
    e(f"s_lshr_b32 s{sT+2}, s2, 3"); e(f"s_lshl_b32 s{sT+2}, s{sT+2}, 7")
    e(f"v_lshlrev_b32 v26, 12, v0"); e(f"v_add_u32 v26, s{sT+2}, v26")
    e(f"v_cmp_gt_u32 vcc, LZ_end-{KN}-4, v26"); e(f"v_mov_b32 v27, s{sT+1}"); e(f"s_and_saveexec_b64 s[{sT+2}:{sT+3}], vcc"); e("s_cbranch_execz LA_nopc")
    e(f"v_add_co_u32 v26, vcc, s{sT}, v26"); e("s_nop 1"); e(f"v_addc_co_u32 v27, vcc, 0, v27, vcc")
    e(f"global_load_dword v{vDUM}, v[26:27], off")
    g.lab("LA_nopc"); e("s_mov_b64 exec, -1")
e(f"v_lshrrev_b32 v{vT}, 6, v0"); e(f"v_and_b32 v{vL}, 63, v0"); e(f"v_readfirstlane_b32 s{sW}, v{vT}")
if OPT['amap'] == 0:
    e(f"s_lshr_b32 s{sRB}, s2, 5"); e(f"s_and_b32 s{sH}, s2, 7"); e(f"s_lshl_b32 s{sH}, s{sH}, 2")
    e(f"s_bfe_u32 s{sT}, s2, {(2<<16)|3:#x}"); e(f"s_add_u32 s{sH}, s{sH}, s{sT}")
elif OPT['amap'] == 1:
    e(f"s_and_b32 s{sRB}, s2, 7"); e(f"s_lshr_b32 s{sH}, s2, 3")
elif OPT['amap'] == 2:
    e(f"s_and_b32 s{sRB}, s2, 6"); e(f"s_lshr_b32 s{sT}, s2, 7"); e(f"s_add_u32 s{sRB}, s{sRB}, s{sT}")
    e(f"s_and_b32 s{sH}, s2, 1"); e(f"s_lshl_b32 s{sH}, s{sH}, 4"); e(f"s_bfe_u32 s{sT}, s2, {(4<<16)|3:#x}"); e(f"s_add_u32 s{sH}, s{sH}, s{sT}")
if OPT['amap'] == 3:
    e(f"s_and_b32 s{sRB}, s2, 4"); e(f"s_lshr_b32 s{sT}, s2, 6"); e(f"s_add_u32 s{sRB}, s{sRB}, s{sT}")
    e(f"s_and_b32 s{sH}, s2, 3"); e(f"s_lshl_b32 s{sH}, s{sH}, 3"); e(f"s_bfe_u32 s{sT}, s2, {(3<<16)|3:#x}"); e(f"s_add_u32 s{sH}, s{sH}, s{sT}")
e(f"s_and_b32 s{sMW}, s{sW}, 3"); e(f"s_lshr_b32 s{sNW}, s{sW}, 2")
e(f"s_lshl_b32 s{sLAM}, s{sRB}, 5"); e(f"s_add_u32 s{sLAM}, s{sLAM}, s{sH}")
e(f"v_lshlrev_b32 v{vL16}, 4, v{L}")
e(f"v_lshrrev_b32 v{vT}, 3, v{L}"); e(f"v_lshlrev_b32 v{vT}, 11, v{vT}")
e(f"v_lshrrev_b32 v{vT+1}, 4, v{L}"); e(f"v_and_b32 v{vT+2}, 7, v{L}"); e(f"v_xor_b32 v{vT+1}, v{vT+1}, v{vT+2}")
e(f"v_lshl_add_u32 v{vDX}, v{vT+1}, 4, v{vT}"); e(f"v_xor_b32 v{vDX+1}, 64, v{vDX}")
e(f"v_add_u32 v{vDX+2}, {2*15360}, v{vDX}"); e(f"v_add_u32 v{vDX+3}, {3*15360}, v{vDX+1}"); e(f"v_add_u32 v{vDX+1}, 15360, v{vDX+1}")
def swap23(d, s, t):
    e(f"v_and_b32 v{d}, 0x13, v{s}")
    e(f"v_and_b32 v{t}, 4, v{s}"); e(f"v_lshl_or_b32 v{d}, v{t}, 1, v{d}")
    e(f"v_and_b32 v{t}, 8, v{s}"); e(f"v_lshrrev_b32 v{t}, 1, v{t}"); e(f"v_or_b32 v{d}, v{d}, v{t}")
e(f"v_lshrrev_b32 v{vT}, 2, v{L}"); swap23(vT+1, vT, vT+2)
e(f"v_mul_u32_u24 v{vT+1}, 6144, v{vT+1}")
e(f"v_lshrrev_b32 v{vT}, 3, v{L}"); e(f"v_and_b32 v{vT}, 2, v{vT}"); e(f"v_and_b32 v{vT+2}, 3, v{L}"); e(f"v_xor_b32 v{vT}, v{vT}, v{vT+2}")
e(f"v_lshl_add_u32 v{vDB}, v{vT}, 4, v{vT+1}")
e(f"v_mul_u32_u24 v{vT}, 4682, v0"); e(f"v_lshrrev_b32 v{vT}, 16, v{vT}")
e(f"v_mul_u32_u24 v{vT+3}, 14, v{vT}"); e(f"v_sub_u32 v{vT+3}, v0, v{vT+3}")
swap23(vT+1, vT, vT+2)
e(f"v_mul_u32_u24 v{vT+1}, 7168, v{vT+1}"); e(f"v_lshl_add_u32 v{vDA}, v{vT+3}, 4, v{vT+1}")
e(f"s_lshl_b32 s{sKX}, s{sRB}, 19"); e(f"s_lshl_b32 s{sT}, s{sW}, 16"); e(f"s_add_u32 s{sKX}, s{sKX}, s{sT}")
e(f"s_add_u32 s{sKXE}, s{sKX}, 2048"); e(f"s_lshl_b32 s{sMX}, s{sW}, 12")
e(f"s_mul_i32 s{sOW+1}, s{sH}, 224"); e(f"s_sub_u32 s{sOW}, s{sOW+1}, {32*7168}")
e(f"s_mov_b32 s{sOW+2}, s{sOW}"); e(f"s_mov_b32 s{sOW+3}, s{sOW+1}")
e(f"s_lshl_b32 s{sT}, s{sW}, 10")
for n, o in enumerate((GOFF, GOFF+HALF, UOFF, UOFF+HALF)): e(f"s_add_u32 s{sMWd+n}, s{sT}, {WBASE+o}")
e(f"s_mov_b32 s{sINCA}, {64*7168}")
def qpiece(p):
    half, unit, rg = p // 6, (p % 6) // 2, p % 2
    return (WBASE + half*HALF + unit*2048 + rg*1024, ((-32 + half*32 + rg*16)*6144 + unit*2048) & 0xffffffff)
e(f"s_lshl_b32 s{sT+1}, s{sH}, 6")
e(f"s_add_u32 s{sMWd+4}, s{sT}, {WBASE}")
e(f"s_and_b32 s{sT+2}, s{sW}, 1"); e(f"s_mul_i32 s{sT+2}, s{sT+2}, {16*6144}")
e(f"s_lshr_b32 s{sT+3}, s{sW}, 1"); e(f"s_lshl_b32 s{sT+3}, s{sT+3}, 11"); e(f"s_add_u32 s{sT+2}, s{sT+2}, s{sT+3}")
e(f"s_sub_u32 s{sOW+4}, s{sT+2}, {32*6144}")
for w, p in ((6, 6), (7, 11)):
    l, o = qpiece(p)
    e(f"s_cmp_eq_u32 s{sW}, {w}"); e(f"s_cselect_b32 s{sMWd+4}, {l:#x}, s{sMWd+4}"); e(f"s_cselect_b32 s{sOW+4}, {o:#x}, s{sOW+4}")
e(f"s_add_u32 s{sOW+4}, s{sOW+4}, s{sT+1}")
e("s_waitcnt lgkmcnt(0)")
if OPT['stamp']: e(f"v_writelane_b32 v0, s{sST+4}, 0"); e(f"v_writelane_b32 v0, s{sST+6}, 16")
delay(0, 5)
stamp('karg')
srd(sX, pX, 0 if OPT['noX'] else 2048*2048)
for n in range(4): a_full('x', n, 0)
stamp('x0')
srd(sQ, pQKV, 0 if OPT['noW'] else 1024*6144); srd(sA, pWG, 0 if OPT['noW'] else 1024*7168); srd(sB, pWU, 0 if OPT['noW'] else 1024*7168)
e(f"s_cmp_eq_u32 s{sW}, 7"); e("s_cbranch_scc0 LA_not7")
for d in (sA, sB):
    for k in range(3): e(f"s_mov_b32 s{d+k}, s{sQ+k}")
for n in range(4):
    l, o = qpiece(7+n)
    e(f"s_mov_b32 s{sMWd+n}, {l:#x}"); e(f"s_add_u32 s{sOW+n}, s{sT+1}, {o:#x}")
e(f"s_mov_b32 s{sINCA}, {64*6144}"); e(f"v_mov_b32 v{vDA}, v{vDB}")
g.lab("LA_not7")
if OPT['wshift']:
    for n in range(5): e(f"s_add_u32 s{sOW+n}, s{sOW+n}, " + (f"s{sINCA}" if n < 4 else f"{64*6144}"))
for n in range(5): a_full('w', n, 0, True)
stamp('w0')
srd(sWS, pWSp, WS_SIZE); srd(sDBG, pDBG, 256); srd(sPF, pGW, 2048)
PD = OPT['PD'] - OPT['pre']; sPB = sT+6
assert OPT['amap'] == 3
e(f"s_lshr_b32 s{sT+1}, s2, 3"); e(f"s_lshr_b32 s{sT+2}, s{sH}, 3")
e(f"v_lshlrev_b32 v{vPF}, 7, v{L}"); e(f"s_mov_b32 s{sT+3}, 0"); e(f"s_mov_b32 s{sCNT}, 0"); e(f"s_mov_b32 s{sPFO}, 0"); e(f"s_mov_b32 s{sPFI}, 0")
e(f"s_mov_b32 s{sPB}, s{pX}"); e(f"s_mov_b32 s{sPB+1}, s{pX+1}")
def pfcase(w, body):
    e(f"s_cmp_lg_u32 s{sW}, {w}"); e(f"s_cbranch_scc1 LA_pf{w}"); body(); g.lab(f"LA_pf{w}")
def base(p, size): e(f"s_mov_b32 s{sPB}, s{p}"); e(f"s_mov_b32 s{sPB+1}, s{p+1}"); e(f"s_mov_b32 s{sCNT}, {size:#x}")
R2 = 2 if OPT['pf2'] else 1
def pf_x():
    base(pX, 2048*2048); e(f"v_and_b32 v{vT}, 31, v{L}"); e(f"v_lshlrev_b32 v{vT}, 11, v{vT}"); e(f"v_lshrrev_b32 v{vPF}, 5, v{L}"); e(f"v_lshl_add_u32 v{vPF}, v{vPF}, 7, v{vT}")
    e(f"s_and_b32 s{sT+4}, s{sH}, 7"); e(f"s_lshl_b32 s{sT+4}, s{sT+4}, 16"); e(f"s_lshl_b32 s{sPFO}, s{sRB}, 19"); e(f"s_add_u32 s{sPFO}, s{sPFO}, s{sT+4}")
    e(f"s_add_u32 s{sPFO}, s{sPFO}, {PD*128}"); e(f"s_mov_b32 s{sPFI}, {128*R2}"); e(f"s_mov_b32 s{sT+3}, {32*R2}")
def pf_gu(p):
    def f():
        base(p, 1024*7168); e(f"v_mul_u32_u24 v{vT}, 4682, v{L}"); e(f"v_lshrrev_b32 v{vT}, 16, v{vT}")
        e(f"v_mul_u32_u24 v{vT+1}, {7168-1792}, v{vT}"); e(f"v_add_u32 v{vPF}, v{vPF}, v{vT+1}")
        e(f"v_lshrrev_b32 v{vT}, 1, v{vT}"); e(f"v_mul_u32_u24 v{vT}, {62*7168}, v{vT}"); e(f"v_add_u32 v{vPF}, v{vPF}, v{vT}")
        e(f"s_mul_i32 s{sPFO}, s{sT+1}, {2*7168}"); e(f"s_mul_i32 s{sT+4}, s{sT+2}, 1792"); e(f"s_add_u32 s{sPFO}, s{sPFO}, s{sT+4}")
        e(f"s_add_u32 s{sPFO}, s{sPFO}, {(64*PD-32)*7168}"); e(f"s_mov_b32 s{sPFI}, {64*7168*R2}"); e(f"s_mov_b32 s{sT+3}, {28*R2}")
    return f
def pf_q():
    base(pQKV, 1024*6144); e(f"v_lshrrev_b32 v{vT}, 2, v{L}"); e(f"v_lshlrev_b32 v{vT}, 11, v{vT}"); e(f"v_and_b32 v{vPF}, 3, v{L}")
    e(f"v_lshl_add_u32 v{vPF}, v{vPF}, 7, v{vT}")
    e(f"v_cmp_le_u32 vcc, 24, v{L}"); e(f"v_add_u32 v{vT}, {62*6144}, v{vPF}"); e("s_nop 0"); e(f"v_cndmask_b32 v{vPF}, v{vPF}, v{vT}, vcc")
    e(f"s_mul_i32 s{sPFO}, s{sT+1}, {2*6144}"); e(f"s_lshl_b32 s{sT+4}, s{sT+2}, 9"); e(f"s_add_u32 s{sPFO}, s{sPFO}, s{sT+4}")
    e(f"s_add_u32 s{sPFO}, s{sPFO}, {(64*PD-32)*6144}"); e(f"s_mov_b32 s{sPFI}, {64*6144*R2}"); e(f"s_mov_b32 s{sT+3}, {24*R2}")
def pf_lin(p, size, nl, st=0):
    def f():
        base(p, size); e(f"s_mul_i32 s{sPFO}, s{sLAM}, {nl*128}"); e(f"s_mov_b32 s{sPFI}, {nl*128*256}"); e(f"s_mov_b32 s{sT+3}, {nl}")
        if st: e(f"s_sub_u32 s{sPFO}, s{sPFO}, {st*nl*128*256}")
    return f
if OPT['pf']:
    if PD > 0: pfcase(6, pf_x); pfcase(1, pf_gu(pWG)); pfcase(2, pf_gu(pWU)); pfcase(3, pf_q)
    pfcase(4, pf_lin(pWD, 3584*2048, OPT['wdn'], OPT['wdst'])); pfcase(5, pf_lin(pWO, 1024*2048, 16, OPT['wdst']))
    if OPT['touch'] & 1: pfcase(6, pf_lin(pWSp, A_BYTES, 64))
    def pf_kv():
        pf_lin(pWSp, WS_KV + (0x1000000 if OPT['touch'] & 4 else 0x800000), 64)(); e(f"s_add_u32 s{sPFO}, s{sPFO}, {WS_KV:#x}")
    if OPT['touch'] & 2: pfcase(7, pf_kv)
e(f"v_cmp_gt_u32 vcc, s{sT+3}, v{L}"); e(f"v_bfrev_b32 v{vT}, 1"); e("s_nop 0"); e(f"v_cndmask_b32 v{vPF}, v{vT}, v{vPF}, vcc")
e(f"s_mov_b32 s{sPF}, s{sPB}"); e(f"s_and_b32 s{sPF+1}, s{sPB+1}, 0xffff"); e(f"s_mov_b32 s{sPF+2}, s{sCNT}")
for k in range(OPT['pre']): a_op('p', 0, 0)
W1E = {0: [], 1: [0,2,4], 2: [0,2,4,1,3]}[OPT['w1e']]
for n in W1E: a_full('w', n, 1)
e(f"v_and_b32 v{vT}, 15, v{L}"); e(f"s_lshl_b32 s{sT}, s{sMW}, 6"); e(f"v_add_u32 v{vT}, s{sT}, v{vT}"); e(f"v_lshlrev_b32 v{vT}, 7, v{vT}")
e(f"v_lshrrev_b32 v{vT+1}, 4, v{L}"); e(f"v_bfe_u32 v{vT+2}, v{L}, 1, 3"); e(f"v_xor_b32 v{vT+2}, v{vT+1}, v{vT+2}")
e(f"v_lshl_add_u32 v{vXR}, v{vT+2}, 4, v{vT}"); e(f"v_xor_b32 v{vXR+1}, 64, v{vXR}")
e(f"v_bfe_u32 v{vT}, v{L}, 2, 3")
e(f"v_lshrrev_b32 v{vT+1}, 5, v{L}"); e(f"v_lshl_add_u32 v{vT}, v{vT+1}, 4, v{vT}")
e(f"v_and_b32 v{vT+1}, 3, v{L}"); e(f"v_lshlrev_b32 v{vT+1}, 3, v{vT+1}"); e(f"v_add_u32 v{vT+1}, {WBASE}, v{vT+1}")
e(f"v_mul_u32_u24 v{vWG}, 224, v{vT}"); e(f"v_add_u32 v{vWG}, v{vWG}, v{vT+1}"); e(f"v_add_u32 v{vWG+1}, {WSLOT}, v{vWG}")
e(f"v_lshl_add_u32 v{vWQ}, v{vT}, 6, v{vT+1}"); e(f"v_bfe_u32 v{vT+2}, v{L}, 4, 1"); e(f"v_lshl_add_u32 v{vWQ}, v{vT+2}, 5, v{vWQ}")
e(f"v_xor_b32 v{vWQ+1}, 32, v{vWQ}"); e(f"v_add_u32 v{vWQ+2}, {WSLOT}, v{vWQ}"); e(f"v_add_u32 v{vWQ+3}, {WSLOT}, v{vWQ+1}")
for r in range(vACC, 256): e(f"v_mov_b32 v{r}, 0")
e(f"s_mov_b32 s{sK}, {f32(-LOG2E)}"); e(f"s_mov_b32 s{sK+1}, {f32(-LOG2E)}")
e(f"s_lshl_b32 s{sGO}, s{sLAM}, 3"); e(f"s_add_u32 s{sGO}, s{sGO}, s{sW}"); e(f"s_lshl_b32 s{sGO}, s{sGO}, 11")
e("v_mov_b32 v40, 0"); e("v_mov_b32 v41, 0"); e("v_mov_b32 v25, 0"); e("v_mov_b32 v43, 0x3f803f80"); e(f"v_lshlrev_b32 v42, 2, v{L}"); e(f"s_mov_b32 s{sKXE}, 0")
srd(sGW, pGW, 2048); e("s_mov_b32 s94, 1.0"); e("s_mov_b32 s95, 1.0")
W1A = {0: [0,1,2,3,4], 1: [], 2: [0,2,4]}[OPT['w1']]
stamp('setup')
for n in W1A:
    if n not in W1E: a_full('w', n, 1)
W1A = sorted(set(W1A) | set(W1E))
stamp('w1')
e(f"s_waitcnt vmcnt({len(W1A)+OPT['pre']})"); stamp('land'); e("s_barrier"); stamp('bar')
e(f"s_cmp_eq_u32 s{sNW}, 1"); e("s_cbranch_scc1 LA_pre1")
for nw in range(2):
    if nw == 1: g.lab("LA_pre1")
    sq, sv_ = g.steady(lambda: a_body(nw))
    g.q = []
    for i in range(4): a_xread(i, 0)
    for n in range(4): a_wread(nw, n)
    assert [t for t in sv_ if t[0] == 'w'] == [('w', 1, k) for k in range(5)], sv_
    for n in range(5):
        if n not in W1A: a_full('w', n, 1)
    for t in sv_:
        if t[0] == 'x': assert t[1] == 1; a_full('x', t[2], 1)
    assert not any(t[0] == 'p' for t in sv_[sv_.index(('w', 1, 0)):]), sv_
    e(f"s_mov_b32 s{sCNT}, 8"); e(f"s_mov_b32 s{sOK}, 0")
    stamp('loopA')
    if OPT['prio'] and nw == 1: e("s_setprio 1")
    e("s_waitcnt lgkmcnt(0)")
    g.q = list(sq); g.v = list(sv_)
    g.L.append(".p2align 6"); g.lab(f"LA_loop{nw}")
    a_body(nw); assert g.q == sq and g.v == sv_
    if OPT['tst']:
        e(f"s_memtime s[{sST}:{sST+1}]"); e(f"s_memrealtime s[{sST+2}:{sST+3}]"); e(f"s_sub_u32 s{sST+4}, 10, s{sCNT}"); e(f"s_add_u32 s{sST+5}, s{sST+4}, 16")
        e("s_waitcnt lgkmcnt(0)"); e(f"s_mov_b32 m0, s{sST+4}"); e("s_nop 0"); e(f"v_writelane_b32 v0, s{sST}, m0"); e(f"s_mov_b32 m0, s{sST+5}"); e("s_nop 0"); e(f"v_writelane_b32 v0, s{sST+2}, m0")
    e(f"s_sub_u32 s{sCNT}, s{sCNT}, 1")
    for u in gate_acc(40, 41, 20, 43):
        for x in u: e(x)
    e(f"buffer_load_dword v40, v42, {sr(sX,4)}, s{sGO} offen"); e(f"buffer_load_dword v41, v42, {sr(sGW,4)}, s{sKXE} offen")
    e(f"s_add_u32 s{sGO}, s{sGO}, 256"); e(f"s_add_u32 s{sKXE}, s{sKXE}, 256")
    e(f"s_cmp_lg_u32 s{sCNT}, 1"); e(f"s_cbranch_scc1 LA_h1_{nw}")
    sv = g.L; g.L = g.tail
    g.lab(f"LA_h1_{nw}")
    def hook(c, body, w0=False):
        if w0 and nw == 1: return
        e(f"s_cmp_lg_u32 s{sCNT}, {c}"); e(f"s_cbranch_scc1 LA_n{c}_{nw}")
        if w0: e(f"s_cmp_lg_u32 s{sW}, 0"); e(f"s_cbranch_scc1 LA_loop{nw}")
        body(); e(f"s_branch LA_loop{nw}"); g.lab(f"LA_n{c}_{nw}")
    def rec_store():
        for r in range(28, 32): e(f"v_mov_b32 v{r}, 0")
        e(f"v_mov_b32 v26, {CNTLDS}"); e("ds_write_b32 v26, v28")
        e(f"s_lshl_b32 s{sT}, s{sLAM}, 9"); e(f"s_add_u32 s{sT}, s{sT}, {WS_FL:#x}")
        e("s_mov_b32 exec_hi, 0")
        e(f"buffer_store_dwordx4 v[28:31], v{vL16}, {sr(sWS,4)}, s{sT} offen sc1"); e("s_mov_b64 exec, -1")
    def ack():
        e(f"v_mov_b32 v{vT}, 1"); e(f"s_and_b32 s{sT}, s{sLAM}, 1"); e(f"s_lshl_b32 s{sT}, s{sT}, 7")
        one_lane(lambda: e(f"buffer_atomic_add v{vT}, off, {sr(sDBG,4)}, s{sT} sc1"))
    def ld(): e(f"v_and_b32 v37, 1, v{L}"); e(f"v_lshlrev_b32 v37, 7, v37"); e(f"buffer_load_dword v{vCN}, v37, {sr(sDBG,4)}, 0 offen sc1")
    def ts(): e(f"v_cmp_gt_u32 vcc, 128, v{vCN}"); e("s_nop 1"); e("s_cmp_eq_u64 vcc, 0")
    def gate_loads():
        e(f"v_lshlrev_b32 v42, 5, v{L}")
        e(f"buffer_load_dwordx4 {vr(26,4)}, v42, {sr(sX,4)}, s{sGO} offen"); e(f"buffer_load_dwordx4 {vr(30,4)}, v42, {sr(sX,4)}, s{sGO} offen offset:16")
        e(f"buffer_load_dwordx4 {vr(34,4)}, v42, {sr(sGW,4)}, 0 offen"); e(f"buffer_load_dwordx4 {vr(38,4)}, v42, {sr(sGW,4)}, 0 offen offset:16")
        ld()
    def code_pf():
        e(f"s_getpc_b64 s[{sT}:{sT+1}]"); g.lab("LA_pc")
        e(f"s_sub_u32 s{sT}, s{sT}, LA_pc-{KN}"); e(f"s_subb_u32 s{sT+1}, s{sT+1}, 0")
        e(f"s_lshr_b32 s{sT+2}, s2, 3"); e(f"s_lshl_b32 s{sT+2}, s{sT+2}, 12")
        e(f"v_and_b32 v26, 31, v{L}"); e(f"v_lshlrev_b32 v26, 7, v26"); e(f"v_add_u32 v26, s{sT+2}, v26")
        e(f"v_min_u32 v26, LZ_end-{KN}-4, v26")
        e(f"v_mov_b32 v27, s{sT+1}"); e(f"v_add_co_u32 v26, vcc, s{sT}, v26"); e("s_nop 1"); e(f"v_addc_co_u32 v27, vcc, 0, v27, vcc")
        e(f"global_load_dword v{vDUM}, v[26:27], off")
    if OPT['astag']:
        def ackif(k):
            def f():
                e(f"s_lshr_b32 s{sT}, s2, 3"); e(f"s_mul_i32 s{sT}, s{sT}, 3"); e(f"s_lshr_b32 s{sT}, s{sT}, 5")
                e(f"s_cmp_lg_u32 s{sT}, {k}"); e(f"s_cbranch_scc1 LA_loop{nw}"); ack()
            return f
        hook(7, rec_store, True); hook(6, ackif(0), True); hook(5, ackif(1), True); hook(4, ackif(2), True); hook(2, ld)
    else:
        hook(6, rec_store, True); hook(5, ack, True); hook(2, ld)
    if OPT['cpf']: hook(OPT['cpf'], code_pf, True)
    def tlb_warm():
        e(f"s_mul_i32 s{sT}, s{sRB}, {16*M16}"); e(f"v_mov_b32 v26, s{sT}")
        e(f"s_add_u32 s{sT+1}, s{sT}, {8*M16}"); e(f"v_writelane_b32 v26, s{sT+1}, 1")
        e(f"s_add_u32 s{sT+1}, s{sT}, {16*M16-128}"); e(f"v_writelane_b32 v26, s{sT+1}, 2")
        e(f"s_lshl_b32 s{sT}, s{sLAM}, 15"); e(f"s_add_u32 s{sT}, s{sT}, {WS_KV:#x}"); e(f"v_writelane_b32 v26, s{sT}, 3")
        e(f"s_sub_u32 s{sT}, s{sT}, {32*32768}"); e(f"v_writelane_b32 v26, s{sT}, 4")
        e(f"s_lshl_b32 s{sT}, s{sRB}, 21"); e(f"s_add_u32 s{sT}, s{sT}, {WS_PART:#x}"); e(f"v_writelane_b32 v26, s{sT}, 5")
        e("s_mov_b64 exec, 63"); e(f"buffer_load_dword v{vDUM}, v26, {sr(sWS,4)}, 0 offen"); e("s_mov_b64 exec, 1")
        srd(88, pOUT, 2048*2048); e(f"s_lshl_b32 s{sT}, s{sRB}, 19"); e(f"buffer_load_dword v{vDUM}, off, s[88:91], s{sT}")
        srd(88, pWO, 1024*2048); e(f"buffer_load_dword v{vDUM}, off, s[88:91], 0")
        srd(88, pWD, 3584*2048); e(f"s_lshr_b32 s{sT}, s{sH}, 3"); e(f"s_mul_i32 s{sT}, s{sT}, {896*2048}"); e(f"buffer_load_dword v{vDUM}, off, s[88:91], s{sT}")
        e(f"s_add_u32 s{sT}, s{sT}, {895*2048}"); e(f"buffer_load_dword v{vDUM}, off, s[88:91], s{sT}")
        e("s_mov_b64 exec, -1")
    if OPT['tlb']: hook(OPT['tlb'], tlb_warm, True)
    e(f"s_branch LA_loop{nw}")
    g.lab(f"LA_slow{nw}")
    spin(f"LA_spin{nw}", ld, ts, sT+3); e(f"s_branch LB_go{nw}")
    g.L = sv
    ts(); e(f"s_cbranch_scc0 LA_slow{nw}")
    g.lab(f"LB_go{nw}")
    e(f"buffer_load_dword v38, v42, {sr(sX,4)}, s{sGO} offen"); e(f"buffer_load_dword v39, v42, {sr(sGW,4)}, s{sKXE} offen")
    U = UNITS[nw]; jkv = 2 if nw == 0 else 0
    vHA = 3; vST = 96 - 4*len(OPT['hpos']); vNB = 208; assert len(OPT['hpos']) % 2 == 0
    def cap(f, atomic=False):
        sv = g.L; g.L = []; f(); r = g.L; g.L = sv
        return [r] if atomic else [[x] for x in r]
    def setupB():
        e(f"s_lshl_b32 s{sT+4}, s{sLAM}, 15"); e(f"s_add_u32 s{sT+4}, s{sT+4}, {WS_KV:#x}")
        e(f"s_lshl_b32 s{sT+5}, s{sMW}, 13"); e(f"v_add_u32 v{vT+8}, s{sT+5}, v{vL16}")
        e(f"s_add_u32 s{sT+5}, s{sT+5}, s{sT+4}")
    def setupB2():
        e(f"s_cmp_eq_u32 s{sRB}, 7"); e(f"s_cselect_b32 s{sT+5}, {WS_SIZE:#x}, s{sT+5}")
    def setupB3():
        e(f"s_add_u32 s{sT+6}, s{sT+5}, 4096")
        e(f"v_and_b32 v{vHA}, 31, v{L}"); e(f"v_lshlrev_b32 v{vHA}, 4, v{vHA}"); e(f"v_lshrrev_b32 v{vT+11}, 5, v{L}")
        e(f"v_mul_u32_u24 v{vT+11}, {M16}, v{vT+11}"); e(f"v_add_u32 v{vHA}, v{vHA}, v{vT+11}")
        e(f"s_lshl_b32 s{sT}, s{sRB}, 4"); e(f"s_lshl_b32 s{sT+1}, s{sMW}, 2"); e(f"s_add_u32 s{sT}, s{sT}, s{sT+1}")
        e(f"s_mul_i32 s{sHB}, s{sT}, {M16}"); e(f"s_mul_i32 s{sT}, s{sH}, {7*512}"); e(f"s_add_u32 s{sHB}, s{sHB}, s{sT}")
        e(f"s_lshr_b32 s{sT}, s{sH}, 3"); e(f"s_lshl_b32 s{sT}, s{sT}, 13"); e(f"s_add_u32 s{sHB}, s{sHB}, s{sT}")
        if nw == 1: e(f"s_add_u32 s{sHB}, s{sHB}, {3*512}")
        e(f"s_add_u32 s{sHB+1}, s{sHB}, {2*M16}")
        e(f"s_lshl_b32 s{sT+7}, s{sLAM}, 9"); e(f"s_add_u32 s{sT+7}, s{sT+7}, {WS_FL:#x}")
        e(f"v_mov_b32 v{vCN}, 1"); e(f"s_mov_b32 s{sDN}, 0"); e(f"s_sub_u32 s{sT+3}, s{sT+7}, {32*512}")
    def gpub():
        e(f"s_cmp_lg_u32 s{sW}, 0"); e("s_cbranch_scc1 LB_nog")
        e(f"v_lshlrev_b32 v{vT}, 2, v{L}"); e(f"v_add_u32 v{vT+1}, {GLDS}, v{vT}"); e("s_mov_b64 exec, 0xff"); e(f"ds_read_b32 v{vT+1}, v{vT+1}"); e("s_waitcnt lgkmcnt(0)")
        e(f"buffer_store_dword v{vT+1}, v{vT}, {sr(sWS,4)}, s{sT+7} offen sc1"); e("s_mov_b64 exec, -1")
        g.lab("LB_nog")
    def kvout():
        for i in range(4):
            pack2(jkv, i)
            if nw == 1:
                a = ACC(0, i); e("s_nop 1"); e(f"v_permlane32_swap_b32 v{a}, v{a+2}"); e(f"v_permlane32_swap_b32 v{a+1}, v{a+3}")
            e(f"buffer_store_dwordx4 {vr(ACC(jkv,i),4)}, v{vL16}, {sr(sWS,4)}, s{sT+5+(i>>1)} offen offset:{nw*2048+(i&1)*1024} sc1")
    gus = [j for j in range(10) if U[j][0] == 'g']
    def hst(R, k): e(f"buffer_store_dwordx4 {vr(R,4)}, v{vHA}, {sr(sWS,4)}, s{sHB+(k&1)} offen offset:{(k>>1)*512}" + ("" if OPT['hx'] == 1 else " sc1")) if OPT['hx'] != 2 else None
    def ldK(): e(f"buffer_load_dword v{vT+10}, off, {sr(sWS,4)}, s{sT+3} offset:{FL_KV} sc1")
    def tsK(): e(f"v_readfirstlane_b32 s{sT}, v{vT+10}"); e("s_nop 0"); e(f"s_cmp_eq_u32 s{sT}, 1")
    J = [2,3,4,5,6,7,8,9,0,1] if nw == 0 else list(range(10))
    SQ = [(t, j) for t in range(2) for j in range(10)]
    for p in range(5): a_, b_ = J[2*p], J[2*p+1]; SQ += [(2, a_), (2, b_), (3, a_), (3, b_)]
    F = []
    F += [(1, u) for u in cap(setupB) + cap(setupB2, True) + cap(setupB3)]
    vKA, vVA, vQA, vOA = 8, 9, 10, 11
    def att_setup():
        m = vT
        e(f"v_and_b32 v{m+1}, 15, v{L}"); e(f"v_lshlrev_b32 v{m+1}, 4, v{m+1}"); e(f"v_lshrrev_b32 v{m+2}, 5, v{L}")
        e(f"v_lshl_add_u32 v{m+1}, v{m+2}, 8, v{m+1}"); e(f"v_bfe_u32 v{m+2}, v{L}, 4, 1")
        e(f"v_lshl_add_u32 v{vQA}, v{m+2}, 10, v{m+1}"); e(f"v_lshl_add_u32 v{vVA}, v{m+2}, 9, v{m+1}")
        e(f"v_mul_u32_u24 v{vOA}, {M16}, v{m+2}"); e(f"v_add_u32 v{vOA}, v{vOA}, v{m+1}")
        e(f"s_lshl_b32 s{sT}, s{sW}, 12"); e(f"v_add_u32 v{vKA}, s{sT}, v{vQA}"); e(f"v_add_u32 v{vVA}, s{sT}, v{vVA}")
    def q_addr():
        e(f"s_lshl_b32 s{sT}, s{sW}, 11"); e(f"s_cmp_ge_u32 s{sW}, 6"); e(f"s_cselect_b32 s{sT+1}, {QLDS3-6*2048}, {QLDS}".replace(f", {QLDS}", f", s{sT+2}"))
        e(f"s_add_u32 s{sT}, s{sT}, s{sT+1}"); e(f"v_add_u32 v{vQA}, s{sT}, v{vQA}")
        if nw == 0:
            e(f"s_lshl_b32 s{sT}, s{sMW}, 12"); e(f"s_cmp_eq_u32 s{sMW}, 3"); e(f"s_cselect_b32 s{sT+1}, {QLDS3-3*4096}, s{sT+2}")
            e(f"s_add_u32 s{sT}, s{sT}, s{sT+1}"); e(f"v_add_u32 v{vT+9}, s{sT}, v{vL16}")
    def cnt0():
        e(f"v_mov_b32 v{vT+12}, {CNT2}"); e(f"v_mov_b32 v{vT+13}, 0"); e(f"ds_write_b32 v{vT+12}, v{vT+13}"); e(f"ds_write_b32 v{vT+12}, v{vT+13} offset:4"); e(f"ds_write_b32 v{vT+12}, v{vT+13} offset:8")
    def kvlds():
        for i in range(4): e(f"ds_write_b128 v{vT+8}, {vr(ACC(jkv,i),4)} offset:{32768+(i>>1)*4096+nw*2048+(i&1)*1024}")
    F += [(10, u) for u in cap(c_setup)]
    F += [(18, [("    " + x) for x in u]) for u in gate_list(20, 43)]
    if nw == 0: F += [(19, u) for u in cap(cnt0)]
    F += [(21, u) for u in cap(att_setup) + [[f"    s_mov_b32 s{sT+2}, {QLDS}"]] + cap(q_addr, True)]
    F += [(24, u) for u in cap(kvout) + cap(kvlds)]
    if nw == 0: F += [(24, u) for u in cap(gpub, True)]
    nk = 2*len(gus)
    for k in range(nk):
        j, i = gus[k >> 1], 2*(k & 1); av = 28 + 4*(k >> 1)
        F += [(av, u) for u in cap(lambda: silu(j, i, vT, ACC(j, i)))]
        NE = nk - len(OPT['hpos'])
        F += [(av, u) for u in cap(lambda: trysig(min(k, NE), CNTLDS, 0, FL_KV, force=(k == nk-1)), True)]
        if k < NE: F += [(av, u) for u in cap(lambda: hst(ACC(j, i), k))]
    ev = {n: [x for x in v if x[0] == 'x' and x[2] == 1] for n, v in a_events(nw).items() if n < 10}
    for n, k in zip((7, 8, 9), (0, 2, 4)): ev.setdefault(n, []).append(('w', k, 0))
    for n, (t, j) in enumerate(SQ):
        un = U[j]; evs = ev.get(n, [])
        for i in range(4):
            g.need([('W', n % 5), ('X', t & 1, i)])
            a, b = vr(vWF+4*(n % 5), 4), vr(vXF+16*(t & 1)+4*i, 4)
            if un[0] == 'v': a, b = b, a
            e(f"{MF16} {vr(ACC(j,i),4)}, {a}, {b}, {vr(ACC(j,i),4)}")
            if i == 0:
                if n == JBW: g.need([('W', k) for k in range(5)], [('w', 1, k) for k in range(5)]); e("s_barrier")
                if n == 17:
                    g.need([('W', k) for k in range(5)], [('x', 1, k) for k in range(4)] + [('w', 0, k) for k in range(5)]); e("s_barrier")
                if n == 22: assert not any(av <= 18 for av, u in F)
                if n == 23: g.need([('X', 1, k) for k in range(4)] + [('W', k) for k in range(5)]); e("s_barrier")
                if n + 4 < 40: a_wread(nw, n+4, SQ[n+4])
                if nw == 0 and n == OPT['kq']: ldK()
            if i == 1:
                for ii in range(4):
                    if n == OPT['jbx'] + OPT['xrd'][ii]: a_xread(ii, 1)
                    if n == 17 + (ii >> 1): a_xread(ii, 2)
                    if n == 20: a_xread(ii, 3)
                if evs: a_m0(*evs[0])
            if i == 2 and evs:
                a_op(*evs[0])
                for x in evs[1:]: a_full(*x)
            c = 0
            while F and F[0][0] <= n and c < (2 if n < 12 else 3 if n < 20 else OPT['fr']) and not (i == 1 and evs):
                u = F.pop(0)[1]; g.L += u; c += len(u)
    stamp('endA')
    left = sum(1 for av, u in F for x in u if 'buffer_store_dwordx4' in x)
    print("path", nw, "leftover filler instrs", sum(len(u) for av, u in F), "stores", left)
    if nw == 0 and OPT['h0']:
        vNB = 40
        e(f"s_mov_b32 s{sT+5}, {WS_SIZE:#x}")
        e(f"s_cmp_eq_u32 s{sRB}, 0"); e("s_cbranch_scc1 LB_rb0")
        e("s_waitcnt vmcnt(0)"); trysig(15, CNTLDS, 0, FL_KV, force=True); tsK(); e("s_cbranch_scc0 LB_late")
        e(f"s_sub_u32 s{sT+5}, s{sT+4}, {32*32768}")
        g.lab("LB_rb0")
        e(f"s_add_u32 s{sT+6}, s{sT+5}, 4096")
        def nbl():
            for f in range(8): e(f"buffer_load_dwordx4 {vr(vNB+4*f,4)}, v{vT+8}, {sr(sWS,4)}, s{sT+5+(f>>2)} offen offset:{(f&3)*1024} sc1")
        nbl(); e(f"s_mov_b32 s{sT+4}, 0")
        g.lab("LB_late")
        for r in range(32): e(f"v_mul_f32 v{ACC(0,0)+r}, {f32(32 ** -0.5 * LOG2E)}, v{ACC(0,0)+r}")
        for i in range(4): pack2(0, i)
        for i in range(4): e(f"ds_write_b128 v{vT+9}, {vr(ACC(0,i),4)} offset:{i*1024}")
    else: e("s_nop 7")
    assert not any('ds_write' in x for av, u in F for x in u)
    for av, u in F: g.L += u
    for k in range(NE, nk):
        for r in range(4): e(f"v_mov_b32 v{vST+4*(k-NE)+r}, v{ACC(gus[k>>1], 2*(k&1))+r}")
    if NE: e(f"s_add_u32 s{sHB}, s{sHB}, {NE*256}"); e(f"s_add_u32 s{sHB+1}, s{sHB+1}, {NE*256}")
    stamp('hdone')
    if nw == 0:
        e(f"s_cmp_eq_u32 s{sT+4}, 0"); e("s_cbranch_scc1 LB_have")
        spin("LB_spin", ldK, tsK, sT+5)
        e(f"s_sub_u32 s{sT+5}, s{sT+4}, {32*32768}"); e(f"s_add_u32 s{sT+6}, s{sT+5}, 4096")
        nbl(); e("s_waitcnt vmcnt(0)")
        g.lab("LB_have")
        NLEFT = left; vNB0 = vNB
    stamp('kvok')
    if nw == 0: e("s_branch LB_common")
g.lab("LB_common")
FR = [40, 48, 56, 64, 96, 104]; vQ = 32; vS = 112; vM = 26; vSUM = 28
BIG = 2.0**100
assert OPT['npre'] <= 3
e(f"s_mov_b32 s{sDN}, 0")
e(f"s_andn2_b32 s{sT+4}, s{sLAM}, 7"); e(f"s_lshl_b32 s{sT+4}, s{sT+4}, 9"); e(f"s_add_u32 s{sT+4}, s{sT+4}, {WS_FL:#x}")
e(f"s_cmp_eq_u32 s{sNW}, 1"); e("s_cbranch_scc1 LB_nokv")
for f in range(8):
    e(f"s_waitcnt vmcnt({7-f+NLEFT})"); e(f"ds_write_b128 v{vT+8}, {vr(vNB0+4*f,4)} offset:{f*1024}")
g.lab("LB_nokv")
e("s_waitcnt lgkmcnt(0)"); e("s_barrier")
delay(1, 10)
stamp('bar2')
ORD = [0, 8, 1, 2, 3, 4, 5, 6, 7]
def yprio(k):
    e(f"s_cmp_eq_u32 s{sNW}, 0"); e(f"s_cbranch_scc1 LP_{k}"); e("s_setprio 1"); g.lab(f"LP_{k}")
if OPT['aprio'] == 1: yprio(0)
def kread(x):
    t = ORD[x]
    for f in range(2): g.lds(f"ds_read_b128 {vr(FR[x%6]+4*f,4)}, v{vKA} offset:{t*4096+f*512}", ('K', x, f))
def vread(x):
    t = ORD[x]
    for f in range(2): g.lds(f"ds_read_b128 {vr(FR[(x+3)%6]+4*f,4)}, v{vVA} offset:{t*4096+2048+f*1024}", ('V', x, f))
def mx(t, half=None):
    b = vS + 16*t
    for r in range(0, 16, 2):
        if half is not None and (r >> 3) != half: continue
        k = (r >> 1) & 1
        if t == 8 and r < 4: e(f"v_max_f32 v{vM+k}, v{b+r}, v{b+r+1}")
        else: e(f"v_max3_f32 v{vM+k}, v{vM+k}, v{b+r}, v{b+r+1}")
def masked(op, hi=vS+128, lo=vS):
    for rho in range(16):
        cst = 8*(rho >> 2) + (rho & 3)
        e(f"s_bfm_b32 exec_lo, {cst}, 0"); e(f"s_bfm_b32 exec_hi, {cst+4}, 0"); e(f"{op} v{hi+rho}, v{lo+rho}")
    e("s_mov_b64 exec, -1")
def merge():
    masked("v_mov_b32")
    for rho in range(16): e(f"v_mov_b32 v{vS+rho}, 0")
NPRE = OPT['npre']
def ldH(): e(f"buffer_load_dword v{cvPL}, v{cvPA}, {sr(sWS,4)}, s{sT+4} offen offset:{FL_H} sc1")
def tsL(): e(f"v_cmp_ne_u32 vcc, 1, v{cvPL}"); e("s_nop 1"); e("s_cmp_eq_u64 vcc, 0")
AFTER = [0]; NH2 = [0]
def event(x):
    for k, p in enumerate(OPT['hpos']):
        if p == x: hst(vST+4*k, k); AFTER[0] = 0
    if max(OPT['hpos'] + [-1]) < x <= OPT['hq']: trysig(AFTER[0], CNT2, 0, FL_H, force=(x == OPT['hq']))
    for k, p in enumerate(OPT['dpos'][:NPRE]):
        if p == x: c_m0(k); e("s_nop 0"); c_dma(k, 0); c_dma(k, 1); AFTER[0] += 2
    if OPT['aearly'] and x == OPT['hq2']: ldH(); AFTER[0] += 1; NH2[0] = AFTER[0]
    if OPT['aearly'] and x == OPT['hq2'] + 2:
        e(f"s_mov_b32 s{sOK+1}, 0"); e(f"s_waitcnt vmcnt({AFTER[0]-NH2[0]})"); tsL(); e("s_cbranch_scc0 LB_noe")
        for k in range(4): c_aload(0, k)
        e(f"s_mov_b32 s{sOK+1}, 1"); e("s_branch LB_e2")
        g.lab("LB_noe"); ldH(); g.lab("LB_e2")
    if not OPT['aearly'] and x == OPT['hq']: ldH(); AFTER[0] += 1
sTH = sT+2
vO = vS + 8
def rowsum():
    e(f"v_pk_add_f32 {vr(vSUM,2)}, {vr(vSUM,2)}, {vr(vSUM+2,2)}"); e(f"v_add_f32 v{vSUM}, v{vSUM}, v{vSUM+1}")
    e(f"v_mov_b32 v{vSUM+1}, v{vSUM}"); e("s_nop 1"); e(f"v_permlane32_swap_b32 v{vSUM}, v{vSUM+1}")
    e(f"v_add_f32 v{vSUM}, v{vSUM}, v{vSUM+1}")
def negmax():
    e(f"v_max_f32 v{vM}, v{vM}, v{vM+1}"); e(f"v_mov_b32 v{vM+1}, v{vM}"); e("s_nop 1")
    e(f"v_permlane32_swap_b32 v{vM}, v{vM+1}"); e(f"v_max_f32 v{vM}, v{vM}, v{vM+1}")
    e(f"v_mul_f32 v{vM}, -1.0, v{vM}"); e(f"v_mov_b32 v{vM+1}, v{vM}")
def sums(b, first):
    for r in range(0, 16, 2):
        s = vSUM + 2*((r >> 1) & 1)
        if first and r < 4: e(f"v_pk_add_f32 {vr(s,2)}, {vr(b+r,2)}, {vr(b+r+4,2)}")
        elif first and r < 8: pass
        else: e(f"v_pk_add_f32 {vr(s,2)}, {vr(s,2)}, {vr(b+r,2)}")
sv = g.L; g.L = g.tail; g.lab("LB_exact")
e("s_nop 15"); e("s_waitcnt lgkmcnt(0)")
g.q = []
for x in range(6): kread(x)
for x in range(9):
    t = ORD[x]
    g.need([('K', x, 1)])
    if t < 8:
        e(f"s_cmp_le_u32 s{sTH}, {t}"); e(f"s_cbranch_scc1 LB_v{t}")
        for rho in range(16): e(f"v_mov_b32 v{vS+16*t+rho}, {f32(-BIG)}")
        e(f"s_branch LB_w{t}"); g.lab(f"LB_v{t}")
    for f in range(2): e(f"{MF32} {vr(vS+16*t,16)}, {vr(FR[x%6]+4*f,4)}, {vr(vQ+4*f,4)}, " + (vr(vS+16*t, 16) if f else "0"))
    if t < 8: g.lab(f"LB_w{t}")
    if x + 6 < 9: kread(x+6)
    else: vread(x-3)
e("s_nop 15"); merge()
for x in range(1, 9): mx(ORD[x])
negmax()
def pbase(t): return vS if t == 0 else vS + 16*t + 8
def soft(t):
    b = vS + 16*t
    for r in range(0, 16, 2): e(f"v_pk_add_f32 {vr(b+r,2)}, {vr(b+r,2)}, {vr(vM,2)}")
    for r in range(16): e(f"v_exp_f32 v{b+r}, v{b+r}")
    sums(b, t == 8)
    if t == 8:
        masked("v_swap_b32")
        for r in range(8): e(f"v_cvt_pk_bf16_f32 v{vS+r}, v{vS+2*r}, v{vS+2*r+1}")
    for r in range(7, -1, -1): e(f"v_cvt_pk_bf16_f32 v{b+8+r}, v{b+2*r}, v{b+2*r+1}")
for t in ORD[1:]: soft(t)
e("s_nop 1")
for x in range(9):
    for f in range(2):
        g.need([('V', x, f)])
        e(f"{MF32} {vr(vO,16)}, {vr(FR[(x+3)%6]+4*f,4)}, {vr(pbase(ORD[x])+4*f,4)}, " + ("0" if (x == 0 and f == 0) else vr(vO, 16)))
    if x + 6 < 9: vread(x+6)
rowsum(); e("s_nop 7"); e("s_branch LB_norm")
g.lab("LB_nb")
for rho in range(16): e(f"v_mov_b32 v{240+rho}, {f32(-BIG)}")
e(f"s_sub_u32 s{sTH}, 8, s{sW}"); e("s_branch LB_nbr")
g.L = sv
TR = [136, 152, 168, 184]; NM = 200; KR = [216, 224, 232, 112]; NB = 240
def kr(x):
    for f in range(2): g.lds(f"ds_read_b128 {vr(KR[x%4]+4*f,4)}, v{vKA} offset:{ORD[x]*4096+f*512}", ('K', x, f))
def vr_(x):
    for f in range(2): g.lds(f"ds_read_b128 {vr(FR[x%6]+4*f,4)}, v{vVA} offset:{ORD[x]*4096+2048+f*1024}", ('V', x, f))
def smf(x, f):
    t = ORD[x]; d = vr(TR[x%4], 16)
    g.need([('K', x, f), ('Q', f)])
    ab = f"{vr(KR[x%4]+4*f,4)}, {vr(vQ+4*f,4)}"
    if f == 1:
        e(f"{MF32} {d}, {ab}, {d}")
        if x + 4 < 9: kr(x+4)
        return
    if t < 8:
        e(f"s_cmp_gt_u32 s{sTH}, {t}"); e(f"s_cbranch_scc1 LB_m{t}")
        g.tail2 += [f"LB_m{t}:", f"    {MF32} {d}, {ab}, {vr(NB,16)}", f"    s_branch LB_n{t}"]
    e(f"{MF32} {d}, {ab}, " + ("0" if x < 2 else vr(NM, 16)))
    if t < 8: g.lab(f"LB_n{t}")
def pvf(x, f):
    g.need([('V', x, f)])
    e(f"{MF32} {vr(vO,16)}, {vr(FR[x%6]+4*f,4)}, {vr(TR[x%4]+4*f,4)}, " + ("0" if (x == 0 and f == 0) else vr(vO, 16)))
    if f == 1 and x + 6 < 9: vr_(x+6)
def pack(b):
    for r in range(8): e(f"v_cvt_pk_bf16_f32 v{b+r}, v{b+2*r}, v{b+2*r+1}")
g.q = []
for f in range(2): g.lds(f"ds_read_b128 {vr(vQ+4*f,4)}, v{vQA} offset:{f*512}", ('Q', f))
for x in range(4): kr(x)
e(f"s_mov_b32 s{sTH}, 0"); e(f"s_cmp_eq_u32 s{sRB}, 0"); e("s_cbranch_scc1 LB_nb"); g.lab("LB_nbr")
MK = TR[3]; PM = 72
e(f"v_and_b32 v{vM}, 31, v{L}"); e(f"v_lshlrev_b32 v{vM}, v{vM}, 2".replace(f"v{vM}, v{vM}, 2", f"v{vM}, v{vM}, v{vM+1}") if False else f"v_mov_b32 v{vM+1}, 2")
e(f"v_lshlrev_b32 v{vM}, v{vM}, v{vM+1}"); e(f"v_add_u32 v{vM}, -1, v{vM}")
e(f"v_lshrrev_b32 v{vM+1}, 5, v{L}"); e(f"v_lshlrev_b32 v{vM+1}, 2, v{vM+1}"); e(f"v_lshrrev_b32 v{vM}, v{vM+1}, v{vM}")
e(f"s_mov_b32 s{sK}, 0xffff")
event(0)
smf(0, 0); smf(1, 0)
for rho in range(16): e(f"v_bfe_i32 v{MK+rho}, v{vM}, {8*(rho>>2)+(rho&3)}, 1")
smf(0, 1); smf(1, 1)
for x in range(3): vr_(x)
for j in range(8): e(f"v_bfi_b32 v{PM+j}, s{sK}, v{MK+2*j}, v{MK+2*j+1}")
event(1)
b = TR[1]
for rho in range(16): e(f"v_bfi_b32 v{b+rho}, v{MK+rho}, v{b+rho}, v{TR[0]+rho}")
for r in range(0, 16, 2):
    k = (r >> 1) & 1
    e(f"v_max_f32 v{vM+k}, v{b+r}, v{b+r+1}" if r < 4 else f"v_max3_f32 v{vM+k}, v{vM+k}, v{b+r}, v{b+r+1}")
negmax()
for rho in range(16): e(f"v_mov_b32 v{NM+rho}, v{vM}")
for r in range(0, 16, 2):
    e(f"v_pk_add_f32 {vr(b+r,2)}, {vr(b+r,2)}, {vr(vM,2)}")
    if r == 2: smf(2, 0)
event(2)
for r in range(16):
    e(f"v_exp_f32 v{b+r}, v{b+r}")
    if r == 1: smf(2, 1)
    if r == 6: smf(3, 0)
    if r == 11: smf(3, 1)
for x in range(3, 6): vr_(x)
sums(b, True); pack(b)
for j in range(8): e(f"v_bfi_b32 v{TR[0]+j}, v{PM+j}, 0, v{b+j}")
for j in range(8): e(f"v_and_b32 v{b+j}, v{PM+j}, v{b+j}")
stamp('sph')
for x in range(2, 9):
    b = TR[x % 4]; event(x+1)
    if OPT['aprio'] == 3:
        if x % 2 == 0: yprio(x)
        else: e("s_setprio 0")
    mf = ([('p', 0, 0), ('p', 0, 1)] if x == 2 else []) + [('p', x-1, 0), ('p', x-1, 1)] + ([('s', x+2, 0), ('s', x+2, 1)] if x + 2 < 9 else [])
    pos = {6: [1, 5, 9, 13, 18, 26], 4: [1, 6, 11, 18], 2: [1, 8]}[len(mf)]
    ins = [f"v_exp_f32 v{b+r}, v{b+r}" for r in range(16)]
    sv = g.L; g.L = []; sums(b, False); pack(b); ins += [l.strip() for l in g.L]; g.L = sv
    for i, l in enumerate(ins):
        e(l)
        while mf and pos[0] == i:
            k, xx, f = mf.pop(0); pos.pop(0); (pvf if k == 'p' else smf)(xx, f)
e("s_nop 1"); pvf(8, 0); pvf(8, 1)
rowsum()
e(f"v_cmp_ngt_f32 vcc, {f32(2.0**OPT['lthr'])}, v{vSUM}"); e("s_nop 1"); e("s_cmp_lg_u64 vcc, 0"); e("s_branch LB_exact" if OPT['ffb'] else "s_cbranch_scc1 LB_exact")
g.lab("LB_norm")
e(f"v_rcp_f32 v{vSUM}, v{vSUM}")
e(f"s_lshl_b32 s{sT}, s{sRB}, 4"); e(f"s_lshl_b32 s{sT+1}, s{sW}, 1"); e(f"s_add_u32 s{sT}, s{sT}, s{sT+1}")
e(f"s_lshl_b32 s{sT+1}, s{cNT}, 10"); e(f"s_add_u32 s{sT+1}, s{sT+1}, s{cAK}"); e(f"s_add_u32 s{sT+1}, s{sT+1}, {56*512}")
if OPT['aprio']: e("s_setprio 0")
stamp('pv')
if OPT['aearly']: e(f"s_cmp_eq_u32 s{sOK+1}, 1"); e("s_cbranch_scc1 LC_haveA")
e("s_waitcnt vmcnt(0)"); tsL(); e("s_cbranch_scc0 LC_slowH")
g.lab("LC_goH")
g.v = []
for k in range(4): c_aload(0, k)
g.lab("LC_haveA")
assert not OPT['aearly'] or (max(OPT['dpos'][:NPRE]) <= OPT['hq2'] and OPT['hq'] <= OPT['hq2'] + 2 and len(OPT['hpos']) <= 4)
for r in range(16): e(f"v_mul_f32 v{vO+r}, v{vO+r}, v{vSUM}")
for r in range(8): e(f"v_cvt_pk_bf16_f32 v{vO+8+7-r}, v{vO+14-2*r}, v{vO+15-2*r}")
dstore([f"buffer_store_dwordx4 {vr(vO+8+4*f,4)}, v{vOA}, {sr(sWS,4)}, s{sT+1} offen offset:{f*512}" for f in range(2)])
stamp('attn')
g.v += ['st', 'st']
e(f"v_bfe_u32 v{vT}, v{L}, 2, 3"); e(f"v_lshrrev_b32 v{vT+1}, 5, v{L}"); e(f"v_lshl_add_u32 v{vT+1}, v{vT+1}, 4, v{vT}")
e(f"v_lshlrev_b32 v{vT+1}, 8, v{vT+1}"); e(f"v_lshl_add_u32 v{vT+1}, v{vT}, 5, v{vT+1}")
e(f"v_and_b32 v{vT}, 3, v{L}"); e(f"v_lshl_add_u32 v{vT+1}, v{vT}, 3, v{vT+1}")
e(f"s_lshl_b32 s{sT}, s{cQ}, 6"); e(f"v_xor_b32 v{vT+1}, s{sT}, v{vT+1}"); e(f"v_add_u32 v{cvRA}, {CRING}, v{vT+1}")
for u in range(1, 8): e(f"v_xor_b32 v{cvRA+u}, {32*u}, v{cvRA}")
for p in range(1, OPT['apre']):
    for k in range(4): c_aload(p, k)
e("s_barrier")
delay(2, 35)
VERS = {}
for q in range(4):
    b_ = OPT['bal'].get(q, [])
    hs = [(0, k) for k in range(14 + b_)] if isinstance(b_, int) else [(0, k) for k in range(14)] + [(qq - q, st) for qq, st in b_]
    VERS.setdefault(tuple(hs), []).append(q)
cov = sorted((q + dq, st) for hs, qs in VERS.items() for q in qs for dq, st in hs)
assert cov == [(q, st) for q in range(4) for st in range(14)], cov
VL = list(VERS.items())
for V, (hs, qs) in enumerate(VL[1:], 1):
    for q in qs: e(f"s_cmp_eq_u32 s{cQ}, {q}"); e(f"s_cbranch_scc1 LC_ver{V}")
V0 = list(g.v); CUR0 = dict(CUR)
for V, (hs, qs) in enumerate(VL):
    HS = list(hs); NH = len(HS); NS = NH + 4; NOWN = min(NH, 14); g.v = list(V0); CUR.update(CUR0)
    g.lab(f"LC_ver{V}")
    SEQ = []
    for s in range(NH):
        for ku in range(2):
            us = list(range(8)) if not (s == NH-1 and ku == 1) else [4,5,6,7,0,1,2,3]
            SEQ += [(s, ku, u, (0, 1)) for u in us]
    I1 = len(SEQ)
    SEQ += [(s, ku, u, (0, 1)) for s in range(NH, NS) for ku in range(2) for u in range(4, 8)]
    I2 = len(SEQ)
    SEQ += [(s, ku, u, (0, 1)) for s in range(NH, NS) for ku in range(2) for u in (2, 3)]
    I3 = len(SEQ)
    SEQ += [(s, ku, u, (0, 1)) for s in range(NH, NS) for ku in range(2) for u in (0, 1)]
    if OPT['csn']: SEQ = [(s, ku, u, m[::-1] if (i & 1) else m) for i, (s, ku, u, m) in enumerate(SEQ)]
    def wread(i):
        if i >= len(SEQ): return
        s, ku, u, _ = SEQ[i]
        for tr in range(2):
            g.lds(f"ds_read_b64_tr_b16 {vr(cvWF+4*(i&7)+2*tr,2)}, v{cvRA+u} offset:{(s%4)*16384+ku*8192+tr*2048}", ('W', i & 7))
    g.q = []
    for i in range(7): wread(i)
    stamp('loopC')
    cRD = 48
    cvO32, cvRF, cvOUT, cvG = 22, 23, 24, 25
    cRV = cvACC + 32
    def ldO(): e(f"buffer_load_dword v{cvPL}, v{cvO32}, {sr(sWS,4)}, s54 offen offset:{FL_O} sc1")
    def ldR(): e(f"buffer_load_dword v{cvPL}, v{cvRF}, {sr(sWS,4)}, s{sT+6} offen offset:{FL_P} sc1")
    def ldR2(): e(f"buffer_load_dword v{cvPL}, off, {sr(sWS,4)}, s{sT+5} offset:{FL_P2} sc1")
    def rloads(ii):
        for i in ii:
            e(f"s_add_u32 s{sT}, s{cRD+3}, {i*16384}")
            for f in range(2): e(f"buffer_load_dwordx4 {vr(cRV+8*(i-1)+4*f,4)}, v{vL16}, {sr(sWS,4)}, s{sT} offen offset:{f*1024} sc1")
    t0, t1 = vT, vT+1
    fill = {s: [] for s in range(NS)}
    fill[1] = [[x] for x in (
        f"v_and_b32 v{cvO32}, 31, v{L}", f"v_lshlrev_b32 v{cvO32}, 9, v{cvO32}", f"s_lshl_b32 s54, s{sRB}, 14", f"s_add_u32 s54, s54, {WS_FL:#x}",
        f"v_and_b32 v{t0}, 3, v{L}", f"v_max_u32 v{t0}, 1, v{t0}", f"v_lshlrev_b32 v{t1}, 1, v{t0}", f"v_and_b32 v{t1}, 4, v{t1}", f"v_xor_b32 v{t1}, 4, v{t1}",
        f"v_lshlrev_b32 v{t0}, 3, v{t0}", f"v_xor_b32 v{t0}, s{sLAM}, v{t0}", f"v_lshl_add_u32 v{cvRF}, v{t0}, 9, v{t1}",
        f"s_mov_b32 s{sT+6}, {WS_FL:#x}", f"s_mov_b32 s{sDN}, 0", f"s_mov_b32 s{sOK+1}, 0")]
    fill[2] = [[x] for x in (
        f"s_lshl_b32 s{sT}, s{sRB}, 3", f"s_add_u32 s{sT}, s{sT}, s{cNT}", f"s_lshl_b32 s{sT}, s{sT}, 18", f"s_lshl_b32 s{sT+1}, s{sW}, 11", f"s_add_u32 s{sT}, s{sT}, s{sT+1}", f"s_add_u32 s{sT}, s{sT}, {WS_PART:#x}")]
    for i in (1, 2, 3):
        fill[2] += [[x] for x in (f"s_xor_b32 s{sT+1}, s{cQ}, {i}", f"s_lshl_b32 s{sT+1}, s{sT+1}, 16", f"s_add_u32 s{sT+1}, s{sT+1}, s{sT}", f"s_add_u32 s{cRD+i-1}, s{sT+1}, {i*16384}")]
    fill[2] += [[x] for x in (f"s_lshl_b32 s{sT+1}, s{cQ}, 16", f"s_add_u32 s{cRD+3}, s{sT+1}, s{sT}",
        f"s_lshl_b32 s{sT}, s{sRB}, 19", f"s_lshl_b32 s{sT+1}, s{sW}, 16", f"s_add_u32 s{sT}, s{sT}, s{sT+1}",
        f"s_lshl_b32 s{sT+1}, s{cNT}, 8", f"s_add_u32 s{sT}, s{sT}, s{sT+1}", f"s_lshl_b32 s{sT+1}, s{cQ}, 6",
        f"s_add_u32 s{cRD+4}, s{sT}, s{sT+1}", f"s_add_u32 s39, s{cRD+4}, 32768",
        f"v_and_b32 v{cvOUT}, 15, v{L}", f"v_lshlrev_b32 v{cvOUT}, 11, v{cvOUT}", f"v_bfe_u32 v{t0}, v{L}, 4, 1", f"v_lshl_add_u32 v{cvOUT}, v{t0}, 5, v{cvOUT}",
        f"v_lshrrev_b32 v{t0}, 5, v{L}", f"v_lshl_add_u32 v{cvOUT}, v{t0}, 4, v{cvOUT}")]
    send = {1: [], 2: [], 3: []}
    for i in (1, 2, 3):
        d = cvPT + 8*(i-1)
        for k in range(4):
            a = cvACC + 16*i + 4*k
            send[i] += [[f"v_cvt_pk_bf16_f32 v{d+2*k}, v{a}, v{a+1}", f"v_cvt_pk_bf16_f32 v{d+2*k+1}, v{a+2}, v{a+3}"]]
            if k & 1: send[i] += [[f"@{'T' if i == 1 else 'S'} buffer_store_dwordx4 {vr(d+4*(k>>1),4)}, v{vL16}, {sr(sWS,4)}, s{cRD+i-1} offen offset:{(k>>1)*1024} sc1"]]
    pa = [(s, k) for s in range(OPT['apre'], NS) for k in range(4)]
    pd = [(s, k) for s in range(NPRE, NS) for k in range(2)]
    cvG2 = 128
    cvGc = 130
    def gload():
        e(f"v_and_b32 v{t0}, 7, v{L}"); e(f"v_bfe_u32 v{t1}, v{L}, 3, 1"); e(f"v_lshlrev_b32 v{t1}, 9, v{t1}"); e(f"v_lshl_add_u32 v{t0}, v{t0}, 2, v{t1}")
        e(f"s_lshl_b32 s{sT}, s{sW}, 11"); e(f"s_add_u32 s{sT}, s{sT}, s54")
        for k in range(2): g.vm(f"buffer_load_dword v{cvG2+k}, v{t0}, {sr(sWS,4)}, s{sT} offen offset:{1024*k} sc1", 'gv')
    fill[NH-1] = [["@G"]]
    for k in range(2):
        r = cvG2 + k
        fill[NH-1] += [[f"v_max_f32 v{cvGc+k}, {f32(2.0**-60)}, v{r}"], [f"v_sub_f32 v{r}, 1.0, v{r}"], [f"v_cvt_pk_bf16_f32 v{r}, v{r}, v{r}"], [f"v_and_b32 v{r}, 0xffff0000, v{r}"],
                       [f"v_rcp_f32 v{t0}, v{cvGc+k}", "s_nop 0"], [f"v_mul_f32 v{r}, v{r}, v{t0}"]]
    def rescale(u, mf):
        a = cvACC + 8*u + 4*mf
        if OPT['dbg'] & 2:
            for r in range(4): e(f"v_mul_f32 v{a+r}, v{a+r}, v{cvG2+mf}")
            return
        for r in (0, 2): e(f"v_pk_mul_f32 {vr(a+r,2)}, {vr(a+r,2)}, {vr(cvG2,2)} op_sel:[0,{mf}] op_sel_hi:[1,{mf}]")
    WIN = [[16, 31, fill[1]], [32, 47, fill[2]], [16*(NH-1), 16*(NH-1)+11, fill[NH-1]], [I2+1, I2+8, send[2]+send[3]], [I3+1, I3+4, send[1]]]
    for w in WIN: w.append(len(w[2]))
    vis = 0; freed = -1
    def nafter(tag): return min(15, len(g.v) - 1 - max(i for i, t in enumerate(g.v) if t == tag)) if tag in g.v else min(15, len(g.v))
    for i, (s, ku, u, mfs) in enumerate(SEQ):
        if i == I1: stamp('endH')
        if i == I3: stamp('p3')
        cur = min(s, NH) if i >= I1 else s
        for idx, mf in enumerate(mfs):
            k = 2*ku + mf; a = cvACC + 8*u + 4*mf
            g.need([('W', i & 7)], [('a', s, k)])
            e(f"{MF16} {vr(a,4)}, {vr(cvWF+4*(i&7),4)}, {vr(cvAR+16*((s+1)%D)+4*k,4)}, " + ("0" if i < 8 else vr(a,4)))
            if I1 - 4 <= i < I1 + 4: rescale(SEQ[i-4][2], mf)
            if idx == 0:
                if i + 7 < len(SEQ) and SEQ[i+7][0] > vis:
                    vis = SEQ[i+7][0]
                    g.need([('W', k) for k in range(8)] if vis <= NH else [], [('d', vis)] + (['st'] if vis == 2 else [])); e("s_barrier")
                    if vis == 2:
                        e(f"s_cmp_lg_u32 s{sW}, 0"); e(f"s_cbranch_scc1 LC_nof1{V}")
                        one_lane(lambda: e(f"buffer_store_dword v{vCN}, off, {sr(sWS,4)}, s{sT+7} offset:{FL_O} sc1"))
                        g.lab(f"LC_nof1{V}")
                wread(i+7)
                nxt = None
                if i % 2 == 0 or i >= I1:
                    okd = pd and pd[0][0] <= (vis + 3 if pd[0][0] == NS-1 else cur + 3); oka = pa and pa[0][0] <= cur + D - 1
                    if okd and (not oka or pd[0][0] <= pa[0][0] and (i % 16 % 6 == 2 or pd[0][0] < pa[0][0])): nxt = 'd'
                    elif oka: nxt = 'a'
                    if nxt == 'd' and pd[0][1] == 0: c_m0(pd[0][0])
            for lo, hi, fl, n0 in WIN:
                if lo <= i <= hi:
                    frac = (i - lo + (idx+1)/len(mfs)) / (hi - lo + 1)
                    while fl and (n0 - len(fl)) < n0 * frac - 1e-9:
                        for x in fl.pop(0):
                            if x.startswith("@S "): g.vm(x[3:], 'snd')
                            elif x.startswith("@T "): g.vm(x[3:], 'snd2')
                            elif x == "@G": g.need([], ['gv'])
                            else: e(x)
            if idx == len(mfs) - 1:
                if nxt == 'd': c_dma(*pd.pop(0))
                elif nxt == 'a':
                    if pa[0] == (NOWN, 0):
                        g.need([], ['opoll']); tsL(); e(f"s_cbranch_scc0 LC_slowO{V}"); g.lab(f"LC_goO{V}"); gload()
                    c_aload(*pa.pop(0))
                if i == 16*(NOWN - D - 1) + 1: ldO(); g.v.append('opoll')
                if i >= I2 + 11 and (i - I2) % 4 == 3: trysig(nafter('snd'), CNT2+4, 0, FL_P, force=(i == len(SEQ)-1))
                if i >= I3 + 9 and (i - I3) % 4 == 1: trysig(nafter('snd2'), CNT2+8, 0, FL_P2, sDN=sOK+1)
                if i == I3 + OPT['rp']: ldR(); g.v.append('rpoll')
    assert not pa and not pd and not any(w[2] for w in WIN)
    if V < len(VL) - 1: e("s_branch LC_done")
    sv = g.L; g.L = g.tail
    g.lab(f"LC_slowO{V}"); spin(f"LC_spinO{V}", ldO, tsL, sT+3); e(f"s_branch LC_goO{V}")
    g.L = sv
g.lab("LC_done")
sv = g.L; g.L = g.tail
g.lab("LC_slowH"); spin("LC_spinH", ldH, tsL, sT+3); e("s_branch LC_goH")
g.L = sv
delay(3, 12)
stamp('endC')
trysig(nafter('snd2'), CNT2+8, 0, FL_P2, force=True, sDN=sOK+1)
e(f"s_mov_b32 s{sT+5}, 1"); e(f"s_mov_b32 s{sT+3}, {SPIN:#x}")
e(f"v_mov_b32 v{vT+4}, 0x3f80"); e(f"v_mov_b32 v{vT+5}, 0x3f800000")
g.lab("LC_rl")
e("s_waitcnt vmcnt(0)"); e(f"v_cmp_eq_u32 vcc, 1, v{cvPL}"); e(f"s_sub_u32 s{sT+3}, s{sT+3}, 1"); e(f"s_cselect_b32 s{sT+1}, 15, 0")
e(f"s_or_b32 s{sT+1}, s{sT+1}, vcc_lo"); e(f"s_andn2_b32 s{sT+1}, s{sT+1}, s{sT+5}"); e(f"s_and_b32 s{sT+1}, s{sT+1}, 15"); e(f"s_or_b32 s{sT+5}, s{sT+5}, s{sT+1}")
for i in (1, 2, 3):
    e(f"s_bitcmp1_b32 s{sT+1}, {i}"); e(f"s_cbranch_scc0 LC_rn{i}"); rloads((i,)); g.lab(f"LC_rn{i}")
e(f"s_cmp_eq_u32 s{sT+5}, 15"); e("s_cbranch_scc1 LC_rd")
if OPT['rsl']: e(f"s_sleep {OPT['rsl']}")
ldR(); e("s_branch LC_rl")
g.lab("LC_rd")
e("s_waitcnt vmcnt(0)")
for i in (2, 3, 1):
    d = cRV + 8*(i-1)
    for r in range(16): e(f"v_dot2_f32_bf16 v{cvACC+r}, v{d+(r>>1)}, v{vT+4+(r&1)}, v{cvACC+r}")
e("s_nop 2")
for mf in range(2):
    x = cvACC + 4*mf; y = x + 8; d = cvPT + 24 + 4*mf
    for r in range(4): e(f"v_mul_f32 v{x+r}, v{cvGc+mf}, v{x+r}"); e(f"v_mul_f32 v{y+r}, v{cvGc+mf}, v{y+r}")
    if OPT['pscale']:
        for r in range(4): e(f"v_mul_f32 v{x+r}, {f32(OPT['pscale'])}, v{x+r}"); e(f"v_mul_f32 v{y+r}, {f32(OPT['pscale'])}, v{y+r}")
    if OPT['perr'] and mf == 0:
        e(f"s_or_b32 s{sT}, s2, s{sW}"); e(f"s_cmp_eq_u32 s{sT}, 0"); e(f"s_cselect_b32 s{sT}, {f32(OPT['perr'])}, 0")
        e("s_mov_b64 exec, 1"); e(f"v_add_f32 v{x}, s{sT}, v{x}"); e("s_mov_b64 exec, -1")
    e(f"v_cvt_pk_bf16_f32 v{d}, v{x}, v{x+1}"); e(f"v_cvt_pk_bf16_f32 v{d+1}, v{x+2}, v{x+3}")
    e(f"v_cvt_pk_bf16_f32 v{d+2}, v{y}, v{y+1}"); e(f"v_cvt_pk_bf16_f32 v{d+3}, v{y+2}, v{y+3}")
    e("s_nop 1")
    e(f"v_permlane16_swap_b32 v{d}, v{d+2}"); e(f"v_permlane16_swap_b32 v{d+1}, v{d+3}")
    e(f"buffer_store_dwordx4 {vr(d,4)}, v{cvOUT}, {sr(cOUT,4)}, s{cRD+4 if mf == 0 else 39} offen {OPT['ost']}")
g.lab("LC_fin")
stamp('fin')
if OPT['stamp']:
    e(f"s_lshl_b32 s{sT}, s2, 3"); e(f"s_add_u32 s{sT}, s{sT}, s{sW}"); e(f"s_lshl_b32 s{sT}, s{sT}, 7"); e(f"s_add_u32 s{sT}, s{sT}, {WS_STAMP:#x}")
    e(f"v_lshlrev_b32 v{vT}, 2, v{L}"); e("s_mov_b32 exec_hi, 0")
    e(f"buffer_store_dword v0, v{vT}, {sr(sWS,4)}, s{sT} offen")
    if OPT['stamp'] == 2:
        e(f"v_readlane_b32 s{sT}, v0, 16"); e(f"s_not_b32 s{sT}, s{sT}"); e(f"v_writelane_b32 v0, s{sT}, 16")
        e(f"v_subrev_u32 v{vT}, 60, v{vT}"); e(f"s_mov_b32 exec_lo, {((1<<len(SN))-1)<<16:#x}")
        e(f"buffer_atomic_umax v0, v{vT}, {sr(sDBG,4)}, 0 offen sc1")
g.lab("L_end")
e("s_endpgm")
g.L += g.tail + g.tail2 + ['LZ_end:']
if OPT['nobar'] or OPT['nodma'] or OPT['nolds'] or OPT['noadv']:
    o = []; inl = False
    for l in g.L:
        if l.startswith('LA_loop') or l.startswith('LC_loop'): inl = True
        if 'LA_h1_' in l or l.startswith('LC_done'): inl = False
        if inl and OPT['nobar'] and 's_barrier' in l: continue
        if inl and OPT['nodma'] and 'buffer_load' in l: continue
        if inl and OPT['nolds'] and 'ds_read' in l: continue
        if inl and OPT['noadv'] and any(f's_add_u32 s{k}, s{k},' in l for k in list(range(sOW, sOW+5)) + [sKX]): continue
        o.append(l)
    g.L = o

hdr = [l.rstrip('\n') for l in open("cdna_kernels/%s.s.ref" % NAME)]
hdr = [l for l in hdr if l.startswith(';') and '@launch' not in l]
out = hdr + [f"; @launch grid=(256,1,1) block=(512,1,1) lds={LDS_BYTES}", '.amdgcn_target "amdgcn-amd-amdhsa--gfx950"', ".text"] + g.L
out += ['.section .rodata,"a"', ".p2align 6", f""".amdhsa_kernel {KN}
  .amdhsa_next_free_vgpr 256
  .amdhsa_next_free_sgpr 102
  .amdhsa_accum_offset 256
  .amdhsa_group_segment_fixed_size 0
  .amdhsa_kernarg_size 88
  .amdhsa_user_sgpr_count 2
  .amdhsa_user_sgpr_kernarg_segment_ptr 1
  .amdhsa_system_sgpr_workgroup_id_x 1
.end_amdhsa_kernel"""]
out.insert(0, "; stamps: " + ",".join(SN)) if OPT['stamp'] else None
open(sys.argv[1], "w").write("\n".join(out) + "\n")
import hazard
errs = hazard.check("\n".join(g.L))
print("\n".join(errs) if errs else "hazard check clean")
```

```python
import sys, struct
NAME = "gated_mix__sliding_block__swiglu_ffn__prompt"
KN = NAME + "_kernel"
OPT = dict(stamp=0, NP=16, jbx=5, xrd=[0,0,1,1], xpos=[2,4,6,8], wpos=[1,3,5,7,9], pfpos=19, stag=0, PD=3, pf=1, CB=1, defer=0, slp=2, touch=0, pfnt=0, wnt=0, bprio=0, amap=3, fast=0, D=4, npre=3, apre=1, hpos=[0,1,2,3], dpos=[4,5,6,7], lthr=64, ffb=0, fr=5, hx=0, fnt=1, cpf=3, cpf0=1, aprio=3, pvs=1, w1=2, csn=1, kq=34, rp=15, rsl=1, ginc=1, astag=1, pst=0, w1e=1, perr=0, dly=0, pscale=0, bal={0:[(1,13)],2:[(3,13)],3:-1,1:-1}, tlb=0, aearly=1, hq2=7, xfl='', wfl='', cfl='', ost='nt', h0=2, nopk=0, pf2=0, wdst=4, wdn=24, otail=0, gl=2, p3=0, rc=24, dbg=2, hq=9, early1=2, snake=1, tst=0, wshift=0, noadv=0, aflag='sc1', kvfast=0, rfast=0, pfast=1, wb=0, pre=0, cmap=1, m16=288*512, c3=0, kvs1=1, cprio=0, AB=0,
           noX=0, noW=0, noA=0, noW2=0, prio=0, kvs=2, nobar=0, nodma=0, nolds=0)
for a in sys.argv[2:]:
    k, v = a.split('='); assert k in OPT, k
    OPT[k] = eval(v)
def f32(x): return "0x%08x" % struct.unpack('<I', struct.pack('<f', x))[0]
def vr(a, n=1): return f"v[{a}:{a+n-1}]" if n > 1 else f"v{a}"
def sr(a, n=1): return f"s[{a}:{a+n-1}]" if n > 1 else f"s{a}"
NV = [0]
class Gen:
    def __init__(s): s.L = []; s.q = []; s.v = []; s.tail = []; s.tail2 = []
    def e(s, t): s.L.append("    " + t)
    def lab(s, t): s.L.append(t + ":")
    def lds(s, t, tag): s.e(t); s.q.append(tag)
    def vm(s, t, tag): s.e(t); s.v.append(tag); NV[0] += 1
    def need(s, tags=(), vt=()):
        w = []
        idx = [i for i, t in enumerate(s.v) if t in vt]
        if idx:
            n = len(s.v) - 1 - max(idx); s.v = s.v[max(idx)+1:]; assert n < 64
            w.append(f"vmcnt({n})")
        idx = [i for i, t in enumerate(s.q) if t in tags]
        if idx:
            n = len(s.q) - 1 - max(idx); s.q = s.q[max(idx)+1:]
            w.append(f"lgkmcnt({min(n,15)})")
        if w: s.e("s_waitcnt " + " ".join(w))
    def steady(s, body):
        sv = s.L; s.L = []; s.q = []; s.v = []
        body(); body(); r = (list(s.q), list(s.v)); s.L = sv
        return r
g = Gen(); e = g.e
M16 = OPT['m16']; A_BYTES = 128*M16
WS_KV = 0x1400000; WS_PART = 0x1C00000; WS_G = 0x2C00000; WS_FL = 0x2C10000; WS_STAMP = 0x3000000; WS_SIZE = 0x4000000
FL_KV, FL_H, FL_O, FL_P, FL_P2 = 128, 256, 260, 384, 388
sFAST = 34+1
LOG2E = 1.4426950408889634
SPIN = 0x8000
MF16 = "v_mfma_f32_16x16x32_bf16"; MF32 = "v_mfma_f32_32x32x16_bf16"
sW, sRB, sH, sMW, sNW = 3, 4, 5, 6, 7
sX, sA, sB, sQ, sWS, sDBG, sPF = 8, 12, 16, 20, 24, 28, 32
sKX, sOW, sMWd, sINCA, sMX, sCNT, sKXE, sPFO, sPFI, sLAM, sOK, sGO = 36, 37, 42, 47, 48, 49, 50, 51, 52, 53, 54, 55
sT = 56; sP = 64; sST = 86
pX, pQKV, pWO, pWG, pWU, pWD, pGW, pOUT, pDBG, pWSp = sP, sP+2, sP+4, sP+8, sP+10, sP+12, sP+14, sP+16, sP+18, sP+20
sFAST = 101
sK = sP+6
vL, vL16, vPF, vDX, vDA, vDB, vXR, vWG, vWQ, vDUM, vCN, vGV, vT = 1, 2, 3, 4, 8, 9, 10, 12, 14, 18, 19, 20, 26
vWF, vXF, vACC = 44, 64, 96
L = vL
def ACC(j, i): return vACC + (4*j+i)*4
XSLOT = 32768; WBASE = 65536; HALF = 20480; WSLOT = 2*HALF; GOFF = 6144; UOFF = 6144+7168
LDS_BYTES = 163840; QLDS = 147456; QLDS3 = 92160; CNTLDS = 163832; CNT2 = 96256; GLDS = 163776; sGW = 96
UNITS = [['q0','q1','k0','k1','g0','u0','g1','u1','g2','u2'], ['v0','v1','g3','u3','g4','u4','g5','u5','g6','u6']]
def srd(d, p, size):
    e(f"s_mov_b32 s{d}, s{p}"); e(f"s_and_b32 s{d+1}, s{p+1}, 0xffff"); e(f"s_mov_b32 s{d+2}, {size:#x}"); e(f"s_mov_b32 s{d+3}, 0x20000")
SN = ['start','loopA','endA','ks','hdone','kvok','bar2','sph','hs','pv','attn','loopC','endH','rs','endC','fin']
SN = ['start','loopA','ks','endA','hdone','kvok','bar2','sph','hs','pv','loopC','endH','rs','endC','rs2','fin']
if OPT['pst']: SN = ['start','karg','x0','w0','setup','w1','land','bar','loopA','fin']
if OPT['tst']: SN = ['start','loopA'] + [f't{i}' for i in range(7)] + ['endA', 'fin']
def stamp(name):
    if OPT['tst'] and name not in ('loopA', 'endA', 'fin'): return
    if name not in SN: return
    idx = SN.index(name); assert idx < 16
    if not OPT['stamp']: return
    e(f"s_memtime s[{sST}:{sST+1}]"); e(f"s_memrealtime s[{sST+2}:{sST+3}]"); e("s_waitcnt lgkmcnt(0)")
    e(f"v_writelane_b32 v0, s{sST}, {idx}"); e(f"v_writelane_b32 v0, s{sST+2}, {idx+16}")
def pstamp(k):
    if OPT['stamp']: e(f"s_memtime s[{92+2*k}:{93+2*k}]")
NDS = [0]
def dstore(lines, on=True):
    if True:
        for l in lines: e(l + " sc1")
        return
    k = NDS[0]; NDS[0] += 1
    e(f"s_cmp_eq_u32 s{sFAST}, 1"); e(f"s_cbranch_scc0 LS_s{k}")
    for l in lines: e(l)
    g.lab(f"LS_r{k}")
    g.tail2 += [f"LS_s{k}:"] + ["    " + l + " sc1" for l in lines] + [f"    s_branch LS_r{k}"]
def delay(k, bit):
    if not (OPT['dly'] >> k) & 1: return
    e(f"s_and_b32 s87, s2, 0x2f"); e(f"s_cmp_lg_u32 s87, {bit}"); e(f"s_cbranch_scc1 LD_{k}")
    for i in range(12): e("s_sleep 127")
    g.lab(f"LD_{k}")
def one_lane(f):
    e("s_mov_b64 exec, 1"); f(); e("s_mov_b64 exec, -1")

def a_wread(nw, n, tj=None):
    n %= 40; t = n // 10; j = n % 10
    if tj: t, j = tj
    sig = (t+1) >> 1; half = (t+1) & 1; slot = sig & 1; un = UNITS[nw][j]
    for tr in range(2):
        if un[0] in 'qkv':
            a = vWQ + 2*slot + int(un[1]); off = half*HALF + 'qkv'.index(un[0])*2048 + tr*512
        else:
            a = vWG + slot; off = half*HALF + (GOFF if un[0] == 'g' else UOFF) + tr*1792 + int(un[1])*32
        g.lds(f"ds_read_b64_tr_b16 {vr(vWF+4*(n%5)+2*tr,2)}, v{a} offset:{off}", ('W', n % 5))
def a_xread(i, t):
    t %= 4
    g.lds(f"ds_read_b128 {vr(vXF+16*(t&1)+4*i,4)}, v{vXR+(t&1)} offset:{(t>>1)*XSLOT+i*2048}", ('X', t & 1, i))
def a_m0(k, n, slot):
    if k == 'x': e(f"s_add_u32 m0, s{sMX}, {slot*XSLOT}")
    elif k == 'w': e(f"s_add_u32 m0, s{sMWd+n}, {slot*WSLOT}")
def a_op(k, n, slot, first=False):
    if k == 'x':
        g.vm(f"buffer_load_dwordx4 v{vDX+n}, {sr(sX,4)}, s{sKX} offen offset:{1024*n} {OPT['xfl']} lds", ('x', slot, n))
        if n == 3:
            e(f"s_add_u32 s{sKX}, s{sKX}, 128")
    elif k == 'w':
        d = [sA, sA, sB, sB, sQ][n]; v = vDA if n < 4 else vDB
        if first: e(f"s_cmp_lt_i32 s{sOW+n}, 0"); e(f"s_cbranch_scc1 LA_skipw{n}")
        g.vm(f"buffer_load_dwordx4 v{v}, {sr(d,4)}, s{sOW+n} offen" + (" nt" if (OPT['wnt'] & 1 or (first and OPT['fnt'])) else "") + f" {OPT['wfl']} lds", ('w', slot, n))
        if first: g.lab(f"LA_skipw{n}")
        e(f"s_add_u32 s{sOW+n}, s{sOW+n}, " + (f"s{sINCA}" if n < 4 else f"{64*6144}"))
    else:
        g.vm(f"buffer_load_dword v{vDUM}, v{vPF}, {sr(sPF,4)}, s{sPFO} offen" + (" nt" if OPT['wnt'] & 2 and NWCUR[0] == 0 else ""), ('p', 0, 0))
        e(f"s_add_u32 s{sPFO}, s{sPFO}, s{sPFI}")
def a_full(k, n, slot, first=False):
    a_m0(k, n, slot)
    if not first: e("s_nop 0")
    a_op(k, n, slot, first)
JBW = 6
def a_events(nw):
    ev = {}; st = OPT['stag']*nw
    for t in (1, 3):
        for n, o in enumerate(OPT['xpos']): assert 0 <= o+st < 20; ev.setdefault((t*10+OPT['jbx']+o+st) % 40, []).append(('x', n, t >> 1))
    for t in (0, 2):
        for n, o in enumerate(OPT['wpos']): assert 0 <= o+st < 20; ev.setdefault((t*10+JBW+o+st) % 40, []).append(('w', n, t >> 1))
        if OPT['pf']: ev.setdefault((t*10+JBW+OPT['pfpos']-st) % 40, []).append(('p', 0, 0))
    return ev
NWCUR = [0]
def a_body(nw):
    NWCUR[0] = nw
    ev = a_events(nw)
    for t in range(4):
        for j in range(10):
            n = t*10 + j; un = UNITS[nw][j]; evs = ev.get(n, [])
            for i in range(4):
                i2 = 3-i if (OPT['snake'] and j & 1) else i
                g.need([('W', n % 5), ('X', t & 1, i2)])
                a, b = vr(vWF+4*(n % 5), 4), vr(vXF+16*(t & 1)+4*i2, 4)
                if un[0] == 'v': a, b = b, a
                e(f"{MF16} {vr(ACC(j,i2),4)}, {a}, {b}, {vr(ACC(j,i2),4)}")
                if i == 0:
                    if t % 2 == 0 and j == JBW:
                        g.need([('W', k) for k in range(5)], [('w', 1-(t >> 1), k) for k in range(5)]); e("s_barrier")
                    if t % 2 == 1 and j == OPT['jbx']:
                        g.need([], [('x', 1-(t >> 1), k) for k in range(4)]); e("s_barrier")
                    a_wread(nw, n+4)
                if i == 1:
                    for ii in range(4):
                        if OPT['jbx'] + OPT['xrd'][ii] == j: a_xread(ii, t+1)
                    if evs: a_m0(*evs[0])
                if i == 2 and evs:
                    a_op(*evs[0])
                    for x in evs[1:]: a_full(*x)

def silu(jg, i, t, R):
    G = ACC(jg, i); U = ACC(jg+1, i)
    for r in range(0, 8, 2): e(f"v_pk_mul_f32 {vr(t+r,2)}, {vr(G+r,2)}, {sr(sK,2)}")
    for r in range(8): e(f"v_exp_f32 v{t+r}, v{t+r}")
    for r in range(0, 8, 2): e(f"v_pk_mul_f32 {vr(G+r,2)}, {vr(G+r,2)}, {vr(U+r,2)}")
    for r in range(0, 8, 2): e(f"v_pk_add_f32 {vr(t+r,2)}, {vr(t+r,2)}, s[94:95]")
    for r in range(8): e(f"v_rcp_f32 v{t+r}, v{t+r}")
    e("s_nop 0")
    for r in range(0, 8, 2): e(f"v_pk_mul_f32 {vr(G+r,2)}, {vr(G+r,2)}, {vr(t+r,2)}")
    for r in range(4): e(f"v_cvt_pk_bf16_f32 v{R+r}, v{G+2*r}, v{G+2*r+1}")
    e("s_nop 1")
    e(f"v_permlane32_swap_b32 v{R}, v{R+2}"); e(f"v_permlane32_swap_b32 v{R+1}, v{R+3}")
def pack2(j, i):
    a, b = ACC(j, i), ACC(j+1, i)
    e(f"v_cvt_pk_bf16_f32 v{a}, v{a}, v{a+1}"); e(f"v_cvt_pk_bf16_f32 v{a+1}, v{a+2}, v{a+3}")
    e(f"v_cvt_pk_bf16_f32 v{a+2}, v{b}, v{b+1}"); e(f"v_cvt_pk_bf16_f32 v{a+3}, v{b+2}, v{b+3}")
def spin(name, load, test, cnt):
    e(f"s_mov_b32 s{cnt}, {SPIN:#x}")
    g.lab(name)
    load(); e("s_waitcnt vmcnt(0)"); test()
    e(f"s_cbranch_scc1 {name}_ok")
    e(f"s_sub_u32 s{cnt}, s{cnt}, 1"); e(f"s_cbranch_scc1 {name}_ok")
    e(f"s_sleep {OPT['slp']}"); e(f"s_branch {name}")
    g.lab(name + "_ok")
NSIG = [0]
sDN, sHB, sFO = 100, 92, 101
vSG = 20
def trysig(n, ldsaddr, flagadd, flagoff, force=False, sDN=sDN):
    k = NSIG[0]; NSIG[0] += 1
    if force: e(f"s_cmp_eq_u32 s{sDN}, 0")
    else:
        e(f"s_getreg_b32 s{sFO}, hwreg(HW_REG_IB_STS)"); e(f"s_and_b32 s{sFO}, s{sFO}, 0xc0000f"); e(f"s_or_b32 s{sFO}, s{sFO}, s{sDN}"); e(f"s_cmp_le_u32 s{sFO}, {n}")
    e(f"s_cbranch_scc1 LG_s{k}"); g.lab(f"LG_r{k}")
    g.tail2 += [f"LG_s{k}:"] + ["    " + x for x in (
        f"v_mov_b32 v{vSG}, {ldsaddr}", f"s_mov_b32 s{sDN}, 0x10000", "s_mov_b64 exec, 1", f"s_waitcnt vmcnt({n})",
        f"ds_add_rtn_u32 v{vSG+1}, v{vSG}, v{vCN}", "s_waitcnt lgkmcnt(0)", f"v_readfirstlane_b32 s{sFO}, v{vSG+1}", "s_nop 1",
        f"s_cmp_lg_u32 s{sFO}, 7", f"s_cbranch_scc1 LG_x{k}", f"s_add_u32 s{sFO}, s{sT+7}, {flagadd}",
        f"buffer_store_dword v{vCN}, off, {sr(sWS,4)}, s{sFO} offset:{flagoff} sc1")] + [f"LG_x{k}:", "    s_mov_b64 exec, -1"]
    sv = g.L; g.L = g.tail2; stamp({FL_KV:'ks',FL_H:'hs',FL_P:'rs',FL_P2:'rs2'}[flagoff]); e(f"s_branch LG_r{k}"); g.L = sv
def gate_acc(X, W, t, one):
    return [[f"v_lshlrev_b32 v{t}, 16, v{X}"], [f"v_and_b32 v{t+1}, 0xffff0000, v{X}"], [f"v_lshlrev_b32 v{t+2}, 16, v{W}"],
            [f"v_and_b32 v{t+3}, 0xffff0000, v{W}"], [f"v_pk_mul_f32 {vr(t,2)}, {vr(t,2)}, {vr(t+2,2)}"], [f"v_cvt_pk_bf16_f32 v{t+4}, v{t}, v{t+1}"],
            [f"v_dot2_f32_bf16 v{t+5}, v{t+4}, v{one}, v{t+5}"]]
def gate_list(t, one):
    o = gate_acc(40, 41, t, one) + gate_acc(38, 39, t, one)
    o.append(["s_nop 1"])
    for m in ("quad_perm:[1,0,3,2] row_mask:0xf", "quad_perm:[2,3,0,1] row_mask:0xf", "row_half_mirror row_mask:0xf",
              "row_mirror row_mask:0xf", "row_bcast:15 row_mask:0xa", "row_bcast:31 row_mask:0xc"):
        o.append(["s_nop 1", f"v_add_f32_dpp v{t+5}, v{t+5}, v{t+5} {m} bank_mask:0xf"])
    o += [[f"v_cvt_pk_bf16_f32 v{t}, v{t+5}, v{t+5}", f"v_and_b32 v{t}, 0xffff0000, v{t}"], [f"v_mul_f32 v{t}, {f32(-LOG2E)}, v{t}", f"v_exp_f32 v{t}, v{t}", "s_nop 0"],
          [f"v_add_f32 v{t}, 1.0, v{t}", f"v_rcp_f32 v{t}, v{t}", "s_nop 0"], [f"v_cvt_pk_bf16_f32 v{t}, v{t}, v{t}", f"v_and_b32 v{t}, 0xffff0000, v{t}"],
          [f"s_lshl_b32 s{sT}, s{sW}, 2", f"s_add_u32 s{sT}, s{sT}, {GLDS}", f"v_mov_b32 v{t+1}, s{sT}"],
          ["s_mov_b32 exec_lo, 0", "s_brev_b32 exec_hi, 1", f"ds_write_b32 v{t+1}, v{t}", "s_mov_b64 exec, -1"]]
    return o

D = OPT['D']; NH = 14; OT = OPT['otail']; NT = 8 if OT else 4; NS = NH + NT
cA, cWt, cOUT, cWo, cX = 8, 12, 16, 32, 40
cAK, cWK, cWK2, cQ, cNT, cM0, cAK2 = 20, 21, 22, 23, 36, 37, 38
cvDW, cvA, cvPL, cvDW2, cvPA = 4, 6, 16, 20, 18
cvWF, cvAR, cvRB, cvRA, cvPT, cvOA, cvACC = 28, 60, 124, 136, 144, 176, 192
CRING = 98304
def c_setup():
    e(f"s_lshr_b32 s{cQ}, s{sH}, 3"); e(f"s_and_b32 s{cNT}, s{sH}, 7")
    e(f"s_lshl_b32 s{sT}, s{cNT}, 8")
    e(f"s_lshl_b32 s{cWK}, s{sW}, 14"); e(f"s_add_u32 s{cWK}, s{cWK}, s{sT}")
    e(f"s_lshl_b32 s{cWK2}, s{sW}, {15 if OT else 14}"); e(f"s_add_u32 s{cWK2}, s{cWK2}, s{sT}")
    e(f"s_mul_i32 s{sT}, s{cQ}, {896*2048}"); e(f"s_add_u32 s{cWK}, s{cWK}, s{sT}")
    if OT: e(f"s_lshr_b32 s{sT}, s{cQ}, 1"); e(f"s_lshl_b32 s{sT}, s{sT}, 7")
    else: e(f"s_lshl_b32 s{sT}, s{cQ}, 19")
    e(f"s_add_u32 s{cWK2}, s{cWK2}, s{sT}")
    e(f"s_lshl_b32 s{cM0}, s{sW}, 11"); e(f"s_add_u32 s{cM0}, s{cM0}, {CRING}")
    srd(cWt, pWD, 0 if OPT['noW2'] else 3584*2048); srd(cWo, pWO, 0 if OPT['noW2'] else 1024*2048)
    srd(cA, pWSp, 0 if OPT['noA'] else A_BYTES); srd(cOUT, pOUT, 2048*2048)
    e(f"s_lshl_b32 s{sT}, s{sRB}, 4"); e(f"s_lshl_b32 s{cAK}, s{sW}, 1"); e(f"s_add_u32 s{sT}, s{sT}, s{cAK}")
    e(f"s_mul_i32 s{cAK}, s{sT}, {M16}"); e(f"s_add_u32 s{cAK2}, s{cAK}, {56*512}")
    e(f"s_mul_i32 s{sT}, s{cQ}, {72*512}"); e(f"s_add_u32 s{cAK}, s{cAK}, s{sT}")
    e(f"v_mov_b32 v{cvA}, v{vL16}"); e(f"v_add_u32 v{cvA+1}, {M16}, v{vL16}")
    e(f"v_lshrrev_b32 v{vT}, 4, v{vL}"); e(f"v_bfe_u32 v{vT+1}, v{vL}, 1, 3"); e(f"v_xor_b32 v{vT+1}, v{vT+1}, v{vT}")
    e(f"v_lshlrev_b32 v{vT}, 11, v{vT}"); e(f"v_lshl_add_u32 v{vT}, v{vT+1}, 5, v{vT}")
    e(f"v_and_b32 v{vT+1}, 1, v{vL}"); e(f"v_lshl_add_u32 v{cvDW}, v{vT+1}, 4, v{vT}")
    e(f"v_xor_b32 v{cvDW+1}, 128, v{cvDW}"); e(f"v_add_u32 v{cvDW+1}, 7168, v{cvDW+1}")
    e(f"v_and_b32 v{cvPA}, 7, v{L}"); e(f"v_lshlrev_b32 v{cvPA}, 9, v{cvPA}")
def c_m0(s): e(f"s_add_u32 m0, s{cM0}, {(s % 4)*16384}")
HS = [(0, k) for k in range(14)]
CUR = {'a': 0, 'w': 0}
def c_dma(s, n):
    if s < NH:
        off = (HS[s][0]*896 + HS[s][1]*64)*2048
        if off != CUR['w']: e(f"s_add_u32 s{cWK}, s{cWK}, {(off-CUR['w']) & 0xffffffff:#x}"); CUR['w'] = off
        g.vm(f"buffer_load_dwordx4 v{cvDW+n}, {sr(cWt,4)}, s{cWK} offen offset:{n*1024} lds", ('d', s))
    else:
        g.vm(f"buffer_load_dwordx4 v{cvDW+n}, {sr(cWo,4)}, s{cWK2} offen offset:{n*1024} lds", ('d', s))
        if n == 1: e(f"s_add_u32 s{cWK2}, s{cWK2}, {64*2048}")
def c_aload(s, k):
    ku, mf = k >> 1, k & 1
    off = HS[s][0]*72*512 + HS[s][1]*2048 if s < NH else (14 + s - NH)*2048
    if not (0 <= off - CUR['a'] <= 2048): e(f"s_add_u32 s{cAK}, s{cAK}, {(off-CUR['a']) & 0xffffffff:#x}"); CUR['a'] = off
    g.vm(f"buffer_load_dwordx4 {vr(cvAR+16*((s+1)%D)+4*k,4)}, v{cvA+mf}, {sr(cA,4)}, s{cAK} offen offset:{off-CUR['a']+ku*1024} sc1", ('a', s, k))
def c_wread(s, n):
    s += n // 16; n %= 16
    if s >= NS: return
    for tr in range(2):
        if s < NH or not OT: a, off = cvRA + (n & 7), (n >> 3)*8192 + tr*2048
        else: a, off = cvRB + (n & 3), (n >> 2)*4096 + tr*1024
        g.lds(f"ds_read_b64_tr_b16 {vr(cvWF+4*(n&7)+2*tr,2)}, v{a} offset:{(s%4)*16384+off}", ('W', n & 7))

g.L += [".globl " + KN, ".p2align 8", f".type {KN},@function"]
g.lab(KN)
e("s_cmp_ge_u32 s2, 256"); e("s_cbranch_scc1 L_end")
e(f"s_load_dwordx16 {sr(sP,16)}, s[0:1], 0"); e(f"s_load_dwordx4 {sr(sP+16,4)}, s[0:1], 64"); e(f"s_load_dwordx2 {sr(sP+20,2)}, s[0:1], 80")
if OPT['stamp']: e(f"s_memtime s[{sST+4}:{sST+5}]"); e(f"s_memrealtime s[{sST+6}:{sST+7}]")
if OPT['cpf0']:
    e(f"s_getpc_b64 s[{sT}:{sT+1}]"); g.lab("LA_pc0")
    e(f"s_sub_u32 s{sT}, s{sT}, LA_pc0-{KN}"); e(f"s_subb_u32 s{sT+1}, s{sT+1}, 0")
    e(f"s_lshr_b32 s{sT+2}, s2, 3"); e(f"s_lshl_b32 s{sT+2}, s{sT+2}, 7")
    e(f"v_lshlrev_b32 v26, 12, v0"); e(f"v_add_u32 v26, s{sT+2}, v26")
    e(f"v_cmp_gt_u32 vcc, LZ_end-{KN}-4, v26"); e(f"v_mov_b32 v27, s{sT+1}"); e(f"s_and_saveexec_b64 s[{sT+2}:{sT+3}], vcc"); e("s_cbranch_execz LA_nopc")
    e(f"v_add_co_u32 v26, vcc, s{sT}, v26"); e("s_nop 1"); e(f"v_addc_co_u32 v27, vcc, 0, v27, vcc")
    e(f"global_load_dword v{vDUM}, v[26:27], off")
    g.lab("LA_nopc"); e("s_mov_b64 exec, -1")
e(f"v_lshrrev_b32 v{vT}, 6, v0"); e(f"v_and_b32 v{vL}, 63, v0"); e(f"v_readfirstlane_b32 s{sW}, v{vT}")
if OPT['amap'] == 0:
    e(f"s_lshr_b32 s{sRB}, s2, 5"); e(f"s_and_b32 s{sH}, s2, 7"); e(f"s_lshl_b32 s{sH}, s{sH}, 2")
    e(f"s_bfe_u32 s{sT}, s2, {(2<<16)|3:#x}"); e(f"s_add_u32 s{sH}, s{sH}, s{sT}")
elif OPT['amap'] == 1:
    e(f"s_and_b32 s{sRB}, s2, 7"); e(f"s_lshr_b32 s{sH}, s2, 3")
elif OPT['amap'] == 2:
    e(f"s_and_b32 s{sRB}, s2, 6"); e(f"s_lshr_b32 s{sT}, s2, 7"); e(f"s_add_u32 s{sRB}, s{sRB}, s{sT}")
    e(f"s_and_b32 s{sH}, s2, 1"); e(f"s_lshl_b32 s{sH}, s{sH}, 4"); e(f"s_bfe_u32 s{sT}, s2, {(4<<16)|3:#x}"); e(f"s_add_u32 s{sH}, s{sH}, s{sT}")
if OPT['amap'] == 3:
    e(f"s_and_b32 s{sRB}, s2, 4"); e(f"s_lshr_b32 s{sT}, s2, 6"); e(f"s_add_u32 s{sRB}, s{sRB}, s{sT}")
    e(f"s_and_b32 s{sH}, s2, 3"); e(f"s_lshl_b32 s{sH}, s{sH}, 3"); e(f"s_bfe_u32 s{sT}, s2, {(3<<16)|3:#x}"); e(f"s_add_u32 s{sH}, s{sH}, s{sT}")
e(f"s_and_b32 s{sMW}, s{sW}, 3"); e(f"s_lshr_b32 s{sNW}, s{sW}, 2")
e(f"s_lshl_b32 s{sLAM}, s{sRB}, 5"); e(f"s_add_u32 s{sLAM}, s{sLAM}, s{sH}")
e(f"v_lshlrev_b32 v{vL16}, 4, v{L}")
e(f"v_lshrrev_b32 v{vT}, 3, v{L}"); e(f"v_lshlrev_b32 v{vT}, 11, v{vT}")
e(f"v_lshrrev_b32 v{vT+1}, 4, v{L}"); e(f"v_and_b32 v{vT+2}, 7, v{L}"); e(f"v_xor_b32 v{vT+1}, v{vT+1}, v{vT+2}")
e(f"v_lshl_add_u32 v{vDX}, v{vT+1}, 4, v{vT}"); e(f"v_xor_b32 v{vDX+1}, 64, v{vDX}")
e(f"v_add_u32 v{vDX+2}, {2*15360}, v{vDX}"); e(f"v_add_u32 v{vDX+3}, {3*15360}, v{vDX+1}"); e(f"v_add_u32 v{vDX+1}, 15360, v{vDX+1}")
def swap23(d, s, t):
    e(f"v_and_b32 v{d}, 0x13, v{s}")
    e(f"v_and_b32 v{t}, 4, v{s}"); e(f"v_lshl_or_b32 v{d}, v{t}, 1, v{d}")
    e(f"v_and_b32 v{t}, 8, v{s}"); e(f"v_lshrrev_b32 v{t}, 1, v{t}"); e(f"v_or_b32 v{d}, v{d}, v{t}")
e(f"v_lshrrev_b32 v{vT}, 2, v{L}"); swap23(vT+1, vT, vT+2)
e(f"v_mul_u32_u24 v{vT+1}, 6144, v{vT+1}")
e(f"v_lshrrev_b32 v{vT}, 3, v{L}"); e(f"v_and_b32 v{vT}, 2, v{vT}"); e(f"v_and_b32 v{vT+2}, 3, v{L}"); e(f"v_xor_b32 v{vT}, v{vT}, v{vT+2}")
e(f"v_lshl_add_u32 v{vDB}, v{vT}, 4, v{vT+1}")
e(f"v_mul_u32_u24 v{vT}, 4682, v0"); e(f"v_lshrrev_b32 v{vT}, 16, v{vT}")
e(f"v_mul_u32_u24 v{vT+3}, 14, v{vT}"); e(f"v_sub_u32 v{vT+3}, v0, v{vT+3}")
swap23(vT+1, vT, vT+2)
e(f"v_mul_u32_u24 v{vT+1}, 7168, v{vT+1}"); e(f"v_lshl_add_u32 v{vDA}, v{vT+3}, 4, v{vT+1}")
e(f"s_lshl_b32 s{sKX}, s{sRB}, 19"); e(f"s_lshl_b32 s{sT}, s{sW}, 16"); e(f"s_add_u32 s{sKX}, s{sKX}, s{sT}")
e(f"s_add_u32 s{sKXE}, s{sKX}, 2048"); e(f"s_lshl_b32 s{sMX}, s{sW}, 12")
e(f"s_mul_i32 s{sOW+1}, s{sH}, 224"); e(f"s_sub_u32 s{sOW}, s{sOW+1}, {32*7168}")
e(f"s_mov_b32 s{sOW+2}, s{sOW}"); e(f"s_mov_b32 s{sOW+3}, s{sOW+1}")
e(f"s_lshl_b32 s{sT}, s{sW}, 10")
for n, o in enumerate((GOFF, GOFF+HALF, UOFF, UOFF+HALF)): e(f"s_add_u32 s{sMWd+n}, s{sT}, {WBASE+o}")
e(f"s_mov_b32 s{sINCA}, {64*7168}")
def qpiece(p):
    half, unit, rg = p // 6, (p % 6) // 2, p % 2
    return (WBASE + half*HALF + unit*2048 + rg*1024, ((-32 + half*32 + rg*16)*6144 + unit*2048) & 0xffffffff)
e(f"s_lshl_b32 s{sT+1}, s{sH}, 6")
e(f"s_add_u32 s{sMWd+4}, s{sT}, {WBASE}")
e(f"s_and_b32 s{sT+2}, s{sW}, 1"); e(f"s_mul_i32 s{sT+2}, s{sT+2}, {16*6144}")
e(f"s_lshr_b32 s{sT+3}, s{sW}, 1"); e(f"s_lshl_b32 s{sT+3}, s{sT+3}, 11"); e(f"s_add_u32 s{sT+2}, s{sT+2}, s{sT+3}")
e(f"s_sub_u32 s{sOW+4}, s{sT+2}, {32*6144}")
for w, p in ((6, 6), (7, 11)):
    l, o = qpiece(p)
    e(f"s_cmp_eq_u32 s{sW}, {w}"); e(f"s_cselect_b32 s{sMWd+4}, {l:#x}, s{sMWd+4}"); e(f"s_cselect_b32 s{sOW+4}, {o:#x}, s{sOW+4}")
e(f"s_add_u32 s{sOW+4}, s{sOW+4}, s{sT+1}")
e("s_waitcnt lgkmcnt(0)")
if OPT['stamp']: e(f"v_writelane_b32 v0, s{sST+4}, 0"); e(f"v_writelane_b32 v0, s{sST+6}, 16")
delay(0, 5)
stamp('karg')
srd(sX, pX, 0 if OPT['noX'] else 2048*2048)
for n in range(4): a_full('x', n, 0)
stamp('x0')
srd(sQ, pQKV, 0 if OPT['noW'] else 1024*6144); srd(sA, pWG, 0 if OPT['noW'] else 1024*7168); srd(sB, pWU, 0 if OPT['noW'] else 1024*7168)
e(f"s_cmp_eq_u32 s{sW}, 7"); e("s_cbranch_scc0 LA_not7")
for d in (sA, sB):
    for k in range(3): e(f"s_mov_b32 s{d+k}, s{sQ+k}")
for n in range(4):
    l, o = qpiece(7+n)
    e(f"s_mov_b32 s{sMWd+n}, {l:#x}"); e(f"s_add_u32 s{sOW+n}, s{sT+1}, {o:#x}")
e(f"s_mov_b32 s{sINCA}, {64*6144}"); e(f"v_mov_b32 v{vDA}, v{vDB}")
g.lab("LA_not7")
if OPT['wshift']:
    for n in range(5): e(f"s_add_u32 s{sOW+n}, s{sOW+n}, " + (f"s{sINCA}" if n < 4 else f"{64*6144}"))
for n in range(5): a_full('w', n, 0, True)
stamp('w0')
srd(sWS, pWSp, WS_SIZE); srd(sDBG, pDBG, 256); srd(sPF, pGW, 2048)
PD = OPT['PD'] - OPT['pre']; sPB = sT+6
assert OPT['amap'] == 3
e(f"s_lshr_b32 s{sT+1}, s2, 3"); e(f"s_lshr_b32 s{sT+2}, s{sH}, 3")
e(f"v_lshlrev_b32 v{vPF}, 7, v{L}"); e(f"s_mov_b32 s{sT+3}, 0"); e(f"s_mov_b32 s{sCNT}, 0"); e(f"s_mov_b32 s{sPFO}, 0"); e(f"s_mov_b32 s{sPFI}, 0")
e(f"s_mov_b32 s{sPB}, s{pX}"); e(f"s_mov_b32 s{sPB+1}, s{pX+1}")
def pfcase(w, body):
    e(f"s_cmp_lg_u32 s{sW}, {w}"); e(f"s_cbranch_scc1 LA_pf{w}"); body(); g.lab(f"LA_pf{w}")
def base(p, size): e(f"s_mov_b32 s{sPB}, s{p}"); e(f"s_mov_b32 s{sPB+1}, s{p+1}"); e(f"s_mov_b32 s{sCNT}, {size:#x}")
R2 = 2 if OPT['pf2'] else 1
def pf_x():
    base(pX, 2048*2048); e(f"v_and_b32 v{vT}, 31, v{L}"); e(f"v_lshlrev_b32 v{vT}, 11, v{vT}"); e(f"v_lshrrev_b32 v{vPF}, 5, v{L}"); e(f"v_lshl_add_u32 v{vPF}, v{vPF}, 7, v{vT}")
    e(f"s_and_b32 s{sT+4}, s{sH}, 7"); e(f"s_lshl_b32 s{sT+4}, s{sT+4}, 16"); e(f"s_lshl_b32 s{sPFO}, s{sRB}, 19"); e(f"s_add_u32 s{sPFO}, s{sPFO}, s{sT+4}")
    e(f"s_add_u32 s{sPFO}, s{sPFO}, {PD*128}"); e(f"s_mov_b32 s{sPFI}, {128*R2}"); e(f"s_mov_b32 s{sT+3}, {32*R2}")
def pf_gu(p):
    def f():
        base(p, 1024*7168); e(f"v_mul_u32_u24 v{vT}, 4682, v{L}"); e(f"v_lshrrev_b32 v{vT}, 16, v{vT}")
        e(f"v_mul_u32_u24 v{vT+1}, {7168-1792}, v{vT}"); e(f"v_add_u32 v{vPF}, v{vPF}, v{vT+1}")
        e(f"v_lshrrev_b32 v{vT}, 1, v{vT}"); e(f"v_mul_u32_u24 v{vT}, {62*7168}, v{vT}"); e(f"v_add_u32 v{vPF}, v{vPF}, v{vT}")
        e(f"s_mul_i32 s{sPFO}, s{sT+1}, {2*7168}"); e(f"s_mul_i32 s{sT+4}, s{sT+2}, 1792"); e(f"s_add_u32 s{sPFO}, s{sPFO}, s{sT+4}")
        e(f"s_add_u32 s{sPFO}, s{sPFO}, {(64*PD-32)*7168}"); e(f"s_mov_b32 s{sPFI}, {64*7168*R2}"); e(f"s_mov_b32 s{sT+3}, {28*R2}")
    return f
def pf_q():
    base(pQKV, 1024*6144); e(f"v_lshrrev_b32 v{vT}, 2, v{L}"); e(f"v_lshlrev_b32 v{vT}, 11, v{vT}"); e(f"v_and_b32 v{vPF}, 3, v{L}")
    e(f"v_lshl_add_u32 v{vPF}, v{vPF}, 7, v{vT}")
    e(f"v_cmp_le_u32 vcc, 24, v{L}"); e(f"v_add_u32 v{vT}, {62*6144}, v{vPF}"); e("s_nop 0"); e(f"v_cndmask_b32 v{vPF}, v{vPF}, v{vT}, vcc")
    e(f"s_mul_i32 s{sPFO}, s{sT+1}, {2*6144}"); e(f"s_lshl_b32 s{sT+4}, s{sT+2}, 9"); e(f"s_add_u32 s{sPFO}, s{sPFO}, s{sT+4}")
    e(f"s_add_u32 s{sPFO}, s{sPFO}, {(64*PD-32)*6144}"); e(f"s_mov_b32 s{sPFI}, {64*6144*R2}"); e(f"s_mov_b32 s{sT+3}, {24*R2}")
def pf_lin(p, size, nl, st=0):
    def f():
        base(p, size); e(f"s_mul_i32 s{sPFO}, s{sLAM}, {nl*128}"); e(f"s_mov_b32 s{sPFI}, {nl*128*256}"); e(f"s_mov_b32 s{sT+3}, {nl}")
        if st: e(f"s_sub_u32 s{sPFO}, s{sPFO}, {st*nl*128*256}")
    return f
if OPT['pf']:
    if PD > 0: pfcase(6, pf_x); pfcase(1, pf_gu(pWG)); pfcase(2, pf_gu(pWU)); pfcase(3, pf_q)
    pfcase(4, pf_lin(pWD, 3584*2048, OPT['wdn'], OPT['wdst'])); pfcase(5, pf_lin(pWO, 1024*2048, 16, OPT['wdst']))
    if OPT['touch'] & 1: pfcase(6, pf_lin(pWSp, A_BYTES, 64))
    def pf_kv():
        pf_lin(pWSp, WS_KV + (0x1000000 if OPT['touch'] & 4 else 0x800000), 64)(); e(f"s_add_u32 s{sPFO}, s{sPFO}, {WS_KV:#x}")
    if OPT['touch'] & 2: pfcase(7, pf_kv)
e(f"v_cmp_gt_u32 vcc, s{sT+3}, v{L}"); e(f"v_bfrev_b32 v{vT}, 1"); e("s_nop 0"); e(f"v_cndmask_b32 v{vPF}, v{vT}, v{vPF}, vcc")
e(f"s_mov_b32 s{sPF}, s{sPB}"); e(f"s_and_b32 s{sPF+1}, s{sPB+1}, 0xffff"); e(f"s_mov_b32 s{sPF+2}, s{sCNT}")
for k in range(OPT['pre']): a_op('p', 0, 0)
W1E = {0: [], 1: [0,2,4], 2: [0,2,4,1,3]}[OPT['w1e']]
for n in W1E: a_full('w', n, 1)
e(f"v_and_b32 v{vT}, 15, v{L}"); e(f"s_lshl_b32 s{sT}, s{sMW}, 6"); e(f"v_add_u32 v{vT}, s{sT}, v{vT}"); e(f"v_lshlrev_b32 v{vT}, 7, v{vT}")
e(f"v_lshrrev_b32 v{vT+1}, 4, v{L}"); e(f"v_bfe_u32 v{vT+2}, v{L}, 1, 3"); e(f"v_xor_b32 v{vT+2}, v{vT+1}, v{vT+2}")
e(f"v_lshl_add_u32 v{vXR}, v{vT+2}, 4, v{vT}"); e(f"v_xor_b32 v{vXR+1}, 64, v{vXR}")
e(f"v_bfe_u32 v{vT}, v{L}, 2, 3")
e(f"v_lshrrev_b32 v{vT+1}, 5, v{L}"); e(f"v_lshl_add_u32 v{vT}, v{vT+1}, 4, v{vT}")
e(f"v_and_b32 v{vT+1}, 3, v{L}"); e(f"v_lshlrev_b32 v{vT+1}, 3, v{vT+1}"); e(f"v_add_u32 v{vT+1}, {WBASE}, v{vT+1}")
e(f"v_mul_u32_u24 v{vWG}, 224, v{vT}"); e(f"v_add_u32 v{vWG}, v{vWG}, v{vT+1}"); e(f"v_add_u32 v{vWG+1}, {WSLOT}, v{vWG}")
e(f"v_lshl_add_u32 v{vWQ}, v{vT}, 6, v{vT+1}"); e(f"v_bfe_u32 v{vT+2}, v{L}, 4, 1"); e(f"v_lshl_add_u32 v{vWQ}, v{vT+2}, 5, v{vWQ}")
e(f"v_xor_b32 v{vWQ+1}, 32, v{vWQ}"); e(f"v_add_u32 v{vWQ+2}, {WSLOT}, v{vWQ}"); e(f"v_add_u32 v{vWQ+3}, {WSLOT}, v{vWQ+1}")
for r in range(vACC, 256): e(f"v_mov_b32 v{r}, 0")
e(f"s_mov_b32 s{sK}, {f32(-LOG2E)}"); e(f"s_mov_b32 s{sK+1}, {f32(-LOG2E)}")
e(f"s_lshl_b32 s{sGO}, s{sLAM}, 3"); e(f"s_add_u32 s{sGO}, s{sGO}, s{sW}"); e(f"s_lshl_b32 s{sGO}, s{sGO}, 11")
e("v_mov_b32 v40, 0"); e("v_mov_b32 v41, 0"); e("v_mov_b32 v25, 0"); e("v_mov_b32 v43, 0x3f803f80"); e(f"v_lshlrev_b32 v42, 2, v{L}"); e(f"s_mov_b32 s{sKXE}, 0")
srd(sGW, pGW, 2048); e("s_mov_b32 s94, 1.0"); e("s_mov_b32 s95, 1.0")
W1A = {0: [0,1,2,3,4], 1: [], 2: [0,2,4]}[OPT['w1']]
stamp('setup')
for n in W1A:
    if n not in W1E: a_full('w', n, 1)
W1A = sorted(set(W1A) | set(W1E))
stamp('w1')
e(f"s_waitcnt vmcnt({len(W1A)+OPT['pre']})"); stamp('land'); e("s_barrier"); stamp('bar')
e(f"s_cmp_eq_u32 s{sNW}, 1"); e("s_cbranch_scc1 LA_pre1")
for nw in range(2):
    if nw == 1: g.lab("LA_pre1")
    sq, sv_ = g.steady(lambda: a_body(nw))
    g.q = []
    for i in range(4): a_xread(i, 0)
    for n in range(4): a_wread(nw, n)
    assert [t for t in sv_ if t[0] == 'w'] == [('w', 1, k) for k in range(5)], sv_
    for n in range(5):
        if n not in W1A: a_full('w', n, 1)
    for t in sv_:
        if t[0] == 'x': assert t[1] == 1; a_full('x', t[2], 1)
    assert not any(t[0] == 'p' for t in sv_[sv_.index(('w', 1, 0)):]), sv_
    e(f"s_mov_b32 s{sCNT}, 8"); e(f"s_mov_b32 s{sOK}, 0")
    stamp('loopA')
    if OPT['prio'] and nw == 1: e("s_setprio 1")
    e("s_waitcnt lgkmcnt(0)")
    g.q = list(sq); g.v = list(sv_)
    g.L.append(".p2align 6"); g.lab(f"LA_loop{nw}")
    a_body(nw); assert g.q == sq and g.v == sv_
    if OPT['tst']:
        e(f"s_memtime s[{sST}:{sST+1}]"); e(f"s_memrealtime s[{sST+2}:{sST+3}]"); e(f"s_sub_u32 s{sST+4}, 10, s{sCNT}"); e(f"s_add_u32 s{sST+5}, s{sST+4}, 16")
        e("s_waitcnt lgkmcnt(0)"); e(f"s_mov_b32 m0, s{sST+4}"); e("s_nop 0"); e(f"v_writelane_b32 v0, s{sST}, m0"); e(f"s_mov_b32 m0, s{sST+5}"); e("s_nop 0"); e(f"v_writelane_b32 v0, s{sST+2}, m0")
    e(f"s_sub_u32 s{sCNT}, s{sCNT}, 1")
    for u in gate_acc(40, 41, 20, 43):
        for x in u: e(x)
    e(f"buffer_load_dword v40, v42, {sr(sX,4)}, s{sGO} offen"); e(f"buffer_load_dword v41, v42, {sr(sGW,4)}, s{sKXE} offen")
    e(f"s_add_u32 s{sGO}, s{sGO}, 256"); e(f"s_add_u32 s{sKXE}, s{sKXE}, 256")
    e(f"s_cmp_lg_u32 s{sCNT}, 1"); e(f"s_cbranch_scc1 LA_h1_{nw}")
    sv = g.L; g.L = g.tail
    g.lab(f"LA_h1_{nw}")
    def hook(c, body, w0=False):
        if w0 and nw == 1: return
        e(f"s_cmp_lg_u32 s{sCNT}, {c}"); e(f"s_cbranch_scc1 LA_n{c}_{nw}")
        if w0: e(f"s_cmp_lg_u32 s{sW}, 0"); e(f"s_cbranch_scc1 LA_loop{nw}")
        body(); e(f"s_branch LA_loop{nw}"); g.lab(f"LA_n{c}_{nw}")
    def rec_store():
        for r in range(28, 32): e(f"v_mov_b32 v{r}, 0")
        e(f"v_mov_b32 v26, {CNTLDS}"); e("ds_write_b32 v26, v28")
        e(f"s_lshl_b32 s{sT}, s{sLAM}, 9"); e(f"s_add_u32 s{sT}, s{sT}, {WS_FL:#x}")
        e("s_mov_b32 exec_hi, 0")
        e(f"buffer_store_dwordx4 v[28:31], v{vL16}, {sr(sWS,4)}, s{sT} offen sc1"); e("s_mov_b64 exec, -1")
    def ack():
        e(f"v_mov_b32 v{vT}, 1"); e(f"s_and_b32 s{sT}, s{sLAM}, 1"); e(f"s_lshl_b32 s{sT}, s{sT}, 7")
        one_lane(lambda: e(f"buffer_atomic_add v{vT}, off, {sr(sDBG,4)}, s{sT} sc1"))
    def ld(): e(f"v_and_b32 v37, 1, v{L}"); e(f"v_lshlrev_b32 v37, 7, v37"); e(f"buffer_load_dword v{vCN}, v37, {sr(sDBG,4)}, 0 offen sc1")
    def ts(): e(f"v_cmp_gt_u32 vcc, 128, v{vCN}"); e("s_nop 1"); e("s_cmp_eq_u64 vcc, 0")
    def gate_loads():
        e(f"v_lshlrev_b32 v42, 5, v{L}")
        e(f"buffer_load_dwordx4 {vr(26,4)}, v42, {sr(sX,4)}, s{sGO} offen"); e(f"buffer_load_dwordx4 {vr(30,4)}, v42, {sr(sX,4)}, s{sGO} offen offset:16")
        e(f"buffer_load_dwordx4 {vr(34,4)}, v42, {sr(sGW,4)}, 0 offen"); e(f"buffer_load_dwordx4 {vr(38,4)}, v42, {sr(sGW,4)}, 0 offen offset:16")
        ld()
    def code_pf():
        e(f"s_getpc_b64 s[{sT}:{sT+1}]"); g.lab("LA_pc")
        e(f"s_sub_u32 s{sT}, s{sT}, LA_pc-{KN}"); e(f"s_subb_u32 s{sT+1}, s{sT+1}, 0")
        e(f"s_lshr_b32 s{sT+2}, s2, 3"); e(f"s_lshl_b32 s{sT+2}, s{sT+2}, 12")
        e(f"v_and_b32 v26, 31, v{L}"); e(f"v_lshlrev_b32 v26, 7, v26"); e(f"v_add_u32 v26, s{sT+2}, v26")
        e(f"v_min_u32 v26, LZ_end-{KN}-4, v26")
        e(f"v_mov_b32 v27, s{sT+1}"); e(f"v_add_co_u32 v26, vcc, s{sT}, v26"); e("s_nop 1"); e(f"v_addc_co_u32 v27, vcc, 0, v27, vcc")
        e(f"global_load_dword v{vDUM}, v[26:27], off")
    if OPT['astag']:
        def ackif(k):
            def f():
                e(f"s_lshr_b32 s{sT}, s2, 3"); e(f"s_mul_i32 s{sT}, s{sT}, 3"); e(f"s_lshr_b32 s{sT}, s{sT}, 5")
                e(f"s_cmp_lg_u32 s{sT}, {k}"); e(f"s_cbranch_scc1 LA_loop{nw}"); ack()
            return f
        hook(7, rec_store, True); hook(6, ackif(0), True); hook(5, ackif(1), True); hook(4, ackif(2), True); hook(2, ld)
    else:
        hook(6, rec_store, True); hook(5, ack, True); hook(2, ld)
    if OPT['cpf']: hook(OPT['cpf'], code_pf, True)
    def tlb_warm():
        e(f"s_mul_i32 s{sT}, s{sRB}, {16*M16}"); e(f"v_mov_b32 v26, s{sT}")
        e(f"s_add_u32 s{sT+1}, s{sT}, {8*M16}"); e(f"v_writelane_b32 v26, s{sT+1}, 1")
        e(f"s_add_u32 s{sT+1}, s{sT}, {16*M16-128}"); e(f"v_writelane_b32 v26, s{sT+1}, 2")
        e(f"s_lshl_b32 s{sT}, s{sLAM}, 15"); e(f"s_add_u32 s{sT}, s{sT}, {WS_KV:#x}"); e(f"v_writelane_b32 v26, s{sT}, 3")
        e(f"s_sub_u32 s{sT}, s{sT}, {32*32768}"); e(f"v_writelane_b32 v26, s{sT}, 4")
        e(f"s_lshl_b32 s{sT}, s{sRB}, 21"); e(f"s_add_u32 s{sT}, s{sT}, {WS_PART:#x}"); e(f"v_writelane_b32 v26, s{sT}, 5")
        e("s_mov_b64 exec, 63"); e(f"buffer_load_dword v{vDUM}, v26, {sr(sWS,4)}, 0 offen"); e("s_mov_b64 exec, 1")
        srd(88, pOUT, 2048*2048); e(f"s_lshl_b32 s{sT}, s{sRB}, 19"); e(f"buffer_load_dword v{vDUM}, off, s[88:91], s{sT}")
        srd(88, pWO, 1024*2048); e(f"buffer_load_dword v{vDUM}, off, s[88:91], 0")
        srd(88, pWD, 3584*2048); e(f"s_lshr_b32 s{sT}, s{sH}, 3"); e(f"s_mul_i32 s{sT}, s{sT}, {896*2048}"); e(f"buffer_load_dword v{vDUM}, off, s[88:91], s{sT}")
        e(f"s_add_u32 s{sT}, s{sT}, {895*2048}"); e(f"buffer_load_dword v{vDUM}, off, s[88:91], s{sT}")
        e("s_mov_b64 exec, -1")
    if OPT['tlb']: hook(OPT['tlb'], tlb_warm, True)
    e(f"s_branch LA_loop{nw}")
    g.lab(f"LA_slow{nw}")
    spin(f"LA_spin{nw}", ld, ts, sT+3); e(f"s_branch LB_go{nw}")
    g.L = sv
    ts(); e(f"s_cbranch_scc0 LA_slow{nw}")
    g.lab(f"LB_go{nw}")
    e(f"buffer_load_dword v38, v42, {sr(sX,4)}, s{sGO} offen"); e(f"buffer_load_dword v39, v42, {sr(sGW,4)}, s{sKXE} offen")
    U = UNITS[nw]; jkv = 2 if nw == 0 else 0
    vHA = 3; vST = 96 - 4*len(OPT['hpos']); vNB = 208; assert len(OPT['hpos']) % 2 == 0
    def cap(f, atomic=False):
        sv = g.L; g.L = []; f(); r = g.L; g.L = sv
        return [r] if atomic else [[x] for x in r]
    def setupB():
        e(f"s_lshl_b32 s{sT+4}, s{sLAM}, 15"); e(f"s_add_u32 s{sT+4}, s{sT+4}, {WS_KV:#x}")
        e(f"s_lshl_b32 s{sT+5}, s{sMW}, 13"); e(f"v_add_u32 v{vT+8}, s{sT+5}, v{vL16}")
        e(f"s_add_u32 s{sT+5}, s{sT+5}, s{sT+4}")
    def setupB2():
        e(f"s_cmp_eq_u32 s{sRB}, 7"); e(f"s_cselect_b32 s{sT+5}, {WS_SIZE:#x}, s{sT+5}")
    def setupB3():
        e(f"s_add_u32 s{sT+6}, s{sT+5}, 4096")
        e(f"v_and_b32 v{vHA}, 31, v{L}"); e(f"v_lshlrev_b32 v{vHA}, 4, v{vHA}"); e(f"v_lshrrev_b32 v{vT+11}, 5, v{L}")
        e(f"v_mul_u32_u24 v{vT+11}, {M16}, v{vT+11}"); e(f"v_add_u32 v{vHA}, v{vHA}, v{vT+11}")
        e(f"s_lshl_b32 s{sT}, s{sRB}, 4"); e(f"s_lshl_b32 s{sT+1}, s{sMW}, 2"); e(f"s_add_u32 s{sT}, s{sT}, s{sT+1}")
        e(f"s_mul_i32 s{sHB}, s{sT}, {M16}"); e(f"s_mul_i32 s{sT}, s{sH}, {7*512}"); e(f"s_add_u32 s{sHB}, s{sHB}, s{sT}")
        e(f"s_lshr_b32 s{sT}, s{sH}, 3"); e(f"s_lshl_b32 s{sT}, s{sT}, 13"); e(f"s_add_u32 s{sHB}, s{sHB}, s{sT}")
        if nw == 1: e(f"s_add_u32 s{sHB}, s{sHB}, {3*512}")
        e(f"s_add_u32 s{sHB+1}, s{sHB}, {2*M16}")
        e(f"s_lshl_b32 s{sT+7}, s{sLAM}, 9"); e(f"s_add_u32 s{sT+7}, s{sT+7}, {WS_FL:#x}")
        e(f"v_mov_b32 v{vCN}, 1"); e(f"s_mov_b32 s{sDN}, 0"); e(f"s_sub_u32 s{sT+3}, s{sT+7}, {32*512}")
    def gpub():
        e(f"s_cmp_lg_u32 s{sW}, 0"); e("s_cbranch_scc1 LB_nog")
        e(f"v_lshlrev_b32 v{vT}, 2, v{L}"); e(f"v_add_u32 v{vT+1}, {GLDS}, v{vT}"); e("s_mov_b64 exec, 0xff"); e(f"ds_read_b32 v{vT+1}, v{vT+1}"); e("s_waitcnt lgkmcnt(0)")
        e(f"buffer_store_dword v{vT+1}, v{vT}, {sr(sWS,4)}, s{sT+7} offen sc1"); e("s_mov_b64 exec, -1")
        g.lab("LB_nog")
    def kvout():
        for i in range(4):
            pack2(jkv, i)
            if nw == 1:
                a = ACC(0, i); e("s_nop 1"); e(f"v_permlane32_swap_b32 v{a}, v{a+2}"); e(f"v_permlane32_swap_b32 v{a+1}, v{a+3}")
            e(f"buffer_store_dwordx4 {vr(ACC(jkv,i),4)}, v{vL16}, {sr(sWS,4)}, s{sT+5+(i>>1)} offen offset:{nw*2048+(i&1)*1024} sc1")
    gus = [j for j in range(10) if U[j][0] == 'g']
    def hst(R, k): e(f"buffer_store_dwordx4 {vr(R,4)}, v{vHA}, {sr(sWS,4)}, s{sHB+(k&1)} offen offset:{(k>>1)*512}" + ("" if OPT['hx'] == 1 else " sc1")) if OPT['hx'] != 2 else None
    def ldK(): e(f"buffer_load_dword v{vT+10}, off, {sr(sWS,4)}, s{sT+3} offset:{FL_KV} sc1")
    def tsK(): e(f"v_readfirstlane_b32 s{sT}, v{vT+10}"); e("s_nop 0"); e(f"s_cmp_eq_u32 s{sT}, 1")
    J = [2,3,4,5,6,7,8,9,0,1] if nw == 0 else list(range(10))
    SQ = [(t, j) for t in range(2) for j in range(10)]
    for p in range(5): a_, b_ = J[2*p], J[2*p+1]; SQ += [(2, a_), (2, b_), (3, a_), (3, b_)]
    F = []
    F += [(1, u) for u in cap(setupB) + cap(setupB2, True) + cap(setupB3)]
    vKA, vVA, vQA, vOA = 8, 9, 10, 11
    def att_setup():
        m = vT
        e(f"v_and_b32 v{m+1}, 15, v{L}"); e(f"v_lshlrev_b32 v{m+1}, 4, v{m+1}"); e(f"v_lshrrev_b32 v{m+2}, 5, v{L}")
        e(f"v_lshl_add_u32 v{m+1}, v{m+2}, 8, v{m+1}"); e(f"v_bfe_u32 v{m+2}, v{L}, 4, 1")
        e(f"v_lshl_add_u32 v{vQA}, v{m+2}, 10, v{m+1}"); e(f"v_lshl_add_u32 v{vVA}, v{m+2}, 9, v{m+1}")
        e(f"v_mul_u32_u24 v{vOA}, {M16}, v{m+2}"); e(f"v_add_u32 v{vOA}, v{vOA}, v{m+1}")
        e(f"s_lshl_b32 s{sT}, s{sW}, 12"); e(f"v_add_u32 v{vKA}, s{sT}, v{vQA}"); e(f"v_add_u32 v{vVA}, s{sT}, v{vVA}")
    def q_addr():
        e(f"s_lshl_b32 s{sT}, s{sW}, 11"); e(f"s_cmp_ge_u32 s{sW}, 6"); e(f"s_cselect_b32 s{sT+1}, {QLDS3-6*2048}, {QLDS}".replace(f", {QLDS}", f", s{sT+2}"))
        e(f"s_add_u32 s{sT}, s{sT}, s{sT+1}"); e(f"v_add_u32 v{vQA}, s{sT}, v{vQA}")
        if nw == 0:
            e(f"s_lshl_b32 s{sT}, s{sMW}, 12"); e(f"s_cmp_eq_u32 s{sMW}, 3"); e(f"s_cselect_b32 s{sT+1}, {QLDS3-3*4096}, s{sT+2}")
            e(f"s_add_u32 s{sT}, s{sT}, s{sT+1}"); e(f"v_add_u32 v{vT+9}, s{sT}, v{vL16}")
    def cnt0():
        e(f"v_mov_b32 v{vT+12}, {CNT2}"); e(f"v_mov_b32 v{vT+13}, 0"); e(f"ds_write_b32 v{vT+12}, v{vT+13}"); e(f"ds_write_b32 v{vT+12}, v{vT+13} offset:4"); e(f"ds_write_b32 v{vT+12}, v{vT+13} offset:8")
    def kvlds():
        for i in range(4): e(f"ds_write_b128 v{vT+8}, {vr(ACC(jkv,i),4)} offset:{32768+(i>>1)*4096+nw*2048+(i&1)*1024}")
    F += [(10, u) for u in cap(c_setup)]
    F += [(18, [("    " + x) for x in u]) for u in gate_list(20, 43)]
    if nw == 0: F += [(19, u) for u in cap(cnt0)]
    F += [(21, u) for u in cap(att_setup) + [[f"    s_mov_b32 s{sT+2}, {QLDS}"]] + cap(q_addr, True)]
    F += [(24, u) for u in cap(kvout) + cap(kvlds)]
    if nw == 0: F += [(24, u) for u in cap(gpub, True)]
    nk = 2*len(gus)
    for k in range(nk):
        j, i = gus[k >> 1], 2*(k & 1); av = 28 + 4*(k >> 1)
        F += [(av, u) for u in cap(lambda: silu(j, i, vT, ACC(j, i)))]
        NE = nk - len(OPT['hpos'])
        F += [(av, u) for u in cap(lambda: trysig(min(k, NE), CNTLDS, 0, FL_KV, force=(k == nk-1)), True)]
        if k < NE: F += [(av, u) for u in cap(lambda: hst(ACC(j, i), k))]
    ev = {n: [x for x in v if x[0] == 'x' and x[2] == 1] for n, v in a_events(nw).items() if n < 10}
    for n, k in zip((7, 8, 9), (0, 2, 4)): ev.setdefault(n, []).append(('w', k, 0))
    for n, (t, j) in enumerate(SQ):
        un = U[j]; evs = ev.get(n, [])
        for i in range(4):
            g.need([('W', n % 5), ('X', t & 1, i)])
            a, b = vr(vWF+4*(n % 5), 4), vr(vXF+16*(t & 1)+4*i, 4)
            if un[0] == 'v': a, b = b, a
            e(f"{MF16} {vr(ACC(j,i),4)}, {a}, {b}, {vr(ACC(j,i),4)}")
            if i == 0:
                if n == JBW: g.need([('W', k) for k in range(5)], [('w', 1, k) for k in range(5)]); e("s_barrier")
                if n == 17:
                    g.need([('W', k) for k in range(5)], [('x', 1, k) for k in range(4)] + [('w', 0, k) for k in range(5)]); e("s_barrier")
                if n == 22: assert not any(av <= 18 for av, u in F)
                if n == 23: g.need([('X', 1, k) for k in range(4)] + [('W', k) for k in range(5)]); e("s_barrier")
                if n + 4 < 40: a_wread(nw, n+4, SQ[n+4])
                if nw == 0 and n == OPT['kq']: ldK()
            if i == 1:
                for ii in range(4):
                    if n == OPT['jbx'] + OPT['xrd'][ii]: a_xread(ii, 1)
                    if n == 17 + (ii >> 1): a_xread(ii, 2)
                    if n == 20: a_xread(ii, 3)
                if evs: a_m0(*evs[0])
            if i == 2 and evs:
                a_op(*evs[0])
                for x in evs[1:]: a_full(*x)
            c = 0
            while F and F[0][0] <= n and c < (2 if n < 12 else 3 if n < 20 else OPT['fr']) and not (i == 1 and evs):
                u = F.pop(0)[1]; g.L += u; c += len(u)
    stamp('endA')
    left = sum(1 for av, u in F for x in u if 'buffer_store_dwordx4' in x)
    print("path", nw, "leftover filler instrs", sum(len(u) for av, u in F), "stores", left)
    if nw == 0 and OPT['h0']:
        vNB = 40
        e(f"s_mov_b32 s{sT+5}, {WS_SIZE:#x}")
        e(f"s_cmp_eq_u32 s{sRB}, 0"); e("s_cbranch_scc1 LB_rb0")
        e("s_waitcnt vmcnt(0)"); trysig(15, CNTLDS, 0, FL_KV, force=True); tsK(); e("s_cbranch_scc0 LB_late")
        e(f"s_sub_u32 s{sT+5}, s{sT+4}, {32*32768}")
        g.lab("LB_rb0")
        e(f"s_add_u32 s{sT+6}, s{sT+5}, 4096")
        def nbl():
            for f in range(8): e(f"buffer_load_dwordx4 {vr(vNB+4*f,4)}, v{vT+8}, {sr(sWS,4)}, s{sT+5+(f>>2)} offen offset:{(f&3)*1024} sc1")
        nbl(); e(f"s_mov_b32 s{sT+4}, 0")
        g.lab("LB_late")
        for r in range(32): e(f"v_mul_f32 v{ACC(0,0)+r}, {f32(32 ** -0.5 * LOG2E)}, v{ACC(0,0)+r}")
        for i in range(4): pack2(0, i)
        for i in range(4): e(f"ds_write_b128 v{vT+9}, {vr(ACC(0,i),4)} offset:{i*1024}")
    else: e("s_nop 7")
    assert not any('ds_write' in x for av, u in F for x in u)
    for av, u in F: g.L += u
    for k in range(NE, nk):
        for r in range(4): e(f"v_mov_b32 v{vST+4*(k-NE)+r}, v{ACC(gus[k>>1], 2*(k&1))+r}")
    if NE: e(f"s_add_u32 s{sHB}, s{sHB}, {NE*256}"); e(f"s_add_u32 s{sHB+1}, s{sHB+1}, {NE*256}")
    stamp('hdone')
    if nw == 0:
        e(f"s_cmp_eq_u32 s{sT+4}, 0"); e("s_cbranch_scc1 LB_have")
        spin("LB_spin", ldK, tsK, sT+5)
        e(f"s_sub_u32 s{sT+5}, s{sT+4}, {32*32768}"); e(f"s_add_u32 s{sT+6}, s{sT+5}, 4096")
        nbl(); e("s_waitcnt vmcnt(0)")
        g.lab("LB_have")
        NLEFT = left; vNB0 = vNB
    stamp('kvok')
    if nw == 0: e("s_branch LB_common")
g.lab("LB_common")
FR = [40, 48, 56, 64, 96, 104]; vQ = 32; vS = 112; vM = 26; vSUM = 28
BIG = 2.0**100
assert OPT['npre'] <= 3
e(f"s_mov_b32 s{sDN}, 0")
e(f"s_andn2_b32 s{sT+4}, s{sLAM}, 7"); e(f"s_lshl_b32 s{sT+4}, s{sT+4}, 9"); e(f"s_add_u32 s{sT+4}, s{sT+4}, {WS_FL:#x}")
e(f"s_cmp_eq_u32 s{sNW}, 1"); e("s_cbranch_scc1 LB_nokv")
for f in range(8):
    e(f"s_waitcnt vmcnt({7-f+NLEFT})"); e(f"ds_write_b128 v{vT+8}, {vr(vNB0+4*f,4)} offset:{f*1024}")
g.lab("LB_nokv")
e("s_waitcnt lgkmcnt(0)"); e("s_barrier")
delay(1, 10)
stamp('bar2')
ORD = [0, 8, 1, 2, 3, 4, 5, 6, 7]
def yprio(k):
    e(f"s_cmp_eq_u32 s{sNW}, 0"); e(f"s_cbranch_scc1 LP_{k}"); e("s_setprio 1"); g.lab(f"LP_{k}")
if OPT['aprio'] == 1: yprio(0)
def kread(x):
    t = ORD[x]
    for f in range(2): g.lds(f"ds_read_b128 {vr(FR[x%6]+4*f,4)}, v{vKA} offset:{t*4096+f*512}", ('K', x, f))
def vread(x):
    t = ORD[x]
    for f in range(2): g.lds(f"ds_read_b128 {vr(FR[(x+3)%6]+4*f,4)}, v{vVA} offset:{t*4096+2048+f*1024}", ('V', x, f))
def mx(t, half=None):
    b = vS + 16*t
    for r in range(0, 16, 2):
        if half is not None and (r >> 3) != half: continue
        k = (r >> 1) & 1
        if t == 8 and r < 4: e(f"v_max_f32 v{vM+k}, v{b+r}, v{b+r+1}")
        else: e(f"v_max3_f32 v{vM+k}, v{vM+k}, v{b+r}, v{b+r+1}")
def masked(op, hi=vS+128, lo=vS):
    for rho in range(16):
        cst = 8*(rho >> 2) + (rho & 3)
        e(f"s_bfm_b32 exec_lo, {cst}, 0"); e(f"s_bfm_b32 exec_hi, {cst+4}, 0"); e(f"{op} v{hi+rho}, v{lo+rho}")
    e("s_mov_b64 exec, -1")
def merge():
    masked("v_mov_b32")
    for rho in range(16): e(f"v_mov_b32 v{vS+rho}, 0")
NPRE = OPT['npre']
def ldH(): e(f"buffer_load_dword v{cvPL}, v{cvPA}, {sr(sWS,4)}, s{sT+4} offen offset:{FL_H} sc1")
def tsL(): e(f"v_cmp_ne_u32 vcc, 1, v{cvPL}"); e("s_nop 1"); e("s_cmp_eq_u64 vcc, 0")
AFTER = [0]; NH2 = [0]
def event(x):
    for k, p in enumerate(OPT['hpos']):
        if p == x: hst(vST+4*k, k); AFTER[0] = 0
    if max(OPT['hpos'] + [-1]) < x <= OPT['hq']: trysig(AFTER[0], CNT2, 0, FL_H, force=(x == OPT['hq']))
    for k, p in enumerate(OPT['dpos'][:NPRE]):
        if p == x: c_m0(k); e("s_nop 0"); c_dma(k, 0); c_dma(k, 1); AFTER[0] += 2
    if OPT['aearly'] and x == OPT['hq2']: ldH(); AFTER[0] += 1; NH2[0] = AFTER[0]
    if OPT['aearly'] and x == OPT['hq2'] + 2:
        e(f"s_mov_b32 s{sOK+1}, 0"); e(f"s_waitcnt vmcnt({AFTER[0]-NH2[0]})"); tsL(); e("s_cbranch_scc0 LB_noe")
        for k in range(4): c_aload(0, k)
        e(f"s_mov_b32 s{sOK+1}, 1"); e("s_branch LB_e2")
        g.lab("LB_noe"); ldH(); g.lab("LB_e2")
    if not OPT['aearly'] and x == OPT['hq']: ldH(); AFTER[0] += 1
sTH = sT+2
vO = vS + 8
def rowsum():
    e(f"v_pk_add_f32 {vr(vSUM,2)}, {vr(vSUM,2)}, {vr(vSUM+2,2)}"); e(f"v_add_f32 v{vSUM}, v{vSUM}, v{vSUM+1}")
    e(f"v_mov_b32 v{vSUM+1}, v{vSUM}"); e("s_nop 1"); e(f"v_permlane32_swap_b32 v{vSUM}, v{vSUM+1}")
    e(f"v_add_f32 v{vSUM}, v{vSUM}, v{vSUM+1}")
def negmax():
    e(f"v_max_f32 v{vM}, v{vM}, v{vM+1}"); e(f"v_mov_b32 v{vM+1}, v{vM}"); e("s_nop 1")
    e(f"v_permlane32_swap_b32 v{vM}, v{vM+1}"); e(f"v_max_f32 v{vM}, v{vM}, v{vM+1}")
    e(f"v_mul_f32 v{vM}, -1.0, v{vM}"); e(f"v_mov_b32 v{vM+1}, v{vM}")
def sums(b, first):
    for r in range(0, 16, 2):
        s = vSUM + 2*((r >> 1) & 1)
        if first and r < 4: e(f"v_pk_add_f32 {vr(s,2)}, {vr(b+r,2)}, {vr(b+r+4,2)}")
        elif first and r < 8: pass
        else: e(f"v_pk_add_f32 {vr(s,2)}, {vr(s,2)}, {vr(b+r,2)}")
sv = g.L; g.L = g.tail; g.lab("LB_exact")
e("s_nop 15"); e("s_waitcnt lgkmcnt(0)")
g.q = []
for x in range(6): kread(x)
for x in range(9):
    t = ORD[x]
    g.need([('K', x, 1)])
    if t < 8:
        e(f"s_cmp_le_u32 s{sTH}, {t}"); e(f"s_cbranch_scc1 LB_v{t}")
        for rho in range(16): e(f"v_mov_b32 v{vS+16*t+rho}, {f32(-BIG)}")
        e(f"s_branch LB_w{t}"); g.lab(f"LB_v{t}")
    for f in range(2): e(f"{MF32} {vr(vS+16*t,16)}, {vr(FR[x%6]+4*f,4)}, {vr(vQ+4*f,4)}, " + (vr(vS+16*t, 16) if f else "0"))
    if t < 8: g.lab(f"LB_w{t}")
    if x + 6 < 9: kread(x+6)
    else: vread(x-3)
e("s_nop 15"); merge()
for x in range(1, 9): mx(ORD[x])
negmax()
def pbase(t): return vS if t == 0 else vS + 16*t + 8
def soft(t):
    b = vS + 16*t
    for r in range(0, 16, 2): e(f"v_pk_add_f32 {vr(b+r,2)}, {vr(b+r,2)}, {vr(vM,2)}")
    for r in range(16): e(f"v_exp_f32 v{b+r}, v{b+r}")
    sums(b, t == 8)
    if t == 8:
        masked("v_swap_b32")
        for r in range(8): e(f"v_cvt_pk_bf16_f32 v{vS+r}, v{vS+2*r}, v{vS+2*r+1}")
    for r in range(7, -1, -1): e(f"v_cvt_pk_bf16_f32 v{b+8+r}, v{b+2*r}, v{b+2*r+1}")
for t in ORD[1:]: soft(t)
e("s_nop 1")
for x in range(9):
    for f in range(2):
        g.need([('V', x, f)])
        e(f"{MF32} {vr(vO,16)}, {vr(FR[(x+3)%6]+4*f,4)}, {vr(pbase(ORD[x])+4*f,4)}, " + ("0" if (x == 0 and f == 0) else vr(vO, 16)))
    if x + 6 < 9: vread(x+6)
rowsum(); e("s_nop 7"); e("s_branch LB_norm")
g.lab("LB_nb")
for rho in range(16): e(f"v_mov_b32 v{240+rho}, {f32(-BIG)}")
e(f"s_sub_u32 s{sTH}, 8, s{sW}"); e("s_branch LB_nbr")
g.L = sv
TR = [136, 152, 168, 184]; NM = 200; KR = [216, 224, 232, 112]; NB = 240
def kr(x):
    for f in range(2): g.lds(f"ds_read_b128 {vr(KR[x%4]+4*f,4)}, v{vKA} offset:{ORD[x]*4096+f*512}", ('K', x, f))
def vr_(x):
    for f in range(2): g.lds(f"ds_read_b128 {vr(FR[x%6]+4*f,4)}, v{vVA} offset:{ORD[x]*4096+2048+f*1024}", ('V', x, f))
def smf(x, f):
    t = ORD[x]; d = vr(TR[x%4], 16)
    g.need([('K', x, f), ('Q', f)])
    ab = f"{vr(KR[x%4]+4*f,4)}, {vr(vQ+4*f,4)}"
    if f == 1:
        e(f"{MF32} {d}, {ab}, {d}")
        if x + 4 < 9: kr(x+4)
        return
    if t < 8:
        e(f"s_cmp_gt_u32 s{sTH}, {t}"); e(f"s_cbranch_scc1 LB_m{t}")
        g.tail2 += [f"LB_m{t}:", f"    {MF32} {d}, {ab}, {vr(NB,16)}", f"    s_branch LB_n{t}"]
    e(f"{MF32} {d}, {ab}, " + ("0" if x < 2 else vr(NM, 16)))
    if t < 8: g.lab(f"LB_n{t}")
def pvf(x, f):
    g.need([('V', x, f)])
    e(f"{MF32} {vr(vO,16)}, {vr(FR[x%6]+4*f,4)}, {vr(TR[x%4]+4*f,4)}, " + ("0" if (x == 0 and f == 0) else vr(vO, 16)))
    if f == 1 and x + 6 < 9: vr_(x+6)
def pack(b):
    for r in range(8): e(f"v_cvt_pk_bf16_f32 v{b+r}, v{b+2*r}, v{b+2*r+1}")
g.q = []
for f in range(2): g.lds(f"ds_read_b128 {vr(vQ+4*f,4)}, v{vQA} offset:{f*512}", ('Q', f))
for x in range(4): kr(x)
e(f"s_mov_b32 s{sTH}, 0"); e(f"s_cmp_eq_u32 s{sRB}, 0"); e("s_cbranch_scc1 LB_nb"); g.lab("LB_nbr")
MK = TR[3]; PM = 72
e(f"v_and_b32 v{vM}, 31, v{L}"); e(f"v_lshlrev_b32 v{vM}, v{vM}, 2".replace(f"v{vM}, v{vM}, 2", f"v{vM}, v{vM}, v{vM+1}") if False else f"v_mov_b32 v{vM+1}, 2")
e(f"v_lshlrev_b32 v{vM}, v{vM}, v{vM+1}"); e(f"v_add_u32 v{vM}, -1, v{vM}")
e(f"v_lshrrev_b32 v{vM+1}, 5, v{L}"); e(f"v_lshlrev_b32 v{vM+1}, 2, v{vM+1}"); e(f"v_lshrrev_b32 v{vM}, v{vM+1}, v{vM}")
e(f"s_mov_b32 s{sK}, 0xffff")
event(0)
smf(0, 0); smf(1, 0)
for rho in range(16): e(f"v_bfe_i32 v{MK+rho}, v{vM}, {8*(rho>>2)+(rho&3)}, 1")
smf(0, 1); smf(1, 1)
for x in range(3): vr_(x)
for j in range(8): e(f"v_bfi_b32 v{PM+j}, s{sK}, v{MK+2*j}, v{MK+2*j+1}")
event(1)
b = TR[1]
for rho in range(16): e(f"v_bfi_b32 v{b+rho}, v{MK+rho}, v{b+rho}, v{TR[0]+rho}")
for r in range(0, 16, 2):
    k = (r >> 1) & 1
    e(f"v_max_f32 v{vM+k}, v{b+r}, v{b+r+1}" if r < 4 else f"v_max3_f32 v{vM+k}, v{vM+k}, v{b+r}, v{b+r+1}")
negmax()
for rho in range(16): e(f"v_mov_b32 v{NM+rho}, v{vM}")
for r in range(0, 16, 2):
    e(f"v_pk_add_f32 {vr(b+r,2)}, {vr(b+r,2)}, {vr(vM,2)}")
    if r == 2: smf(2, 0)
event(2)
for r in range(16):
    e(f"v_exp_f32 v{b+r}, v{b+r}")
    if r == 1: smf(2, 1)
    if r == 6: smf(3, 0)
    if r == 11: smf(3, 1)
for x in range(3, 6): vr_(x)
sums(b, True); pack(b)
for j in range(8): e(f"v_bfi_b32 v{TR[0]+j}, v{PM+j}, 0, v{b+j}")
for j in range(8): e(f"v_and_b32 v{b+j}, v{PM+j}, v{b+j}")
stamp('sph')
for x in range(2, 9):
    b = TR[x % 4]; event(x+1)
    if OPT['aprio'] == 3:
        if x % 2 == 0: yprio(x)
        else: e("s_setprio 0")
    mf = ([('p', 0, 0), ('p', 0, 1)] if x == 2 else []) + [('p', x-1, 0), ('p', x-1, 1)] + ([('s', x+2, 0), ('s', x+2, 1)] if x + 2 < 9 else [])
    pos = {6: [1, 5, 9, 13, 18, 26], 4: [1, 6, 11, 18], 2: [1, 8]}[len(mf)]
    ins = [f"v_exp_f32 v{b+r}, v{b+r}" for r in range(16)]
    sv = g.L; g.L = []; sums(b, False); pack(b); ins += [l.strip() for l in g.L]; g.L = sv
    for i, l in enumerate(ins):
        e(l)
        while mf and pos[0] == i:
            k, xx, f = mf.pop(0); pos.pop(0); (pvf if k == 'p' else smf)(xx, f)
e("s_nop 1"); pvf(8, 0); pvf(8, 1)
rowsum()
e(f"v_cmp_ngt_f32 vcc, {f32(2.0**OPT['lthr'])}, v{vSUM}"); e("s_nop 1"); e("s_cmp_lg_u64 vcc, 0"); e("s_branch LB_exact" if OPT['ffb'] else "s_cbranch_scc1 LB_exact")
g.lab("LB_norm")
e(f"v_rcp_f32 v{vSUM}, v{vSUM}")
e(f"s_lshl_b32 s{sT}, s{sRB}, 4"); e(f"s_lshl_b32 s{sT+1}, s{sW}, 1"); e(f"s_add_u32 s{sT}, s{sT}, s{sT+1}")
e(f"s_lshl_b32 s{sT+1}, s{cNT}, 10"); e(f"s_add_u32 s{sT+1}, s{sT+1}, s{cAK}"); e(f"s_add_u32 s{sT+1}, s{sT+1}, {56*512}")
if OPT['aprio']: e("s_setprio 0")
stamp('pv')
if OPT['aearly']: e(f"s_cmp_eq_u32 s{sOK+1}, 1"); e("s_cbranch_scc1 LC_haveA")
e("s_waitcnt vmcnt(0)"); tsL(); e("s_cbranch_scc0 LC_slowH")
g.lab("LC_goH")
g.v = []
for k in range(4): c_aload(0, k)
g.lab("LC_haveA")
assert not OPT['aearly'] or (max(OPT['dpos'][:NPRE]) <= OPT['hq2'] and OPT['hq'] <= OPT['hq2'] + 2 and len(OPT['hpos']) <= 4)
for r in range(16): e(f"v_mul_f32 v{vO+r}, v{vO+r}, v{vSUM}")
for r in range(8): e(f"v_cvt_pk_bf16_f32 v{vO+8+7-r}, v{vO+14-2*r}, v{vO+15-2*r}")
dstore([f"buffer_store_dwordx4 {vr(vO+8+4*f,4)}, v{vOA}, {sr(sWS,4)}, s{sT+1} offen offset:{f*512}" for f in range(2)])
stamp('attn')
g.v += ['st', 'st']
e(f"v_bfe_u32 v{vT}, v{L}, 2, 3"); e(f"v_lshrrev_b32 v{vT+1}, 5, v{L}"); e(f"v_lshl_add_u32 v{vT+1}, v{vT+1}, 4, v{vT}")
e(f"v_lshlrev_b32 v{vT+1}, 8, v{vT+1}"); e(f"v_lshl_add_u32 v{vT+1}, v{vT}, 5, v{vT+1}")
e(f"v_and_b32 v{vT}, 3, v{L}"); e(f"v_lshl_add_u32 v{vT+1}, v{vT}, 3, v{vT+1}")
e(f"s_lshl_b32 s{sT}, s{cQ}, 6"); e(f"v_xor_b32 v{vT+1}, s{sT}, v{vT+1}"); e(f"v_add_u32 v{cvRA}, {CRING}, v{vT+1}")
for u in range(1, 8): e(f"v_xor_b32 v{cvRA+u}, {32*u}, v{cvRA}")
for p in range(1, OPT['apre']):
    for k in range(4): c_aload(p, k)
e("s_barrier")
delay(2, 35)
VERS = {}
for q in range(4):
    b_ = OPT['bal'].get(q, [])
    hs = [(0, k) for k in range(14 + b_)] if isinstance(b_, int) else [(0, k) for k in range(14)] + [(qq - q, st) for qq, st in b_]
    VERS.setdefault(tuple(hs), []).append(q)
cov = sorted((q + dq, st) for hs, qs in VERS.items() for q in qs for dq, st in hs)
assert cov == [(q, st) for q in range(4) for st in range(14)], cov
VL = list(VERS.items())
for V, (hs, qs) in enumerate(VL[1:], 1):
    for q in qs: e(f"s_cmp_eq_u32 s{cQ}, {q}"); e(f"s_cbranch_scc1 LC_ver{V}")
V0 = list(g.v); CUR0 = dict(CUR)
for V, (hs, qs) in enumerate(VL):
    HS = list(hs); NH = len(HS); NS = NH + 4; NOWN = min(NH, 14); g.v = list(V0); CUR.update(CUR0)
    g.lab(f"LC_ver{V}")
    SEQ = []
    for s in range(NH):
        for ku in range(2):
            us = list(range(8)) if not (s == NH-1 and ku == 1) else [4,5,6,7,0,1,2,3]
            SEQ += [(s, ku, u, (0, 1)) for u in us]
    I1 = len(SEQ)
    SEQ += [(s, ku, u, (0, 1)) for s in range(NH, NS) for ku in range(2) for u in range(4, 8)]
    I2 = len(SEQ)
    SEQ += [(s, ku, u, (0, 1)) for s in range(NH, NS) for ku in range(2) for u in (2, 3)]
    I3 = len(SEQ)
    SEQ += [(s, ku, u, (0, 1)) for s in range(NH, NS) for ku in range(2) for u in (0, 1)]
    if OPT['csn']: SEQ = [(s, ku, u, m[::-1] if (i & 1) else m) for i, (s, ku, u, m) in enumerate(SEQ)]
    def wread(i):
        if i >= len(SEQ): return
        s, ku, u, _ = SEQ[i]
        for tr in range(2):
            g.lds(f"ds_read_b64_tr_b16 {vr(cvWF+4*(i&7)+2*tr,2)}, v{cvRA+u} offset:{(s%4)*16384+ku*8192+tr*2048}", ('W', i & 7))
    g.q = []
    for i in range(7): wread(i)
    stamp('loopC')
    cRD = 48
    cvO32, cvRF, cvOUT, cvG = 22, 23, 24, 25
    cRV = cvACC + 32
    def ldO(): e(f"buffer_load_dword v{cvPL}, v{cvO32}, {sr(sWS,4)}, s54 offen offset:{FL_O} sc1")
    def ldR(): e(f"buffer_load_dword v{cvPL}, v{cvRF}, {sr(sWS,4)}, s{sT+6} offen offset:{FL_P} sc1")
    def ldR2(): e(f"buffer_load_dword v{cvPL}, off, {sr(sWS,4)}, s{sT+5} offset:{FL_P2} sc1")
    def rloads(ii):
        for i in ii:
            e(f"s_add_u32 s{sT}, s{cRD+3}, {i*16384}")
            for f in range(2): e(f"buffer_load_dwordx4 {vr(cRV+8*(i-1)+4*f,4)}, v{vL16}, {sr(sWS,4)}, s{sT} offen offset:{f*1024} sc1")
    t0, t1 = vT, vT+1
    fill = {s: [] for s in range(NS)}
    fill[1] = [[x] for x in (
        f"v_and_b32 v{cvO32}, 31, v{L}", f"v_lshlrev_b32 v{cvO32}, 9, v{cvO32}", f"s_lshl_b32 s54, s{sRB}, 14", f"s_add_u32 s54, s54, {WS_FL:#x}",
        f"v_and_b32 v{t0}, 3, v{L}", f"v_max_u32 v{t0}, 1, v{t0}", f"v_lshlrev_b32 v{t1}, 1, v{t0}", f"v_and_b32 v{t1}, 4, v{t1}", f"v_xor_b32 v{t1}, 4, v{t1}",
        f"v_lshlrev_b32 v{t0}, 3, v{t0}", f"v_xor_b32 v{t0}, s{sLAM}, v{t0}", f"v_lshl_add_u32 v{cvRF}, v{t0}, 9, v{t1}",
        f"s_mov_b32 s{sT+6}, {WS_FL:#x}", f"s_mov_b32 s{sDN}, 0", f"s_mov_b32 s{sOK+1}, 0")]
    fill[2] = [[x] for x in (
        f"s_lshl_b32 s{sT}, s{sRB}, 3", f"s_add_u32 s{sT}, s{sT}, s{cNT}", f"s_lshl_b32 s{sT}, s{sT}, 18", f"s_lshl_b32 s{sT+1}, s{sW}, 11", f"s_add_u32 s{sT}, s{sT}, s{sT+1}", f"s_add_u32 s{sT}, s{sT}, {WS_PART:#x}")]
    for i in (1, 2, 3):
        fill[2] += [[x] for x in (f"s_xor_b32 s{sT+1}, s{cQ}, {i}", f"s_lshl_b32 s{sT+1}, s{sT+1}, 16", f"s_add_u32 s{sT+1}, s{sT+1}, s{sT}", f"s_add_u32 s{cRD+i-1}, s{sT+1}, {i*16384}")]
    fill[2] += [[x] for x in (f"s_lshl_b32 s{sT+1}, s{cQ}, 16", f"s_add_u32 s{cRD+3}, s{sT+1}, s{sT}",
        f"s_lshl_b32 s{sT}, s{sRB}, 19", f"s_lshl_b32 s{sT+1}, s{sW}, 16", f"s_add_u32 s{sT}, s{sT}, s{sT+1}",
        f"s_lshl_b32 s{sT+1}, s{cNT}, 8", f"s_add_u32 s{sT}, s{sT}, s{sT+1}", f"s_lshl_b32 s{sT+1}, s{cQ}, 6",
        f"s_add_u32 s{cRD+4}, s{sT}, s{sT+1}", f"s_add_u32 s39, s{cRD+4}, 32768",
        f"v_and_b32 v{cvOUT}, 15, v{L}", f"v_lshlrev_b32 v{cvOUT}, 11, v{cvOUT}", f"v_bfe_u32 v{t0}, v{L}, 4, 1", f"v_lshl_add_u32 v{cvOUT}, v{t0}, 5, v{cvOUT}",
        f"v_lshrrev_b32 v{t0}, 5, v{L}", f"v_lshl_add_u32 v{cvOUT}, v{t0}, 4, v{cvOUT}")]
    send = {1: [], 2: [], 3: []}
    for i in (1, 2, 3):
        d = cvPT + 8*(i-1)
        for k in range(4):
            a = cvACC + 16*i + 4*k
            send[i] += [[f"v_cvt_pk_bf16_f32 v{d+2*k}, v{a}, v{a+1}", f"v_cvt_pk_bf16_f32 v{d+2*k+1}, v{a+2}, v{a+3}"]]
            if k & 1: send[i] += [[f"@{'T' if i == 1 else 'S'} buffer_store_dwordx4 {vr(d+4*(k>>1),4)}, v{vL16}, {sr(sWS,4)}, s{cRD+i-1} offen offset:{(k>>1)*1024} sc1"]]
    pa = [(s, k) for s in range(OPT['apre'], NS) for k in range(4)]
    pd = [(s, k) for s in range(NPRE, NS) for k in range(2)]
    cvG2 = 128
    cvGc = 130
    def gload():
        e(f"v_and_b32 v{t0}, 7, v{L}"); e(f"v_bfe_u32 v{t1}, v{L}, 3, 1"); e(f"v_lshlrev_b32 v{t1}, 9, v{t1}"); e(f"v_lshl_add_u32 v{t0}, v{t0}, 2, v{t1}")
        e(f"s_lshl_b32 s{sT}, s{sW}, 11"); e(f"s_add_u32 s{sT}, s{sT}, s54")
        for k in range(2): g.vm(f"buffer_load_dword v{cvG2+k}, v{t0}, {sr(sWS,4)}, s{sT} offen offset:{1024*k} sc1", 'gv')
    fill[NH-1] = [["@G"]]
    for k in range(2):
        r = cvG2 + k
        fill[NH-1] += [[f"v_max_f32 v{cvGc+k}, {f32(2.0**-60)}, v{r}"], [f"v_sub_f32 v{r}, 1.0, v{r}"], [f"v_cvt_pk_bf16_f32 v{r}, v{r}, v{r}"], [f"v_and_b32 v{r}, 0xffff0000, v{r}"],
                       [f"v_rcp_f32 v{t0}, v{cvGc+k}", "s_nop 0"], [f"v_mul_f32 v{r}, v{r}, v{t0}"]]
    def rescale(u, mf):
        a = cvACC + 8*u + 4*mf
        if OPT['dbg'] & 2:
            for r in range(4): e(f"v_mul_f32 v{a+r}, v{a+r}, v{cvG2+mf}")
            return
        for r in (0, 2): e(f"v_pk_mul_f32 {vr(a+r,2)}, {vr(a+r,2)}, {vr(cvG2,2)} op_sel:[0,{mf}] op_sel_hi:[1,{mf}]")
    WIN = [[16, 31, fill[1]], [32, 47, fill[2]], [16*(NH-1), 16*(NH-1)+11, fill[NH-1]], [I2+1, I2+8, send[2]+send[3]], [I3+1, I3+4, send[1]]]
    for w in WIN: w.append(len(w[2]))
    vis = 0; freed = -1
    def nafter(tag): return min(15, len(g.v) - 1 - max(i for i, t in enumerate(g.v) if t == tag)) if tag in g.v else min(15, len(g.v))
    for i, (s, ku, u, mfs) in enumerate(SEQ):
        if i == I1: stamp('endH')
        if i == I3: stamp('p3')
        cur = min(s, NH) if i >= I1 else s
        for idx, mf in enumerate(mfs):
            k = 2*ku + mf; a = cvACC + 8*u + 4*mf
            g.need([('W', i & 7)], [('a', s, k)])
            e(f"{MF16} {vr(a,4)}, {vr(cvWF+4*(i&7),4)}, {vr(cvAR+16*((s+1)%D)+4*k,4)}, " + ("0" if i < 8 else vr(a,4)))
            if I1 - 4 <= i < I1 + 4: rescale(SEQ[i-4][2], mf)
            if idx == 0:
                if i + 7 < len(SEQ) and SEQ[i+7][0] > vis:
                    vis = SEQ[i+7][0]
                    g.need([('W', k) for k in range(8)] if vis <= NH else [], [('d', vis)] + (['st'] if vis == 2 else [])); e("s_barrier")
                    if vis == 2:
                        e(f"s_cmp_lg_u32 s{sW}, 0"); e(f"s_cbranch_scc1 LC_nof1{V}")
                        one_lane(lambda: e(f"buffer_store_dword v{vCN}, off, {sr(sWS,4)}, s{sT+7} offset:{FL_O} sc1"))
                        g.lab(f"LC_nof1{V}")
                wread(i+7)
                nxt = None
                if i % 2 == 0 or i >= I1:
                    okd = pd and pd[0][0] <= (vis + 3 if pd[0][0] == NS-1 else cur + 3); oka = pa and pa[0][0] <= cur + D - 1
                    if okd and (not oka or pd[0][0] <= pa[0][0] and (i % 16 % 6 == 2 or pd[0][0] < pa[0][0])): nxt = 'd'
                    elif oka: nxt = 'a'
                    if nxt == 'd' and pd[0][1] == 0: c_m0(pd[0][0])
            for lo, hi, fl, n0 in WIN:
                if lo <= i <= hi:
                    frac = (i - lo + (idx+1)/len(mfs)) / (hi - lo + 1)
                    while fl and (n0 - len(fl)) < n0 * frac - 1e-9:
                        for x in fl.pop(0):
                            if x.startswith("@S "): g.vm(x[3:], 'snd')
                            elif x.startswith("@T "): g.vm(x[3:], 'snd2')
                            elif x == "@G": g.need([], ['gv'])
                            else: e(x)
            if idx == len(mfs) - 1:
                if nxt == 'd': c_dma(*pd.pop(0))
                elif nxt == 'a':
                    if pa[0] == (NOWN, 0):
                        g.need([], ['opoll']); tsL(); e(f"s_cbranch_scc0 LC_slowO{V}"); g.lab(f"LC_goO{V}"); gload()
                    c_aload(*pa.pop(0))
                if i == 16*(NOWN - D - 1) + 1: ldO(); g.v.append('opoll')
                if i >= I2 + 11 and (i - I2) % 4 == 3: trysig(nafter('snd'), CNT2+4, 0, FL_P, force=(i == len(SEQ)-1))
                if i >= I3 + 9 and (i - I3) % 4 == 1: trysig(nafter('snd2'), CNT2+8, 0, FL_P2, sDN=sOK+1)
                if i == I3 + OPT['rp']: ldR(); g.v.append('rpoll')
    assert not pa and not pd and not any(w[2] for w in WIN)
    if V < len(VL) - 1: e("s_branch LC_done")
    sv = g.L; g.L = g.tail
    g.lab(f"LC_slowO{V}"); spin(f"LC_spinO{V}", ldO, tsL, sT+3); e(f"s_branch LC_goO{V}")
    g.L = sv
g.lab("LC_done")
sv = g.L; g.L = g.tail
g.lab("LC_slowH"); spin("LC_spinH", ldH, tsL, sT+3); e("s_branch LC_goH")
g.L = sv
delay(3, 12)
stamp('endC')
trysig(nafter('snd2'), CNT2+8, 0, FL_P2, force=True, sDN=sOK+1)
e(f"s_mov_b32 s{sT+5}, 1"); e(f"s_mov_b32 s{sT+3}, {SPIN:#x}")
e(f"v_mov_b32 v{vT+4}, 0x3f80"); e(f"v_mov_b32 v{vT+5}, 0x3f800000")
g.lab("LC_rl")
e("s_waitcnt vmcnt(0)"); e(f"v_cmp_eq_u32 vcc, 1, v{cvPL}"); e(f"s_sub_u32 s{sT+3}, s{sT+3}, 1"); e(f"s_cselect_b32 s{sT+1}, 15, 0")
e(f"s_or_b32 s{sT+1}, s{sT+1}, vcc_lo"); e(f"s_andn2_b32 s{sT+1}, s{sT+1}, s{sT+5}"); e(f"s_and_b32 s{sT+1}, s{sT+1}, 15"); e(f"s_or_b32 s{sT+5}, s{sT+5}, s{sT+1}")
for i in (1, 2, 3):
    e(f"s_bitcmp1_b32 s{sT+1}, {i}"); e(f"s_cbranch_scc0 LC_rn{i}"); rloads((i,)); g.lab(f"LC_rn{i}")
e(f"s_cmp_eq_u32 s{sT+5}, 15"); e("s_cbranch_scc1 LC_rd")
if OPT['rsl']: e(f"s_sleep {OPT['rsl']}")
ldR(); e("s_branch LC_rl")
g.lab("LC_rd")
e("s_waitcnt vmcnt(0)")
for i in (2, 3, 1):
    d = cRV + 8*(i-1)
    for r in range(16): e(f"v_dot2_f32_bf16 v{cvACC+r}, v{d+(r>>1)}, v{vT+4+(r&1)}, v{cvACC+r}")
e("s_nop 2")
for mf in range(2):
    x = cvACC + 4*mf; y = x + 8; d = cvPT + 24 + 4*mf
    for r in range(4): e(f"v_mul_f32 v{x+r}, v{cvGc+mf}, v{x+r}"); e(f"v_mul_f32 v{y+r}, v{cvGc+mf}, v{y+r}")
    if OPT['pscale']:
        for r in range(4): e(f"v_mul_f32 v{x+r}, {f32(OPT['pscale'])}, v{x+r}"); e(f"v_mul_f32 v{y+r}, {f32(OPT['pscale'])}, v{y+r}")
    if OPT['perr'] and mf == 0:
        e(f"s_or_b32 s{sT}, s2, s{sW}"); e(f"s_cmp_eq_u32 s{sT}, 0"); e(f"s_cselect_b32 s{sT}, {f32(OPT['perr'])}, 0")
        e("s_mov_b64 exec, 1"); e(f"v_add_f32 v{x}, s{sT}, v{x}"); e("s_mov_b64 exec, -1")
    e(f"v_cvt_pk_bf16_f32 v{d}, v{x}, v{x+1}"); e(f"v_cvt_pk_bf16_f32 v{d+1}, v{x+2}, v{x+3}")
    e(f"v_cvt_pk_bf16_f32 v{d+2}, v{y}, v{y+1}"); e(f"v_cvt_pk_bf16_f32 v{d+3}, v{y+2}, v{y+3}")
    e("s_nop 1")
    e(f"v_permlane16_swap_b32 v{d}, v{d+2}"); e(f"v_permlane16_swap_b32 v{d+1}, v{d+3}")
    e(f"buffer_store_dwordx4 {vr(d,4)}, v{cvOUT}, {sr(cOUT,4)}, s{cRD+4 if mf == 0 else 39} offen {OPT['ost']}")
g.lab("LC_fin")
stamp('fin')
if OPT['stamp']:
    e(f"s_lshl_b32 s{sT}, s2, 3"); e(f"s_add_u32 s{sT}, s{sT}, s{sW}"); e(f"s_lshl_b32 s{sT}, s{sT}, 7"); e(f"s_add_u32 s{sT}, s{sT}, {WS_STAMP:#x}")
    e(f"v_lshlrev_b32 v{vT}, 2, v{L}"); e("s_mov_b32 exec_hi, 0")
    e(f"buffer_store_dword v0, v{vT}, {sr(sWS,4)}, s{sT} offen")
    if OPT['stamp'] == 2:
        e(f"v_readlane_b32 s{sT}, v0, 16"); e(f"s_not_b32 s{sT}, s{sT}"); e(f"v_writelane_b32 v0, s{sT}, 16")
        e(f"v_subrev_u32 v{vT}, 60, v{vT}"); e(f"s_mov_b32 exec_lo, {((1<<len(SN))-1)<<16:#x}")
        e(f"buffer_atomic_umax v0, v{vT}, {sr(sDBG,4)}, 0 offen sc1")
g.lab("L_end")
e("s_endpgm")
g.L += g.tail + g.tail2 + ['LZ_end:']
if OPT['nobar'] or OPT['nodma'] or OPT['nolds'] or OPT['noadv']:
    o = []; inl = False
    for l in g.L:
        if l.startswith('LA_loop') or l.startswith('LC_loop'): inl = True
        if 'LA_h1_' in l or l.startswith('LC_done'): inl = False
        if inl and OPT['nobar'] and 's_barrier' in l: continue
        if inl and OPT['nodma'] and 'buffer_load' in l: continue
        if inl and OPT['nolds'] and 'ds_read' in l: continue
        if inl and OPT['noadv'] and any(f's_add_u32 s{k}, s{k},' in l for k in list(range(sOW, sOW+5)) + [sKX]): continue
        o.append(l)
    g.L = o

DOC = ["; " + l for l in '''
One persistent launch, 256 workgroups x 8 waves, one per CU.  Workgroup = (row block rb of 256 rows, head h).
 A: [q k v | gate | up] = x[256 rows] @ W[:, 96+112+112 cols]; LDS-DMA staging, 16x16x32 MFMA, L2 prefetch of later tiles.
    The last K trip is peeled; K/V publication and silu(gate)*up are folded under its MFMAs.
 B: sliding-window attention of head h (own K/V from LDS, previous row block's K/V from the workspace).
    Softmax shift = max of the diagonal tile; if the row sum shows that shift was too small, the wave redoes the
    block with the true row max (LB_exact).
 C: out tile [256 x 128] over one quarter of K of [h | o] @ [w_down ; wo]; accumulators are scaled by (1-g)/g between
    the h and o parts, the four quarters are summed through the workspace, times g at the end.
Hand-offs: write-through (sc1) stores, drained, counted in LDS, then an sc1 flag in the producer's workspace record;
records are cleared by their owner and acknowledged on d_debug counters before any flag is trusted.
Generated by a script; every spin is bounded.
'''.strip().split("\n")]
hdr = [l.rstrip('\n') for l in open("cdna_kernels/%s.s.ref" % NAME)]
hdr = [l for l in hdr if l.startswith(';') and '@launch' not in l]
out = hdr + [f"; @launch grid=(256,1,1) block=(512,1,1) lds={LDS_BYTES}"] + DOC + ['.amdgcn_target "amdgcn-amd-amdhsa--gfx950"', ".text"] + g.L
out += ['.section .rodata,"a"', ".p2align 6", f""".amdhsa_kernel {KN}
  .amdhsa_next_free_vgpr 256
  .amdhsa_next_free_sgpr 102
  .amdhsa_accum_offset 256
  .amdhsa_group_segment_fixed_size 0
  .amdhsa_kernarg_size 88
  .amdhsa_user_sgpr_count 2
  .amdhsa_user_sgpr_kernarg_segment_ptr 1
  .amdhsa_system_sgpr_workgroup_id_x 1
.end_amdhsa_kernel"""]
out.insert(0, "; stamps: " + ",".join(SN)) if OPT['stamp'] else None
open(sys.argv[1], "w").write("\n".join(out) + "\n")
import hazard
errs = hazard.check("\n".join(g.L))
print("\n".join(errs) if errs else "hazard check clean")
```

```python
import sys, struct
NAME = "gated_mix__sliding_block__swiglu_ffn__prompt"
KN = NAME + "_kernel"
OPT = dict(stamp=0, NP=16, jbx=5, xrd=[0,0,1,1], xpos=[2,4,6,8], wpos=[1,3,5,7,9], pfpos=19, stag=0, PD=3, pf=1, CB=1, defer=0, slp=2, touch=0, pfnt=0, wnt=0, bprio=0, amap=3, fast=0, D=4, npre=3, apre=1, hpos=[0,1,2,3], dpos=[4,5,6,7], lthr=64, ffb=0, fixt=0, fixx=-1, fr=5, hx=0, fnt=1, cpf=3, cpf0=1, aprio=3, pvs=1, w1=2, csn=1, kq=34, rp=15, rsl=1, ginc=1, astag=1, pst=0, w1e=1, perr=0, dly=0, pscale=0, bal={0:[(1,13)],2:[(3,13)],3:-1,1:-1}, tlb=0, aearly=1, hq2=7, xfl='', wfl='', cfl='', ost='nt', h0=2, nopk=0, pf2=0, wdst=4, wdn=24, otail=0, gl=2, p3=0, rc=24, dbg=2, hq=9, early1=2, snake=1, tst=0, wshift=0, noadv=0, aflag='sc1', kvfast=0, rfast=0, pfast=1, wb=0, pre=0, cmap=1, m16=288*512, c3=0, kvs1=1, cprio=0, AB=0,
           noX=0, noW=0, noA=0, noW2=0, prio=0, kvs=2, nobar=0, nodma=0, nolds=0)
for a in sys.argv[2:]:
    k, v = a.split('='); assert k in OPT, k
    OPT[k] = eval(v)
def f32(x): return "0x%08x" % struct.unpack('<I', struct.pack('<f', x))[0]
def vr(a, n=1): return f"v[{a}:{a+n-1}]" if n > 1 else f"v{a}"
def sr(a, n=1): return f"s[{a}:{a+n-1}]" if n > 1 else f"s{a}"
NV = [0]
class Gen:
    def __init__(s): s.L = []; s.q = []; s.v = []; s.tail = []; s.tail2 = []
    def e(s, t): s.L.append("    " + t)
    def lab(s, t): s.L.append(t + ":")
    def lds(s, t, tag): s.e(t); s.q.append(tag)
    def vm(s, t, tag): s.e(t); s.v.append(tag); NV[0] += 1
    def need(s, tags=(), vt=()):
        w = []
        idx = [i for i, t in enumerate(s.v) if t in vt]
        if idx:
            n = len(s.v) - 1 - max(idx); s.v = s.v[max(idx)+1:]; assert n < 64
            w.append(f"vmcnt({n})")
        idx = [i for i, t in enumerate(s.q) if t in tags]
        if idx:
            n = len(s.q) - 1 - max(idx); s.q = s.q[max(idx)+1:]
            w.append(f"lgkmcnt({min(n,15)})")
        if w: s.e("s_waitcnt " + " ".join(w))
    def steady(s, body):
        sv = s.L; s.L = []; s.q = []; s.v = []
        body(); body(); r = (list(s.q), list(s.v)); s.L = sv
        return r
g = Gen(); e = g.e
M16 = OPT['m16']; A_BYTES = 128*M16
WS_KV = 0x1400000; WS_PART = 0x1C00000; WS_G = 0x2C00000; WS_FL = 0x2C10000; WS_STAMP = 0x3000000; WS_SIZE = 0x4000000
FL_KV, FL_H, FL_O, FL_P, FL_P2 = 128, 256, 260, 384, 388
sFAST = 34+1
LOG2E = 1.4426950408889634
SPIN = 0x8000
MF16 = "v_mfma_f32_16x16x32_bf16"; MF32 = "v_mfma_f32_32x32x16_bf16"
sW, sRB, sH, sMW, sNW = 3, 4, 5, 6, 7
sX, sA, sB, sQ, sWS, sDBG, sPF = 8, 12, 16, 20, 24, 28, 32
sKX, sOW, sMWd, sINCA, sMX, sCNT, sKXE, sPFO, sPFI, sLAM, sOK, sGO = 36, 37, 42, 47, 48, 49, 50, 51, 52, 53, 54, 55
sT = 56; sP = 64; sST = 86
pX, pQKV, pWO, pWG, pWU, pWD, pGW, pOUT, pDBG, pWSp = sP, sP+2, sP+4, sP+8, sP+10, sP+12, sP+14, sP+16, sP+18, sP+20
sFAST = 101
sK = sP+6
vL, vL16, vPF, vDX, vDA, vDB, vXR, vWG, vWQ, vDUM, vCN, vGV, vT = 1, 2, 3, 4, 8, 9, 10, 12, 14, 18, 19, 20, 26
vWF, vXF, vACC = 44, 64, 96
L = vL
def ACC(j, i): return vACC + (4*j+i)*4
XSLOT = 32768; WBASE = 65536; HALF = 20480; WSLOT = 2*HALF; GOFF = 6144; UOFF = 6144+7168
LDS_BYTES = 163840; QLDS = 147456; QLDS3 = 92160; CNTLDS = 163832; CNT2 = 96256; GLDS = 163776; sGW = 96
UNITS = [['q0','q1','k0','k1','g0','u0','g1','u1','g2','u2'], ['v0','v1','g3','u3','g4','u4','g5','u5','g6','u6']]
def srd(d, p, size):
    e(f"s_mov_b32 s{d}, s{p}"); e(f"s_and_b32 s{d+1}, s{p+1}, 0xffff"); e(f"s_mov_b32 s{d+2}, {size:#x}"); e(f"s_mov_b32 s{d+3}, 0x20000")
SN = ['start','loopA','endA','ks','hdone','kvok','bar2','sph','hs','pv','attn','loopC','endH','rs','endC','fin']
SN = ['start','loopA','ks','endA','hdone','kvok','bar2','sph','hs','pv','loopC','endH','rs','endC','rs2','fin']
if OPT['pst']: SN = ['start','karg','x0','w0','setup','w1','land','bar','loopA','fin']
if OPT['tst']: SN = ['start','loopA'] + [f't{i}' for i in range(7)] + ['endA', 'fin']
def stamp(name):
    if OPT['tst'] and name not in ('loopA', 'endA', 'fin'): return
    if name not in SN: return
    idx = SN.index(name); assert idx < 16
    if not OPT['stamp']: return
    e(f"s_memtime s[{sST}:{sST+1}]"); e(f"s_memrealtime s[{sST+2}:{sST+3}]"); e("s_waitcnt lgkmcnt(0)")
    e(f"v_writelane_b32 v0, s{sST}, {idx}"); e(f"v_writelane_b32 v0, s{sST+2}, {idx+16}")
def pstamp(k):
    if OPT['stamp']: e(f"s_memtime s[{92+2*k}:{93+2*k}]")
NDS = [0]
def dstore(lines, on=True):
    if True:
        for l in lines: e(l + " sc1")
        return
    k = NDS[0]; NDS[0] += 1
    e(f"s_cmp_eq_u32 s{sFAST}, 1"); e(f"s_cbranch_scc0 LS_s{k}")
    for l in lines: e(l)
    g.lab(f"LS_r{k}")
    g.tail2 += [f"LS_s{k}:"] + ["    " + l + " sc1" for l in lines] + [f"    s_branch LS_r{k}"]
def delay(k, bit):
    if not (OPT['dly'] >> k) & 1: return
    e(f"s_and_b32 s87, s2, 0x2f"); e(f"s_cmp_lg_u32 s87, {bit}"); e(f"s_cbranch_scc1 LD_{k}")
    for i in range(12): e("s_sleep 127")
    g.lab(f"LD_{k}")
def one_lane(f):
    e("s_mov_b64 exec, 1"); f(); e("s_mov_b64 exec, -1")

def a_wread(nw, n, tj=None):
    n %= 40; t = n // 10; j = n % 10
    if tj: t, j = tj
    sig = (t+1) >> 1; half = (t+1) & 1; slot = sig & 1; un = UNITS[nw][j]
    for tr in range(2):
        if un[0] in 'qkv':
            a = vWQ + 2*slot + int(un[1]); off = half*HALF + 'qkv'.index(un[0])*2048 + tr*512
        else:
            a = vWG + slot; off = half*HALF + (GOFF if un[0] == 'g' else UOFF) + tr*1792 + int(un[1])*32
        g.lds(f"ds_read_b64_tr_b16 {vr(vWF+4*(n%5)+2*tr,2)}, v{a} offset:{off}", ('W', n % 5))
def a_xread(i, t):
    t %= 4
    g.lds(f"ds_read_b128 {vr(vXF+16*(t&1)+4*i,4)}, v{vXR+(t&1)} offset:{(t>>1)*XSLOT+i*2048}", ('X', t & 1, i))
def a_m0(k, n, slot):
    if k == 'x': e(f"s_add_u32 m0, s{sMX}, {slot*XSLOT}")
    elif k == 'w': e(f"s_add_u32 m0, s{sMWd+n}, {slot*WSLOT}")
def a_op(k, n, slot, first=False):
    if k == 'x':
        g.vm(f"buffer_load_dwordx4 v{vDX+n}, {sr(sX,4)}, s{sKX} offen offset:{1024*n} {OPT['xfl']} lds", ('x', slot, n))
        if n == 3:
            e(f"s_add_u32 s{sKX}, s{sKX}, 128")
    elif k == 'w':
        d = [sA, sA, sB, sB, sQ][n]; v = vDA if n < 4 else vDB
        if first: e(f"s_cmp_lt_i32 s{sOW+n}, 0"); e(f"s_cbranch_scc1 LA_skipw{n}")
        g.vm(f"buffer_load_dwordx4 v{v}, {sr(d,4)}, s{sOW+n} offen" + (" nt" if (OPT['wnt'] & 1 or (first and OPT['fnt'])) else "") + f" {OPT['wfl']} lds", ('w', slot, n))
        if first: g.lab(f"LA_skipw{n}")
        e(f"s_add_u32 s{sOW+n}, s{sOW+n}, " + (f"s{sINCA}" if n < 4 else f"{64*6144}"))
    else:
        g.vm(f"buffer_load_dword v{vDUM}, v{vPF}, {sr(sPF,4)}, s{sPFO} offen" + (" nt" if OPT['wnt'] & 2 and NWCUR[0] == 0 else ""), ('p', 0, 0))
        e(f"s_add_u32 s{sPFO}, s{sPFO}, s{sPFI}")
def a_full(k, n, slot, first=False):
    a_m0(k, n, slot)
    if not first: e("s_nop 0")
    a_op(k, n, slot, first)
JBW = 6
def a_events(nw):
    ev = {}; st = OPT['stag']*nw
    for t in (1, 3):
        for n, o in enumerate(OPT['xpos']): assert 0 <= o+st < 20; ev.setdefault((t*10+OPT['jbx']+o+st) % 40, []).append(('x', n, t >> 1))
    for t in (0, 2):
        for n, o in enumerate(OPT['wpos']): assert 0 <= o+st < 20; ev.setdefault((t*10+JBW+o+st) % 40, []).append(('w', n, t >> 1))
        if OPT['pf']: ev.setdefault((t*10+JBW+OPT['pfpos']-st) % 40, []).append(('p', 0, 0))
    return ev
NWCUR = [0]
def a_body(nw):
    NWCUR[0] = nw
    ev = a_events(nw)
    for t in range(4):
        for j in range(10):
            n = t*10 + j; un = UNITS[nw][j]; evs = ev.get(n, [])
            for i in range(4):
                i2 = 3-i if (OPT['snake'] and j & 1) else i
                g.need([('W', n % 5), ('X', t & 1, i2)])
                a, b = vr(vWF+4*(n % 5), 4), vr(vXF+16*(t & 1)+4*i2, 4)
                if un[0] == 'v': a, b = b, a
                e(f"{MF16} {vr(ACC(j,i2),4)}, {a}, {b}, {vr(ACC(j,i2),4)}")
                if i == 0:
                    if t % 2 == 0 and j == JBW:
                        g.need([('W', k) for k in range(5)], [('w', 1-(t >> 1), k) for k in range(5)]); e("s_barrier")
                    if t % 2 == 1 and j == OPT['jbx']:
                        g.need([], [('x', 1-(t >> 1), k) for k in range(4)]); e("s_barrier")
                    a_wread(nw, n+4)
                if i == 1:
                    for ii in range(4):
                        if OPT['jbx'] + OPT['xrd'][ii] == j: a_xread(ii, t+1)
                    if evs: a_m0(*evs[0])
                if i == 2 and evs:
                    a_op(*evs[0])
                    for x in evs[1:]: a_full(*x)

def silu(jg, i, t, R):
    G = ACC(jg, i); U = ACC(jg+1, i)
    for r in range(0, 8, 2): e(f"v_pk_mul_f32 {vr(t+r,2)}, {vr(G+r,2)}, {sr(sK,2)}")
    for r in range(8): e(f"v_exp_f32 v{t+r}, v{t+r}")
    for r in range(0, 8, 2): e(f"v_pk_mul_f32 {vr(G+r,2)}, {vr(G+r,2)}, {vr(U+r,2)}")
    for r in range(0, 8, 2): e(f"v_pk_add_f32 {vr(t+r,2)}, {vr(t+r,2)}, s[94:95]")
    for r in range(8): e(f"v_rcp_f32 v{t+r}, v{t+r}")
    e("s_nop 0")
    for r in range(0, 8, 2): e(f"v_pk_mul_f32 {vr(G+r,2)}, {vr(G+r,2)}, {vr(t+r,2)}")
    for r in range(4): e(f"v_cvt_pk_bf16_f32 v{R+r}, v{G+2*r}, v{G+2*r+1}")
    e("s_nop 1")
    e(f"v_permlane32_swap_b32 v{R}, v{R+2}"); e(f"v_permlane32_swap_b32 v{R+1}, v{R+3}")
def pack2(j, i):
    a, b = ACC(j, i), ACC(j+1, i)
    e(f"v_cvt_pk_bf16_f32 v{a}, v{a}, v{a+1}"); e(f"v_cvt_pk_bf16_f32 v{a+1}, v{a+2}, v{a+3}")
    e(f"v_cvt_pk_bf16_f32 v{a+2}, v{b}, v{b+1}"); e(f"v_cvt_pk_bf16_f32 v{a+3}, v{b+2}, v{b+3}")
def spin(name, load, test, cnt):
    e(f"s_mov_b32 s{cnt}, {SPIN:#x}")
    g.lab(name)
    load(); e("s_waitcnt vmcnt(0)"); test()
    e(f"s_cbranch_scc1 {name}_ok")
    e(f"s_sub_u32 s{cnt}, s{cnt}, 1"); e(f"s_cbranch_scc1 {name}_ok")
    e(f"s_sleep {OPT['slp']}"); e(f"s_branch {name}")
    g.lab(name + "_ok")
NSIG = [0]
sDN, sHB, sFO = 100, 92, 101
vSG = 20
def trysig(n, ldsaddr, flagadd, flagoff, force=False, sDN=sDN):
    k = NSIG[0]; NSIG[0] += 1
    if force: e(f"s_cmp_eq_u32 s{sDN}, 0")
    else:
        e(f"s_getreg_b32 s{sFO}, hwreg(HW_REG_IB_STS)"); e(f"s_and_b32 s{sFO}, s{sFO}, 0xc0000f"); e(f"s_or_b32 s{sFO}, s{sFO}, s{sDN}"); e(f"s_cmp_le_u32 s{sFO}, {n}")
    e(f"s_cbranch_scc1 LG_s{k}"); g.lab(f"LG_r{k}")
    g.tail2 += [f"LG_s{k}:"] + ["    " + x for x in (
        f"v_mov_b32 v{vSG}, {ldsaddr}", f"s_mov_b32 s{sDN}, 0x10000", "s_mov_b64 exec, 1", f"s_waitcnt vmcnt({n})",
        f"ds_add_rtn_u32 v{vSG+1}, v{vSG}, v{vCN}", "s_waitcnt lgkmcnt(0)", f"v_readfirstlane_b32 s{sFO}, v{vSG+1}", "s_nop 1",
        f"s_cmp_lg_u32 s{sFO}, 7", f"s_cbranch_scc1 LG_x{k}", f"s_add_u32 s{sFO}, s{sT+7}, {flagadd}",
        f"buffer_store_dword v{vCN}, off, {sr(sWS,4)}, s{sFO} offset:{flagoff} sc1")] + [f"LG_x{k}:", "    s_mov_b64 exec, -1"]
    sv = g.L; g.L = g.tail2; stamp({FL_KV:'ks',FL_H:'hs',FL_P:'rs',FL_P2:'rs2'}[flagoff]); e(f"s_branch LG_r{k}"); g.L = sv
def gate_acc(X, W, t, one):
    return [[f"v_lshlrev_b32 v{t}, 16, v{X}"], [f"v_and_b32 v{t+1}, 0xffff0000, v{X}"], [f"v_lshlrev_b32 v{t+2}, 16, v{W}"],
            [f"v_and_b32 v{t+3}, 0xffff0000, v{W}"], [f"v_pk_mul_f32 {vr(t,2)}, {vr(t,2)}, {vr(t+2,2)}"], [f"v_cvt_pk_bf16_f32 v{t+4}, v{t}, v{t+1}"],
            [f"v_dot2_f32_bf16 v{t+5}, v{t+4}, v{one}, v{t+5}"]]
def gate_list(t, one):
    o = gate_acc(40, 41, t, one) + gate_acc(38, 39, t, one)
    o.append(["s_nop 1"])
    for m in ("quad_perm:[1,0,3,2] row_mask:0xf", "quad_perm:[2,3,0,1] row_mask:0xf", "row_half_mirror row_mask:0xf",
              "row_mirror row_mask:0xf", "row_bcast:15 row_mask:0xa", "row_bcast:31 row_mask:0xc"):
        o.append(["s_nop 1", f"v_add_f32_dpp v{t+5}, v{t+5}, v{t+5} {m} bank_mask:0xf"])
    o += [[f"v_cvt_pk_bf16_f32 v{t}, v{t+5}, v{t+5}", f"v_and_b32 v{t}, 0xffff0000, v{t}"], [f"v_mul_f32 v{t}, {f32(-LOG2E)}, v{t}", f"v_exp_f32 v{t}, v{t}", "s_nop 0"],
          [f"v_add_f32 v{t}, 1.0, v{t}", f"v_rcp_f32 v{t}, v{t}", "s_nop 0"], [f"v_cvt_pk_bf16_f32 v{t}, v{t}, v{t}", f"v_and_b32 v{t}, 0xffff0000, v{t}"],
          [f"s_lshl_b32 s{sT}, s{sW}, 2", f"s_add_u32 s{sT}, s{sT}, {GLDS}", f"v_mov_b32 v{t+1}, s{sT}"],
          ["s_mov_b32 exec_lo, 0", "s_brev_b32 exec_hi, 1", f"ds_write_b32 v{t+1}, v{t}", "s_mov_b64 exec, -1"]]
    return o

D = OPT['D']; NH = 14; OT = OPT['otail']; NT = 8 if OT else 4; NS = NH + NT
cA, cWt, cOUT, cWo, cX = 8, 12, 16, 32, 40
cAK, cWK, cWK2, cQ, cNT, cM0, cAK2 = 20, 21, 22, 23, 36, 37, 38
cvDW, cvA, cvPL, cvDW2, cvPA = 4, 6, 16, 20, 18
cvWF, cvAR, cvRB, cvRA, cvPT, cvOA, cvACC = 28, 60, 124, 136, 144, 176, 192
CRING = 98304
def c_setup():
    e(f"s_lshr_b32 s{cQ}, s{sH}, 3"); e(f"s_and_b32 s{cNT}, s{sH}, 7")
    e(f"s_lshl_b32 s{sT}, s{cNT}, 8")
    e(f"s_lshl_b32 s{cWK}, s{sW}, 14"); e(f"s_add_u32 s{cWK}, s{cWK}, s{sT}")
    e(f"s_lshl_b32 s{cWK2}, s{sW}, {15 if OT else 14}"); e(f"s_add_u32 s{cWK2}, s{cWK2}, s{sT}")
    e(f"s_mul_i32 s{sT}, s{cQ}, {896*2048}"); e(f"s_add_u32 s{cWK}, s{cWK}, s{sT}")
    if OT: e(f"s_lshr_b32 s{sT}, s{cQ}, 1"); e(f"s_lshl_b32 s{sT}, s{sT}, 7")
    else: e(f"s_lshl_b32 s{sT}, s{cQ}, 19")
    e(f"s_add_u32 s{cWK2}, s{cWK2}, s{sT}")
    e(f"s_lshl_b32 s{cM0}, s{sW}, 11"); e(f"s_add_u32 s{cM0}, s{cM0}, {CRING}")
    srd(cWt, pWD, 0 if OPT['noW2'] else 3584*2048); srd(cWo, pWO, 0 if OPT['noW2'] else 1024*2048)
    srd(cA, pWSp, 0 if OPT['noA'] else A_BYTES); srd(cOUT, pOUT, 2048*2048)
    e(f"s_lshl_b32 s{sT}, s{sRB}, 4"); e(f"s_lshl_b32 s{cAK}, s{sW}, 1"); e(f"s_add_u32 s{sT}, s{sT}, s{cAK}")
    e(f"s_mul_i32 s{cAK}, s{sT}, {M16}"); e(f"s_add_u32 s{cAK2}, s{cAK}, {56*512}")
    e(f"s_mul_i32 s{sT}, s{cQ}, {72*512}"); e(f"s_add_u32 s{cAK}, s{cAK}, s{sT}")
    e(f"v_mov_b32 v{cvA}, v{vL16}"); e(f"v_add_u32 v{cvA+1}, {M16}, v{vL16}")
    e(f"v_lshrrev_b32 v{vT}, 4, v{vL}"); e(f"v_bfe_u32 v{vT+1}, v{vL}, 1, 3"); e(f"v_xor_b32 v{vT+1}, v{vT+1}, v{vT}")
    e(f"v_lshlrev_b32 v{vT}, 11, v{vT}"); e(f"v_lshl_add_u32 v{vT}, v{vT+1}, 5, v{vT}")
    e(f"v_and_b32 v{vT+1}, 1, v{vL}"); e(f"v_lshl_add_u32 v{cvDW}, v{vT+1}, 4, v{vT}")
    e(f"v_xor_b32 v{cvDW+1}, 128, v{cvDW}"); e(f"v_add_u32 v{cvDW+1}, 7168, v{cvDW+1}")
    e(f"v_and_b32 v{cvPA}, 7, v{L}"); e(f"v_lshlrev_b32 v{cvPA}, 9, v{cvPA}")
def c_m0(s): e(f"s_add_u32 m0, s{cM0}, {(s % 4)*16384}")
HS = [(0, k) for k in range(14)]
CUR = {'a': 0, 'w': 0}
def c_dma(s, n):
    if s < NH:
        off = (HS[s][0]*896 + HS[s][1]*64)*2048
        if off != CUR['w']: e(f"s_add_u32 s{cWK}, s{cWK}, {(off-CUR['w']) & 0xffffffff:#x}"); CUR['w'] = off
        g.vm(f"buffer_load_dwordx4 v{cvDW+n}, {sr(cWt,4)}, s{cWK} offen offset:{n*1024} lds", ('d', s))
    else:
        g.vm(f"buffer_load_dwordx4 v{cvDW+n}, {sr(cWo,4)}, s{cWK2} offen offset:{n*1024} lds", ('d', s))
        if n == 1: e(f"s_add_u32 s{cWK2}, s{cWK2}, {64*2048}")
def c_aload(s, k):
    ku, mf = k >> 1, k & 1
    off = HS[s][0]*72*512 + HS[s][1]*2048 if s < NH else (14 + s - NH)*2048
    if not (0 <= off - CUR['a'] <= 2048): e(f"s_add_u32 s{cAK}, s{cAK}, {(off-CUR['a']) & 0xffffffff:#x}"); CUR['a'] = off
    g.vm(f"buffer_load_dwordx4 {vr(cvAR+16*((s+1)%D)+4*k,4)}, v{cvA+mf}, {sr(cA,4)}, s{cAK} offen offset:{off-CUR['a']+ku*1024} sc1", ('a', s, k))
def c_wread(s, n):
    s += n // 16; n %= 16
    if s >= NS: return
    for tr in range(2):
        if s < NH or not OT: a, off = cvRA + (n & 7), (n >> 3)*8192 + tr*2048
        else: a, off = cvRB + (n & 3), (n >> 2)*4096 + tr*1024
        g.lds(f"ds_read_b64_tr_b16 {vr(cvWF+4*(n&7)+2*tr,2)}, v{a} offset:{(s%4)*16384+off}", ('W', n & 7))

g.L += [".globl " + KN, ".p2align 8", f".type {KN},@function"]
g.lab(KN)
e("s_cmp_ge_u32 s2, 256"); e("s_cbranch_scc1 L_end")
e(f"s_load_dwordx16 {sr(sP,16)}, s[0:1], 0"); e(f"s_load_dwordx4 {sr(sP+16,4)}, s[0:1], 64"); e(f"s_load_dwordx2 {sr(sP+20,2)}, s[0:1], 80")
if OPT['stamp']: e(f"s_memtime s[{sST+4}:{sST+5}]"); e(f"s_memrealtime s[{sST+6}:{sST+7}]")
if OPT['fixt']: e("s_memrealtime s[86:87]")
if OPT['cpf0']:
    e(f"s_getpc_b64 s[{sT}:{sT+1}]"); g.lab("LA_pc0")
    e(f"s_sub_u32 s{sT}, s{sT}, LA_pc0-{KN}"); e(f"s_subb_u32 s{sT+1}, s{sT+1}, 0")
    e(f"s_lshr_b32 s{sT+2}, s2, 3"); e(f"s_lshl_b32 s{sT+2}, s{sT+2}, 7")
    e(f"v_lshlrev_b32 v26, 12, v0"); e(f"v_add_u32 v26, s{sT+2}, v26")
    e(f"v_cmp_gt_u32 vcc, LZ_end-{KN}-4, v26"); e(f"v_mov_b32 v27, s{sT+1}"); e(f"s_and_saveexec_b64 s[{sT+2}:{sT+3}], vcc"); e("s_cbranch_execz LA_nopc")
    e(f"v_add_co_u32 v26, vcc, s{sT}, v26"); e("s_nop 1"); e(f"v_addc_co_u32 v27, vcc, 0, v27, vcc")
    e(f"global_load_dword v{vDUM}, v[26:27], off")
    g.lab("LA_nopc"); e("s_mov_b64 exec, -1")
e(f"v_lshrrev_b32 v{vT}, 6, v0"); e(f"v_and_b32 v{vL}, 63, v0"); e(f"v_readfirstlane_b32 s{sW}, v{vT}")
if OPT['amap'] == 0:
    e(f"s_lshr_b32 s{sRB}, s2, 5"); e(f"s_and_b32 s{sH}, s2, 7"); e(f"s_lshl_b32 s{sH}, s{sH}, 2")
    e(f"s_bfe_u32 s{sT}, s2, {(2<<16)|3:#x}"); e(f"s_add_u32 s{sH}, s{sH}, s{sT}")
elif OPT['amap'] == 1:
    e(f"s_and_b32 s{sRB}, s2, 7"); e(f"s_lshr_b32 s{sH}, s2, 3")
elif OPT['amap'] == 2:
    e(f"s_and_b32 s{sRB}, s2, 6"); e(f"s_lshr_b32 s{sT}, s2, 7"); e(f"s_add_u32 s{sRB}, s{sRB}, s{sT}")
    e(f"s_and_b32 s{sH}, s2, 1"); e(f"s_lshl_b32 s{sH}, s{sH}, 4"); e(f"s_bfe_u32 s{sT}, s2, {(4<<16)|3:#x}"); e(f"s_add_u32 s{sH}, s{sH}, s{sT}")
if OPT['amap'] == 3:
    e(f"s_and_b32 s{sRB}, s2, 4"); e(f"s_lshr_b32 s{sT}, s2, 6"); e(f"s_add_u32 s{sRB}, s{sRB}, s{sT}")
    e(f"s_and_b32 s{sH}, s2, 3"); e(f"s_lshl_b32 s{sH}, s{sH}, 3"); e(f"s_bfe_u32 s{sT}, s2, {(3<<16)|3:#x}"); e(f"s_add_u32 s{sH}, s{sH}, s{sT}")
e(f"s_and_b32 s{sMW}, s{sW}, 3"); e(f"s_lshr_b32 s{sNW}, s{sW}, 2")
e(f"s_lshl_b32 s{sLAM}, s{sRB}, 5"); e(f"s_add_u32 s{sLAM}, s{sLAM}, s{sH}")
e(f"v_lshlrev_b32 v{vL16}, 4, v{L}")
e(f"v_lshrrev_b32 v{vT}, 3, v{L}"); e(f"v_lshlrev_b32 v{vT}, 11, v{vT}")
e(f"v_lshrrev_b32 v{vT+1}, 4, v{L}"); e(f"v_and_b32 v{vT+2}, 7, v{L}"); e(f"v_xor_b32 v{vT+1}, v{vT+1}, v{vT+2}")
e(f"v_lshl_add_u32 v{vDX}, v{vT+1}, 4, v{vT}"); e(f"v_xor_b32 v{vDX+1}, 64, v{vDX}")
e(f"v_add_u32 v{vDX+2}, {2*15360}, v{vDX}"); e(f"v_add_u32 v{vDX+3}, {3*15360}, v{vDX+1}"); e(f"v_add_u32 v{vDX+1}, 15360, v{vDX+1}")
def swap23(d, s, t):
    e(f"v_and_b32 v{d}, 0x13, v{s}")
    e(f"v_and_b32 v{t}, 4, v{s}"); e(f"v_lshl_or_b32 v{d}, v{t}, 1, v{d}")
    e(f"v_and_b32 v{t}, 8, v{s}"); e(f"v_lshrrev_b32 v{t}, 1, v{t}"); e(f"v_or_b32 v{d}, v{d}, v{t}")
e(f"v_lshrrev_b32 v{vT}, 2, v{L}"); swap23(vT+1, vT, vT+2)
e(f"v_mul_u32_u24 v{vT+1}, 6144, v{vT+1}")
e(f"v_lshrrev_b32 v{vT}, 3, v{L}"); e(f"v_and_b32 v{vT}, 2, v{vT}"); e(f"v_and_b32 v{vT+2}, 3, v{L}"); e(f"v_xor_b32 v{vT}, v{vT}, v{vT+2}")
e(f"v_lshl_add_u32 v{vDB}, v{vT}, 4, v{vT+1}")
e(f"v_mul_u32_u24 v{vT}, 4682, v0"); e(f"v_lshrrev_b32 v{vT}, 16, v{vT}")
e(f"v_mul_u32_u24 v{vT+3}, 14, v{vT}"); e(f"v_sub_u32 v{vT+3}, v0, v{vT+3}")
swap23(vT+1, vT, vT+2)
e(f"v_mul_u32_u24 v{vT+1}, 7168, v{vT+1}"); e(f"v_lshl_add_u32 v{vDA}, v{vT+3}, 4, v{vT+1}")
e(f"s_lshl_b32 s{sKX}, s{sRB}, 19"); e(f"s_lshl_b32 s{sT}, s{sW}, 16"); e(f"s_add_u32 s{sKX}, s{sKX}, s{sT}")
e(f"s_add_u32 s{sKXE}, s{sKX}, 2048"); e(f"s_lshl_b32 s{sMX}, s{sW}, 12")
e(f"s_mul_i32 s{sOW+1}, s{sH}, 224"); e(f"s_sub_u32 s{sOW}, s{sOW+1}, {32*7168}")
e(f"s_mov_b32 s{sOW+2}, s{sOW}"); e(f"s_mov_b32 s{sOW+3}, s{sOW+1}")
e(f"s_lshl_b32 s{sT}, s{sW}, 10")
for n, o in enumerate((GOFF, GOFF+HALF, UOFF, UOFF+HALF)): e(f"s_add_u32 s{sMWd+n}, s{sT}, {WBASE+o}")
e(f"s_mov_b32 s{sINCA}, {64*7168}")
def qpiece(p):
    half, unit, rg = p // 6, (p % 6) // 2, p % 2
    return (WBASE + half*HALF + unit*2048 + rg*1024, ((-32 + half*32 + rg*16)*6144 + unit*2048) & 0xffffffff)
e(f"s_lshl_b32 s{sT+1}, s{sH}, 6")
e(f"s_add_u32 s{sMWd+4}, s{sT}, {WBASE}")
e(f"s_and_b32 s{sT+2}, s{sW}, 1"); e(f"s_mul_i32 s{sT+2}, s{sT+2}, {16*6144}")
e(f"s_lshr_b32 s{sT+3}, s{sW}, 1"); e(f"s_lshl_b32 s{sT+3}, s{sT+3}, 11"); e(f"s_add_u32 s{sT+2}, s{sT+2}, s{sT+3}")
e(f"s_sub_u32 s{sOW+4}, s{sT+2}, {32*6144}")
for w, p in ((6, 6), (7, 11)):
    l, o = qpiece(p)
    e(f"s_cmp_eq_u32 s{sW}, {w}"); e(f"s_cselect_b32 s{sMWd+4}, {l:#x}, s{sMWd+4}"); e(f"s_cselect_b32 s{sOW+4}, {o:#x}, s{sOW+4}")
e(f"s_add_u32 s{sOW+4}, s{sOW+4}, s{sT+1}")
e("s_waitcnt lgkmcnt(0)")
if OPT['stamp']: e(f"v_writelane_b32 v0, s{sST+4}, 0"); e(f"v_writelane_b32 v0, s{sST+6}, 16")
delay(0, 5)
stamp('karg')
srd(sX, pX, 0 if OPT['noX'] else 2048*2048)
for n in range(4): a_full('x', n, 0)
stamp('x0')
srd(sQ, pQKV, 0 if OPT['noW'] else 1024*6144); srd(sA, pWG, 0 if OPT['noW'] else 1024*7168); srd(sB, pWU, 0 if OPT['noW'] else 1024*7168)
e(f"s_cmp_eq_u32 s{sW}, 7"); e("s_cbranch_scc0 LA_not7")
for d in (sA, sB):
    for k in range(3): e(f"s_mov_b32 s{d+k}, s{sQ+k}")
for n in range(4):
    l, o = qpiece(7+n)
    e(f"s_mov_b32 s{sMWd+n}, {l:#x}"); e(f"s_add_u32 s{sOW+n}, s{sT+1}, {o:#x}")
e(f"s_mov_b32 s{sINCA}, {64*6144}"); e(f"v_mov_b32 v{vDA}, v{vDB}")
g.lab("LA_not7")
if OPT['wshift']:
    for n in range(5): e(f"s_add_u32 s{sOW+n}, s{sOW+n}, " + (f"s{sINCA}" if n < 4 else f"{64*6144}"))
for n in range(5): a_full('w', n, 0, True)
stamp('w0')
srd(sWS, pWSp, WS_SIZE); srd(sDBG, pDBG, 256); srd(sPF, pGW, 2048)
PD = OPT['PD'] - OPT['pre']; sPB = sT+6
assert OPT['amap'] == 3
e(f"s_lshr_b32 s{sT+1}, s2, 3"); e(f"s_lshr_b32 s{sT+2}, s{sH}, 3")
e(f"v_lshlrev_b32 v{vPF}, 7, v{L}"); e(f"s_mov_b32 s{sT+3}, 0"); e(f"s_mov_b32 s{sCNT}, 0"); e(f"s_mov_b32 s{sPFO}, 0"); e(f"s_mov_b32 s{sPFI}, 0")
e(f"s_mov_b32 s{sPB}, s{pX}"); e(f"s_mov_b32 s{sPB+1}, s{pX+1}")
def pfcase(w, body):
    e(f"s_cmp_lg_u32 s{sW}, {w}"); e(f"s_cbranch_scc1 LA_pf{w}"); body(); g.lab(f"LA_pf{w}")
def base(p, size): e(f"s_mov_b32 s{sPB}, s{p}"); e(f"s_mov_b32 s{sPB+1}, s{p+1}"); e(f"s_mov_b32 s{sCNT}, {size:#x}")
R2 = 2 if OPT['pf2'] else 1
def pf_x():
    base(pX, 2048*2048); e(f"v_and_b32 v{vT}, 31, v{L}"); e(f"v_lshlrev_b32 v{vT}, 11, v{vT}"); e(f"v_lshrrev_b32 v{vPF}, 5, v{L}"); e(f"v_lshl_add_u32 v{vPF}, v{vPF}, 7, v{vT}")
    e(f"s_and_b32 s{sT+4}, s{sH}, 7"); e(f"s_lshl_b32 s{sT+4}, s{sT+4}, 16"); e(f"s_lshl_b32 s{sPFO}, s{sRB}, 19"); e(f"s_add_u32 s{sPFO}, s{sPFO}, s{sT+4}")
    e(f"s_add_u32 s{sPFO}, s{sPFO}, {PD*128}"); e(f"s_mov_b32 s{sPFI}, {128*R2}"); e(f"s_mov_b32 s{sT+3}, {32*R2}")
def pf_gu(p):
    def f():
        base(p, 1024*7168); e(f"v_mul_u32_u24 v{vT}, 4682, v{L}"); e(f"v_lshrrev_b32 v{vT}, 16, v{vT}")
        e(f"v_mul_u32_u24 v{vT+1}, {7168-1792}, v{vT}"); e(f"v_add_u32 v{vPF}, v{vPF}, v{vT+1}")
        e(f"v_lshrrev_b32 v{vT}, 1, v{vT}"); e(f"v_mul_u32_u24 v{vT}, {62*7168}, v{vT}"); e(f"v_add_u32 v{vPF}, v{vPF}, v{vT}")
        e(f"s_mul_i32 s{sPFO}, s{sT+1}, {2*7168}"); e(f"s_mul_i32 s{sT+4}, s{sT+2}, 1792"); e(f"s_add_u32 s{sPFO}, s{sPFO}, s{sT+4}")
        e(f"s_add_u32 s{sPFO}, s{sPFO}, {(64*PD-32)*7168}"); e(f"s_mov_b32 s{sPFI}, {64*7168*R2}"); e(f"s_mov_b32 s{sT+3}, {28*R2}")
    return f
def pf_q():
    base(pQKV, 1024*6144); e(f"v_lshrrev_b32 v{vT}, 2, v{L}"); e(f"v_lshlrev_b32 v{vT}, 11, v{vT}"); e(f"v_and_b32 v{vPF}, 3, v{L}")
    e(f"v_lshl_add_u32 v{vPF}, v{vPF}, 7, v{vT}")
    e(f"v_cmp_le_u32 vcc, 24, v{L}"); e(f"v_add_u32 v{vT}, {62*6144}, v{vPF}"); e("s_nop 0"); e(f"v_cndmask_b32 v{vPF}, v{vPF}, v{vT}, vcc")
    e(f"s_mul_i32 s{sPFO}, s{sT+1}, {2*6144}"); e(f"s_lshl_b32 s{sT+4}, s{sT+2}, 9"); e(f"s_add_u32 s{sPFO}, s{sPFO}, s{sT+4}")
    e(f"s_add_u32 s{sPFO}, s{sPFO}, {(64*PD-32)*6144}"); e(f"s_mov_b32 s{sPFI}, {64*6144*R2}"); e(f"s_mov_b32 s{sT+3}, {24*R2}")
def pf_lin(p, size, nl, st=0):
    def f():
        base(p, size); e(f"s_mul_i32 s{sPFO}, s{sLAM}, {nl*128}"); e(f"s_mov_b32 s{sPFI}, {nl*128*256}"); e(f"s_mov_b32 s{sT+3}, {nl}")
        if st: e(f"s_sub_u32 s{sPFO}, s{sPFO}, {st*nl*128*256}")
    return f
if OPT['pf']:
    if PD > 0: pfcase(6, pf_x); pfcase(1, pf_gu(pWG)); pfcase(2, pf_gu(pWU)); pfcase(3, pf_q)
    pfcase(4, pf_lin(pWD, 3584*2048, OPT['wdn'], OPT['wdst'])); pfcase(5, pf_lin(pWO, 1024*2048, 16, OPT['wdst']))
    if OPT['touch'] & 1: pfcase(6, pf_lin(pWSp, A_BYTES, 64))
    def pf_kv():
        pf_lin(pWSp, WS_KV + (0x1000000 if OPT['touch'] & 4 else 0x800000), 64)(); e(f"s_add_u32 s{sPFO}, s{sPFO}, {WS_KV:#x}")
    if OPT['touch'] & 2: pfcase(7, pf_kv)
e(f"v_cmp_gt_u32 vcc, s{sT+3}, v{L}"); e(f"v_bfrev_b32 v{vT}, 1"); e("s_nop 0"); e(f"v_cndmask_b32 v{vPF}, v{vT}, v{vPF}, vcc")
e(f"s_mov_b32 s{sPF}, s{sPB}"); e(f"s_and_b32 s{sPF+1}, s{sPB+1}, 0xffff"); e(f"s_mov_b32 s{sPF+2}, s{sCNT}")
for k in range(OPT['pre']): a_op('p', 0, 0)
W1E = {0: [], 1: [0,2,4], 2: [0,2,4,1,3]}[OPT['w1e']]
for n in W1E: a_full('w', n, 1)
e(f"v_and_b32 v{vT}, 15, v{L}"); e(f"s_lshl_b32 s{sT}, s{sMW}, 6"); e(f"v_add_u32 v{vT}, s{sT}, v{vT}"); e(f"v_lshlrev_b32 v{vT}, 7, v{vT}")
e(f"v_lshrrev_b32 v{vT+1}, 4, v{L}"); e(f"v_bfe_u32 v{vT+2}, v{L}, 1, 3"); e(f"v_xor_b32 v{vT+2}, v{vT+1}, v{vT+2}")
e(f"v_lshl_add_u32 v{vXR}, v{vT+2}, 4, v{vT}"); e(f"v_xor_b32 v{vXR+1}, 64, v{vXR}")
e(f"v_bfe_u32 v{vT}, v{L}, 2, 3")
e(f"v_lshrrev_b32 v{vT+1}, 5, v{L}"); e(f"v_lshl_add_u32 v{vT}, v{vT+1}, 4, v{vT}")
e(f"v_and_b32 v{vT+1}, 3, v{L}"); e(f"v_lshlrev_b32 v{vT+1}, 3, v{vT+1}"); e(f"v_add_u32 v{vT+1}, {WBASE}, v{vT+1}")
e(f"v_mul_u32_u24 v{vWG}, 224, v{vT}"); e(f"v_add_u32 v{vWG}, v{vWG}, v{vT+1}"); e(f"v_add_u32 v{vWG+1}, {WSLOT}, v{vWG}")
e(f"v_lshl_add_u32 v{vWQ}, v{vT}, 6, v{vT+1}"); e(f"v_bfe_u32 v{vT+2}, v{L}, 4, 1"); e(f"v_lshl_add_u32 v{vWQ}, v{vT+2}, 5, v{vWQ}")
e(f"v_xor_b32 v{vWQ+1}, 32, v{vWQ}"); e(f"v_add_u32 v{vWQ+2}, {WSLOT}, v{vWQ}"); e(f"v_add_u32 v{vWQ+3}, {WSLOT}, v{vWQ+1}")
for r in range(vACC, 256): e(f"v_mov_b32 v{r}, 0")
e(f"s_mov_b32 s{sK}, {f32(-LOG2E)}"); e(f"s_mov_b32 s{sK+1}, {f32(-LOG2E)}")
e(f"s_lshl_b32 s{sGO}, s{sLAM}, 3"); e(f"s_add_u32 s{sGO}, s{sGO}, s{sW}"); e(f"s_lshl_b32 s{sGO}, s{sGO}, 11")
e("v_mov_b32 v40, 0"); e("v_mov_b32 v41, 0"); e("v_mov_b32 v25, 0"); e("v_mov_b32 v43, 0x3f803f80"); e(f"v_lshlrev_b32 v42, 2, v{L}"); e(f"s_mov_b32 s{sKXE}, 0")
srd(sGW, pGW, 2048); e("s_mov_b32 s94, 1.0"); e("s_mov_b32 s95, 1.0")
W1A = {0: [0,1,2,3,4], 1: [], 2: [0,2,4]}[OPT['w1']]
stamp('setup')
for n in W1A:
    if n not in W1E: a_full('w', n, 1)
W1A = sorted(set(W1A) | set(W1E))
stamp('w1')
e(f"s_waitcnt vmcnt({len(W1A)+OPT['pre']})"); stamp('land'); e("s_barrier"); stamp('bar')
e(f"s_cmp_eq_u32 s{sNW}, 1"); e("s_cbranch_scc1 LA_pre1")
for nw in range(2):
    if nw == 1: g.lab("LA_pre1")
    sq, sv_ = g.steady(lambda: a_body(nw))
    g.q = []
    for i in range(4): a_xread(i, 0)
    for n in range(4): a_wread(nw, n)
    assert [t for t in sv_ if t[0] == 'w'] == [('w', 1, k) for k in range(5)], sv_
    for n in range(5):
        if n not in W1A: a_full('w', n, 1)
    for t in sv_:
        if t[0] == 'x': assert t[1] == 1; a_full('x', t[2], 1)
    assert not any(t[0] == 'p' for t in sv_[sv_.index(('w', 1, 0)):]), sv_
    e(f"s_mov_b32 s{sCNT}, 8"); e(f"s_mov_b32 s{sOK}, 0")
    stamp('loopA')
    if OPT['prio'] and nw == 1: e("s_setprio 1")
    e("s_waitcnt lgkmcnt(0)")
    g.q = list(sq); g.v = list(sv_)
    g.L.append(".p2align 6"); g.lab(f"LA_loop{nw}")
    a_body(nw); assert g.q == sq and g.v == sv_
    if OPT['tst']:
        e(f"s_memtime s[{sST}:{sST+1}]"); e(f"s_memrealtime s[{sST+2}:{sST+3}]"); e(f"s_sub_u32 s{sST+4}, 10, s{sCNT}"); e(f"s_add_u32 s{sST+5}, s{sST+4}, 16")
        e("s_waitcnt lgkmcnt(0)"); e(f"s_mov_b32 m0, s{sST+4}"); e("s_nop 0"); e(f"v_writelane_b32 v0, s{sST}, m0"); e(f"s_mov_b32 m0, s{sST+5}"); e("s_nop 0"); e(f"v_writelane_b32 v0, s{sST+2}, m0")
    e(f"s_sub_u32 s{sCNT}, s{sCNT}, 1")
    for u in gate_acc(40, 41, 20, 43):
        for x in u: e(x)
    e(f"buffer_load_dword v40, v42, {sr(sX,4)}, s{sGO} offen"); e(f"buffer_load_dword v41, v42, {sr(sGW,4)}, s{sKXE} offen")
    e(f"s_add_u32 s{sGO}, s{sGO}, 256"); e(f"s_add_u32 s{sKXE}, s{sKXE}, 256")
    e(f"s_cmp_lg_u32 s{sCNT}, 1"); e(f"s_cbranch_scc1 LA_h1_{nw}")
    sv = g.L; g.L = g.tail
    g.lab(f"LA_h1_{nw}")
    def hook(c, body, w0=False):
        if w0 and nw == 1: return
        e(f"s_cmp_lg_u32 s{sCNT}, {c}"); e(f"s_cbranch_scc1 LA_n{c}_{nw}")
        if w0: e(f"s_cmp_lg_u32 s{sW}, 0"); e(f"s_cbranch_scc1 LA_loop{nw}")
        body(); e(f"s_branch LA_loop{nw}"); g.lab(f"LA_n{c}_{nw}")
    def rec_store():
        for r in range(28, 32): e(f"v_mov_b32 v{r}, 0")
        e(f"v_mov_b32 v26, {CNTLDS}"); e("ds_write_b32 v26, v28")
        e(f"s_lshl_b32 s{sT}, s{sLAM}, 9"); e(f"s_add_u32 s{sT}, s{sT}, {WS_FL:#x}")
        e("s_mov_b32 exec_hi, 0")
        e(f"buffer_store_dwordx4 v[28:31], v{vL16}, {sr(sWS,4)}, s{sT} offen sc1"); e("s_mov_b64 exec, -1")
    def ack():
        e(f"v_mov_b32 v{vT}, 1"); e(f"s_and_b32 s{sT}, s{sLAM}, 1"); e(f"s_lshl_b32 s{sT}, s{sT}, 7")
        one_lane(lambda: e(f"buffer_atomic_add v{vT}, off, {sr(sDBG,4)}, s{sT} sc1"))
    def ld(): e(f"v_and_b32 v37, 1, v{L}"); e(f"v_lshlrev_b32 v37, 7, v37"); e(f"buffer_load_dword v{vCN}, v37, {sr(sDBG,4)}, 0 offen sc1")
    def ts(): e(f"v_cmp_gt_u32 vcc, 128, v{vCN}"); e("s_nop 1"); e("s_cmp_eq_u64 vcc, 0")
    def gate_loads():
        e(f"v_lshlrev_b32 v42, 5, v{L}")
        e(f"buffer_load_dwordx4 {vr(26,4)}, v42, {sr(sX,4)}, s{sGO} offen"); e(f"buffer_load_dwordx4 {vr(30,4)}, v42, {sr(sX,4)}, s{sGO} offen offset:16")
        e(f"buffer_load_dwordx4 {vr(34,4)}, v42, {sr(sGW,4)}, 0 offen"); e(f"buffer_load_dwordx4 {vr(38,4)}, v42, {sr(sGW,4)}, 0 offen offset:16")
        ld()
    def code_pf():
        e(f"s_getpc_b64 s[{sT}:{sT+1}]"); g.lab("LA_pc")
        e(f"s_sub_u32 s{sT}, s{sT}, LA_pc-{KN}"); e(f"s_subb_u32 s{sT+1}, s{sT+1}, 0")
        e(f"s_lshr_b32 s{sT+2}, s2, 3"); e(f"s_lshl_b32 s{sT+2}, s{sT+2}, 12")
        e(f"v_and_b32 v26, 31, v{L}"); e(f"v_lshlrev_b32 v26, 7, v26"); e(f"v_add_u32 v26, s{sT+2}, v26")
        e(f"v_min_u32 v26, LZ_end-{KN}-4, v26")
        e(f"v_mov_b32 v27, s{sT+1}"); e(f"v_add_co_u32 v26, vcc, s{sT}, v26"); e("s_nop 1"); e(f"v_addc_co_u32 v27, vcc, 0, v27, vcc")
        e(f"global_load_dword v{vDUM}, v[26:27], off")
    if OPT['astag']:
        def ackif(k):
            def f():
                e(f"s_lshr_b32 s{sT}, s2, 3"); e(f"s_mul_i32 s{sT}, s{sT}, 3"); e(f"s_lshr_b32 s{sT}, s{sT}, 5")
                e(f"s_cmp_lg_u32 s{sT}, {k}"); e(f"s_cbranch_scc1 LA_loop{nw}"); ack()
            return f
        hook(7, rec_store, True); hook(6, ackif(0), True); hook(5, ackif(1), True); hook(4, ackif(2), True); hook(2, ld)
    else:
        hook(6, rec_store, True); hook(5, ack, True); hook(2, ld)
    if OPT['cpf']: hook(OPT['cpf'], code_pf, True)
    def tlb_warm():
        e(f"s_mul_i32 s{sT}, s{sRB}, {16*M16}"); e(f"v_mov_b32 v26, s{sT}")
        e(f"s_add_u32 s{sT+1}, s{sT}, {8*M16}"); e(f"v_writelane_b32 v26, s{sT+1}, 1")
        e(f"s_add_u32 s{sT+1}, s{sT}, {16*M16-128}"); e(f"v_writelane_b32 v26, s{sT+1}, 2")
        e(f"s_lshl_b32 s{sT}, s{sLAM}, 15"); e(f"s_add_u32 s{sT}, s{sT}, {WS_KV:#x}"); e(f"v_writelane_b32 v26, s{sT}, 3")
        e(f"s_sub_u32 s{sT}, s{sT}, {32*32768}"); e(f"v_writelane_b32 v26, s{sT}, 4")
        e(f"s_lshl_b32 s{sT}, s{sRB}, 21"); e(f"s_add_u32 s{sT}, s{sT}, {WS_PART:#x}"); e(f"v_writelane_b32 v26, s{sT}, 5")
        e("s_mov_b64 exec, 63"); e(f"buffer_load_dword v{vDUM}, v26, {sr(sWS,4)}, 0 offen"); e("s_mov_b64 exec, 1")
        srd(88, pOUT, 2048*2048); e(f"s_lshl_b32 s{sT}, s{sRB}, 19"); e(f"buffer_load_dword v{vDUM}, off, s[88:91], s{sT}")
        srd(88, pWO, 1024*2048); e(f"buffer_load_dword v{vDUM}, off, s[88:91], 0")
        srd(88, pWD, 3584*2048); e(f"s_lshr_b32 s{sT}, s{sH}, 3"); e(f"s_mul_i32 s{sT}, s{sT}, {896*2048}"); e(f"buffer_load_dword v{vDUM}, off, s[88:91], s{sT}")
        e(f"s_add_u32 s{sT}, s{sT}, {895*2048}"); e(f"buffer_load_dword v{vDUM}, off, s[88:91], s{sT}")
        e("s_mov_b64 exec, -1")
    if OPT['tlb']: hook(OPT['tlb'], tlb_warm, True)
    e(f"s_branch LA_loop{nw}")
    g.lab(f"LA_slow{nw}")
    spin(f"LA_spin{nw}", ld, ts, sT+3); e(f"s_branch LB_go{nw}")
    g.L = sv
    ts(); e(f"s_cbranch_scc0 LA_slow{nw}")
    g.lab(f"LB_go{nw}")
    e(f"buffer_load_dword v38, v42, {sr(sX,4)}, s{sGO} offen"); e(f"buffer_load_dword v39, v42, {sr(sGW,4)}, s{sKXE} offen")
    U = UNITS[nw]; jkv = 2 if nw == 0 else 0
    vHA = 3; vST = 96 - 4*len(OPT['hpos']); vNB = 208; assert len(OPT['hpos']) % 2 == 0
    def cap(f, atomic=False):
        sv = g.L; g.L = []; f(); r = g.L; g.L = sv
        return [r] if atomic else [[x] for x in r]
    def setupB():
        e(f"s_lshl_b32 s{sT+4}, s{sLAM}, 15"); e(f"s_add_u32 s{sT+4}, s{sT+4}, {WS_KV:#x}")
        e(f"s_lshl_b32 s{sT+5}, s{sMW}, 13"); e(f"v_add_u32 v{vT+8}, s{sT+5}, v{vL16}")
        e(f"s_add_u32 s{sT+5}, s{sT+5}, s{sT+4}")
    def setupB2():
        e(f"s_cmp_eq_u32 s{sRB}, 7"); e(f"s_cselect_b32 s{sT+5}, {WS_SIZE:#x}, s{sT+5}")
    def setupB3():
        e(f"s_add_u32 s{sT+6}, s{sT+5}, 4096")
        e(f"v_and_b32 v{vHA}, 31, v{L}"); e(f"v_lshlrev_b32 v{vHA}, 4, v{vHA}"); e(f"v_lshrrev_b32 v{vT+11}, 5, v{L}")
        e(f"v_mul_u32_u24 v{vT+11}, {M16}, v{vT+11}"); e(f"v_add_u32 v{vHA}, v{vHA}, v{vT+11}")
        e(f"s_lshl_b32 s{sT}, s{sRB}, 4"); e(f"s_lshl_b32 s{sT+1}, s{sMW}, 2"); e(f"s_add_u32 s{sT}, s{sT}, s{sT+1}")
        e(f"s_mul_i32 s{sHB}, s{sT}, {M16}"); e(f"s_mul_i32 s{sT}, s{sH}, {7*512}"); e(f"s_add_u32 s{sHB}, s{sHB}, s{sT}")
        e(f"s_lshr_b32 s{sT}, s{sH}, 3"); e(f"s_lshl_b32 s{sT}, s{sT}, 13"); e(f"s_add_u32 s{sHB}, s{sHB}, s{sT}")
        if nw == 1: e(f"s_add_u32 s{sHB}, s{sHB}, {3*512}")
        e(f"s_add_u32 s{sHB+1}, s{sHB}, {2*M16}")
        e(f"s_lshl_b32 s{sT+7}, s{sLAM}, 9"); e(f"s_add_u32 s{sT+7}, s{sT+7}, {WS_FL:#x}")
        e(f"v_mov_b32 v{vCN}, 1"); e(f"s_mov_b32 s{sDN}, 0"); e(f"s_sub_u32 s{sT+3}, s{sT+7}, {32*512}")
    def gpub():
        e(f"s_cmp_lg_u32 s{sW}, 0"); e("s_cbranch_scc1 LB_nog")
        e(f"v_lshlrev_b32 v{vT}, 2, v{L}"); e(f"v_add_u32 v{vT+1}, {GLDS}, v{vT}"); e("s_mov_b64 exec, 0xff"); e(f"ds_read_b32 v{vT+1}, v{vT+1}"); e("s_waitcnt lgkmcnt(0)")
        e(f"buffer_store_dword v{vT+1}, v{vT}, {sr(sWS,4)}, s{sT+7} offen sc1"); e("s_mov_b64 exec, -1")
        g.lab("LB_nog")
    def kvout():
        for i in range(4):
            pack2(jkv, i)
            if nw == 1:
                a = ACC(0, i); e("s_nop 1"); e(f"v_permlane32_swap_b32 v{a}, v{a+2}"); e(f"v_permlane32_swap_b32 v{a+1}, v{a+3}")
            e(f"buffer_store_dwordx4 {vr(ACC(jkv,i),4)}, v{vL16}, {sr(sWS,4)}, s{sT+5+(i>>1)} offen offset:{nw*2048+(i&1)*1024} sc1")
    gus = [j for j in range(10) if U[j][0] == 'g']
    def hst(R, k): e(f"buffer_store_dwordx4 {vr(R,4)}, v{vHA}, {sr(sWS,4)}, s{sHB+(k&1)} offen offset:{(k>>1)*512}" + ("" if OPT['hx'] == 1 else " sc1")) if OPT['hx'] != 2 else None
    def ldK(): e(f"buffer_load_dword v{vT+10}, off, {sr(sWS,4)}, s{sT+3} offset:{FL_KV} sc1")
    def tsK(): e(f"v_readfirstlane_b32 s{sT}, v{vT+10}"); e("s_nop 0"); e(f"s_cmp_eq_u32 s{sT}, 1")
    J = [2,3,4,5,6,7,8,9,0,1] if nw == 0 else list(range(10))
    SQ = [(t, j) for t in range(2) for j in range(10)]
    for p in range(5): a_, b_ = J[2*p], J[2*p+1]; SQ += [(2, a_), (2, b_), (3, a_), (3, b_)]
    F = []
    F += [(1, u) for u in cap(setupB) + cap(setupB2, True) + cap(setupB3)]
    vKA, vVA, vQA, vOA = 8, 9, 10, 11
    def att_setup():
        m = vT
        e(f"v_and_b32 v{m+1}, 15, v{L}"); e(f"v_lshlrev_b32 v{m+1}, 4, v{m+1}"); e(f"v_lshrrev_b32 v{m+2}, 5, v{L}")
        e(f"v_lshl_add_u32 v{m+1}, v{m+2}, 8, v{m+1}"); e(f"v_bfe_u32 v{m+2}, v{L}, 4, 1")
        e(f"v_lshl_add_u32 v{vQA}, v{m+2}, 10, v{m+1}"); e(f"v_lshl_add_u32 v{vVA}, v{m+2}, 9, v{m+1}")
        e(f"v_mul_u32_u24 v{vOA}, {M16}, v{m+2}"); e(f"v_add_u32 v{vOA}, v{vOA}, v{m+1}")
        e(f"s_lshl_b32 s{sT}, s{sW}, 12"); e(f"v_add_u32 v{vKA}, s{sT}, v{vQA}"); e(f"v_add_u32 v{vVA}, s{sT}, v{vVA}")
    def q_addr():
        e(f"s_lshl_b32 s{sT}, s{sW}, 11"); e(f"s_cmp_ge_u32 s{sW}, 6"); e(f"s_cselect_b32 s{sT+1}, {QLDS3-6*2048}, {QLDS}".replace(f", {QLDS}", f", s{sT+2}"))
        e(f"s_add_u32 s{sT}, s{sT}, s{sT+1}"); e(f"v_add_u32 v{vQA}, s{sT}, v{vQA}")
        if nw == 0:
            e(f"s_lshl_b32 s{sT}, s{sMW}, 12"); e(f"s_cmp_eq_u32 s{sMW}, 3"); e(f"s_cselect_b32 s{sT+1}, {QLDS3-3*4096}, s{sT+2}")
            e(f"s_add_u32 s{sT}, s{sT}, s{sT+1}"); e(f"v_add_u32 v{vT+9}, s{sT}, v{vL16}")
    def cnt0():
        e(f"v_mov_b32 v{vT+12}, {CNT2}"); e(f"v_mov_b32 v{vT+13}, 0"); e(f"ds_write_b32 v{vT+12}, v{vT+13}"); e(f"ds_write_b32 v{vT+12}, v{vT+13} offset:4"); e(f"ds_write_b32 v{vT+12}, v{vT+13} offset:8")
    def kvlds():
        for i in range(4): e(f"ds_write_b128 v{vT+8}, {vr(ACC(jkv,i),4)} offset:{32768+(i>>1)*4096+nw*2048+(i&1)*1024}")
    F += [(10, u) for u in cap(c_setup)]
    F += [(18, [("    " + x) for x in u]) for u in gate_list(20, 43)]
    if nw == 0: F += [(19, u) for u in cap(cnt0)]
    F += [(21, u) for u in cap(att_setup) + [[f"    s_mov_b32 s{sT+2}, {QLDS}"]] + cap(q_addr, True)]
    F += [(24, u) for u in cap(kvout) + cap(kvlds)]
    if nw == 0: F += [(24, u) for u in cap(gpub, True)]
    nk = 2*len(gus)
    for k in range(nk):
        j, i = gus[k >> 1], 2*(k & 1); av = 28 + 4*(k >> 1)
        F += [(av, u) for u in cap(lambda: silu(j, i, vT, ACC(j, i)))]
        NE = nk - len(OPT['hpos'])
        F += [(av, u) for u in cap(lambda: trysig(min(k, NE), CNTLDS, 0, FL_KV, force=(k == nk-1)), True)]
        if k < NE: F += [(av, u) for u in cap(lambda: hst(ACC(j, i), k))]
    ev = {n: [x for x in v if x[0] == 'x' and x[2] == 1] for n, v in a_events(nw).items() if n < 10}
    for n, k in zip((7, 8, 9), (0, 2, 4)): ev.setdefault(n, []).append(('w', k, 0))
    for n, (t, j) in enumerate(SQ):
        un = U[j]; evs = ev.get(n, [])
        for i in range(4):
            g.need([('W', n % 5), ('X', t & 1, i)])
            a, b = vr(vWF+4*(n % 5), 4), vr(vXF+16*(t & 1)+4*i, 4)
            if un[0] == 'v': a, b = b, a
            e(f"{MF16} {vr(ACC(j,i),4)}, {a}, {b}, {vr(ACC(j,i),4)}")
            if i == 0:
                if n == JBW: g.need([('W', k) for k in range(5)], [('w', 1, k) for k in range(5)]); e("s_barrier")
                if n == 17:
                    g.need([('W', k) for k in range(5)], [('x', 1, k) for k in range(4)] + [('w', 0, k) for k in range(5)]); e("s_barrier")
                if n == 22: assert not any(av <= 18 for av, u in F)
                if n == 23: g.need([('X', 1, k) for k in range(4)] + [('W', k) for k in range(5)]); e("s_barrier")
                if n + 4 < 40: a_wread(nw, n+4, SQ[n+4])
                if nw == 0 and n == OPT['kq']: ldK()
            if i == 1:
                for ii in range(4):
                    if n == OPT['jbx'] + OPT['xrd'][ii]: a_xread(ii, 1)
                    if n == 17 + (ii >> 1): a_xread(ii, 2)
                    if n == 20: a_xread(ii, 3)
                if evs: a_m0(*evs[0])
            if i == 2 and evs:
                a_op(*evs[0])
                for x in evs[1:]: a_full(*x)
            c = 0
            while F and F[0][0] <= n and c < (2 if n < 12 else 3 if n < 20 else OPT['fr']) and not (i == 1 and evs):
                u = F.pop(0)[1]; g.L += u; c += len(u)
    stamp('endA')
    left = sum(1 for av, u in F for x in u if 'buffer_store_dwordx4' in x)
    print("path", nw, "leftover filler instrs", sum(len(u) for av, u in F), "stores", left)
    if nw == 0 and OPT['h0']:
        vNB = 40
        e(f"s_mov_b32 s{sT+5}, {WS_SIZE:#x}")
        e(f"s_cmp_eq_u32 s{sRB}, 0"); e("s_cbranch_scc1 LB_rb0")
        e("s_waitcnt vmcnt(0)"); trysig(15, CNTLDS, 0, FL_KV, force=True); tsK(); e("s_cbranch_scc0 LB_late")
        e(f"s_sub_u32 s{sT+5}, s{sT+4}, {32*32768}")
        g.lab("LB_rb0")
        e(f"s_add_u32 s{sT+6}, s{sT+5}, 4096")
        def nbl():
            for f in range(8): e(f"buffer_load_dwordx4 {vr(vNB+4*f,4)}, v{vT+8}, {sr(sWS,4)}, s{sT+5+(f>>2)} offen offset:{(f&3)*1024} sc1")
        nbl(); e(f"s_mov_b32 s{sT+4}, 0")
        g.lab("LB_late")
        for r in range(32): e(f"v_mul_f32 v{ACC(0,0)+r}, {f32(32 ** -0.5 * LOG2E)}, v{ACC(0,0)+r}")
        for i in range(4): pack2(0, i)
        for i in range(4): e(f"ds_write_b128 v{vT+9}, {vr(ACC(0,i),4)} offset:{i*1024}")
    else: e("s_nop 7")
    assert not any('ds_write' in x for av, u in F for x in u)
    for av, u in F: g.L += u
    for k in range(NE, nk):
        for r in range(4): e(f"v_mov_b32 v{vST+4*(k-NE)+r}, v{ACC(gus[k>>1], 2*(k&1))+r}")
    if NE: e(f"s_add_u32 s{sHB}, s{sHB}, {NE*256}"); e(f"s_add_u32 s{sHB+1}, s{sHB+1}, {NE*256}")
    stamp('hdone')
    if nw == 0:
        e(f"s_cmp_eq_u32 s{sT+4}, 0"); e("s_cbranch_scc1 LB_have")
        spin("LB_spin", ldK, tsK, sT+5)
        e(f"s_sub_u32 s{sT+5}, s{sT+4}, {32*32768}"); e(f"s_add_u32 s{sT+6}, s{sT+5}, 4096")
        nbl(); e("s_waitcnt vmcnt(0)")
        g.lab("LB_have")
        NLEFT = left; vNB0 = vNB
    stamp('kvok')
    if nw == 0: e("s_branch LB_common")
g.lab("LB_common")
FR = [40, 48, 56, 64, 96, 104]; vQ = 32; vS = 112; vM = 26; vSUM = 28
BIG = 2.0**100
assert OPT['npre'] <= 3
e(f"s_mov_b32 s{sDN}, 0")
e(f"s_andn2_b32 s{sT+4}, s{sLAM}, 7"); e(f"s_lshl_b32 s{sT+4}, s{sT+4}, 9"); e(f"s_add_u32 s{sT+4}, s{sT+4}, {WS_FL:#x}")
e(f"s_cmp_eq_u32 s{sNW}, 1"); e("s_cbranch_scc1 LB_nokv")
for f in range(8):
    e(f"s_waitcnt vmcnt({7-f+NLEFT})"); e(f"ds_write_b128 v{vT+8}, {vr(vNB0+4*f,4)} offset:{f*1024}")
g.lab("LB_nokv")
e("s_waitcnt lgkmcnt(0)"); e("s_barrier")
delay(1, 10)
stamp('bar2')
ORD = [0, 8, 1, 2, 3, 4, 5, 6, 7]
def yprio(k):
    e(f"s_cmp_eq_u32 s{sNW}, 0"); e(f"s_cbranch_scc1 LP_{k}"); e("s_setprio 1"); g.lab(f"LP_{k}")
if OPT['aprio'] == 1: yprio(0)
def kread(x):
    t = ORD[x]
    for f in range(2): g.lds(f"ds_read_b128 {vr(FR[x%6]+4*f,4)}, v{vKA} offset:{t*4096+f*512}", ('K', x, f))
def vread(x):
    t = ORD[x]
    for f in range(2): g.lds(f"ds_read_b128 {vr(FR[(x+3)%6]+4*f,4)}, v{vVA} offset:{t*4096+2048+f*1024}", ('V', x, f))
def mx(t, half=None):
    b = vS + 16*t
    for r in range(0, 16, 2):
        if half is not None and (r >> 3) != half: continue
        k = (r >> 1) & 1
        if t == 8 and r < 4: e(f"v_max_f32 v{vM+k}, v{b+r}, v{b+r+1}")
        else: e(f"v_max3_f32 v{vM+k}, v{vM+k}, v{b+r}, v{b+r+1}")
def masked(op, hi=vS+128, lo=vS):
    for rho in range(16):
        cst = 8*(rho >> 2) + (rho & 3)
        e(f"s_bfm_b32 exec_lo, {cst}, 0"); e(f"s_bfm_b32 exec_hi, {cst+4}, 0"); e(f"{op} v{hi+rho}, v{lo+rho}")
    e("s_mov_b64 exec, -1")
def merge():
    masked("v_mov_b32")
    for rho in range(16): e(f"v_mov_b32 v{vS+rho}, 0")
NPRE = OPT['npre']
def ldH(): e(f"buffer_load_dword v{cvPL}, v{cvPA}, {sr(sWS,4)}, s{sT+4} offen offset:{FL_H} sc1")
def tsL(): e(f"v_cmp_ne_u32 vcc, 1, v{cvPL}"); e("s_nop 1"); e("s_cmp_eq_u64 vcc, 0")
AFTER = [0]; NH2 = [0]
def event(x):
    for k, p in enumerate(OPT['hpos']):
        if p == x: hst(vST+4*k, k); AFTER[0] = 0
    if max(OPT['hpos'] + [-1]) < x <= OPT['hq']: trysig(AFTER[0], CNT2, 0, FL_H, force=(x == OPT['hq']))
    for k, p in enumerate(OPT['dpos'][:NPRE]):
        if p == x: c_m0(k); e("s_nop 0"); c_dma(k, 0); c_dma(k, 1); AFTER[0] += 2
    if OPT['aearly'] and x == OPT['hq2']: ldH(); AFTER[0] += 1; NH2[0] = AFTER[0]
    if OPT['aearly'] and x == OPT['hq2'] + 2:
        e(f"s_mov_b32 s{sOK+1}, 0"); e(f"s_waitcnt vmcnt({AFTER[0]-NH2[0]})"); tsL(); e("s_cbranch_scc0 LB_noe")
        for k in range(4): c_aload(0, k)
        e(f"s_mov_b32 s{sOK+1}, 1"); e("s_branch LB_e2")
        g.lab("LB_noe"); ldH(); g.lab("LB_e2")
    if not OPT['aearly'] and x == OPT['hq']: ldH(); AFTER[0] += 1
sTH = sT+2
vO = vS + 8
def rowsum():
    e(f"v_pk_add_f32 {vr(vSUM,2)}, {vr(vSUM,2)}, {vr(vSUM+2,2)}"); e(f"v_add_f32 v{vSUM}, v{vSUM}, v{vSUM+1}")
    e(f"v_mov_b32 v{vSUM+1}, v{vSUM}"); e("s_nop 1"); e(f"v_permlane32_swap_b32 v{vSUM}, v{vSUM+1}")
    e(f"v_add_f32 v{vSUM}, v{vSUM}, v{vSUM+1}")
def negmax():
    e(f"v_max_f32 v{vM}, v{vM}, v{vM+1}"); e(f"v_mov_b32 v{vM+1}, v{vM}"); e("s_nop 1")
    e(f"v_permlane32_swap_b32 v{vM}, v{vM+1}"); e(f"v_max_f32 v{vM}, v{vM}, v{vM+1}")
    e(f"v_mul_f32 v{vM}, -1.0, v{vM}"); e(f"v_mov_b32 v{vM+1}, v{vM}")
def sums(b, first):
    for r in range(0, 16, 2):
        s = vSUM + 2*((r >> 1) & 1)
        if first and r < 4: e(f"v_pk_add_f32 {vr(s,2)}, {vr(b+r,2)}, {vr(b+r+4,2)}")
        elif first and r < 8: pass
        else: e(f"v_pk_add_f32 {vr(s,2)}, {vr(s,2)}, {vr(b+r,2)}")
sv = g.L; g.L = g.tail; g.lab("LB_exact")
e("s_nop 15"); e("s_waitcnt lgkmcnt(0)")
g.q = []
for x in range(6): kread(x)
for x in range(9):
    t = ORD[x]
    g.need([('K', x, 1)])
    if t < 8:
        e(f"s_cmp_le_u32 s{sTH}, {t}"); e(f"s_cbranch_scc1 LB_v{t}")
        for rho in range(16): e(f"v_mov_b32 v{vS+16*t+rho}, {f32(-BIG)}")
        e(f"s_branch LB_w{t}"); g.lab(f"LB_v{t}")
    for f in range(2): e(f"{MF32} {vr(vS+16*t,16)}, {vr(FR[x%6]+4*f,4)}, {vr(vQ+4*f,4)}, " + (vr(vS+16*t, 16) if f else "0"))
    if t < 8: g.lab(f"LB_w{t}")
    if x + 6 < 9: kread(x+6)
    else: vread(x-3)
e("s_nop 15"); merge()
for x in range(1, 9): mx(ORD[x])
negmax()
def pbase(t): return vS if t == 0 else vS + 16*t + 8
def soft(t):
    b = vS + 16*t
    for r in range(0, 16, 2): e(f"v_pk_add_f32 {vr(b+r,2)}, {vr(b+r,2)}, {vr(vM,2)}")
    for r in range(16): e(f"v_exp_f32 v{b+r}, v{b+r}")
    sums(b, t == 8)
    if t == 8:
        masked("v_swap_b32")
        for r in range(8): e(f"v_cvt_pk_bf16_f32 v{vS+r}, v{vS+2*r}, v{vS+2*r+1}")
    for r in range(7, -1, -1): e(f"v_cvt_pk_bf16_f32 v{b+8+r}, v{b+2*r}, v{b+2*r+1}")
for t in ORD[1:]: soft(t)
e("s_nop 1")
for x in range(9):
    for f in range(2):
        g.need([('V', x, f)])
        e(f"{MF32} {vr(vO,16)}, {vr(FR[(x+3)%6]+4*f,4)}, {vr(pbase(ORD[x])+4*f,4)}, " + ("0" if (x == 0 and f == 0) else vr(vO, 16)))
    if x + 6 < 9: vread(x+6)
rowsum(); e("s_nop 7"); e("s_branch LB_norm")
g.lab("LB_nb")
for rho in range(16): e(f"v_mov_b32 v{240+rho}, {f32(-BIG)}")
e(f"s_sub_u32 s{sTH}, 8, s{sW}"); e("s_branch LB_nbr")
g.L = sv
TR = [136, 152, 168, 184]; NM = 200; KR = [216, 224, 232, 112]; NB = 240
def kr(x):
    for f in range(2): g.lds(f"ds_read_b128 {vr(KR[x%4]+4*f,4)}, v{vKA} offset:{ORD[x]*4096+f*512}", ('K', x, f))
def vr_(x):
    for f in range(2): g.lds(f"ds_read_b128 {vr(FR[x%6]+4*f,4)}, v{vVA} offset:{ORD[x]*4096+2048+f*1024}", ('V', x, f))
def smf(x, f):
    t = ORD[x]; d = vr(TR[x%4], 16)
    g.need([('K', x, f), ('Q', f)])
    ab = f"{vr(KR[x%4]+4*f,4)}, {vr(vQ+4*f,4)}"
    if f == 1:
        e(f"{MF32} {d}, {ab}, {d}")
        if x + 4 < 9: kr(x+4)
        return
    if t < 8:
        e(f"s_cmp_gt_u32 s{sTH}, {t}"); e(f"s_cbranch_scc1 LB_m{t}")
        g.tail2 += [f"LB_m{t}:", f"    {MF32} {d}, {ab}, {vr(NB,16)}", f"    s_branch LB_n{t}"]
    e(f"{MF32} {d}, {ab}, " + ("0" if x < 2 else vr(NM, 16)))
    if t < 8: g.lab(f"LB_n{t}")
def pvf(x, f):
    g.need([('V', x, f)])
    e(f"{MF32} {vr(vO,16)}, {vr(FR[x%6]+4*f,4)}, {vr(TR[x%4]+4*f,4)}, " + ("0" if (x == 0 and f == 0) else vr(vO, 16)))
    if f == 1 and x + 6 < 9: vr_(x+6)
def pack(b):
    for r in range(8): e(f"v_cvt_pk_bf16_f32 v{b+r}, v{b+2*r}, v{b+2*r+1}")
g.q = []
for f in range(2): g.lds(f"ds_read_b128 {vr(vQ+4*f,4)}, v{vQA} offset:{f*512}", ('Q', f))
for x in range(4): kr(x)
e(f"s_mov_b32 s{sTH}, 0"); e(f"s_cmp_eq_u32 s{sRB}, 0"); e("s_cbranch_scc1 LB_nb"); g.lab("LB_nbr")
MK = TR[3]; PM = 72
e(f"v_and_b32 v{vM}, 31, v{L}"); e(f"v_lshlrev_b32 v{vM}, v{vM}, 2".replace(f"v{vM}, v{vM}, 2", f"v{vM}, v{vM}, v{vM+1}") if False else f"v_mov_b32 v{vM+1}, 2")
e(f"v_lshlrev_b32 v{vM}, v{vM}, v{vM+1}"); e(f"v_add_u32 v{vM}, -1, v{vM}")
e(f"v_lshrrev_b32 v{vM+1}, 5, v{L}"); e(f"v_lshlrev_b32 v{vM+1}, 2, v{vM+1}"); e(f"v_lshrrev_b32 v{vM}, v{vM+1}, v{vM}")
e(f"s_mov_b32 s{sK}, 0xffff")
event(0)
smf(0, 0); smf(1, 0)
for rho in range(16): e(f"v_bfe_i32 v{MK+rho}, v{vM}, {8*(rho>>2)+(rho&3)}, 1")
smf(0, 1); smf(1, 1)
for x in range(3): vr_(x)
for j in range(8): e(f"v_bfi_b32 v{PM+j}, s{sK}, v{MK+2*j}, v{MK+2*j+1}")
event(1)
b = TR[1]
for rho in range(16): e(f"v_bfi_b32 v{b+rho}, v{MK+rho}, v{b+rho}, v{TR[0]+rho}")
for r in range(0, 16, 2):
    k = (r >> 1) & 1
    e(f"v_max_f32 v{vM+k}, v{b+r}, v{b+r+1}" if r < 4 else f"v_max3_f32 v{vM+k}, v{vM+k}, v{b+r}, v{b+r+1}")
negmax()
for rho in range(16): e(f"v_mov_b32 v{NM+rho}, v{vM}")
for r in range(0, 16, 2):
    e(f"v_pk_add_f32 {vr(b+r,2)}, {vr(b+r,2)}, {vr(vM,2)}")
    if r == 2: smf(2, 0)
event(2)
for r in range(16):
    e(f"v_exp_f32 v{b+r}, v{b+r}")
    if r == 1: smf(2, 1)
    if r == 6: smf(3, 0)
    if r == 11: smf(3, 1)
for x in range(3, 6): vr_(x)
sums(b, True); pack(b)
for j in range(8): e(f"v_bfi_b32 v{TR[0]+j}, v{PM+j}, 0, v{b+j}")
for j in range(8): e(f"v_and_b32 v{b+j}, v{PM+j}, v{b+j}")
stamp('sph')
for x in range(2, 9):
    b = TR[x % 4]; event(x+1)
    if OPT['aprio'] == 3:
        if x % 2 == 0: yprio(x)
        else: e("s_setprio 0")
    mf = ([('p', 0, 0), ('p', 0, 1)] if x == 2 else []) + [('p', x-1, 0), ('p', x-1, 1)] + ([('s', x+2, 0), ('s', x+2, 1)] if x + 2 < 9 else [])
    pos = {6: [1, 5, 9, 13, 18, 26], 4: [1, 6, 11, 18], 2: [1, 8]}[len(mf)]
    ins = [f"v_exp_f32 v{b+r}, v{b+r}" for r in range(16)]
    sv = g.L; g.L = []; sums(b, False); pack(b); ins += [l.strip() for l in g.L]; g.L = sv
    for i, l in enumerate(ins):
        e(l)
        while mf and pos[0] == i:
            k, xx, f = mf.pop(0); pos.pop(0); (pvf if k == 'p' else smf)(xx, f)
e("s_nop 1"); pvf(8, 0); pvf(8, 1)
rowsum()
e(f"v_cmp_ngt_f32 vcc, {f32(2.0**OPT['lthr'])}, v{vSUM}"); e("s_nop 1"); e("s_cmp_lg_u64 vcc, 0"); e("s_branch LB_exact" if OPT['ffb'] else "s_cbranch_scc1 LB_exact")
g.lab("LB_norm")
e(f"v_rcp_f32 v{vSUM}, v{vSUM}")
e(f"s_lshl_b32 s{sT}, s{sRB}, 4"); e(f"s_lshl_b32 s{sT+1}, s{sW}, 1"); e(f"s_add_u32 s{sT}, s{sT}, s{sT+1}")
e(f"s_lshl_b32 s{sT+1}, s{cNT}, 10"); e(f"s_add_u32 s{sT+1}, s{sT+1}, s{cAK}"); e(f"s_add_u32 s{sT+1}, s{sT+1}, {56*512}")
if OPT['aprio']: e("s_setprio 0")
stamp('pv')
if OPT['aearly']: e(f"s_cmp_eq_u32 s{sOK+1}, 1"); e("s_cbranch_scc1 LC_haveA")
e("s_waitcnt vmcnt(0)"); tsL(); e("s_cbranch_scc0 LC_slowH")
g.lab("LC_goH")
g.v = []
for k in range(4): c_aload(0, k)
g.lab("LC_haveA")
assert not OPT['aearly'] or (max(OPT['dpos'][:NPRE]) <= OPT['hq2'] and OPT['hq'] <= OPT['hq2'] + 2 and len(OPT['hpos']) <= 4)
for r in range(16): e(f"v_mul_f32 v{vO+r}, v{vO+r}, v{vSUM}")
for r in range(8): e(f"v_cvt_pk_bf16_f32 v{vO+8+7-r}, v{vO+14-2*r}, v{vO+15-2*r}")
dstore([f"buffer_store_dwordx4 {vr(vO+8+4*f,4)}, v{vOA}, {sr(sWS,4)}, s{sT+1} offen offset:{f*512}" for f in range(2)])
stamp('attn')
g.v += ['st', 'st']
e(f"v_bfe_u32 v{vT}, v{L}, 2, 3"); e(f"v_lshrrev_b32 v{vT+1}, 5, v{L}"); e(f"v_lshl_add_u32 v{vT+1}, v{vT+1}, 4, v{vT}")
e(f"v_lshlrev_b32 v{vT+1}, 8, v{vT+1}"); e(f"v_lshl_add_u32 v{vT+1}, v{vT}, 5, v{vT+1}")
e(f"v_and_b32 v{vT}, 3, v{L}"); e(f"v_lshl_add_u32 v{vT+1}, v{vT}, 3, v{vT+1}")
e(f"s_lshl_b32 s{sT}, s{cQ}, 6"); e(f"v_xor_b32 v{vT+1}, s{sT}, v{vT+1}"); e(f"v_add_u32 v{cvRA}, {CRING}, v{vT+1}")
for u in range(1, 8): e(f"v_xor_b32 v{cvRA+u}, {32*u}, v{cvRA}")
for p in range(1, OPT['apre']):
    for k in range(4): c_aload(p, k)
e("s_barrier")
delay(2, 35)
VERS = {}
for q in range(4):
    b_ = OPT['bal'].get(q, [])
    hs = [(0, k) for k in range(14 + b_)] if isinstance(b_, int) else [(0, k) for k in range(14)] + [(qq - q, st) for qq, st in b_]
    VERS.setdefault(tuple(hs), []).append(q)
cov = sorted((q + dq, st) for hs, qs in VERS.items() for q in qs for dq, st in hs)
assert cov == [(q, st) for q in range(4) for st in range(14)], cov
VL = list(VERS.items())
for V, (hs, qs) in enumerate(VL[1:], 1):
    for q in qs: e(f"s_cmp_eq_u32 s{cQ}, {q}"); e(f"s_cbranch_scc1 LC_ver{V}")
V0 = list(g.v); CUR0 = dict(CUR)
for V, (hs, qs) in enumerate(VL):
    HS = list(hs); NH = len(HS); NS = NH + 4; NOWN = min(NH, 14); g.v = list(V0); CUR.update(CUR0)
    g.lab(f"LC_ver{V}")
    SEQ = []
    for s in range(NH):
        for ku in range(2):
            us = list(range(8)) if not (s == NH-1 and ku == 1) else [4,5,6,7,0,1,2,3]
            SEQ += [(s, ku, u, (0, 1)) for u in us]
    I1 = len(SEQ)
    SEQ += [(s, ku, u, (0, 1)) for s in range(NH, NS) for ku in range(2) for u in range(4, 8)]
    I2 = len(SEQ)
    SEQ += [(s, ku, u, (0, 1)) for s in range(NH, NS) for ku in range(2) for u in (2, 3)]
    I3 = len(SEQ)
    SEQ += [(s, ku, u, (0, 1)) for s in range(NH, NS) for ku in range(2) for u in (0, 1)]
    if OPT['csn']: SEQ = [(s, ku, u, m[::-1] if (i & 1) else m) for i, (s, ku, u, m) in enumerate(SEQ)]
    def wread(i):
        if i >= len(SEQ): return
        s, ku, u, _ = SEQ[i]
        for tr in range(2):
            g.lds(f"ds_read_b64_tr_b16 {vr(cvWF+4*(i&7)+2*tr,2)}, v{cvRA+u} offset:{(s%4)*16384+ku*8192+tr*2048}", ('W', i & 7))
    g.q = []
    for i in range(7): wread(i)
    stamp('loopC')
    cRD = 48
    cvO32, cvRF, cvOUT, cvG = 22, 23, 24, 25
    cRV = cvACC + 32
    def ldO(): e(f"buffer_load_dword v{cvPL}, v{cvO32}, {sr(sWS,4)}, s54 offen offset:{FL_O} sc1")
    def ldR(): e(f"buffer_load_dword v{cvPL}, v{cvRF}, {sr(sWS,4)}, s{sT+6} offen offset:{FL_P} sc1")
    def ldR2(): e(f"buffer_load_dword v{cvPL}, off, {sr(sWS,4)}, s{sT+5} offset:{FL_P2} sc1")
    def rloads(ii):
        for i in ii:
            e(f"s_add_u32 s{sT}, s{cRD+3}, {i*16384}")
            for f in range(2): e(f"buffer_load_dwordx4 {vr(cRV+8*(i-1)+4*f,4)}, v{vL16}, {sr(sWS,4)}, s{sT} offen offset:{f*1024} sc1")
    t0, t1 = vT, vT+1
    fill = {s: [] for s in range(NS)}
    fill[1] = [[x] for x in (
        f"v_and_b32 v{cvO32}, 31, v{L}", f"v_lshlrev_b32 v{cvO32}, 9, v{cvO32}", f"s_lshl_b32 s54, s{sRB}, 14", f"s_add_u32 s54, s54, {WS_FL:#x}",
        f"v_and_b32 v{t0}, 3, v{L}", f"v_max_u32 v{t0}, 1, v{t0}", f"v_lshlrev_b32 v{t1}, 1, v{t0}", f"v_and_b32 v{t1}, 4, v{t1}", f"v_xor_b32 v{t1}, 4, v{t1}",
        f"v_lshlrev_b32 v{t0}, 3, v{t0}", f"v_xor_b32 v{t0}, s{sLAM}, v{t0}", f"v_lshl_add_u32 v{cvRF}, v{t0}, 9, v{t1}",
        f"s_mov_b32 s{sT+6}, {WS_FL:#x}", f"s_mov_b32 s{sDN}, 0", f"s_mov_b32 s{sOK+1}, 0")]
    fill[2] = [[x] for x in (
        f"s_lshl_b32 s{sT}, s{sRB}, 3", f"s_add_u32 s{sT}, s{sT}, s{cNT}", f"s_lshl_b32 s{sT}, s{sT}, 18", f"s_lshl_b32 s{sT+1}, s{sW}, 11", f"s_add_u32 s{sT}, s{sT}, s{sT+1}", f"s_add_u32 s{sT}, s{sT}, {WS_PART:#x}")]
    for i in (1, 2, 3):
        fill[2] += [[x] for x in (f"s_xor_b32 s{sT+1}, s{cQ}, {i}", f"s_lshl_b32 s{sT+1}, s{sT+1}, 16", f"s_add_u32 s{sT+1}, s{sT+1}, s{sT}", f"s_add_u32 s{cRD+i-1}, s{sT+1}, {i*16384}")]
    fill[2] += [[x] for x in (f"s_lshl_b32 s{sT+1}, s{cQ}, 16", f"s_add_u32 s{cRD+3}, s{sT+1}, s{sT}",
        f"s_lshl_b32 s{sT}, s{sRB}, 19", f"s_lshl_b32 s{sT+1}, s{sW}, 16", f"s_add_u32 s{sT}, s{sT}, s{sT+1}",
        f"s_lshl_b32 s{sT+1}, s{cNT}, 8", f"s_add_u32 s{sT}, s{sT}, s{sT+1}", f"s_lshl_b32 s{sT+1}, s{cQ}, 6",
        f"s_add_u32 s{cRD+4}, s{sT}, s{sT+1}", f"s_add_u32 s39, s{cRD+4}, 32768",
        f"v_and_b32 v{cvOUT}, 15, v{L}", f"v_lshlrev_b32 v{cvOUT}, 11, v{cvOUT}", f"v_bfe_u32 v{t0}, v{L}, 4, 1", f"v_lshl_add_u32 v{cvOUT}, v{t0}, 5, v{cvOUT}",
        f"v_lshrrev_b32 v{t0}, 5, v{L}", f"v_lshl_add_u32 v{cvOUT}, v{t0}, 4, v{cvOUT}")]
    send = {1: [], 2: [], 3: []}
    for i in (1, 2, 3):
        d = cvPT + 8*(i-1)
        for k in range(4):
            a = cvACC + 16*i + 4*k
            send[i] += [[f"v_cvt_pk_bf16_f32 v{d+2*k}, v{a}, v{a+1}", f"v_cvt_pk_bf16_f32 v{d+2*k+1}, v{a+2}, v{a+3}"]]
            if k & 1: send[i] += [[f"@{'T' if i == 1 else 'S'} buffer_store_dwordx4 {vr(d+4*(k>>1),4)}, v{vL16}, {sr(sWS,4)}, s{cRD+i-1} offen offset:{(k>>1)*1024} sc1"]]
    pa = [(s, k) for s in range(OPT['apre'], NS) for k in range(4)]
    pd = [(s, k) for s in range(NPRE, NS) for k in range(2)]
    cvG2 = 128
    cvGc = 130
    def gload():
        e(f"v_and_b32 v{t0}, 7, v{L}"); e(f"v_bfe_u32 v{t1}, v{L}, 3, 1"); e(f"v_lshlrev_b32 v{t1}, 9, v{t1}"); e(f"v_lshl_add_u32 v{t0}, v{t0}, 2, v{t1}")
        e(f"s_lshl_b32 s{sT}, s{sW}, 11"); e(f"s_add_u32 s{sT}, s{sT}, s54")
        for k in range(2): g.vm(f"buffer_load_dword v{cvG2+k}, v{t0}, {sr(sWS,4)}, s{sT} offen offset:{1024*k} sc1", 'gv')
    fill[NH-1] = [["@G"]]
    for k in range(2):
        r = cvG2 + k
        fill[NH-1] += [[f"v_max_f32 v{cvGc+k}, {f32(2.0**-60)}, v{r}"], [f"v_sub_f32 v{r}, 1.0, v{r}"], [f"v_cvt_pk_bf16_f32 v{r}, v{r}, v{r}"], [f"v_and_b32 v{r}, 0xffff0000, v{r}"],
                       [f"v_rcp_f32 v{t0}, v{cvGc+k}", "s_nop 0"], [f"v_mul_f32 v{r}, v{r}, v{t0}"]]
    def rescale(u, mf):
        a = cvACC + 8*u + 4*mf
        if OPT['dbg'] & 2:
            for r in range(4): e(f"v_mul_f32 v{a+r}, v{a+r}, v{cvG2+mf}")
            return
        for r in (0, 2): e(f"v_pk_mul_f32 {vr(a+r,2)}, {vr(a+r,2)}, {vr(cvG2,2)} op_sel:[0,{mf}] op_sel_hi:[1,{mf}]")
    WIN = [[16, 31, fill[1]], [32, 47, fill[2]], [16*(NH-1), 16*(NH-1)+11, fill[NH-1]], [I2+1, I2+8, send[2]+send[3]], [I3+1, I3+4, send[1]]]
    for w in WIN: w.append(len(w[2]))
    vis = 0; freed = -1
    def nafter(tag): return min(15, len(g.v) - 1 - max(i for i, t in enumerate(g.v) if t == tag)) if tag in g.v else min(15, len(g.v))
    for i, (s, ku, u, mfs) in enumerate(SEQ):
        if i == I1: stamp('endH')
        if i == I3: stamp('p3')
        cur = min(s, NH) if i >= I1 else s
        for idx, mf in enumerate(mfs):
            k = 2*ku + mf; a = cvACC + 8*u + 4*mf
            g.need([('W', i & 7)], [('a', s, k)])
            e(f"{MF16} {vr(a,4)}, {vr(cvWF+4*(i&7),4)}, {vr(cvAR+16*((s+1)%D)+4*k,4)}, " + ("0" if i < 8 else vr(a,4)))
            if I1 - 4 <= i < I1 + 4: rescale(SEQ[i-4][2], mf)
            if idx == 0:
                if i + 7 < len(SEQ) and SEQ[i+7][0] > vis:
                    vis = SEQ[i+7][0]
                    g.need([('W', k) for k in range(8)] if vis <= NH else [], [('d', vis)] + (['st'] if vis == 2 else [])); e("s_barrier")
                    if vis == 2:
                        e(f"s_cmp_lg_u32 s{sW}, 0"); e(f"s_cbranch_scc1 LC_nof1{V}")
                        one_lane(lambda: e(f"buffer_store_dword v{vCN}, off, {sr(sWS,4)}, s{sT+7} offset:{FL_O} sc1"))
                        g.lab(f"LC_nof1{V}")
                wread(i+7)
                nxt = None
                if i % 2 == 0 or i >= I1:
                    okd = pd and pd[0][0] <= (vis + 3 if pd[0][0] == NS-1 else cur + 3); oka = pa and pa[0][0] <= cur + D - 1
                    if okd and (not oka or pd[0][0] <= pa[0][0] and (i % 16 % 6 == 2 or pd[0][0] < pa[0][0])): nxt = 'd'
                    elif oka: nxt = 'a'
                    if nxt == 'd' and pd[0][1] == 0: c_m0(pd[0][0])
            for lo, hi, fl, n0 in WIN:
                if lo <= i <= hi:
                    frac = (i - lo + (idx+1)/len(mfs)) / (hi - lo + 1)
                    while fl and (n0 - len(fl)) < n0 * frac - 1e-9:
                        for x in fl.pop(0):
                            if x.startswith("@S "): g.vm(x[3:], 'snd')
                            elif x.startswith("@T "): g.vm(x[3:], 'snd2')
                            elif x == "@G": g.need([], ['gv'])
                            else: e(x)
            if idx == len(mfs) - 1:
                if nxt == 'd': c_dma(*pd.pop(0))
                elif nxt == 'a':
                    if pa[0] == (NOWN, 0):
                        g.need([], ['opoll']); tsL(); e(f"s_cbranch_scc0 LC_slowO{V}"); g.lab(f"LC_goO{V}"); gload()
                    c_aload(*pa.pop(0))
                if i == 16*(NOWN - D - 1) + 1: ldO(); g.v.append('opoll')
                if i >= I2 + 11 and (i - I2) % 4 == 3: trysig(nafter('snd'), CNT2+4, 0, FL_P, force=(i == len(SEQ)-1))
                if i >= I3 + 9 and (i - I3) % 4 == 1: trysig(nafter('snd2'), CNT2+8, 0, FL_P2, sDN=sOK+1)
                if i == I3 + OPT['rp']: ldR(); g.v.append('rpoll')
    assert not pa and not pd and not any(w[2] for w in WIN)
    if V < len(VL) - 1: e("s_branch LC_done")
    sv = g.L; g.L = g.tail
    g.lab(f"LC_slowO{V}"); spin(f"LC_spinO{V}", ldO, tsL, sT+3); e(f"s_branch LC_goO{V}")
    g.L = sv
g.lab("LC_done")
sv = g.L; g.L = g.tail
g.lab("LC_slowH"); spin("LC_spinH", ldH, tsL, sT+3); e("s_branch LC_goH")
g.L = sv
delay(3, 12)
stamp('endC')
trysig(nafter('snd2'), CNT2+8, 0, FL_P2, force=True, sDN=sOK+1)
e(f"s_mov_b32 s{sT+5}, 1"); e(f"s_mov_b32 s{sT+3}, {SPIN:#x}")
e(f"v_mov_b32 v{vT+4}, 0x3f80"); e(f"v_mov_b32 v{vT+5}, 0x3f800000")
g.lab("LC_rl")
e("s_waitcnt vmcnt(0)"); e(f"v_cmp_eq_u32 vcc, 1, v{cvPL}"); e(f"s_sub_u32 s{sT+3}, s{sT+3}, 1"); e(f"s_cselect_b32 s{sT+1}, 15, 0")
e(f"s_or_b32 s{sT+1}, s{sT+1}, vcc_lo"); e(f"s_andn2_b32 s{sT+1}, s{sT+1}, s{sT+5}"); e(f"s_and_b32 s{sT+1}, s{sT+1}, 15"); e(f"s_or_b32 s{sT+5}, s{sT+5}, s{sT+1}")
for i in (1, 2, 3):
    e(f"s_bitcmp1_b32 s{sT+1}, {i}"); e(f"s_cbranch_scc0 LC_rn{i}"); rloads((i,)); g.lab(f"LC_rn{i}")
e(f"s_cmp_eq_u32 s{sT+5}, 15"); e("s_cbranch_scc1 LC_rd")
if OPT['rsl']: e(f"s_sleep {OPT['rsl']}")
ldR(); e("s_branch LC_rl")
g.lab("LC_rd")
e("s_waitcnt vmcnt(0)")
for i in (2, 3, 1):
    d = cRV + 8*(i-1)
    for r in range(16): e(f"v_dot2_f32_bf16 v{cvACC+r}, v{d+(r>>1)}, v{vT+4+(r&1)}, v{cvACC+r}")
e("s_nop 2")
for mf in range(2):
    x = cvACC + 4*mf; y = x + 8; d = cvPT + 24 + 4*mf
    for r in range(4): e(f"v_mul_f32 v{x+r}, v{cvGc+mf}, v{x+r}"); e(f"v_mul_f32 v{y+r}, v{cvGc+mf}, v{y+r}")
    if OPT['pscale']:
        for r in range(4): e(f"v_mul_f32 v{x+r}, {f32(OPT['pscale'])}, v{x+r}"); e(f"v_mul_f32 v{y+r}, {f32(OPT['pscale'])}, v{y+r}")
    if OPT['perr'] and mf == 0:
        e(f"s_or_b32 s{sT}, s2, s{sW}"); e(f"s_cmp_eq_u32 s{sT}, 0"); e(f"s_cselect_b32 s{sT}, {f32(OPT['perr'])}, 0")
        e("s_mov_b64 exec, 1"); e(f"v_add_f32 v{x}, s{sT}, v{x}"); e("s_mov_b64 exec, -1")
    e(f"v_cvt_pk_bf16_f32 v{d}, v{x}, v{x+1}"); e(f"v_cvt_pk_bf16_f32 v{d+1}, v{x+2}, v{x+3}")
    e(f"v_cvt_pk_bf16_f32 v{d+2}, v{y}, v{y+1}"); e(f"v_cvt_pk_bf16_f32 v{d+3}, v{y+2}, v{y+3}")
    e("s_nop 1")
    e(f"v_permlane16_swap_b32 v{d}, v{d+2}"); e(f"v_permlane16_swap_b32 v{d+1}, v{d+3}")
    e(f"buffer_store_dwordx4 {vr(d,4)}, v{cvOUT}, {sr(cOUT,4)}, s{cRD+4 if mf == 0 else 39} offen {OPT['ost']}")
g.lab("LC_fin")
stamp('fin')
if OPT['stamp']:
    e(f"s_lshl_b32 s{sT}, s2, 3"); e(f"s_add_u32 s{sT}, s{sT}, s{sW}"); e(f"s_lshl_b32 s{sT}, s{sT}, 7"); e(f"s_add_u32 s{sT}, s{sT}, {WS_STAMP:#x}")
    e(f"v_lshlrev_b32 v{vT}, 2, v{L}"); e("s_mov_b32 exec_hi, 0")
    e(f"buffer_store_dword v0, v{vT}, {sr(sWS,4)}, s{sT} offen")
    if OPT['stamp'] == 2:
        e(f"v_readlane_b32 s{sT}, v0, 16"); e(f"s_not_b32 s{sT}, s{sT}"); e(f"v_writelane_b32 v0, s{sT}, 16")
        e(f"v_subrev_u32 v{vT}, 60, v{vT}"); e(f"s_mov_b32 exec_lo, {((1<<len(SN))-1)<<16:#x}")
        e(f"buffer_atomic_umax v0, v{vT}, {sr(sDBG,4)}, 0 offen sc1")
if OPT['fixt']:
    if OPT['fixx'] >= 0: e("s_and_b32 s90, s2, 7"); e(f"s_cmp_lg_u32 s90, {OPT['fixx']}"); e("s_cbranch_scc1 L_end")
    g.lab("LF_spin"); e("s_memrealtime s[88:89]"); e("s_waitcnt lgkmcnt(0)"); e("s_sub_u32 s88, s88, s86"); e(f"s_cmp_lt_u32 s88, {OPT['fixt']}"); e("s_cbranch_scc1 LF_spin")
g.lab("L_end")
e("s_endpgm")
g.L += g.tail + g.tail2 + ['LZ_end:']
if OPT['nobar'] or OPT['nodma'] or OPT['nolds'] or OPT['noadv']:
    o = []; inl = False
    for l in g.L:
        if l.startswith('LA_loop') or l.startswith('LC_loop'): inl = True
        if 'LA_h1_' in l or l.startswith('LC_done'): inl = False
        if inl and OPT['nobar'] and 's_barrier' in l: continue
        if inl and OPT['nodma'] and 'buffer_load' in l: continue
        if inl and OPT['nolds'] and 'ds_read' in l: continue
        if inl and OPT['noadv'] and any(f's_add_u32 s{k}, s{k},' in l for k in list(range(sOW, sOW+5)) + [sKX]): continue
        o.append(l)
    g.L = o

DOC = ["; " + l for l in '''
One persistent launch, 256 workgroups x 8 waves, one per CU.  Workgroup = (row block rb of 256 rows, head h).
 A: [q k v | gate | up] = x[256 rows] @ W[:, 96+112+112 cols]; LDS-DMA staging, 16x16x32 MFMA, L2 prefetch of later tiles.
    The last K trip is peeled; K/V publication and silu(gate)*up are folded under its MFMAs.
 B: sliding-window attention of head h (own K/V from LDS, previous row block's K/V from the workspace).
    Softmax shift = max of the diagonal tile; if the row sum shows that shift was too small, the wave redoes the
    block with the true row max (LB_exact).
 C: out tile [256 x 128] over one quarter of K of [h | o] @ [w_down ; wo]; accumulators are scaled by (1-g)/g between
    the h and o parts, the four quarters are summed through the workspace, times g at the end.
Hand-offs: write-through (sc1) stores, drained, counted in LDS, then an sc1 flag in the producer's workspace record;
records are cleared by their owner and acknowledged on d_debug counters before any flag is trusted.
Generated by a script; every spin is bounded.
'''.strip().split("\n")]
hdr = [l.rstrip('\n') for l in open("cdna_kernels/%s.s.ref" % NAME)]
hdr = [l for l in hdr if l.startswith(';') and '@launch' not in l]
out = hdr + [f"; @launch grid=(256,1,1) block=(512,1,1) lds={LDS_BYTES}"] + DOC + ['.amdgcn_target "amdgcn-amd-amdhsa--gfx950"', ".text"] + g.L
out += ['.section .rodata,"a"', ".p2align 6", f""".amdhsa_kernel {KN}
  .amdhsa_next_free_vgpr 256
  .amdhsa_next_free_sgpr 102
  .amdhsa_accum_offset 256
  .amdhsa_group_segment_fixed_size 0
  .amdhsa_kernarg_size 88
  .amdhsa_user_sgpr_count 2
  .amdhsa_user_sgpr_kernarg_segment_ptr 1
  .amdhsa_system_sgpr_workgroup_id_x 1
.end_amdhsa_kernel"""]
out.insert(0, "; stamps: " + ",".join(SN)) if OPT['stamp'] else None
open(sys.argv[1], "w").write("\n".join(out) + "\n")
import hazard
errs = hazard.check("\n".join(g.L))
print("\n".join(errs) if errs else "hazard check clean")
```

```python
import sys, struct
NAME = "gated_mix__sliding_block__swiglu_ffn__prompt"
KN = NAME + "_kernel"
OPT = dict(stamp=0, NP=16, jbx=5, xrd=[0,0,1,1], xpos=[2,4,6,8], wpos=[1,3,5,7,9], pfpos=19, stag=0, PD=3, pf=1, CB=1, defer=0, slp=2, touch=0, pfnt=0, wnt=0, bprio=0, amap=3, fast=0, D=6, E=2, LD=3, rq1=9, pp=1, npre=3, apre=1, hpos=[0,0,0,0], dpos=[4,5,6,7], lthr=64, ffb=0, fixt=0, pfl='', pfop='dword', fixx=-1, fr=5, hx=0, fnt=1, cpf=3, cpf0=1, aprio=3, pvs=1, w1=2, csn=1, kq=34, rp=0, rsl=1, ginc=1, astag=1, pst=0, w1e=1, perr=0, dly=0, pscale=0, bal={}, tlb=0, aearly=1, hq2=7, xfl='', wfl='', cfl='', ost='nt', h0=2, nopk=0, pf2=0, wdst=4, wdn=24, otail=0, gl=2, p3=0, rc=24, dbg=2, hq=9, early1=2, snake=1, tst=0, wshift=0, noadv=0, aflag='sc1', kvfast=0, rfast=0, pfast=1, wb=0, pre=0, cmap=1, m16=288*512, c3=0, kvs1=1, cprio=0, AB=0,
           noX=0, noW=0, noA=0, noW2=0, prio=0, kvs=2, nobar=0, nodma=0, nolds=0)
for a in sys.argv[2:]:
    k, v = a.split('='); assert k in OPT, k
    OPT[k] = eval(v)
def f32(x): return "0x%08x" % struct.unpack('<I', struct.pack('<f', x))[0]
def vr(a, n=1): return f"v[{a}:{a+n-1}]" if n > 1 else f"v{a}"
def sr(a, n=1): return f"s[{a}:{a+n-1}]" if n > 1 else f"s{a}"
NV = [0]
class Gen:
    def __init__(s): s.L = []; s.q = []; s.v = []; s.tail = []; s.tail2 = []
    def e(s, t): s.L.append("    " + t)
    def lab(s, t): s.L.append(t + ":")
    def lds(s, t, tag): s.e(t); s.q.append(tag)
    def vm(s, t, tag): s.e(t); s.v.append(tag); NV[0] += 1
    def need(s, tags=(), vt=()):
        w = []
        idx = [i for i, t in enumerate(s.v) if t in vt]
        if idx:
            n = len(s.v) - 1 - max(idx); s.v = s.v[max(idx)+1:]; assert n < 64
            w.append(f"vmcnt({n})")
        idx = [i for i, t in enumerate(s.q) if t in tags]
        if idx:
            n = len(s.q) - 1 - max(idx); s.q = s.q[max(idx)+1:]
            w.append(f"lgkmcnt({min(n,15)})")
        if w: s.e("s_waitcnt " + " ".join(w))
    def steady(s, body):
        sv = s.L; s.L = []; s.q = []; s.v = []
        body(); body(); r = (list(s.q), list(s.v)); s.L = sv
        return r
g = Gen(); e = g.e
M16 = OPT['m16']; A_BYTES = 128*M16
WS_KV = 0x1400000; WS_PART = 0x1C00000; WS_G = 0x2C00000; WS_FL = 0x2C10000; WS_STAMP = 0x3000000; WS_SIZE = 0x4000000
FL_KV, FL_H, FL_O, FL_P, FL_P2 = 128, 256, 260, 384, 388
sFAST = 34+1
LOG2E = 1.4426950408889634
SPIN = 0x8000
MF16 = "v_mfma_f32_16x16x32_bf16"; MF32 = "v_mfma_f32_32x32x16_bf16"
sW, sRB, sH, sMW, sNW = 3, 4, 5, 6, 7
sX, sA, sB, sQ, sWS, sDBG, sPF = 8, 12, 16, 20, 24, 28, 32
sKX, sOW, sMWd, sINCA, sMX, sCNT, sKXE, sPFO, sPFI, sLAM, sOK, sGO = 36, 37, 42, 47, 48, 49, 50, 51, 52, 53, 54, 55
sT = 56; sP = 64; sST = 86
pX, pQKV, pWO, pWG, pWU, pWD, pGW, pOUT, pDBG, pWSp = sP, sP+2, sP+4, sP+8, sP+10, sP+12, sP+14, sP+16, sP+18, sP+20
sFAST = 101
sK = sP+6
vL, vL16, vPF, vDX, vDA, vDB, vXR, vWG, vWQ, vDUM, vCN, vGV, vT = 1, 2, 3, 4, 8, 9, 10, 12, 14, 18, 19, 20, 26
vWF, vXF, vACC = 44, 64, 96
L = vL
def ACC(j, i): return vACC + (4*j+i)*4
XSLOT = 32768; WBASE = 65536; HALF = 20480; WSLOT = 2*HALF; GOFF = 6144; UOFF = 6144+7168
LDS_BYTES = 163840; QLDS = 147456; QLDS3 = 92160; CNTLDS = 163832; CNT2 = 96256; GLDS = 163776; sGW = 96
UNITS = [['q0','q1','k0','k1','g0','u0','g1','u1','g2','u2'], ['v0','v1','g3','u3','g4','u4','g5','u5','g6','u6']]
def srd(d, p, size):
    e(f"s_mov_b32 s{d}, s{p}"); e(f"s_and_b32 s{d+1}, s{p+1}, 0xffff"); e(f"s_mov_b32 s{d+2}, {size:#x}"); e(f"s_mov_b32 s{d+3}, 0x20000")
SN = ['start','loopA','endA','ks','hdone','kvok','bar2','sph','hs','pv','attn','loopC','endH','rs','endC','fin']
SN = ['start','loopA','ks','endA','hdone','kvok','bar2','sph','hs','pv','loopC','endH','rs','endC','rs2','fin']
if OPT['pst']: SN = ['start','karg','x0','w0','setup','w1','land','bar','loopA','fin']
if OPT['tst']: SN = ['start','loopA'] + [f't{i}' for i in range(7)] + ['endA', 'fin']
def stamp(name):
    if OPT['tst'] and name not in ('loopA', 'endA', 'fin'): return
    if name not in SN: return
    idx = SN.index(name); assert idx < 16
    if not OPT['stamp']: return
    e(f"s_memtime s[{sST}:{sST+1}]"); e(f"s_memrealtime s[{sST+2}:{sST+3}]"); e("s_waitcnt lgkmcnt(0)")
    e(f"v_writelane_b32 v0, s{sST}, {idx}"); e(f"v_writelane_b32 v0, s{sST+2}, {idx+16}")
def pstamp(k):
    if OPT['stamp']: e(f"s_memtime s[{92+2*k}:{93+2*k}]")
NDS = [0]
def dstore(lines, on=True):
    if True:
        for l in lines: e(l + " sc1")
        return
    k = NDS[0]; NDS[0] += 1
    e(f"s_cmp_eq_u32 s{sFAST}, 1"); e(f"s_cbranch_scc0 LS_s{k}")
    for l in lines: e(l)
    g.lab(f"LS_r{k}")
    g.tail2 += [f"LS_s{k}:"] + ["    " + l + " sc1" for l in lines] + [f"    s_branch LS_r{k}"]
def delay(k, bit):
    if not (OPT['dly'] >> k) & 1: return
    e(f"s_and_b32 s87, s2, 0x2f"); e(f"s_cmp_lg_u32 s87, {bit}"); e(f"s_cbranch_scc1 LD_{k}")
    for i in range(12): e("s_sleep 127")
    g.lab(f"LD_{k}")
def one_lane(f):
    e("s_mov_b64 exec, 1"); f(); e("s_mov_b64 exec, -1")

def a_wread(nw, n, tj=None):
    n %= 40; t = n // 10; j = n % 10
    if tj: t, j = tj
    sig = (t+1) >> 1; half = (t+1) & 1; slot = sig & 1; un = UNITS[nw][j]
    for tr in range(2):
        if un[0] in 'qkv':
            a = vWQ + 2*slot + int(un[1]); off = half*HALF + 'qkv'.index(un[0])*2048 + tr*512
        else:
            a = vWG + slot; off = half*HALF + (GOFF if un[0] == 'g' else UOFF) + tr*1792 + int(un[1])*32
        g.lds(f"ds_read_b64_tr_b16 {vr(vWF+4*(n%5)+2*tr,2)}, v{a} offset:{off}", ('W', n % 5))
def a_xread(i, t):
    t %= 4
    g.lds(f"ds_read_b128 {vr(vXF+16*(t&1)+4*i,4)}, v{vXR+(t&1)} offset:{(t>>1)*XSLOT+i*2048}", ('X', t & 1, i))
def a_m0(k, n, slot):
    if k == 'x': e(f"s_add_u32 m0, s{sMX}, {slot*XSLOT}")
    elif k == 'w': e(f"s_add_u32 m0, s{sMWd+n}, {slot*WSLOT}")
def a_op(k, n, slot, first=False):
    if k == 'x':
        g.vm(f"buffer_load_dwordx4 v{vDX+n}, {sr(sX,4)}, s{sKX} offen offset:{1024*n} {OPT['xfl']} lds", ('x', slot, n))
        if n == 3:
            e(f"s_add_u32 s{sKX}, s{sKX}, 128")
    elif k == 'w':
        d = [sA, sA, sB, sB, sQ][n]; v = vDA if n < 4 else vDB
        if first: e(f"s_cmp_lt_i32 s{sOW+n}, 0"); e(f"s_cbranch_scc1 LA_skipw{n}")
        g.vm(f"buffer_load_dwordx4 v{v}, {sr(d,4)}, s{sOW+n} offen" + (" nt" if (OPT['wnt'] & 1 or (first and OPT['fnt'])) else "") + f" {OPT['wfl']} lds", ('w', slot, n))
        if first: g.lab(f"LA_skipw{n}")
        e(f"s_add_u32 s{sOW+n}, s{sOW+n}, " + (f"s{sINCA}" if n < 4 else f"{64*6144}"))
    else:
        g.vm(f"buffer_load_{OPT['pfop']} v{vDUM}, v{vPF}, {sr(sPF,4)}, s{sPFO} offen {OPT['pfl']}" + (" nt" if OPT['wnt'] & 2 and NWCUR[0] == 0 else ""), ('p', 0, 0))
        e(f"s_add_u32 s{sPFO}, s{sPFO}, s{sPFI}")
def a_full(k, n, slot, first=False):
    a_m0(k, n, slot)
    if not first: e("s_nop 0")
    a_op(k, n, slot, first)
JBW = 6
def a_events(nw):
    ev = {}; st = OPT['stag']*nw
    for t in (1, 3):
        for n, o in enumerate(OPT['xpos']): assert 0 <= o+st < 20; ev.setdefault((t*10+OPT['jbx']+o+st) % 40, []).append(('x', n, t >> 1))
    for t in (0, 2):
        for n, o in enumerate(OPT['wpos']): assert 0 <= o+st < 20; ev.setdefault((t*10+JBW+o+st) % 40, []).append(('w', n, t >> 1))
        if OPT['pf']: ev.setdefault((t*10+JBW+OPT['pfpos']-st) % 40, []).append(('p', 0, 0))
    return ev
NWCUR = [0]
def a_body(nw):
    NWCUR[0] = nw
    ev = a_events(nw)
    for t in range(4):
        for j in range(10):
            n = t*10 + j; un = UNITS[nw][j]; evs = ev.get(n, [])
            for i in range(4):
                i2 = 3-i if (OPT['snake'] and j & 1) else i
                g.need([('W', n % 5), ('X', t & 1, i2)])
                a, b = vr(vWF+4*(n % 5), 4), vr(vXF+16*(t & 1)+4*i2, 4)
                if un[0] == 'v': a, b = b, a
                e(f"{MF16} {vr(ACC(j,i2),4)}, {a}, {b}, {vr(ACC(j,i2),4)}")
                if i == 0:
                    if t % 2 == 0 and j == JBW:
                        g.need([('W', k) for k in range(5)], [('w', 1-(t >> 1), k) for k in range(5)]); e("s_barrier")
                    if t % 2 == 1 and j == OPT['jbx']:
                        g.need([], [('x', 1-(t >> 1), k) for k in range(4)]); e("s_barrier")
                    a_wread(nw, n+4)
                if i == 1:
                    for ii in range(4):
                        if OPT['jbx'] + OPT['xrd'][ii] == j: a_xread(ii, t+1)
                    if evs: a_m0(*evs[0])
                if i == 2 and evs:
                    a_op(*evs[0])
                    for x in evs[1:]: a_full(*x)

def silu(jg, i, t, R):
    G = ACC(jg, i); U = ACC(jg+1, i)
    for r in range(0, 8, 2): e(f"v_pk_mul_f32 {vr(t+r,2)}, {vr(G+r,2)}, {sr(sK,2)}")
    for r in range(8): e(f"v_exp_f32 v{t+r}, v{t+r}")
    for r in range(0, 8, 2): e(f"v_pk_mul_f32 {vr(G+r,2)}, {vr(G+r,2)}, {vr(U+r,2)}")
    for r in range(0, 8, 2): e(f"v_pk_add_f32 {vr(t+r,2)}, {vr(t+r,2)}, s[94:95]")
    for r in range(8): e(f"v_rcp_f32 v{t+r}, v{t+r}")
    e("s_nop 0")
    for r in range(0, 8, 2): e(f"v_pk_mul_f32 {vr(G+r,2)}, {vr(G+r,2)}, {vr(t+r,2)}")
    for r in range(4): e(f"v_cvt_pk_bf16_f32 v{R+r}, v{G+2*r}, v{G+2*r+1}")
    e("s_nop 1")
    e(f"v_permlane32_swap_b32 v{R}, v{R+2}"); e(f"v_permlane32_swap_b32 v{R+1}, v{R+3}")
def pack2(j, i):
    a, b = ACC(j, i), ACC(j+1, i)
    e(f"v_cvt_pk_bf16_f32 v{a}, v{a}, v{a+1}"); e(f"v_cvt_pk_bf16_f32 v{a+1}, v{a+2}, v{a+3}")
    e(f"v_cvt_pk_bf16_f32 v{a+2}, v{b}, v{b+1}"); e(f"v_cvt_pk_bf16_f32 v{a+3}, v{b+2}, v{b+3}")
def spin(name, load, test, cnt):
    e(f"s_mov_b32 s{cnt}, {SPIN:#x}")
    g.lab(name)
    load(); e("s_waitcnt vmcnt(0)"); test()
    e(f"s_cbranch_scc1 {name}_ok")
    e(f"s_sub_u32 s{cnt}, s{cnt}, 1"); e(f"s_cbranch_scc1 {name}_ok")
    e(f"s_sleep {OPT['slp']}"); e(f"s_branch {name}")
    g.lab(name + "_ok")
NSIG = [0]
sDN, sHB, sFO = 100, 92, 101
vSG = 20
def trysig(n, ldsaddr, flagadd, flagoff, force=False, sDN=sDN):
    k = NSIG[0]; NSIG[0] += 1
    if force: e(f"s_cmp_eq_u32 s{sDN}, 0")
    else:
        e(f"s_getreg_b32 s{sFO}, hwreg(HW_REG_IB_STS)"); e(f"s_and_b32 s{sFO}, s{sFO}, 0xc0000f"); e(f"s_or_b32 s{sFO}, s{sFO}, s{sDN}"); e(f"s_cmp_le_u32 s{sFO}, {n}")
    e(f"s_cbranch_scc1 LG_s{k}"); g.lab(f"LG_r{k}")
    g.tail2 += [f"LG_s{k}:"] + ["    " + x for x in (
        f"v_mov_b32 v{vSG}, {ldsaddr}", f"s_mov_b32 s{sDN}, 0x10000", "s_mov_b64 exec, 1", f"s_waitcnt vmcnt({n})",
        f"ds_add_rtn_u32 v{vSG+1}, v{vSG}, v{vCN}", "s_waitcnt lgkmcnt(0)", f"v_readfirstlane_b32 s{sFO}, v{vSG+1}", "s_nop 1",
        f"s_cmp_lg_u32 s{sFO}, 7", f"s_cbranch_scc1 LG_x{k}", f"s_add_u32 s{sFO}, s{sT+7}, {flagadd}",
        f"buffer_store_dword v{vCN}, off, {sr(sWS,4)}, s{sFO} offset:{flagoff} sc1")] + [f"LG_x{k}:", "    s_mov_b64 exec, -1"]
    sv = g.L; g.L = g.tail2; stamp({FL_KV:'ks',FL_H:'hs',FL_P:'rs',FL_P2:'rs2'}[flagoff]); e(f"s_branch LG_r{k}"); g.L = sv
def gate_acc(X, W, t, one):
    return [[f"v_lshlrev_b32 v{t}, 16, v{X}"], [f"v_and_b32 v{t+1}, 0xffff0000, v{X}"], [f"v_lshlrev_b32 v{t+2}, 16, v{W}"],
            [f"v_and_b32 v{t+3}, 0xffff0000, v{W}"], [f"v_pk_mul_f32 {vr(t,2)}, {vr(t,2)}, {vr(t+2,2)}"], [f"v_cvt_pk_bf16_f32 v{t+4}, v{t}, v{t+1}"],
            [f"v_dot2_f32_bf16 v{t+5}, v{t+4}, v{one}, v{t+5}"]]
def gate_list(t, one):
    o = gate_acc(40, 41, t, one) + gate_acc(38, 39, t, one)
    o.append(["s_nop 1"])
    for m in ("quad_perm:[1,0,3,2] row_mask:0xf", "quad_perm:[2,3,0,1] row_mask:0xf", "row_half_mirror row_mask:0xf",
              "row_mirror row_mask:0xf", "row_bcast:15 row_mask:0xa", "row_bcast:31 row_mask:0xc"):
        o.append(["s_nop 1", f"v_add_f32_dpp v{t+5}, v{t+5}, v{t+5} {m} bank_mask:0xf"])
    o += [[f"v_cvt_pk_bf16_f32 v{t}, v{t+5}, v{t+5}", f"v_and_b32 v{t}, 0xffff0000, v{t}"], [f"v_mul_f32 v{t}, {f32(-LOG2E)}, v{t}", f"v_exp_f32 v{t}, v{t}", "s_nop 0"],
          [f"v_add_f32 v{t}, 1.0, v{t}", f"v_rcp_f32 v{t}, v{t}", "s_nop 0"], [f"v_cvt_pk_bf16_f32 v{t}, v{t}, v{t}", f"v_and_b32 v{t}, 0xffff0000, v{t}"],
          [f"s_lshl_b32 s{sT}, s{sW}, 2", f"s_add_u32 s{sT}, s{sT}, {GLDS}", f"v_mov_b32 v{t+1}, s{sT}"],
          ["s_mov_b32 exec_lo, 0", "s_brev_b32 exec_hi, 1", f"ds_write_b32 v{t+1}, v{t}", "s_mov_b64 exec, -1"]]
    return o

D = OPT['D']; NH = 14; OT = OPT['otail']; NT = 8 if OT else 4; NS = NH + NT
cA, cWt, cOUT, cWo, cX = 8, 12, 16, 32, 40
cAK, cWK, cWK2, cQ, cNT, cM0, cAK2 = 20, 21, 22, 23, 36, 37, 38
cvDW, cvA, cvPL, cvDW2, cvPA = 4, 6, 16, 20, 18
cvWF, cvAR, cvRA, cvOA, cvACC = 28, 60, 156, 176, 192
SLOT = [98304, 114688, 131072, 147456, 65536, 81920]; CNT3 = 0
CRING = 98304
def c_setup():
    e(f"s_lshr_b32 s{cQ}, s{sH}, 3"); e(f"s_and_b32 s{cNT}, s{sH}, 7")
    e(f"s_lshl_b32 s{sT}, s{cNT}, 8")
    e(f"s_lshl_b32 s{cWK}, s{sW}, 14"); e(f"s_add_u32 s{cWK}, s{cWK}, s{sT}")
    e(f"s_lshl_b32 s{cWK2}, s{sW}, {15 if OT else 14}"); e(f"s_add_u32 s{cWK2}, s{cWK2}, s{sT}")
    e(f"s_mul_i32 s{sT}, s{cQ}, {896*2048}"); e(f"s_add_u32 s{cWK}, s{cWK}, s{sT}")
    if OT: e(f"s_lshr_b32 s{sT}, s{cQ}, 1"); e(f"s_lshl_b32 s{sT}, s{sT}, 7")
    else: e(f"s_lshl_b32 s{sT}, s{cQ}, 19")
    e(f"s_add_u32 s{cWK2}, s{cWK2}, s{sT}")
    e(f"s_lshl_b32 s{cM0}, s{sW}, 11")
    srd(cWt, pWD, 0 if OPT['noW2'] else 3584*2048); srd(cWo, pWO, 0 if OPT['noW2'] else 1024*2048)
    srd(cA, pWSp, 0 if OPT['noA'] else A_BYTES); srd(cOUT, pOUT, 2048*2048)
    e(f"s_lshl_b32 s{sT}, s{sRB}, 4"); e(f"s_lshl_b32 s{cAK}, s{sW}, 1"); e(f"s_add_u32 s{sT}, s{sT}, s{cAK}")
    e(f"s_mul_i32 s{cAK}, s{sT}, {M16}"); e(f"s_add_u32 s{cAK2}, s{cAK}, {56*512}")
    e(f"s_mul_i32 s{sT}, s{cQ}, {72*512}"); e(f"s_add_u32 s{cAK}, s{cAK}, s{sT}")
    e(f"v_mov_b32 v{cvA}, v{vL16}"); e(f"v_add_u32 v{cvA+1}, {M16}, v{vL16}")
    e(f"v_lshrrev_b32 v{vT}, 4, v{vL}"); e(f"v_bfe_u32 v{vT+1}, v{vL}, 1, 3"); e(f"v_xor_b32 v{vT+1}, v{vT+1}, v{vT}")
    e(f"v_lshlrev_b32 v{vT}, 11, v{vT}"); e(f"v_lshl_add_u32 v{vT}, v{vT+1}, 5, v{vT}")
    e(f"v_and_b32 v{vT+1}, 1, v{vL}"); e(f"v_lshl_add_u32 v{cvDW}, v{vT+1}, 4, v{vT}")
    e(f"v_xor_b32 v{cvDW+1}, 128, v{cvDW}"); e(f"v_add_u32 v{cvDW+1}, 7168, v{cvDW+1}")
    e(f"v_and_b32 v{cvPA}, 7, v{L}"); e(f"v_lshlrev_b32 v{cvPA}, 9, v{cvPA}")
def c_m0(s): e(f"s_add_u32 m0, s{cM0}, {SLOT[s % 6]}")
HS = [(0, k) for k in range(14)]
CUR = {'a': 0, 'w': 0}
def c_dma(s, n):
    if s < NH:
        off = (HS[s][0]*896 + HS[s][1]*64)*2048
        if off != CUR['w']: e(f"s_add_u32 s{cWK}, s{cWK}, {(off-CUR['w']) & 0xffffffff:#x}"); CUR['w'] = off
        g.vm(f"buffer_load_dwordx4 v{cvDW+n}, {sr(cWt,4)}, s{cWK} offen offset:{n*1024} lds", ('d', s))
    else:
        g.vm(f"buffer_load_dwordx4 v{cvDW+n}, {sr(cWo,4)}, s{cWK2} offen offset:{n*1024} lds", ('d', s))
        if n == 1: e(f"s_add_u32 s{cWK2}, s{cWK2}, {64*2048}")
def c_aload(s, k):
    ku, mf = k >> 1, k & 1
    off = HS[s][0]*72*512 + HS[s][1]*2048 if s < NH else (14 + s - NH)*2048
    if not (0 <= off - CUR['a'] <= 2048): e(f"s_add_u32 s{cAK}, s{cAK}, {(off-CUR['a']) & 0xffffffff:#x}"); CUR['a'] = off
    g.vm(f"buffer_load_dwordx4 {vr(cvAR+16*((s+1)%D)+4*k,4)}, v{cvA+mf}, {sr(cA,4)}, s{cAK} offen offset:{off-CUR['a']+ku*1024} sc1", ('a', s, k))

g.L += [".globl " + KN, ".p2align 8", f".type {KN},@function"]
g.lab(KN)
e("s_cmp_ge_u32 s2, 256"); e("s_cbranch_scc1 L_end")
e(f"s_load_dwordx16 {sr(sP,16)}, s[0:1], 0"); e(f"s_load_dwordx4 {sr(sP+16,4)}, s[0:1], 64"); e(f"s_load_dwordx2 {sr(sP+20,2)}, s[0:1], 80")
if OPT['stamp']: e(f"s_memtime s[{sST+4}:{sST+5}]"); e(f"s_memrealtime s[{sST+6}:{sST+7}]")
if OPT['fixt']: e("s_memrealtime s[86:87]")
if OPT['cpf0']:
    e(f"s_getpc_b64 s[{sT}:{sT+1}]"); g.lab("LA_pc0")
    e(f"s_sub_u32 s{sT}, s{sT}, LA_pc0-{KN}"); e(f"s_subb_u32 s{sT+1}, s{sT+1}, 0")
    e(f"s_lshr_b32 s{sT+2}, s2, 3"); e(f"s_lshl_b32 s{sT+2}, s{sT+2}, 7")
    e(f"v_lshlrev_b32 v26, 12, v0"); e(f"v_add_u32 v26, s{sT+2}, v26")
    e(f"v_cmp_gt_u32 vcc, LZ_end-{KN}-4, v26"); e(f"v_mov_b32 v27, s{sT+1}"); e(f"s_and_saveexec_b64 s[{sT+2}:{sT+3}], vcc"); e("s_cbranch_execz LA_nopc")
    e(f"v_add_co_u32 v26, vcc, s{sT}, v26"); e("s_nop 1"); e(f"v_addc_co_u32 v27, vcc, 0, v27, vcc")
    e(f"global_load_dword v{vDUM}, v[26:27], off")
    g.lab("LA_nopc"); e("s_mov_b64 exec, -1")
e(f"v_lshrrev_b32 v{vT}, 6, v0"); e(f"v_and_b32 v{vL}, 63, v0"); e(f"v_readfirstlane_b32 s{sW}, v{vT}")
if OPT['amap'] == 0:
    e(f"s_lshr_b32 s{sRB}, s2, 5"); e(f"s_and_b32 s{sH}, s2, 7"); e(f"s_lshl_b32 s{sH}, s{sH}, 2")
    e(f"s_bfe_u32 s{sT}, s2, {(2<<16)|3:#x}"); e(f"s_add_u32 s{sH}, s{sH}, s{sT}")
elif OPT['amap'] == 1:
    e(f"s_and_b32 s{sRB}, s2, 7"); e(f"s_lshr_b32 s{sH}, s2, 3")
elif OPT['amap'] == 2:
    e(f"s_and_b32 s{sRB}, s2, 6"); e(f"s_lshr_b32 s{sT}, s2, 7"); e(f"s_add_u32 s{sRB}, s{sRB}, s{sT}")
    e(f"s_and_b32 s{sH}, s2, 1"); e(f"s_lshl_b32 s{sH}, s{sH}, 4"); e(f"s_bfe_u32 s{sT}, s2, {(4<<16)|3:#x}"); e(f"s_add_u32 s{sH}, s{sH}, s{sT}")
if OPT['amap'] == 3:
    e(f"s_and_b32 s{sRB}, s2, 4"); e(f"s_lshr_b32 s{sT}, s2, 6"); e(f"s_add_u32 s{sRB}, s{sRB}, s{sT}")
    e(f"s_and_b32 s{sH}, s2, 3"); e(f"s_lshl_b32 s{sH}, s{sH}, 3"); e(f"s_bfe_u32 s{sT}, s2, {(3<<16)|3:#x}"); e(f"s_add_u32 s{sH}, s{sH}, s{sT}")
e(f"s_and_b32 s{sMW}, s{sW}, 3"); e(f"s_lshr_b32 s{sNW}, s{sW}, 2")
e(f"s_lshl_b32 s{sLAM}, s{sRB}, 5"); e(f"s_add_u32 s{sLAM}, s{sLAM}, s{sH}")
e(f"v_lshlrev_b32 v{vL16}, 4, v{L}")
e(f"v_lshrrev_b32 v{vT}, 3, v{L}"); e(f"v_lshlrev_b32 v{vT}, 11, v{vT}")
e(f"v_lshrrev_b32 v{vT+1}, 4, v{L}"); e(f"v_and_b32 v{vT+2}, 7, v{L}"); e(f"v_xor_b32 v{vT+1}, v{vT+1}, v{vT+2}")
e(f"v_lshl_add_u32 v{vDX}, v{vT+1}, 4, v{vT}"); e(f"v_xor_b32 v{vDX+1}, 64, v{vDX}")
e(f"v_add_u32 v{vDX+2}, {2*15360}, v{vDX}"); e(f"v_add_u32 v{vDX+3}, {3*15360}, v{vDX+1}"); e(f"v_add_u32 v{vDX+1}, 15360, v{vDX+1}")
def swap23(d, s, t):
    e(f"v_and_b32 v{d}, 0x13, v{s}")
    e(f"v_and_b32 v{t}, 4, v{s}"); e(f"v_lshl_or_b32 v{d}, v{t}, 1, v{d}")
    e(f"v_and_b32 v{t}, 8, v{s}"); e(f"v_lshrrev_b32 v{t}, 1, v{t}"); e(f"v_or_b32 v{d}, v{d}, v{t}")
e(f"v_lshrrev_b32 v{vT}, 2, v{L}"); swap23(vT+1, vT, vT+2)
e(f"v_mul_u32_u24 v{vT+1}, 6144, v{vT+1}")
e(f"v_lshrrev_b32 v{vT}, 3, v{L}"); e(f"v_and_b32 v{vT}, 2, v{vT}"); e(f"v_and_b32 v{vT+2}, 3, v{L}"); e(f"v_xor_b32 v{vT}, v{vT}, v{vT+2}")
e(f"v_lshl_add_u32 v{vDB}, v{vT}, 4, v{vT+1}")
e(f"v_mul_u32_u24 v{vT}, 4682, v0"); e(f"v_lshrrev_b32 v{vT}, 16, v{vT}")
e(f"v_mul_u32_u24 v{vT+3}, 14, v{vT}"); e(f"v_sub_u32 v{vT+3}, v0, v{vT+3}")
swap23(vT+1, vT, vT+2)
e(f"v_mul_u32_u24 v{vT+1}, 7168, v{vT+1}"); e(f"v_lshl_add_u32 v{vDA}, v{vT+3}, 4, v{vT+1}")
e(f"s_lshl_b32 s{sKX}, s{sRB}, 19"); e(f"s_lshl_b32 s{sT}, s{sW}, 16"); e(f"s_add_u32 s{sKX}, s{sKX}, s{sT}")
e(f"s_add_u32 s{sKXE}, s{sKX}, 2048"); e(f"s_lshl_b32 s{sMX}, s{sW}, 12")
e(f"s_mul_i32 s{sOW+1}, s{sH}, 224"); e(f"s_sub_u32 s{sOW}, s{sOW+1}, {32*7168}")
e(f"s_mov_b32 s{sOW+2}, s{sOW}"); e(f"s_mov_b32 s{sOW+3}, s{sOW+1}")
e(f"s_lshl_b32 s{sT}, s{sW}, 10")
for n, o in enumerate((GOFF, GOFF+HALF, UOFF, UOFF+HALF)): e(f"s_add_u32 s{sMWd+n}, s{sT}, {WBASE+o}")
e(f"s_mov_b32 s{sINCA}, {64*7168}")
def qpiece(p):
    half, unit, rg = p // 6, (p % 6) // 2, p % 2
    return (WBASE + half*HALF + unit*2048 + rg*1024, ((-32 + half*32 + rg*16)*6144 + unit*2048) & 0xffffffff)
e(f"s_lshl_b32 s{sT+1}, s{sH}, 6")
e(f"s_add_u32 s{sMWd+4}, s{sT}, {WBASE}")
e(f"s_and_b32 s{sT+2}, s{sW}, 1"); e(f"s_mul_i32 s{sT+2}, s{sT+2}, {16*6144}")
e(f"s_lshr_b32 s{sT+3}, s{sW}, 1"); e(f"s_lshl_b32 s{sT+3}, s{sT+3}, 11"); e(f"s_add_u32 s{sT+2}, s{sT+2}, s{sT+3}")
e(f"s_sub_u32 s{sOW+4}, s{sT+2}, {32*6144}")
for w, p in ((6, 6), (7, 11)):
    l, o = qpiece(p)
    e(f"s_cmp_eq_u32 s{sW}, {w}"); e(f"s_cselect_b32 s{sMWd+4}, {l:#x}, s{sMWd+4}"); e(f"s_cselect_b32 s{sOW+4}, {o:#x}, s{sOW+4}")
e(f"s_add_u32 s{sOW+4}, s{sOW+4}, s{sT+1}")
e("s_waitcnt lgkmcnt(0)")
if OPT['stamp']: e(f"v_writelane_b32 v0, s{sST+4}, 0"); e(f"v_writelane_b32 v0, s{sST+6}, 16")
delay(0, 5)
stamp('karg')
srd(sX, pX, 0 if OPT['noX'] else 2048*2048)
for n in range(4): a_full('x', n, 0)
stamp('x0')
srd(sQ, pQKV, 0 if OPT['noW'] else 1024*6144); srd(sA, pWG, 0 if OPT['noW'] else 1024*7168); srd(sB, pWU, 0 if OPT['noW'] else 1024*7168)
e(f"s_cmp_eq_u32 s{sW}, 7"); e("s_cbranch_scc0 LA_not7")
for d in (sA, sB):
    for k in range(3): e(f"s_mov_b32 s{d+k}, s{sQ+k}")
for n in range(4):
    l, o = qpiece(7+n)
    e(f"s_mov_b32 s{sMWd+n}, {l:#x}"); e(f"s_add_u32 s{sOW+n}, s{sT+1}, {o:#x}")
e(f"s_mov_b32 s{sINCA}, {64*6144}"); e(f"v_mov_b32 v{vDA}, v{vDB}")
g.lab("LA_not7")
if OPT['wshift']:
    for n in range(5): e(f"s_add_u32 s{sOW+n}, s{sOW+n}, " + (f"s{sINCA}" if n < 4 else f"{64*6144}"))
for n in range(5): a_full('w', n, 0, True)
stamp('w0')
srd(sWS, pWSp, WS_SIZE); srd(sDBG, pDBG, 256); srd(sPF, pGW, 2048)
PD = OPT['PD'] - OPT['pre']; sPB = sT+6
assert OPT['amap'] == 3
e(f"s_lshr_b32 s{sT+1}, s2, 3"); e(f"s_lshr_b32 s{sT+2}, s{sH}, 3")
e(f"v_lshlrev_b32 v{vPF}, 7, v{L}"); e(f"s_mov_b32 s{sT+3}, 0"); e(f"s_mov_b32 s{sCNT}, 0"); e(f"s_mov_b32 s{sPFO}, 0"); e(f"s_mov_b32 s{sPFI}, 0")
e(f"s_mov_b32 s{sPB}, s{pX}"); e(f"s_mov_b32 s{sPB+1}, s{pX+1}")
def pfcase(w, body):
    e(f"s_cmp_lg_u32 s{sW}, {w}"); e(f"s_cbranch_scc1 LA_pf{w}"); body(); g.lab(f"LA_pf{w}")
def base(p, size): e(f"s_mov_b32 s{sPB}, s{p}"); e(f"s_mov_b32 s{sPB+1}, s{p+1}"); e(f"s_mov_b32 s{sCNT}, {size:#x}")
R2 = 2 if OPT['pf2'] else 1
def pf_x():
    base(pX, 2048*2048); e(f"v_and_b32 v{vT}, 31, v{L}"); e(f"v_lshlrev_b32 v{vT}, 11, v{vT}"); e(f"v_lshrrev_b32 v{vPF}, 5, v{L}"); e(f"v_lshl_add_u32 v{vPF}, v{vPF}, 7, v{vT}")
    e(f"s_and_b32 s{sT+4}, s{sH}, 7"); e(f"s_lshl_b32 s{sT+4}, s{sT+4}, 16"); e(f"s_lshl_b32 s{sPFO}, s{sRB}, 19"); e(f"s_add_u32 s{sPFO}, s{sPFO}, s{sT+4}")
    e(f"s_add_u32 s{sPFO}, s{sPFO}, {PD*128}"); e(f"s_mov_b32 s{sPFI}, {128*R2}"); e(f"s_mov_b32 s{sT+3}, {32*R2}")
def pf_gu(p):
    def f():
        base(p, 1024*7168); e(f"v_mul_u32_u24 v{vT}, 4682, v{L}"); e(f"v_lshrrev_b32 v{vT}, 16, v{vT}")
        e(f"v_mul_u32_u24 v{vT+1}, {7168-1792}, v{vT}"); e(f"v_add_u32 v{vPF}, v{vPF}, v{vT+1}")
        e(f"v_lshrrev_b32 v{vT}, 1, v{vT}"); e(f"v_mul_u32_u24 v{vT}, {62*7168}, v{vT}"); e(f"v_add_u32 v{vPF}, v{vPF}, v{vT}")
        e(f"s_mul_i32 s{sPFO}, s{sT+1}, {2*7168}"); e(f"s_mul_i32 s{sT+4}, s{sT+2}, 1792"); e(f"s_add_u32 s{sPFO}, s{sPFO}, s{sT+4}")
        e(f"s_add_u32 s{sPFO}, s{sPFO}, {(64*PD-32)*7168}"); e(f"s_mov_b32 s{sPFI}, {64*7168*R2}"); e(f"s_mov_b32 s{sT+3}, {28*R2}")
    return f
def pf_q():
    base(pQKV, 1024*6144); e(f"v_lshrrev_b32 v{vT}, 2, v{L}"); e(f"v_lshlrev_b32 v{vT}, 11, v{vT}"); e(f"v_and_b32 v{vPF}, 3, v{L}")
    e(f"v_lshl_add_u32 v{vPF}, v{vPF}, 7, v{vT}")
    e(f"v_cmp_le_u32 vcc, 24, v{L}"); e(f"v_add_u32 v{vT}, {62*6144}, v{vPF}"); e("s_nop 0"); e(f"v_cndmask_b32 v{vPF}, v{vPF}, v{vT}, vcc")
    e(f"s_mul_i32 s{sPFO}, s{sT+1}, {2*6144}"); e(f"s_lshl_b32 s{sT+4}, s{sT+2}, 9"); e(f"s_add_u32 s{sPFO}, s{sPFO}, s{sT+4}")
    e(f"s_add_u32 s{sPFO}, s{sPFO}, {(64*PD-32)*6144}"); e(f"s_mov_b32 s{sPFI}, {64*6144*R2}"); e(f"s_mov_b32 s{sT+3}, {24*R2}")
def pf_lin(p, size, nl, st=0):
    def f():
        base(p, size); e(f"s_mul_i32 s{sPFO}, s{sLAM}, {nl*128}"); e(f"s_mov_b32 s{sPFI}, {nl*128*256}"); e(f"s_mov_b32 s{sT+3}, {nl}")
        if st: e(f"s_sub_u32 s{sPFO}, s{sPFO}, {st*nl*128*256}")
    return f
if OPT['pf']:
    if PD > 0: pfcase(6, pf_x); pfcase(1, pf_gu(pWG)); pfcase(2, pf_gu(pWU)); pfcase(3, pf_q)
    pfcase(4, pf_lin(pWD, 3584*2048, OPT['wdn'], OPT['wdst'])); pfcase(5, pf_lin(pWO, 1024*2048, 16, OPT['wdst']))
    if OPT['touch'] & 1: pfcase(6, pf_lin(pWSp, A_BYTES, 64))
    def pf_kv():
        pf_lin(pWSp, WS_KV + (0x1000000 if OPT['touch'] & 4 else 0x800000), 64)(); e(f"s_add_u32 s{sPFO}, s{sPFO}, {WS_KV:#x}")
    if OPT['touch'] & 2: pfcase(7, pf_kv)
e(f"v_cmp_gt_u32 vcc, s{sT+3}, v{L}"); e(f"v_bfrev_b32 v{vT}, 1"); e("s_nop 0"); e(f"v_cndmask_b32 v{vPF}, v{vT}, v{vPF}, vcc")
e(f"s_mov_b32 s{sPF}, s{sPB}"); e(f"s_and_b32 s{sPF+1}, s{sPB+1}, 0xffff"); e(f"s_mov_b32 s{sPF+2}, s{sCNT}")
for k in range(OPT['pre']): a_op('p', 0, 0)
W1E = {0: [], 1: [0,2,4], 2: [0,2,4,1,3]}[OPT['w1e']]
for n in W1E: a_full('w', n, 1)
e(f"v_and_b32 v{vT}, 15, v{L}"); e(f"s_lshl_b32 s{sT}, s{sMW}, 6"); e(f"v_add_u32 v{vT}, s{sT}, v{vT}"); e(f"v_lshlrev_b32 v{vT}, 7, v{vT}")
e(f"v_lshrrev_b32 v{vT+1}, 4, v{L}"); e(f"v_bfe_u32 v{vT+2}, v{L}, 1, 3"); e(f"v_xor_b32 v{vT+2}, v{vT+1}, v{vT+2}")
e(f"v_lshl_add_u32 v{vXR}, v{vT+2}, 4, v{vT}"); e(f"v_xor_b32 v{vXR+1}, 64, v{vXR}")
e(f"v_bfe_u32 v{vT}, v{L}, 2, 3")
e(f"v_lshrrev_b32 v{vT+1}, 5, v{L}"); e(f"v_lshl_add_u32 v{vT}, v{vT+1}, 4, v{vT}")
e(f"v_and_b32 v{vT+1}, 3, v{L}"); e(f"v_lshlrev_b32 v{vT+1}, 3, v{vT+1}"); e(f"v_add_u32 v{vT+1}, {WBASE}, v{vT+1}")
e(f"v_mul_u32_u24 v{vWG}, 224, v{vT}"); e(f"v_add_u32 v{vWG}, v{vWG}, v{vT+1}"); e(f"v_add_u32 v{vWG+1}, {WSLOT}, v{vWG}")
e(f"v_lshl_add_u32 v{vWQ}, v{vT}, 6, v{vT+1}"); e(f"v_bfe_u32 v{vT+2}, v{L}, 4, 1"); e(f"v_lshl_add_u32 v{vWQ}, v{vT+2}, 5, v{vWQ}")
e(f"v_xor_b32 v{vWQ+1}, 32, v{vWQ}"); e(f"v_add_u32 v{vWQ+2}, {WSLOT}, v{vWQ}"); e(f"v_add_u32 v{vWQ+3}, {WSLOT}, v{vWQ+1}")
for r in range(vACC, 256): e(f"v_mov_b32 v{r}, 0")
e(f"s_mov_b32 s{sK}, {f32(-LOG2E)}"); e(f"s_mov_b32 s{sK+1}, {f32(-LOG2E)}")
e(f"s_lshl_b32 s{sGO}, s{sLAM}, 3"); e(f"s_add_u32 s{sGO}, s{sGO}, s{sW}"); e(f"s_lshl_b32 s{sGO}, s{sGO}, 11")
e("v_mov_b32 v40, 0"); e("v_mov_b32 v41, 0"); e("v_mov_b32 v25, 0"); e("v_mov_b32 v43, 0x3f803f80"); e(f"v_lshlrev_b32 v42, 2, v{L}"); e(f"s_mov_b32 s{sKXE}, 0")
srd(sGW, pGW, 2048); e("s_mov_b32 s94, 1.0"); e("s_mov_b32 s95, 1.0")
W1A = {0: [0,1,2,3,4], 1: [], 2: [0,2,4]}[OPT['w1']]
stamp('setup')
for n in W1A:
    if n not in W1E: a_full('w', n, 1)
W1A = sorted(set(W1A) | set(W1E))
stamp('w1')
e(f"s_waitcnt vmcnt({len(W1A)+OPT['pre']})"); stamp('land'); e("s_barrier"); stamp('bar')
e(f"s_cmp_eq_u32 s{sNW}, 1"); e("s_cbranch_scc1 LA_pre1")
for nw in range(2):
    if nw == 1: g.lab("LA_pre1")
    sq, sv_ = g.steady(lambda: a_body(nw))
    g.q = []
    for i in range(4): a_xread(i, 0)
    for n in range(4): a_wread(nw, n)
    assert [t for t in sv_ if t[0] == 'w'] == [('w', 1, k) for k in range(5)], sv_
    for n in range(5):
        if n not in W1A: a_full('w', n, 1)
    for t in sv_:
        if t[0] == 'x': assert t[1] == 1; a_full('x', t[2], 1)
    assert not any(t[0] == 'p' for t in sv_[sv_.index(('w', 1, 0)):]), sv_
    e(f"s_mov_b32 s{sCNT}, 8"); e(f"s_mov_b32 s{sOK}, 0")
    stamp('loopA')
    if OPT['prio'] and nw == 1: e("s_setprio 1")
    e("s_waitcnt lgkmcnt(0)")
    g.q = list(sq); g.v = list(sv_)
    g.L.append(".p2align 6"); g.lab(f"LA_loop{nw}")
    a_body(nw); assert g.q == sq and g.v == sv_
    if OPT['tst']:
        e(f"s_memtime s[{sST}:{sST+1}]"); e(f"s_memrealtime s[{sST+2}:{sST+3}]"); e(f"s_sub_u32 s{sST+4}, 10, s{sCNT}"); e(f"s_add_u32 s{sST+5}, s{sST+4}, 16")
        e("s_waitcnt lgkmcnt(0)"); e(f"s_mov_b32 m0, s{sST+4}"); e("s_nop 0"); e(f"v_writelane_b32 v0, s{sST}, m0"); e(f"s_mov_b32 m0, s{sST+5}"); e("s_nop 0"); e(f"v_writelane_b32 v0, s{sST+2}, m0")
    e(f"s_sub_u32 s{sCNT}, s{sCNT}, 1")
    for u in gate_acc(40, 41, 20, 43):
        for x in u: e(x)
    e(f"buffer_load_dword v40, v42, {sr(sX,4)}, s{sGO} offen"); e(f"buffer_load_dword v41, v42, {sr(sGW,4)}, s{sKXE} offen")
    e(f"s_add_u32 s{sGO}, s{sGO}, 256"); e(f"s_add_u32 s{sKXE}, s{sKXE}, 256")
    e(f"s_cmp_lg_u32 s{sCNT}, 1"); e(f"s_cbranch_scc1 LA_h1_{nw}")
    sv = g.L; g.L = g.tail
    g.lab(f"LA_h1_{nw}")
    def hook(c, body, w0=False):
        if w0 and nw == 1: return
        e(f"s_cmp_lg_u32 s{sCNT}, {c}"); e(f"s_cbranch_scc1 LA_n{c}_{nw}")
        if w0: e(f"s_cmp_lg_u32 s{sW}, 0"); e(f"s_cbranch_scc1 LA_loop{nw}")
        body(); e(f"s_branch LA_loop{nw}"); g.lab(f"LA_n{c}_{nw}")
    def rec_store():
        for r in range(28, 32): e(f"v_mov_b32 v{r}, 0")
        e(f"v_mov_b32 v26, {CNTLDS}"); e("ds_write_b32 v26, v28")
        e(f"s_lshl_b32 s{sT}, s{sLAM}, 9"); e(f"s_add_u32 s{sT}, s{sT}, {WS_FL:#x}")
        e("s_mov_b32 exec_hi, 0")
        e(f"buffer_store_dwordx4 v[28:31], v{vL16}, {sr(sWS,4)}, s{sT} offen sc1"); e("s_mov_b64 exec, -1")
    def ack():
        e(f"v_mov_b32 v{vT}, 1"); e(f"s_and_b32 s{sT}, s{sLAM}, 1"); e(f"s_lshl_b32 s{sT}, s{sT}, 7")
        one_lane(lambda: e(f"buffer_atomic_add v{vT}, off, {sr(sDBG,4)}, s{sT} sc1"))
    def ld(): e(f"v_and_b32 v37, 1, v{L}"); e(f"v_lshlrev_b32 v37, 7, v37"); e(f"buffer_load_dword v{vCN}, v37, {sr(sDBG,4)}, 0 offen sc1")
    def ts(): e(f"v_cmp_gt_u32 vcc, 128, v{vCN}"); e("s_nop 1"); e("s_cmp_eq_u64 vcc, 0")
    def gate_loads():
        e(f"v_lshlrev_b32 v42, 5, v{L}")
        e(f"buffer_load_dwordx4 {vr(26,4)}, v42, {sr(sX,4)}, s{sGO} offen"); e(f"buffer_load_dwordx4 {vr(30,4)}, v42, {sr(sX,4)}, s{sGO} offen offset:16")
        e(f"buffer_load_dwordx4 {vr(34,4)}, v42, {sr(sGW,4)}, 0 offen"); e(f"buffer_load_dwordx4 {vr(38,4)}, v42, {sr(sGW,4)}, 0 offen offset:16")
        ld()
    def code_pf():
        e(f"s_getpc_b64 s[{sT}:{sT+1}]"); g.lab("LA_pc")
        e(f"s_sub_u32 s{sT}, s{sT}, LA_pc-{KN}"); e(f"s_subb_u32 s{sT+1}, s{sT+1}, 0")
        e(f"s_lshr_b32 s{sT+2}, s2, 3"); e(f"s_lshl_b32 s{sT+2}, s{sT+2}, 12")
        e(f"v_and_b32 v26, 31, v{L}"); e(f"v_lshlrev_b32 v26, 7, v26"); e(f"v_add_u32 v26, s{sT+2}, v26")
        e(f"v_min_u32 v26, LZ_end-{KN}-4, v26")
        e(f"v_mov_b32 v27, s{sT+1}"); e(f"v_add_co_u32 v26, vcc, s{sT}, v26"); e("s_nop 1"); e(f"v_addc_co_u32 v27, vcc, 0, v27, vcc")
        e(f"global_load_dword v{vDUM}, v[26:27], off")
    if OPT['astag']:
        def ackif(k):
            def f():
                e(f"s_lshr_b32 s{sT}, s2, 3"); e(f"s_mul_i32 s{sT}, s{sT}, 3"); e(f"s_lshr_b32 s{sT}, s{sT}, 5")
                e(f"s_cmp_lg_u32 s{sT}, {k}"); e(f"s_cbranch_scc1 LA_loop{nw}"); ack()
            return f
        hook(7, rec_store, True); hook(6, ackif(0), True); hook(5, ackif(1), True); hook(4, ackif(2), True); hook(2, ld)
    else:
        hook(6, rec_store, True); hook(5, ack, True); hook(2, ld)
    if OPT['cpf']: hook(OPT['cpf'], code_pf, True)
    def tlb_warm():
        e(f"s_mul_i32 s{sT}, s{sRB}, {16*M16}"); e(f"v_mov_b32 v26, s{sT}")
        e(f"s_add_u32 s{sT+1}, s{sT}, {8*M16}"); e(f"v_writelane_b32 v26, s{sT+1}, 1")
        e(f"s_add_u32 s{sT+1}, s{sT}, {16*M16-128}"); e(f"v_writelane_b32 v26, s{sT+1}, 2")
        e(f"s_lshl_b32 s{sT}, s{sLAM}, 15"); e(f"s_add_u32 s{sT}, s{sT}, {WS_KV:#x}"); e(f"v_writelane_b32 v26, s{sT}, 3")
        e(f"s_sub_u32 s{sT}, s{sT}, {32*32768}"); e(f"v_writelane_b32 v26, s{sT}, 4")
        e(f"s_lshl_b32 s{sT}, s{sRB}, 21"); e(f"s_add_u32 s{sT}, s{sT}, {WS_PART:#x}"); e(f"v_writelane_b32 v26, s{sT}, 5")
        e("s_mov_b64 exec, 63"); e(f"buffer_load_dword v{vDUM}, v26, {sr(sWS,4)}, 0 offen"); e("s_mov_b64 exec, 1")
        srd(88, pOUT, 2048*2048); e(f"s_lshl_b32 s{sT}, s{sRB}, 19"); e(f"buffer_load_dword v{vDUM}, off, s[88:91], s{sT}")
        srd(88, pWO, 1024*2048); e(f"buffer_load_dword v{vDUM}, off, s[88:91], 0")
        srd(88, pWD, 3584*2048); e(f"s_lshr_b32 s{sT}, s{sH}, 3"); e(f"s_mul_i32 s{sT}, s{sT}, {896*2048}"); e(f"buffer_load_dword v{vDUM}, off, s[88:91], s{sT}")
        e(f"s_add_u32 s{sT}, s{sT}, {895*2048}"); e(f"buffer_load_dword v{vDUM}, off, s[88:91], s{sT}")
        e("s_mov_b64 exec, -1")
    if OPT['tlb']: hook(OPT['tlb'], tlb_warm, True)
    e(f"s_branch LA_loop{nw}")
    g.lab(f"LA_slow{nw}")
    spin(f"LA_spin{nw}", ld, ts, sT+3); e(f"s_branch LB_go{nw}")
    g.L = sv
    ts(); e(f"s_cbranch_scc0 LA_slow{nw}")
    g.lab(f"LB_go{nw}")
    e(f"buffer_load_dword v38, v42, {sr(sX,4)}, s{sGO} offen"); e(f"buffer_load_dword v39, v42, {sr(sGW,4)}, s{sKXE} offen")
    U = UNITS[nw]; jkv = 2 if nw == 0 else 0
    vHA = 3; vST = 96 - 4*len(OPT['hpos']); vNB = 208; assert len(OPT['hpos']) % 2 == 0
    def cap(f, atomic=False):
        sv = g.L; g.L = []; f(); r = g.L; g.L = sv
        return [r] if atomic else [[x] for x in r]
    def setupB():
        e(f"s_lshl_b32 s{sT+4}, s{sLAM}, 15"); e(f"s_add_u32 s{sT+4}, s{sT+4}, {WS_KV:#x}")
        e(f"s_lshl_b32 s{sT+5}, s{sMW}, 13"); e(f"v_add_u32 v{vT+8}, s{sT+5}, v{vL16}")
        e(f"s_add_u32 s{sT+5}, s{sT+5}, s{sT+4}")
    def setupB2():
        e(f"s_cmp_eq_u32 s{sRB}, 7"); e(f"s_cselect_b32 s{sT+5}, {WS_SIZE:#x}, s{sT+5}")
    def setupB3():
        e(f"s_add_u32 s{sT+6}, s{sT+5}, 4096")
        e(f"v_and_b32 v{vHA}, 31, v{L}"); e(f"v_lshlrev_b32 v{vHA}, 4, v{vHA}"); e(f"v_lshrrev_b32 v{vT+11}, 5, v{L}")
        e(f"v_mul_u32_u24 v{vT+11}, {M16}, v{vT+11}"); e(f"v_add_u32 v{vHA}, v{vHA}, v{vT+11}")
        e(f"s_lshl_b32 s{sT}, s{sRB}, 4"); e(f"s_lshl_b32 s{sT+1}, s{sMW}, 2"); e(f"s_add_u32 s{sT}, s{sT}, s{sT+1}")
        e(f"s_mul_i32 s{sHB}, s{sT}, {M16}"); e(f"s_mul_i32 s{sT}, s{sH}, {7*512}"); e(f"s_add_u32 s{sHB}, s{sHB}, s{sT}")
        e(f"s_lshr_b32 s{sT}, s{sH}, 3"); e(f"s_lshl_b32 s{sT}, s{sT}, 13"); e(f"s_add_u32 s{sHB}, s{sHB}, s{sT}")
        if nw == 1: e(f"s_add_u32 s{sHB}, s{sHB}, {3*512}")
        e(f"s_add_u32 s{sHB+1}, s{sHB}, {2*M16}")
        e(f"s_lshl_b32 s{sT+7}, s{sLAM}, 9"); e(f"s_add_u32 s{sT+7}, s{sT+7}, {WS_FL:#x}")
        e(f"v_mov_b32 v{vCN}, 1"); e(f"s_mov_b32 s{sDN}, 0"); e(f"s_sub_u32 s{sT+3}, s{sT+7}, {32*512}")
    def gpub():
        e(f"s_cmp_lg_u32 s{sW}, 0"); e("s_cbranch_scc1 LB_nog")
        e(f"v_lshlrev_b32 v{vT}, 2, v{L}"); e(f"v_add_u32 v{vT+1}, {GLDS}, v{vT}"); e("s_mov_b64 exec, 0xff"); e(f"ds_read_b32 v{vT+1}, v{vT+1}"); e("s_waitcnt lgkmcnt(0)")
        e(f"buffer_store_dword v{vT+1}, v{vT}, {sr(sWS,4)}, s{sT+7} offen sc1"); e("s_mov_b64 exec, -1")
        g.lab("LB_nog")
    def kvout():
        for i in range(4):
            pack2(jkv, i)
            if nw == 1:
                a = ACC(0, i); e("s_nop 1"); e(f"v_permlane32_swap_b32 v{a}, v{a+2}"); e(f"v_permlane32_swap_b32 v{a+1}, v{a+3}")
            e(f"buffer_store_dwordx4 {vr(ACC(jkv,i),4)}, v{vL16}, {sr(sWS,4)}, s{sT+5+(i>>1)} offen offset:{nw*2048+(i&1)*1024} sc1")
    gus = [j for j in range(10) if U[j][0] == 'g']
    def hst(R, k): e(f"buffer_store_dwordx4 {vr(R,4)}, v{vHA}, {sr(sWS,4)}, s{sHB+(k&1)} offen offset:{(k>>1)*512}" + ("" if OPT['hx'] == 1 else " sc1")) if OPT['hx'] != 2 else None
    def ldK(): e(f"buffer_load_dword v{vT+10}, off, {sr(sWS,4)}, s{sT+3} offset:{FL_KV} sc1")
    def tsK(): e(f"v_readfirstlane_b32 s{sT}, v{vT+10}"); e("s_nop 0"); e(f"s_cmp_eq_u32 s{sT}, 1")
    J = [2,3,4,5,6,7,8,9,0,1] if nw == 0 else list(range(10))
    SQ = [(t, j) for t in range(2) for j in range(10)]
    for p in range(5): a_, b_ = J[2*p], J[2*p+1]; SQ += [(2, a_), (2, b_), (3, a_), (3, b_)]
    F = []
    F += [(1, u) for u in cap(setupB) + cap(setupB2, True) + cap(setupB3)]
    vKA, vVA, vQA, vOA = 8, 9, 10, 11
    def att_setup():
        m = vT
        e(f"v_and_b32 v{m+1}, 15, v{L}"); e(f"v_lshlrev_b32 v{m+1}, 4, v{m+1}"); e(f"v_lshrrev_b32 v{m+2}, 5, v{L}")
        e(f"v_lshl_add_u32 v{m+1}, v{m+2}, 8, v{m+1}"); e(f"v_bfe_u32 v{m+2}, v{L}, 4, 1")
        e(f"v_lshl_add_u32 v{vQA}, v{m+2}, 10, v{m+1}"); e(f"v_lshl_add_u32 v{vVA}, v{m+2}, 9, v{m+1}")
        e(f"v_mul_u32_u24 v{vOA}, {M16}, v{m+2}"); e(f"v_add_u32 v{vOA}, v{vOA}, v{m+1}")
        e(f"s_lshl_b32 s{sT}, s{sW}, 12"); e(f"v_add_u32 v{vKA}, s{sT}, v{vQA}"); e(f"v_add_u32 v{vVA}, s{sT}, v{vVA}")
    def q_addr():
        e(f"s_lshl_b32 s{sT}, s{sW}, 11"); e(f"s_cmp_ge_u32 s{sW}, 6"); e(f"s_cselect_b32 s{sT+1}, {QLDS3-6*2048}, {QLDS}".replace(f", {QLDS}", f", s{sT+2}"))
        e(f"s_add_u32 s{sT}, s{sT}, s{sT+1}"); e(f"v_add_u32 v{vQA}, s{sT}, v{vQA}")
        if nw == 0:
            e(f"s_lshl_b32 s{sT}, s{sMW}, 12"); e(f"s_cmp_eq_u32 s{sMW}, 3"); e(f"s_cselect_b32 s{sT+1}, {QLDS3-3*4096}, s{sT+2}")
            e(f"s_add_u32 s{sT}, s{sT}, s{sT+1}"); e(f"v_add_u32 v{vT+9}, s{sT}, v{vL16}")
    def cnt0():
        e(f"v_mov_b32 v{vT+12}, {CNT2}"); e(f"v_mov_b32 v{vT+13}, 0"); e(f"ds_write_b32 v{vT+12}, v{vT+13}"); e(f"ds_write_b32 v{vT+12}, v{vT+13} offset:4"); e(f"ds_write_b32 v{vT+12}, v{vT+13} offset:8")
    def kvlds():
        for i in range(4): e(f"ds_write_b128 v{vT+8}, {vr(ACC(jkv,i),4)} offset:{32768+(i>>1)*4096+nw*2048+(i&1)*1024}")
    F += [(10, u) for u in cap(c_setup)]
    F += [(18, [("    " + x) for x in u]) for u in gate_list(20, 43)]
    if nw == 0: F += [(19, u) for u in cap(cnt0)]
    F += [(21, u) for u in cap(att_setup) + [[f"    s_mov_b32 s{sT+2}, {QLDS}"]] + cap(q_addr, True)]
    F += [(24, u) for u in cap(kvout) + cap(kvlds)]
    if nw == 0: F += [(24, u) for u in cap(gpub, True)]
    nk = 2*len(gus)
    for k in range(nk):
        j, i = gus[k >> 1], 2*(k & 1); av = 28 + 4*(k >> 1)
        F += [(av, u) for u in cap(lambda: silu(j, i, vT, ACC(j, i)))]
        NE = nk - len(OPT['hpos'])
        F += [(av, u) for u in cap(lambda: trysig(min(k, NE), CNTLDS, 0, FL_KV, force=(k == nk-1)), True)]
        if k < NE: F += [(av, u) for u in cap(lambda: hst(ACC(j, i), k))]
    ev = {n: [x for x in v if x[0] == 'x' and x[2] == 1] for n, v in a_events(nw).items() if n < 10}
    for n, k in zip((7, 8, 9), (0, 2, 4)): ev.setdefault(n, []).append(('w', k, 0))
    for n, (t, j) in enumerate(SQ):
        un = U[j]; evs = ev.get(n, [])
        for i in range(4):
            g.need([('W', n % 5), ('X', t & 1, i)])
            a, b = vr(vWF+4*(n % 5), 4), vr(vXF+16*(t & 1)+4*i, 4)
            if un[0] == 'v': a, b = b, a
            e(f"{MF16} {vr(ACC(j,i),4)}, {a}, {b}, {vr(ACC(j,i),4)}")
            if i == 0:
                if n == JBW: g.need([('W', k) for k in range(5)], [('w', 1, k) for k in range(5)]); e("s_barrier")
                if n == 17:
                    g.need([('W', k) for k in range(5)], [('x', 1, k) for k in range(4)] + [('w', 0, k) for k in range(5)]); e("s_barrier")
                if n == 22: assert not any(av <= 18 for av, u in F)
                if n == 23: g.need([('X', 1, k) for k in range(4)] + [('W', k) for k in range(5)]); e("s_barrier")
                if n + 4 < 40: a_wread(nw, n+4, SQ[n+4])
                if nw == 0 and n == OPT['kq']: ldK()
            if i == 1:
                for ii in range(4):
                    if n == OPT['jbx'] + OPT['xrd'][ii]: a_xread(ii, 1)
                    if n == 17 + (ii >> 1): a_xread(ii, 2)
                    if n == 20: a_xread(ii, 3)
                if evs: a_m0(*evs[0])
            if i == 2 and evs:
                a_op(*evs[0])
                for x in evs[1:]: a_full(*x)
            c = 0
            while F and F[0][0] <= n and c < (2 if n < 12 else 3 if n < 20 else OPT['fr']) and not (i == 1 and evs):
                u = F.pop(0)[1]; g.L += u; c += len(u)
    stamp('endA')
    left = sum(1 for av, u in F for x in u if 'buffer_store_dwordx4' in x)
    print("path", nw, "leftover filler instrs", sum(len(u) for av, u in F), "stores", left)
    if nw == 0 and OPT['h0']:
        vNB = 40
        e(f"s_mov_b32 s{sT+5}, {WS_SIZE:#x}")
        e(f"s_cmp_eq_u32 s{sRB}, 0"); e("s_cbranch_scc1 LB_rb0")
        e("s_waitcnt vmcnt(0)"); trysig(15, CNTLDS, 0, FL_KV, force=True); tsK(); e("s_cbranch_scc0 LB_late")
        e(f"s_sub_u32 s{sT+5}, s{sT+4}, {32*32768}")
        g.lab("LB_rb0")
        e(f"s_add_u32 s{sT+6}, s{sT+5}, 4096")
        def nbl():
            for f in range(8): e(f"buffer_load_dwordx4 {vr(vNB+4*f,4)}, v{vT+8}, {sr(sWS,4)}, s{sT+5+(f>>2)} offen offset:{(f&3)*1024} sc1")
        nbl(); e(f"s_mov_b32 s{sT+4}, 0")
        g.lab("LB_late")
        for r in range(32): e(f"v_mul_f32 v{ACC(0,0)+r}, {f32(32 ** -0.5 * LOG2E)}, v{ACC(0,0)+r}")
        for i in range(4): pack2(0, i)
        for i in range(4): e(f"ds_write_b128 v{vT+9}, {vr(ACC(0,i),4)} offset:{i*1024}")
    else: e("s_nop 7")
    assert not any('ds_write' in x for av, u in F for x in u)
    for av, u in F: g.L += u
    for k in range(NE, nk):
        for r in range(4): e(f"v_mov_b32 v{vST+4*(k-NE)+r}, v{ACC(gus[k>>1], 2*(k&1))+r}")
    if NE: e(f"s_add_u32 s{sHB}, s{sHB}, {NE*256}"); e(f"s_add_u32 s{sHB+1}, s{sHB+1}, {NE*256}")
    stamp('hdone')
    if nw == 0:
        e(f"s_cmp_eq_u32 s{sT+4}, 0"); e("s_cbranch_scc1 LB_have")
        spin("LB_spin", ldK, tsK, sT+5)
        e(f"s_sub_u32 s{sT+5}, s{sT+4}, {32*32768}"); e(f"s_add_u32 s{sT+6}, s{sT+5}, 4096")
        nbl(); e("s_waitcnt vmcnt(0)")
        g.lab("LB_have")
        NLEFT = left; vNB0 = vNB
    stamp('kvok')
    if nw == 0: e("s_branch LB_common")
g.lab("LB_common")
FR = [40, 48, 56, 64, 96, 104]; vQ = 32; vS = 112; vM = 26; vSUM = 28
BIG = 2.0**100
assert OPT['npre'] <= 3
e(f"s_mov_b32 s{sDN}, 0")
e(f"s_andn2_b32 s{sT+4}, s{sLAM}, 7"); e(f"s_lshl_b32 s{sT+4}, s{sT+4}, 9"); e(f"s_add_u32 s{sT+4}, s{sT+4}, {WS_FL:#x}")
e(f"s_cmp_eq_u32 s{sNW}, 1"); e("s_cbranch_scc1 LB_nokv")
for f in range(8):
    e(f"s_waitcnt vmcnt({7-f+NLEFT})"); e(f"ds_write_b128 v{vT+8}, {vr(vNB0+4*f,4)} offset:{f*1024}")
g.lab("LB_nokv")
e("s_waitcnt lgkmcnt(0)"); e("s_barrier")
delay(1, 10)
stamp('bar2')
ORD = [0, 8, 1, 2, 3, 4, 5, 6, 7]
def yprio(k):
    e(f"s_cmp_eq_u32 s{sNW}, 0"); e(f"s_cbranch_scc1 LP_{k}"); e("s_setprio 1"); g.lab(f"LP_{k}")
if OPT['aprio'] == 1: yprio(0)
def kread(x):
    t = ORD[x]
    for f in range(2): g.lds(f"ds_read_b128 {vr(FR[x%6]+4*f,4)}, v{vKA} offset:{t*4096+f*512}", ('K', x, f))
def vread(x):
    t = ORD[x]
    for f in range(2): g.lds(f"ds_read_b128 {vr(FR[(x+3)%6]+4*f,4)}, v{vVA} offset:{t*4096+2048+f*1024}", ('V', x, f))
def mx(t, half=None):
    b = vS + 16*t
    for r in range(0, 16, 2):
        if half is not None and (r >> 3) != half: continue
        k = (r >> 1) & 1
        if t == 8 and r < 4: e(f"v_max_f32 v{vM+k}, v{b+r}, v{b+r+1}")
        else: e(f"v_max3_f32 v{vM+k}, v{vM+k}, v{b+r}, v{b+r+1}")
def masked(op, hi=vS+128, lo=vS):
    for rho in range(16):
        cst = 8*(rho >> 2) + (rho & 3)
        e(f"s_bfm_b32 exec_lo, {cst}, 0"); e(f"s_bfm_b32 exec_hi, {cst+4}, 0"); e(f"{op} v{hi+rho}, v{lo+rho}")
    e("s_mov_b64 exec, -1")
def merge():
    masked("v_mov_b32")
    for rho in range(16): e(f"v_mov_b32 v{vS+rho}, 0")
NPRE = OPT['npre']
def ldH(): e(f"buffer_load_dword v{cvPL}, v{cvPA}, {sr(sWS,4)}, s{sT+4} offen offset:{FL_H} sc1")
def tsL(): e(f"v_cmp_ne_u32 vcc, 1, v{cvPL}"); e("s_nop 1"); e("s_cmp_eq_u64 vcc, 0")
AFTER = [0]; NH2 = [0]
def event(x):
    for k, p in enumerate(OPT['hpos']):
        if p == x: hst(vST+4*k, k); AFTER[0] = 0
    if max(OPT['hpos'] + [-1]) < x <= OPT['hq']: trysig(AFTER[0], CNT2, 0, FL_H, force=(x == OPT['hq']))
    for k, p in enumerate(OPT['dpos'][:NPRE]):
        if p == x: c_m0(k); e("s_nop 0"); c_dma(k, 0); c_dma(k, 1); AFTER[0] += 2
    if OPT['aearly'] and x == OPT['hq2']: ldH(); AFTER[0] += 1; NH2[0] = AFTER[0]
    if OPT['aearly'] and x == OPT['hq2'] + 2:
        e(f"s_mov_b32 s{sOK+1}, 0"); e(f"s_waitcnt vmcnt({AFTER[0]-NH2[0]})"); tsL(); e("s_cbranch_scc0 LB_noe")
        for k in range(4): c_aload(0, k)
        e(f"s_mov_b32 s{sOK+1}, 1"); e("s_branch LB_e2")
        g.lab("LB_noe"); ldH(); g.lab("LB_e2")
    if not OPT['aearly'] and x == OPT['hq']: ldH(); AFTER[0] += 1
sTH = sT+2
vO = vS + 8
def rowsum():
    e(f"v_pk_add_f32 {vr(vSUM,2)}, {vr(vSUM,2)}, {vr(vSUM+2,2)}"); e(f"v_add_f32 v{vSUM}, v{vSUM}, v{vSUM+1}")
    e(f"v_mov_b32 v{vSUM+1}, v{vSUM}"); e("s_nop 1"); e(f"v_permlane32_swap_b32 v{vSUM}, v{vSUM+1}")
    e(f"v_add_f32 v{vSUM}, v{vSUM}, v{vSUM+1}")
def negmax():
    e(f"v_max_f32 v{vM}, v{vM}, v{vM+1}"); e(f"v_mov_b32 v{vM+1}, v{vM}"); e("s_nop 1")
    e(f"v_permlane32_swap_b32 v{vM}, v{vM+1}"); e(f"v_max_f32 v{vM}, v{vM}, v{vM+1}")
    e(f"v_mul_f32 v{vM}, -1.0, v{vM}"); e(f"v_mov_b32 v{vM+1}, v{vM}")
def sums(b, first):
    for r in range(0, 16, 2):
        s = vSUM + 2*((r >> 1) & 1)
        if first and r < 4: e(f"v_pk_add_f32 {vr(s,2)}, {vr(b+r,2)}, {vr(b+r+4,2)}")
        elif first and r < 8: pass
        else: e(f"v_pk_add_f32 {vr(s,2)}, {vr(s,2)}, {vr(b+r,2)}")
sv = g.L; g.L = g.tail; g.lab("LB_exact")
e("s_nop 15"); e("s_waitcnt lgkmcnt(0)")
g.q = []
for x in range(6): kread(x)
for x in range(9):
    t = ORD[x]
    g.need([('K', x, 1)])
    if t < 8:
        e(f"s_cmp_le_u32 s{sTH}, {t}"); e(f"s_cbranch_scc1 LB_v{t}")
        for rho in range(16): e(f"v_mov_b32 v{vS+16*t+rho}, {f32(-BIG)}")
        e(f"s_branch LB_w{t}"); g.lab(f"LB_v{t}")
    for f in range(2): e(f"{MF32} {vr(vS+16*t,16)}, {vr(FR[x%6]+4*f,4)}, {vr(vQ+4*f,4)}, " + (vr(vS+16*t, 16) if f else "0"))
    if t < 8: g.lab(f"LB_w{t}")
    if x + 6 < 9: kread(x+6)
    else: vread(x-3)
e("s_nop 15"); merge()
for x in range(1, 9): mx(ORD[x])
negmax()
def pbase(t): return vS if t == 0 else vS + 16*t + 8
def soft(t):
    b = vS + 16*t
    for r in range(0, 16, 2): e(f"v_pk_add_f32 {vr(b+r,2)}, {vr(b+r,2)}, {vr(vM,2)}")
    for r in range(16): e(f"v_exp_f32 v{b+r}, v{b+r}")
    sums(b, t == 8)
    if t == 8:
        masked("v_swap_b32")
        for r in range(8): e(f"v_cvt_pk_bf16_f32 v{vS+r}, v{vS+2*r}, v{vS+2*r+1}")
    for r in range(7, -1, -1): e(f"v_cvt_pk_bf16_f32 v{b+8+r}, v{b+2*r}, v{b+2*r+1}")
for t in ORD[1:]: soft(t)
e("s_nop 1")
for x in range(9):
    for f in range(2):
        g.need([('V', x, f)])
        e(f"{MF32} {vr(vO,16)}, {vr(FR[(x+3)%6]+4*f,4)}, {vr(pbase(ORD[x])+4*f,4)}, " + ("0" if (x == 0 and f == 0) else vr(vO, 16)))
    if x + 6 < 9: vread(x+6)
rowsum(); e("s_nop 7"); e("s_branch LB_norm")
g.lab("LB_nb")
for rho in range(16): e(f"v_mov_b32 v{240+rho}, {f32(-BIG)}")
e(f"s_sub_u32 s{sTH}, 8, s{sW}"); e("s_branch LB_nbr")
g.L = sv
TR = [136, 152, 168, 184]; NM = 200; KR = [216, 224, 232, 112]; NB = 240
def kr(x):
    for f in range(2): g.lds(f"ds_read_b128 {vr(KR[x%4]+4*f,4)}, v{vKA} offset:{ORD[x]*4096+f*512}", ('K', x, f))
def vr_(x):
    for f in range(2): g.lds(f"ds_read_b128 {vr(FR[x%6]+4*f,4)}, v{vVA} offset:{ORD[x]*4096+2048+f*1024}", ('V', x, f))
def smf(x, f):
    t = ORD[x]; d = vr(TR[x%4], 16)
    g.need([('K', x, f), ('Q', f)])
    ab = f"{vr(KR[x%4]+4*f,4)}, {vr(vQ+4*f,4)}"
    if f == 1:
        e(f"{MF32} {d}, {ab}, {d}")
        if x + 4 < 9: kr(x+4)
        return
    if t < 8:
        e(f"s_cmp_gt_u32 s{sTH}, {t}"); e(f"s_cbranch_scc1 LB_m{t}")
        g.tail2 += [f"LB_m{t}:", f"    {MF32} {d}, {ab}, {vr(NB,16)}", f"    s_branch LB_n{t}"]
    e(f"{MF32} {d}, {ab}, " + ("0" if x < 2 else vr(NM, 16)))
    if t < 8: g.lab(f"LB_n{t}")
def pvf(x, f):
    g.need([('V', x, f)])
    e(f"{MF32} {vr(vO,16)}, {vr(FR[x%6]+4*f,4)}, {vr(TR[x%4]+4*f,4)}, " + ("0" if (x == 0 and f == 0) else vr(vO, 16)))
    if f == 1 and x + 6 < 9: vr_(x+6)
def pack(b):
    for r in range(8): e(f"v_cvt_pk_bf16_f32 v{b+r}, v{b+2*r}, v{b+2*r+1}")
g.q = []
for f in range(2): g.lds(f"ds_read_b128 {vr(vQ+4*f,4)}, v{vQA} offset:{f*512}", ('Q', f))
for x in range(4): kr(x)
e(f"s_mov_b32 s{sTH}, 0"); e(f"s_cmp_eq_u32 s{sRB}, 0"); e("s_cbranch_scc1 LB_nb"); g.lab("LB_nbr")
MK = TR[3]; PM = 72
e(f"v_and_b32 v{vM}, 31, v{L}"); e(f"v_lshlrev_b32 v{vM}, v{vM}, 2".replace(f"v{vM}, v{vM}, 2", f"v{vM}, v{vM}, v{vM+1}") if False else f"v_mov_b32 v{vM+1}, 2")
e(f"v_lshlrev_b32 v{vM}, v{vM}, v{vM+1}"); e(f"v_add_u32 v{vM}, -1, v{vM}")
e(f"v_lshrrev_b32 v{vM+1}, 5, v{L}"); e(f"v_lshlrev_b32 v{vM+1}, 2, v{vM+1}"); e(f"v_lshrrev_b32 v{vM}, v{vM+1}, v{vM}")
e(f"s_mov_b32 s{sK}, 0xffff")
event(0)
smf(0, 0); smf(1, 0)
for rho in range(16): e(f"v_bfe_i32 v{MK+rho}, v{vM}, {8*(rho>>2)+(rho&3)}, 1")
smf(0, 1); smf(1, 1)
for x in range(3): vr_(x)
for j in range(8): e(f"v_bfi_b32 v{PM+j}, s{sK}, v{MK+2*j}, v{MK+2*j+1}")
event(1)
b = TR[1]
for rho in range(16): e(f"v_bfi_b32 v{b+rho}, v{MK+rho}, v{b+rho}, v{TR[0]+rho}")
for r in range(0, 16, 2):
    k = (r >> 1) & 1
    e(f"v_max_f32 v{vM+k}, v{b+r}, v{b+r+1}" if r < 4 else f"v_max3_f32 v{vM+k}, v{vM+k}, v{b+r}, v{b+r+1}")
negmax()
for rho in range(16): e(f"v_mov_b32 v{NM+rho}, v{vM}")
for r in range(0, 16, 2):
    e(f"v_pk_add_f32 {vr(b+r,2)}, {vr(b+r,2)}, {vr(vM,2)}")
    if r == 2: smf(2, 0)
event(2)
for r in range(16):
    e(f"v_exp_f32 v{b+r}, v{b+r}")
    if r == 1: smf(2, 1)
    if r == 6: smf(3, 0)
    if r == 11: smf(3, 1)
for x in range(3, 6): vr_(x)
sums(b, True); pack(b)
for j in range(8): e(f"v_bfi_b32 v{TR[0]+j}, v{PM+j}, 0, v{b+j}")
for j in range(8): e(f"v_and_b32 v{b+j}, v{PM+j}, v{b+j}")
stamp('sph')
for x in range(2, 9):
    b = TR[x % 4]; event(x+1)
    if OPT['aprio'] == 3:
        if x % 2 == 0: yprio(x)
        else: e("s_setprio 0")
    mf = ([('p', 0, 0), ('p', 0, 1)] if x == 2 else []) + [('p', x-1, 0), ('p', x-1, 1)] + ([('s', x+2, 0), ('s', x+2, 1)] if x + 2 < 9 else [])
    pos = {6: [1, 5, 9, 13, 18, 26], 4: [1, 6, 11, 18], 2: [1, 8]}[len(mf)]
    ins = [f"v_exp_f32 v{b+r}, v{b+r}" for r in range(16)]
    sv = g.L; g.L = []; sums(b, False); pack(b); ins += [l.strip() for l in g.L]; g.L = sv
    for i, l in enumerate(ins):
        e(l)
        while mf and pos[0] == i:
            k, xx, f = mf.pop(0); pos.pop(0); (pvf if k == 'p' else smf)(xx, f)
e("s_nop 1"); pvf(8, 0); pvf(8, 1)
rowsum()
e(f"v_cmp_ngt_f32 vcc, {f32(2.0**OPT['lthr'])}, v{vSUM}"); e("s_nop 1"); e("s_cmp_lg_u64 vcc, 0"); e("s_branch LB_exact" if OPT['ffb'] else "s_cbranch_scc1 LB_exact")
g.lab("LB_norm")
e(f"v_rcp_f32 v{vSUM}, v{vSUM}")
e(f"s_lshl_b32 s{sT}, s{sRB}, 4"); e(f"s_lshl_b32 s{sT+1}, s{sW}, 1"); e(f"s_add_u32 s{sT}, s{sT}, s{sT+1}")
e(f"s_lshl_b32 s{sT+1}, s{cNT}, 10"); e(f"s_add_u32 s{sT+1}, s{sT+1}, s{cAK}"); e(f"s_add_u32 s{sT+1}, s{sT+1}, {56*512}")
if OPT['aprio']: e("s_setprio 0")
stamp('pv')
if OPT['aearly']: e(f"s_cmp_eq_u32 s{sOK+1}, 1"); e("s_cbranch_scc1 LC_haveA")
e("s_waitcnt vmcnt(0)"); tsL(); e("s_cbranch_scc0 LC_slowH")
g.lab("LC_goH")
g.v = []
for k in range(4): c_aload(0, k)
g.lab("LC_haveA")
assert not OPT['aearly'] or (max(OPT['dpos'][:NPRE]) <= OPT['hq2'] and OPT['hq'] <= OPT['hq2'] + 2 and len(OPT['hpos']) <= 4)
for r in range(16): e(f"v_mul_f32 v{vO+r}, v{vO+r}, v{vSUM}")
for r in range(8): e(f"v_cvt_pk_bf16_f32 v{vO+8+7-r}, v{vO+14-2*r}, v{vO+15-2*r}")
dstore([f"buffer_store_dwordx4 {vr(vO+8+4*f,4)}, v{vOA}, {sr(sWS,4)}, s{sT+1} offen offset:{f*512}" for f in range(2)])
stamp('attn')
g.v += ['st', 'st']
e(f"v_bfe_u32 v{vT}, v{L}, 2, 3"); e(f"v_lshrrev_b32 v{vT+1}, 5, v{L}"); e(f"v_lshl_add_u32 v{vT+1}, v{vT+1}, 4, v{vT}")
e(f"v_lshlrev_b32 v{vT+1}, 8, v{vT+1}"); e(f"v_lshl_add_u32 v{vT+1}, v{vT}, 5, v{vT+1}")
e(f"v_and_b32 v{vT}, 3, v{L}"); e(f"v_lshl_add_u32 v{vT+1}, v{vT}, 3, v{vT+1}")
e(f"s_lshl_b32 s{sT}, s{cQ}, 6"); e(f"v_xor_b32 v{vT+1}, s{sT}, v{vT+1}"); e(f"v_add_u32 v{cvRA}, {CRING}, v{vT+1}")
for u in range(1, 8): e(f"v_xor_b32 v{cvRA+u}, {32*u}, v{cvRA}")
for p in range(1, OPT['apre']):
    for k in range(4): c_aload(p, k)
e("s_barrier")
delay(2, 35)
VERS = {}
for q in range(4):
    b_ = OPT['bal'].get(q, [])
    hs = [(0, k) for k in range(14 + b_)] if isinstance(b_, int) else [(0, k) for k in range(14)] + [(qq - q, st) for qq, st in b_]
    VERS.setdefault(tuple(hs), []).append(q)
cov = sorted((q + dq, st) for hs, qs in VERS.items() for q in qs for dq, st in hs)
assert cov == [(q, st) for q in range(4) for st in range(14)], cov
VL = list(VERS.items())
for V, (hs, qs) in enumerate(VL[1:], 1):
    for q in qs: e(f"s_cmp_eq_u32 s{cQ}, {q}"); e(f"s_cbranch_scc1 LC_ver{V}")
V0 = list(g.v); CUR0 = dict(CUR)
for V, (hs, qs) in enumerate(VL):
    HS = list(hs); NH = len(HS); NS = NH + 4; NOWN = min(NH, 14); g.v = list(V0); CUR.update(CUR0)
    g.lab(f"LC_ver{V}")
    SEQ = []; E = OPT['E']; LD = OPT['LD']; assert D == 6 and E <= 2
    for s in range(NH):
        for ku in range(2):
            us = list(range(8)) if not (s == NH-1 and ku == 1) else [4,5,6,7,2,3,0,1]
            SEQ += [(s, ku, u, (0, 1)) for u in us if u >= 2 or s < NH - E]
    I1 = len(SEQ)
    SEQ += [(s, ku, u, (0, 1)) for s in range(NH, NS) for ku in range(2) for u in range(4, 8)]
    I2 = len(SEQ)
    SEQ += [(s, ku, u, (0, 1)) for s in range(NH, NS) for ku in range(2) for u in (2, 3)]
    I3 = len(SEQ)
    SEQ += [(s, ku, u, (0, 1)) for s in range(NH, NS) for ku in range(2) for u in (0, 1)]
    I4 = len(SEQ)
    SEQ += [(s, ku, u, (0, 1)) for s in range(NH-E, NH) for ku in range(2) for u in (0, 1)]
    RS = {}
    for k, u in enumerate([4,5,6,7,2,3,0,1]): RS[I1 - (3 if E else 4) + k] = u
    if OPT['csn']: SEQ = [(s, ku, u, m[::-1] if (i & 1) else m) for i, (s, ku, u, m) in enumerate(SEQ)]
    def wread(i):
        if i >= len(SEQ): return
        s, ku, u, _ = SEQ[i]
        for tr in range(2):
            g.lds(f"ds_read_b64_tr_b16 {vr(cvWF+4*(i&7)+2*tr,2)}, v{cvRA+u+(8 if s%6 >= 4 else 0)} offset:{(s%6%4)*16384+ku*8192+tr*2048}", ('W', i & 7))
    g.q = []
    for i in range(7): wread(i)
    stamp('loopC')
    cRD = 48
    cvO32, cvRF, cvOUT, cvG = 22, 23, 24, 25
    def ldO(): e(f"buffer_load_dword v{cvPL}, v{cvO32}, {sr(sWS,4)}, s54 offen offset:{FL_O} sc1")
    def ldR(): e(f"buffer_load_dword v{cvPL}, v{cvRF}, {sr(sWS,4)}, s{sT+6} offen offset:{FL_P} sc1")
    def ldR2(): e(f"buffer_load_dword v{cvPL}, off, {sr(sWS,4)}, s{sT+5} offset:{FL_P2} sc1")
    def rloads(ii):
        for i in ii:
            e(f"s_add_u32 s{sT}, s{cRD+3}, {i*16384}")
            for f in range(2): e(f"buffer_load_dwordx4 {vr(cvACC+16*i+8+4*f,4)}, v{vL16}, {sr(sWS,4)}, s{sT} offen offset:{f*1024} sc1")
    def rtake(tag, timeout=False):
        e(f"v_cmp_eq_u32 vcc, 1, v{cvPL}")
        if timeout: e(f"s_sub_u32 s{sT+3}, s{sT+3}, 1"); e(f"s_cselect_b32 s{sT+1}, 15, 0"); e(f"s_or_b32 s{sT+1}, s{sT+1}, vcc_lo")
        else: e("s_nop 1"); e(f"s_mov_b32 s{sT+1}, vcc_lo")
        e(f"s_andn2_b32 s{sT+1}, s{sT+1}, s{sT+5}"); e(f"s_and_b32 s{sT+1}, s{sT+1}, 15"); e(f"s_or_b32 s{sT+5}, s{sT+5}, s{sT+1}")
        for i in (1, 2, 3):
            e(f"s_bitcmp1_b32 s{sT+1}, {i}"); e(f"s_cbranch_scc0 LC_rn{i}{tag}"); rloads((i,)); g.lab(f"LC_rn{i}{tag}")
    t0, t1 = vT, vT+1
    fill = {s: [] for s in range(NS)}
    fill[1] = [[x] for x in (
        f"v_and_b32 v{cvO32}, 31, v{L}", f"v_lshlrev_b32 v{cvO32}, 9, v{cvO32}", f"s_lshl_b32 s54, s{sRB}, 14", f"s_add_u32 s54, s54, {WS_FL:#x}",
        f"v_and_b32 v{t0}, 3, v{L}", f"v_max_u32 v{t0}, 1, v{t0}", f"v_lshlrev_b32 v{t1}, 1, v{t0}", f"v_and_b32 v{t1}, 4, v{t1}", f"v_xor_b32 v{t1}, 4, v{t1}",
        f"v_lshlrev_b32 v{t0}, 3, v{t0}", f"v_xor_b32 v{t0}, s{sLAM}, v{t0}", f"v_lshl_add_u32 v{cvRF}, v{t0}, 9, v{t1}",
        f"s_mov_b32 s{sT+6}, {WS_FL:#x}", f"s_mov_b32 s{sDN}, 0", f"s_mov_b32 s{sOK+1}, 0", f"s_mov_b32 s{sT+5}, 1",
        f"v_mov_b32 v{t0}, 0", f"ds_write_b32 v{t0}, v{t0} offset:{CNT3}", f"ds_write_b32 v{t0}, v{t0} offset:{CNT3+4}")]
    fill[1] += [[f"v_add_u32 v{cvRA+8+u}, {(SLOT[4]-SLOT[0]) & 0xffffffff:#x}, v{cvRA+u}"] for u in range(8)]
    fill[2] = [[x] for x in (
        f"s_lshl_b32 s{sT}, s{sRB}, 3", f"s_add_u32 s{sT}, s{sT}, s{cNT}", f"s_lshl_b32 s{sT}, s{sT}, 18", f"s_lshl_b32 s{sT+1}, s{sW}, 11", f"s_add_u32 s{sT}, s{sT}, s{sT+1}", f"s_add_u32 s{sT}, s{sT}, {WS_PART:#x}")]
    for i in (1, 2, 3):
        fill[2] += [[x] for x in (f"s_xor_b32 s{sT+1}, s{cQ}, {i}", f"s_lshl_b32 s{sT+1}, s{sT+1}, 16", f"s_add_u32 s{sT+1}, s{sT+1}, s{sT}", f"s_add_u32 s{cRD+i-1}, s{sT+1}, {i*16384}")]
    fill[2] += [[x] for x in (f"s_lshl_b32 s{sT+1}, s{cQ}, 16", f"s_add_u32 s{cRD+3}, s{sT+1}, s{sT}",
        f"s_lshl_b32 s{sT}, s{sRB}, 19", f"s_lshl_b32 s{sT+1}, s{sW}, 16", f"s_add_u32 s{sT}, s{sT}, s{sT+1}",
        f"s_lshl_b32 s{sT+1}, s{cNT}, 8", f"s_add_u32 s{sT}, s{sT}, s{sT+1}", f"s_lshl_b32 s{sT+1}, s{cQ}, 6",
        f"s_add_u32 s{cRD+4}, s{sT}, s{sT+1}", f"s_add_u32 s39, s{cRD+4}, 32768",
        f"v_and_b32 v{cvOUT}, 15, v{L}", f"v_lshlrev_b32 v{cvOUT}, 11, v{cvOUT}", f"v_bfe_u32 v{t0}, v{L}, 4, 1", f"v_lshl_add_u32 v{cvOUT}, v{t0}, 5, v{cvOUT}",
        f"v_lshrrev_b32 v{t0}, 5, v{L}", f"v_lshl_add_u32 v{cvOUT}, v{t0}, 4, v{cvOUT}")]
    send = {1: [], 2: [], 3: []}
    for i in (1, 2, 3):
        d = cvACC + 16*i
        for k in range(4):
            a = cvACC + 16*i + 4*k
            send[i] += [[f"v_cvt_pk_bf16_f32 v{d+2*k}, v{a}, v{a+1}", f"v_cvt_pk_bf16_f32 v{d+2*k+1}, v{a+2}, v{a+3}"]]
            if k & 1: send[i] += [[f"@{'T' if i == 1 else 'S'} buffer_store_dwordx4 {vr(d+4*(k>>1),4)}, v{vL16}, {sr(sWS,4)}, s{cRD+i-1} offen offset:{(k>>1)*1024} sc1"]]
    pa = [(s, k) for s in range(OPT['apre'], NS) for k in range(4)]
    pd = [(s, k) for s in range(NPRE, NS) for k in range(2)]
    cvG2 = 172
    cvGc = 174
    def gload():
        e(f"v_and_b32 v{t0}, 7, v{L}"); e(f"v_bfe_u32 v{t1}, v{L}, 3, 1"); e(f"v_lshlrev_b32 v{t1}, 9, v{t1}"); e(f"v_lshl_add_u32 v{t0}, v{t0}, 2, v{t1}")
        e(f"s_lshl_b32 s{sT}, s{sW}, 11"); e(f"s_add_u32 s{sT}, s{sT}, s54")
        for k in range(2): g.vm(f"buffer_load_dword v{cvG2+k}, v{t0}, {sr(sWS,4)}, s{sT} offen offset:{1024*k} sc1", 'gv')
    fill[NH-1] = [["@G"]]
    for k in range(2):
        r = cvG2 + k
        fill[NH-1] += [[f"v_max_f32 v{cvGc+k}, {f32(2.0**-60)}, v{r}"], [f"v_sub_f32 v{r}, 1.0, v{r}"], [f"v_cvt_pk_bf16_f32 v{r}, v{r}, v{r}"], [f"v_and_b32 v{r}, 0xffff0000, v{r}"],
                       [f"v_rcp_f32 v{t0}, v{cvGc+k}", "s_nop 0"], [f"v_mul_f32 v{r}, v{r}, v{t0}"]]
    def rescale(u, mf):
        a = cvACC + 8*u + 4*mf
        if OPT['dbg'] & 2:
            for r in range(4): e(f"v_mul_f32 v{a+r}, v{a+r}, v{cvG2+mf}")
            return
        for r in (0, 2): e(f"v_pk_mul_f32 {vr(a+r,2)}, {vr(a+r,2)}, {vr(cvG2,2)} op_sel:[0,{mf}] op_sel_hi:[1,{mf}]")
    WIN = [[16, 31, fill[1]], [32, 47, fill[2]], [I1-16, I1-5, fill[NH-1]], [I2+1, I2+8, send[2]+send[3]], [I3+1, I3+4, send[1]]]
    for w in WIN: w.append(len(w[2]))
    vis = 0; SIGD = False
    def nafter(tag): return min(15, len(g.v) - 1 - max(i for i, t in enumerate(g.v) if t == tag)) if tag in g.v else min(15, len(g.v))
    for i, (s, ku, u, mfs) in enumerate(SEQ):
        if i == I1: stamp('endH')
        if OPT['pp'] == 1:
            if i == I1: e("s_setprio 2")
            if i == I2 + 9: e("s_setprio 1")
            if i == I3 + 5: e("s_setprio 0")
        if OPT['pp'] == 2 and i in (I2, I3): e("s_barrier")
        cur = NS if i >= I1 else s
        for idx, mf in enumerate(mfs):
            k = 2*ku + mf; a = (cvACC if i < I4 else cvOA) + 8*u + 4*mf
            g.need([('W', i & 7)], [('a', s, k)])
            e(f"{MF16} {vr(a,4)}, {vr(cvWF+4*(i&7),4)}, {vr(cvAR+16*((s+1)%D)+4*k,4)}, " + ("0" if (i < 8 or I4 <= i < I4 + 2) else vr(a,4)))
            if i in RS: rescale(RS[i], mf)
            if idx == 0:
                if i + 7 < len(SEQ) and SEQ[i+7][0] > vis:
                    vis = SEQ[i+7][0]
                    g.need([('W', k) for k in range(8)] if vis <= NH else [], [('d', vis)] + (['st'] if vis == 2 else [])); e("s_barrier")
                    if vis == 2:
                        e(f"s_cmp_lg_u32 s{sW}, 0"); e(f"s_cbranch_scc1 LC_nof1{V}")
                        one_lane(lambda: e(f"buffer_store_dword v{vCN}, off, {sr(sWS,4)}, s{sT+7} offset:{FL_O} sc1"))
                        g.lab(f"LC_nof1{V}")
                wread(i+7)
                nxt = None
                if i % 2 == 0 or i >= I1:
                    okd = pd and pd[0][0] <= cur + LD; oka = pa and pa[0][0] <= cur + LD; assert LD <= 5
                    if okd and (not oka or pd[0][0] <= pa[0][0] and (i % 16 % 6 == 2 or pd[0][0] < pa[0][0])): nxt = 'd'
                    elif oka: nxt = 'a'
                    if nxt == 'd' and pd[0][1] == 0: c_m0(pd[0][0])
            for lo, hi, fl, n0 in WIN:
                if lo <= i <= hi:
                    frac = (i - lo + (idx+1)/len(mfs)) / (hi - lo + 1)
                    while fl and (n0 - len(fl)) < n0 * frac - 1e-9:
                        for x in fl.pop(0):
                            if x.startswith("@S "): g.vm(x[3:], 'snd')
                            elif x.startswith("@T "): g.vm(x[3:], 'snd2')
                            elif x == "@G": g.need([], ['gv'])
                            else: e(x)
            if idx == len(mfs) - 1:
                if nxt == 'd': c_dma(*pd.pop(0))
                elif nxt == 'a':
                    if pa[0] == (NOWN, 0):
                        g.need([], ['opoll']); tsL(); e(f"s_cbranch_scc0 LC_slowO{V}"); g.lab(f"LC_goO{V}"); gload()
                    c_aload(*pa.pop(0))
                if i == 16*(NOWN - LD - 2) + 1: ldO(); g.v.append('opoll')
                if not SIGD and i >= I2 + 11 and (i - I2) % 4 == 3: trysig(nafter('snd'), CNT3, 0, FL_P, force=(i == len(SEQ)-1))
                if not SIGD and i >= I3 + 9 and (i - I3) % 4 == 1: trysig(nafter('snd2'), CNT3+4, 0, FL_P2, sDN=sOK+1)
                if i in (I3 + OPT['rq1'], len(SEQ) - 1 - OPT['rp']): ldR(); g.v.append('rpoll')
                if i == I3 + OPT['rq1'] + 7:
                    g.need([], ['rpoll']); trysig(15, CNT3, 0, FL_P, force=True); trysig(15, CNT3+4, 0, FL_P2, force=True, sDN=sOK+1); rtake(f"{V}e"); SIGD = True
    assert not pa and not pd and not any(w[2] for w in WIN)
    if V < len(VL) - 1: e("s_branch LC_done")
    sv = g.L; g.L = g.tail
    g.lab(f"LC_slowO{V}"); spin(f"LC_spinO{V}", ldO, tsL, sT+3); e(f"s_branch LC_goO{V}")
    g.L = sv
g.lab("LC_done")
sv = g.L; g.L = g.tail
g.lab("LC_slowH"); spin("LC_spinH", ldH, tsL, sT+3); e("s_branch LC_goH")
g.L = sv
delay(3, 12)
stamp('endC')
if not SIGD: trysig(nafter('snd2'), CNT3+4, 0, FL_P2, force=True, sDN=sOK+1)
e(f"s_mov_b32 s{sT+3}, {SPIN:#x}")
e(f"v_mov_b32 v{vT+4}, 0x3f80"); e(f"v_mov_b32 v{vT+5}, 0x3f800000")
if OPT['E']:
    e("s_nop 4")
    for r in range(16): e(f"v_fmac_f32 v{cvACC+r}, v{cvG2+((r>>2)&1)}, v{cvOA+r}")
g.lab("LC_rl")
e("s_waitcnt vmcnt(0)"); rtake("x", True)
e(f"s_cmp_eq_u32 s{sT+5}, 15"); e("s_cbranch_scc1 LC_rd")
if OPT['rsl']: e(f"s_sleep {OPT['rsl']}")
ldR(); e("s_branch LC_rl")
g.lab("LC_rd")
e("s_waitcnt vmcnt(0)")
for i in (2, 3, 1):
    d = cvACC + 16*i + 8
    for r in range(16): e(f"v_dot2_f32_bf16 v{cvACC+r}, v{d+(r>>1)}, v{vT+4+(r&1)}, v{cvACC+r}")
e("s_nop 2")
for mf in range(2):
    x = cvACC + 4*mf; y = x + 8; d = cvOA + 4*mf
    for r in range(4): e(f"v_mul_f32 v{x+r}, v{cvGc+mf}, v{x+r}"); e(f"v_mul_f32 v{y+r}, v{cvGc+mf}, v{y+r}")
    if OPT['pscale']:
        for r in range(4): e(f"v_mul_f32 v{x+r}, {f32(OPT['pscale'])}, v{x+r}"); e(f"v_mul_f32 v{y+r}, {f32(OPT['pscale'])}, v{y+r}")
    if OPT['perr'] and mf == 0:
        e(f"s_or_b32 s{sT}, s2, s{sW}"); e(f"s_cmp_eq_u32 s{sT}, 0"); e(f"s_cselect_b32 s{sT}, {f32(OPT['perr'])}, 0")
        e("s_mov_b64 exec, 1"); e(f"v_add_f32 v{x}, s{sT}, v{x}"); e("s_mov_b64 exec, -1")
    e(f"v_cvt_pk_bf16_f32 v{d}, v{x}, v{x+1}"); e(f"v_cvt_pk_bf16_f32 v{d+1}, v{x+2}, v{x+3}")
    e(f"v_cvt_pk_bf16_f32 v{d+2}, v{y}, v{y+1}"); e(f"v_cvt_pk_bf16_f32 v{d+3}, v{y+2}, v{y+3}")
    e("s_nop 1")
    e(f"v_permlane16_swap_b32 v{d}, v{d+2}"); e(f"v_permlane16_swap_b32 v{d+1}, v{d+3}")
    e(f"buffer_store_dwordx4 {vr(d,4)}, v{cvOUT}, {sr(cOUT,4)}, s{cRD+4 if mf == 0 else 39} offen {OPT['ost']}")
g.lab("LC_fin")
stamp('fin')
if OPT['stamp']:
    e(f"s_lshl_b32 s{sT}, s2, 3"); e(f"s_add_u32 s{sT}, s{sT}, s{sW}"); e(f"s_lshl_b32 s{sT}, s{sT}, 7"); e(f"s_add_u32 s{sT}, s{sT}, {WS_STAMP:#x}")
    e(f"v_lshlrev_b32 v{vT}, 2, v{L}"); e("s_mov_b32 exec_hi, 0")
    e(f"buffer_store_dword v0, v{vT}, {sr(sWS,4)}, s{sT} offen")
    if OPT['stamp'] == 2:
        e(f"v_readlane_b32 s{sT}, v0, 16"); e(f"s_not_b32 s{sT}, s{sT}"); e(f"v_writelane_b32 v0, s{sT}, 16")
        e(f"v_subrev_u32 v{vT}, 60, v{vT}"); e(f"s_mov_b32 exec_lo, {((1<<len(SN))-1)<<16:#x}")
        e(f"buffer_atomic_umax v0, v{vT}, {sr(sDBG,4)}, 0 offen sc1")
if OPT['fixt']:
    if OPT['fixx'] >= 0: e("s_and_b32 s90, s2, 7"); e(f"s_cmp_lg_u32 s90, {OPT['fixx']}"); e("s_cbranch_scc1 L_end")
    g.lab("LF_spin"); e("s_memrealtime s[88:89]"); e("s_waitcnt lgkmcnt(0)"); e("s_sub_u32 s88, s88, s86"); e(f"s_cmp_lt_u32 s88, {OPT['fixt']}"); e("s_cbranch_scc1 LF_spin")
g.lab("L_end")
e("s_endpgm")
g.L += g.tail + g.tail2 + ['LZ_end:']
if OPT['nobar'] or OPT['nodma'] or OPT['nolds'] or OPT['noadv']:
    o = []; inl = False
    for l in g.L:
        if l.startswith('LA_loop') or l.startswith('LC_loop'): inl = True
        if 'LA_h1_' in l or l.startswith('LC_done'): inl = False
        if inl and OPT['nobar'] and 's_barrier' in l: continue
        if inl and OPT['nodma'] and 'buffer_load' in l: continue
        if inl and OPT['nolds'] and 'ds_read' in l: continue
        if inl and OPT['noadv'] and any(f's_add_u32 s{k}, s{k},' in l for k in list(range(sOW, sOW+5)) + [sKX]): continue
        o.append(l)
    g.L = o

DOC = ["; " + l for l in '''
One persistent launch, 256 workgroups x 8 waves, one per CU.  Workgroup = (row block rb of 256 rows, head h).
 A: [q k v | gate | up] = x[256 rows] @ W[:, 96+112+112 cols]; LDS-DMA staging, 16x16x32 MFMA, L2 prefetch of later tiles.
    The last K trip is peeled; K/V publication and silu(gate)*up are folded under its MFMAs.
 B: sliding-window attention of head h (own K/V from LDS, previous row block's K/V from the workspace).
    Softmax shift = max of the diagonal tile; if the row sum shows that shift was too small, the wave redoes the
    block with the true row max (LB_exact).
 C: out tile [256 x 128] over one quarter of K of [h | o] @ [w_down ; wo]; accumulators are scaled by (1-g)/g between
    the h and o parts, the four quarters are summed through the workspace, times g at the end.
Hand-offs: write-through (sc1) stores, drained, counted in LDS, then an sc1 flag in the producer's workspace record;
records are cleared by their owner and acknowledged on d_debug counters before any flag is trusted.
Generated by a script; every spin is bounded.
'''.strip().split("\n")]
hdr = [l.rstrip('\n') for l in open("cdna_kernels/%s.s.ref" % NAME)]
hdr = [l for l in hdr if l.startswith(';') and '@launch' not in l]
out = hdr + [f"; @launch grid=(256,1,1) block=(512,1,1) lds={LDS_BYTES}"] + DOC + ['.amdgcn_target "amdgcn-amd-amdhsa--gfx950"', ".text"] + g.L
out += ['.section .rodata,"a"', ".p2align 6", f""".amdhsa_kernel {KN}
  .amdhsa_next_free_vgpr 256
  .amdhsa_next_free_sgpr 102
  .amdhsa_accum_offset 256
  .amdhsa_group_segment_fixed_size 0
  .amdhsa_kernarg_size 88
  .amdhsa_user_sgpr_count 2
  .amdhsa_user_sgpr_kernarg_segment_ptr 1
  .amdhsa_system_sgpr_workgroup_id_x 1
.end_amdhsa_kernel"""]
out.insert(0, "; stamps: " + ",".join(SN)) if OPT['stamp'] else None
open(sys.argv[1], "w").write("\n".join(out) + "\n")
import hazard
errs = hazard.check("\n".join(g.L))
print("\n".join(errs) if errs else "hazard check clean")
```

```python
import sys, struct
NAME = "gated_mix__sliding_block__swiglu_ffn__prompt"
KN = NAME + "_kernel"
OPT = dict(stamp=0, NP=16, jbx=5, xrd=[0,0,1,1], xpos=[2,4,6,8], wpos=[1,3,5,7,9], pfpos=19, stag=0, PD=3, pf=1, CB=1, defer=0, slp=2, touch=0, pfnt=0, wnt=0, bprio=0, amap=3, fast=0, D=6, E=2, LD=3, rq1=9, pp=1, th=50, px=1, npre=3, apre=1, hpos=[0,0,0,0], dpos=[4,5,6,7], lthr=64, ffb=0, fixt=0, pfl='', pfop='dword', fixx=-1, fr=5, hx=0, fnt=1, cpf=3, cpf0=1, aprio=3, pvs=1, w1=2, csn=1, kq=34, rp=0, rsl=1, ginc=1, astag=1, pst=0, w1e=1, perr=0, dly=0, pscale=0, bal={0:[(1,13)],2:[(3,13)],3:-1,1:-1}, tlb=0, aearly=1, hq2=7, xfl='', wfl='', cfl='', ost='nt', h0=2, nopk=0, pf2=0, wdst=4, wdn=24, otail=0, gl=2, p3=0, rc=24, dbg=2, hq=9, early1=2, snake=1, tst=0, wshift=0, noadv=0, aflag='sc1', kvfast=0, rfast=0, pfast=1, wb=0, pre=0, cmap=1, m16=288*512, c3=0, kvs1=1, cprio=0, AB=0,
           noX=0, noW=0, noA=0, noW2=0, prio=0, kvs=2, nobar=0, nodma=0, nolds=0)
for a in sys.argv[2:]:
    k, v = a.split('='); assert k in OPT, k
    OPT[k] = eval(v)
def f32(x): return "0x%08x" % struct.unpack('<I', struct.pack('<f', x))[0]
def vr(a, n=1): return f"v[{a}:{a+n-1}]" if n > 1 else f"v{a}"
def sr(a, n=1): return f"s[{a}:{a+n-1}]" if n > 1 else f"s{a}"
NV = [0]
class Gen:
    def __init__(s): s.L = []; s.q = []; s.v = []; s.tail = []; s.tail2 = []
    def e(s, t): s.L.append("    " + t)
    def lab(s, t): s.L.append(t + ":")
    def lds(s, t, tag): s.e(t); s.q.append(tag)
    def vm(s, t, tag): s.e(t); s.v.append(tag); NV[0] += 1
    def need(s, tags=(), vt=()):
        w = []
        idx = [i for i, t in enumerate(s.v) if t in vt]
        if idx:
            n = len(s.v) - 1 - max(idx); s.v = s.v[max(idx)+1:]; assert n < 64
            w.append(f"vmcnt({n})")
        idx = [i for i, t in enumerate(s.q) if t in tags]
        if idx:
            n = len(s.q) - 1 - max(idx); s.q = s.q[max(idx)+1:]
            w.append(f"lgkmcnt({min(n,15)})")
        if w: s.e("s_waitcnt " + " ".join(w))
    def steady(s, body):
        sv = s.L; s.L = []; s.q = []; s.v = []
        body(); body(); r = (list(s.q), list(s.v)); s.L = sv
        return r
g = Gen(); e = g.e
M16 = OPT['m16']; A_BYTES = 128*M16
WS_KV = 0x1400000; WS_PART = 0x1C00000; WS_G = 0x2C00000; WS_FL = 0x2C10000; WS_STAMP = 0x3000000; WS_SIZE = 0x4000000
FL_KV, FL_H, FL_O, FL_P, FL_P2 = 128, 256, 260, 384, 388
sFAST = 34+1
LOG2E = 1.4426950408889634
SPIN = 0x8000
MF16 = "v_mfma_f32_16x16x32_bf16"; MF32 = "v_mfma_f32_32x32x16_bf16"
sW, sRB, sH, sMW, sNW = 3, 4, 5, 6, 7
sX, sA, sB, sQ, sWS, sDBG, sPF = 8, 12, 16, 20, 24, 28, 32
sKX, sOW, sMWd, sINCA, sMX, sCNT, sKXE, sPFO, sPFI, sLAM, sOK, sGO = 36, 37, 42, 47, 48, 49, 50, 51, 52, 53, 54, 55
sT = 56; sP = 64; sST = 86
pX, pQKV, pWO, pWG, pWU, pWD, pGW, pOUT, pDBG, pWSp = sP, sP+2, sP+4, sP+8, sP+10, sP+12, sP+14, sP+16, sP+18, sP+20
sFAST = 101
sK = sP+6
vL, vL16, vPF, vDX, vDA, vDB, vXR, vWG, vWQ, vDUM, vCN, vGV, vT = 1, 2, 3, 4, 8, 9, 10, 12, 14, 18, 19, 20, 26
vWF, vXF, vACC = 44, 64, 96
L = vL
def ACC(j, i): return vACC + (4*j+i)*4
XSLOT = 32768; WBASE = 65536; HALF = 20480; WSLOT = 2*HALF; GOFF = 6144; UOFF = 6144+7168
LDS_BYTES = 163840; QLDS = 147456; QLDS3 = 92160; CNTLDS = 163832; CNT2 = 96256; GLDS = 163776; sGW = 96
UNITS = [['q0','q1','k0','k1','g0','u0','g1','u1','g2','u2'], ['v0','v1','g3','u3','g4','u4','g5','u5','g6','u6']]
def srd(d, p, size):
    e(f"s_mov_b32 s{d}, s{p}"); e(f"s_and_b32 s{d+1}, s{p+1}, 0xffff"); e(f"s_mov_b32 s{d+2}, {size:#x}"); e(f"s_mov_b32 s{d+3}, 0x20000")
SN = ['start','loopA','endA','ks','hdone','kvok','bar2','sph','hs','pv','attn','loopC','endH','rs','endC','fin']
SN = ['start','loopA','ks','endA','hdone','kvok','bar2','sph','hs','pv','loopC','endH','rs','endC','rs2','fin']
if OPT['pst']: SN = ['start','karg','x0','w0','setup','w1','land','bar','loopA','fin']
if OPT['tst']: SN = ['start','loopA'] + [f't{i}' for i in range(7)] + ['endA', 'fin']
def stamp(name):
    if OPT['tst'] and name not in ('loopA', 'endA', 'fin'): return
    if name not in SN: return
    idx = SN.index(name); assert idx < 16
    if not OPT['stamp']: return
    e(f"s_memtime s[{sST}:{sST+1}]"); e(f"s_memrealtime s[{sST+2}:{sST+3}]"); e("s_waitcnt lgkmcnt(0)")
    e(f"v_writelane_b32 v0, s{sST}, {idx}"); e(f"v_writelane_b32 v0, s{sST+2}, {idx+16}")
def pstamp(k):
    if OPT['stamp']: e(f"s_memtime s[{92+2*k}:{93+2*k}]")
NDS = [0]
def dstore(lines, on=True):
    if True:
        for l in lines: e(l + " sc1")
        return
    k = NDS[0]; NDS[0] += 1
    e(f"s_cmp_eq_u32 s{sFAST}, 1"); e(f"s_cbranch_scc0 LS_s{k}")
    for l in lines: e(l)
    g.lab(f"LS_r{k}")
    g.tail2 += [f"LS_s{k}:"] + ["    " + l + " sc1" for l in lines] + [f"    s_branch LS_r{k}"]
def delay(k, bit):
    if not (OPT['dly'] >> k) & 1: return
    e(f"s_and_b32 s87, s2, 0x2f"); e(f"s_cmp_lg_u32 s87, {bit}"); e(f"s_cbranch_scc1 LD_{k}")
    for i in range(12): e("s_sleep 127")
    g.lab(f"LD_{k}")
def one_lane(f):
    e("s_mov_b64 exec, 1"); f(); e("s_mov_b64 exec, -1")

def a_wread(nw, n, tj=None):
    n %= 40; t = n // 10; j = n % 10
    if tj: t, j = tj
    sig = (t+1) >> 1; half = (t+1) & 1; slot = sig & 1; un = UNITS[nw][j]
    for tr in range(2):
        if un[0] in 'qkv':
            a = vWQ + 2*slot + int(un[1]); off = half*HALF + 'qkv'.index(un[0])*2048 + tr*512
        else:
            a = vWG + slot; off = half*HALF + (GOFF if un[0] == 'g' else UOFF) + tr*1792 + int(un[1])*32
        g.lds(f"ds_read_b64_tr_b16 {vr(vWF+4*(n%5)+2*tr,2)}, v{a} offset:{off}", ('W', n % 5))
def a_xread(i, t):
    t %= 4
    g.lds(f"ds_read_b128 {vr(vXF+16*(t&1)+4*i,4)}, v{vXR+(t&1)} offset:{(t>>1)*XSLOT+i*2048}", ('X', t & 1, i))
def a_m0(k, n, slot):
    if k == 'x': e(f"s_add_u32 m0, s{sMX}, {slot*XSLOT}")
    elif k == 'w': e(f"s_add_u32 m0, s{sMWd+n}, {slot*WSLOT}")
def a_op(k, n, slot, first=False):
    if k == 'x':
        g.vm(f"buffer_load_dwordx4 v{vDX+n}, {sr(sX,4)}, s{sKX} offen offset:{1024*n} {OPT['xfl']} lds", ('x', slot, n))
        if n == 3:
            e(f"s_add_u32 s{sKX}, s{sKX}, 128")
    elif k == 'w':
        d = [sA, sA, sB, sB, sQ][n]; v = vDA if n < 4 else vDB
        if first: e(f"s_cmp_lt_i32 s{sOW+n}, 0"); e(f"s_cbranch_scc1 LA_skipw{n}")
        g.vm(f"buffer_load_dwordx4 v{v}, {sr(d,4)}, s{sOW+n} offen" + (" nt" if (OPT['wnt'] & 1 or (first and OPT['fnt'])) else "") + f" {OPT['wfl']} lds", ('w', slot, n))
        if first: g.lab(f"LA_skipw{n}")
        e(f"s_add_u32 s{sOW+n}, s{sOW+n}, " + (f"s{sINCA}" if n < 4 else f"{64*6144}"))
    else:
        g.vm(f"buffer_load_{OPT['pfop']} v{vDUM}, v{vPF}, {sr(sPF,4)}, s{sPFO} offen {OPT['pfl']}" + (" nt" if OPT['wnt'] & 2 and NWCUR[0] == 0 else ""), ('p', 0, 0))
        e(f"s_add_u32 s{sPFO}, s{sPFO}, s{sPFI}")
def a_full(k, n, slot, first=False):
    a_m0(k, n, slot)
    if not first: e("s_nop 0")
    a_op(k, n, slot, first)
JBW = 6
def a_events(nw):
    ev = {}; st = OPT['stag']*nw
    for t in (1, 3):
        for n, o in enumerate(OPT['xpos']): assert 0 <= o+st < 20; ev.setdefault((t*10+OPT['jbx']+o+st) % 40, []).append(('x', n, t >> 1))
    for t in (0, 2):
        for n, o in enumerate(OPT['wpos']): assert 0 <= o+st < 20; ev.setdefault((t*10+JBW+o+st) % 40, []).append(('w', n, t >> 1))
        if OPT['pf']: ev.setdefault((t*10+JBW+OPT['pfpos']-st) % 40, []).append(('p', 0, 0))
    return ev
NWCUR = [0]
def a_body(nw):
    NWCUR[0] = nw
    ev = a_events(nw)
    for t in range(4):
        for j in range(10):
            n = t*10 + j; un = UNITS[nw][j]; evs = ev.get(n, [])
            for i in range(4):
                i2 = 3-i if (OPT['snake'] and j & 1) else i
                g.need([('W', n % 5), ('X', t & 1, i2)])
                a, b = vr(vWF+4*(n % 5), 4), vr(vXF+16*(t & 1)+4*i2, 4)
                if un[0] == 'v': a, b = b, a
                e(f"{MF16} {vr(ACC(j,i2),4)}, {a}, {b}, {vr(ACC(j,i2),4)}")
                if i == 0:
                    if t % 2 == 0 and j == JBW:
                        g.need([('W', k) for k in range(5)], [('w', 1-(t >> 1), k) for k in range(5)]); e("s_barrier")
                    if t % 2 == 1 and j == OPT['jbx']:
                        g.need([], [('x', 1-(t >> 1), k) for k in range(4)]); e("s_barrier")
                    a_wread(nw, n+4)
                if i == 1:
                    for ii in range(4):
                        if OPT['jbx'] + OPT['xrd'][ii] == j: a_xread(ii, t+1)
                    if evs: a_m0(*evs[0])
                if i == 2 and evs:
                    a_op(*evs[0])
                    for x in evs[1:]: a_full(*x)

def silu(jg, i, t, R):
    G = ACC(jg, i); U = ACC(jg+1, i)
    for r in range(0, 8, 2): e(f"v_pk_mul_f32 {vr(t+r,2)}, {vr(G+r,2)}, {sr(sK,2)}")
    for r in range(8): e(f"v_exp_f32 v{t+r}, v{t+r}")
    for r in range(0, 8, 2): e(f"v_pk_mul_f32 {vr(G+r,2)}, {vr(G+r,2)}, {vr(U+r,2)}")
    for r in range(0, 8, 2): e(f"v_pk_add_f32 {vr(t+r,2)}, {vr(t+r,2)}, s[94:95]")
    for r in range(8): e(f"v_rcp_f32 v{t+r}, v{t+r}")
    e("s_nop 0")
    for r in range(0, 8, 2): e(f"v_pk_mul_f32 {vr(G+r,2)}, {vr(G+r,2)}, {vr(t+r,2)}")
    for r in range(4): e(f"v_cvt_pk_bf16_f32 v{R+r}, v{G+2*r}, v{G+2*r+1}")
    e("s_nop 1")
    e(f"v_permlane32_swap_b32 v{R}, v{R+2}"); e(f"v_permlane32_swap_b32 v{R+1}, v{R+3}")
def pack2(j, i):
    a, b = ACC(j, i), ACC(j+1, i)
    e(f"v_cvt_pk_bf16_f32 v{a}, v{a}, v{a+1}"); e(f"v_cvt_pk_bf16_f32 v{a+1}, v{a+2}, v{a+3}")
    e(f"v_cvt_pk_bf16_f32 v{a+2}, v{b}, v{b+1}"); e(f"v_cvt_pk_bf16_f32 v{a+3}, v{b+2}, v{b+3}")
def spin(name, load, test, cnt):
    e(f"s_mov_b32 s{cnt}, {SPIN:#x}")
    g.lab(name)
    load(); e("s_waitcnt vmcnt(0)"); test()
    e(f"s_cbranch_scc1 {name}_ok")
    e(f"s_sub_u32 s{cnt}, s{cnt}, 1"); e(f"s_cbranch_scc1 {name}_ok")
    e(f"s_sleep {OPT['slp']}"); e(f"s_branch {name}")
    g.lab(name + "_ok")
NSIG = [0]
sDN, sHB, sFO = 100, 92, 101
vSG = 20
def trysig(n, ldsaddr, flagadd, flagoff, force=False, sDN=sDN):
    k = NSIG[0]; NSIG[0] += 1
    if force: e(f"s_cmp_eq_u32 s{sDN}, 0")
    else:
        e(f"s_getreg_b32 s{sFO}, hwreg(HW_REG_IB_STS)"); e(f"s_and_b32 s{sFO}, s{sFO}, 0xc0000f"); e(f"s_or_b32 s{sFO}, s{sFO}, s{sDN}"); e(f"s_cmp_le_u32 s{sFO}, {n}")
    e(f"s_cbranch_scc1 LG_s{k}"); g.lab(f"LG_r{k}")
    g.tail2 += [f"LG_s{k}:"] + ["    " + x for x in (
        f"v_mov_b32 v{vSG}, {ldsaddr}", f"s_mov_b32 s{sDN}, 0x10000", "s_mov_b64 exec, 1", f"s_waitcnt vmcnt({n})",
        f"ds_add_rtn_u32 v{vSG+1}, v{vSG}, v{vCN}", "s_waitcnt lgkmcnt(0)", f"v_readfirstlane_b32 s{sFO}, v{vSG+1}", "s_nop 1",
        f"s_cmp_lg_u32 s{sFO}, 7", f"s_cbranch_scc1 LG_x{k}", f"s_add_u32 s{sFO}, s{sT+7}, {flagadd}",
        f"buffer_store_dword v{vCN}, off, {sr(sWS,4)}, s{sFO} offset:{flagoff} sc1")] + [f"LG_x{k}:", "    s_mov_b64 exec, -1"]
    sv = g.L; g.L = g.tail2; stamp({FL_KV:'ks',FL_H:'hs',FL_P:'rs',FL_P2:'rs2'}[flagoff]); e(f"s_branch LG_r{k}"); g.L = sv
def gate_acc(X, W, t, one):
    return [[f"v_lshlrev_b32 v{t}, 16, v{X}"], [f"v_and_b32 v{t+1}, 0xffff0000, v{X}"], [f"v_lshlrev_b32 v{t+2}, 16, v{W}"],
            [f"v_and_b32 v{t+3}, 0xffff0000, v{W}"], [f"v_pk_mul_f32 {vr(t,2)}, {vr(t,2)}, {vr(t+2,2)}"], [f"v_cvt_pk_bf16_f32 v{t+4}, v{t}, v{t+1}"],
            [f"v_dot2_f32_bf16 v{t+5}, v{t+4}, v{one}, v{t+5}"]]
def gate_list(t, one):
    o = gate_acc(40, 41, t, one) + gate_acc(38, 39, t, one)
    o.append(["s_nop 1"])
    for m in ("quad_perm:[1,0,3,2] row_mask:0xf", "quad_perm:[2,3,0,1] row_mask:0xf", "row_half_mirror row_mask:0xf",
              "row_mirror row_mask:0xf", "row_bcast:15 row_mask:0xa", "row_bcast:31 row_mask:0xc"):
        o.append(["s_nop 1", f"v_add_f32_dpp v{t+5}, v{t+5}, v{t+5} {m} bank_mask:0xf"])
    o += [[f"v_cvt_pk_bf16_f32 v{t}, v{t+5}, v{t+5}", f"v_and_b32 v{t}, 0xffff0000, v{t}"], [f"v_mul_f32 v{t}, {f32(-LOG2E)}, v{t}", f"v_exp_f32 v{t}, v{t}", "s_nop 0"],
          [f"v_add_f32 v{t}, 1.0, v{t}", f"v_rcp_f32 v{t}, v{t}", "s_nop 0"], [f"v_cvt_pk_bf16_f32 v{t}, v{t}, v{t}", f"v_and_b32 v{t}, 0xffff0000, v{t}"],
          [f"s_lshl_b32 s{sT}, s{sW}, 2", f"s_add_u32 s{sT}, s{sT}, {GLDS}", f"v_mov_b32 v{t+1}, s{sT}"],
          ["s_mov_b32 exec_lo, 0", "s_brev_b32 exec_hi, 1", f"ds_write_b32 v{t+1}, v{t}", "s_mov_b64 exec, -1"]]
    return o

D = OPT['D']; NH = 14; OT = OPT['otail']; NT = 8 if OT else 4; NS = NH + NT
cA, cWt, cOUT, cWo, cX = 8, 12, 16, 32, 40
cAK, cWK, cWK2, cQ, cNT, cM0, cAK2 = 20, 21, 22, 23, 36, 37, 38
cvDW, cvA, cvPL, cvDW2, cvPA = 4, 6, 16, 20, 18
cvWF, cvAR, cvRA, cvOA, cvACC = 28, 60, 156, 176, 192
SLOT = [98304, 114688, 131072, 147456, 65536, 81920]; CNT3 = 0
CRING = 98304
def c_setup():
    e(f"s_lshr_b32 s{cQ}, s{sH}, 3"); e(f"s_and_b32 s{cNT}, s{sH}, 7")
    e(f"s_lshl_b32 s{sT}, s{cNT}, 8")
    e(f"s_lshl_b32 s{cWK}, s{sW}, 14"); e(f"s_add_u32 s{cWK}, s{cWK}, s{sT}")
    e(f"s_lshl_b32 s{cWK2}, s{sW}, {15 if OT else 14}"); e(f"s_add_u32 s{cWK2}, s{cWK2}, s{sT}")
    e(f"s_mul_i32 s{sT}, s{cQ}, {896*2048}"); e(f"s_add_u32 s{cWK}, s{cWK}, s{sT}")
    if OT: e(f"s_lshr_b32 s{sT}, s{cQ}, 1"); e(f"s_lshl_b32 s{sT}, s{sT}, 7")
    else: e(f"s_lshl_b32 s{sT}, s{cQ}, 19")
    e(f"s_add_u32 s{cWK2}, s{cWK2}, s{sT}")
    e(f"s_lshl_b32 s{cM0}, s{sW}, 11")
    srd(cWt, pWD, 0 if OPT['noW2'] else 3584*2048); srd(cWo, pWO, 0 if OPT['noW2'] else 1024*2048)
    srd(cA, pWSp, 0 if OPT['noA'] else A_BYTES); srd(cOUT, pOUT, 2048*2048)
    e(f"s_lshl_b32 s{sT}, s{sRB}, 4"); e(f"s_lshl_b32 s{cAK}, s{sW}, 1"); e(f"s_add_u32 s{sT}, s{sT}, s{cAK}")
    e(f"s_mul_i32 s{cAK}, s{sT}, {M16}"); e(f"s_add_u32 s{cAK2}, s{cAK}, {56*512}")
    e(f"s_mul_i32 s{sT}, s{cQ}, {72*512}"); e(f"s_add_u32 s{cAK}, s{cAK}, s{sT}")
    e(f"v_mov_b32 v{cvA}, v{vL16}"); e(f"v_add_u32 v{cvA+1}, {M16}, v{vL16}")
    e(f"v_lshrrev_b32 v{vT}, 4, v{vL}"); e(f"v_bfe_u32 v{vT+1}, v{vL}, 1, 3"); e(f"v_xor_b32 v{vT+1}, v{vT+1}, v{vT}")
    e(f"v_lshlrev_b32 v{vT}, 11, v{vT}"); e(f"v_lshl_add_u32 v{vT}, v{vT+1}, 5, v{vT}")
    e(f"v_and_b32 v{vT+1}, 1, v{vL}"); e(f"v_lshl_add_u32 v{cvDW}, v{vT+1}, 4, v{vT}")
    e(f"v_xor_b32 v{cvDW+1}, 128, v{cvDW}"); e(f"v_add_u32 v{cvDW+1}, 7168, v{cvDW+1}")
    e(f"v_and_b32 v{cvPA}, 7, v{L}"); e(f"v_lshlrev_b32 v{cvPA}, 9, v{cvPA}")
def c_m0(s): e(f"s_add_u32 m0, s{cM0}, {SLOT[s % 6]}")
HS = [(0, k) for k in range(14)]
CUR = {'a': 0, 'w': 0, 'aq': 0, 'wq': 0}
def c_dma(s, n):
    if s < NH:
        off = HS[s][1]*64*2048
        if HS[s][0] != CUR['wq']: e(f"s_add_u32 s{cWK}, s{cWK}, s41"); CUR['wq'] = 1
        if off != CUR['w']: e(f"s_add_u32 s{cWK}, s{cWK}, {(off-CUR['w']) & 0xffffffff:#x}"); CUR['w'] = off
        g.vm(f"buffer_load_dwordx4 v{cvDW+n}, {sr(cWt,4)}, s{cWK} offen offset:{n*1024} lds", ('d', s))
    else:
        g.vm(f"buffer_load_dwordx4 v{cvDW+n}, {sr(cWo,4)}, s{cWK2} offen offset:{n*1024} lds", ('d', s))
        if n == 1: e(f"s_add_u32 s{cWK2}, s{cWK2}, {64*2048}")
def c_aload(s, k):
    ku, mf = k >> 1, k & 1
    off = HS[s][1]*2048 if s < NH else (14 + s - NH)*2048
    dq = HS[s][0] if s < NH else 0
    if dq != CUR['aq']: e(f"s_{'add' if dq else 'sub'}_u32 s{cAK}, s{cAK}, s42"); CUR['aq'] = dq
    if not (0 <= off - CUR['a'] <= 2048): e(f"s_add_u32 s{cAK}, s{cAK}, {(off-CUR['a']) & 0xffffffff:#x}"); CUR['a'] = off
    g.vm(f"buffer_load_dwordx4 {vr(cvAR+16*((s+1)%D)+4*k,4)}, v{cvA+mf}, {sr(cA,4)}, s{cAK} offen offset:{off-CUR['a']+ku*1024} sc1", ('a', s, k))

g.L += [".globl " + KN, ".p2align 8", f".type {KN},@function"]
g.lab(KN)
e("s_cmp_ge_u32 s2, 256"); e("s_cbranch_scc1 L_end")
e(f"s_load_dwordx16 {sr(sP,16)}, s[0:1], 0"); e(f"s_load_dwordx4 {sr(sP+16,4)}, s[0:1], 64"); e(f"s_load_dwordx2 {sr(sP+20,2)}, s[0:1], 80")
if OPT['stamp']: e(f"s_memtime s[{sST+4}:{sST+5}]"); e(f"s_memrealtime s[{sST+6}:{sST+7}]")
if OPT['fixt']: e("s_memrealtime s[86:87]")
if OPT['cpf0']:
    e(f"s_getpc_b64 s[{sT}:{sT+1}]"); g.lab("LA_pc0")
    e(f"s_sub_u32 s{sT}, s{sT}, LA_pc0-{KN}"); e(f"s_subb_u32 s{sT+1}, s{sT+1}, 0")
    e(f"s_lshr_b32 s{sT+2}, s2, 3"); e(f"s_lshl_b32 s{sT+2}, s{sT+2}, 7")
    e(f"v_lshlrev_b32 v26, 12, v0"); e(f"v_add_u32 v26, s{sT+2}, v26")
    e(f"v_cmp_gt_u32 vcc, LZ_end-{KN}-4, v26"); e(f"v_mov_b32 v27, s{sT+1}"); e(f"s_and_saveexec_b64 s[{sT+2}:{sT+3}], vcc"); e("s_cbranch_execz LA_nopc")
    e(f"v_add_co_u32 v26, vcc, s{sT}, v26"); e("s_nop 1"); e(f"v_addc_co_u32 v27, vcc, 0, v27, vcc")
    e(f"global_load_dword v{vDUM}, v[26:27], off")
    g.lab("LA_nopc"); e("s_mov_b64 exec, -1")
e(f"v_lshrrev_b32 v{vT}, 6, v0"); e(f"v_and_b32 v{vL}, 63, v0"); e(f"v_readfirstlane_b32 s{sW}, v{vT}")
if OPT['amap'] == 0:
    e(f"s_lshr_b32 s{sRB}, s2, 5"); e(f"s_and_b32 s{sH}, s2, 7"); e(f"s_lshl_b32 s{sH}, s{sH}, 2")
    e(f"s_bfe_u32 s{sT}, s2, {(2<<16)|3:#x}"); e(f"s_add_u32 s{sH}, s{sH}, s{sT}")
elif OPT['amap'] == 1:
    e(f"s_and_b32 s{sRB}, s2, 7"); e(f"s_lshr_b32 s{sH}, s2, 3")
elif OPT['amap'] == 2:
    e(f"s_and_b32 s{sRB}, s2, 6"); e(f"s_lshr_b32 s{sT}, s2, 7"); e(f"s_add_u32 s{sRB}, s{sRB}, s{sT}")
    e(f"s_and_b32 s{sH}, s2, 1"); e(f"s_lshl_b32 s{sH}, s{sH}, 4"); e(f"s_bfe_u32 s{sT}, s2, {(4<<16)|3:#x}"); e(f"s_add_u32 s{sH}, s{sH}, s{sT}")
if OPT['amap'] == 3:
    e(f"s_and_b32 s{sRB}, s2, 4"); e(f"s_lshr_b32 s{sT}, s2, 6"); e(f"s_add_u32 s{sRB}, s{sRB}, s{sT}")
    e(f"s_and_b32 s{sH}, s2, 3"); e(f"s_lshl_b32 s{sH}, s{sH}, 3"); e(f"s_bfe_u32 s{sT}, s2, {(3<<16)|3:#x}"); e(f"s_add_u32 s{sH}, s{sH}, s{sT}")
e(f"s_and_b32 s{sMW}, s{sW}, 3"); e(f"s_lshr_b32 s{sNW}, s{sW}, 2")
e(f"s_lshl_b32 s{sLAM}, s{sRB}, 5"); e(f"s_add_u32 s{sLAM}, s{sLAM}, s{sH}")
e(f"v_lshlrev_b32 v{vL16}, 4, v{L}")
e(f"v_lshrrev_b32 v{vT}, 3, v{L}"); e(f"v_lshlrev_b32 v{vT}, 11, v{vT}")
e(f"v_lshrrev_b32 v{vT+1}, 4, v{L}"); e(f"v_and_b32 v{vT+2}, 7, v{L}"); e(f"v_xor_b32 v{vT+1}, v{vT+1}, v{vT+2}")
e(f"v_lshl_add_u32 v{vDX}, v{vT+1}, 4, v{vT}"); e(f"v_xor_b32 v{vDX+1}, 64, v{vDX}")
e(f"v_add_u32 v{vDX+2}, {2*15360}, v{vDX}"); e(f"v_add_u32 v{vDX+3}, {3*15360}, v{vDX+1}"); e(f"v_add_u32 v{vDX+1}, 15360, v{vDX+1}")
def swap23(d, s, t):
    e(f"v_and_b32 v{d}, 0x13, v{s}")
    e(f"v_and_b32 v{t}, 4, v{s}"); e(f"v_lshl_or_b32 v{d}, v{t}, 1, v{d}")
    e(f"v_and_b32 v{t}, 8, v{s}"); e(f"v_lshrrev_b32 v{t}, 1, v{t}"); e(f"v_or_b32 v{d}, v{d}, v{t}")
e(f"v_lshrrev_b32 v{vT}, 2, v{L}"); swap23(vT+1, vT, vT+2)
e(f"v_mul_u32_u24 v{vT+1}, 6144, v{vT+1}")
e(f"v_lshrrev_b32 v{vT}, 3, v{L}"); e(f"v_and_b32 v{vT}, 2, v{vT}"); e(f"v_and_b32 v{vT+2}, 3, v{L}"); e(f"v_xor_b32 v{vT}, v{vT}, v{vT+2}")
e(f"v_lshl_add_u32 v{vDB}, v{vT}, 4, v{vT+1}")
e(f"v_mul_u32_u24 v{vT}, 4682, v0"); e(f"v_lshrrev_b32 v{vT}, 16, v{vT}")
e(f"v_mul_u32_u24 v{vT+3}, 14, v{vT}"); e(f"v_sub_u32 v{vT+3}, v0, v{vT+3}")
swap23(vT+1, vT, vT+2)
e(f"v_mul_u32_u24 v{vT+1}, 7168, v{vT+1}"); e(f"v_lshl_add_u32 v{vDA}, v{vT+3}, 4, v{vT+1}")
e(f"s_lshl_b32 s{sKX}, s{sRB}, 19"); e(f"s_lshl_b32 s{sT}, s{sW}, 16"); e(f"s_add_u32 s{sKX}, s{sKX}, s{sT}")
e(f"s_add_u32 s{sKXE}, s{sKX}, 2048"); e(f"s_lshl_b32 s{sMX}, s{sW}, 12")
e(f"s_mul_i32 s{sOW+1}, s{sH}, 224"); e(f"s_sub_u32 s{sOW}, s{sOW+1}, {32*7168}")
e(f"s_mov_b32 s{sOW+2}, s{sOW}"); e(f"s_mov_b32 s{sOW+3}, s{sOW+1}")
e(f"s_lshl_b32 s{sT}, s{sW}, 10")
for n, o in enumerate((GOFF, GOFF+HALF, UOFF, UOFF+HALF)): e(f"s_add_u32 s{sMWd+n}, s{sT}, {WBASE+o}")
e(f"s_mov_b32 s{sINCA}, {64*7168}")
def qpiece(p):
    half, unit, rg = p // 6, (p % 6) // 2, p % 2
    return (WBASE + half*HALF + unit*2048 + rg*1024, ((-32 + half*32 + rg*16)*6144 + unit*2048) & 0xffffffff)
e(f"s_lshl_b32 s{sT+1}, s{sH}, 6")
e(f"s_add_u32 s{sMWd+4}, s{sT}, {WBASE}")
e(f"s_and_b32 s{sT+2}, s{sW}, 1"); e(f"s_mul_i32 s{sT+2}, s{sT+2}, {16*6144}")
e(f"s_lshr_b32 s{sT+3}, s{sW}, 1"); e(f"s_lshl_b32 s{sT+3}, s{sT+3}, 11"); e(f"s_add_u32 s{sT+2}, s{sT+2}, s{sT+3}")
e(f"s_sub_u32 s{sOW+4}, s{sT+2}, {32*6144}")
for w, p in ((6, 6), (7, 11)):
    l, o = qpiece(p)
    e(f"s_cmp_eq_u32 s{sW}, {w}"); e(f"s_cselect_b32 s{sMWd+4}, {l:#x}, s{sMWd+4}"); e(f"s_cselect_b32 s{sOW+4}, {o:#x}, s{sOW+4}")
e(f"s_add_u32 s{sOW+4}, s{sOW+4}, s{sT+1}")
e("s_waitcnt lgkmcnt(0)")
if OPT['stamp']: e(f"v_writelane_b32 v0, s{sST+4}, 0"); e(f"v_writelane_b32 v0, s{sST+6}, 16")
delay(0, 5)
stamp('karg')
srd(sX, pX, 0 if OPT['noX'] else 2048*2048)
for n in range(4): a_full('x', n, 0)
stamp('x0')
srd(sQ, pQKV, 0 if OPT['noW'] else 1024*6144); srd(sA, pWG, 0 if OPT['noW'] else 1024*7168); srd(sB, pWU, 0 if OPT['noW'] else 1024*7168)
e(f"s_cmp_eq_u32 s{sW}, 7"); e("s_cbranch_scc0 LA_not7")
for d in (sA, sB):
    for k in range(3): e(f"s_mov_b32 s{d+k}, s{sQ+k}")
for n in range(4):
    l, o = qpiece(7+n)
    e(f"s_mov_b32 s{sMWd+n}, {l:#x}"); e(f"s_add_u32 s{sOW+n}, s{sT+1}, {o:#x}")
e(f"s_mov_b32 s{sINCA}, {64*6144}"); e(f"v_mov_b32 v{vDA}, v{vDB}")
g.lab("LA_not7")
if OPT['wshift']:
    for n in range(5): e(f"s_add_u32 s{sOW+n}, s{sOW+n}, " + (f"s{sINCA}" if n < 4 else f"{64*6144}"))
for n in range(5): a_full('w', n, 0, True)
stamp('w0')
srd(sWS, pWSp, WS_SIZE); srd(sDBG, pDBG, 256); srd(sPF, pGW, 2048)
PD = OPT['PD'] - OPT['pre']; sPB = sT+6
assert OPT['amap'] == 3
e(f"s_lshr_b32 s{sT+1}, s2, 3"); e(f"s_lshr_b32 s{sT+2}, s{sH}, 3")
e(f"v_lshlrev_b32 v{vPF}, 7, v{L}"); e(f"s_mov_b32 s{sT+3}, 0"); e(f"s_mov_b32 s{sCNT}, 0"); e(f"s_mov_b32 s{sPFO}, 0"); e(f"s_mov_b32 s{sPFI}, 0")
e(f"s_mov_b32 s{sPB}, s{pX}"); e(f"s_mov_b32 s{sPB+1}, s{pX+1}")
def pfcase(w, body):
    e(f"s_cmp_lg_u32 s{sW}, {w}"); e(f"s_cbranch_scc1 LA_pf{w}"); body(); g.lab(f"LA_pf{w}")
def base(p, size): e(f"s_mov_b32 s{sPB}, s{p}"); e(f"s_mov_b32 s{sPB+1}, s{p+1}"); e(f"s_mov_b32 s{sCNT}, {size:#x}")
R2 = 2 if OPT['pf2'] else 1
def pf_x():
    base(pX, 2048*2048); e(f"v_and_b32 v{vT}, 31, v{L}"); e(f"v_lshlrev_b32 v{vT}, 11, v{vT}"); e(f"v_lshrrev_b32 v{vPF}, 5, v{L}"); e(f"v_lshl_add_u32 v{vPF}, v{vPF}, 7, v{vT}")
    e(f"s_and_b32 s{sT+4}, s{sH}, 7"); e(f"s_lshl_b32 s{sT+4}, s{sT+4}, 16"); e(f"s_lshl_b32 s{sPFO}, s{sRB}, 19"); e(f"s_add_u32 s{sPFO}, s{sPFO}, s{sT+4}")
    e(f"s_add_u32 s{sPFO}, s{sPFO}, {PD*128}"); e(f"s_mov_b32 s{sPFI}, {128*R2}"); e(f"s_mov_b32 s{sT+3}, {32*R2}")
def pf_gu(p):
    def f():
        base(p, 1024*7168); e(f"v_mul_u32_u24 v{vT}, 4682, v{L}"); e(f"v_lshrrev_b32 v{vT}, 16, v{vT}")
        e(f"v_mul_u32_u24 v{vT+1}, {7168-1792}, v{vT}"); e(f"v_add_u32 v{vPF}, v{vPF}, v{vT+1}")
        e(f"v_lshrrev_b32 v{vT}, 1, v{vT}"); e(f"v_mul_u32_u24 v{vT}, {62*7168}, v{vT}"); e(f"v_add_u32 v{vPF}, v{vPF}, v{vT}")
        e(f"s_mul_i32 s{sPFO}, s{sT+1}, {2*7168}"); e(f"s_mul_i32 s{sT+4}, s{sT+2}, 1792"); e(f"s_add_u32 s{sPFO}, s{sPFO}, s{sT+4}")
        e(f"s_add_u32 s{sPFO}, s{sPFO}, {(64*PD-32)*7168}"); e(f"s_mov_b32 s{sPFI}, {64*7168*R2}"); e(f"s_mov_b32 s{sT+3}, {28*R2}")
    return f
def pf_q():
    base(pQKV, 1024*6144); e(f"v_lshrrev_b32 v{vT}, 2, v{L}"); e(f"v_lshlrev_b32 v{vT}, 11, v{vT}"); e(f"v_and_b32 v{vPF}, 3, v{L}")
    e(f"v_lshl_add_u32 v{vPF}, v{vPF}, 7, v{vT}")
    e(f"v_cmp_le_u32 vcc, 24, v{L}"); e(f"v_add_u32 v{vT}, {62*6144}, v{vPF}"); e("s_nop 0"); e(f"v_cndmask_b32 v{vPF}, v{vPF}, v{vT}, vcc")
    e(f"s_mul_i32 s{sPFO}, s{sT+1}, {2*6144}"); e(f"s_lshl_b32 s{sT+4}, s{sT+2}, 9"); e(f"s_add_u32 s{sPFO}, s{sPFO}, s{sT+4}")
    e(f"s_add_u32 s{sPFO}, s{sPFO}, {(64*PD-32)*6144}"); e(f"s_mov_b32 s{sPFI}, {64*6144*R2}"); e(f"s_mov_b32 s{sT+3}, {24*R2}")
def pf_lin(p, size, nl, st=0):
    def f():
        base(p, size); e(f"s_mul_i32 s{sPFO}, s{sLAM}, {nl*128}"); e(f"s_mov_b32 s{sPFI}, {nl*128*256}"); e(f"s_mov_b32 s{sT+3}, {nl}")
        if st: e(f"s_sub_u32 s{sPFO}, s{sPFO}, {st*nl*128*256}")
    return f
if OPT['pf']:
    if PD > 0: pfcase(6, pf_x); pfcase(1, pf_gu(pWG)); pfcase(2, pf_gu(pWU)); pfcase(3, pf_q)
    pfcase(4, pf_lin(pWD, 3584*2048, OPT['wdn'], OPT['wdst'])); pfcase(5, pf_lin(pWO, 1024*2048, 16, OPT['wdst']))
    if OPT['touch'] & 1: pfcase(6, pf_lin(pWSp, A_BYTES, 64))
    def pf_kv():
        pf_lin(pWSp, WS_KV + (0x1000000 if OPT['touch'] & 4 else 0x800000), 64)(); e(f"s_add_u32 s{sPFO}, s{sPFO}, {WS_KV:#x}")
    if OPT['touch'] & 2: pfcase(7, pf_kv)
e(f"v_cmp_gt_u32 vcc, s{sT+3}, v{L}"); e(f"v_bfrev_b32 v{vT}, 1"); e("s_nop 0"); e(f"v_cndmask_b32 v{vPF}, v{vT}, v{vPF}, vcc")
e(f"s_mov_b32 s{sPF}, s{sPB}"); e(f"s_and_b32 s{sPF+1}, s{sPB+1}, 0xffff"); e(f"s_mov_b32 s{sPF+2}, s{sCNT}")
for k in range(OPT['pre']): a_op('p', 0, 0)
W1E = {0: [], 1: [0,2,4], 2: [0,2,4,1,3]}[OPT['w1e']]
for n in W1E: a_full('w', n, 1)
e(f"v_and_b32 v{vT}, 15, v{L}"); e(f"s_lshl_b32 s{sT}, s{sMW}, 6"); e(f"v_add_u32 v{vT}, s{sT}, v{vT}"); e(f"v_lshlrev_b32 v{vT}, 7, v{vT}")
e(f"v_lshrrev_b32 v{vT+1}, 4, v{L}"); e(f"v_bfe_u32 v{vT+2}, v{L}, 1, 3"); e(f"v_xor_b32 v{vT+2}, v{vT+1}, v{vT+2}")
e(f"v_lshl_add_u32 v{vXR}, v{vT+2}, 4, v{vT}"); e(f"v_xor_b32 v{vXR+1}, 64, v{vXR}")
e(f"v_bfe_u32 v{vT}, v{L}, 2, 3")
e(f"v_lshrrev_b32 v{vT+1}, 5, v{L}"); e(f"v_lshl_add_u32 v{vT}, v{vT+1}, 4, v{vT}")
e(f"v_and_b32 v{vT+1}, 3, v{L}"); e(f"v_lshlrev_b32 v{vT+1}, 3, v{vT+1}"); e(f"v_add_u32 v{vT+1}, {WBASE}, v{vT+1}")
e(f"v_mul_u32_u24 v{vWG}, 224, v{vT}"); e(f"v_add_u32 v{vWG}, v{vWG}, v{vT+1}"); e(f"v_add_u32 v{vWG+1}, {WSLOT}, v{vWG}")
e(f"v_lshl_add_u32 v{vWQ}, v{vT}, 6, v{vT+1}"); e(f"v_bfe_u32 v{vT+2}, v{L}, 4, 1"); e(f"v_lshl_add_u32 v{vWQ}, v{vT+2}, 5, v{vWQ}")
e(f"v_xor_b32 v{vWQ+1}, 32, v{vWQ}"); e(f"v_add_u32 v{vWQ+2}, {WSLOT}, v{vWQ}"); e(f"v_add_u32 v{vWQ+3}, {WSLOT}, v{vWQ+1}")
for r in range(vACC, 256): e(f"v_mov_b32 v{r}, 0")
e(f"s_mov_b32 s{sK}, {f32(-LOG2E)}"); e(f"s_mov_b32 s{sK+1}, {f32(-LOG2E)}")
e(f"s_lshl_b32 s{sGO}, s{sLAM}, 3"); e(f"s_add_u32 s{sGO}, s{sGO}, s{sW}"); e(f"s_lshl_b32 s{sGO}, s{sGO}, 11")
e("v_mov_b32 v40, 0"); e("v_mov_b32 v41, 0"); e("v_mov_b32 v25, 0"); e("v_mov_b32 v43, 0x3f803f80"); e(f"v_lshlrev_b32 v42, 2, v{L}"); e(f"s_mov_b32 s{sKXE}, 0")
srd(sGW, pGW, 2048); e("s_mov_b32 s94, 1.0"); e("s_mov_b32 s95, 1.0")
W1A = {0: [0,1,2,3,4], 1: [], 2: [0,2,4]}[OPT['w1']]
stamp('setup')
for n in W1A:
    if n not in W1E: a_full('w', n, 1)
W1A = sorted(set(W1A) | set(W1E))
stamp('w1')
e(f"s_waitcnt vmcnt({len(W1A)+OPT['pre']})"); stamp('land'); e("s_barrier"); stamp('bar')
e(f"s_cmp_eq_u32 s{sNW}, 1"); e("s_cbranch_scc1 LA_pre1")
for nw in range(2):
    if nw == 1: g.lab("LA_pre1")
    sq, sv_ = g.steady(lambda: a_body(nw))
    g.q = []
    for i in range(4): a_xread(i, 0)
    for n in range(4): a_wread(nw, n)
    assert [t for t in sv_ if t[0] == 'w'] == [('w', 1, k) for k in range(5)], sv_
    for n in range(5):
        if n not in W1A: a_full('w', n, 1)
    for t in sv_:
        if t[0] == 'x': assert t[1] == 1; a_full('x', t[2], 1)
    assert not any(t[0] == 'p' for t in sv_[sv_.index(('w', 1, 0)):]), sv_
    e(f"s_mov_b32 s{sCNT}, 8"); e(f"s_mov_b32 s{sOK}, 0")
    stamp('loopA')
    if OPT['prio'] and nw == 1: e("s_setprio 1")
    e("s_waitcnt lgkmcnt(0)")
    g.q = list(sq); g.v = list(sv_)
    g.L.append(".p2align 6"); g.lab(f"LA_loop{nw}")
    a_body(nw); assert g.q == sq and g.v == sv_
    if OPT['tst']:
        e(f"s_memtime s[{sST}:{sST+1}]"); e(f"s_memrealtime s[{sST+2}:{sST+3}]"); e(f"s_sub_u32 s{sST+4}, 10, s{sCNT}"); e(f"s_add_u32 s{sST+5}, s{sST+4}, 16")
        e("s_waitcnt lgkmcnt(0)"); e(f"s_mov_b32 m0, s{sST+4}"); e("s_nop 0"); e(f"v_writelane_b32 v0, s{sST}, m0"); e(f"s_mov_b32 m0, s{sST+5}"); e("s_nop 0"); e(f"v_writelane_b32 v0, s{sST+2}, m0")
    e(f"s_sub_u32 s{sCNT}, s{sCNT}, 1")
    for u in gate_acc(40, 41, 20, 43):
        for x in u: e(x)
    e(f"buffer_load_dword v40, v42, {sr(sX,4)}, s{sGO} offen"); e(f"buffer_load_dword v41, v42, {sr(sGW,4)}, s{sKXE} offen")
    e(f"s_add_u32 s{sGO}, s{sGO}, 256"); e(f"s_add_u32 s{sKXE}, s{sKXE}, 256")
    e(f"s_cmp_lg_u32 s{sCNT}, 1"); e(f"s_cbranch_scc1 LA_h1_{nw}")
    sv = g.L; g.L = g.tail
    g.lab(f"LA_h1_{nw}")
    def hook(c, body, w0=False):
        if w0 and nw == 1: return
        e(f"s_cmp_lg_u32 s{sCNT}, {c}"); e(f"s_cbranch_scc1 LA_n{c}_{nw}")
        if w0: e(f"s_cmp_lg_u32 s{sW}, 0"); e(f"s_cbranch_scc1 LA_loop{nw}")
        body(); e(f"s_branch LA_loop{nw}"); g.lab(f"LA_n{c}_{nw}")
    def rec_store():
        for r in range(28, 32): e(f"v_mov_b32 v{r}, 0")
        e(f"v_mov_b32 v26, {CNTLDS}"); e("ds_write_b32 v26, v28")
        e(f"s_lshl_b32 s{sT}, s{sLAM}, 9"); e(f"s_add_u32 s{sT}, s{sT}, {WS_FL:#x}")
        e("s_mov_b32 exec_hi, 0")
        e(f"buffer_store_dwordx4 v[28:31], v{vL16}, {sr(sWS,4)}, s{sT} offen sc1"); e("s_mov_b64 exec, -1")
    def ack():
        e(f"v_mov_b32 v{vT}, 1"); e(f"s_and_b32 s{sT}, s{sLAM}, 1"); e(f"s_lshl_b32 s{sT}, s{sT}, 7")
        one_lane(lambda: e(f"buffer_atomic_add v{vT}, off, {sr(sDBG,4)}, s{sT} sc1"))
    def ld(): e(f"v_and_b32 v37, 1, v{L}"); e(f"v_lshlrev_b32 v37, 7, v37"); e(f"buffer_load_dword v{vCN}, v37, {sr(sDBG,4)}, 0 offen sc1")
    def ts(): e(f"v_cmp_gt_u32 vcc, 128, v{vCN}"); e("s_nop 1"); e("s_cmp_eq_u64 vcc, 0")
    def gate_loads():
        e(f"v_lshlrev_b32 v42, 5, v{L}")
        e(f"buffer_load_dwordx4 {vr(26,4)}, v42, {sr(sX,4)}, s{sGO} offen"); e(f"buffer_load_dwordx4 {vr(30,4)}, v42, {sr(sX,4)}, s{sGO} offen offset:16")
        e(f"buffer_load_dwordx4 {vr(34,4)}, v42, {sr(sGW,4)}, 0 offen"); e(f"buffer_load_dwordx4 {vr(38,4)}, v42, {sr(sGW,4)}, 0 offen offset:16")
        ld()
    def code_pf():
        e(f"s_getpc_b64 s[{sT}:{sT+1}]"); g.lab("LA_pc")
        e(f"s_sub_u32 s{sT}, s{sT}, LA_pc-{KN}"); e(f"s_subb_u32 s{sT+1}, s{sT+1}, 0")
        e(f"s_lshr_b32 s{sT+2}, s2, 3"); e(f"s_lshl_b32 s{sT+2}, s{sT+2}, 12")
        e(f"v_and_b32 v26, 31, v{L}"); e(f"v_lshlrev_b32 v26, 7, v26"); e(f"v_add_u32 v26, s{sT+2}, v26")
        e(f"v_min_u32 v26, LZ_end-{KN}-4, v26")
        e(f"v_mov_b32 v27, s{sT+1}"); e(f"v_add_co_u32 v26, vcc, s{sT}, v26"); e("s_nop 1"); e(f"v_addc_co_u32 v27, vcc, 0, v27, vcc")
        e(f"global_load_dword v{vDUM}, v[26:27], off")
    if OPT['astag']:
        def ackif(k):
            def f():
                e(f"s_lshr_b32 s{sT}, s2, 3"); e(f"s_mul_i32 s{sT}, s{sT}, 3"); e(f"s_lshr_b32 s{sT}, s{sT}, 5")
                e(f"s_cmp_lg_u32 s{sT}, {k}"); e(f"s_cbranch_scc1 LA_loop{nw}"); ack()
            return f
        hook(7, rec_store, True); hook(6, ackif(0), True); hook(5, ackif(1), True); hook(4, ackif(2), True); hook(2, ld)
    else:
        hook(6, rec_store, True); hook(5, ack, True); hook(2, ld)
    if OPT['cpf']: hook(OPT['cpf'], code_pf, True)
    def tlb_warm():
        e(f"s_mul_i32 s{sT}, s{sRB}, {16*M16}"); e(f"v_mov_b32 v26, s{sT}")
        e(f"s_add_u32 s{sT+1}, s{sT}, {8*M16}"); e(f"v_writelane_b32 v26, s{sT+1}, 1")
        e(f"s_add_u32 s{sT+1}, s{sT}, {16*M16-128}"); e(f"v_writelane_b32 v26, s{sT+1}, 2")
        e(f"s_lshl_b32 s{sT}, s{sLAM}, 15"); e(f"s_add_u32 s{sT}, s{sT}, {WS_KV:#x}"); e(f"v_writelane_b32 v26, s{sT}, 3")
        e(f"s_sub_u32 s{sT}, s{sT}, {32*32768}"); e(f"v_writelane_b32 v26, s{sT}, 4")
        e(f"s_lshl_b32 s{sT}, s{sRB}, 21"); e(f"s_add_u32 s{sT}, s{sT}, {WS_PART:#x}"); e(f"v_writelane_b32 v26, s{sT}, 5")
        e("s_mov_b64 exec, 63"); e(f"buffer_load_dword v{vDUM}, v26, {sr(sWS,4)}, 0 offen"); e("s_mov_b64 exec, 1")
        srd(88, pOUT, 2048*2048); e(f"s_lshl_b32 s{sT}, s{sRB}, 19"); e(f"buffer_load_dword v{vDUM}, off, s[88:91], s{sT}")
        srd(88, pWO, 1024*2048); e(f"buffer_load_dword v{vDUM}, off, s[88:91], 0")
        srd(88, pWD, 3584*2048); e(f"s_lshr_b32 s{sT}, s{sH}, 3"); e(f"s_mul_i32 s{sT}, s{sT}, {896*2048}"); e(f"buffer_load_dword v{vDUM}, off, s[88:91], s{sT}")
        e(f"s_add_u32 s{sT}, s{sT}, {895*2048}"); e(f"buffer_load_dword v{vDUM}, off, s[88:91], s{sT}")
        e("s_mov_b64 exec, -1")
    if OPT['tlb']: hook(OPT['tlb'], tlb_warm, True)
    e(f"s_branch LA_loop{nw}")
    g.lab(f"LA_slow{nw}")
    spin(f"LA_spin{nw}", ld, ts, sT+3); e(f"s_branch LB_go{nw}")
    g.L = sv
    ts(); e(f"s_cbranch_scc0 LA_slow{nw}")
    g.lab(f"LB_go{nw}")
    e(f"buffer_load_dword v38, v42, {sr(sX,4)}, s{sGO} offen"); e(f"buffer_load_dword v39, v42, {sr(sGW,4)}, s{sKXE} offen")
    U = UNITS[nw]; jkv = 2 if nw == 0 else 0
    vHA = 3; vST = 96 - 4*len(OPT['hpos']); vNB = 208; assert len(OPT['hpos']) % 2 == 0
    def cap(f, atomic=False):
        sv = g.L; g.L = []; f(); r = g.L; g.L = sv
        return [r] if atomic else [[x] for x in r]
    def setupB():
        e(f"s_lshl_b32 s{sT+4}, s{sLAM}, 15"); e(f"s_add_u32 s{sT+4}, s{sT+4}, {WS_KV:#x}")
        e(f"s_lshl_b32 s{sT+5}, s{sMW}, 13"); e(f"v_add_u32 v{vT+8}, s{sT+5}, v{vL16}")
        e(f"s_add_u32 s{sT+5}, s{sT+5}, s{sT+4}")
    def setupB2():
        e(f"s_cmp_eq_u32 s{sRB}, 7"); e(f"s_cselect_b32 s{sT+5}, {WS_SIZE:#x}, s{sT+5}")
    def setupB3():
        e(f"s_add_u32 s{sT+6}, s{sT+5}, 4096")
        e(f"v_and_b32 v{vHA}, 31, v{L}"); e(f"v_lshlrev_b32 v{vHA}, 4, v{vHA}"); e(f"v_lshrrev_b32 v{vT+11}, 5, v{L}")
        e(f"v_mul_u32_u24 v{vT+11}, {M16}, v{vT+11}"); e(f"v_add_u32 v{vHA}, v{vHA}, v{vT+11}")
        e(f"s_lshl_b32 s{sT}, s{sRB}, 4"); e(f"s_lshl_b32 s{sT+1}, s{sMW}, 2"); e(f"s_add_u32 s{sT}, s{sT}, s{sT+1}")
        e(f"s_mul_i32 s{sHB}, s{sT}, {M16}"); e(f"s_mul_i32 s{sT}, s{sH}, {7*512}"); e(f"s_add_u32 s{sHB}, s{sHB}, s{sT}")
        e(f"s_lshr_b32 s{sT}, s{sH}, 3"); e(f"s_lshl_b32 s{sT}, s{sT}, 13"); e(f"s_add_u32 s{sHB}, s{sHB}, s{sT}")
        if nw == 1: e(f"s_add_u32 s{sHB}, s{sHB}, {3*512}")
        e(f"s_add_u32 s{sHB+1}, s{sHB}, {2*M16}")
        e(f"s_lshl_b32 s{sT+7}, s{sLAM}, 9"); e(f"s_add_u32 s{sT+7}, s{sT+7}, {WS_FL:#x}")
        e(f"v_mov_b32 v{vCN}, 1"); e(f"s_mov_b32 s{sDN}, 0"); e(f"s_sub_u32 s{sT+3}, s{sT+7}, {32*512}")
    def gpub():
        e(f"s_cmp_lg_u32 s{sW}, 0"); e("s_cbranch_scc1 LB_nog")
        e(f"v_lshlrev_b32 v{vT}, 2, v{L}"); e(f"v_add_u32 v{vT+1}, {GLDS}, v{vT}"); e("s_memrealtime s[88:89]"); e("s_mov_b64 exec, 0xff"); e(f"ds_read_b32 v{vT+1}, v{vT+1}"); e("s_waitcnt lgkmcnt(0)")
        e("s_or_b32 s88, s88, 1"); e(f"v_writelane_b32 v{vT+1}, s88, 8"); e("s_mov_b64 exec, 0x1ff")
        e(f"buffer_store_dword v{vT+1}, v{vT}, {sr(sWS,4)}, s{sT+7} offen sc1"); e("s_mov_b64 exec, -1")
        g.lab("LB_nog")
    def kvout():
        for i in range(4):
            pack2(jkv, i)
            if nw == 1:
                a = ACC(0, i); e("s_nop 1"); e(f"v_permlane32_swap_b32 v{a}, v{a+2}"); e(f"v_permlane32_swap_b32 v{a+1}, v{a+3}")
            e(f"buffer_store_dwordx4 {vr(ACC(jkv,i),4)}, v{vL16}, {sr(sWS,4)}, s{sT+5+(i>>1)} offen offset:{nw*2048+(i&1)*1024} sc1")
    gus = [j for j in range(10) if U[j][0] == 'g']
    def hst(R, k): e(f"buffer_store_dwordx4 {vr(R,4)}, v{vHA}, {sr(sWS,4)}, s{sHB+(k&1)} offen offset:{(k>>1)*512}" + ("" if OPT['hx'] == 1 else " sc1")) if OPT['hx'] != 2 else None
    def ldK(): e(f"buffer_load_dword v{vT+10}, off, {sr(sWS,4)}, s{sT+3} offset:{FL_KV} sc1")
    def tsK(): e(f"v_readfirstlane_b32 s{sT}, v{vT+10}"); e("s_nop 0"); e(f"s_cmp_eq_u32 s{sT}, 1")
    J = [2,3,4,5,6,7,8,9,0,1] if nw == 0 else list(range(10))
    SQ = [(t, j) for t in range(2) for j in range(10)]
    for p in range(5): a_, b_ = J[2*p], J[2*p+1]; SQ += [(2, a_), (2, b_), (3, a_), (3, b_)]
    F = []
    F += [(1, u) for u in cap(setupB) + cap(setupB2, True) + cap(setupB3)]
    vKA, vVA, vQA, vOA = 8, 9, 10, 11
    def att_setup():
        m = vT
        e(f"v_and_b32 v{m+1}, 15, v{L}"); e(f"v_lshlrev_b32 v{m+1}, 4, v{m+1}"); e(f"v_lshrrev_b32 v{m+2}, 5, v{L}")
        e(f"v_lshl_add_u32 v{m+1}, v{m+2}, 8, v{m+1}"); e(f"v_bfe_u32 v{m+2}, v{L}, 4, 1")
        e(f"v_lshl_add_u32 v{vQA}, v{m+2}, 10, v{m+1}"); e(f"v_lshl_add_u32 v{vVA}, v{m+2}, 9, v{m+1}")
        e(f"v_mul_u32_u24 v{vOA}, {M16}, v{m+2}"); e(f"v_add_u32 v{vOA}, v{vOA}, v{m+1}")
        e(f"s_lshl_b32 s{sT}, s{sW}, 12"); e(f"v_add_u32 v{vKA}, s{sT}, v{vQA}"); e(f"v_add_u32 v{vVA}, s{sT}, v{vVA}")
    def q_addr():
        e(f"s_lshl_b32 s{sT}, s{sW}, 11"); e(f"s_cmp_ge_u32 s{sW}, 6"); e(f"s_cselect_b32 s{sT+1}, {QLDS3-6*2048}, {QLDS}".replace(f", {QLDS}", f", s{sT+2}"))
        e(f"s_add_u32 s{sT}, s{sT}, s{sT+1}"); e(f"v_add_u32 v{vQA}, s{sT}, v{vQA}")
        if nw == 0:
            e(f"s_lshl_b32 s{sT}, s{sMW}, 12"); e(f"s_cmp_eq_u32 s{sMW}, 3"); e(f"s_cselect_b32 s{sT+1}, {QLDS3-3*4096}, s{sT+2}")
            e(f"s_add_u32 s{sT}, s{sT}, s{sT+1}"); e(f"v_add_u32 v{vT+9}, s{sT}, v{vL16}")
    def cnt0():
        e(f"v_mov_b32 v{vT+12}, {CNT2}"); e(f"v_mov_b32 v{vT+13}, 0"); e(f"ds_write_b32 v{vT+12}, v{vT+13}"); e(f"ds_write_b32 v{vT+12}, v{vT+13} offset:4"); e(f"ds_write_b32 v{vT+12}, v{vT+13} offset:8")
    def kvlds():
        for i in range(4): e(f"ds_write_b128 v{vT+8}, {vr(ACC(jkv,i),4)} offset:{32768+(i>>1)*4096+nw*2048+(i&1)*1024}")
    F += [(10, u) for u in cap(c_setup)]
    F += [(18, [("    " + x) for x in u]) for u in gate_list(20, 43)]
    if nw == 0: F += [(19, u) for u in cap(cnt0)]
    F += [(21, u) for u in cap(att_setup) + [[f"    s_mov_b32 s{sT+2}, {QLDS}"]] + cap(q_addr, True)]
    F += [(24, u) for u in cap(kvout) + cap(kvlds)]
    if nw == 0: F += [(24, u) for u in cap(gpub, True)]
    nk = 2*len(gus)
    for k in range(nk):
        j, i = gus[k >> 1], 2*(k & 1); av = 28 + 4*(k >> 1)
        F += [(av, u) for u in cap(lambda: silu(j, i, vT, ACC(j, i)))]
        NE = nk - len(OPT['hpos'])
        F += [(av, u) for u in cap(lambda: trysig(min(k, NE), CNTLDS, 0, FL_KV, force=(k == nk-1)), True)]
        if k < NE: F += [(av, u) for u in cap(lambda: hst(ACC(j, i), k))]
    ev = {n: [x for x in v if x[0] == 'x' and x[2] == 1] for n, v in a_events(nw).items() if n < 10}
    for n, k in zip((7, 8, 9), (0, 2, 4)): ev.setdefault(n, []).append(('w', k, 0))
    for n, (t, j) in enumerate(SQ):
        un = U[j]; evs = ev.get(n, [])
        for i in range(4):
            g.need([('W', n % 5), ('X', t & 1, i)])
            a, b = vr(vWF+4*(n % 5), 4), vr(vXF+16*(t & 1)+4*i, 4)
            if un[0] == 'v': a, b = b, a
            e(f"{MF16} {vr(ACC(j,i),4)}, {a}, {b}, {vr(ACC(j,i),4)}")
            if i == 0:
                if n == JBW: g.need([('W', k) for k in range(5)], [('w', 1, k) for k in range(5)]); e("s_barrier")
                if n == 17:
                    g.need([('W', k) for k in range(5)], [('x', 1, k) for k in range(4)] + [('w', 0, k) for k in range(5)]); e("s_barrier")
                if n == 22: assert not any(av <= 18 for av, u in F)
                if n == 23: g.need([('X', 1, k) for k in range(4)] + [('W', k) for k in range(5)]); e("s_barrier")
                if n + 4 < 40: a_wread(nw, n+4, SQ[n+4])
                if nw == 0 and n == OPT['kq']: ldK()
            if i == 1:
                for ii in range(4):
                    if n == OPT['jbx'] + OPT['xrd'][ii]: a_xread(ii, 1)
                    if n == 17 + (ii >> 1): a_xread(ii, 2)
                    if n == 20: a_xread(ii, 3)
                if evs: a_m0(*evs[0])
            if i == 2 and evs:
                a_op(*evs[0])
                for x in evs[1:]: a_full(*x)
            c = 0
            while F and F[0][0] <= n and c < (2 if n < 12 else 3 if n < 20 else OPT['fr']) and not (i == 1 and evs):
                u = F.pop(0)[1]; g.L += u; c += len(u)
    stamp('endA')
    left = sum(1 for av, u in F for x in u if 'buffer_store_dwordx4' in x)
    print("path", nw, "leftover filler instrs", sum(len(u) for av, u in F), "stores", left)
    if nw == 0 and OPT['h0']:
        vNB = 40
        e(f"s_mov_b32 s{sT+5}, {WS_SIZE:#x}")
        e(f"s_cmp_eq_u32 s{sRB}, 0"); e("s_cbranch_scc1 LB_rb0")
        e("s_waitcnt vmcnt(0)"); trysig(15, CNTLDS, 0, FL_KV, force=True); tsK(); e("s_cbranch_scc0 LB_late")
        e(f"s_sub_u32 s{sT+5}, s{sT+4}, {32*32768}")
        g.lab("LB_rb0")
        e(f"s_add_u32 s{sT+6}, s{sT+5}, 4096")
        def nbl():
            for f in range(8): e(f"buffer_load_dwordx4 {vr(vNB+4*f,4)}, v{vT+8}, {sr(sWS,4)}, s{sT+5+(f>>2)} offen offset:{(f&3)*1024} sc1")
        nbl(); e(f"s_mov_b32 s{sT+4}, 0")
        g.lab("LB_late")
        for r in range(32): e(f"v_mul_f32 v{ACC(0,0)+r}, {f32(32 ** -0.5 * LOG2E)}, v{ACC(0,0)+r}")
        for i in range(4): pack2(0, i)
        for i in range(4): e(f"ds_write_b128 v{vT+9}, {vr(ACC(0,i),4)} offset:{i*1024}")
    else: e("s_nop 7")
    assert not any('ds_write' in x for av, u in F for x in u)
    for av, u in F: g.L += u
    for k in range(NE, nk):
        for r in range(4): e(f"v_mov_b32 v{vST+4*(k-NE)+r}, v{ACC(gus[k>>1], 2*(k&1))+r}")
    if NE: e(f"s_add_u32 s{sHB}, s{sHB}, {NE*256}"); e(f"s_add_u32 s{sHB+1}, s{sHB+1}, {NE*256}")
    stamp('hdone')
    if nw == 0:
        e(f"s_cmp_eq_u32 s{sT+4}, 0"); e("s_cbranch_scc1 LB_have")
        spin("LB_spin", ldK, tsK, sT+5)
        e(f"s_sub_u32 s{sT+5}, s{sT+4}, {32*32768}"); e(f"s_add_u32 s{sT+6}, s{sT+5}, 4096")
        nbl(); e("s_waitcnt vmcnt(0)")
        g.lab("LB_have")
        NLEFT = left; vNB0 = vNB
    stamp('kvok')
    if nw == 0: e("s_branch LB_common")
g.lab("LB_common")
FR = [40, 48, 56, 64, 96, 104]; vQ = 32; vS = 112; vM = 26; vSUM = 28
BIG = 2.0**100
assert OPT['npre'] <= 3
e(f"s_mov_b32 s{sDN}, 0")
e(f"s_andn2_b32 s{sT+4}, s{sLAM}, 7"); e(f"s_lshl_b32 s{sT+4}, s{sT+4}, 9"); e(f"s_add_u32 s{sT+4}, s{sT+4}, {WS_FL:#x}")
e(f"s_cmp_eq_u32 s{sNW}, 1"); e("s_cbranch_scc1 LB_nokv")
for f in range(8):
    e(f"s_waitcnt vmcnt({7-f+NLEFT})"); e(f"ds_write_b128 v{vT+8}, {vr(vNB0+4*f,4)} offset:{f*1024}")
g.lab("LB_nokv")
e("s_waitcnt lgkmcnt(0)"); e("s_barrier")
delay(1, 10)
stamp('bar2')
ORD = [0, 8, 1, 2, 3, 4, 5, 6, 7]
def yprio(k):
    e(f"s_cmp_eq_u32 s{sNW}, 0"); e(f"s_cbranch_scc1 LP_{k}"); e("s_setprio 1"); g.lab(f"LP_{k}")
if OPT['aprio'] == 1: yprio(0)
def kread(x):
    t = ORD[x]
    for f in range(2): g.lds(f"ds_read_b128 {vr(FR[x%6]+4*f,4)}, v{vKA} offset:{t*4096+f*512}", ('K', x, f))
def vread(x):
    t = ORD[x]
    for f in range(2): g.lds(f"ds_read_b128 {vr(FR[(x+3)%6]+4*f,4)}, v{vVA} offset:{t*4096+2048+f*1024}", ('V', x, f))
def mx(t, half=None):
    b = vS + 16*t
    for r in range(0, 16, 2):
        if half is not None and (r >> 3) != half: continue
        k = (r >> 1) & 1
        if t == 8 and r < 4: e(f"v_max_f32 v{vM+k}, v{b+r}, v{b+r+1}")
        else: e(f"v_max3_f32 v{vM+k}, v{vM+k}, v{b+r}, v{b+r+1}")
def masked(op, hi=vS+128, lo=vS):
    for rho in range(16):
        cst = 8*(rho >> 2) + (rho & 3)
        e(f"s_bfm_b32 exec_lo, {cst}, 0"); e(f"s_bfm_b32 exec_hi, {cst+4}, 0"); e(f"{op} v{hi+rho}, v{lo+rho}")
    e("s_mov_b64 exec, -1")
def merge():
    masked("v_mov_b32")
    for rho in range(16): e(f"v_mov_b32 v{vS+rho}, 0")
NPRE = OPT['npre']
def ldH(): e(f"buffer_load_dword v{cvPL}, v{cvPA}, {sr(sWS,4)}, s{sT+4} offen offset:{FL_H} sc1")
def tsL(): e(f"v_cmp_ne_u32 vcc, 1, v{cvPL}"); e("s_nop 1"); e("s_cmp_eq_u64 vcc, 0")
AFTER = [0]; NH2 = [0]
def ldT():
    e(f"v_and_b32 v12, 1, v{L}"); e(f"v_mul_u32_u24 v12, {OPT['px']*8*512}, v12"); e(f"v_xor_b32 v12, s{sT+7}, v12")
    e(f"buffer_load_dword v13, v12, {sr(sWS,4)}, 0 offen offset:32 sc1")
def tsT(): e("v_cmp_eq_u32 vcc, 0, v13"); e("s_nop 1"); e("s_cmp_eq_u64 vcc, 0")
def event(x):
    if x == 4: ldT(); AFTER[0] += 1
    for k, p in enumerate(OPT['hpos']):
        if p == x: hst(vST+4*k, k); AFTER[0] = 0
    if max(OPT['hpos'] + [-1]) < x <= OPT['hq']: trysig(AFTER[0], CNT2, 0, FL_H, force=(x == OPT['hq']))
    for k, p in enumerate(OPT['dpos'][:NPRE]):
        if p == x: c_m0(k); e("s_nop 0"); c_dma(k, 0); c_dma(k, 1); AFTER[0] += 2
    if OPT['aearly'] and x == OPT['hq2']: ldH(); AFTER[0] += 1; NH2[0] = AFTER[0]
    if OPT['aearly'] and x == OPT['hq2'] + 2:
        e(f"s_mov_b32 s{sOK+1}, 0"); e(f"s_waitcnt vmcnt({AFTER[0]-NH2[0]})"); tsL(); e("s_cbranch_scc0 LB_noe")
        for k in range(4): c_aload(0, k)
        e(f"s_mov_b32 s{sOK+1}, 1"); e("s_branch LB_e2")
        g.lab("LB_noe"); ldH(); g.lab("LB_e2")
    if not OPT['aearly'] and x == OPT['hq']: ldH(); AFTER[0] += 1
sTH = sT+2
vO = vS + 8
def rowsum():
    e(f"v_pk_add_f32 {vr(vSUM,2)}, {vr(vSUM,2)}, {vr(vSUM+2,2)}"); e(f"v_add_f32 v{vSUM}, v{vSUM}, v{vSUM+1}")
    e(f"v_mov_b32 v{vSUM+1}, v{vSUM}"); e("s_nop 1"); e(f"v_permlane32_swap_b32 v{vSUM}, v{vSUM+1}")
    e(f"v_add_f32 v{vSUM}, v{vSUM}, v{vSUM+1}")
def negmax():
    e(f"v_max_f32 v{vM}, v{vM}, v{vM+1}"); e(f"v_mov_b32 v{vM+1}, v{vM}"); e("s_nop 1")
    e(f"v_permlane32_swap_b32 v{vM}, v{vM+1}"); e(f"v_max_f32 v{vM}, v{vM}, v{vM+1}")
    e(f"v_mul_f32 v{vM}, -1.0, v{vM}"); e(f"v_mov_b32 v{vM+1}, v{vM}")
def sums(b, first):
    for r in range(0, 16, 2):
        s = vSUM + 2*((r >> 1) & 1)
        if first and r < 4: e(f"v_pk_add_f32 {vr(s,2)}, {vr(b+r,2)}, {vr(b+r+4,2)}")
        elif first and r < 8: pass
        else: e(f"v_pk_add_f32 {vr(s,2)}, {vr(s,2)}, {vr(b+r,2)}")
sv = g.L; g.L = g.tail; g.lab("LB_exact")
e("s_nop 15"); e("s_waitcnt lgkmcnt(0)")
g.q = []
for x in range(6): kread(x)
for x in range(9):
    t = ORD[x]
    g.need([('K', x, 1)])
    if t < 8:
        e(f"s_cmp_le_u32 s{sTH}, {t}"); e(f"s_cbranch_scc1 LB_v{t}")
        for rho in range(16): e(f"v_mov_b32 v{vS+16*t+rho}, {f32(-BIG)}")
        e(f"s_branch LB_w{t}"); g.lab(f"LB_v{t}")
    for f in range(2): e(f"{MF32} {vr(vS+16*t,16)}, {vr(FR[x%6]+4*f,4)}, {vr(vQ+4*f,4)}, " + (vr(vS+16*t, 16) if f else "0"))
    if t < 8: g.lab(f"LB_w{t}")
    if x + 6 < 9: kread(x+6)
    else: vread(x-3)
e("s_nop 15"); merge()
for x in range(1, 9): mx(ORD[x])
negmax()
def pbase(t): return vS if t == 0 else vS + 16*t + 8
def soft(t):
    b = vS + 16*t
    for r in range(0, 16, 2): e(f"v_pk_add_f32 {vr(b+r,2)}, {vr(b+r,2)}, {vr(vM,2)}")
    for r in range(16): e(f"v_exp_f32 v{b+r}, v{b+r}")
    sums(b, t == 8)
    if t == 8:
        masked("v_swap_b32")
        for r in range(8): e(f"v_cvt_pk_bf16_f32 v{vS+r}, v{vS+2*r}, v{vS+2*r+1}")
    for r in range(7, -1, -1): e(f"v_cvt_pk_bf16_f32 v{b+8+r}, v{b+2*r}, v{b+2*r+1}")
for t in ORD[1:]: soft(t)
e("s_nop 1")
for x in range(9):
    for f in range(2):
        g.need([('V', x, f)])
        e(f"{MF32} {vr(vO,16)}, {vr(FR[(x+3)%6]+4*f,4)}, {vr(pbase(ORD[x])+4*f,4)}, " + ("0" if (x == 0 and f == 0) else vr(vO, 16)))
    if x + 6 < 9: vread(x+6)
rowsum(); e("s_nop 7"); e("s_branch LB_norm")
g.lab("LB_nb")
for rho in range(16): e(f"v_mov_b32 v{240+rho}, {f32(-BIG)}")
e(f"s_sub_u32 s{sTH}, 8, s{sW}"); e("s_branch LB_nbr")
g.L = sv
TR = [136, 152, 168, 184]; NM = 200; KR = [216, 224, 232, 112]; NB = 240
def kr(x):
    for f in range(2): g.lds(f"ds_read_b128 {vr(KR[x%4]+4*f,4)}, v{vKA} offset:{ORD[x]*4096+f*512}", ('K', x, f))
def vr_(x):
    for f in range(2): g.lds(f"ds_read_b128 {vr(FR[x%6]+4*f,4)}, v{vVA} offset:{ORD[x]*4096+2048+f*1024}", ('V', x, f))
def smf(x, f):
    t = ORD[x]; d = vr(TR[x%4], 16)
    g.need([('K', x, f), ('Q', f)])
    ab = f"{vr(KR[x%4]+4*f,4)}, {vr(vQ+4*f,4)}"
    if f == 1:
        e(f"{MF32} {d}, {ab}, {d}")
        if x + 4 < 9: kr(x+4)
        return
    if t < 8:
        e(f"s_cmp_gt_u32 s{sTH}, {t}"); e(f"s_cbranch_scc1 LB_m{t}")
        g.tail2 += [f"LB_m{t}:", f"    {MF32} {d}, {ab}, {vr(NB,16)}", f"    s_branch LB_n{t}"]
    e(f"{MF32} {d}, {ab}, " + ("0" if x < 2 else vr(NM, 16)))
    if t < 8: g.lab(f"LB_n{t}")
def pvf(x, f):
    g.need([('V', x, f)])
    e(f"{MF32} {vr(vO,16)}, {vr(FR[x%6]+4*f,4)}, {vr(TR[x%4]+4*f,4)}, " + ("0" if (x == 0 and f == 0) else vr(vO, 16)))
    if f == 1 and x + 6 < 9: vr_(x+6)
def pack(b):
    for r in range(8): e(f"v_cvt_pk_bf16_f32 v{b+r}, v{b+2*r}, v{b+2*r+1}")
g.q = []
for f in range(2): g.lds(f"ds_read_b128 {vr(vQ+4*f,4)}, v{vQA} offset:{f*512}", ('Q', f))
for x in range(4): kr(x)
e(f"s_mov_b32 s{sTH}, 0"); e(f"s_cmp_eq_u32 s{sRB}, 0"); e("s_cbranch_scc1 LB_nb"); g.lab("LB_nbr")
MK = TR[3]; PM = 72
e(f"v_and_b32 v{vM}, 31, v{L}"); e(f"v_lshlrev_b32 v{vM}, v{vM}, 2".replace(f"v{vM}, v{vM}, 2", f"v{vM}, v{vM}, v{vM+1}") if False else f"v_mov_b32 v{vM+1}, 2")
e(f"v_lshlrev_b32 v{vM}, v{vM}, v{vM+1}"); e(f"v_add_u32 v{vM}, -1, v{vM}")
e(f"v_lshrrev_b32 v{vM+1}, 5, v{L}"); e(f"v_lshlrev_b32 v{vM+1}, 2, v{vM+1}"); e(f"v_lshrrev_b32 v{vM}, v{vM+1}, v{vM}")
e(f"s_mov_b32 s{sK}, 0xffff")
event(0)
smf(0, 0); smf(1, 0)
for rho in range(16): e(f"v_bfe_i32 v{MK+rho}, v{vM}, {8*(rho>>2)+(rho&3)}, 1")
smf(0, 1); smf(1, 1)
for x in range(3): vr_(x)
for j in range(8): e(f"v_bfi_b32 v{PM+j}, s{sK}, v{MK+2*j}, v{MK+2*j+1}")
event(1)
b = TR[1]
for rho in range(16): e(f"v_bfi_b32 v{b+rho}, v{MK+rho}, v{b+rho}, v{TR[0]+rho}")
for r in range(0, 16, 2):
    k = (r >> 1) & 1
    e(f"v_max_f32 v{vM+k}, v{b+r}, v{b+r+1}" if r < 4 else f"v_max3_f32 v{vM+k}, v{vM+k}, v{b+r}, v{b+r+1}")
negmax()
for rho in range(16): e(f"v_mov_b32 v{NM+rho}, v{vM}")
for r in range(0, 16, 2):
    e(f"v_pk_add_f32 {vr(b+r,2)}, {vr(b+r,2)}, {vr(vM,2)}")
    if r == 2: smf(2, 0)
event(2)
for r in range(16):
    e(f"v_exp_f32 v{b+r}, v{b+r}")
    if r == 1: smf(2, 1)
    if r == 6: smf(3, 0)
    if r == 11: smf(3, 1)
for x in range(3, 6): vr_(x)
sums(b, True); pack(b)
for j in range(8): e(f"v_bfi_b32 v{TR[0]+j}, v{PM+j}, 0, v{b+j}")
for j in range(8): e(f"v_and_b32 v{b+j}, v{PM+j}, v{b+j}")
stamp('sph')
for x in range(2, 9):
    b = TR[x % 4]; event(x+1)
    if OPT['aprio'] == 3:
        if x % 2 == 0: yprio(x)
        else: e("s_setprio 0")
    mf = ([('p', 0, 0), ('p', 0, 1)] if x == 2 else []) + [('p', x-1, 0), ('p', x-1, 1)] + ([('s', x+2, 0), ('s', x+2, 1)] if x + 2 < 9 else [])
    pos = {6: [1, 5, 9, 13, 18, 26], 4: [1, 6, 11, 18], 2: [1, 8]}[len(mf)]
    ins = [f"v_exp_f32 v{b+r}, v{b+r}" for r in range(16)]
    sv = g.L; g.L = []; sums(b, False); pack(b); ins += [l.strip() for l in g.L]; g.L = sv
    for i, l in enumerate(ins):
        e(l)
        while mf and pos[0] == i:
            k, xx, f = mf.pop(0); pos.pop(0); (pvf if k == 'p' else smf)(xx, f)
e("s_nop 1"); pvf(8, 0); pvf(8, 1)
rowsum()
e(f"v_cmp_ngt_f32 vcc, {f32(2.0**OPT['lthr'])}, v{vSUM}"); e("s_nop 1"); e("s_cmp_lg_u64 vcc, 0"); e("s_branch LB_exact" if OPT['ffb'] else "s_cbranch_scc1 LB_exact")
g.lab("LB_norm")
e(f"v_rcp_f32 v{vSUM}, v{vSUM}")
e(f"s_lshl_b32 s{sT}, s{sRB}, 4"); e(f"s_lshl_b32 s{sT+1}, s{sW}, 1"); e(f"s_add_u32 s{sT}, s{sT}, s{sT+1}")
e(f"s_lshl_b32 s{sT+1}, s{cNT}, 10"); e(f"s_add_u32 s{sT+1}, s{sT+1}, s{cAK}"); e(f"s_add_u32 s{sT+1}, s{sT+1}, {56*512}")
if OPT['aprio']: e("s_setprio 0")
stamp('pv')
if OPT['aearly']: e(f"s_cmp_eq_u32 s{sOK+1}, 1"); e("s_cbranch_scc1 LC_haveA")
e("s_waitcnt vmcnt(0)"); tsL(); e("s_cbranch_scc0 LC_slowH")
g.lab("LC_goH")
g.v = []
for k in range(4): c_aload(0, k)
g.lab("LC_haveA")
assert not OPT['aearly'] or (max(OPT['dpos'][:NPRE]) <= OPT['hq2'] and OPT['hq'] <= OPT['hq2'] + 2 and len(OPT['hpos']) <= 4)
for r in range(16): e(f"v_mul_f32 v{vO+r}, v{vO+r}, v{vSUM}")
for r in range(8): e(f"v_cvt_pk_bf16_f32 v{vO+8+7-r}, v{vO+14-2*r}, v{vO+15-2*r}")
dstore([f"buffer_store_dwordx4 {vr(vO+8+4*f,4)}, v{vOA}, {sr(sWS,4)}, s{sT+1} offen offset:{f*512}" for f in range(2)])
stamp('attn')
g.v += ['st', 'st']
e(f"v_bfe_u32 v{vT}, v{L}, 2, 3"); e(f"v_lshrrev_b32 v{vT+1}, 5, v{L}"); e(f"v_lshl_add_u32 v{vT+1}, v{vT+1}, 4, v{vT}")
e(f"v_lshlrev_b32 v{vT+1}, 8, v{vT+1}"); e(f"v_lshl_add_u32 v{vT+1}, v{vT}, 5, v{vT+1}")
e(f"v_and_b32 v{vT}, 3, v{L}"); e(f"v_lshl_add_u32 v{vT+1}, v{vT}, 3, v{vT+1}")
e(f"s_lshl_b32 s{sT}, s{cQ}, 6"); e(f"v_xor_b32 v{vT+1}, s{sT}, v{vT+1}"); e(f"v_add_u32 v{cvRA}, {CRING}, v{vT+1}")
for u in range(1, 8): e(f"v_xor_b32 v{cvRA+u}, {32*u}, v{cvRA}")
for p in range(1, OPT['apre']):
    for k in range(4): c_aload(p, k)
tsT(); e("s_cbranch_scc0 LC_slowT"); g.lab("LC_goT")
e("v_readlane_b32 s40, v13, 1"); e("v_readlane_b32 s41, v13, 0"); e("s_nop 0"); e("s_sub_u32 s40, s40, s41")
e(f"s_xor_b32 s41, s{cQ}, {OPT['px']}"); e(f"s_sub_u32 s41, s41, s{cQ}"); e(f"s_mul_i32 s42, s41, {72*512}"); e(f"s_mul_i32 s41, s41, {896*2048}")
sv = g.L; g.L = g.tail; g.lab("LC_slowT"); spin("LC_spinT", ldT, tsT, sT+3); e("s_branch LC_goT"); g.L = sv
e("s_barrier")
delay(2, 35)
VL = [([(0, k) for k in range(14)], 0), ([(0, k) for k in range(14)] + [(1, 13)], 0), ([(0, k) for k in range(13)], 0)]
e(f"s_cmp_gt_i32 s40, {OPT['th']}"); e("s_cbranch_scc1 LC_ver1"); e(f"s_cmp_lt_i32 s40, {-OPT['th']}"); e("s_cbranch_scc1 LC_ver2")
V0 = list(g.v); CUR0 = dict(CUR)
for V, (hs, qs) in enumerate(VL):
    HS = list(hs); NH = len(HS); NS = NH + 4; NOWN = min(NH, 14); g.v = list(V0); CUR.update(CUR0)
    g.lab(f"LC_ver{V}")
    SEQ = []; E = OPT['E']; LD = OPT['LD']; assert D == 6 and E <= 2
    for s in range(NH):
        for ku in range(2):
            us = list(range(8)) if not (s == NH-1 and ku == 1) else [4,5,6,7,2,3,0,1]
            SEQ += [(s, ku, u, (0, 1)) for u in us if u >= 2 or s < NH - E]
    I1 = len(SEQ)
    SEQ += [(s, ku, u, (0, 1)) for s in range(NH, NS) for ku in range(2) for u in range(4, 8)]
    I2 = len(SEQ)
    SEQ += [(s, ku, u, (0, 1)) for s in range(NH, NS) for ku in range(2) for u in (2, 3)]
    I3 = len(SEQ)
    SEQ += [(s, ku, u, (0, 1)) for s in range(NH, NS) for ku in range(2) for u in (0, 1)]
    I4 = len(SEQ)
    SEQ += [(s, ku, u, (0, 1)) for s in range(NH-E, NH) for ku in range(2) for u in (0, 1)]
    RS = {}
    for k, u in enumerate([4,5,6,7,2,3,0,1]): RS[I1 - (3 if E else 4) + k] = u
    if OPT['csn']: SEQ = [(s, ku, u, m[::-1] if (i & 1) else m) for i, (s, ku, u, m) in enumerate(SEQ)]
    def wread(i):
        if i >= len(SEQ): return
        s, ku, u, _ = SEQ[i]
        for tr in range(2):
            g.lds(f"ds_read_b64_tr_b16 {vr(cvWF+4*(i&7)+2*tr,2)}, v{cvRA+u+(8 if s%6 >= 4 else 0)} offset:{(s%6%4)*16384+ku*8192+tr*2048}", ('W', i & 7))
    g.q = []
    for i in range(7): wread(i)
    stamp('loopC')
    cRD = 48
    cvO32, cvRF, cvOUT, cvG = 22, 23, 24, 25
    def ldO(): e(f"buffer_load_dword v{cvPL}, v{cvO32}, {sr(sWS,4)}, s54 offen offset:{FL_O} sc1")
    def ldR(): e(f"buffer_load_dword v{cvPL}, v{cvRF}, {sr(sWS,4)}, s{sT+6} offen offset:{FL_P} sc1")
    def ldR2(): e(f"buffer_load_dword v{cvPL}, off, {sr(sWS,4)}, s{sT+5} offset:{FL_P2} sc1")
    def rloads(ii):
        for i in ii:
            e(f"s_add_u32 s{sT}, s{cRD+3}, {i*16384}")
            for f in range(2): e(f"buffer_load_dwordx4 {vr(cvACC+16*i+8+4*f,4)}, v{vL16}, {sr(sWS,4)}, s{sT} offen offset:{f*1024} sc1")
    def rtake(tag, timeout=False):
        e(f"v_cmp_eq_u32 vcc, 1, v{cvPL}")
        if timeout: e(f"s_sub_u32 s{sT+3}, s{sT+3}, 1"); e(f"s_cselect_b32 s{sT+1}, 15, 0"); e(f"s_or_b32 s{sT+1}, s{sT+1}, vcc_lo")
        else: e("s_nop 1"); e(f"s_mov_b32 s{sT+1}, vcc_lo")
        e(f"s_andn2_b32 s{sT+1}, s{sT+1}, s{sT+5}"); e(f"s_and_b32 s{sT+1}, s{sT+1}, 15"); e(f"s_or_b32 s{sT+5}, s{sT+5}, s{sT+1}")
        for i in (1, 2, 3):
            e(f"s_bitcmp1_b32 s{sT+1}, {i}"); e(f"s_cbranch_scc0 LC_rn{i}{tag}"); rloads((i,)); g.lab(f"LC_rn{i}{tag}")
    t0, t1 = vT, vT+1
    fill = {s: [] for s in range(NS)}
    fill[1] = [[x] for x in (
        f"v_and_b32 v{cvO32}, 31, v{L}", f"v_lshlrev_b32 v{cvO32}, 9, v{cvO32}", f"s_lshl_b32 s54, s{sRB}, 14", f"s_add_u32 s54, s54, {WS_FL:#x}",
        f"v_and_b32 v{t0}, 3, v{L}", f"v_max_u32 v{t0}, 1, v{t0}", f"v_lshlrev_b32 v{t1}, 1, v{t0}", f"v_and_b32 v{t1}, 4, v{t1}", f"v_xor_b32 v{t1}, 4, v{t1}",
        f"v_lshlrev_b32 v{t0}, 3, v{t0}", f"v_xor_b32 v{t0}, s{sLAM}, v{t0}", f"v_lshl_add_u32 v{cvRF}, v{t0}, 9, v{t1}",
        f"s_mov_b32 s{sT+6}, {WS_FL:#x}", f"s_mov_b32 s{sDN}, 0", f"s_mov_b32 s{sOK+1}, 0", f"s_mov_b32 s{sT+5}, 1",
        f"v_mov_b32 v{t0}, 0", f"ds_write_b32 v{t0}, v{t0} offset:{CNT3}", f"ds_write_b32 v{t0}, v{t0} offset:{CNT3+4}")]
    fill[1] += [[f"v_add_u32 v{cvRA+8+u}, {(SLOT[4]-SLOT[0]) & 0xffffffff:#x}, v{cvRA+u}"] for u in range(8)]
    fill[2] = [[x] for x in (
        f"s_lshl_b32 s{sT}, s{sRB}, 3", f"s_add_u32 s{sT}, s{sT}, s{cNT}", f"s_lshl_b32 s{sT}, s{sT}, 18", f"s_lshl_b32 s{sT+1}, s{sW}, 11", f"s_add_u32 s{sT}, s{sT}, s{sT+1}", f"s_add_u32 s{sT}, s{sT}, {WS_PART:#x}")]
    for i in (1, 2, 3):
        fill[2] += [[x] for x in (f"s_xor_b32 s{sT+1}, s{cQ}, {i}", f"s_lshl_b32 s{sT+1}, s{sT+1}, 16", f"s_add_u32 s{sT+1}, s{sT+1}, s{sT}", f"s_add_u32 s{cRD+i-1}, s{sT+1}, {i*16384}")]
    fill[2] += [[x] for x in (f"s_lshl_b32 s{sT+1}, s{cQ}, 16", f"s_add_u32 s{cRD+3}, s{sT+1}, s{sT}",
        f"s_lshl_b32 s{sT}, s{sRB}, 19", f"s_lshl_b32 s{sT+1}, s{sW}, 16", f"s_add_u32 s{sT}, s{sT}, s{sT+1}",
        f"s_lshl_b32 s{sT+1}, s{cNT}, 8", f"s_add_u32 s{sT}, s{sT}, s{sT+1}", f"s_lshl_b32 s{sT+1}, s{cQ}, 6",
        f"s_add_u32 s{cRD+4}, s{sT}, s{sT+1}", f"s_add_u32 s39, s{cRD+4}, 32768",
        f"v_and_b32 v{cvOUT}, 15, v{L}", f"v_lshlrev_b32 v{cvOUT}, 11, v{cvOUT}", f"v_bfe_u32 v{t0}, v{L}, 4, 1", f"v_lshl_add_u32 v{cvOUT}, v{t0}, 5, v{cvOUT}",
        f"v_lshrrev_b32 v{t0}, 5, v{L}", f"v_lshl_add_u32 v{cvOUT}, v{t0}, 4, v{cvOUT}")]
    send = {1: [], 2: [], 3: []}
    for i in (1, 2, 3):
        d = cvACC + 16*i
        for k in range(4):
            a = cvACC + 16*i + 4*k
            send[i] += [[f"v_cvt_pk_bf16_f32 v{d+2*k}, v{a}, v{a+1}", f"v_cvt_pk_bf16_f32 v{d+2*k+1}, v{a+2}, v{a+3}"]]
            if k & 1: send[i] += [[f"@{'T' if i == 1 else 'S'} buffer_store_dwordx4 {vr(d+4*(k>>1),4)}, v{vL16}, {sr(sWS,4)}, s{cRD+i-1} offen offset:{(k>>1)*1024} sc1"]]
    pa = [(s, k) for s in range(OPT['apre'], NS) for k in range(4)]
    pd = [(s, k) for s in range(NPRE, NS) for k in range(2)]
    cvG2 = 172
    cvGc = 174
    def gload():
        e(f"v_and_b32 v{t0}, 7, v{L}"); e(f"v_bfe_u32 v{t1}, v{L}, 3, 1"); e(f"v_lshlrev_b32 v{t1}, 9, v{t1}"); e(f"v_lshl_add_u32 v{t0}, v{t0}, 2, v{t1}")
        e(f"s_lshl_b32 s{sT}, s{sW}, 11"); e(f"s_add_u32 s{sT}, s{sT}, s54")
        for k in range(2): g.vm(f"buffer_load_dword v{cvG2+k}, v{t0}, {sr(sWS,4)}, s{sT} offen offset:{1024*k} sc1", 'gv')
    fill[NH-1] = [["@G"]]
    for k in range(2):
        r = cvG2 + k
        fill[NH-1] += [[f"v_max_f32 v{cvGc+k}, {f32(2.0**-60)}, v{r}"], [f"v_sub_f32 v{r}, 1.0, v{r}"], [f"v_cvt_pk_bf16_f32 v{r}, v{r}, v{r}"], [f"v_and_b32 v{r}, 0xffff0000, v{r}"],
                       [f"v_rcp_f32 v{t0}, v{cvGc+k}", "s_nop 0"], [f"v_mul_f32 v{r}, v{r}, v{t0}"]]
    def rescale(u, mf):
        a = cvACC + 8*u + 4*mf
        if OPT['dbg'] & 2:
            for r in range(4): e(f"v_mul_f32 v{a+r}, v{a+r}, v{cvG2+mf}")
            return
        for r in (0, 2): e(f"v_pk_mul_f32 {vr(a+r,2)}, {vr(a+r,2)}, {vr(cvG2,2)} op_sel:[0,{mf}] op_sel_hi:[1,{mf}]")
    WIN = [[16, 31, fill[1]], [32, 47, fill[2]], [I1-16, I1-5, fill[NH-1]], [I2+1, I2+8, send[2]+send[3]], [I3+1, I3+4, send[1]]]
    for w in WIN: w.append(len(w[2]))
    vis = 0; SIGD = False
    def nafter(tag): return min(15, len(g.v) - 1 - max(i for i, t in enumerate(g.v) if t == tag)) if tag in g.v else min(15, len(g.v))
    for i, (s, ku, u, mfs) in enumerate(SEQ):
        if i == I1: stamp('endH')
        if OPT['pp'] == 1:
            if i == I1: e("s_setprio 2")
            if i == I2 + 9: e("s_setprio 1")
            if i == I3 + 5: e("s_setprio 0")
        if OPT['pp'] == 2 and i in (I2, I3): e("s_barrier")
        cur = NS if i >= I1 else s
        for idx, mf in enumerate(mfs):
            k = 2*ku + mf; a = (cvACC if i < I4 else cvOA) + 8*u + 4*mf
            g.need([('W', i & 7)], [('a', s, k)])
            e(f"{MF16} {vr(a,4)}, {vr(cvWF+4*(i&7),4)}, {vr(cvAR+16*((s+1)%D)+4*k,4)}, " + ("0" if (i < 8 or I4 <= i < I4 + 2) else vr(a,4)))
            if i in RS: rescale(RS[i], mf)
            if idx == 0:
                if i + 7 < len(SEQ) and SEQ[i+7][0] > vis:
                    vis = SEQ[i+7][0]
                    g.need([('W', k) for k in range(8)] if vis <= NH else [], [('d', vis)] + (['st'] if vis == 2 else [])); e("s_barrier")
                    if vis == 2:
                        e(f"s_cmp_lg_u32 s{sW}, 0"); e(f"s_cbranch_scc1 LC_nof1{V}")
                        one_lane(lambda: e(f"buffer_store_dword v{vCN}, off, {sr(sWS,4)}, s{sT+7} offset:{FL_O} sc1"))
                        g.lab(f"LC_nof1{V}")
                wread(i+7)
                nxt = None
                if i % 2 == 0 or i >= I1:
                    okd = pd and pd[0][0] <= cur + LD; oka = pa and pa[0][0] <= cur + LD; assert LD <= 5
                    if okd and (not oka or pd[0][0] <= pa[0][0] and (i % 16 % 6 == 2 or pd[0][0] < pa[0][0])): nxt = 'd'
                    elif oka: nxt = 'a'
                    if nxt == 'd' and pd[0][1] == 0: c_m0(pd[0][0])
            for lo, hi, fl, n0 in WIN:
                if lo <= i <= hi:
                    frac = (i - lo + (idx+1)/len(mfs)) / (hi - lo + 1)
                    while fl and (n0 - len(fl)) < n0 * frac - 1e-9:
                        for x in fl.pop(0):
                            if x.startswith("@S "): g.vm(x[3:], 'snd')
                            elif x.startswith("@T "): g.vm(x[3:], 'snd2')
                            elif x == "@G": g.need([], ['gv'])
                            else: e(x)
            if idx == len(mfs) - 1:
                if nxt == 'd': c_dma(*pd.pop(0))
                elif nxt == 'a':
                    if pa[0] == (NOWN, 0):
                        g.need([], ['opoll']); tsL(); e(f"s_cbranch_scc0 LC_slowO{V}"); g.lab(f"LC_goO{V}"); gload()
                    c_aload(*pa.pop(0))
                if i == 16*(NOWN - LD - 2) + 1: ldO(); g.v.append('opoll')
                if not SIGD and i >= I2 + 11 and (i - I2) % 4 == 3: trysig(nafter('snd'), CNT3, 0, FL_P, force=(i == len(SEQ)-1))
                if not SIGD and i >= I3 + 9 and (i - I3) % 4 == 1: trysig(nafter('snd2'), CNT3+4, 0, FL_P2, sDN=sOK+1)
                if i in (I3 + OPT['rq1'], len(SEQ) - 1 - OPT['rp']): ldR(); g.v.append('rpoll')
                if i == I3 + OPT['rq1'] + 7:
                    g.need([], ['rpoll']); trysig(15, CNT3, 0, FL_P, force=True); trysig(15, CNT3+4, 0, FL_P2, force=True, sDN=sOK+1); rtake(f"{V}e"); SIGD = True
    assert not pa and not pd and not any(w[2] for w in WIN)
    if V < len(VL) - 1: e("s_branch LC_done")
    sv = g.L; g.L = g.tail
    g.lab(f"LC_slowO{V}"); spin(f"LC_spinO{V}", ldO, tsL, sT+3); e(f"s_branch LC_goO{V}")
    g.L = sv
g.lab("LC_done")
sv = g.L; g.L = g.tail
g.lab("LC_slowH"); spin("LC_spinH", ldH, tsL, sT+3); e("s_branch LC_goH")
g.L = sv
delay(3, 12)
stamp('endC')
if not SIGD: trysig(nafter('snd2'), CNT3+4, 0, FL_P2, force=True, sDN=sOK+1)
e(f"s_mov_b32 s{sT+3}, {SPIN:#x}")
e(f"v_mov_b32 v{vT+4}, 0x3f80"); e(f"v_mov_b32 v{vT+5}, 0x3f800000")
if OPT['E']:
    e("s_nop 4")
    for r in range(16): e(f"v_fmac_f32 v{cvACC+r}, v{cvG2+((r>>2)&1)}, v{cvOA+r}")
g.lab("LC_rl")
e("s_waitcnt vmcnt(0)"); rtake("x", True)
e(f"s_cmp_eq_u32 s{sT+5}, 15"); e("s_cbranch_scc1 LC_rd")
if OPT['rsl']: e(f"s_sleep {OPT['rsl']}")
ldR(); e("s_branch LC_rl")
g.lab("LC_rd")
e("s_waitcnt vmcnt(0)")
for i in (2, 3, 1):
    d = cvACC + 16*i + 8
    for r in range(16): e(f"v_dot2_f32_bf16 v{cvACC+r}, v{d+(r>>1)}, v{vT+4+(r&1)}, v{cvACC+r}")
e("s_nop 2")
for mf in range(2):
    x = cvACC + 4*mf; y = x + 8; d = cvOA + 4*mf
    for r in range(4): e(f"v_mul_f32 v{x+r}, v{cvGc+mf}, v{x+r}"); e(f"v_mul_f32 v{y+r}, v{cvGc+mf}, v{y+r}")
    if OPT['pscale']:
        for r in range(4): e(f"v_mul_f32 v{x+r}, {f32(OPT['pscale'])}, v{x+r}"); e(f"v_mul_f32 v{y+r}, {f32(OPT['pscale'])}, v{y+r}")
    if OPT['perr'] and mf == 0:
        e(f"s_or_b32 s{sT}, s2, s{sW}"); e(f"s_cmp_eq_u32 s{sT}, 0"); e(f"s_cselect_b32 s{sT}, {f32(OPT['perr'])}, 0")
        e("s_mov_b64 exec, 1"); e(f"v_add_f32 v{x}, s{sT}, v{x}"); e("s_mov_b64 exec, -1")
    e(f"v_cvt_pk_bf16_f32 v{d}, v{x}, v{x+1}"); e(f"v_cvt_pk_bf16_f32 v{d+1}, v{x+2}, v{x+3}")
    e(f"v_cvt_pk_bf16_f32 v{d+2}, v{y}, v{y+1}"); e(f"v_cvt_pk_bf16_f32 v{d+3}, v{y+2}, v{y+3}")
    e("s_nop 1")
    e(f"v_permlane16_swap_b32 v{d}, v{d+2}"); e(f"v_permlane16_swap_b32 v{d+1}, v{d+3}")
    e(f"buffer_store_dwordx4 {vr(d,4)}, v{cvOUT}, {sr(cOUT,4)}, s{cRD+4 if mf == 0 else 39} offen {OPT['ost']}")
g.lab("LC_fin")
stamp('fin')
if OPT['stamp']:
    e(f"s_lshl_b32 s{sT}, s2, 3"); e(f"s_add_u32 s{sT}, s{sT}, s{sW}"); e(f"s_lshl_b32 s{sT}, s{sT}, 7"); e(f"s_add_u32 s{sT}, s{sT}, {WS_STAMP:#x}")
    e(f"v_lshlrev_b32 v{vT}, 2, v{L}"); e("s_mov_b32 exec_hi, 0")
    e(f"buffer_store_dword v0, v{vT}, {sr(sWS,4)}, s{sT} offen")
    if OPT['stamp'] == 2:
        e(f"v_readlane_b32 s{sT}, v0, 16"); e(f"s_not_b32 s{sT}, s{sT}"); e(f"v_writelane_b32 v0, s{sT}, 16")
        e(f"v_subrev_u32 v{vT}, 60, v{vT}"); e(f"s_mov_b32 exec_lo, {((1<<len(SN))-1)<<16:#x}")
        e(f"buffer_atomic_umax v0, v{vT}, {sr(sDBG,4)}, 0 offen sc1")
if OPT['fixt']:
    if OPT['fixx'] >= 0: e("s_and_b32 s90, s2, 7"); e(f"s_cmp_lg_u32 s90, {OPT['fixx']}"); e("s_cbranch_scc1 L_end")
    g.lab("LF_spin"); e("s_memrealtime s[88:89]"); e("s_waitcnt lgkmcnt(0)"); e("s_sub_u32 s88, s88, s86"); e(f"s_cmp_lt_u32 s88, {OPT['fixt']}"); e("s_cbranch_scc1 LF_spin")
g.lab("L_end")
e("s_endpgm")
g.L += g.tail + g.tail2 + ['LZ_end:']
if OPT['nobar'] or OPT['nodma'] or OPT['nolds'] or OPT['noadv']:
    o = []; inl = False
    for l in g.L:
        if l.startswith('LA_loop') or l.startswith('LC_loop'): inl = True
        if 'LA_h1_' in l or l.startswith('LC_done'): inl = False
        if inl and OPT['nobar'] and 's_barrier' in l: continue
        if inl and OPT['nodma'] and 'buffer_load' in l: continue
        if inl and OPT['nolds'] and 'ds_read' in l: continue
        if inl and OPT['noadv'] and any(f's_add_u32 s{k}, s{k},' in l for k in list(range(sOW, sOW+5)) + [sKX]): continue
        o.append(l)
    g.L = o

DOC = ["; " + l for l in '''
One persistent launch, 256 workgroups x 8 waves, one per CU.  Workgroup = (row block rb of 256 rows, head h).
 A: [q k v | gate | up] = x[256 rows] @ W[:, 96+112+112 cols]; LDS-DMA staging, 16x16x32 MFMA, L2 prefetch of later tiles.
    The last K trip is peeled; K/V publication and silu(gate)*up are folded under its MFMAs.
 B: sliding-window attention of head h (own K/V from LDS, previous row block's K/V from the workspace).
    Softmax shift = max of the diagonal tile; if the row sum shows that shift was too small, the wave redoes the
    block with the true row max (LB_exact).
 C: out tile [256 x 128] over one quarter of K of [h | o] @ [w_down ; wo]; accumulators are scaled by (1-g)/g between
    the h and o parts, the four quarters are summed through the workspace, times g at the end.
Hand-offs: write-through (sc1) stores, drained, counted in LDS, then an sc1 flag in the producer's workspace record;
records are cleared by their owner and acknowledged on d_debug counters before any flag is trusted.
Generated by a script; every spin is bounded.
'''.strip().split("\n")]
hdr = [l.rstrip('\n') for l in open("cdna_kernels/%s.s.ref" % NAME)]
hdr = [l for l in hdr if l.startswith(';') and '@launch' not in l]
out = hdr + [f"; @launch grid=(256,1,1) block=(512,1,1) lds={LDS_BYTES}"] + DOC + ['.amdgcn_target "amdgcn-amd-amdhsa--gfx950"', ".text"] + g.L
out += ['.section .rodata,"a"', ".p2align 6", f""".amdhsa_kernel {KN}
  .amdhsa_next_free_vgpr 256
  .amdhsa_next_free_sgpr 102
  .amdhsa_accum_offset 256
  .amdhsa_group_segment_fixed_size 0
  .amdhsa_kernarg_size 88
  .amdhsa_user_sgpr_count 2
  .amdhsa_user_sgpr_kernarg_segment_ptr 1
  .amdhsa_system_sgpr_workgroup_id_x 1
.end_amdhsa_kernel"""]
out.insert(0, "; stamps: " + ",".join(SN)) if OPT['stamp'] else None
open(sys.argv[1], "w").write("\n".join(out) + "\n")
import hazard
errs = hazard.check("\n".join(g.L))
print("\n".join(errs) if errs else "hazard check clean")
```
